```python
import torch

def _softmax(x, axis=-1):
    return torch.softmax(x, dim=axis)
def _gelu(x):
    return torch.nn.functional.gelu(x, approximate="tanh")
def _silu(x):
    return torch.nn.functional.silu(x)
def _sigmoid(x):
    return torch.sigmoid(x)
def _layernorm(x, axis=-1, eps=1e-5):
    m = x.mean(dim=axis, keepdim=True)
    v = x.var(dim=axis, keepdim=True, unbiased=False)
    return (x - m) / torch.sqrt(v + eps)
def _scatter_add(tgt, idx, src, axis=0):
    return tgt.clone().index_add_(axis, idx, src)
def _segment_sum(src, seg, n):
    out = torch.zeros((n,) + src.shape[1:], dtype=src.dtype)
    return out.index_add_(0, seg, src)
def _pad(x, pw):
    flat = tuple(v for pair in reversed(pw) for v in pair)
    return torch.nn.functional.pad(x, flat)

kernel_name = 'gated_mix__ssm_conv_s5__glu_gated_swiglu__prompt'

def setup_inputs():

    _w = (lambda a: (lambda t: t.to(torch.bfloat16) if t.is_floating_point() else t)(torch.as_tensor(a)))
    def _A_setup():
        B, S, D = 1, 2048, 512
        P = D
        Lambda_re = -0.5 * (lambda _x: torch.exp(torch.as_tensor(_x)))((lambda *s: torch.randn(*s, dtype=torch.bfloat16) * 0.2)(P))
        Lambda_im = (lambda *s: torch.randn(*s, dtype=torch.bfloat16) * 0.4)(P) * 1.0
        B_re = (lambda *s: torch.randn(*s, dtype=torch.bfloat16) * 0.2)(P, D) * (D ** -0.5)
        B_im = (lambda *s: torch.randn(*s, dtype=torch.bfloat16) * 0.2)(P, D) * (D ** -0.5)
        C_re = (lambda *s: torch.randn(*s, dtype=torch.bfloat16) * 0.2)(D, P) * (P ** -0.5)
        C_im = (lambda *s: torch.randn(*s, dtype=torch.bfloat16) * 0.2)(D, P) * (P ** -0.5)
        log_dt = (lambda *s: torch.randn(*s, dtype=torch.bfloat16) * 0.2)(P) * 0.3 - 2.0
        Dskip = (lambda *s: torch.randn(*s, dtype=torch.bfloat16) * 0.05)(D)
        return {
            "x": _w((lambda *s: torch.randn(*s, dtype=torch.bfloat16) * 0.05)(B, S, D)),
            "Lambda_re": _w(Lambda_re),
            "Lambda_im": _w(Lambda_im),
            "B_re": _w(B_re),
            "B_im": _w(B_im),
            "C_re": _w(C_re),
            "C_im": _w(C_im),
            "log_dt": _w(log_dt),
            "Dskip": _w(Dskip),
        }
    _A_in = _A_setup()

    def _B_setup():
        B, S, D, F = 1, 2048, 512, 1376
        return {
            "x": _w((lambda *s: torch.randn(*s, dtype=torch.bfloat16) * 0.05)(B, S, D)),
            "w1": _w((lambda *s: torch.randn(*s, dtype=torch.bfloat16) * 0.8)(D, F) * (2.0 / D) ** 0.5),
            "w3": _w((lambda *s: torch.randn(*s, dtype=torch.bfloat16) * 0.8)(D, F) * (2.0 / D) ** 0.5),
            "w2": _w((lambda *s: torch.randn(*s, dtype=torch.bfloat16) * 0.8)(F, D) * (2.0 / F) ** 0.5),
        }
    _B_in = _B_setup()

    return {
        "A_x": _A_in["x"],
        "A_Lambda_re": _A_in["Lambda_re"],
        "A_Lambda_im": _A_in["Lambda_im"],
        "A_B_re": _A_in["B_re"],
        "A_B_im": _A_in["B_im"],
        "A_C_re": _A_in["C_re"],
        "A_C_im": _A_in["C_im"],
        "A_log_dt": _A_in["log_dt"],
        "A_Dskip": _A_in["Dskip"],
        "B_x": _B_in["x"],
        "B_w1": _B_in["w1"],
        "B_w3": _B_in["w3"],
        "B_w2": _B_in["w2"],
        "gate_w": _w((lambda *s: torch.randn(*s, dtype=torch.bfloat16) * 0.05)(512) * 16.0),
    }

def reference(A_x, A_Lambda_re, A_Lambda_im, A_B_re, A_B_im, A_C_re, A_C_im, A_log_dt, A_Dskip, B_x, B_w1, B_w3, B_w2, gate_w):
    def _A_ref(x, Lambda_re, Lambda_im, B_re, B_im, C_re, C_im, log_dt, Dskip):
        Bsz, L, H = x.shape
        Lam = Lambda_re + 1j * Lambda_im
        Bmat = B_re + 1j * B_im
        Cmat = C_re + 1j * C_im
        dt = torch.exp(log_dt)
        Lam_bar = torch.exp(dt * Lam)
        B_bar = ((Lam_bar - 1.0) / Lam)[:, None] * Bmat
        Bu = torch.einsum("bld,pd->blp", x + 0j, B_bar)
        h = torch.zeros_like(Bu[:, 0, :])
        hs = []
        for t in range(L):
            h = Lam_bar[None, :] * h + Bu[:, t, :]
            hs.append(h)
        hseq = torch.stack(hs, 1)
        y = 2.0 * torch.einsum("blp,dp->bld", hseq, Cmat).real + x * Dskip[None, None, :]
        return y

    def _B_ref(x, w1, w3, w2):
        gate = torch.einsum("bsd,df->bsf", x, w1)
        up = torch.einsum("bsd,df->bsf", x, w3)
        h = _silu(gate) * up
        out = torch.einsum("bsf,fd->bsd", h, w2)
        return out

    x = A_x
    g = _sigmoid((x * gate_w).sum(-1, keepdims=True))
    a = _A_ref(x, A_Lambda_re, A_Lambda_im, A_B_re, A_B_im, A_C_re, A_C_im, A_log_dt, A_Dskip)
    b = _B_ref(x, B_w1, B_w3, B_w2)
    return g * a + (1 - g) * b
```

```python
import sys, struct

NAME = "gated_mix__ssm_conv_s5__glu_gated_swiglu__prompt"

def f2u(x):
    return struct.unpack("<I", struct.pack("<f", x))[0]

LOG2E = 1.4426950408889634
INV2PI = 0.15915494309189535

NKS = 150
A_BYTES = 64 * NKS * 1024
E_OFF = 0xA00000
G_OFF = 0xA20000


class Asm:
    def __init__(self):
        self.L = []
        self.vm = []
        self.lg = []

    def e(self, s):
        self.L.append("  " + s)

    def c(self, s):
        self.L.append("  ; " + s)

    def lab(self, s):
        self.L.append(s + ":")

    def vmi(self, tag, s):
        self.e(s)
        self.vm.append(tag)
        assert len(self.vm) <= 63, "too many vmem ops in flight"

    def vmw(self, tag, extra=""):
        idx = [i for i, t in enumerate(self.vm) if t == tag]
        if not idx:
            return None
        n = len(self.vm) - 1 - idx[-1]
        self.vm = self.vm[idx[-1] + 1:]
        self.e("s_waitcnt vmcnt(%d)%s" % (n, extra))
        return n

    def lgi(self, tag, s):
        self.e(s)
        self.lg.append(tag)

    def lgw(self, tag):
        idx = [i for i, t in enumerate(self.lg) if t == tag]
        if not idx:
            return
        n = len(self.lg) - 1 - idx[-1]
        self.lg = self.lg[idx[-1] + 1:]
        self.e("s_waitcnt lgkmcnt(%d)" % min(n, 15))

    def lgw0(self):
        if self.lg:
            self.e("s_waitcnt lgkmcnt(0)")
        self.lg = []


def v(a, n=1):
    return "v%d" % a if n == 1 else "v[%d:%d]" % (a, a + n - 1)

def a(a_, n=1):
    return "a%d" % a_ if n == 1 else "a[%d:%d]" % (a_, a_ + n - 1)

def s(a_, n=1):
    return "s%d" % a_ if n == 1 else "s[%d:%d]" % (a_, a_ + n - 1)


def srd(A, d, base, nbytes, addlo=None):
    if addlo is None:
        A.e("s_mov_b32 s%d, s%d" % (d, base))
        A.e("s_mov_b32 s%d, s%d" % (d + 1, base + 1))
    else:
        A.e("s_add_u32 s%d, s%d, %s" % (d, base, addlo))
        A.e("s_addc_u32 s%d, s%d, 0" % (d + 1, base + 1))
    A.e("s_mov_b32 s%d, 0x%x" % (d + 2, nbytes))
    A.e("s_mov_b32 s%d, 0x20000" % (d + 3))


SLOT = 24576
NSLOT = 6
MISC = SLOT * NSLOT
K1_LDS = MISC + 4096
ORD = [("P", c) for c in range(8)] + [("F", c) for c in range(8)]

sW, sR, sJ = 3, 4, 5
sX, sLRE, sLIM, sBRE, sBIM, sLDT = 16, 18, 20, 22, 24, 30
sW1, sW3, sGW, sDBG, sWS = 32, 34, 36, 40, 42
rX, rBRE, rBIM, rW1, rW3, rAS, rE, rDBG, rG = 44, 48, 52, 56, 60, 64, 68, 72, 76


def swiglu_tile(A, acc, t0, dst):
    for r in range(8):
        A.e("v_mul_f32 %s, s80, %s" % (v(t0 + r), v(acc + r)))
    for r in range(8):
        A.e("v_exp_f32 %s, %s" % (v(t0 + r), v(t0 + r)))
    for r in range(8):
        A.e("v_mul_f32 %s, %s, %s" % (v(acc + r), v(acc + r), v(acc + 8 + r)))
    for r in range(8):
        A.e("v_add_f32 %s, 1.0, %s" % (v(t0 + r), v(t0 + r)))
    for r in range(8):
        A.e("v_rcp_f32 %s, %s" % (v(t0 + r), v(t0 + r)))
    A.e("s_nop 0")
    for r in range(8):
        A.e("v_mul_f32 %s, %s, %s" % (v(acc + r), v(acc + r), v(t0 + r)))
    for q in range(4):
        A.e("v_cvt_pk_bf16_f32 %s, %s, %s" % (v(dst + q), v(acc + 2 * q), v(acc + 2 * q + 1)))


def k1_common_prologue(A):
    A.e("s_cmp_ge_u32 s2, 256")
    A.e("s_cbranch_scc1 L_k1_end")
    A.e("s_load_dwordx16 s[16:31], s[0:1], 0")
    A.e("s_load_dwordx4 s[32:35], s[0:1], 80")
    A.e("s_load_dwordx2 s[36:37], s[0:1], 104")
    A.e("s_load_dwordx4 s[40:43], s[0:1], 120")
    A.e("v_lshrrev_b32 v2, 6, v0")
    A.e("v_and_b32 v1, 63, v0")
    A.e("v_readfirstlane_b32 s3, v2")
    A.e("s_bfe_u32 s4, s2, 0x20001")
    A.e("s_lshl_b32 s4, s4, 2")
    A.e("s_bfe_u32 s6, s2, 0x20003")
    A.e("s_add_u32 s4, s4, s6")
    A.e("s_and_b32 s5, s2, 1")
    A.e("s_lshl_b32 s5, s5, 3")
    A.e("s_lshr_b32 s6, s2, 5")
    A.e("s_add_u32 s5, s5, s6")
    A.e("s_and_b32 s7, s3, 3")
    A.e("s_mov_b32 s80, 0x%x" % f2u(-LOG2E))
    A.e("v_and_b32 v8, 31, v1")
    A.e("v_lshrrev_b32 v9, 5, v1")
    A.e("v_bfe_u32 v10, v1, 1, 3")
    A.e("v_xor_b32 v10, v10, v9")
    A.e("v_lshlrev_b32 v10, 4, v10")
    A.e("v_lshl_add_u32 v7, v8, 7, v10")
    A.e("v_bfe_u32 v10, v1, 4, 1")
    A.e("v_mul_u32_u24 v12, 3104, v10")
    A.e("v_lshlrev_b32 v11, 9, v9")
    A.e("v_add_u32 v12, v12, v11")
    A.e("v_bfe_u32 v11, v1, 2, 2")
    A.e("v_lshl_add_u32 v12, v11, 6, v12")
    A.e("v_and_b32 v11, 3, v1")
    A.e("v_lshl_add_u32 v12, v11, 3, v12")
    A.e("v_xor_b32 v13, 32, v12")
    A.e("s_lshl_b32 s6, s4, 2")
    A.e("s_add_u32 s6, s6, s7")
    A.e("s_mul_i32 s81, s6, %d" % (NKS * 1024))
    A.e("s_waitcnt lgkmcnt(0)")
    srd(A, rAS, sWS, A_BYTES)
    A.e("s_cmp_ge_u32 s3, 4")
    A.e("s_cbranch_scc1 L_k1_F")


def k1_ffn_store(A, T, src, lab):
    A.e("s_mul_i32 s6, s5, 6")
    A.e("s_add_u32 s6, s6, %d" % T)
    A.e("s_cmp_ge_u32 s6, 86")
    A.e("s_cbranch_scc1 %s" % lab)
    A.e("s_add_u32 s6, s82, %d" % (T * 1024))
    A.e("buffer_store_dwordx4 %s, v6, %s, s6 offen" % (v(src, 4), s(rAS, 4)))
    A.lab(lab)


def k1_F(A):
    A.vm, A.lg = [], []
    A.lab("L_k1_F")
    ACC, FB = 64, (32, 48)
    A.e("s_lshl_b32 s6, s4, 17")
    srd(A, rX, sX, 131072, "s6")
    A.e("v_lshrrev_b32 v10, 4, v1")
    A.e("v_and_b32 v11, 7, v1")
    A.e("v_xor_b32 v10, v10, v11")
    A.e("v_lshlrev_b32 v10, 4, v10")
    A.e("v_bfe_u32 v11, v1, 3, 2")
    A.e("v_lshl_add_u32 v2, v11, 10, v10")
    A.e("v_lshl_add_u32 v2, v9, 14, v2")
    A.e("s_lshl_b32 s6, s7, 15")
    A.e("v_add_u32 v2, s6, v2")
    A.e("v_xor_b32 v3, 64, v2")
    A.e("v_add_u32 v3, 4096, v3")
    A.e("s_lshl_b32 s8, s7, 12")
    A.e("s_lshl_b32 s9, s7, 10")
    A.e("s_mul_i32 s10, s7, 6144")
    A.e("s_lshl_b32 s6, s5, 15")
    srd(A, rBRE, sBRE, 32768, "s6")
    srd(A, rBIM, sBIM, 32768, "s6")
    A.e("s_and_b32 s6, s7, 1")
    A.e("s_lshl_b32 s6, s6, 6")
    A.e("v_xor_b32 v4, s6, v10")
    A.e("v_lshrrev_b32 v11, 3, v1")
    A.e("v_lshl_add_u32 v4, v11, 10, v4")
    A.e("s_lshl_b32 s6, s7, 13")
    A.e("v_add_u32 v4, s6, v4")

    def dma(n):
        kind, c = ORD[n]
        slot = (n % NSLOT) * SLOT
        tag = "ch%d" % n
        if kind == "P":
            A.e("s_movk_i32 s11, %d" % (128 * c))
            A.e("s_movk_i32 s12, %d" % (128 * c + 8192))
            for q in range(4):
                A.e("s_add_u32 m0, s8, %d" % (slot + 1024 * q))
                A.e("s_nop 0")
                A.vmi(tag, "buffer_load_dwordx4 %s, %s, s%d offen lds" % ("v3" if q & 1 else "v2", s(rX, 4), 12 if q >= 2 else 11))
            A.e("s_add_u32 m0, s9, %d" % (slot + 16384))
            A.e("s_nop 0")
            A.vmi(tag, "buffer_load_dwordx4 v4, %s, s11 offen lds" % s(rBRE, 4))
            A.e("s_add_u32 m0, s9, %d" % (slot + 20480))
            A.e("s_nop 0")
            A.vmi(tag, "buffer_load_dwordx4 v4, %s, s11 offen lds" % s(rBIM, 4))
        else:
            A.e("s_mov_b32 s11, %d" % (176128 * c))
            for m in range(2):
                for q in range(3):
                    A.e("s_add_u32 m0, s10, %d" % (slot + m * 3072 + 1024 * q - 64 * q))
                    A.e("s_nop 0")
                    A.vmi(tag, "buffer_load_dwordx4 %s, %s, s11 offen offset:%d lds" % ("v16" if m else "v5", s(rW3 if m else rW1, 4), 64 * q))

    dma(0)
    A.e("s_lshl_b32 s6, s5, 3")
    A.e("s_lshl_b32 s13, s7, 1")
    A.e("s_add_u32 s13, s13, s6")
    A.e("s_lshl_b32 s6, s13, 10")
    A.e("v_lshlrev_b32 v17, 4, v8")
    A.e("v_lshl_add_u32 v18, v9, 10, v17")
    A.e("v_add_u32 v18, s6, v18")
    A.vmi("g", "buffer_load_dwordx4 v[64:67], v18, %s, 0 offen" % s(rX, 4))
    A.vmi("g", "buffer_load_dwordx4 v[68:71], v18, %s, 0 offen offset:512" % s(rX, 4))
    A.vmi("g", "global_load_dwordx4 v[72:75], v17, %s" % s(sGW, 2))
    A.vmi("g", "global_load_dwordx4 v[76:79], v17, %s offset:512" % s(sGW, 2))
    for n in range(1, NSLOT):
        dma(n)
    srd(A, rW1, sW1, 512 * 2752)
    srd(A, rW3, sW3, 512 * 2752)
    srd(A, rG, sWS, 16384, "0x%x" % G_OFF)
    A.e("v_lshrrev_b32 v10, 2, v1")
    A.e("s_lshl_b32 s6, s7, 4")
    A.e("v_add_u32 v10, s6, v10")
    A.e("v_mul_u32_u24 v5, 2752, v10")
    A.e("s_mul_i32 s6, s5, 192")
    A.e("v_add_u32 v5, s6, v5")
    A.e("v_and_b32 v10, 3, v1")
    A.e("v_lshl_add_u32 v5, v10, 4, v5")
    A.e("v_xor_b32 v16, 32, v5")
    A.e("v_add_u32 v7, s8, v7")
    A.e("v_lshlrev_b32 v6, 4, v1")
    A.e("s_mul_i32 s6, s5, 6144")
    A.e("s_add_u32 s82, s81, s6")
    A.e("s_add_u32 s82, s82, 65536")

    def g_compute():
        A.c("g = sigmoid(sum bf16(x*gate_w))")
        A.vmw("g")
        A.e("v_mov_b32 v20, 0")
        for d in range(8):
            xx, ww = 64 + d, 72 + d
            A.e("v_lshlrev_b32 v80, 16, %s" % v(xx))
            A.e("v_and_b32 v81, 0xffff0000, %s" % v(xx))
            A.e("v_lshlrev_b32 v82, 16, %s" % v(ww))
            A.e("v_and_b32 v83, 0xffff0000, %s" % v(ww))
            A.e("v_mul_f32 v80, v80, v82")
            A.e("v_mul_f32 v81, v81, v83")
            A.e("v_cvt_pk_bf16_f32 v80, v80, v81")
            A.e("v_lshlrev_b32 v81, 16, v80")
            A.e("v_and_b32 v80, 0xffff0000, v80")
            A.e("v_add_f32 v20, v20, v81")
            A.e("v_add_f32 v20, v20, v80")
        for sh in (1, 2, 4, 8):
            A.e("s_nop 1")
            A.e("v_add_f32_dpp v20, v20, v20 row_shr:%d row_mask:0xf bank_mask:0xf bound_ctrl:0" % sh)
        A.e("s_nop 1")
        A.e("v_add_f32_dpp v20, v20, v20 row_bcast:15 row_mask:0xa bank_mask:0xf")
        A.e("v_cvt_pk_bf16_f32 v20, v20, v20")
        A.e("v_and_b32 v20, 0xffff0000, v20")
        A.e("v_mul_f32 v20, s80, v20")
        A.e("v_exp_f32 v20, v20")
        A.e("s_nop 0")
        A.e("v_add_f32 v20, 1.0, v20")
        A.e("v_rcp_f32 v20, v20")
        A.e("s_nop 0")
        A.e("v_cvt_pk_bf16_f32 v20, v20, v20")
        A.e("v_and_b32 v20, 0xffff0000, v20")
        A.e("v_sub_f32 v21, 1.0, v20")
        A.e("v_cvt_pk_bf16_f32 v21, v21, v21")
        A.e("v_and_b32 v21, 0xffff0000, v21")
        A.e("s_lshl_b32 s6, s4, 7")
        A.e("s_add_u32 s6, s6, s13")
        A.e("s_lshl_b32 s6, s6, 3")
        A.e("v_lshlrev_b32 v22, 3, v9")
        A.e("s_mov_b32 exec_lo, 0x80000000")
        A.e("s_mov_b32 exec_hi, 0x80000000")
        A.vmi("gst", "buffer_store_dwordx2 v[20:21], v22, %s, s6 offen" % s(rG, 4))
        A.e("s_mov_b64 exec, -1")

    tiles = [2, 3, 4, 5]

    def reads(n, sstep, part=None):
        kind, c = ORD[n]
        if kind == "P":
            A.lgi("x", "ds_read_b128 %s, %s" % (a(16 * c + 4 * sstep, 4), v(8 + sstep) if False else v(24 + sstep)))
        else:
            fb = FB[sstep & 1]
            for ti, T in enumerate(tiles):
                if part is not None and ti // 2 != part:
                    continue
                for nn in range(2):
                    A.lgi("f%d_%d_%d" % (n, sstep, ti),
                          "ds_read_b64_tr_b16 %s, %s offset:%d" % (v(fb + 4 * ti + 2 * nn, 2), "v15" if T & 1 else "v14",
                                                                   sstep * 6144 + (T >> 1) * 1024 + nn * 256))

    def mfma(n, sstep, ti):
        kind, c = ORD[n]
        fb = FB[sstep & 1]
        A.lgw("f%d_%d_%d" % (n, sstep, ti))
        first = (c == 0 and sstep == 0)
        A.e("v_mfma_f32_32x32x16_bf16 %s, %s, %s, %s" % (v(ACC + 16 * ti, 16), v(fb + 4 * ti, 4), a(16 * c + 4 * sstep, 4),
                                                        "0" if first else v(ACC + 16 * ti, 16)))

    def addr(n):
        kind, c = ORD[n]
        slot = (n % NSLOT) * SLOT
        if kind == "P":
            A.e("v_add_u32 v24, %d, v7" % slot)
            A.e("v_xor_b32 v25, 32, v24")
            A.e("v_xor_b32 v26, 64, v24")
            A.e("v_xor_b32 v27, 0x60, v24")
        else:
            A.e("v_add_u32 v14, %d, v12" % slot)
            A.e("v_add_u32 v15, %d, v13" % slot)

    def group(n, sstep, nxt):
        for ti in range(4):
            mfma(n, sstep, ti)
            if nxt is not None and ti < 2:
                reads(nxt[0], nxt[1], ti)

    for n in range(16):
        kind, c = ORD[n]
        addr(n)
        A.lgw0()
        A.vmw("ch%d" % n)
        A.e("s_barrier")
        prevF = n > 0 and ORD[n - 1][0] == "F"
        if kind == "P":
            for sstep in range(4):
                reads(n, sstep)
            if prevF:
                group(n - 1, 3, None)
        else:
            if prevF:
                group(n - 1, 3, (n, 0))
            else:
                reads(n, 0)
        if n >= 1 and n + 5 < 16:
            dma(n + 5)
        if n == 1:
            g_compute()
        if kind == "F":
            for sstep in range(3):
                group(n, sstep, (n, sstep + 1))
    group(15, 3, None)
    A.e("s_nop 7")
    A.e("s_nop 3")
    for ti, T in enumerate(tiles):
        swiglu_tile(A, ACC + 16 * ti, 32, 40 + 4 * ti)
        k1_ffn_store(A, T, 40 + 4 * ti, "L_k1_F_st%d" % ti)
    A.e("s_endpgm")


def cpow(A, n_scale, dre, dim, t0, t1, va, vb):
    if n_scale == 1.0:
        A.e("v_exp_f32 %s, %s" % (t0, va))
        A.e("v_fract_f32 %s, %s" % (t1, vb))
    else:
        ns = n_scale if isinstance(n_scale, str) else "0x%x" % f2u(n_scale)
        A.e("v_mul_f32 %s, %s, %s" % (t0, ns, va))
        A.e("v_mul_f32 %s, %s, %s" % (t1, ns, vb))
        A.e("v_exp_f32 %s, %s" % (t0, t0))
        A.e("v_fract_f32 %s, %s" % (t1, t1))
    A.e("v_cos_f32 %s, %s" % (dre, t1))
    A.e("v_sin_f32 %s, %s" % (dim, t1))
    A.e("s_nop 0")
    A.e("v_mul_f32 %s, %s, %s" % (dre, dre, t0))
    A.e("v_mul_f32 %s, %s, %s" % (dim, dim, t0))


def cfma(A, dr, di, mr, mi, xr, xi, ar, ai):
    A.e("v_fma_f32 %s, %s, %s, %s" % (dr, mr, xr, ar))
    A.e("v_fma_f32 %s, %s, %s, %s" % (di, mr, xi, ai))
    A.e("v_fma_f32 %s, -%s, %s, %s" % (dr, mi, xi, dr))
    A.e("v_fma_f32 %s, %s, %s, %s" % (di, mi, xr, di))


def k1_S(A):
    A.vm, A.lg = [], []
    RE, IM, ACC, FB = 64, 80, 96, (32, 40)
    LR, LI, NLI = "v16", "v17", "v5"
    L16R, L16I, L128R, L128I, L256R, L256I = "v18", "v19", "v20", "v21", "v22", "v23"
    CR, CI, PR, PI = "v2", "v3", "v10", "v11"
    ER, EI, SR, SI = "v56", "v57", "v58", "v59"
    A.e("s_lshl_b32 s6, s5, 6")
    A.e("v_lshlrev_b32 v4, 1, v8")
    A.e("v_add_u32 v4, s6, v4")
    A.vmi("par", "global_load_ushort v60, v4, %s" % s(sLRE, 2))
    A.vmi("par", "global_load_ushort v61, v4, %s" % s(sLIM, 2))
    A.vmi("par", "global_load_ushort v62, v4, %s" % s(sLDT, 2))
    A.e("s_lshl_b32 s6, s5, 12")
    A.e("s_add_u32 s6, s6, 0x%x" % E_OFF)
    srd(A, rE, sWS, 4096, "s6")
    srd(A, rDBG, sDBG, 256)
    A.e("s_lshl_b32 s8, s7, 12")
    A.e("v_lshlrev_b32 v4, 3, v0")
    A.e("v_add_u32 v4, %d, v4" % (MISC + 2048))
    A.e("v_mov_b32 v48, 0")
    A.e("v_mov_b32 v49, 0")
    A.lgi("z", "ds_write_b64 v4, v[48:49]")
    A.e("s_lshl_b32 s6, s7, 1")
    A.e("v_add_u32 v63, s6, v9")
    A.e("v_sub_u32 v4, 7, v63")
    A.e("v_lshlrev_b32 v4, 8, v4")
    A.e("v_lshl_add_u32 v4, v8, 3, v4")
    A.e("v_add_u32 v4, %d, v4" % MISC)
    A.e("v_lshlrev_b32 v63, 4, v63")
    A.e("v_cvt_f32_u32 v63, v63")
    A.e("v_lshlrev_b32 v6, 4, v1")
    A.e("s_mul_i32 s6, s5, 6144")
    A.e("s_add_u32 s82, s81, s6")
    A.e("s_add_u32 s82, s82, 65536")
    A.vmw("par")
    A.e("v_lshlrev_b32 v60, 16, v60")
    A.e("v_lshlrev_b32 v61, 16, v61")
    A.e("v_lshlrev_b32 v62, 16, v62")
    A.e("v_mul_f32 v62, 0x%x, v62" % f2u(LOG2E))
    A.e("v_exp_f32 v62, v62")
    A.e("s_nop 0")
    A.e("v_cvt_pk_bf16_f32 v62, v62, v62")
    A.e("v_and_b32 v62, 0xffff0000, v62")
    A.e("v_mul_f32 v50, v62, v60")
    A.e("v_mul_f32 v51, v62, v61")
    A.e("v_mul_f32 v50, 0x%x, v50" % f2u(LOG2E))
    A.e("v_mul_f32 v51, 0x%x, v51" % f2u(INV2PI))
    cpow(A, 1.0, LR, LI, "v52", "v53", "v50", "v51")
    cpow(A, 16.0, L16R, L16I, "v52", "v53", "v50", "v51")
    cpow(A, 128.0, L128R, L128I, "v52", "v53", "v50", "v51")
    cpow(A, 256.0, L256R, L256I, "v52", "v53", "v50", "v51")
    cpow(A, "v63", PR, PI, "v52", "v53", "v50", "v51")
    A.e("v_sub_f32 %s, 0, %s" % (NLI, LI))
    A.e("v_mul_f32 v52, v60, v60")
    A.e("v_fmac_f32 v52, v61, v61")
    A.e("v_rcp_f32 v52, v52")
    A.e("v_add_f32 v53, -1.0, %s" % LR)
    A.e("v_mul_f32 %s, v53, v60" % CR)
    A.e("v_fmac_f32 %s, %s, v61" % (CR, LI))
    A.e("v_mul_f32 %s, %s, v60" % (CI, LI))
    A.e("v_fma_f32 %s, -v53, v61, %s" % (CI, CI))
    A.e("v_add_f32 v52, v52, v52")
    A.e("v_mul_f32 %s, %s, v52" % (CR, CR))
    A.e("v_mul_f32 %s, %s, v52" % (CI, CI))

    tiles = [0, 1]

    def addr(n):
        kind, c = ORD[n]
        slot = (n % NSLOT) * SLOT
        if kind == "P":
            A.e("v_add_u32 v28, %d, v7" % slot)
            A.e("v_xor_b32 v29, 32, v28")
            A.e("v_xor_b32 v30, 64, v28")
            A.e("v_xor_b32 v31, 0x60, v28")
            for q in range(4):
                A.e("v_add_u32 %s, s8, %s" % (v(24 + q), v(28 + q)))
        else:
            A.e("v_add_u32 v14, %d, v12" % slot)
            A.e("v_add_u32 v15, %d, v13" % slot)

    def reads(n, sstep):
        kind, c = ORD[n]
        fb = FB[sstep & 1]
        if kind == "P":
            A.lgi("f%d_%d_0" % (n, sstep), "ds_read_b128 %s, %s" % (a(16 * c + 4 * sstep, 4), v(24 + sstep)))
            A.lgi("f%d_%d_0" % (n, sstep), "ds_read_b128 %s, %s offset:16384" % (v(fb, 4), v(28 + sstep)))
            A.lgi("f%d_%d_1" % (n, sstep), "ds_read_b128 %s, %s offset:20480" % (v(fb + 4, 4), v(28 + sstep)))
        else:
            for ti, T in enumerate(tiles):
                for nn in range(2):
                    A.lgi("f%d_%d_%d" % (n, sstep, ti),
                          "ds_read_b64_tr_b16 %s, %s offset:%d" % (v(fb + 4 * ti + 2 * nn, 2), "v15" if T & 1 else "v14",
                                                                   sstep * 6144 + (T >> 1) * 1024 + nn * 256))

    def mfma(n, sstep, ti):
        kind, c = ORD[n]
        fb = FB[sstep & 1]
        A.lgw("f%d_%d_%d" % (n, sstep, ti))
        first = (c == 0 and sstep == 0)
        if kind == "P":
            d = (RE, IM)[ti]
            A.e("v_mfma_f32_32x32x16_bf16 %s, %s, %s, %s" % (v(d, 16), a(16 * c + 4 * sstep, 4), v(fb + 4 * ti, 4),
                                                            "0" if first else v(d, 16)))
        else:
            d = ACC + 16 * ti
            A.e("v_mfma_f32_32x32x16_bf16 %s, %s, %s, %s" % (v(d, 16), v(fb + 4 * ti, 4), a(16 * c + 4 * sstep, 4),
                                                            "0" if first else v(d, 16)))

    def group(n, sstep, nxt):
        mfma(n, sstep, 0)
        if nxt is not None:
            reads(*nxt)
        mfma(n, sstep, 1)

    def endstate():
        A.c("sub-chunk end state (zero start)")
        A.e("s_nop 7")
        cur = (v(RE), v(IM))
        tmp = [("v48", "v49"), ("v50", "v51")]
        for r in range(1, 16):
            d = (ER, EI) if r == 15 else tmp[r & 1]
            cfma(A, d[0], d[1], LR, LI, cur[0], cur[1], v(RE + r), v(IM + r))
            cur = d
        A.lgi("ew", "ds_write_b64 v4, v[56:57]")

    def prefix_reads():
        for m in range(7):
            A.lgi("er", "ds_read_b64 %s, v4 offset:%d" % (v(24 + 2 * m, 2) if m < 4 else v(48 + 2 * (m - 4), 2), 256 * (m + 1)))

    def prefix():
        A.c("prefix over the sub-chunks of this block, publish the block end state")
        A.lgw("er")
        def er(m):
            b = 24 + 2 * m if m < 4 else 48 + 2 * (m - 4)
            return v(b), v(b + 1)
        cur = er(6)
        tmp = [("v54", "v55"), ("v60", "v61")]
        for m in range(5, -1, -1):
            d = (SR, SI) if m == 0 else tmp[m & 1]
            cfma(A, d[0], d[1], L16R, L16I, cur[0], cur[1], er(m)[0], er(m)[1])
            cur = d
        A.e("s_cmp_lg_u32 s7, 3")
        A.e("s_cbranch_scc1 L_k1_S_nopub")
        cfma(A, "v54", "v55", L16R, L16I, SR, SI, ER, EI)
        A.e("s_sub_u32 s6, 15, s4")
        A.e("s_lshl_b32 s6, s6, 8")
        A.e("v_lshlrev_b32 v60, 3, v8")
        A.e("s_mov_b32 exec_lo, 0")
        A.e("buffer_store_dwordx2 v[54:55], v60, %s, s6 offen sc1" % s(rE, 4))
        A.e("s_mov_b64 exec, -1")
        A.lab("L_k1_S_nopub")

    def coefmul():
        A.c("u = coef * raw")
        for r in range(16):
            t = "v%d" % (48 + (r & 3))
            A.e("v_mul_f32 %s, %s, %s" % (t, CI, v(RE + r)))
            A.e("v_mul_f32 %s, %s, %s" % (v(RE + r), CR, v(RE + r)))
            A.e("v_fma_f32 %s, -%s, %s, %s" % (v(RE + r), CI, v(IM + r), v(RE + r)))
            A.e("v_fma_f32 %s, %s, %s, %s" % (v(IM + r), CR, v(IM + r), t))

    def flag():
        A.e("s_cmp_lg_u32 s7, 3")
        A.e("s_cbranch_scc1 L_k1_S_noflag")
        A.e("s_lshl_b32 s6, 1, s4")
        A.e("v_mov_b32 v48, s6")
        A.e("s_lshl_b32 s6, s5, 2")
        A.e("v_mov_b32 v49, 0")
        A.e("s_waitcnt vmcnt(0)")
        A.e("s_mov_b64 exec, 1")
        A.e("buffer_atomic_or v48, v49, %s, s6 offen" % s(rDBG, 4))
        A.e("s_mov_b64 exec, -1")
        A.lab("L_k1_S_noflag")

    def poll_issue():
        A.e("s_lshl_b32 s14, s5, 2")
        A.e("v_mov_b32 v49, 0")
        A.e("buffer_load_dword v48, v49, %s, s14 offen sc1" % s(rDBG, 4))

    def poll_check():
        A.e("s_lshl_b32 s15, 1, s4")
        A.e("s_sub_u32 s15, s15, 1")
        A.e("s_mov_b32 s13, 0")
        A.lab("L_k1_S_poll")
        A.e("s_waitcnt vmcnt(0)")
        A.e("v_readfirstlane_b32 s6, v48")
        A.e("s_and_b32 s6, s6, s15")
        A.e("s_cmp_eq_u32 s6, s15")
        A.e("s_cbranch_scc1 L_k1_S_ready")
        A.e("s_sleep 1")
        A.e("buffer_load_dword v48, v49, %s, s14 offen sc1" % s(rDBG, 4))
        A.e("s_add_u32 s13, s13, 1")
        A.e("s_cmp_lt_u32 s13, 0x40000")
        A.e("s_cbranch_scc1 L_k1_S_poll")
        A.e("s_waitcnt vmcnt(0)")
        A.lab("L_k1_S_ready")
        A.e("s_sub_u32 s6, 16, s4")
        A.e("s_lshl_b32 s6, s6, 8")
        A.e("v_lshlrev_b32 v60, 3, v8")
        A.e("v_lshl_add_u32 v60, v9, 8, v60")
        A.e("v_add_u32 v60, s6, v60")
        for m in range(8):
            b = 24 + 2 * m if m < 4 else 48 + 2 * (m - 4)
            A.e("buffer_load_dwordx2 %s, v60, %s, 0 offen offset:%d sc1" % (v(b, 2), s(rE, 4), 512 * m))

    def carry_and_scan():
        def er(m):
            b = 24 + 2 * m if m < 4 else 48 + 2 * (m - 4)
            return v(b), v(b + 1)
        cur = er(7)
        tmp = [("v60", "v61"), ("v62", "v63")]
        for m in range(6, -1, -1):
            d = tmp[m & 1]
            cfma(A, d[0], d[1], L256R, L256I, cur[0], cur[1], er(m)[0], er(m)[1])
            cur = d
        A.e("v_mov_b32 v62, v60")
        A.e("v_mov_b32 v63, v61")
        A.e("s_nop 1")
        A.e("v_permlane32_swap_b32 v60, v62")
        A.e("v_permlane32_swap_b32 v61, v63")
        A.e("s_nop 1")
        cfma(A, "v48", "v49", L128R, L128I, "v62", "v63", "v60", "v61")
        cfma(A, "v50", "v51", PR, PI, "v48", "v49", SR, SI)
        A.e("v_mul_f32 v48, %s, v50" % CR)
        A.e("v_mul_f32 v49, %s, v51" % CR)
        A.e("v_fma_f32 v48, -%s, v51, v48" % CI)
        A.e("v_fmac_f32 v49, %s, v50" % CI)
        cur = ("v48", "v49")
        for r in range(16):
            A.e("v_fmac_f32 %s, %s, %s" % (v(RE + r), LR, cur[0]))
            A.e("v_fmac_f32 %s, %s, %s" % (v(IM + r), LR, cur[1]))
            A.e("v_fmac_f32 %s, %s, %s" % (v(RE + r), NLI, cur[1]))
            A.e("v_fmac_f32 %s, %s, %s" % (v(IM + r), LI, cur[0]))
            cur = (v(RE + r), v(IM + r))
        for q in range(8):
            A.e("v_cvt_pk_bf16_f32 %s, %s, %s" % (v(32 + q), v(RE + 2 * q), v(RE + 2 * q + 1)))
        for q in range(8):
            A.e("v_cvt_pk_bf16_f32 %s, -%s, -%s" % (v(40 + q), v(IM + 2 * q), v(IM + 2 * q + 1)))
        base = 4 * SLOT
        A.e("v_lshlrev_b32 v48, 6, v8")
        A.e("v_lshl_add_u32 v48, v9, 5, v48")
        A.e("v_add_u32 v48, s8, v48")
        A.e("v_add_u32 v48, %d, v48" % base)
        A.e("ds_write_b128 v48, v[32:35]")
        A.e("ds_write_b128 v48, v[36:39] offset:16")
        A.e("ds_write_b128 v48, v[40:43] offset:2048")
        A.e("ds_write_b128 v48, v[44:47] offset:2064")
        A.e("v_bfe_u32 v49, v1, 2, 2")
        A.e("v_lshlrev_b32 v49, 6, v49")
        A.e("v_lshl_add_u32 v49, v9, 9, v49")
        A.e("v_and_b32 v50, 1, v1")
        A.e("v_lshl_add_u32 v49, v50, 5, v49")
        A.e("v_bfe_u32 v50, v1, 4, 1")
        A.e("v_lshl_add_u32 v49, v50, 4, v49")
        A.e("v_bfe_u32 v50, v1, 1, 1")
        A.e("v_lshl_add_u32 v49, v50, 3, v49")
        A.e("v_add_u32 v49, s8, v49")
        A.e("v_add_u32 v49, %d, v49" % base)
        A.e("s_waitcnt lgkmcnt(0)")
        for ks in range(4):
            for nn in range(2):
                A.e("ds_read_b64_tr_b16 %s, v49 offset:%d" % (v(64 + 4 * ks + 2 * nn, 2), ks * 1024 + nn * 256))
        A.e("s_lshl_b32 s6, s5, 11")
        A.e("s_add_u32 s6, s6, s81")
        A.e("s_add_u32 s13, s6, 32768")
        for ks in range(4):
            A.e("s_waitcnt lgkmcnt(%d)" % (6 - 2 * ks))
            A.e("buffer_store_dwordx4 %s, v6, %s, s%d offen offset:%d" % (v(64 + 4 * ks, 4), s(rAS, 4), 13 if ks >= 2 else 6, 1024 * (ks & 1)))

    lastP = max(n for n in range(16) if ORD[n][0] == "P")
    for n in range(16):
        addr(n)
        A.lgw0()
        A.e("s_barrier")
        if n == lastP + 2:
            prefix_reads()
        if n > 0:
            group(n - 1, 3, (n, 0))
        else:
            reads(n, 0)
        for sstep in range(3):
            group(n, sstep, (n, sstep + 1))
            if sstep == 0:
                if n == lastP + 1:
                    endstate()
                if n == lastP + 2:
                    prefix()
                if n == lastP + 3:
                    coefmul()
                if n == lastP + 4:
                    flag()
                if n == 14:
                    poll_issue()
                if n == 15:
                    poll_check()
    group(15, 3, None)
    A.e("s_nop 7")
    A.e("s_nop 3")
    for ti, T in enumerate(tiles):
        swiglu_tile(A, ACC + 16 * ti, 32, 40 + 4 * ti)
    A.e("s_waitcnt vmcnt(0)")
    for ti, T in enumerate(tiles):
        k1_ffn_store(A, T, 40 + 4 * ti, "L_k1_S_st%d" % ti)
    carry_and_scan()
    A.e("s_endpgm")


def gen_k1(A):
    A.L.append(".globl k1_kernel\n.p2align 8\n.type k1_kernel,@function\nk1_kernel:")
    k1_common_prologue(A)
    k1_S(A)
    k1_F(A)
    A.lab("L_k1_end")
    A.e("s_endpgm")


K2_SLOT = 16384
K2_NSLOT = 10
K2_LDS = K2_SLOT * K2_NSLOT
K2_ORD = [("W", c) for c in range(22)] + [("C", c) for c in range(16)]


def gen_k2(A):
    A.vm, A.lg = [], []
    A.L.append(".globl k2_kernel\n.p2align 8\n.type k2_kernel,@function\nk2_kernel:")
    rA, rCRE, rCIM, rW2, rXs, rO, rGs = 44, 48, 52, 56, 60, 64, 68
    ACCB, ACCA = 64, 80
    FBUF = (96, 128)
    GV = 160
    XV = 192
    A.e("s_cmp_ge_u32 s2, 256")
    A.e("s_cbranch_scc1 L_k2_end")
    A.e("s_load_dwordx2 s[16:17], s[0:1], 0")
    A.e("s_load_dwordx4 s[20:23], s[0:1], 40")
    A.e("s_load_dwordx2 s[24:25], s[0:1], 64")
    A.e("s_load_dwordx2 s[26:27], s[0:1], 96")
    A.e("s_load_dwordx2 s[28:29], s[0:1], 112")
    A.e("s_load_dwordx2 s[30:31], s[0:1], 128")
    A.e("v_lshrrev_b32 v2, 6, v0")
    A.e("v_and_b32 v1, 63, v0")
    A.e("v_readfirstlane_b32 s3, v2")
    A.e("s_bfe_u32 s4, s2, 0x20001")
    A.e("s_lshl_b32 s4, s4, 3")
    A.e("s_bfe_u32 s6, s2, 0x30003")
    A.e("s_add_u32 s4, s4, s6")
    A.e("s_and_b32 s5, s2, 1")
    A.e("s_lshl_b32 s5, s5, 2")
    A.e("s_lshr_b32 s6, s2, 6")
    A.e("s_add_u32 s5, s5, s6")
    A.e("s_and_b32 s7, s3, 1")
    A.e("s_lshr_b32 s8, s3, 1")
    A.e("v_and_b32 v8, 31, v1")
    A.e("v_lshrrev_b32 v9, 5, v1")
    A.e("s_mul_i32 s6, s7, %d" % (NKS * 1024))
    A.e("s_lshl_b32 s9, s8, 11")
    A.e("s_add_u32 s6, s6, s9")
    A.e("v_lshlrev_b32 v6, 4, v1")
    A.e("v_add_u32 v2, s6, v6")
    A.e("s_lshl_b32 s6, s7, 12")
    A.e("s_add_u32 s9, s9, s6")
    A.e("s_lshl_b32 s10, s3, 11")
    A.e("v_bfe_u32 v10, v1, 4, 1")
    A.e("v_lshlrev_b32 v10, 2, v10")
    A.e("v_and_b32 v11, 7, v1")
    A.e("v_xor_b32 v10, v10, v11")
    A.e("v_lshlrev_b32 v10, 4, v10")
    A.e("v_lshrrev_b32 v12, 3, v1")
    A.e("v_lshl_add_u32 v3, v12, 10, v10")
    A.e("s_lshl_b32 s6, s3, 14")
    A.e("s_lshl_b32 s11, s5, 7")
    A.e("s_add_u32 s11, s11, s6")
    A.e("v_add_u32 v3, s11, v3")
    A.e("v_lshrrev_b32 v10, 4, v1")
    A.e("v_xor_b32 v10, v10, v11")
    A.e("v_lshlrev_b32 v10, 4, v10")
    A.e("v_lshl_add_u32 v4, v12, 10, v10")
    A.e("v_add_u32 v4, s6, v4")
    A.e("v_xor_b32 v5, 64, v4")
    A.e("v_add_u32 v5, 8192, v5")
    A.e("s_waitcnt lgkmcnt(0)")
    A.e("s_mul_i32 s6, s4, %d" % (2 * NKS * 1024))
    srd(A, rA, 30, 2 * NKS * 1024, "s6")
    srd(A, rW2, 26, 1376 * 1024)

    def dma(n):
        kind, c = K2_ORD[n]
        slot = (n % K2_NSLOT) * K2_SLOT
        tag = "ch%d" % n
        ks0 = 64 + 4 * c if kind == "W" else 4 * c
        half = (kind == "W" and c == 21)
        A.e("s_mov_b32 s12, %d" % (ks0 * 1024))
        A.e("s_add_u32 m0, s9, %d" % slot)
        if half:
            pass
        A.e("s_nop 0")
        A.vmi(tag, "buffer_load_dwordx4 v2, %s, s12 offen lds" % s(rA, 4))
        A.vmi(tag, "buffer_load_dwordx4 v2, %s, s12 offen offset:1024 lds" % s(rA, 4))
        if kind == "W":
            A.e("s_mov_b32 s12, %d" % (c * 65536))
            A.e("s_add_u32 m0, s10, %d" % (slot + 8192))
            A.e("s_mov_b32 s13, %d" % (c * 65536 + 8192))
            A.vmi(tag, "buffer_load_dwordx4 v3, %s, s12 offen lds" % s(rW2, 4))
            A.e("s_add_u32 m0, s10, %d" % (slot + 8192 + 1024))
            A.e("s_nop 0")
            A.vmi(tag, "buffer_load_dwordx4 v3, %s, s13 offen lds" % s(rW2, 4))
        else:
            r_ = rCRE if c < 8 else rCIM
            A.e("s_movk_i32 s12, %d" % ((c & 7) * 128))
            A.e("s_add_u32 m0, s10, %d" % (slot + 8192))
            A.e("s_nop 0")
            A.vmi(tag, "buffer_load_dwordx4 v4, %s, s12 offen lds" % s(r_, 4))
            A.e("s_add_u32 m0, s10, %d" % (slot + 8192 + 1024))
            A.e("s_nop 0")
            A.vmi(tag, "buffer_load_dwordx4 v5, %s, s12 offen lds" % s(r_, 4))

    for n in range(K2_NSLOT):
        dma(n)
    A.e("s_lshl_b32 s6, s5, 16")
    srd(A, rCRE, 20, 65536, "s6")
    srd(A, rCIM, 22, 65536, "s6")
    srd(A, rXs, 16, 2048 * 1024)
    srd(A, rO, 28, 2048 * 2048)
    srd(A, rGs, 30, 16384, "0x%x" % G_OFF)
    A.e("s_lshl_b32 s6, s7, 12")
    A.e("v_add_u32 v7, s6, v6")
    A.e("v_bfe_u32 v10, v1, 1, 3")
    A.e("v_xor_b32 v10, v10, v9")
    A.e("v_lshlrev_b32 v10, 4, v10")
    A.e("v_lshl_add_u32 v12, v8, 7, v10")
    A.e("s_lshl_b32 s6, s8, 12")
    A.e("s_add_u32 s6, s6, 8192")
    A.e("v_add_u32 v12, s6, v12")
    A.e("v_bfe_u32 v10, v1, 2, 2")
    A.e("v_lshlrev_b32 v13, 7, v10")
    A.e("v_lshl_add_u32 v13, v9, 9, v13")
    A.e("v_bfe_u32 v10, v1, 4, 1")
    A.e("v_lshl_add_u32 v13, v10, 5, v13")
    A.e("v_and_b32 v10, 3, v1")
    A.e("v_lshl_add_u32 v13, v10, 3, v13")
    A.e("v_bfe_u32 v10, v1, 3, 1")
    A.e("v_xor_b32 v10, s8, v10")
    A.e("v_lshl_add_u32 v13, v10, 6, v13")
    A.e("v_add_u32 v13, 8192, v13")
    A.e("s_lshl_b32 s14, s4, 6")
    A.e("s_lshl_b32 s6, s7, 5")
    A.e("s_add_u32 s14, s14, s6")
    A.e("s_lshl_b32 s15, s5, 6")
    A.e("s_lshl_b32 s6, s8, 5")
    A.e("s_add_u32 s15, s15, s6")
    A.e("v_lshlrev_b32 v20, 4, v9")
    A.e("v_add_u32 v20, s14, v20")
    A.e("v_add_u32 v21, s15, v8")
    A.e("v_lshlrev_b32 v22, 3, v20")
    A.e("v_lshlrev_b32 v23, 1, v21")
    A.e("v_lshl_add_u32 v24, v20, 10, v23")
    A.e("v_lshlrev_b32 v25, 1, v24")
    A.e("v_add_u32 v26, 4096, v24")
    A.e("v_add_u32 v27, 8192, v24")
    A.e("v_add_u32 v28, 12288, v24")

    small = []
    for q in range(8):
        small.append("buffer_load_dwordx4 %s, v22, %s, 0 offen offset:%d" % (v(GV + 4 * q, 4), s(rGs, 4), 16 * q))
    for r in range(16):
        small.append("buffer_load_ushort %s, %s, %s, 0 offen offset:%d" % (v(XV + r), ("v24", "v26", "v27", "v28")[r >> 2], s(rXs, 4), 1024 * (r & 3)))
    small.append("global_load_ushort v29, v23, s[24:25]")

    def nsteps(n):
        return 2 if K2_ORD[n] == ("W", 21) else 4

    def addr(n):
        kind, c = K2_ORD[n]
        slot = (n % K2_NSLOT) * K2_SLOT
        A.e("v_add_u32 v14, %d, v7" % slot)
        if kind == "W":
            A.e("v_add_u32 v15, %d, v13" % slot)
        else:
            A.e("v_add_u32 v15, %d, v12" % slot)
            A.e("v_xor_b32 v16, 32, v15")
            A.e("v_xor_b32 v17, 64, v15")
            A.e("v_xor_b32 v18, 0x60, v15")

    def reads(n):
        kind, c = K2_ORD[n]
        fb = FBUF[n & 1]
        for ss in range(nsteps(n)):
            A.lgi("r", "ds_read_b128 %s, v14 offset:%d" % (v(fb + 4 * ss, 4), 1024 * ss))
            if kind == "W":
                for nn in range(2):
                    A.lgi("r", "ds_read_b64_tr_b16 %s, v15 offset:%d" % (v(fb + 16 + 4 * ss + 2 * nn, 2), 2048 * ss + 1024 * nn))
            else:
                A.lgi("r", "ds_read_b128 %s, %s" % (v(fb + 16 + 4 * ss, 4), v(15 + ss)))

    def mfmas(n):
        kind, c = K2_ORD[n]
        fb = FBUF[n & 1]
        acc = ACCB if kind == "W" else ACCA
        for ss in range(nsteps(n)):
            first = (c == 0 and ss == 0)
            A.e("v_mfma_f32_32x32x16_bf16 %s, %s, %s, %s" % (v(acc, 16), v(fb + 4 * ss, 4), v(fb + 16 + 4 * ss, 4),
                                                            "0" if first else v(acc, 16)))

    def mid():
        A.c("fold the FFN branch and the skip term: accB = bf16(omg*bf16(b)) + g*bf16(x*D)")
        A.vmw("small")
        A.e("s_nop 7")
        A.e("v_lshlrev_b32 v29, 16, v29")
        for q in range(8):
            r0, r1 = 2 * q, 2 * q + 1
            A.e("v_cvt_pk_bf16_f32 v30, %s, %s" % (v(ACCB + r0), v(ACCB + r1)))
            A.e("v_lshlrev_b32 %s, 16, %s" % (v(XV + r0), v(XV + r0)))
            A.e("v_lshlrev_b32 %s, 16, %s" % (v(XV + r1), v(XV + r1)))
            A.e("v_lshlrev_b32 v31, 16, v30")
            A.e("v_and_b32 v30, 0xffff0000, v30")
            A.e("v_mul_f32 %s, %s, v29" % (v(XV + r0), v(XV + r0)))
            A.e("v_mul_f32 %s, %s, v29" % (v(XV + r1), v(XV + r1)))
            A.e("v_mul_f32 v31, %s, v31" % v(GV + 2 * r0 + 1))
            A.e("v_mul_f32 v30, %s, v30" % v(GV + 2 * r1 + 1))
            A.e("v_cvt_pk_bf16_f32 %s, %s, %s" % (v(XV + r0), v(XV + r0), v(XV + r1)))
            A.e("v_cvt_pk_bf16_f32 v30, v31, v30")
            A.e("v_and_b32 %s, 0xffff0000, %s" % (v(XV + r1), v(XV + r0)))
            A.e("v_lshlrev_b32 %s, 16, %s" % (v(XV + r0), v(XV + r0)))
            A.e("v_lshlrev_b32 %s, 16, v30" % v(ACCB + r0))
            A.e("v_and_b32 %s, 0xffff0000, v30" % v(ACCB + r1))

    N = len(K2_ORD)
    for n in range(N):
        addr(n)
        A.lgw0()
        A.vmw("ch%d" % n)
        A.e("s_barrier")
        reads(n)
        if n >= 1 and n + K2_NSLOT - 1 < N:
            dma(n + K2_NSLOT - 1)
        if 2 <= n and small:
            for _ in range(2):
                if small:
                    A.vmi("small", small.pop(0))
        if n >= 1:
            mfmas(n - 1)
        if n == 24:
            mid()
    A.lgw0()
    mfmas(N - 1)
    A.e("s_nop 7")
    A.e("s_nop 3")
    A.e("v_add_u32 v26, 4096, v25")
    for r in range(16):
        A.e("v_add_f32 %s, %s, %s" % (v(ACCA + r), v(ACCA + r), v(XV + r)))
    for r in range(16):
        A.e("v_fmac_f32 %s, %s, %s" % (v(ACCB + r), v(GV + 2 * r), v(ACCA + r)))
        A.e("s_movk_i32 s6, %d" % (4096 * (r >> 1)))
        A.e("buffer_store_dword %s, v25, %s, s6 offen offset:%d" % (v(ACCB + r), s(rO, 4), 2048 * (r & 1)))
    A.lab("L_k2_end")
    A.e("s_endpgm")


def kd(name, nv, acc, ns=96):
    return """.amdhsa_kernel %s
  .amdhsa_next_free_vgpr %d
  .amdhsa_next_free_sgpr %d
  .amdhsa_accum_offset %d
  .amdhsa_group_segment_fixed_size 0
  .amdhsa_kernarg_size 136
  .amdhsa_user_sgpr_count 2
  .amdhsa_user_sgpr_kernarg_segment_ptr 1
  .amdhsa_system_sgpr_workgroup_id_x 1
.end_amdhsa_kernel
""" % (name, nv, ns, acc)


def main(path):
    ref = open("cdna_kernels/%s.s.ref" % NAME).read().splitlines()
    head = [l for l in ref if l.startswith(";") and "@launch" not in l and "Override launch" not in l and "grid=ceil" not in l]
    head = head[:18]
    A = Asm()
    gen_k1(A)
    gen_k2(A)
    out = head + [
        "; @launch kernel=k1_kernel grid=(256,1,1) block=(512,1,1) lds=%d" % K1_LDS,
        "; @launch kernel=k2_kernel grid=(256,1,1) block=(256,1,1) lds=%d" % K2_LDS,
        '.amdgcn_target "amdgcn-amd-amdhsa--gfx950"', ".text"] + A.L + [
        '.section .rodata,"a"', ".p2align 6", kd("k1_kernel", 256, 128), ".p2align 6", kd("k2_kernel", 208, 208)]
    open(path, "w").write("\n".join(out))


if __name__ == "__main__":
    main(sys.argv[1] if len(sys.argv) > 1 else "cdna_kernels/%s.s" % NAME)
```

```python
import sys, struct

NAME = "gated_mix__ssm_conv_s5__glu_gated_swiglu__prompt"

def f2u(x):
    return struct.unpack("<I", struct.pack("<f", x))[0]

LOG2E = 1.4426950408889634
INV2PI = 0.15915494309189535

NKS = 150
A_BYTES = 64 * NKS * 1024
E_OFF = 0xA00000
G_OFF = 0xA20000
EP_OFF = 0xA30000


STAMP = False
OPT = set()
ST_OFF = 0xB00000

class Asm:
    def __init__(self):
        self.nst = 0
        self.L = []
        self.vm = []
        self.lg = []

    def e(self, s):
        if "nomfma" in OPT and s.startswith("v_mfma"):
            s = "s_nop 0"
        if "nolds" in OPT and s.startswith("ds_read"):
            s = "s_nop 0"
        self.L.append("  " + s)

    def c(self, s):
        self.L.append("  ; " + s)

    def lab(self, s):
        self.L.append(s + ":")

    def stamp(self, k):
        if STAMP and (k == 0 or k == 6 or "fine" not in OPT):
            self.e("%s s[%d:%d]" % ("s_memrealtime" if "rt" in OPT else "s_memtime", 86 + 2 * k, 87 + 2 * k))

    def fs(self, n, reg):
        if STAMP and "fine" in OPT:
            self.e("%s s[98:99]" % ("s_memrealtime" if "rt" in OPT else "s_memtime"))
            self.e("s_waitcnt lgkmcnt(0)")
            self.lg = []
            self.e("s_sub_u32 s98, s98, s86")
            self.e("v_writelane_b32 v%d, s98, %d" % (reg, n))

    def fs_end(self, kern, wsreg, nwaves, reg):
        if STAMP and "fine" in OPT:
            self.e("s_mov_b64 exec, -1")
            self.e("s_add_u32 s8, s%d, 0x%x" % (wsreg, ST_OFF + 0x80000 + kern * 0x80000))
            self.e("s_addc_u32 s9, s%d, 0" % (wsreg + 1))
            self.e("s_mov_b32 s10, 0x80000")
            self.e("s_mov_b32 s11, 0x20000")
            self.e("s_mul_i32 s6, s2, %d" % (nwaves * 256))
            self.e("s_lshl_b32 s12, s3, 8")
            self.e("s_add_u32 s6, s6, s12")
            self.e("v_mbcnt_lo_u32_b32 v1, -1, 0")
            self.e("v_mbcnt_hi_u32_b32 v1, -1, v1")
            self.e("v_lshlrev_b32 v1, 2, v1")
            self.e("buffer_store_dword v%d, v1, s[8:11], s6 offen" % reg)

    def stamp_begin(self):
        if STAMP:
            self.e("s_memrealtime s[84:85]")
            self.stamp(0)

    def stamp_end(self, kern, wsreg, nwaves, nst):
        if not STAMP:
            return
        self.e("s_waitcnt vmcnt(0)")
        self.e("s_memrealtime s[100:101]")
        self.stamp(nst)
        self.e("s_waitcnt lgkmcnt(0)")
        self.e("s_add_u32 s8, s%d, 0x%x" % (wsreg, ST_OFF + kern * 0x40000))
        self.e("s_addc_u32 s9, s%d, 0" % (wsreg + 1))
        self.e("s_mov_b32 s10, 0x40000")
        self.e("s_mov_b32 s11, 0x20000")
        self.e("s_mul_i32 s6, s2, %d" % (nwaves * 64))
        self.e("s_lshl_b32 s12, s3, 6")
        self.e("s_add_u32 s6, s6, s12")
        self.e("s_mov_b64 exec, 1")
        self.e("v_mov_b32 v1, 0")
        self.e("v_mov_b32 v2, s84")
        self.e("buffer_store_dword v2, v1, s[8:11], s6 offen")
        self.e("v_mov_b32 v3, s100")
        self.e("buffer_store_dword v3, v1, s[8:11], s6 offen offset:4")
        for k in range(1, nst + 1):
            self.e("s_sub_u32 s12, s%d, s86" % (86 + 2 * k))
            self.e("v_mov_b32 v%d, s12" % (3 + k))
            self.e("buffer_store_dword v%d, v1, s[8:11], s6 offen offset:%d" % (3 + k, 4 + 4 * k))

    def vmi(self, tag, s, cold=False):
        if cold and "nt" in OPT:
            s = s.replace(" lds", " nt lds") if s.endswith(" lds") else s + " nt"
        self.e(s)
        self.vm.append(tag)
        assert len(self.vm) <= 63, "too many vmem ops in flight"

    def vmw(self, tag, extra=""):
        idx = [i for i, t in enumerate(self.vm) if t == tag]
        if not idx:
            return None
        n = len(self.vm) - 1 - idx[-1]
        self.vm = self.vm[idx[-1] + 1:]
        self.e("s_waitcnt vmcnt(%d)%s" % (n, extra))
        return n

    def lgi(self, tag, s):
        self.e(s)
        self.lg.append(tag)

    def lgw(self, tag):
        idx = [i for i, t in enumerate(self.lg) if t == tag]
        if not idx:
            return
        n = len(self.lg) - 1 - idx[-1]
        self.lg = self.lg[idx[-1] + 1:]
        self.e("s_waitcnt lgkmcnt(%d)" % min(n, 15))

    def lgw0(self):
        if self.lg:
            self.e("s_waitcnt lgkmcnt(0)")
        self.lg = []


def stmod(pre="a"):
    return "".join(" " + m for m in ("sc0", "sc1", "nt") if pre + m in OPT)

def v(a, n=1):
    return "v%d" % a if n == 1 else "v[%d:%d]" % (a, a + n - 1)

def a(a_, n=1):
    return "a%d" % a_ if n == 1 else "a[%d:%d]" % (a_, a_ + n - 1)

def s(a_, n=1):
    return "s%d" % a_ if n == 1 else "s[%d:%d]" % (a_, a_ + n - 1)


def srd(A, d, base, nbytes, addlo=None):
    if addlo is None:
        A.e("s_mov_b32 s%d, s%d" % (d, base))
        A.e("s_mov_b32 s%d, s%d" % (d + 1, base + 1))
    else:
        A.e("s_add_u32 s%d, s%d, %s" % (d, base, addlo))
        A.e("s_addc_u32 s%d, s%d, 0" % (d + 1, base + 1))
    A.e("s_mov_b32 s%d, 0x%x" % (d + 2, nbytes))
    A.e("s_mov_b32 s%d, 0x20000" % (d + 3))


SLOT = 24576
NSLOT = 6
MISC = SLOT * NSLOT
K1_LDS = MISC + 4096
def mkord(sx):
    o, pc, fc = [], 0, 0
    for ch in sx:
        if ch == "P":
            o.append(("P", pc)); pc += 1
        else:
            assert fc < pc
            o.append(("F", fc)); fc += 1
    assert pc == 8 and fc == 8
    return o
PAR = dict(ord="PPFFPPPPPPFFFFFF", ord2="PPPPPPPPFFFFFFFF", la=3, pfstep=16, estep=15, k2la=3, rot=1, pf=1, k2rot=1)
ORD = None

sW, sR, sJ = 3, 4, 5
sX, sLRE, sLIM, sBRE, sBIM, sLDT = 16, 18, 20, 22, 24, 30
sW1, sW3, sGW, sDBG, sWS = 32, 34, 38, 40, 42
rX, rBRE, rBIM, rW1, rW3, rAS, rE, rDBG, rG = 44, 48, 52, 56, 60, 64, 68, 72, 76


def swiglu_tile(A, acc, t0, dst):
    for r in range(8):
        A.e("v_mul_f32 %s, s80, %s" % (v(t0 + r), v(acc + r)))
    for r in range(8):
        A.e("v_exp_f32 %s, %s" % (v(t0 + r), v(t0 + r)))
    for r in range(8):
        A.e("v_mul_f32 %s, %s, %s" % (v(acc + r), v(acc + r), v(acc + 8 + r)))
    for r in range(8):
        A.e("v_add_f32 %s, 1.0, %s" % (v(t0 + r), v(t0 + r)))
    for r in range(8):
        A.e("v_rcp_f32 %s, %s" % (v(t0 + r), v(t0 + r)))
    A.e("s_nop 0")
    for r in range(8):
        A.e("v_mul_f32 %s, %s, %s" % (v(acc + r), v(acc + r), v(t0 + r)))
    for q in range(4):
        A.e("v_cvt_pk_bf16_f32 %s, %s, %s" % (v(dst + q), v(acc + 2 * q), v(acc + 2 * q + 1)))


def k1_common_prologue(A):
    A.e("s_cmp_ge_u32 s2, 256")
    A.e("s_cbranch_scc1 L_k1_end")
    A.stamp_begin()
    A.e("s_load_dwordx16 s[16:31], s[0:1], 0")
    A.e("s_load_dwordx4 s[32:35], s[0:1], 80")
    A.e("s_load_dwordx4 s[36:39], s[0:1], 96")
    A.e("s_load_dwordx4 s[40:43], s[0:1], 120")
    A.e("v_lshrrev_b32 v2, 6, v0")
    A.e("v_and_b32 v1, 63, v0")
    A.e("v_readfirstlane_b32 s3, v2")
    A.e("s_bfe_u32 s4, s2, 0x20001")
    A.e("s_lshl_b32 s4, s4, 2")
    A.e("s_bfe_u32 s6, s2, 0x20003")
    A.e("s_add_u32 s4, s4, s6")
    A.e("s_and_b32 s5, s2, 1")
    A.e("s_lshl_b32 s5, s5, 3")
    A.e("s_lshr_b32 s6, s2, 5")
    A.e("s_add_u32 s5, s5, s6")
    A.e("s_and_b32 s7, s3, 3")
    if PAR["rot"]:
        A.e("s_lshl_b32 s83, s4, 1")
        A.e("s_add_u32 s83, s83, s5")
    else:
        A.e("s_mov_b32 s83, 0")
    A.e("s_mov_b32 s80, 0x%x" % f2u(-LOG2E))
    A.e("v_and_b32 v8, 31, v1")
    A.e("v_lshrrev_b32 v9, 5, v1")
    A.e("v_bfe_u32 v10, v1, 1, 3")
    A.e("v_xor_b32 v10, v10, v9")
    A.e("v_lshlrev_b32 v10, 4, v10")
    A.e("v_lshl_add_u32 v7, v8, 7, v10")
    A.e("v_bfe_u32 v10, v1, 4, 1")
    A.e("v_mul_u32_u24 v12, 3104, v10")
    A.e("v_lshlrev_b32 v11, 9, v9")
    A.e("v_add_u32 v12, v12, v11")
    A.e("v_bfe_u32 v11, v1, 2, 2")
    A.e("v_lshl_add_u32 v12, v11, 6, v12")
    A.e("v_and_b32 v11, 3, v1")
    A.e("v_lshl_add_u32 v12, v11, 3, v12")
    A.e("v_xor_b32 v13, 32, v12")
    A.e("s_lshl_b32 s6, s4, 2")
    A.e("s_add_u32 s6, s6, s7")
    A.e("s_mul_i32 s81, s6, %d" % (NKS * 1024))
    A.e("s_waitcnt lgkmcnt(0)")
    srd(A, rAS, sWS, A_BYTES)
    A.e("s_bitcmp1_b32 s4, 0")
    A.e("s_cbranch_scc1 L_k1_odd")
    A.e("s_cmp_ge_u32 s3, 4")
    A.e("s_cbranch_scc1 L_k1_Fa")
    A.e("s_branch L_k1_Sa")
    A.lab("L_k1_odd")
    A.e("s_cmp_ge_u32 s3, 4")
    A.e("s_cbranch_scc1 L_k1_Fb")
    A.e("s_branch L_k1_Sb")


def k1_ffn_store(A, T, src, lab):
    A.e("s_mul_i32 s6, s5, 6")
    A.e("s_add_u32 s6, s6, %d" % T)
    A.e("s_cmp_ge_u32 s6, 86")
    A.e("s_cbranch_scc1 %s" % lab)
    A.e("s_add_u32 s6, s82, %d" % (T * 1024))
    A.e("buffer_store_dwordx4 %s, v6, %s, s6 offen%s" % (v(src, 4), s(rAS, 4), stmod()))
    A.lab(lab)


def k1_F(A, ORD, X):
    A.vm, A.lg = [], []
    A.lab("L_k1_F" + X)
    ACC, FB = 64, (32, 48)
    A.e("s_lshl_b32 s6, s4, 17")
    srd(A, rX, sX, 131072, "s6")
    A.e("v_lshrrev_b32 v10, 4, v1")
    A.e("v_and_b32 v11, 7, v1")
    A.e("v_xor_b32 v10, v10, v11")
    A.e("v_lshlrev_b32 v10, 4, v10")
    A.e("v_bfe_u32 v11, v1, 3, 2")
    A.e("v_lshl_add_u32 v2, v11, 10, v10")
    A.e("v_lshl_add_u32 v2, v9, 14, v2")
    A.e("s_lshl_b32 s6, s7, 15")
    A.e("v_add_u32 v2, s6, v2")
    A.e("v_xor_b32 v3, 64, v2")
    A.e("v_add_u32 v3, 4096, v3")
    A.e("s_lshl_b32 s8, s7, 12")
    A.e("s_lshl_b32 s9, s7, 10")
    A.e("s_mul_i32 s10, s7, 6144")
    A.e("s_lshl_b32 s6, s5, 15")
    srd(A, rBRE, sBRE, 32768, "s6")
    srd(A, rBIM, sBIM, 32768, "s6")
    A.e("s_and_b32 s6, s7, 1")
    A.e("s_lshl_b32 s6, s6, 6")
    A.e("v_xor_b32 v4, s6, v10")
    A.e("v_lshrrev_b32 v11, 3, v1")
    A.e("v_lshl_add_u32 v4, v11, 10, v4")
    A.e("s_lshl_b32 s6, s7, 13")
    A.e("v_add_u32 v4, s6, v4")

    def dma(n):
        kind, c = ORD[n]
        slot = (n % NSLOT) * SLOT
        tag = "ch%d" % n
        if kind == "P":
            A.e("s_add_u32 s11, s83, %d" % c)
            A.e("s_and_b32 s11, s11, 7")
            A.e("s_lshl_b32 s11, s11, 7")
            A.e("s_add_u32 s12, s11, 8192")
            for q in range(4):
                A.e("s_add_u32 m0, s8, %d" % (slot + 1024 * q))
                A.e("s_nop 0")
                A.vmi(tag, "buffer_load_dwordx4 %s, %s, s%d offen lds" % ("v3" if q & 1 else "v2", s(rX, 4), 12 if q >= 2 else 11), True)
            A.e("s_add_u32 m0, s9, %d" % (slot + 16384))
            A.e("s_nop 0")
            A.vmi(tag, "buffer_load_dwordx4 v4, %s, s11 offen lds" % s(rBRE, 4), True)
            A.e("s_add_u32 m0, s9, %d" % (slot + 20480))
            A.e("s_nop 0")
            A.vmi(tag, "buffer_load_dwordx4 v4, %s, s11 offen lds" % s(rBIM, 4), True)
        else:
            A.e("s_add_u32 s11, s83, %d" % c)
            A.e("s_and_b32 s11, s11, 7")
            A.e("s_mul_i32 s11, s11, 176128")
            for m in range(2):
                for q in range(3):
                    A.e("s_add_u32 m0, s10, %d" % (slot + m * 3072 + 1024 * q - 64 * q))
                    A.e("s_nop 0")
                    A.vmi(tag, "buffer_load_dwordx4 %s, %s, s11 offen offset:%d lds" % ("v16" if m else "v5", s(rW3 if m else rW1, 4), 64 * q), True)

    dma(0)
    A.e("s_lshl_b32 s6, s5, 3")
    A.e("s_lshl_b32 s13, s7, 1")
    A.e("s_add_u32 s13, s13, s6")
    A.e("s_lshl_b32 s6, s13, 10")
    A.e("v_lshlrev_b32 v17, 4, v8")
    A.e("v_lshl_add_u32 v18, v9, 10, v17")
    A.e("v_add_u32 v18, s6, v18")
    A.vmi("g", "buffer_load_dwordx4 v[64:67], v18, %s, 0 offen" % s(rX, 4))
    A.vmi("g", "buffer_load_dwordx4 v[68:71], v18, %s, 0 offen offset:512" % s(rX, 4))
    A.vmi("g", "global_load_dwordx4 v[72:75], v17, %s" % s(sGW, 2))
    A.vmi("g", "global_load_dwordx4 v[76:79], v17, %s offset:512" % s(sGW, 2))
    dma(1)
    srd(A, rW1, sW1, 512 * 2752)
    srd(A, rW3, sW3, 512 * 2752)
    srd(A, rG, sWS, 16384, "0x%x" % G_OFF)
    A.e("v_lshrrev_b32 v10, 2, v1")
    A.e("s_lshl_b32 s6, s7, 4")
    A.e("v_add_u32 v10, s6, v10")
    A.e("v_mul_u32_u24 v5, 2752, v10")
    A.e("s_mul_i32 s6, s5, 192")
    A.e("v_add_u32 v5, s6, v5")
    A.e("v_and_b32 v10, 3, v1")
    A.e("v_lshl_add_u32 v5, v10, 4, v5")
    A.e("v_xor_b32 v16, 32, v5")
    A.e("v_add_u32 v7, s8, v7")
    A.e("v_lshlrev_b32 v6, 4, v1")
    A.e("s_mul_i32 s6, s5, 6144")
    A.e("s_add_u32 s82, s81, s6")
    A.e("s_add_u32 s82, s82, 65536")
    LA = PAR["la"]
    for n in range(2, LA):
        dma(n)

    def prefetch_k2():
        A.c("pull this XCD's share of w2 / C_re / C_im into L2 for the second launch")
        A.e("s_lshr_b32 s6, s2, 3")
        A.e("s_and_b32 s11, s2, 1")
        A.e("s_mul_i32 s12, s6, 43")
        A.e("s_mul_i32 s13, s7, 11")
        A.e("s_add_u32 s12, s12, s13")
        A.e("s_lshl_b32 s12, s12, 10")
        A.e("s_lshl_b32 s13, s11, 9")
        A.e("s_add_u32 s12, s12, s13")
        A.e("v_lshrrev_b32 v2, 2, v1")
        A.e("v_and_b32 v3, 3, v1")
        A.e("v_lshlrev_b32 v2, 10, v2")
        A.e("v_lshl_add_u32 v2, v3, 7, v2")
        A.e("s_lshl_b32 s13, s11, 18")
        A.e("s_lshl_b32 s6, s6, 13")
        A.e("s_add_u32 s13, s13, s6")
        A.e("s_lshl_b32 s6, s7, 11")
        A.e("s_add_u32 s13, s13, s6")
        A.e("v_lshlrev_b32 v3, 7, v1")
        srd(A, rBRE, 26, 524288)
        srd(A, rBIM, 28, 524288)
        srd(A, rX, 36, 1376 * 1024)
        A.e("s_mov_b32 exec_hi, 0xfff")
        A.vmi("pf", "buffer_load_dword v4, v2, %s, s12 offen" % s(rX, 4))
        A.e("s_mov_b64 exec, 0xffff")
        A.vmi("pf", "buffer_load_dword v5, v3, %s, s13 offen" % s(rBRE, 4))
        A.vmi("pf", "buffer_load_dword v16, v3, %s, s13 offen" % s(rBIM, 4))
        A.e("s_mov_b64 exec, -1")

    def g_compute():
        A.c("g = sigmoid(sum bf16(x*gate_w))")
        A.vmw("g")
        A.e("v_mov_b32 v20, 0")
        for d in range(8):
            xx, ww = 64 + d, 72 + d
            A.e("v_lshlrev_b32 v80, 16, %s" % v(xx))
            A.e("v_and_b32 v81, 0xffff0000, %s" % v(xx))
            A.e("v_lshlrev_b32 v82, 16, %s" % v(ww))
            A.e("v_and_b32 v83, 0xffff0000, %s" % v(ww))
            A.e("v_mul_f32 v80, v80, v82")
            A.e("v_mul_f32 v81, v81, v83")
            A.e("v_cvt_pk_bf16_f32 v80, v80, v81")
            A.e("v_lshlrev_b32 v81, 16, v80")
            A.e("v_and_b32 v80, 0xffff0000, v80")
            A.e("v_add_f32 v20, v20, v81")
            A.e("v_add_f32 v20, v20, v80")
        for sh in (1, 2, 4, 8):
            A.e("s_nop 1")
            A.e("v_add_f32_dpp v20, v20, v20 row_shr:%d row_mask:0xf bank_mask:0xf bound_ctrl:0" % sh)
        A.e("s_nop 1")
        A.e("v_add_f32_dpp v20, v20, v20 row_bcast:15 row_mask:0xa bank_mask:0xf")
        A.e("v_cvt_pk_bf16_f32 v20, v20, v20")
        A.e("v_and_b32 v20, 0xffff0000, v20")
        A.e("v_mul_f32 v20, s80, v20")
        A.e("v_exp_f32 v20, v20")
        A.e("s_nop 0")
        A.e("v_add_f32 v20, 1.0, v20")
        A.e("v_rcp_f32 v20, v20")
        A.e("s_nop 0")
        A.e("v_cvt_pk_bf16_f32 v20, v20, v20")
        A.e("v_and_b32 v20, 0xffff0000, v20")
        A.e("v_sub_f32 v21, 1.0, v20")
        A.e("v_cvt_pk_bf16_f32 v21, v21, v21")
        A.e("v_and_b32 v21, 0xffff0000, v21")
        A.e("s_lshl_b32 s6, s4, 7")
        A.e("s_add_u32 s6, s6, s13")
        A.e("s_lshl_b32 s6, s6, 3")
        A.e("v_lshlrev_b32 v22, 3, v9")
        A.e("s_mov_b32 exec_lo, 0x80000000")
        A.e("s_mov_b32 exec_hi, 0x80000000")
        A.vmi("gst", "buffer_store_dwordx2 v[20:21], v22, %s, s6 offen" % s(rG, 4))
        A.e("s_mov_b64 exec, -1")

    tiles = [2, 3, 4, 5]

    def reads(n, sstep, part=None):
        kind, c = ORD[n]
        if kind == "P":
            A.lgi("x", "ds_read_b128 %s, %s" % (a(16 * c + 4 * sstep, 4), v(8 + sstep) if False else v(24 + sstep)))
        else:
            fb = FB[sstep & 1]
            for ti, T in enumerate(tiles):
                if part is not None and ti // 2 != part:
                    continue
                for nn in range(2):
                    A.lgi("f%d_%d_%d" % (n, sstep, ti),
                          "ds_read_b64_tr_b16 %s, %s offset:%d" % (v(fb + 4 * ti + 2 * nn, 2), "v15" if T & 1 else "v14",
                                                                   sstep * 6144 + (T >> 1) * 1024 + nn * 256))

    def mfma(n, sstep, ti):
        kind, c = ORD[n]
        fb = FB[sstep & 1]
        A.lgw("f%d_%d_%d" % (n, sstep, ti))
        first = (c == 0 and sstep == 0)
        A.e("v_mfma_f32_32x32x16_bf16 %s, %s, %s, %s" % (v(ACC + 16 * ti, 16), v(fb + 4 * ti, 4), a(16 * c + 4 * sstep, 4),
                                                        "0" if first else v(ACC + 16 * ti, 16)))

    def addr(n):
        kind, c = ORD[n]
        slot = (n % NSLOT) * SLOT
        if kind == "P":
            A.e("v_add_u32 v24, %d, v7" % slot)
            A.e("v_xor_b32 v25, 32, v24")
            A.e("v_xor_b32 v26, 64, v24")
            A.e("v_xor_b32 v27, 0x60, v24")
        else:
            A.e("v_add_u32 v14, %d, v12" % slot)
            A.e("v_add_u32 v15, %d, v13" % slot)

    def group(n, sstep, nxt):
        for ti in range(4):
            mfma(n, sstep, ti)
            if nxt is not None and ti < 2:
                reads(nxt[0], nxt[1], ti)

    for n in range(16):
        kind, c = ORD[n]
        addr(n)
        A.lgw0()
        A.vmw("ch%d" % n)
        A.e("s_barrier")
        A.fs(n, 23)
        if n in (0, 4, 8, 12):
            A.stamp(1 + n // 4)
        prevF = n > 0 and ORD[n - 1][0] == "F"
        if kind == "P":
            for sstep in range(4):
                reads(n, sstep)
            if prevF:
                group(n - 1, 3, None)
        else:
            if prevF:
                group(n - 1, 3, (n, 0))
            else:
                reads(n, 0)
        if n + LA < 16:
            dma(n + LA)
        if n == 1:
            g_compute()
        if PAR["pf"] and n == PAR["pfstep"]:
            assert n + LA >= 16
            prefetch_k2()
        if kind == "F":
            for sstep in range(3):
                group(n, sstep, (n, sstep + 1))
    group(15, 3, None)
    A.stamp(5)
    A.fs(16, 23)
    if PAR["pf"] and PAR["pfstep"] == 16:
        prefetch_k2()
    A.e("s_nop 7")
    A.e("s_nop 3")
    for ti, T in enumerate(tiles):
        swiglu_tile(A, ACC + 16 * ti, 32, 40 + 4 * ti)
        k1_ffn_store(A, T, 40 + 4 * ti, "L_k1_F%s_st%d" % (X, ti))
    A.fs(17, 23)
    A.stamp_end(0, sWS, 8, 6)
    A.fs(18, 23)
    A.fs_end(0, sWS, 8, 23)
    A.e("s_endpgm")


def cpow(A, n_scale, dre, dim, t0, t1, va, vb):
    if n_scale == 1.0:
        A.e("v_exp_f32 %s, %s" % (t0, va))
        A.e("v_fract_f32 %s, %s" % (t1, vb))
    else:
        ns = n_scale if isinstance(n_scale, str) else "0x%x" % f2u(n_scale)
        A.e("v_mul_f32 %s, %s, %s" % (t0, ns, va))
        A.e("v_mul_f32 %s, %s, %s" % (t1, ns, vb))
        A.e("v_exp_f32 %s, %s" % (t0, t0))
        A.e("v_fract_f32 %s, %s" % (t1, t1))
    A.e("v_cos_f32 %s, %s" % (dre, t1))
    A.e("v_sin_f32 %s, %s" % (dim, t1))
    A.e("s_nop 0")
    A.e("v_mul_f32 %s, %s, %s" % (dre, dre, t0))
    A.e("v_mul_f32 %s, %s, %s" % (dim, dim, t0))


def cfma(A, dr, di, mr, mi, xr, xi, ar, ai):
    A.e("v_fma_f32 %s, %s, %s, %s" % (dr, mr, xr, ar))
    A.e("v_fma_f32 %s, %s, %s, %s" % (di, mr, xi, ai))
    A.e("v_fma_f32 %s, -%s, %s, %s" % (dr, mi, xi, dr))
    A.e("v_fma_f32 %s, %s, %s, %s" % (di, mi, xr, di))


def k1_S(A, ORD, X):
    A.vm, A.lg = [], []
    A.lab("L_k1_S" + X)
    RE, IM, ACC, FB = 64, 80, 96, (32, 40)
    LR, LI, NLI = "v16", "v17", "v5"
    L16R, L16I, L128R, L128I, L256R, L256I = "v18", "v19", "v20", "v21", "v22", "v23"
    CR, CI, PR, PI = "v2", "v3", "v10", "v11"
    ER, EI, SR, SI = "v56", "v57", "v58", "v59"
    A.e("s_lshl_b32 s6, s5, 6")
    A.e("v_lshlrev_b32 v4, 1, v8")
    A.e("v_add_u32 v4, s6, v4")
    A.vmi("par", "global_load_ushort v60, v4, %s" % s(sLRE, 2))
    A.vmi("par", "global_load_ushort v61, v4, %s" % s(sLIM, 2))
    A.vmi("par", "global_load_ushort v62, v4, %s" % s(sLDT, 2))
    A.e("s_lshl_b32 s6, s5, 7")
    A.e("s_add_u32 s6, s6, 0x%x" % EP_OFF)
    srd(A, rDBG, sWS, 4, "s6")
    A.e("v_mov_b32 v55, 0")
    A.vmi("par", "buffer_load_dword v54, v55, %s, 0 offen sc1" % s(rDBG, 4))
    A.e("s_lshl_b32 s6, s5, 13")
    A.e("s_add_u32 s6, s6, 0x%x" % E_OFF)
    srd(A, rE, sWS, 8192, "s6")
    A.e("s_lshl_b32 s8, s7, 12")
    A.e("v_lshlrev_b32 v4, 3, v0")
    A.e("v_add_u32 v4, %d, v4" % (MISC + 2048))
    A.e("v_mov_b32 v48, 0")
    A.e("v_mov_b32 v49, 0")
    A.lgi("z", "ds_write_b64 v4, v[48:49]")
    A.e("s_lshl_b32 s6, s7, 1")
    A.e("v_add_u32 v63, s6, v9")
    A.e("v_sub_u32 v4, 7, v63")
    A.e("v_lshlrev_b32 v4, 8, v4")
    A.e("v_lshl_add_u32 v4, v8, 3, v4")
    A.e("v_add_u32 v4, %d, v4" % MISC)
    A.e("v_lshlrev_b32 v63, 4, v63")
    A.e("v_cvt_f32_u32 v63, v63")
    A.e("v_lshlrev_b32 v6, 4, v1")
    A.e("s_mul_i32 s6, s5, 6144")
    A.e("s_add_u32 s82, s81, s6")
    A.e("s_add_u32 s82, s82, 65536")
    A.vmw("par")
    A.e("v_readfirstlane_b32 s14, v54")
    A.e("s_add_u32 s14, s14, 1")
    A.e("s_bitset1_b32 s14, 31")
    A.e("v_lshlrev_b32 v60, 16, v60")
    A.e("v_lshlrev_b32 v61, 16, v61")
    A.e("v_lshlrev_b32 v62, 16, v62")
    A.e("v_mul_f32 v62, 0x%x, v62" % f2u(LOG2E))
    A.e("v_exp_f32 v62, v62")
    A.e("s_nop 0")
    A.e("v_cvt_pk_bf16_f32 v62, v62, v62")
    A.e("v_and_b32 v62, 0xffff0000, v62")
    A.e("v_mul_f32 v50, v62, v60")
    A.e("v_mul_f32 v51, v62, v61")
    A.e("v_mul_f32 v50, 0x%x, v50" % f2u(LOG2E))
    A.e("v_mul_f32 v51, 0x%x, v51" % f2u(INV2PI))
    cpow(A, 1.0, LR, LI, "v52", "v53", "v50", "v51")
    cpow(A, 16.0, L16R, L16I, "v52", "v53", "v50", "v51")
    cpow(A, 128.0, L128R, L128I, "v52", "v53", "v50", "v51")
    cpow(A, 256.0, L256R, L256I, "v52", "v53", "v50", "v51")
    cpow(A, "v63", PR, PI, "v52", "v53", "v50", "v51")
    A.e("v_sub_f32 %s, 0, %s" % (NLI, LI))
    A.e("v_mul_f32 v52, v60, v60")
    A.e("v_fmac_f32 v52, v61, v61")
    A.e("v_rcp_f32 v52, v52")
    A.e("v_add_f32 v53, -1.0, %s" % LR)
    A.e("v_mul_f32 %s, v53, v60" % CR)
    A.e("v_fmac_f32 %s, %s, v61" % (CR, LI))
    A.e("v_mul_f32 %s, %s, v60" % (CI, LI))
    A.e("v_fma_f32 %s, -v53, v61, %s" % (CI, CI))
    A.e("v_add_f32 v52, v52, v52")
    A.e("v_mul_f32 %s, %s, v52" % (CR, CR))
    A.e("v_mul_f32 %s, %s, v52" % (CI, CI))

    tiles = [0, 1]

    def addr(n):
        kind, c = ORD[n]
        slot = (n % NSLOT) * SLOT
        if kind == "P":
            A.e("v_add_u32 v28, %d, v7" % slot)
            A.e("v_xor_b32 v29, 32, v28")
            A.e("v_xor_b32 v30, 64, v28")
            A.e("v_xor_b32 v31, 0x60, v28")
            for q in range(4):
                A.e("v_add_u32 %s, s8, %s" % (v(24 + q), v(28 + q)))
        else:
            A.e("v_add_u32 v14, %d, v12" % slot)
            A.e("v_add_u32 v15, %d, v13" % slot)

    def reads(n, sstep):
        kind, c = ORD[n]
        fb = FB[sstep & 1]
        if kind == "P":
            A.lgi("f%d_%d_0" % (n, sstep), "ds_read_b128 %s, %s" % (a(16 * c + 4 * sstep, 4), v(24 + sstep)))
            A.lgi("f%d_%d_0" % (n, sstep), "ds_read_b128 %s, %s offset:16384" % (v(fb, 4), v(28 + sstep)))
            A.lgi("f%d_%d_1" % (n, sstep), "ds_read_b128 %s, %s offset:20480" % (v(fb + 4, 4), v(28 + sstep)))
        else:
            for ti, T in enumerate(tiles):
                for nn in range(2):
                    A.lgi("f%d_%d_%d" % (n, sstep, ti),
                          "ds_read_b64_tr_b16 %s, %s offset:%d" % (v(fb + 4 * ti + 2 * nn, 2), "v15" if T & 1 else "v14",
                                                                   sstep * 6144 + (T >> 1) * 1024 + nn * 256))

    def mfma(n, sstep, ti):
        kind, c = ORD[n]
        fb = FB[sstep & 1]
        A.lgw("f%d_%d_%d" % (n, sstep, ti))
        first = (c == 0 and sstep == 0)
        if kind == "P":
            d = (RE, IM)[ti]
            A.e("v_mfma_f32_32x32x16_bf16 %s, %s, %s, %s" % (v(d, 16), a(16 * c + 4 * sstep, 4), v(fb + 4 * ti, 4),
                                                            "0" if first else v(d, 16)))
        else:
            d = ACC + 16 * ti
            A.e("v_mfma_f32_32x32x16_bf16 %s, %s, %s, %s" % (v(d, 16), v(fb + 4 * ti, 4), a(16 * c + 4 * sstep, 4),
                                                            "0" if first else v(d, 16)))

    def group(n, sstep, nxt):
        mfma(n, sstep, 0)
        if nxt is not None:
            reads(*nxt)
        mfma(n, sstep, 1)

    def endstate():
        A.c("sub-chunk end state (zero start)")
        A.e("s_nop 7")
        cur = (v(RE), v(IM))
        tmp = [("v48", "v49"), ("v50", "v51")]
        for r in range(1, 16):
            d = (ER, EI) if r == 15 else tmp[r & 1]
            cfma(A, d[0], d[1], LR, LI, cur[0], cur[1], v(RE + r), v(IM + r))
            cur = d
        A.lgi("ew", "ds_write_b64 v4, v[56:57]")

    def prefix_reads():
        for m in range(7):
            A.lgi("er", "ds_read_b64 %s, v4 offset:%d" % (v(24 + 2 * m, 2) if m < 4 else v(48 + 2 * (m - 4), 2), 256 * (m + 1)))

    def prefix():
        A.c("prefix over the sub-chunks of this block, publish the block end state")
        A.lgw("er")
        def er(m):
            b = 24 + 2 * m if m < 4 else 48 + 2 * (m - 4)
            return v(b), v(b + 1)
        cur = er(6)
        tmp = [("v54", "v55"), ("v60", "v61")]
        for m in range(5, -1, -1):
            d = (SR, SI) if m == 0 else tmp[m & 1]
            cfma(A, d[0], d[1], L16R, L16I, cur[0], cur[1], er(m)[0], er(m)[1])
            cur = d
        A.e("s_cmp_lg_u32 s7, 3")
        A.e("s_cbranch_scc1 L_k1_S_nopub" + X)
        cfma(A, "v52", "v54", L16R, L16I, SR, SI, ER, EI)
        A.e("v_mov_b32 v53, s14")
        A.e("v_mov_b32 v55, s14")
        A.e("s_sub_u32 s6, 15, s4")
        A.e("s_lshl_b32 s6, s6, 9")
        A.e("v_lshlrev_b32 v60, 4, v8")
        A.e("s_mov_b32 exec_lo, 0")
        A.e("buffer_store_dwordx4 v[52:55], v60, %s, s6 offen sc1" % s(rE, 4))
        A.e("s_mov_b64 exec, -1")
        A.lab("L_k1_S_nopub" + X)

    def coefmul():
        A.c("u = coef * raw")
        for r in range(16):
            t = "v%d" % (48 + (r & 3))
            A.e("v_mul_f32 %s, %s, %s" % (t, CI, v(RE + r)))
            A.e("v_mul_f32 %s, %s, %s" % (v(RE + r), CR, v(RE + r)))
            A.e("v_fma_f32 %s, -%s, %s, %s" % (v(RE + r), CI, v(IM + r), v(RE + r)))
            A.e("v_fma_f32 %s, %s, %s, %s" % (v(IM + r), CR, v(IM + r), t))

    def e_issue():
        for m in range(8):
            A.e("buffer_load_dwordx4 %s, %s, %s, 0 offen offset:%d sc1" % (a(4 * m, 4), "v61" if m >= 4 else "v60", s(rE, 4), 1024 * (m & 3)))

    def e_loads():
        A.e("s_sub_u32 s6, 16, s4")
        A.e("s_lshl_b32 s6, s6, 9")
        A.e("v_lshlrev_b32 v60, 4, v8")
        A.e("v_lshl_add_u32 v60, v9, 9, v60")
        A.e("v_add_u32 v60, s6, v60")
        A.e("v_add_u32 v61, 4096, v60")
        e_issue()
        A.e("v_sub_u32 v62, s4, v9")
        A.e("v_add_u32 v62, 1, v62")
        A.e("v_and_b32 v62, -2, v62")

    def e_check():
        A.e("s_mov_b32 s13, 0")
        A.lab("L_k1_S_poll" + X)
        A.e("s_waitcnt vmcnt(0)")
        A.e("v_mov_b32 v63, 0")
        for m in range(8):
            A.e("v_accvgpr_read_b32 %s, %s" % (v(24 + m), a(4 * m + 1)))
            A.e("v_accvgpr_read_b32 %s, %s" % (v(48 + m), a(4 * m + 3)))
        regs = [24 + m for m in range(8)] + [48 + m for m in range(8)]
        for g0 in range(0, 16, 4):
            for q in range(4):
                A.e("v_cmp_eq_u32 s[%d:%d], s14, %s" % (16 + 2 * q, 17 + 2 * q, v(regs[g0 + q])))
            for q in range(4):
                A.e("v_addc_co_u32 v63, vcc, 0, v63, s[%d:%d]" % (16 + 2 * q, 17 + 2 * q))
        A.e("v_cmp_ne_u32 vcc, v62, v63")
        A.e("s_cbranch_vccz L_k1_S_ready" + X)
        A.e("s_sleep 1")
        e_issue()
        A.e("s_add_u32 s13, s13, 1")
        A.e("s_cmp_lt_u32 s13, 0x20000")
        A.e("s_cbranch_scc1 L_k1_S_poll" + X)
        A.e("s_waitcnt vmcnt(0)")
        A.lab("L_k1_S_ready" + X)
        for m in range(8):
            b = 24 + 2 * m if m < 4 else 48 + 2 * (m - 4)
            A.e("v_accvgpr_read_b32 %s, %s" % (v(b), a(4 * m)))
            A.e("v_accvgpr_read_b32 %s, %s" % (v(b + 1), a(4 * m + 2)))
        A.e("s_lshl_b32 s6, s7, 4")
        A.e("s_add_u32 s6, s6, s4")
        A.e("s_cmp_lg_u32 s6, 15")
        A.e("s_cbranch_scc1 L_k1_S_noep" + X)
        A.e("v_mov_b32 v62, s14")
        A.e("v_mov_b32 v63, 0")
        A.e("s_mov_b64 exec, 1")
        A.e("buffer_store_dword v62, v63, %s, 0 offen sc1" % s(rDBG, 4))
        A.e("s_mov_b64 exec, -1")
        A.lab("L_k1_S_noep" + X)

    def carry_and_scan():
        def er(m):
            b = 24 + 2 * m if m < 4 else 48 + 2 * (m - 4)
            return v(b), v(b + 1)
        cur = er(7)
        tmp = [("v60", "v61"), ("v62", "v63")]
        for m in range(6, -1, -1):
            d = tmp[m & 1]
            cfma(A, d[0], d[1], L256R, L256I, cur[0], cur[1], er(m)[0], er(m)[1])
            cur = d
        A.e("v_mov_b32 v62, v60")
        A.e("v_mov_b32 v63, v61")
        A.e("s_nop 1")
        A.e("v_permlane32_swap_b32 v60, v62")
        A.e("v_permlane32_swap_b32 v61, v63")
        A.e("s_nop 1")
        cfma(A, "v48", "v49", L128R, L128I, "v62", "v63", "v60", "v61")
        cfma(A, "v50", "v51", PR, PI, "v48", "v49", SR, SI)
        A.e("v_mul_f32 v48, %s, v50" % CR)
        A.e("v_mul_f32 v49, %s, v51" % CR)
        A.e("v_fma_f32 v48, -%s, v51, v48" % CI)
        A.e("v_fmac_f32 v49, %s, v50" % CI)
        cur = ("v48", "v49")
        for r in range(16):
            A.e("v_fmac_f32 %s, %s, %s" % (v(RE + r), LR, cur[0]))
            A.e("v_fmac_f32 %s, %s, %s" % (v(IM + r), LR, cur[1]))
            A.e("v_fmac_f32 %s, %s, %s" % (v(RE + r), NLI, cur[1]))
            A.e("v_fmac_f32 %s, %s, %s" % (v(IM + r), LI, cur[0]))
            cur = (v(RE + r), v(IM + r))
        for q in range(8):
            A.e("v_cvt_pk_bf16_f32 %s, %s, %s" % (v(32 + q), v(RE + 2 * q), v(RE + 2 * q + 1)))
        for q in range(8):
            A.e("v_cvt_pk_bf16_f32 %s, -%s, -%s" % (v(40 + q), v(IM + 2 * q), v(IM + 2 * q + 1)))
        base = 4 * SLOT
        A.e("v_lshlrev_b32 v48, 6, v8")
        A.e("v_lshl_add_u32 v48, v9, 5, v48")
        A.e("v_add_u32 v48, s8, v48")
        A.e("v_add_u32 v48, %d, v48" % base)
        A.e("ds_write_b128 v48, v[32:35]")
        A.e("ds_write_b128 v48, v[36:39] offset:16")
        A.e("ds_write_b128 v48, v[40:43] offset:2048")
        A.e("ds_write_b128 v48, v[44:47] offset:2064")
        A.e("v_bfe_u32 v49, v1, 2, 2")
        A.e("v_lshlrev_b32 v49, 6, v49")
        A.e("v_lshl_add_u32 v49, v9, 9, v49")
        A.e("v_and_b32 v50, 1, v1")
        A.e("v_lshl_add_u32 v49, v50, 5, v49")
        A.e("v_bfe_u32 v50, v1, 4, 1")
        A.e("v_lshl_add_u32 v49, v50, 4, v49")
        A.e("v_bfe_u32 v50, v1, 1, 1")
        A.e("v_lshl_add_u32 v49, v50, 3, v49")
        A.e("v_add_u32 v49, s8, v49")
        A.e("v_add_u32 v49, %d, v49" % base)
        A.e("s_waitcnt lgkmcnt(0)")
        for ks in range(4):
            for nn in range(2):
                A.e("ds_read_b64_tr_b16 %s, v49 offset:%d" % (v(64 + 4 * ks + 2 * nn, 2), ks * 1024 + nn * 256))
        A.e("s_lshl_b32 s6, s5, 11")
        A.e("s_add_u32 s6, s6, s81")
        A.e("s_add_u32 s13, s6, 32768")
        for ks in range(4):
            A.e("s_waitcnt lgkmcnt(%d)" % (6 - 2 * ks))
            A.e("buffer_store_dwordx4 %s, v6, %s, s%d offen offset:%d%s" % (v(64 + 4 * ks, 4), s(rAS, 4), 13 if ks >= 2 else 6, 1024 * (ks & 1), stmod()))

    lastP = max(n for n in range(16) if ORD[n][0] == "P")
    assert lastP + 3 < PAR["estep"]
    for n in range(16):
        addr(n)
        A.lgw0()
        if n == 0:
            A.stamp(1)
        A.e("s_barrier")
        if n == lastP + 1:
            A.stamp(2)
        if n == lastP + 2:
            prefix_reads()
        if n > 0:
            group(n - 1, 3, (n, 0))
        else:
            reads(n, 0)
        if n == PAR["estep"]:
            e_loads()
        for sstep in range(3):
            group(n, sstep, (n, sstep + 1))
            if sstep == 0:
                if n == lastP + 1:
                    endstate()
                if n == lastP + 2:
                    prefix()
                if n == lastP + 3:
                    coefmul()
    group(15, 3, None)
    A.stamp(3)
    A.e("s_nop 7")
    A.e("s_nop 3")
    for ti, T in enumerate(tiles):
        swiglu_tile(A, ACC + 16 * ti, 32, 40 + 4 * ti)
    A.stamp(4)
    e_check()
    for ti, T in enumerate(tiles):
        k1_ffn_store(A, T, 40 + 4 * ti, "L_k1_S%s_st%d" % (X, ti))
    A.stamp(5)
    carry_and_scan()
    A.stamp_end(0, sWS, 8, 6)
    A.e("s_endpgm")


def gen_k1(A):
    A.L.append(".globl k1_kernel\n.p2align 8\n.type k1_kernel,@function\nk1_kernel:")
    k1_common_prologue(A)
    k1_F(A, mkord(PAR["ord"]), "a")
    k1_F(A, mkord(PAR["ord2"]), "b")
    k1_S(A, mkord(PAR["ord"]), "a")
    k1_S(A, mkord(PAR["ord2"]), "b")
    A.lab("L_k1_end")
    A.e("s_endpgm")


K2_SLOT = 16384
K2_NSLOT = 6
K2_LDS = K2_SLOT * K2_NSLOT
K2_ORD = [("W", c) for c in range(22)] + [("C", c) for c in range(16)]


def gen_k2(A):
    A.vm, A.lg = [], []
    A.L.append(".globl k2_kernel\n.p2align 8\n.type k2_kernel,@function\nk2_kernel:")
    rA, rC, rW2, rXs, rO, rGs = 44, 48, 56, 60, 64, 68
    ACCB, ACCA = 32, 48
    FBUF = (64, 96)
    GV = 128
    XV = 160
    N = len(K2_ORD)
    LA = PAR["k2la"]
    assert LA < K2_NSLOT
    A.e("s_cmp_ge_u32 s2, 256")
    A.e("s_cbranch_scc1 L_k2_end")
    A.stamp_begin()
    A.e("s_load_dwordx2 s[16:17], s[0:1], 0")
    A.e("s_load_dwordx4 s[20:23], s[0:1], 40")
    A.e("s_load_dwordx2 s[24:25], s[0:1], 64")
    A.e("s_load_dwordx2 s[26:27], s[0:1], 96")
    A.e("s_load_dwordx2 s[28:29], s[0:1], 112")
    A.e("s_load_dwordx2 s[30:31], s[0:1], 128")
    A.e("v_lshrrev_b32 v2, 6, v0")
    A.e("v_and_b32 v1, 63, v0")
    A.e("v_readfirstlane_b32 s3, v2")
    A.e("s_bfe_u32 s4, s2, 0x20001")
    A.e("s_lshl_b32 s4, s4, 3")
    A.e("s_bfe_u32 s6, s2, 0x30003")
    A.e("s_add_u32 s4, s4, s6")
    A.e("s_and_b32 s32, s2, 1")
    A.e("s_lshl_b32 s5, s32, 2")
    A.e("s_lshr_b32 s33, s2, 6")
    A.e("s_add_u32 s5, s5, s33")
    A.e("s_and_b32 s7, s3, 1")
    A.e("s_bfe_u32 s8, s3, 0x10001")
    A.e("v_lshlrev_b32 v6, 4, v1")
    A.e("s_cmp_lt_u32 s3, 4")
    A.e("s_cbranch_scc1 L_k2_compute")

    A.e("s_and_b32 s34, s3, 3")
    A.e("s_lshl_b32 s9, s8, 11")
    A.e("v_add_u32 v2, s9, v6")
    A.e("s_lshl_b32 s6, s7, 12")
    A.e("s_add_u32 s9, s9, s6")
    A.e("s_lshl_b32 s10, s34, 11")
    A.e("v_bfe_u32 v10, v1, 4, 1")
    A.e("v_lshlrev_b32 v10, 2, v10")
    A.e("v_and_b32 v11, 7, v1")
    A.e("v_xor_b32 v10, v10, v11")
    A.e("v_lshlrev_b32 v10, 4, v10")
    A.e("v_lshrrev_b32 v12, 3, v1")
    A.e("v_lshl_add_u32 v3, v12, 10, v10")
    A.e("s_lshl_b32 s6, s34, 14")
    A.e("s_lshl_b32 s11, s5, 7")
    A.e("s_add_u32 s11, s11, s6")
    A.e("v_add_u32 v3, s11, v3")
    A.e("v_add_u32 v7, 8192, v3")
    A.e("v_lshrrev_b32 v10, 4, v1")
    A.e("v_xor_b32 v10, v10, v11")
    A.e("v_lshlrev_b32 v10, 4, v10")
    A.e("v_lshl_add_u32 v4, v12, 10, v10")
    A.e("s_lshl_b32 s11, s5, 16")
    A.e("s_add_u32 s11, s11, s6")
    A.e("v_add_u32 v4, s11, v4")
    A.e("v_xor_b32 v5, 64, v4")
    A.e("v_add_u32 v5, 8192, v5")
    if PAR["k2rot"]:
        A.e("s_mul_i32 s35, s33, 5")
        A.e("s_lshr_b32 s35, s35, 1")
        A.e("s_add_u32 s35, s35, 12")
        A.e("s_mul_i32 s6, s33, 3")
        A.e("s_cmp_eq_u32 s32, 0")
        A.e("s_cselect_b32 s35, s35, s6")
        A.e("s_lshl_b32 s36, s33, 1")
    else:
        A.e("s_mov_b32 s35, 0")
        A.e("s_mov_b32 s36, 0")
    A.e("s_lshl_b32 s37, s32, 2")
    A.e("s_xor_b32 s38, s37, 4")
    A.e("s_waitcnt lgkmcnt(0)")
    A.e("s_lshl_b32 s6, s4, 1")
    A.e("s_add_u32 s6, s6, s7")
    A.e("s_mul_i32 s6, s6, %d" % (NKS * 1024))
    srd(A, rA, 30, NKS * 1024, "s6")
    srd(A, rW2, 26, 1376 * 1024)
    srd(A, rC, 20, 524288)

    def dma(n):
        kind, c = K2_ORD[n]
        slot = (n % K2_NSLOT) * K2_SLOT
        tag = "ch%d" % n
        if kind == "W":
            A.e("s_lshl_b32 s12, s35, 12")
            A.e("s_add_u32 s12, s12, 65536")
            A.e("s_lshl_b32 s13, s35, 16")
            A.e("s_add_u32 s35, s35, 1")
            A.e("s_cmp_eq_u32 s35, 22")
            A.e("s_cselect_b32 s35, 0, s35")
        else:
            A.e("s_add_u32 s6, s36, %d" % (c & 7))
            A.e("s_and_b32 s13, s6, 3")
            A.e("s_add_u32 s13, s13, s%d" % (38 if c < 8 else 37))
            A.e("s_lshl_b32 s12, s13, 12")
            A.e("s_lshl_b32 s13, s13, 7")
            A.e("s_and_b32 s6, s6, 4")
            A.e("s_cselect_b64 s[%d:%d], s[22:23], s[20:21]" % (rC, rC + 1))
            A.e("s_lshl_b32 s6, s6, 13")
            A.e("s_add_u32 s12, s12, s6")
        A.e("s_add_u32 m0, s9, %d" % slot)
        A.e("s_nop 0")
        A.vmi(tag, "buffer_load_dwordx4 v2, %s, s12 offen lds" % s(rA, 4))
        A.vmi(tag, "buffer_load_dwordx4 v2, %s, s12 offen offset:1024 lds" % s(rA, 4))
        r_, va, vb = (rW2, "v3", "v7") if kind == "W" else (rC, "v4", "v5")
        A.e("s_add_u32 m0, s10, %d" % (slot + 8192))
        A.e("s_nop 0")
        A.vmi(tag, "buffer_load_dwordx4 %s, %s, s13 offen lds" % (va, s(r_, 4)))
        A.e("s_add_u32 m0, s10, %d" % (slot + 8192 + 1024))
        A.e("s_nop 0")
        A.vmi(tag, "buffer_load_dwordx4 %s, %s, s13 offen lds" % (vb, s(r_, 4)))

    for n in range(LA):
        dma(n)
    for n in range(N):
        A.vmw("ch%d" % n)
        A.e("s_barrier")
        A.fs(n, 23)
        if n in (0, 10, 20, 30):
            A.stamp(1 + n // 10)
        if n + LA < N:
            dma(n + LA)
    A.stamp(5)
    A.stamp_end(1, 30, 8, 6)
    A.fs_end(1, 30, 8, 23)
    A.e("s_endpgm")

    A.lab("L_k2_compute")
    A.vm, A.lg = [], []
    A.e("v_and_b32 v8, 31, v1")
    A.e("v_lshrrev_b32 v9, 5, v1")
    A.e("s_lshl_b32 s14, s4, 6")
    A.e("s_lshl_b32 s6, s7, 5")
    A.e("s_add_u32 s14, s14, s6")
    A.e("s_lshl_b32 s15, s5, 6")
    A.e("s_lshl_b32 s6, s8, 5")
    A.e("s_add_u32 s15, s15, s6")
    A.e("v_lshlrev_b32 v20, 4, v9")
    A.e("v_add_u32 v20, s14, v20")
    A.e("v_add_u32 v21, s15, v8")
    A.e("v_lshlrev_b32 v22, 3, v20")
    A.e("v_lshlrev_b32 v23, 1, v21")
    A.e("v_lshl_add_u32 v24, v20, 10, v23")
    A.e("v_lshlrev_b32 v25, 1, v24")
    A.e("v_add_u32 v26, 4096, v24")
    A.e("v_add_u32 v27, 8192, v24")
    A.e("v_add_u32 v28, 12288, v24")
    A.e("s_waitcnt lgkmcnt(0)")
    srd(A, rXs, 16, 2048 * 1024)
    srd(A, rGs, 30, 16384, "0x%x" % G_OFF)
    srd(A, rO, 28, 2048 * 2048)
    for q in range(8):
        A.vmi("small", "buffer_load_dwordx4 %s, v22, %s, 0 offen offset:%d" % (v(GV + 4 * q, 4), s(rGs, 4), 16 * q))
    for r in range(16):
        A.vmi("small", "buffer_load_ushort %s, %s, %s, 0 offen offset:%d" % (v(XV + r), ("v24", "v26", "v27", "v28")[r >> 2], s(rXs, 4), 1024 * (r & 3)))
    A.vmi("small", "global_load_ushort v29, v23, s[24:25]")
    A.e("s_lshl_b32 s6, s7, 12")
    A.e("v_add_u32 v7, s6, v6")
    A.e("v_bfe_u32 v10, v1, 1, 3")
    A.e("v_xor_b32 v10, v10, v9")
    A.e("v_lshlrev_b32 v10, 4, v10")
    A.e("v_lshl_add_u32 v12, v8, 7, v10")
    A.e("s_lshl_b32 s6, s8, 12")
    A.e("s_add_u32 s6, s6, 8192")
    A.e("v_add_u32 v12, s6, v12")
    A.e("v_bfe_u32 v10, v1, 2, 2")
    A.e("v_lshlrev_b32 v13, 7, v10")
    A.e("v_lshl_add_u32 v13, v9, 9, v13")
    A.e("v_bfe_u32 v10, v1, 4, 1")
    A.e("v_lshl_add_u32 v13, v10, 5, v13")
    A.e("v_and_b32 v10, 3, v1")
    A.e("v_lshl_add_u32 v13, v10, 3, v13")
    A.e("v_bfe_u32 v10, v1, 3, 1")
    A.e("v_xor_b32 v10, s8, v10")
    A.e("v_lshl_add_u32 v13, v10, 6, v13")
    A.e("v_add_u32 v13, 8192, v13")

    def addr(n):
        kind, c = K2_ORD[n]
        slot = (n % K2_NSLOT) * K2_SLOT
        A.e("v_add_u32 v14, %d, v7" % slot)
        if kind == "W":
            A.e("v_add_u32 v15, %d, v13" % slot)
        else:
            A.e("v_add_u32 v15, %d, v12" % slot)
            A.e("v_xor_b32 v16, 32, v15")
            A.e("v_xor_b32 v17, 64, v15")
            A.e("v_xor_b32 v18, 0x60, v15")

    def reads(n, ss):
        kind, c = K2_ORD[n]
        fb = FBUF[n & 1]
        A.lgi("r", "ds_read_b128 %s, v14 offset:%d" % (v(fb + 4 * ss, 4), 1024 * ss))
        if kind == "W":
            for nn in range(2):
                A.lgi("r", "ds_read_b64_tr_b16 %s, v15 offset:%d" % (v(fb + 16 + 4 * ss + 2 * nn, 2), 2048 * ss + 1024 * nn))
        else:
            A.lgi("r", "ds_read_b128 %s, %s" % (v(fb + 16 + 4 * ss, 4), v(15 + ss)))

    def mfma(n, ss):
        kind, c = K2_ORD[n]
        fb = FBUF[n & 1]
        acc = ACCB if kind == "W" else ACCA
        first = (c == 0 and ss == 0)
        A.e("v_mfma_f32_32x32x16_bf16 %s, %s, %s, %s" % (v(acc, 16), v(fb + 4 * ss, 4), v(fb + 16 + 4 * ss, 4),
                                                        "0" if first else v(acc, 16)))

    def mid(q):
        if q == 0:
            A.c("fold the FFN branch and the skip term: accB = bf16(omg*bf16(b)), XV = bf16(x*D)")
            A.vmw("small")
            A.e("v_lshlrev_b32 v29, 16, v29")
        r0, r1 = 2 * q, 2 * q + 1
        A.e("v_cvt_pk_bf16_f32 v30, %s, %s" % (v(ACCB + r0), v(ACCB + r1)))
        A.e("v_lshlrev_b32 %s, 16, %s" % (v(XV + r0), v(XV + r0)))
        A.e("v_lshlrev_b32 %s, 16, %s" % (v(XV + r1), v(XV + r1)))
        A.e("v_lshlrev_b32 v31, 16, v30")
        A.e("v_and_b32 v30, 0xffff0000, v30")
        A.e("v_mul_f32 %s, %s, v29" % (v(XV + r0), v(XV + r0)))
        A.e("v_mul_f32 %s, %s, v29" % (v(XV + r1), v(XV + r1)))
        A.e("v_mul_f32 v31, %s, v31" % v(GV + 2 * r0 + 1))
        A.e("v_mul_f32 v30, %s, v30" % v(GV + 2 * r1 + 1))
        A.e("v_cvt_pk_bf16_f32 %s, %s, %s" % (v(XV + r0), v(XV + r0), v(XV + r1)))
        A.e("v_cvt_pk_bf16_f32 v30, v31, v30")
        A.e("v_and_b32 %s, 0xffff0000, %s" % (v(XV + r1), v(XV + r0)))
        A.e("v_lshlrev_b32 %s, 16, %s" % (v(XV + r0), v(XV + r0)))
        A.e("v_lshlrev_b32 %s, 16, v30" % v(ACCB + r0))
        A.e("v_and_b32 %s, 0xffff0000, v30" % v(ACCB + r1))

    for n in range(N):
        addr(n)
        A.lgw0()
        A.e("s_barrier")
        if n in (0, 10, 20, 30):
            A.stamp(1 + n // 10)
        for ss in range(4):
            if n >= 1 and ss > 0:
                mfma(n - 1, ss - 1)
            reads(n, ss)
        if n >= 1:
            mfma(n - 1, 3)
        if 24 <= n < 32:
            mid(n - 24)
    A.lgw0()
    for ss in range(4):
        mfma(N - 1, ss)
    A.stamp(5)
    A.e("s_nop 7")
    A.e("s_nop 3")
    for r in range(16):
        A.e("v_add_f32 %s, %s, %s" % (v(ACCA + r), v(ACCA + r), v(XV + r)))
    for r in range(16):
        A.e("v_fmac_f32 %s, %s, %s" % (v(ACCB + r), v(GV + 2 * r), v(ACCA + r)))
        A.e("s_movk_i32 s6, %d" % (4096 * (r >> 1)))
        A.e("buffer_store_dword %s, v25, %s, s6 offen offset:%d%s" % (v(ACCB + r), s(rO, 4), 2048 * (r & 1), stmod("o")))
    A.stamp_end(1, 30, 8, 6)
    A.lab("L_k2_end")
    A.e("s_endpgm")


def kd(name, nv, acc, ns=102):
    return """.amdhsa_kernel %s
  .amdhsa_next_free_vgpr %d
  .amdhsa_next_free_sgpr %d
  .amdhsa_accum_offset %d
  .amdhsa_group_segment_fixed_size 0
  .amdhsa_kernarg_size 136
  .amdhsa_user_sgpr_count 2
  .amdhsa_user_sgpr_kernarg_segment_ptr 1
  .amdhsa_system_sgpr_workgroup_id_x 1
.end_amdhsa_kernel
""" % (name, nv, ns, acc)


def main(path):
    ref = open("cdna_kernels/%s.s.ref" % NAME).read().splitlines()
    head = [l for l in ref if l.startswith(";") and "@launch" not in l and "Override launch" not in l and "grid=ceil" not in l]
    head = head[:18]
    A = Asm()
    gen_k1(A)
    gen_k2(A)
    out = head + [
        "; @launch kernel=k1_kernel grid=(256,1,1) block=(512,1,1) lds=%d" % K1_LDS,
        "; @launch kernel=k2_kernel grid=(256,1,1) block=(512,1,1) lds=%d" % K2_LDS,
        '.amdgcn_target "amdgcn-amd-amdhsa--gfx950"', ".text"] + A.L + [
        '.section .rodata,"a"', ".p2align 6", kd("k1_kernel", 256, 128), ".p2align 6", kd("k2_kernel", 176, 176)]
    open(path, "w").write("\n".join(out))


if __name__ == "__main__":
    if "--stamp" in sys.argv:
        STAMP = True
        sys.argv.remove("--stamp")
    for x in list(sys.argv):
        if x.startswith("-O"):
            OPT.add(x[2:]); sys.argv.remove(x)
        elif x.startswith("-P"):
            kk, vv = x[2:].split("=")
            PAR[kk] = vv if kk.startswith("ord") else int(vv)
            sys.argv.remove(x)
    main(sys.argv[1] if len(sys.argv) > 1 else "cdna_kernels/%s.s" % NAME)
```

```python
import sys, struct

NAME = "gated_mix__ssm_conv_s5__glu_gated_swiglu__prompt"

def f2u(x):
    return struct.unpack("<I", struct.pack("<f", x))[0]

LOG2E = 1.4426950408889634
INV2PI = 0.15915494309189535

NKS = 150
A_BYTES = 64 * NKS * 1024
E_OFF = 0xA00000
G_OFF = 0xA20000
EP_OFF = 0xA30000


STAMP = False
OPT = {"asc0", "asc1"}
ST_OFF = 0xB00000

class Asm:
    def __init__(self):
        self.nst = 0
        self.L = []
        self.vm = []
        self.lg = []

    def e(self, s):
        if "nomfma" in OPT and s.startswith("v_mfma"):
            s = "s_nop 0"
        if "nolds" in OPT and s.startswith("ds_read"):
            s = "s_nop 0"
        self.L.append("  " + s)

    def c(self, s):
        self.L.append("  ; " + s)

    def lab(self, s):
        self.L.append(s + ":")

    def stamp(self, k):
        if STAMP and (k == 0 or k == 6 or "fine" not in OPT):
            self.e("%s s[%d:%d]" % ("s_memrealtime" if "rt" in OPT else "s_memtime", 86 + 2 * k, 87 + 2 * k))

    def fs(self, n, reg):
        if STAMP and "fine" in OPT:
            self.e("%s s[98:99]" % ("s_memrealtime" if "rt" in OPT else "s_memtime"))
            self.e("s_waitcnt lgkmcnt(0)")
            self.lg = []
            self.e("s_sub_u32 s98, s98, s86")
            self.e("v_writelane_b32 v%d, s98, %d" % (reg, n))

    def fs_end(self, kern, wsreg, nwaves, reg):
        if STAMP and "fine" in OPT:
            self.e("s_mov_b64 exec, -1")
            self.e("s_add_u32 s8, s%d, 0x%x" % (wsreg, ST_OFF + 0x80000 + kern * 0x80000))
            self.e("s_addc_u32 s9, s%d, 0" % (wsreg + 1))
            self.e("s_mov_b32 s10, 0x80000")
            self.e("s_mov_b32 s11, 0x20000")
            self.e("s_mul_i32 s6, s2, %d" % (nwaves * 256))
            self.e("s_lshl_b32 s12, s3, 8")
            self.e("s_add_u32 s6, s6, s12")
            self.e("v_mbcnt_lo_u32_b32 v1, -1, 0")
            self.e("v_mbcnt_hi_u32_b32 v1, -1, v1")
            self.e("v_lshlrev_b32 v1, 2, v1")
            self.e("buffer_store_dword v%d, v1, s[8:11], s6 offen" % reg)

    def stamp_begin(self):
        if STAMP:
            self.e("s_memrealtime s[84:85]")
            self.stamp(0)

    def stamp_end(self, kern, wsreg, nwaves, nst):
        if not STAMP:
            return
        self.e("s_waitcnt vmcnt(0)")
        self.e("s_memrealtime s[100:101]")
        self.stamp(nst)
        self.e("s_waitcnt lgkmcnt(0)")
        self.e("s_add_u32 s8, s%d, 0x%x" % (wsreg, ST_OFF + kern * 0x40000))
        self.e("s_addc_u32 s9, s%d, 0" % (wsreg + 1))
        self.e("s_mov_b32 s10, 0x40000")
        self.e("s_mov_b32 s11, 0x20000")
        self.e("s_mul_i32 s6, s2, %d" % (nwaves * 64))
        self.e("s_lshl_b32 s12, s3, 6")
        self.e("s_add_u32 s6, s6, s12")
        self.e("s_mov_b64 exec, 1")
        self.e("v_mov_b32 v1, 0")
        self.e("v_mov_b32 v2, s84")
        self.e("buffer_store_dword v2, v1, s[8:11], s6 offen")
        self.e("v_mov_b32 v3, s100")
        self.e("buffer_store_dword v3, v1, s[8:11], s6 offen offset:4")
        for k in range(1, nst + 1):
            self.e("s_sub_u32 s12, s%d, s86" % (86 + 2 * k))
            self.e("v_mov_b32 v%d, s12" % (3 + k))
            self.e("buffer_store_dword v%d, v1, s[8:11], s6 offen offset:%d" % (3 + k, 4 + 4 * k))

    def vmi(self, tag, s, cold=False):
        if cold and "nt" in OPT:
            s = s.replace(" lds", " nt lds") if s.endswith(" lds") else s + " nt"
        self.e(s)
        self.vm.append(tag)
        assert len(self.vm) <= 63, "too many vmem ops in flight"

    def vmw(self, tag, extra=""):
        idx = [i for i, t in enumerate(self.vm) if t == tag]
        if not idx:
            return None
        n = len(self.vm) - 1 - idx[-1]
        self.vm = self.vm[idx[-1] + 1:]
        self.e("s_waitcnt vmcnt(%d)%s" % (n, extra))
        return n

    def lgi(self, tag, s):
        self.e(s)
        self.lg.append(tag)

    def lgw(self, tag):
        idx = [i for i, t in enumerate(self.lg) if t == tag]
        if not idx:
            return
        n = len(self.lg) - 1 - idx[-1]
        self.lg = self.lg[idx[-1] + 1:]
        self.e("s_waitcnt lgkmcnt(%d)" % min(n, 15))

    def lgw0(self):
        if self.lg:
            self.e("s_waitcnt lgkmcnt(0)")
        self.lg = []


def stmod(pre="a"):
    return "".join(" " + m for m in ("sc0", "sc1", "nt") if pre + m in OPT)

def v(a, n=1):
    return "v%d" % a if n == 1 else "v[%d:%d]" % (a, a + n - 1)

def a(a_, n=1):
    return "a%d" % a_ if n == 1 else "a[%d:%d]" % (a_, a_ + n - 1)

def s(a_, n=1):
    return "s%d" % a_ if n == 1 else "s[%d:%d]" % (a_, a_ + n - 1)


def srd(A, d, base, nbytes, addlo=None):
    if addlo is None:
        A.e("s_mov_b32 s%d, s%d" % (d, base))
        A.e("s_mov_b32 s%d, s%d" % (d + 1, base + 1))
    else:
        A.e("s_add_u32 s%d, s%d, %s" % (d, base, addlo))
        A.e("s_addc_u32 s%d, s%d, 0" % (d + 1, base + 1))
    A.e("s_mov_b32 s%d, 0x%x" % (d + 2, nbytes))
    A.e("s_mov_b32 s%d, 0x20000" % (d + 3))


SLOT = 24576
NSLOT = 6
MISC = SLOT * NSLOT
K1_LDS = MISC + 4096
OOB = 0x40000000

def mkord(sx):
    o, pc, fc = [], 0, 0
    for ch in sx:
        if ch == "P":
            o.append(("P", pc)); pc += 1
        else:
            assert fc < pc
            o.append(("F", fc)); fc += 1
    assert pc == 8 and fc == 8 and sx[:2] == "PP"
    return o
PAR = dict(ord="PPFFPPPPPPFFFFFF", ord2="PPPPPPPPFFFFFFFF", la=2, laf=4, dmagap=2, nt=3, estep=13, fd=5, sd=3,
           ffill=4, sfill=10, k2la=3, rot=1, pf=1, k2rot=1, cpf=1)

sX, sLRE, sLIM, sBRE, sBIM, sLDT = 16, 18, 20, 22, 24, 30
sW1, sW3, sW2, sGW, sWS = 32, 34, 36, 38, 42
rX, rBRE, rBIM, rW1, rW3, rAS, rE, rEP, rG = 44, 48, 52, 56, 60, 64, 68, 72, 76


def swiglu_ops(acc, off):
    o = []
    for r in range(8):
        o.append("v_mul_f32 %s, %s, %s" % (v(acc + 8 + r), v(acc + r), v(acc + 8 + r)))
    for r in range(8):
        o.append("v_mul_f32 %s, s80, %s" % (v(acc + r), v(acc + r)))
    for r in range(8):
        o.append("v_exp_f32 %s, %s" % (v(acc + r), v(acc + r)))
    for r in range(8):
        o.append("v_add_f32 %s, 1.0, %s" % (v(acc + r), v(acc + r)))
    for r in range(8):
        o.append("v_rcp_f32 %s, %s" % (v(acc + r), v(acc + r)))
    for r in range(8):
        o.append("v_mul_f32 %s, %s, %s" % (v(acc + 8 + r), v(acc + 8 + r), v(acc + r)))
    for q in range(4):
        o.append("v_cvt_pk_bf16_f32 %s, %s, %s" % (v(acc + q), v(acc + 8 + 2 * q), v(acc + 9 + 2 * q)))
    o.append("buffer_store_dwordx4 %s, v6, %s, s82 offen offset:%d%s" % (v(acc, 4), s(rAS, 4), off, stmod()))
    return o


class Stream:
    def __init__(self, A, items, NB, D, K):
        self.A, self.items, self.NB, self.D, self.K = A, items, NB, D, K
        self.nb = 0
        self.rp = 0
        self.fill = []
        self.hold = 0

    def ninstr(self):
        return len(self.A.L)

    def pop(self, k):
        while k > 0 and self.fill:
            f = self.fill[0]
            if isinstance(f, tuple):
                if self.ninstr() - f[1] < 14:
                    return
                self.fill.pop(0)
                continue
            self.fill.pop(0)
            if isinstance(f, str):
                self.A.e(f)
            else:
                f()
            k -= 1

    def flush(self):
        while self.fill:
            f = self.fill[0]
            if isinstance(f, tuple):
                d = 14 - (self.ninstr() - f[1])
                if d > 0:
                    self.A.e("s_nop %d" % (d - 1))
                self.fill.pop(0)
                continue
            self.pop(1)

    def barrier(self, n):
        while self.nb <= n:
            b = self.nb
            self.pre(b)
            old = [t for t in self.A.lg if t[0] == "c" and int(t[1:].split("_")[0]) <= b - 2]
            if old:
                self.A.lgw(old[-1])
            self.A.e("s_barrier")
            self.nb += 1
            self.post(b)

    def reads(self, upto, force):
        while self.rp < min(upto, len(self.items)):
            it = self.items[self.rp]
            if not force and it[0] > self.nb:
                return
            self.barrier(it[0])
            self.read(it, self.rp % self.NB, "c%d_%d" % (it[0], self.rp))
            self.rp += 1

    def run(self):
        for mp, it in enumerate(self.items):
            if self.rp <= mp:
                self.reads(mp + 1, True)
                self.reads(mp + 1 + self.D, False)
            self.A.lgw("c%d_%d" % (it[0], mp))
            self.mfma(it, mp % self.NB)
            self.after(it, mp)
            self.reads(min(mp + 1 + self.D, self.rp + 2), False)
            self.pop(self.K)
        self.barrier(15)


def mk_items(ORD, ntile, withP):
    NT = PAR["nt"]
    items = []
    for n in range(16 - NT):
        if ORD[n][0] == "P" and not withP:
            continue
        for ss in range(4):
            for ti in range(ntile):
                items.append((n, ss, ti))
    for t0 in range(0, ntile, 2):
        for n in range(16 - NT, 16):
            assert ORD[n][0] == "F"
            for ss in range(4):
                for ti in (t0, t0 + 1):
                    items.append((n, ss, ti))
    return items


def k1_prologue(A):
    A.e("s_cmp_ge_u32 s2, 256")
    A.e("s_cbranch_scc1 L_k1_end")
    A.stamp_begin()
    A.e("s_load_dwordx16 s[16:31], s[0:1], 0")
    A.e("s_load_dwordx8 s[32:39], s[0:1], 80")
    A.e("s_load_dwordx2 s[42:43], s[0:1], 128")
    A.e("v_lshrrev_b32 v2, 6, v0")
    A.e("v_and_b32 v1, 63, v0")
    A.e("v_readfirstlane_b32 s3, v2")
    A.e("s_bfe_u32 s4, s2, 0x20001")
    A.e("s_lshl_b32 s4, s4, 2")
    A.e("s_bfe_u32 s6, s2, 0x20003")
    A.e("s_add_u32 s4, s4, s6")
    A.e("s_and_b32 s5, s2, 1")
    A.e("s_lshl_b32 s5, s5, 3")
    A.e("s_lshr_b32 s6, s2, 5")
    A.e("s_add_u32 s5, s5, s6")
    A.e("s_and_b32 s7, s3, 3")
    A.e("v_and_b32 v8, 31, v1")
    A.e("v_lshrrev_b32 v9, 5, v1")
    A.e("s_lshl_b32 s8, s7, 12")
    A.e("s_cmp_lt_u32 s3, 4")
    A.e("s_cbranch_scc1 L_k1_Spro")


def k1_common_late(A):
    A.e("s_mov_b32 s80, 0x%x" % f2u(-LOG2E))
    A.e("v_bfe_u32 v10, v1, 1, 3")
    A.e("v_xor_b32 v10, v10, v9")
    A.e("v_lshlrev_b32 v10, 4, v10")
    A.e("v_lshl_add_u32 v7, v8, 7, v10")
    A.e("v_bfe_u32 v10, v1, 4, 1")
    A.e("v_mul_u32_u24 v12, 3104, v10")
    A.e("v_lshlrev_b32 v11, 9, v9")
    A.e("v_add_u32 v12, v12, v11")
    A.e("v_bfe_u32 v11, v1, 2, 2")
    A.e("v_lshl_add_u32 v12, v11, 6, v12")
    A.e("v_and_b32 v11, 3, v1")
    A.e("v_lshl_add_u32 v12, v11, 3, v12")
    A.e("v_xor_b32 v13, 32, v12")
    A.e("v_lshlrev_b32 v6, 4, v1")
    A.e("s_lshl_b32 s6, s4, 2")
    A.e("s_add_u32 s6, s6, s7")
    A.e("s_mul_i32 s81, s6, %d" % (NKS * 1024))
    A.e("s_mul_i32 s6, s5, 6144")
    A.e("s_add_u32 s82, s81, s6")
    srd(A, rAS, sWS, A_BYTES)


def dma_ops(A, ORD, n):
    kind, c = ORD[n]
    slot = (n % NSLOT) * SLOT
    tag = "ch%d" % n
    ops = []
    def mk(pre, m0, ins):
        def f():
            for x in pre:
                A.e(x)
            A.e(m0)
            A.e("s_nop 0")
            A.vmi(tag, ins)
        return f
    if kind == "P":
        pre = ["s_add_u32 s11, s83, %d" % c, "s_and_b32 s11, s11, 7", "s_lshl_b32 s11, s11, 7", "s_add_u32 s12, s11, 8192"]
        for q in range(4):
            ops.append(mk(pre if q == 0 else [], "s_add_u32 m0, s8, %d" % (slot + 1024 * q),
                          "buffer_load_dwordx4 %s, %s, s%d offen lds" % ("v3" if q & 1 else "v2", s(rX, 4), 12 if q >= 2 else 11)))
        ops.append(mk([], "s_add_u32 m0, s9, %d" % (slot + 16384), "buffer_load_dwordx4 v4, %s, s11 offen lds" % s(rBRE, 4)))
        ops.append(mk([], "s_add_u32 m0, s9, %d" % (slot + 20480), "buffer_load_dwordx4 v4, %s, s11 offen lds" % s(rBIM, 4)))
    else:
        pre = ["s_add_u32 s11, s83, %d" % c, "s_and_b32 s11, s11, 7", "s_mul_i32 s11, s11, 176128",
               "s_add_u32 s12, s11, s15", "s_add_u32 s11, s11, s14"]
        for m in range(2):
            for q in range(3):
                ops.append(mk(pre if m == 0 and q == 0 else [], "s_add_u32 m0, s10, %d" % (slot + m * 3072 + 1024 * q - 64 * q),
                              "buffer_load_dwordx4 %s, %s, s%d offen offset:%d lds" % ("v16" if m else "v5", s(rW3 if m else rW1, 4), 12 if q else 11, 64 * q)))
    return ops


def k1_F_prologue(A):
    A.vm, A.lg = [], []
    if PAR["rot"]:
        A.e("s_lshl_b32 s83, s4, 1")
        A.e("s_add_u32 s83, s83, s5")
    else:
        A.e("s_mov_b32 s83, 0")
    A.e("v_lshrrev_b32 v10, 4, v1")
    A.e("v_and_b32 v11, 7, v1")
    A.e("v_xor_b32 v10, v10, v11")
    A.e("v_lshlrev_b32 v10, 4, v10")
    A.e("v_bfe_u32 v11, v1, 3, 2")
    A.e("v_lshl_add_u32 v2, v11, 10, v10")
    A.e("v_lshl_add_u32 v2, v9, 14, v2")
    A.e("s_lshl_b32 s6, s7, 15")
    A.e("v_add_u32 v2, s6, v2")
    A.e("v_xor_b32 v3, 64, v2")
    A.e("v_add_u32 v3, 4096, v3")
    A.e("s_lshl_b32 s9, s7, 10")
    A.e("s_mul_i32 s10, s7, 6144")
    A.e("s_and_b32 s6, s7, 1")
    A.e("s_lshl_b32 s6, s6, 6")
    A.e("v_xor_b32 v4, s6, v10")
    A.e("v_lshrrev_b32 v11, 3, v1")
    A.e("v_lshl_add_u32 v4, v11, 10, v4")
    A.e("s_lshl_b32 s6, s7, 13")
    A.e("v_add_u32 v4, s6, v4")
    A.e("s_lshl_b32 s6, s4, 17")
    A.e("s_lshl_b32 s13, s5, 15")
    A.e("s_waitcnt lgkmcnt(0)")
    srd(A, rX, sX, 131072, "s6")
    srd(A, rBRE, sBRE, 32768, "s13")
    srd(A, rBIM, sBIM, 32768, "s13")
    O = mkord(PAR["ord"])
    for f in dma_ops(A, O, 0):
        f()
    A.e("s_lshl_b32 s6, s5, 3")
    A.e("s_lshl_b32 s13, s7, 1")
    A.e("s_add_u32 s13, s13, s6")
    A.e("s_lshl_b32 s6, s13, 10")
    A.e("v_lshlrev_b32 v17, 4, v8")
    A.e("v_lshl_add_u32 v18, v9, 10, v17")
    A.e("v_add_u32 v18, s6, v18")
    A.vmi("g", "buffer_load_dwordx4 v[64:67], v18, %s, 0 offen" % s(rX, 4))
    A.vmi("g", "buffer_load_dwordx4 v[68:71], v18, %s, 0 offen offset:512" % s(rX, 4))
    A.vmi("g", "global_load_dwordx4 v[72:75], v17, %s" % s(sGW, 2))
    A.vmi("g", "global_load_dwordx4 v[76:79], v17, %s offset:512" % s(sGW, 2))
    for f in dma_ops(A, O, 1):
        f()
    k1_common_late(A)
    srd(A, rW1, sW1, 512 * 2752)
    srd(A, rW3, sW3, 512 * 2752)
    srd(A, rG, sWS, 16384, "0x%x" % G_OFF)
    A.e("v_lshrrev_b32 v10, 2, v1")
    A.e("s_lshl_b32 s6, s7, 4")
    A.e("v_add_u32 v10, s6, v10")
    A.e("v_mul_u32_u24 v5, 2752, v10")
    A.e("s_mul_i32 s6, s5, 192")
    A.e("v_add_u32 v5, s6, v5")
    A.e("v_and_b32 v10, 3, v1")
    A.e("v_lshl_add_u32 v5, v10, 4, v5")
    A.e("v_xor_b32 v16, 32, v5")
    A.e("v_add_u32 v7, s8, v7")
    A.e("s_cmp_ge_u32 s5, 15")
    A.e("s_cselect_b32 s14, 0x%x, 0" % OOB)
    A.e("s_cmp_ge_u32 s5, 14")
    A.e("s_cselect_b32 s15, 0x%x, 0" % OOB)
    A.e("s_add_u32 s82, s82, %d" % (65536 + 2048))
    A.e("s_add_u32 s82, s82, s15")
    A.e("s_bitcmp1_b32 s4, 0")
    A.e("s_cbranch_scc1 L_k1_Fb")
    A.e("s_branch L_k1_Fa")
    return list(A.vm)


def k1_F(A, ORD, X, vm0):
    A.vm, A.lg = list(vm0), []
    A.lab("L_k1_F" + X)
    ACC, FB = 64, 32
    LA, LAF, NT = PAR["la"], PAR["laf"], PAR["nt"]
    assert LAF <= 4 and LA <= LAF

    def g_compute():
        A.c("g = sigmoid(sum bf16(x*gate_w))")
        A.vmw("g")
        A.e("v_mov_b32 v20, 0")
        for d in range(8):
            xx, ww = 64 + d, 72 + d
            A.e("v_lshlrev_b32 v80, 16, %s" % v(xx))
            A.e("v_and_b32 v81, 0xffff0000, %s" % v(xx))
            A.e("v_lshlrev_b32 v82, 16, %s" % v(ww))
            A.e("v_and_b32 v83, 0xffff0000, %s" % v(ww))
            A.e("v_mul_f32 v80, v80, v82")
            A.e("v_mul_f32 v81, v81, v83")
            A.e("v_cvt_pk_bf16_f32 v80, v80, v81")
            A.e("v_lshlrev_b32 v81, 16, v80")
            A.e("v_and_b32 v80, 0xffff0000, v80")
            A.e("v_add_f32 v20, v20, v81")
            A.e("v_add_f32 v20, v20, v80")
        for sh in (1, 2, 4, 8):
            A.e("s_nop 1")
            A.e("v_add_f32_dpp v20, v20, v20 row_shr:%d row_mask:0xf bank_mask:0xf bound_ctrl:0" % sh)
        A.e("s_nop 1")
        A.e("v_add_f32_dpp v20, v20, v20 row_bcast:15 row_mask:0xa bank_mask:0xf")
        A.e("v_cvt_pk_bf16_f32 v20, v20, v20")
        A.e("v_and_b32 v20, 0xffff0000, v20")
        A.e("v_mul_f32 v20, s80, v20")
        A.e("v_exp_f32 v20, v20")
        A.e("s_nop 0")
        A.e("v_add_f32 v20, 1.0, v20")
        A.e("v_rcp_f32 v20, v20")
        A.e("s_nop 0")
        A.e("v_cvt_pk_bf16_f32 v20, v20, v20")
        A.e("v_and_b32 v20, 0xffff0000, v20")
        A.e("v_sub_f32 v21, 1.0, v20")
        A.e("v_cvt_pk_bf16_f32 v21, v21, v21")
        A.e("v_and_b32 v21, 0xffff0000, v21")
        A.e("s_lshl_b32 s6, s4, 7")
        A.e("s_add_u32 s6, s6, s13")
        A.e("s_lshl_b32 s6, s6, 3")
        A.e("v_lshlrev_b32 v22, 3, v9")
        A.e("s_mov_b32 exec_lo, 0x80000000")
        A.e("s_mov_b32 exec_hi, 0x80000000")
        A.vmi("gst", "buffer_store_dwordx2 v[20:21], v22, %s, s6 offen%s" % (s(rG, 4), stmod()))
        A.e("s_mov_b64 exec, -1")

    def prefetch_w2():
        A.c("pull this XCD's share of w2 into L2 for the second launch")
        A.e("s_lshr_b32 s6, s2, 3")
        A.e("s_mul_i32 s12, s6, 43")
        A.e("s_mul_i32 s13, s7, 11")
        A.e("s_add_u32 s12, s12, s13")
        A.e("s_lshl_b32 s12, s12, 1")
        A.e("s_and_b32 s11, s2, 1")
        A.e("s_add_u32 s12, s12, s11")
        A.e("s_lshl_b32 s12, s12, 9")
        A.e("v_lshrrev_b32 v2, 2, v1")
        A.e("v_and_b32 v3, 3, v1")
        A.e("v_lshlrev_b32 v2, 10, v2")
        A.e("v_lshl_add_u32 v2, v3, 7, v2")
        srd(A, rX, sW2, 1376 * 1024)
        A.e("s_mov_b32 exec_hi, 0xfff")
        A.vmi("pf", "buffer_load_dword v4, v2, %s, s12 offen" % s(rX, 4))
        A.e("s_mov_b64 exec, -1")

    tiles = [2, 3, 4, 5]
    S = Stream(A, mk_items(ORD, 4, False), 8, PAR["fd"], PAR["ffill"])
    dq = []
    for n in range(2, 16):
        dq += [(n, f) for f in dma_ops(A, ORD, n)]
    if PAR["pf"]:
        dq.append((15, prefetch_w2))

    def dma_upto(m, maxops=999):
        while dq and dq[0][0] <= m and maxops > 0:
            dq.pop(0)[1]()
            maxops -= 1

    def waddr(n):
        return ((14, 15), (28, 29), (30, 31))[n % 3]

    def pre(b):
        kind, c = ORD[b]
        slot = (b % NSLOT) * SLOT
        dma_upto(b - 1 + LA)
        if kind == "P":
            A.e("v_add_u32 v24, %d, v7" % slot)
            A.e("v_xor_b32 v25, 32, v24")
            A.e("v_xor_b32 v26, 64, v24")
            A.e("v_xor_b32 v27, 0x60, v24")
        else:
            A.e("v_add_u32 v%d, %d, v12" % (waddr(b)[0], slot))
            A.e("v_add_u32 v%d, %d, v13" % (waddr(b)[1], slot))
        A.vmw("ch%d" % b)

    def post(b):
        kind, c = ORD[b]
        A.fs(b, 23)
        if kind == "P":
            for ss in range(4):
                A.lgi("c%d_x" % b, "ds_read_b128 %s, %s" % (a(16 * c + 4 * ss, 4), v(24 + ss)))
            dma_upto(b + LA)
        if b == 0:
            g_compute()

    def read(it, sl, tag):
        n, ss, ti = it
        T = tiles[ti]
        for nn in range(2):
            A.lgi(tag, "ds_read_b64_tr_b16 %s, v%d offset:%d" % (v(FB + 4 * sl + 2 * nn, 2), waddr(n)[T & 1],
                                                                ss * 6144 + (T >> 1) * 1024 + nn * 256))

    def mfma(it, sl):
        n, ss, ti = it
        c = ORD[n][1]
        first = (c == 0 and ss == 0)
        A.e("v_mfma_f32_32x32x16_bf16 %s, %s, %s, %s" % (v(ACC + 16 * ti, 16), v(FB + 4 * sl, 4), a(16 * c + 4 * ss, 4),
                                                        "0" if first else v(ACC + 16 * ti, 16)))

    def after(it, mp):
        n, ss, ti = it
        if mp % PAR["dmagap"] == 0:
            dma_upto(S.nb - 1 + LAF, 1)
        if n == 15 and ss == 3:
            S.fill.append(("dist", S.ninstr()))
            S.fill += swiglu_ops(ACC + 16 * ti, 1024 * ti)

    S.pre, S.post, S.read, S.mfma, S.after = pre, post, read, mfma, after
    S.run()
    assert not dq
    A.fs(16, 23)
    S.flush()
    A.fs(17, 23)
    A.stamp_end(0, sWS, 8, 6)
    A.fs(18, 23)
    A.fs_end(0, sWS, 8, 23)
    A.e("s_endpgm")


def cpow(A, n_scale, dre, dim, t0, t1, va, vb):
    if n_scale == 1.0:
        A.e("v_exp_f32 %s, %s" % (t0, va))
        A.e("v_fract_f32 %s, %s" % (t1, vb))
    else:
        ns = n_scale if isinstance(n_scale, str) else "0x%x" % f2u(n_scale)
        A.e("v_mul_f32 %s, %s, %s" % (t0, ns, va))
        A.e("v_mul_f32 %s, %s, %s" % (t1, ns, vb))
        A.e("v_exp_f32 %s, %s" % (t0, t0))
        A.e("v_fract_f32 %s, %s" % (t1, t1))
    A.e("v_cos_f32 %s, %s" % (dre, t1))
    A.e("v_sin_f32 %s, %s" % (dim, t1))
    A.e("s_nop 0")
    A.e("v_mul_f32 %s, %s, %s" % (dre, dre, t0))
    A.e("v_mul_f32 %s, %s, %s" % (dim, dim, t0))


def cfma_ops(dr, di, mr, mi, xr, xi, ar, ai):
    return ["v_fma_f32 %s, %s, %s, %s" % (dr, mr, xr, ar),
            "v_fma_f32 %s, %s, %s, %s" % (di, mr, xi, ai),
            "v_fma_f32 %s, -%s, %s, %s" % (dr, mi, xi, dr),
            "v_fma_f32 %s, %s, %s, %s" % (di, mi, xr, di)]

def cfma(A, *args):
    for x in cfma_ops(*args):
        A.e(x)

LR, LI, NLI = "v16", "v17", "v5"
L16R, L16I, L128R, L128I, L256R, L256I = "v18", "v19", "v20", "v21", "v22", "v23"
CR, CI, PR, PI = "v2", "v3", "v10", "v11"
ER, EI, SR, SI = "v56", "v57", "v58", "v59"


def k1_S_prologue(A):
    A.vm, A.lg = [], []
    A.lab("L_k1_Spro")
    A.e("s_lshl_b32 s6, s5, 6")
    A.e("v_lshlrev_b32 v4, 1, v8")
    A.e("v_add_u32 v4, s6, v4")
    A.e("s_lshl_b32 s6, s5, 7")
    A.e("s_add_u32 s6, s6, 0x%x" % EP_OFF)
    A.e("v_mov_b32 v55, 0")
    if PAR["cpf"]:
        A.c("pull the code of both launches into this XCD's L2: 4 lines per wave")
        A.e("s_getpc_b64 s[44:45]")
        A.lab("L_k1_pc")
        A.e("s_mov_b32 s46, L_code_end - L_k1_pc")
        A.e("s_mov_b32 s47, 0x20000")
        A.e("s_lshr_b32 s9, s2, 3")
        A.e("s_lshl_b32 s9, s9, 2")
        A.e("s_add_u32 s9, s9, s7")
        A.e("s_lshl_b32 s9, s9, 9")
        A.e("v_lshlrev_b32 v53, 7, v1")
        A.e("s_mov_b64 exec, 15")
        A.vmi("par", "buffer_load_dword v52, v53, s[44:47], s9 offen")
        A.e("s_mov_b64 exec, -1")
    A.e("s_waitcnt lgkmcnt(0)")
    A.vmi("par", "global_load_ushort v60, v4, %s" % s(sLRE, 2))
    A.vmi("par", "global_load_ushort v61, v4, %s" % s(sLIM, 2))
    A.vmi("par", "global_load_ushort v62, v4, %s" % s(sLDT, 2))
    srd(A, rEP, sWS, 4, "s6")
    A.vmi("par", "buffer_load_dword v54, v55, %s, 0 offen sc1" % s(rEP, 4))
    k1_common_late(A)
    A.e("s_lshl_b32 s6, s5, 13")
    A.e("s_add_u32 s6, s6, 0x%x" % E_OFF)
    srd(A, rE, sWS, 8192, "s6")
    srd(A, rBRE, 26, 524288)
    srd(A, rBIM, 28, 524288)
    A.e("s_cmp_ge_u32 s5, 15")
    A.e("s_cselect_b32 s6, 0x%x, 0" % OOB)
    A.e("s_add_u32 s82, s82, 65536")
    A.e("s_add_u32 s82, s82, s6")
    A.e("v_lshlrev_b32 v4, 3, v0")
    A.e("v_add_u32 v4, %d, v4" % (MISC + 2048))
    A.e("v_mov_b32 v48, 0")
    A.e("v_mov_b32 v49, 0")
    A.e("ds_write_b64 v4, v[48:49]")
    A.e("s_lshl_b32 s6, s7, 1")
    A.e("v_add_u32 v63, s6, v9")
    A.e("v_sub_u32 v4, 7, v63")
    A.e("v_lshlrev_b32 v4, 8, v4")
    A.e("v_lshl_add_u32 v4, v8, 3, v4")
    A.e("v_add_u32 v4, %d, v4" % MISC)
    A.e("v_lshlrev_b32 v63, 4, v63")
    A.e("v_cvt_f32_u32 v63, v63")
    A.vmw("par", " lgkmcnt(0)")
    A.e("v_readfirstlane_b32 s14, v54")
    A.e("s_add_u32 s14, s14, 1")
    A.e("s_bitset1_b32 s14, 31")
    A.e("v_lshlrev_b32 v60, 16, v60")
    A.e("v_lshlrev_b32 v61, 16, v61")
    A.e("v_lshlrev_b32 v62, 16, v62")
    A.e("v_mul_f32 v62, 0x%x, v62" % f2u(LOG2E))
    A.e("v_exp_f32 v62, v62")
    A.e("s_nop 0")
    A.e("v_cvt_pk_bf16_f32 v62, v62, v62")
    A.e("v_and_b32 v62, 0xffff0000, v62")
    A.e("v_mul_f32 v50, v62, v60")
    A.e("v_mul_f32 v51, v62, v61")
    A.e("v_mul_f32 v50, 0x%x, v50" % f2u(LOG2E))
    A.e("v_mul_f32 v51, 0x%x, v51" % f2u(INV2PI))
    cpow(A, 1.0, LR, LI, "v52", "v53", "v50", "v51")
    cpow(A, 16.0, L16R, L16I, "v52", "v53", "v50", "v51")
    cpow(A, 128.0, L128R, L128I, "v52", "v53", "v50", "v51")
    cpow(A, 256.0, L256R, L256I, "v52", "v53", "v50", "v51")
    cpow(A, "v63", PR, PI, "v52", "v53", "v50", "v51")
    A.e("v_sub_f32 %s, 0, %s" % (NLI, LI))
    A.e("v_mul_f32 v52, v60, v60")
    A.e("v_fmac_f32 v52, v61, v61")
    A.e("v_rcp_f32 v52, v52")
    A.e("v_add_f32 v53, -1.0, %s" % LR)
    A.e("v_mul_f32 %s, v53, v60" % CR)
    A.e("v_fmac_f32 %s, %s, v61" % (CR, LI))
    A.e("v_mul_f32 %s, %s, v60" % (CI, LI))
    A.e("v_fma_f32 %s, -v53, v61, %s" % (CI, CI))
    A.e("v_add_f32 v52, v52, v52")
    A.e("v_mul_f32 %s, %s, v52" % (CR, CR))
    A.e("v_mul_f32 %s, %s, v52" % (CI, CI))
    A.stamp(1)
    A.e("s_bitcmp1_b32 s4, 0")
    A.e("s_cbranch_scc1 L_k1_Sb")
    A.e("s_branch L_k1_Sa")


def k1_S(A, ORD, X):
    A.vm, A.lg = [], []
    A.lab("L_k1_S" + X)
    RE, IM, ACC, FB = 64, 80, 96, 32
    NT = PAR["nt"]
    tiles = [0, 1]
    lastP = max(n for n in range(16) if ORD[n][0] == "P")
    assert lastP + 3 < 16 - NT + 1 and lastP + 2 < PAR["estep"]
    S = Stream(A, mk_items(ORD, 2, True), 4, PAR["sd"], PAR["sfill"])

    def er(m):
        b = 24 + 2 * m if m < 4 else 48 + 2 * (m - 4)
        return v(b), v(b + 1)

    def waddr(n):
        return (14, 15) if n <= 16 - NT else ((24, 25), (26, 27))[n - (17 - NT)]

    def endstate_ops():
        o = []
        cur = (v(RE), v(IM))
        tmp = [("v48", "v49"), ("v50", "v51")]
        for r in range(1, 16):
            d = (ER, EI) if r == 15 else tmp[r & 1]
            o += cfma_ops(d[0], d[1], LR, LI, cur[0], cur[1], v(RE + r), v(IM + r))
            cur = d
        o.append(lambda: A.lgi("ew", "ds_write_b64 v4, v[56:57]"))
        return o

    def publish():
        A.e("s_cmp_lg_u32 s7, 3")
        A.e("s_cbranch_scc1 L_k1_S_nopub" + X)
        cfma(A, "v52", "v54", L16R, L16I, SR, SI, ER, EI)
        A.e("v_mov_b32 v53, s14")
        A.e("v_mov_b32 v55, s14")
        A.e("s_sub_u32 s6, 15, s4")
        A.e("s_lshl_b32 s6, s6, 9")
        A.e("v_lshlrev_b32 v60, 4, v8")
        A.e("s_mov_b32 exec_lo, 0")
        A.e("buffer_store_dwordx4 v[52:55], v60, %s, s6 offen sc1" % s(rE, 4))
        A.e("s_mov_b64 exec, -1")
        A.lab("L_k1_S_nopub" + X)

    def prefix_ops():
        o = [lambda: A.lgw("er")]
        cur = er(6)
        tmp = [("v54", "v55"), ("v60", "v61")]
        for m in range(5, -1, -1):
            d = (SR, SI) if m == 0 else tmp[m & 1]
            o += cfma_ops(d[0], d[1], L16R, L16I, cur[0], cur[1], er(m)[0], er(m)[1])
            cur = d
        o.append(publish)
        return o

    def coef_ops():
        o = []
        for r in range(16):
            t = "v%d" % (48 + (r & 3))
            o.append("v_mul_f32 %s, %s, %s" % (t, CI, v(RE + r)))
            o.append("v_mul_f32 %s, %s, %s" % (v(RE + r), CR, v(RE + r)))
            o.append("v_fma_f32 %s, -%s, %s, %s" % (v(RE + r), CI, v(IM + r), v(RE + r)))
            o.append("v_fma_f32 %s, %s, %s, %s" % (v(IM + r), CR, v(IM + r), t))
        return o

    def e_issue():
        for m in range(8):
            A.e("buffer_load_dwordx4 %s, %s, %s, 0 offen offset:%d sc1" % (a(4 * m, 4), "v61" if m >= 4 else "v60", s(rE, 4), 1024 * (m & 3)))

    def e_loads():
        A.e("s_sub_u32 s6, 16, s4")
        A.e("s_lshl_b32 s6, s6, 9")
        A.e("v_lshlrev_b32 v60, 4, v8")
        A.e("v_lshl_add_u32 v60, v9, 9, v60")
        A.e("v_add_u32 v60, s6, v60")
        A.e("v_add_u32 v61, 4096, v60")
        e_issue()
        A.vm = []
        A.e("v_sub_u32 v62, s4, v9")
        A.e("v_add_u32 v62, 1, v62")
        A.e("v_and_b32 v62, -2, v62")
        if PAR["pf"]:
            A.c("pull this XCD's share of C_re / C_im into L2 for the second launch")
            A.e("s_and_b32 s13, s2, 1")
            A.e("s_lshl_b32 s13, s13, 18")
            A.e("s_lshr_b32 s6, s2, 3")
            A.e("s_lshl_b32 s6, s6, 13")
            A.e("s_add_u32 s13, s13, s6")
            A.e("s_lshl_b32 s6, s7, 11")
            A.e("s_add_u32 s13, s13, s6")
            A.e("v_lshlrev_b32 v63, 7, v1")
            A.e("s_mov_b64 exec, 0xffff")
            A.vmi("x", "buffer_load_dword v52, v63, %s, s13 offen" % s(rBRE, 4))
            A.vmi("x", "buffer_load_dword v53, v63, %s, s13 offen" % s(rBIM, 4))
            A.e("s_mov_b64 exec, -1")

    def e_check(nyoung):
        A.e("s_mov_b32 s13, 0")
        A.e("s_waitcnt vmcnt(%d)" % nyoung)
        A.lab("L_k1_S_poll" + X)
        A.e("v_mov_b32 v63, 0")
        for m in range(8):
            A.e("v_accvgpr_read_b32 %s, %s" % (v(24 + m), a(4 * m + 1)))
            A.e("v_accvgpr_read_b32 %s, %s" % (v(32 + m), a(4 * m + 3)))
        for g0 in range(0, 16, 4):
            for q in range(4):
                A.e("v_cmp_eq_u32 s[%d:%d], s14, %s" % (16 + 2 * q, 17 + 2 * q, v(24 + g0 + q)))
            for q in range(4):
                A.e("v_addc_co_u32 v63, vcc, 0, v63, s[%d:%d]" % (16 + 2 * q, 17 + 2 * q))
        A.e("v_cmp_ne_u32 vcc, v62, v63")
        A.e("s_cbranch_vccz L_k1_S_ready" + X)
        A.e("s_sleep 1")
        e_issue()
        A.e("s_add_u32 s13, s13, 1")
        A.e("s_cmp_lt_u32 s13, 0x20000")
        A.e("s_waitcnt vmcnt(0)")
        A.e("s_cbranch_scc1 L_k1_S_poll" + X)
        A.lab("L_k1_S_ready" + X)
        for m in range(8):
            A.e("v_accvgpr_read_b32 %s, %s" % (v(24 + 2 * m), a(4 * m)))
            A.e("v_accvgpr_read_b32 %s, %s" % (v(25 + 2 * m), a(4 * m + 2)))
        A.e("s_lshl_b32 s6, s7, 4")
        A.e("s_add_u32 s6, s6, s4")
        A.e("s_cmp_lg_u32 s6, 15")
        A.e("s_cbranch_scc1 L_k1_S_noep" + X)
        A.e("v_mov_b32 v62, s14")
        A.e("v_mov_b32 v63, 0")
        A.e("s_mov_b64 exec, 1")
        A.e("buffer_store_dword v62, v63, %s, 0 offen sc1" % s(rEP, 4))
        A.e("s_mov_b64 exec, -1")
        A.lab("L_k1_S_noep" + X)

    def carry_and_scan():
        e2 = lambda m: (v(24 + 2 * m), v(25 + 2 * m))
        cur = e2(7)
        tmp = [("v60", "v61"), ("v40", "v41")]
        for m in range(6, -1, -1):
            d = tmp[m & 1]
            cfma(A, d[0], d[1], L256R, L256I, cur[0], cur[1], e2(m)[0], e2(m)[1])
            cur = d
        A.e("v_mov_b32 v40, v60")
        A.e("v_mov_b32 v41, v61")
        A.e("s_nop 1")
        A.e("v_permlane32_swap_b32 v60, v40")
        A.e("v_permlane32_swap_b32 v61, v41")
        A.e("s_nop 1")
        cfma(A, "v48", "v49", L128R, L128I, "v40", "v41", "v60", "v61")
        cfma(A, "v50", "v51", PR, PI, "v48", "v49", SR, SI)
        A.e("v_mul_f32 v48, %s, v50" % CR)
        A.e("v_mul_f32 v49, %s, v51" % CR)
        A.e("v_fma_f32 v48, -%s, v51, v48" % CI)
        A.e("v_fmac_f32 v49, %s, v50" % CI)
        cur = ("v48", "v49")
        for r in range(16):
            A.e("v_fmac_f32 %s, %s, %s" % (v(RE + r), LR, cur[0]))
            A.e("v_fmac_f32 %s, %s, %s" % (v(IM + r), LR, cur[1]))
            A.e("v_fmac_f32 %s, %s, %s" % (v(RE + r), NLI, cur[1]))
            A.e("v_fmac_f32 %s, %s, %s" % (v(IM + r), LI, cur[0]))
            cur = (v(RE + r), v(IM + r))
        for q in range(8):
            A.e("v_cvt_pk_bf16_f32 %s, %s, %s" % (v(32 + q), v(RE + 2 * q), v(RE + 2 * q + 1)))
        for q in range(8):
            A.e("v_cvt_pk_bf16_f32 %s, -%s, -%s" % (v(40 + q), v(IM + 2 * q), v(IM + 2 * q + 1)))
        A.e("ds_write_b128 v54, v[32:35]")
        A.e("ds_write_b128 v54, v[36:39] offset:16")
        A.e("ds_write_b128 v54, v[40:43] offset:2048")
        A.e("ds_write_b128 v54, v[44:47] offset:2064")
        A.e("s_lshl_b32 s6, s5, 11")
        A.e("s_add_u32 s6, s6, s81")
        A.e("s_add_u32 s13, s6, 32768")
        A.e("s_waitcnt lgkmcnt(0)")
        for ks in range(4):
            for nn in range(2):
                A.e("ds_read_b64_tr_b16 %s, v55 offset:%d" % (v(64 + 4 * ks + 2 * nn, 2), ks * 1024 + nn * 256))
        for ks in range(4):
            A.e("s_waitcnt lgkmcnt(%d)" % (6 - 2 * ks))
            A.e("buffer_store_dwordx4 %s, v6, %s, s%d offen offset:%d%s" % (v(64 + 4 * ks, 4), s(rAS, 4), 13 if ks >= 2 else 6, 1024 * (ks & 1), stmod()))

    def tr_addr_ops():
        base = 4 * SLOT
        return ["v_lshlrev_b32 v54, 6, v8", "v_lshl_add_u32 v54, v9, 5, v54", "v_add_u32 v54, s8, v54", "v_add_u32 v54, %d, v54" % base,
                "v_bfe_u32 v55, v1, 2, 2", "v_lshlrev_b32 v55, 6, v55", "v_lshl_add_u32 v55, v9, 9, v55",
                "v_and_b32 v50, 1, v1", "v_lshl_add_u32 v55, v50, 5, v55", "v_bfe_u32 v50, v1, 4, 1", "v_lshl_add_u32 v55, v50, 4, v55",
                "v_bfe_u32 v50, v1, 1, 1", "v_lshl_add_u32 v55, v50, 3, v55", "v_add_u32 v55, s8, v55", "v_add_u32 v55, %d, v55" % base]

    def pre(b):
        kind, c = ORD[b]
        slot = (b % NSLOT) * SLOT
        if b == lastP + 2:
            S.flush()
            A.lgw("ew")
        if b == 17 - NT:
            S.flush()
        if kind == "P":
            A.e("v_add_u32 v28, %d, v7" % slot)
            A.e("v_xor_b32 v29, 32, v28")
            A.e("v_xor_b32 v30, 64, v28")
            A.e("v_xor_b32 v31, 0x60, v28")
            for q in range(4):
                A.e("v_add_u32 %s, s8, %s" % (v(24 + q), v(28 + q)))
        else:
            A.e("v_add_u32 v%d, %d, v12" % (waddr(b)[0], slot))
            A.e("v_add_u32 v%d, %d, v13" % (waddr(b)[1], slot))

    def post(b):
        if b == lastP + 1:
            A.stamp(2)
        if b == lastP + 2:
            for m in range(7):
                A.lgi("er", "ds_read_b64 v[%s:%s], v4 offset:%d" % (er(m)[0][1:], er(m)[1][1:], 256 * (m + 1)))
            S.fill += prefix_ops() + coef_ops() + tr_addr_ops()
        if b == PAR["estep"]:
            S.fill.append(e_loads)

    def read(it, sl, tag):
        n, ss, ti = it
        kind, c = ORD[n]
        if kind == "P":
            if ti == 0:
                A.lgi(tag, "ds_read_b128 %s, %s" % (a(16 * c + 4 * ss, 4), v(24 + ss)))
            A.lgi(tag, "ds_read_b128 %s, %s offset:%d" % (v(FB + 4 * sl, 4), v(28 + ss), 16384 + 4096 * ti))
        else:
            T = tiles[ti]
            for nn in range(2):
                A.lgi(tag, "ds_read_b64_tr_b16 %s, v%d offset:%d" % (v(FB + 4 * sl + 2 * nn, 2), waddr(n)[T & 1],
                                                                    ss * 6144 + (T >> 1) * 1024 + nn * 256))

    def mfma(it, sl):
        n, ss, ti = it
        kind, c = ORD[n]
        first = (c == 0 and ss == 0)
        if kind == "P":
            d = (RE, IM)[ti]
            A.e("v_mfma_f32_32x32x16_bf16 %s, %s, %s, %s" % (v(d, 16), a(16 * c + 4 * ss, 4), v(FB + 4 * sl, 4), "0" if first else v(d, 16)))
        else:
            d = ACC + 16 * ti
            A.e("v_mfma_f32_32x32x16_bf16 %s, %s, %s, %s" % (v(d, 16), v(FB + 4 * sl, 4), a(16 * c + 4 * ss, 4), "0" if first else v(d, 16)))

    nst = [0]
    def after(it, mp):
        n, ss, ti = it
        if n == lastP and ss == 3 and ti == 1:
            S.fill.append(("dist", S.ninstr()))
            S.fill += endstate_ops()
        if n == 15 and ss == 3:
            S.fill.append(("dist", S.ninstr()))
            S.fill += swiglu_ops(ACC + 16 * ti, 1024 * ti)

    S.pre, S.post, S.read, S.mfma, S.after = pre, post, read, mfma, after
    S.run()
    A.stamp(3)
    S.flush()
    A.stamp(4)
    e_check(len(A.vm) + 2)
    A.stamp(5)
    carry_and_scan()
    A.stamp_end(0, sWS, 8, 6)
    A.e("s_endpgm")


def gen_k1(A):
    A.L.append(".globl k1_kernel\n.p2align 8\n.type k1_kernel,@function\nk1_kernel:")
    k1_prologue(A)
    vm0 = k1_F_prologue(A)
    k1_S_prologue(A)
    k1_F(A, mkord(PAR["ord"]), "a", vm0)
    k1_S(A, mkord(PAR["ord"]), "a")
    k1_F(A, mkord(PAR["ord2"]), "b", vm0)
    k1_S(A, mkord(PAR["ord2"]), "b")
    A.lab("L_k1_end")
    A.e("s_endpgm")


K2_SLOT = 16384
K2_NSLOT = 6
K2_LDS = K2_SLOT * K2_NSLOT
K2_ORD = [("W", c) for c in range(22)] + [("C", c) for c in range(16)]


def gen_k2(A):
    A.vm, A.lg = [], []
    A.L.append(".globl k2_kernel\n.p2align 8\n.type k2_kernel,@function\nk2_kernel:")
    rA, rC, rW2, rXs, rO, rGs = 44, 48, 56, 60, 64, 68
    ACCB, ACCA = 32, 48
    FBUF = (64, 96)
    GV = 128
    XV = 160
    N = len(K2_ORD)
    LA = PAR["k2la"]
    assert LA < K2_NSLOT
    A.e("s_cmp_ge_u32 s2, 256")
    A.e("s_cbranch_scc1 L_k2_end")
    A.stamp_begin()
    A.e("s_load_dwordx2 s[16:17], s[0:1], 0")
    A.e("s_load_dwordx4 s[20:23], s[0:1], 40")
    A.e("s_load_dwordx2 s[24:25], s[0:1], 64")
    A.e("s_load_dwordx2 s[26:27], s[0:1], 96")
    A.e("s_load_dwordx2 s[28:29], s[0:1], 112")
    A.e("s_load_dwordx2 s[30:31], s[0:1], 128")
    A.e("v_lshrrev_b32 v2, 6, v0")
    A.e("v_and_b32 v1, 63, v0")
    A.e("v_readfirstlane_b32 s3, v2")
    A.e("s_bfe_u32 s4, s2, 0x20001")
    A.e("s_lshl_b32 s4, s4, 3")
    A.e("s_bfe_u32 s6, s2, 0x30003")
    A.e("s_add_u32 s4, s4, s6")
    A.e("s_and_b32 s32, s2, 1")
    A.e("s_lshl_b32 s5, s32, 2")
    A.e("s_lshr_b32 s33, s2, 6")
    A.e("s_add_u32 s5, s5, s33")
    A.e("s_and_b32 s7, s3, 1")
    A.e("s_bfe_u32 s8, s3, 0x10001")
    A.e("v_lshlrev_b32 v6, 4, v1")
    A.e("s_cmp_lt_u32 s3, 4")
    A.e("s_cbranch_scc1 L_k2_compute")

    A.e("s_and_b32 s34, s3, 3")
    A.e("s_lshl_b32 s9, s8, 11")
    A.e("v_add_u32 v2, s9, v6")
    A.e("s_lshl_b32 s6, s7, 12")
    A.e("s_add_u32 s9, s9, s6")
    A.e("s_lshl_b32 s10, s34, 11")
    A.e("v_bfe_u32 v10, v1, 4, 1")
    A.e("v_lshlrev_b32 v10, 2, v10")
    A.e("v_and_b32 v11, 7, v1")
    A.e("v_xor_b32 v10, v10, v11")
    A.e("v_lshlrev_b32 v10, 4, v10")
    A.e("v_lshrrev_b32 v12, 3, v1")
    A.e("v_lshl_add_u32 v3, v12, 10, v10")
    A.e("s_lshl_b32 s6, s34, 14")
    A.e("s_lshl_b32 s11, s5, 7")
    A.e("s_add_u32 s11, s11, s6")
    A.e("v_add_u32 v3, s11, v3")
    A.e("v_add_u32 v7, 8192, v3")
    A.e("v_lshrrev_b32 v10, 4, v1")
    A.e("v_xor_b32 v10, v10, v11")
    A.e("v_lshlrev_b32 v10, 4, v10")
    A.e("v_lshl_add_u32 v4, v12, 10, v10")
    A.e("s_lshl_b32 s11, s5, 16")
    A.e("s_add_u32 s11, s11, s6")
    A.e("v_add_u32 v4, s11, v4")
    A.e("v_xor_b32 v5, 64, v4")
    A.e("v_add_u32 v5, 8192, v5")
    if PAR["k2rot"]:
        A.e("s_mul_i32 s35, s33, 5")
        A.e("s_lshr_b32 s35, s35, 1")
        A.e("s_add_u32 s35, s35, 12")
        A.e("s_mul_i32 s6, s33, 3")
        A.e("s_cmp_eq_u32 s32, 0")
        A.e("s_cselect_b32 s35, s35, s6")
        A.e("s_lshl_b32 s36, s33, 1")
    else:
        A.e("s_mov_b32 s35, 0")
        A.e("s_mov_b32 s36, 0")
    A.e("s_lshl_b32 s37, s32, 2")
    A.e("s_xor_b32 s38, s37, 4")
    A.e("s_waitcnt lgkmcnt(0)")
    A.e("s_lshl_b32 s6, s4, 1")
    A.e("s_add_u32 s6, s6, s7")
    A.e("s_mul_i32 s6, s6, %d" % (NKS * 1024))
    srd(A, rA, 30, NKS * 1024, "s6")
    srd(A, rW2, 26, 1376 * 1024)
    srd(A, rC, 20, 524288)

    def dma(n):
        kind, c = K2_ORD[n]
        slot = (n % K2_NSLOT) * K2_SLOT
        tag = "ch%d" % n
        if kind == "W":
            A.e("s_lshl_b32 s12, s35, 12")
            A.e("s_add_u32 s12, s12, 65536")
            A.e("s_lshl_b32 s13, s35, 16")
            A.e("s_add_u32 s35, s35, 1")
            A.e("s_cmp_eq_u32 s35, 22")
            A.e("s_cselect_b32 s35, 0, s35")
        else:
            A.e("s_add_u32 s6, s36, %d" % (c & 7))
            A.e("s_and_b32 s13, s6, 3")
            A.e("s_add_u32 s13, s13, s%d" % (38 if c < 8 else 37))
            A.e("s_lshl_b32 s12, s13, 12")
            A.e("s_lshl_b32 s13, s13, 7")
            A.e("s_and_b32 s6, s6, 4")
            A.e("s_cselect_b64 s[%d:%d], s[22:23], s[20:21]" % (rC, rC + 1))
            A.e("s_lshl_b32 s6, s6, 13")
            A.e("s_add_u32 s12, s12, s6")
        A.e("s_add_u32 m0, s9, %d" % slot)
        A.e("s_nop 0")
        A.vmi(tag, "buffer_load_dwordx4 v2, %s, s12 offen lds" % s(rA, 4))
        A.vmi(tag, "buffer_load_dwordx4 v2, %s, s12 offen offset:1024 lds" % s(rA, 4))
        r_, va, vb = (rW2, "v3", "v7") if kind == "W" else (rC, "v4", "v5")
        A.e("s_add_u32 m0, s10, %d" % (slot + 8192))
        A.e("s_nop 0")
        A.vmi(tag, "buffer_load_dwordx4 %s, %s, s13 offen lds" % (va, s(r_, 4)))
        A.e("s_add_u32 m0, s10, %d" % (slot + 8192 + 1024))
        A.e("s_nop 0")
        A.vmi(tag, "buffer_load_dwordx4 %s, %s, s13 offen lds" % (vb, s(r_, 4)))

    for n in range(LA):
        dma(n)
    for n in range(N):
        A.vmw("ch%d" % n)
        A.e("s_barrier")
        A.fs(n, 23)
        if n in (0, 10, 20, 30):
            A.stamp(1 + n // 10)
        if n + LA < N:
            dma(n + LA)
    A.stamp(5)
    A.stamp_end(1, 30, 8, 6)
    A.fs_end(1, 30, 8, 23)
    A.e("s_endpgm")

    A.lab("L_k2_compute")
    A.vm, A.lg = [], []
    A.e("v_and_b32 v8, 31, v1")
    A.e("v_lshrrev_b32 v9, 5, v1")
    A.e("s_lshl_b32 s14, s4, 6")
    A.e("s_lshl_b32 s6, s7, 5")
    A.e("s_add_u32 s14, s14, s6")
    A.e("s_lshl_b32 s15, s5, 6")
    A.e("s_lshl_b32 s6, s8, 5")
    A.e("s_add_u32 s15, s15, s6")
    A.e("v_lshlrev_b32 v20, 4, v9")
    A.e("v_add_u32 v20, s14, v20")
    A.e("v_add_u32 v21, s15, v8")
    A.e("v_lshlrev_b32 v22, 3, v20")
    A.e("v_lshlrev_b32 v23, 1, v21")
    A.e("v_lshl_add_u32 v24, v20, 10, v23")
    A.e("v_lshlrev_b32 v25, 1, v24")
    A.e("v_add_u32 v26, 4096, v24")
    A.e("v_add_u32 v27, 8192, v24")
    A.e("v_add_u32 v28, 12288, v24")
    A.e("s_waitcnt lgkmcnt(0)")
    srd(A, rXs, 16, 2048 * 1024)
    srd(A, rGs, 30, 16384, "0x%x" % G_OFF)
    srd(A, rO, 28, 2048 * 2048)
    for q in range(8):
        A.vmi("small", "buffer_load_dwordx4 %s, v22, %s, 0 offen offset:%d" % (v(GV + 4 * q, 4), s(rGs, 4), 16 * q))
    for r in range(16):
        A.vmi("small", "buffer_load_ushort %s, %s, %s, 0 offen offset:%d" % (v(XV + r), ("v24", "v26", "v27", "v28")[r >> 2], s(rXs, 4), 1024 * (r & 3)))
    A.vmi("small", "global_load_ushort v29, v23, s[24:25]")
    A.e("s_lshl_b32 s6, s7, 12")
    A.e("v_add_u32 v7, s6, v6")
    A.e("v_bfe_u32 v10, v1, 1, 3")
    A.e("v_xor_b32 v10, v10, v9")
    A.e("v_lshlrev_b32 v10, 4, v10")
    A.e("v_lshl_add_u32 v12, v8, 7, v10")
    A.e("s_lshl_b32 s6, s8, 12")
    A.e("s_add_u32 s6, s6, 8192")
    A.e("v_add_u32 v12, s6, v12")
    A.e("v_bfe_u32 v10, v1, 2, 2")
    A.e("v_lshlrev_b32 v13, 7, v10")
    A.e("v_lshl_add_u32 v13, v9, 9, v13")
    A.e("v_bfe_u32 v10, v1, 4, 1")
    A.e("v_lshl_add_u32 v13, v10, 5, v13")
    A.e("v_and_b32 v10, 3, v1")
    A.e("v_lshl_add_u32 v13, v10, 3, v13")
    A.e("v_bfe_u32 v10, v1, 3, 1")
    A.e("v_xor_b32 v10, s8, v10")
    A.e("v_lshl_add_u32 v13, v10, 6, v13")
    A.e("v_add_u32 v13, 8192, v13")

    def addr(n):
        kind, c = K2_ORD[n]
        slot = (n % K2_NSLOT) * K2_SLOT
        A.e("v_add_u32 v14, %d, v7" % slot)
        if kind == "W":
            A.e("v_add_u32 v15, %d, v13" % slot)
        else:
            A.e("v_add_u32 v15, %d, v12" % slot)
            A.e("v_xor_b32 v16, 32, v15")
            A.e("v_xor_b32 v17, 64, v15")
            A.e("v_xor_b32 v18, 0x60, v15")

    def reads(n, ss):
        kind, c = K2_ORD[n]
        fb = FBUF[n & 1]
        A.lgi("r", "ds_read_b128 %s, v14 offset:%d" % (v(fb + 4 * ss, 4), 1024 * ss))
        if kind == "W":
            for nn in range(2):
                A.lgi("r", "ds_read_b64_tr_b16 %s, v15 offset:%d" % (v(fb + 16 + 4 * ss + 2 * nn, 2), 2048 * ss + 1024 * nn))
        else:
            A.lgi("r", "ds_read_b128 %s, %s" % (v(fb + 16 + 4 * ss, 4), v(15 + ss)))

    def mfma(n, ss):
        kind, c = K2_ORD[n]
        fb = FBUF[n & 1]
        acc = ACCB if kind == "W" else ACCA
        first = (c == 0 and ss == 0)
        A.e("v_mfma_f32_32x32x16_bf16 %s, %s, %s, %s" % (v(acc, 16), v(fb + 4 * ss, 4), v(fb + 16 + 4 * ss, 4),
                                                        "0" if first else v(acc, 16)))

    def mid(q):
        if q == 0:
            A.c("fold the FFN branch and the skip term: accB = bf16(omg*bf16(b)), XV = bf16(x*D)")
            A.vmw("small")
            A.e("v_lshlrev_b32 v29, 16, v29")
        r0, r1 = 2 * q, 2 * q + 1
        A.e("v_cvt_pk_bf16_f32 v30, %s, %s" % (v(ACCB + r0), v(ACCB + r1)))
        A.e("v_lshlrev_b32 %s, 16, %s" % (v(XV + r0), v(XV + r0)))
        A.e("v_lshlrev_b32 %s, 16, %s" % (v(XV + r1), v(XV + r1)))
        A.e("v_lshlrev_b32 v31, 16, v30")
        A.e("v_and_b32 v30, 0xffff0000, v30")
        A.e("v_mul_f32 %s, %s, v29" % (v(XV + r0), v(XV + r0)))
        A.e("v_mul_f32 %s, %s, v29" % (v(XV + r1), v(XV + r1)))
        A.e("v_mul_f32 v31, %s, v31" % v(GV + 2 * r0 + 1))
        A.e("v_mul_f32 v30, %s, v30" % v(GV + 2 * r1 + 1))
        A.e("v_cvt_pk_bf16_f32 %s, %s, %s" % (v(XV + r0), v(XV + r0), v(XV + r1)))
        A.e("v_cvt_pk_bf16_f32 v30, v31, v30")
        A.e("v_and_b32 %s, 0xffff0000, %s" % (v(XV + r1), v(XV + r0)))
        A.e("v_lshlrev_b32 %s, 16, %s" % (v(XV + r0), v(XV + r0)))
        A.e("v_lshlrev_b32 %s, 16, v30" % v(ACCB + r0))
        A.e("v_and_b32 %s, 0xffff0000, v30" % v(ACCB + r1))

    for n in range(N):
        addr(n)
        A.lgw0()
        A.e("s_barrier")
        if n in (0, 10, 20, 30):
            A.stamp(1 + n // 10)
        for ss in range(4):
            if n >= 1 and ss > 0:
                mfma(n - 1, ss - 1)
            reads(n, ss)
        if n >= 1:
            mfma(n - 1, 3)
        if 24 <= n < 32:
            mid(n - 24)
    A.lgw0()
    for ss in range(4):
        mfma(N - 1, ss)
    A.stamp(5)
    A.e("s_nop 7")
    A.e("s_nop 3")
    for r in range(16):
        A.e("v_add_f32 %s, %s, %s" % (v(ACCA + r), v(ACCA + r), v(XV + r)))
    for r in range(16):
        A.e("v_fmac_f32 %s, %s, %s" % (v(ACCB + r), v(GV + 2 * r), v(ACCA + r)))
        A.e("s_movk_i32 s6, %d" % (4096 * (r >> 1)))
        A.e("buffer_store_dword %s, v25, %s, s6 offen offset:%d%s" % (v(ACCB + r), s(rO, 4), 2048 * (r & 1), stmod("o")))
    A.stamp_end(1, 30, 8, 6)
    A.lab("L_k2_end")
    A.e("s_endpgm")


def kd(name, nv, acc, ns=102):
    return """.amdhsa_kernel %s
  .amdhsa_next_free_vgpr %d
  .amdhsa_next_free_sgpr %d
  .amdhsa_accum_offset %d
  .amdhsa_group_segment_fixed_size 0
  .amdhsa_kernarg_size 136
  .amdhsa_user_sgpr_count 2
  .amdhsa_user_sgpr_kernarg_segment_ptr 1
  .amdhsa_system_sgpr_workgroup_id_x 1
.end_amdhsa_kernel
""" % (name, nv, ns, acc)


def main(path):
    ref = open("cdna_kernels/%s.s.ref" % NAME).read().splitlines()
    head = [l for l in ref if l.startswith(";") and "@launch" not in l and "Override launch" not in l and "grid=ceil" not in l]
    head = head[:18]
    A = Asm()
    gen_k1(A)
    gen_k2(A)
    A.lab("L_code_end")
    out = head + [
        "; @launch kernel=k1_kernel grid=(256,1,1) block=(512,1,1) lds=%d" % K1_LDS,
        "; @launch kernel=k2_kernel grid=(256,1,1) block=(512,1,1) lds=%d" % K2_LDS,
        '.amdgcn_target "amdgcn-amd-amdhsa--gfx950"', ".text"] + A.L + [
        '.section .rodata,"a"', ".p2align 6", kd("k1_kernel", 256, 128), ".p2align 6", kd("k2_kernel", 176, 176)]
    open(path, "w").write("\n".join(out))


if __name__ == "__main__":
    if "--stamp" in sys.argv:
        STAMP = True
        sys.argv.remove("--stamp")
    for x in list(sys.argv):
        if x.startswith("-O"):
            OPT.add(x[2:]); sys.argv.remove(x)
        elif x.startswith("-P"):
            kk, vv = x[2:].split("=")
            PAR[kk] = vv if kk.startswith("ord") else int(vv)
            sys.argv.remove(x)
    main(sys.argv[1] if len(sys.argv) > 1 else "cdna_kernels/%s.s" % NAME)
```

```python
import sys, struct

NAME = "gated_mix__ssm_conv_s5__glu_gated_swiglu__prompt"

def f2u(x):
    return struct.unpack("<I", struct.pack("<f", x))[0]

LOG2E = 1.4426950408889634
INV2PI = 0.15915494309189535

NKS = 150
A_BYTES = 64 * NKS * 1024
E_OFF = 0xA00000
G_OFF = 0xA20000
EP_OFF = 0xA30000


EPR_OFF = 0xA31000
FL_OFF = 0xA32000

STAMP = False
OPT = {"asc0", "asc1"}
ST_OFF = 0xB00000

class Asm:
    def __init__(self):
        self.L = []
        self.vm = []
        self.lg = []

    def e(self, s):
        if "nomfma" in OPT and s.startswith("v_mfma"):
            s = "s_nop 0"
        if "nolds" in OPT and s.startswith("ds_read"):
            s = "s_nop 0"
        self.L.append("  " + s)

    def c(self, s):
        pass

    def lab(self, s):
        self.L.append(s + ":")

    def fs(self, n):
        if STAMP:
            self.e("%s s[98:99]" % ("s_memrealtime" if "rt" in OPT else "s_memtime"))
            self.e("s_waitcnt lgkmcnt(0)")
            self.lg = []
            self.e("s_sub_u32 s98, s98, s96")
            self.e("v_writelane_b32 v0, s98, %d" % n)

    def stamp_begin(self):
        if STAMP:
            self.e("s_memrealtime s[94:95]")
            self.e("%s s[96:97]" % ("s_memrealtime" if "rt" in OPT else "s_memtime"))

    def fs_end(self):
        if STAMP:
            self.e("s_waitcnt vmcnt(0)")
            self.fs(61)
            self.e("s_memrealtime s[98:99]")
            self.e("s_waitcnt lgkmcnt(0)")
            self.e("v_writelane_b32 v0, s94, 62")
            self.e("v_writelane_b32 v0, s98, 63")
            self.e("s_add_u32 s8, s%d, 0x%x" % (sWS, ST_OFF))
            self.e("s_addc_u32 s9, s%d, 0" % (sWS + 1))
            self.e("s_mov_b32 s10, 0x80000")
            self.e("s_mov_b32 s11, 0x20000")
            self.e("s_lshl_b32 s6, s2, 11")
            self.e("s_lshl_b32 s12, s3, 8")
            self.e("s_add_u32 s6, s6, s12")
            self.e("v_lshlrev_b32 v1, 2, v1")
            self.e("buffer_store_dword v0, v1, s[8:11], s6 offen")

    def vmi(self, tag, s, cold=False):
        if cold and "nt" in OPT:
            s = s.replace(" lds", " nt lds") if s.endswith(" lds") else s + " nt"
        self.e(s)
        self.vm.append(tag)
        assert len(self.vm) <= 63, "too many vmem ops in flight"

    def vmw(self, tag, extra=""):
        idx = [i for i, t in enumerate(self.vm) if t == tag]
        if not idx:
            return None
        n = len(self.vm) - 1 - idx[-1]
        self.vm = self.vm[idx[-1] + 1:]
        self.e("s_waitcnt vmcnt(%d)%s" % (n, extra))
        return n

    def lgi(self, tag, s):
        self.e(s)
        self.lg.append(tag)

    def lgw(self, tag):
        idx = [i for i, t in enumerate(self.lg) if t == tag]
        if not idx:
            return
        n = len(self.lg) - 1 - idx[-1]
        self.lg = self.lg[idx[-1] + 1:]
        self.e("s_waitcnt lgkmcnt(%d)" % min(n, 15))

    def lgw0(self):
        if self.lg:
            self.e("s_waitcnt lgkmcnt(0)")
        self.lg = []


def stmod(pre="a"):
    return "".join(" " + m for m in ("sc0", "sc1", "nt") if pre + m in OPT)

def v(a, n=1):
    return "v%d" % a if n == 1 else "v[%d:%d]" % (a, a + n - 1)

def a(a_, n=1):
    return "a%d" % a_ if n == 1 else "a[%d:%d]" % (a_, a_ + n - 1)

def s(a_, n=1):
    return "s%d" % a_ if n == 1 else "s[%d:%d]" % (a_, a_ + n - 1)


def srd(A, d, base, nbytes, addlo=None):
    if addlo is None:
        A.e("s_mov_b32 s%d, s%d" % (d, base))
        A.e("s_mov_b32 s%d, s%d" % (d + 1, base + 1))
    else:
        A.e("s_add_u32 s%d, s%d, %s" % (d, base, addlo))
        A.e("s_addc_u32 s%d, s%d, 0" % (d + 1, base + 1))
    A.e("s_mov_b32 s%d, 0x%x" % (d + 2, nbytes))
    A.e("s_mov_b32 s%d, 0x20000" % (d + 3))


SLOT = 24576
NSLOT = 6
MISC = SLOT * NSLOT
K1_LDS = 163840
OOB = 0x40000000

def mkord(sx):
    o, pc, fc = [], 0, 0
    for ch in sx:
        if ch == "P":
            o.append(("P", pc)); pc += 1
        else:
            assert fc < pc
            o.append(("F", fc)); fc += 1
    assert pc == 8 and fc == 8 and sx[:2] == "PP"
    return o
PAR = dict(ord="PPFFPPPPPPFFFFFF", ord2="PPPPPPPPFFFFFFFF", la=2, laf=4, dmagap=2, nt=3, estep=15, fd=5, sd=3,
           ffill=4, sfill=10, rot=1, pf=1, cpf=1, ala=4, wstart=1, pre1=5, pollat=3, urot=1)

sX, sLRE, sLIM, sBRE, sBIM, sLDT = 16, 18, 20, 22, 24, 30
sW1, sW3, sW2, sGW, sWS = 32, 34, 36, 38, 42
rX, rBRE, rBIM, rW1, rW3, rAS, rE, rEP, rG = 44, 48, 52, 56, 60, 64, 68, 72, 76


def swiglu_ops(acc, off):
    o = []
    for r in range(8):
        o.append("v_mul_f32 %s, %s, %s" % (v(acc + 8 + r), v(acc + r), v(acc + 8 + r)))
    for r in range(8):
        o.append("v_mul_f32 %s, s80, %s" % (v(acc + r), v(acc + r)))
    for r in range(8):
        o.append("v_exp_f32 %s, %s" % (v(acc + r), v(acc + r)))
    for r in range(8):
        o.append("v_add_f32 %s, 1.0, %s" % (v(acc + r), v(acc + r)))
    for r in range(8):
        o.append("v_rcp_f32 %s, %s" % (v(acc + r), v(acc + r)))
    for r in range(8):
        o.append("v_mul_f32 %s, %s, %s" % (v(acc + 8 + r), v(acc + 8 + r), v(acc + r)))
    for q in range(4):
        o.append("v_cvt_pk_bf16_f32 %s, %s, %s" % (v(acc + q), v(acc + 8 + 2 * q), v(acc + 9 + 2 * q)))
    o.append("buffer_store_dwordx4 %s, v6, %s, s82 offen offset:%d%s" % (v(acc, 4), s(rAS, 4), off, stmod()))
    return o


class Stream:
    def __init__(self, A, items, NB, D, K):
        self.A, self.items, self.NB, self.D, self.K = A, items, NB, D, K
        self.nb = 0
        self.rp = 0
        self.fill = []
        self.hold = 0

    def ninstr(self):
        return len(self.A.L)

    def pop(self, k):
        while k > 0 and self.fill:
            f = self.fill[0]
            if isinstance(f, tuple):
                if self.ninstr() - f[1] < 14:
                    return
                self.fill.pop(0)
                continue
            self.fill.pop(0)
            if isinstance(f, str):
                self.A.e(f)
            else:
                f()
            k -= 1

    def flush(self):
        while self.fill:
            f = self.fill[0]
            if isinstance(f, tuple):
                d = 14 - (self.ninstr() - f[1])
                if d > 0:
                    self.A.e("s_nop %d" % (d - 1))
                self.fill.pop(0)
                continue
            self.pop(1)

    def barrier(self, n):
        while self.nb <= n:
            b = self.nb
            self.pre(b)
            old = [t for t in self.A.lg if t[0] == "c" and int(t[1:].split("_")[0]) <= b - 2]
            if old:
                self.A.lgw(old[-1])
            self.A.e("s_barrier")
            self.nb += 1
            self.post(b)

    def reads(self, upto, force):
        while self.rp < min(upto, len(self.items)):
            it = self.items[self.rp]
            if not force and it[0] > self.nb:
                return
            self.barrier(it[0])
            self.read(it, self.rp % self.NB, "c%d_%d" % (it[0], self.rp))
            self.rp += 1

    def run(self):
        for mp, it in enumerate(self.items):
            if self.rp <= mp:
                self.reads(mp + 1, True)
                self.reads(mp + 1 + self.D, False)
            self.A.lgw("c%d_%d" % (it[0], mp))
            self.mfma(it, mp % self.NB)
            self.after(it, mp)
            self.reads(min(mp + 1 + self.D, self.rp + 2), False)
            self.pop(self.K)
        self.barrier(15)


def mk_items(ORD, ntile, withP):
    NT = PAR["nt"]
    items = []
    for n in range(16 - NT):
        if ORD[n][0] == "P" and not withP:
            continue
        for ss in range(4):
            for ti in range(ntile):
                items.append((n, ss, ti))
    for t0 in range(0, ntile, 2):
        for n in range(16 - NT, 16):
            assert ORD[n][0] == "F"
            for ss in range(4):
                for ti in (t0, t0 + 1):
                    items.append((n, ss, ti))
    return items


def k1_prologue(A):
    A.e("s_cmp_ge_u32 s2, 256")
    A.e("s_cbranch_scc1 L_k1_end")
    A.stamp_begin()
    A.e("s_load_dwordx16 s[16:31], s[0:1], 0")
    A.e("s_load_dwordx8 s[32:39], s[0:1], 80")
    A.e("s_load_dwordx2 s[42:43], s[0:1], 128")
    A.e("s_load_dwordx2 s[40:41], s[0:1], 64")
    A.e("s_load_dwordx2 s[84:85], s[0:1], 112")
    A.e("v_lshrrev_b32 v2, 6, v0")
    A.e("v_and_b32 v1, 63, v0")
    A.e("v_readfirstlane_b32 s3, v2")
    A.e("s_bfe_u32 s4, s2, 0x20001")
    A.e("s_lshl_b32 s4, s4, 2")
    A.e("s_bfe_u32 s6, s2, 0x20003")
    A.e("s_add_u32 s4, s4, s6")
    A.e("s_and_b32 s5, s2, 1")
    A.e("s_lshl_b32 s5, s5, 3")
    A.e("s_lshr_b32 s6, s2, 5")
    A.e("s_add_u32 s5, s5, s6")
    A.e("s_and_b32 s7, s3, 3")
    A.e("v_and_b32 v8, 31, v1")
    A.e("v_lshrrev_b32 v9, 5, v1")
    A.e("s_lshl_b32 s8, s7, 12")
    A.e("s_cmp_lt_u32 s3, 4")
    A.e("s_cbranch_scc1 L_k1_Spro")


def k1_common_late(A):
    A.e("s_mov_b32 s80, 0x%x" % f2u(-LOG2E))
    A.e("v_bfe_u32 v10, v1, 1, 3")
    A.e("v_xor_b32 v10, v10, v9")
    A.e("v_lshlrev_b32 v10, 4, v10")
    A.e("v_lshl_add_u32 v7, v8, 7, v10")
    A.e("v_bfe_u32 v10, v1, 4, 1")
    A.e("v_mul_u32_u24 v12, 3104, v10")
    A.e("v_lshlrev_b32 v11, 9, v9")
    A.e("v_add_u32 v12, v12, v11")
    A.e("v_bfe_u32 v11, v1, 2, 2")
    A.e("v_lshl_add_u32 v12, v11, 6, v12")
    A.e("v_and_b32 v11, 3, v1")
    A.e("v_lshl_add_u32 v12, v11, 3, v12")
    A.e("v_xor_b32 v13, 32, v12")
    A.e("v_lshlrev_b32 v6, 4, v1")
    A.e("s_lshl_b32 s6, s4, 2")
    A.e("s_add_u32 s6, s6, s7")
    A.e("s_mul_i32 s81, s6, %d" % (NKS * 1024))
    A.e("s_mul_i32 s6, s5, 6144")
    A.e("s_add_u32 s82, s81, s6")
    srd(A, rAS, sWS, A_BYTES)


def dma_ops(A, ORD, n):
    kind, c = ORD[n]
    slot = (n % NSLOT) * SLOT
    tag = "ch%d" % n
    ops = []
    def mk(pre, m0, ins):
        def f():
            for x in pre:
                A.e(x)
            A.e(m0)
            A.e("s_nop 0")
            A.vmi(tag, ins)
        return f
    if kind == "P":
        pre = ["s_add_u32 s11, s83, %d" % c, "s_and_b32 s11, s11, 7", "s_lshl_b32 s11, s11, 7", "s_add_u32 s12, s11, 8192"]
        for q in range(4):
            ops.append(mk(pre if q == 0 else [], "s_add_u32 m0, s8, %d" % (slot + 1024 * q),
                          "buffer_load_dwordx4 %s, %s, s%d offen lds" % ("v3" if q & 1 else "v2", s(rX, 4), 12 if q >= 2 else 11)))
        ops.append(mk([], "s_add_u32 m0, s9, %d" % (slot + 16384), "buffer_load_dwordx4 v4, %s, s11 offen lds" % s(rBRE, 4)))
        ops.append(mk([], "s_add_u32 m0, s9, %d" % (slot + 20480), "buffer_load_dwordx4 v4, %s, s11 offen lds" % s(rBIM, 4)))
    else:
        pre = ["s_add_u32 s11, s83, %d" % c, "s_and_b32 s11, s11, 7", "s_mul_i32 s11, s11, 176128",
               "s_add_u32 s12, s11, s15", "s_add_u32 s11, s11, s14"]
        for m in range(2):
            for q in range(3):
                ops.append(mk(pre if m == 0 and q == 0 else [], "s_add_u32 m0, s10, %d" % (slot + m * 3072 + 1024 * q - 64 * q),
                              "buffer_load_dwordx4 %s, %s, s%d offen offset:%d lds" % ("v16" if m else "v5", s(rW3 if m else rW1, 4), 12 if q else 11, 64 * q)))
    return ops


def k1_F_prologue(A):
    A.vm, A.lg = [], []
    if PAR["rot"]:
        A.e("s_lshl_b32 s83, s4, 1")
        A.e("s_add_u32 s83, s83, s5")
    else:
        A.e("s_mov_b32 s83, 0")
    A.e("v_lshrrev_b32 v10, 4, v1")
    A.e("v_and_b32 v11, 7, v1")
    A.e("v_xor_b32 v10, v10, v11")
    A.e("v_lshlrev_b32 v10, 4, v10")
    A.e("v_bfe_u32 v11, v1, 3, 2")
    A.e("v_lshl_add_u32 v2, v11, 10, v10")
    A.e("v_lshl_add_u32 v2, v9, 14, v2")
    A.e("s_lshl_b32 s6, s7, 15")
    A.e("v_add_u32 v2, s6, v2")
    A.e("v_xor_b32 v3, 64, v2")
    A.e("v_add_u32 v3, 4096, v3")
    A.e("s_lshl_b32 s9, s7, 10")
    A.e("s_mul_i32 s10, s7, 6144")
    A.e("s_and_b32 s6, s7, 1")
    A.e("s_lshl_b32 s6, s6, 6")
    A.e("v_xor_b32 v4, s6, v10")
    A.e("v_lshrrev_b32 v11, 3, v1")
    A.e("v_lshl_add_u32 v4, v11, 10, v4")
    A.e("s_lshl_b32 s6, s7, 13")
    A.e("v_add_u32 v4, s6, v4")
    A.e("s_lshl_b32 s6, s4, 17")
    A.e("s_lshl_b32 s13, s5, 15")
    A.e("s_waitcnt lgkmcnt(0)")
    srd(A, rX, sX, 131072, "s6")
    srd(A, rBRE, sBRE, 32768, "s13")
    srd(A, rBIM, sBIM, 32768, "s13")
    O = mkord(PAR["ord"])
    for f in dma_ops(A, O, 0):
        f()
    A.e("s_lshl_b32 s6, s5, 3")
    A.e("s_lshl_b32 s13, s7, 1")
    A.e("s_add_u32 s13, s13, s6")
    A.e("s_lshl_b32 s6, s13, 10")
    A.e("v_lshlrev_b32 v17, 4, v8")
    A.e("v_lshl_add_u32 v18, v9, 10, v17")
    A.e("v_add_u32 v18, s6, v18")
    A.vmi("g", "buffer_load_dwordx4 v[64:67], v18, %s, 0 offen" % s(rX, 4))
    A.vmi("g", "buffer_load_dwordx4 v[68:71], v18, %s, 0 offen offset:512" % s(rX, 4))
    A.vmi("g", "global_load_dwordx4 v[72:75], v17, %s" % s(sGW, 2))
    A.vmi("g", "global_load_dwordx4 v[76:79], v17, %s offset:512" % s(sGW, 2))
    A.e("s_lshl_b32 s6, s4, 7")
    A.e("s_add_u32 s6, s6, 0x%x" % EPR_OFF)
    srd(A, rEP, sWS, FL_OFF - EPR_OFF + 64, "s6")
    A.e("v_mov_b32 v19, 0")
    A.vmi("g", "buffer_load_dword v84, v19, %s, 0 offen sc1" % s(rEP, 4))
    for f in dma_ops(A, O, 1):
        f()
    k1_common_late(A)
    srd(A, rW1, sW1, 512 * 2752)
    srd(A, rW3, sW3, 512 * 2752)
    srd(A, rG, sWS, 16384, "0x%x" % G_OFF)
    A.e("v_lshrrev_b32 v10, 2, v1")
    A.e("s_lshl_b32 s6, s7, 4")
    A.e("v_add_u32 v10, s6, v10")
    A.e("v_mul_u32_u24 v5, 2752, v10")
    A.e("s_mul_i32 s6, s5, 192")
    A.e("v_add_u32 v5, s6, v5")
    A.e("v_and_b32 v10, 3, v1")
    A.e("v_lshl_add_u32 v5, v10, 4, v5")
    A.e("v_xor_b32 v16, 32, v5")
    A.e("v_add_u32 v7, s8, v7")
    A.e("s_cmp_ge_u32 s5, 15")
    A.e("s_cselect_b32 s14, 0x%x, 0" % OOB)
    A.e("s_cmp_ge_u32 s5, 14")
    A.e("s_cselect_b32 s15, 0x%x, 0" % OOB)
    A.e("s_add_u32 s82, s82, %d" % (65536 + 2048))
    A.e("s_add_u32 s82, s82, s15")
    A.e("s_bitcmp1_b32 s4, 0")
    A.e("s_cbranch_scc1 L_k1_Fb")
    A.e("s_branch L_k1_Fa")
    return list(A.vm)


def k1_F(A, ORD, X, vm0):
    A.vm, A.lg = list(vm0), []
    A.lab("L_k1_F" + X)
    ACC, FB = 64, 32
    LA, LAF, NT = PAR["la"], PAR["laf"], PAR["nt"]
    assert LAF <= 4 and LA <= LAF

    def g_compute():
        A.c("g = sigmoid(sum bf16(x*gate_w))")
        A.vmw("g")
        A.e("v_readfirstlane_b32 s86, v84")
        A.e("s_add_u32 s86, s86, 1")
        A.e("s_bitset1_b32 s86, 31")
        A.e("v_mov_b32 v20, 0")
        for d in range(8):
            xx, ww = 64 + d, 72 + d
            A.e("v_lshlrev_b32 v80, 16, %s" % v(xx))
            A.e("v_and_b32 v81, 0xffff0000, %s" % v(xx))
            A.e("v_lshlrev_b32 v82, 16, %s" % v(ww))
            A.e("v_and_b32 v83, 0xffff0000, %s" % v(ww))
            A.e("v_mul_f32 v80, v80, v82")
            A.e("v_mul_f32 v81, v81, v83")
            A.e("v_cvt_pk_bf16_f32 v80, v80, v81")
            A.e("v_lshlrev_b32 v81, 16, v80")
            A.e("v_and_b32 v80, 0xffff0000, v80")
            A.e("v_add_f32 v20, v20, v81")
            A.e("v_add_f32 v20, v20, v80")
        for sh in (1, 2, 4, 8):
            A.e("s_nop 1")
            A.e("v_add_f32_dpp v20, v20, v20 row_shr:%d row_mask:0xf bank_mask:0xf bound_ctrl:0" % sh)
        A.e("s_nop 1")
        A.e("v_add_f32_dpp v20, v20, v20 row_bcast:15 row_mask:0xa bank_mask:0xf")
        A.e("v_cvt_pk_bf16_f32 v20, v20, v20")
        A.e("v_and_b32 v20, 0xffff0000, v20")
        A.e("v_mul_f32 v20, s80, v20")
        A.e("v_exp_f32 v20, v20")
        A.e("s_nop 0")
        A.e("v_add_f32 v20, 1.0, v20")
        A.e("v_rcp_f32 v20, v20")
        A.e("s_nop 0")
        A.e("v_cvt_pk_bf16_f32 v20, v20, v20")
        A.e("v_and_b32 v20, 0xffff0000, v20")
        A.e("v_sub_f32 v21, 1.0, v20")
        A.e("v_cvt_pk_bf16_f32 v21, v21, v21")
        A.e("v_and_b32 v21, 0xffff0000, v21")
        A.e("s_lshl_b32 s6, s4, 7")
        A.e("s_add_u32 s6, s6, s13")
        A.e("s_lshl_b32 s6, s6, 3")
        A.e("v_lshlrev_b32 v22, 3, v9")
        A.e("s_mov_b32 exec_lo, 0x80000000")
        A.e("s_mov_b32 exec_hi, 0x80000000")
        A.vmi("gst", "buffer_store_dwordx2 v[20:21], v22, %s, s6 offen%s" % (s(rG, 4), stmod()))
        A.e("s_mov_b64 exec, -1")

    def prefetch_w2():
        A.c("pull this XCD's share of w2 into L2 for the second launch")
        A.e("s_lshr_b32 s6, s2, 3")
        A.e("s_mul_i32 s12, s6, 43")
        A.e("s_mul_i32 s13, s7, 11")
        A.e("s_add_u32 s12, s12, s13")
        A.e("s_lshl_b32 s12, s12, 1")
        A.e("s_and_b32 s11, s2, 1")
        A.e("s_add_u32 s12, s12, s11")
        A.e("s_lshl_b32 s12, s12, 9")
        A.e("v_lshrrev_b32 v2, 2, v1")
        A.e("v_and_b32 v3, 3, v1")
        A.e("v_lshlrev_b32 v2, 10, v2")
        A.e("v_lshl_add_u32 v2, v3, 7, v2")
        srd(A, rX, sW2, 1376 * 1024)
        A.e("s_mov_b32 exec_hi, 0xfff")
        A.vmi("pf", "buffer_load_dword v4, v2, %s, s12 offen" % s(rX, 4))
        A.e("s_mov_b64 exec, -1")

    tiles = [2, 3, 4, 5]
    S = Stream(A, mk_items(ORD, 4, False), 8, PAR["fd"], PAR["ffill"])
    dq = []
    for n in range(2, 16):
        dq += [(n, f) for f in dma_ops(A, ORD, n)]
    if PAR["pf"]:
        dq.append((15, prefetch_w2))

    def dma_upto(m, maxops=999):
        while dq and dq[0][0] <= m and maxops > 0:
            dq.pop(0)[1]()
            maxops -= 1

    def waddr(n):
        return ((14, 15), (28, 29), (30, 31))[n % 3]

    def pre(b):
        kind, c = ORD[b]
        slot = (b % NSLOT) * SLOT
        dma_upto(b - 1 + LA)
        if kind == "P":
            A.e("v_add_u32 v24, %d, v7" % slot)
            A.e("v_xor_b32 v25, 32, v24")
            A.e("v_xor_b32 v26, 64, v24")
            A.e("v_xor_b32 v27, 0x60, v24")
        else:
            A.e("v_add_u32 v%d, %d, v12" % (waddr(b)[0], slot))
            A.e("v_add_u32 v%d, %d, v13" % (waddr(b)[1], slot))
        A.vmw("ch%d" % b)

    def post(b):
        kind, c = ORD[b]
        A.fs(b)
        if kind == "P":
            for ss in range(4):
                A.lgi("c%d_x" % b, "ds_read_b128 %s, %s" % (a(16 * c + 4 * ss, 4), v(24 + ss)))
            dma_upto(b + LA)
        if b == 0:
            g_compute()

    def read(it, sl, tag):
        n, ss, ti = it
        T = tiles[ti]
        for nn in range(2):
            A.lgi(tag, "ds_read_b64_tr_b16 %s, v%d offset:%d" % (v(FB + 4 * sl + 2 * nn, 2), waddr(n)[T & 1],
                                                                ss * 6144 + (T >> 1) * 1024 + nn * 256))

    def mfma(it, sl):
        n, ss, ti = it
        c = ORD[n][1]
        first = (c == 0 and ss == 0)
        A.e("v_mfma_f32_32x32x16_bf16 %s, %s, %s, %s" % (v(ACC + 16 * ti, 16), v(FB + 4 * sl, 4), a(16 * c + 4 * ss, 4),
                                                        "0" if first else v(ACC + 16 * ti, 16)))

    def after(it, mp):
        n, ss, ti = it
        if mp % PAR["dmagap"] == 0:
            dma_upto(S.nb - 1 + LAF, 1)
        if n == 15 and ss == 3:
            S.fill.append(("dist", S.ninstr()))
            S.fill += swiglu_ops(ACC + 16 * ti, 1024 * ti)

    S.pre, S.post, S.read, S.mfma, S.after = pre, post, read, mfma, after
    S.run()
    assert not dq
    A.fs(16)
    S.flush()
    A.e("s_branch L_p2_load")


def cpow(A, n_scale, dre, dim, t0, t1, va, vb):
    if n_scale == 1.0:
        A.e("v_exp_f32 %s, %s" % (t0, va))
        A.e("v_fract_f32 %s, %s" % (t1, vb))
    else:
        ns = n_scale if isinstance(n_scale, str) else "0x%x" % f2u(n_scale)
        A.e("v_mul_f32 %s, %s, %s" % (t0, ns, va))
        A.e("v_mul_f32 %s, %s, %s" % (t1, ns, vb))
        A.e("v_exp_f32 %s, %s" % (t0, t0))
        A.e("v_fract_f32 %s, %s" % (t1, t1))
    A.e("v_cos_f32 %s, %s" % (dre, t1))
    A.e("v_sin_f32 %s, %s" % (dim, t1))
    A.e("s_nop 0")
    A.e("v_mul_f32 %s, %s, %s" % (dre, dre, t0))
    A.e("v_mul_f32 %s, %s, %s" % (dim, dim, t0))


def cfma_ops(dr, di, mr, mi, xr, xi, ar, ai):
    return ["v_fma_f32 %s, %s, %s, %s" % (dr, mr, xr, ar),
            "v_fma_f32 %s, %s, %s, %s" % (di, mr, xi, ai),
            "v_fma_f32 %s, -%s, %s, %s" % (dr, mi, xi, dr),
            "v_fma_f32 %s, %s, %s, %s" % (di, mi, xr, di)]

def cfma(A, *args):
    for x in cfma_ops(*args):
        A.e(x)

LR, LI, NLI = "v16", "v17", "v5"
L16R, L16I, L128R, L128I, L256R, L256I = "v18", "v19", "v20", "v21", "v22", "v23"
CR, CI, PR, PI = "v2", "v3", "v10", "v11"
ER, EI, SR, SI = "v56", "v57", "v58", "v59"


def k1_S_prologue(A):
    A.vm, A.lg = [], []
    A.lab("L_k1_Spro")
    A.e("s_lshl_b32 s6, s5, 6")
    A.e("v_lshlrev_b32 v4, 1, v8")
    A.e("v_add_u32 v4, s6, v4")
    A.e("s_lshl_b32 s6, s5, 7")
    A.e("s_add_u32 s6, s6, 0x%x" % EP_OFF)
    A.e("v_mov_b32 v55, 0")
    if PAR["cpf"]:
        A.c("pull the code of both launches into this XCD's L2: 4 lines per wave")
        A.e("s_getpc_b64 s[44:45]")
        A.lab("L_k1_pc")
        A.e("s_mov_b32 s46, L_code_end - L_k1_pc")
        A.e("s_mov_b32 s47, 0x20000")
        A.e("s_lshr_b32 s9, s2, 3")
        A.e("s_lshl_b32 s9, s9, 2")
        A.e("s_add_u32 s9, s9, s7")
        A.e("s_lshl_b32 s9, s9, 9")
        A.e("v_lshlrev_b32 v53, 7, v1")
        A.e("s_mov_b64 exec, 15")
        A.vmi("par", "buffer_load_dword v52, v53, s[44:47], s9 offen")
        A.e("s_mov_b64 exec, -1")
    A.e("s_waitcnt lgkmcnt(0)")
    A.vmi("par", "global_load_ushort v60, v4, %s" % s(sLRE, 2))
    A.vmi("par", "global_load_ushort v61, v4, %s" % s(sLIM, 2))
    A.vmi("par", "global_load_ushort v62, v4, %s" % s(sLDT, 2))
    srd(A, rEP, sWS, 4, "s6")
    A.vmi("par", "buffer_load_dword v54, v55, %s, 0 offen sc1" % s(rEP, 4))
    A.e("s_lshl_b32 s6, s4, 7")
    A.e("s_add_u32 s6, s6, 0x%x" % EPR_OFF)
    srd(A, rG, sWS, FL_OFF - EPR_OFF + 64, "s6")
    A.vmi("par", "buffer_load_dword v56, v55, %s, 0 offen sc1" % s(rG, 4))
    k1_common_late(A)
    A.e("s_lshl_b32 s6, s5, 13")
    A.e("s_add_u32 s6, s6, 0x%x" % E_OFF)
    srd(A, rE, sWS, 8192, "s6")
    srd(A, rBRE, 26, 524288)
    srd(A, rBIM, 28, 524288)
    A.e("s_cmp_ge_u32 s5, 15")
    A.e("s_cselect_b32 s6, 0x%x, 0" % OOB)
    A.e("s_add_u32 s82, s82, 65536")
    A.e("s_add_u32 s82, s82, s6")
    A.e("v_lshlrev_b32 v4, 3, v0")
    A.e("v_add_u32 v4, %d, v4" % (MISC + 2048))
    A.e("v_mov_b32 v48, 0")
    A.e("v_mov_b32 v49, 0")
    A.e("ds_write_b64 v4, v[48:49]")
    A.e("s_lshl_b32 s6, s7, 1")
    A.e("v_add_u32 v63, s6, v9")
    A.e("v_sub_u32 v4, 7, v63")
    A.e("v_lshlrev_b32 v4, 8, v4")
    A.e("v_lshl_add_u32 v4, v8, 3, v4")
    A.e("v_add_u32 v4, %d, v4" % MISC)
    A.e("v_lshlrev_b32 v63, 4, v63")
    A.e("v_cvt_f32_u32 v63, v63")
    A.vmw("par", " lgkmcnt(0)")
    A.e("v_readfirstlane_b32 s14, v54")
    A.e("s_add_u32 s14, s14, 1")
    A.e("s_bitset1_b32 s14, 31")
    A.e("v_readfirstlane_b32 s86, v56")
    A.e("s_add_u32 s86, s86, 1")
    A.e("s_bitset1_b32 s86, 31")
    A.e("v_lshlrev_b32 v60, 16, v60")
    A.e("v_lshlrev_b32 v61, 16, v61")
    A.e("v_lshlrev_b32 v62, 16, v62")
    A.e("v_mul_f32 v62, 0x%x, v62" % f2u(LOG2E))
    A.e("v_exp_f32 v62, v62")
    A.e("s_nop 0")
    A.e("v_cvt_pk_bf16_f32 v62, v62, v62")
    A.e("v_and_b32 v62, 0xffff0000, v62")
    A.e("v_mul_f32 v50, v62, v60")
    A.e("v_mul_f32 v51, v62, v61")
    A.e("v_mul_f32 v50, 0x%x, v50" % f2u(LOG2E))
    A.e("v_mul_f32 v51, 0x%x, v51" % f2u(INV2PI))
    cpow(A, 1.0, LR, LI, "v52", "v53", "v50", "v51")
    cpow(A, 16.0, L16R, L16I, "v52", "v53", "v50", "v51")
    cpow(A, 128.0, L128R, L128I, "v52", "v53", "v50", "v51")
    cpow(A, 256.0, L256R, L256I, "v52", "v53", "v50", "v51")
    cpow(A, "v63", PR, PI, "v52", "v53", "v50", "v51")
    A.e("v_sub_f32 %s, 0, %s" % (NLI, LI))
    A.e("v_mul_f32 v52, v60, v60")
    A.e("v_fmac_f32 v52, v61, v61")
    A.e("v_rcp_f32 v52, v52")
    A.e("v_add_f32 v53, -1.0, %s" % LR)
    A.e("v_mul_f32 %s, v53, v60" % CR)
    A.e("v_fmac_f32 %s, %s, v61" % (CR, LI))
    A.e("v_mul_f32 %s, %s, v60" % (CI, LI))
    A.e("v_fma_f32 %s, -v53, v61, %s" % (CI, CI))
    A.e("v_add_f32 v52, v52, v52")
    A.e("v_mul_f32 %s, %s, v52" % (CR, CR))
    A.e("v_mul_f32 %s, %s, v52" % (CI, CI))
    A.e("s_bitcmp1_b32 s4, 0")
    A.e("s_cbranch_scc1 L_k1_Sb")
    A.e("s_branch L_k1_Sa")


def k1_S(A, ORD, X):
    A.vm, A.lg = [], []
    A.lab("L_k1_S" + X)
    RE, IM, ACC, FB = 64, 80, 96, 32
    NT = PAR["nt"]
    tiles = [0, 1]
    lastP = max(n for n in range(16) if ORD[n][0] == "P")
    assert lastP + 3 < 16 - NT + 1 and lastP + 2 < PAR["estep"]
    S = Stream(A, mk_items(ORD, 2, True), 4, PAR["sd"], PAR["sfill"])

    def er(m):
        b = 24 + 2 * m if m < 4 else 48 + 2 * (m - 4)
        return v(b), v(b + 1)

    def waddr(n):
        return (14, 15) if n <= 16 - NT else ((24, 25), (26, 27))[n - (17 - NT)]

    def endstate_ops():
        o = []
        cur = (v(RE), v(IM))
        tmp = [("v48", "v49"), ("v50", "v51")]
        for r in range(1, 16):
            d = (ER, EI) if r == 15 else tmp[r & 1]
            o += cfma_ops(d[0], d[1], LR, LI, cur[0], cur[1], v(RE + r), v(IM + r))
            cur = d
        o.append(lambda: A.lgi("ew", "ds_write_b64 v4, v[56:57]"))
        return o

    def publish():
        A.e("s_cmp_lg_u32 s7, 3")
        A.e("s_cbranch_scc1 L_k1_S_nopub" + X)
        cfma(A, "v52", "v54", L16R, L16I, SR, SI, ER, EI)
        A.e("v_mov_b32 v53, s14")
        A.e("v_mov_b32 v55, s14")
        A.e("s_sub_u32 s6, 15, s4")
        A.e("s_lshl_b32 s6, s6, 9")
        A.e("v_lshlrev_b32 v60, 4, v8")
        A.e("s_mov_b32 exec_lo, 0")
        A.e("buffer_store_dwordx4 v[52:55], v60, %s, s6 offen sc1" % s(rE, 4))
        A.e("s_mov_b64 exec, -1")
        A.lab("L_k1_S_nopub" + X)

    def prefix_ops():
        o = [lambda: A.lgw("er")]
        cur = er(6)
        tmp = [("v54", "v55"), ("v60", "v61")]
        for m in range(5, -1, -1):
            d = (SR, SI) if m == 0 else tmp[m & 1]
            o += cfma_ops(d[0], d[1], L16R, L16I, cur[0], cur[1], er(m)[0], er(m)[1])
            cur = d
        o.append(publish)
        return o

    def coef_ops():
        o = []
        for r in range(16):
            t = "v%d" % (48 + (r & 3))
            o.append("v_mul_f32 %s, %s, %s" % (t, CI, v(RE + r)))
            o.append("v_mul_f32 %s, %s, %s" % (v(RE + r), CR, v(RE + r)))
            o.append("v_fma_f32 %s, -%s, %s, %s" % (v(RE + r), CI, v(IM + r), v(RE + r)))
            o.append("v_fma_f32 %s, %s, %s, %s" % (v(IM + r), CR, v(IM + r), t))
        return o

    def e_issue():
        for m in range(8):
            A.e("buffer_load_dwordx4 %s, %s, %s, 0 offen offset:%d sc1" % (a(4 * m, 4), "v61" if m >= 4 else "v60", s(rE, 4), 1024 * (m & 3)))

    def e_loads():
        A.e("s_sub_u32 s6, 16, s4")
        A.e("s_lshl_b32 s6, s6, 9")
        A.e("v_lshlrev_b32 v60, 4, v8")
        A.e("v_lshl_add_u32 v60, v9, 9, v60")
        A.e("v_add_u32 v60, s6, v60")
        A.e("v_add_u32 v61, 4096, v60")
        e_issue()
        A.vm = []
        A.e("v_sub_u32 v62, s4, v9")
        A.e("v_add_u32 v62, 1, v62")
        A.e("v_and_b32 v62, -2, v62")
        if PAR["pf"]:
            A.c("pull this XCD's share of C_re / C_im into L2 for the second launch")
            A.e("s_and_b32 s13, s2, 1")
            A.e("s_lshl_b32 s13, s13, 18")
            A.e("s_lshr_b32 s6, s2, 3")
            A.e("s_lshl_b32 s6, s6, 13")
            A.e("s_add_u32 s13, s13, s6")
            A.e("s_lshl_b32 s6, s7, 11")
            A.e("s_add_u32 s13, s13, s6")
            A.e("v_lshlrev_b32 v63, 7, v1")
            A.e("s_mov_b64 exec, 0xffff")
            A.vmi("x", "buffer_load_dword v52, v63, %s, s13 offen" % s(rBRE, 4))
            A.vmi("x", "buffer_load_dword v53, v63, %s, s13 offen" % s(rBIM, 4))
            A.e("s_mov_b64 exec, -1")

    def e_check(nyoung):
        A.e("s_mov_b32 s13, 0")
        A.e("s_waitcnt vmcnt(%d)" % nyoung)
        A.lab("L_k1_S_poll" + X)
        A.e("v_mov_b32 v63, 0")
        for m in range(8):
            A.e("v_accvgpr_read_b32 %s, %s" % (v(24 + m), a(4 * m + 1)))
            A.e("v_accvgpr_read_b32 %s, %s" % (v(32 + m), a(4 * m + 3)))
        for g0 in range(0, 16, 4):
            for q in range(4):
                A.e("v_cmp_eq_u32 s[%d:%d], s14, %s" % (18 + 2 * q, 19 + 2 * q, v(24 + g0 + q)))
            for q in range(4):
                A.e("v_addc_co_u32 v63, vcc, 0, v63, s[%d:%d]" % (18 + 2 * q, 19 + 2 * q))
        A.e("v_cmp_ne_u32 vcc, v62, v63")
        A.e("s_cbranch_vccz L_k1_S_ready" + X)
        A.e("s_sleep 1")
        e_issue()
        A.e("s_add_u32 s13, s13, 1")
        A.e("s_cmp_lt_u32 s13, 0x20000")
        A.e("s_waitcnt vmcnt(0)")
        A.e("s_cbranch_scc1 L_k1_S_poll" + X)
        A.lab("L_k1_S_ready" + X)
        for m in range(8):
            A.e("v_accvgpr_read_b32 %s, %s" % (v(24 + 2 * m), a(4 * m)))
            A.e("v_accvgpr_read_b32 %s, %s" % (v(25 + 2 * m), a(4 * m + 2)))
        A.e("s_lshl_b32 s6, s7, 4")
        A.e("s_add_u32 s6, s6, s4")
        A.e("s_cmp_lg_u32 s6, 15")
        A.e("s_cbranch_scc1 L_k1_S_noep" + X)
        A.e("v_mov_b32 v62, s14")
        A.e("v_mov_b32 v63, 0")
        A.e("s_mov_b64 exec, 1")
        A.e("buffer_store_dword v62, v63, %s, 0 offen sc1" % s(rEP, 4))
        A.e("s_mov_b64 exec, -1")
        A.lab("L_k1_S_noep" + X)

    def carry_and_scan():
        e2 = lambda m: (v(24 + 2 * m), v(25 + 2 * m))
        cur = e2(7)
        tmp = [("v60", "v61"), ("v40", "v41")]
        for m in range(6, -1, -1):
            d = tmp[m & 1]
            cfma(A, d[0], d[1], L256R, L256I, cur[0], cur[1], e2(m)[0], e2(m)[1])
            cur = d
        A.e("v_mov_b32 v40, v60")
        A.e("v_mov_b32 v41, v61")
        A.e("s_nop 1")
        A.e("v_permlane32_swap_b32 v60, v40")
        A.e("v_permlane32_swap_b32 v61, v41")
        A.e("s_nop 1")
        cfma(A, "v48", "v49", L128R, L128I, "v40", "v41", "v60", "v61")
        cfma(A, "v50", "v51", PR, PI, "v48", "v49", SR, SI)
        A.e("v_mul_f32 v48, %s, v50" % CR)
        A.e("v_mul_f32 v49, %s, v51" % CR)
        A.e("v_fma_f32 v48, -%s, v51, v48" % CI)
        A.e("v_fmac_f32 v49, %s, v50" % CI)
        cur = ("v48", "v49")
        for r in range(16):
            A.e("v_fmac_f32 %s, %s, %s" % (v(RE + r), LR, cur[0]))
            A.e("v_fmac_f32 %s, %s, %s" % (v(IM + r), LR, cur[1]))
            A.e("v_fmac_f32 %s, %s, %s" % (v(RE + r), NLI, cur[1]))
            A.e("v_fmac_f32 %s, %s, %s" % (v(IM + r), LI, cur[0]))
            cur = (v(RE + r), v(IM + r))
        for q in range(8):
            A.e("v_cvt_pk_bf16_f32 %s, %s, %s" % (v(32 + q), v(RE + 2 * q), v(RE + 2 * q + 1)))
        for q in range(8):
            A.e("v_cvt_pk_bf16_f32 %s, -%s, -%s" % (v(40 + q), v(IM + 2 * q), v(IM + 2 * q + 1)))
        A.e("ds_write_b128 v54, v[32:35]")
        A.e("ds_write_b128 v54, v[36:39] offset:16")
        A.e("ds_write_b128 v54, v[40:43] offset:2048")
        A.e("ds_write_b128 v54, v[44:47] offset:2064")
        A.e("s_lshl_b32 s6, s5, 11")
        A.e("s_add_u32 s6, s6, s81")
        A.e("s_add_u32 s13, s6, 32768")
        A.e("s_waitcnt lgkmcnt(0)")
        for ks in range(4):
            for nn in range(2):
                A.e("ds_read_b64_tr_b16 %s, v55 offset:%d" % (v(64 + 4 * ks + 2 * nn, 2), ks * 1024 + nn * 256))
        for ks in range(4):
            A.e("s_waitcnt lgkmcnt(%d)" % (6 - 2 * ks))
            A.e("buffer_store_dwordx4 %s, v6, %s, s%d offen offset:%d%s" % (v(64 + 4 * ks, 4), s(rAS, 4), 13 if ks >= 2 else 6, 1024 * (ks & 1), stmod()))

    def tr_addr_ops():
        base = 4 * SLOT
        return ["v_lshlrev_b32 v54, 6, v8", "v_lshl_add_u32 v54, v9, 5, v54", "v_add_u32 v54, s8, v54", "v_add_u32 v54, %d, v54" % base,
                "v_bfe_u32 v55, v1, 2, 2", "v_lshlrev_b32 v55, 6, v55", "v_lshl_add_u32 v55, v9, 9, v55",
                "v_and_b32 v50, 1, v1", "v_lshl_add_u32 v55, v50, 5, v55", "v_bfe_u32 v50, v1, 4, 1", "v_lshl_add_u32 v55, v50, 4, v55",
                "v_bfe_u32 v50, v1, 1, 1", "v_lshl_add_u32 v55, v50, 3, v55", "v_add_u32 v55, s8, v55", "v_add_u32 v55, %d, v55" % base]

    def pre(b):
        kind, c = ORD[b]
        slot = (b % NSLOT) * SLOT
        if b == lastP + 2:
            S.flush()
            A.lgw("ew")
        if b == 17 - NT:
            S.flush()
        if kind == "P":
            A.e("v_add_u32 v28, %d, v7" % slot)
            A.e("v_xor_b32 v29, 32, v28")
            A.e("v_xor_b32 v30, 64, v28")
            A.e("v_xor_b32 v31, 0x60, v28")
            for q in range(4):
                A.e("v_add_u32 %s, s8, %s" % (v(24 + q), v(28 + q)))
        else:
            A.e("v_add_u32 v%d, %d, v12" % (waddr(b)[0], slot))
            A.e("v_add_u32 v%d, %d, v13" % (waddr(b)[1], slot))

    def post(b):
        A.fs(b)
        if b == lastP + 2:
            for m in range(7):
                A.lgi("er", "ds_read_b64 v[%s:%s], v4 offset:%d" % (er(m)[0][1:], er(m)[1][1:], 256 * (m + 1)))
            S.fill += prefix_ops() + coef_ops() + tr_addr_ops()
        if b == PAR["estep"]:
            S.fill.append(e_loads)

    def read(it, sl, tag):
        n, ss, ti = it
        kind, c = ORD[n]
        if kind == "P":
            if ti == 0:
                A.lgi(tag, "ds_read_b128 %s, %s" % (a(16 * c + 4 * ss, 4), v(24 + ss)))
            A.lgi(tag, "ds_read_b128 %s, %s offset:%d" % (v(FB + 4 * sl, 4), v(28 + ss), 16384 + 4096 * ti))
        else:
            T = tiles[ti]
            for nn in range(2):
                A.lgi(tag, "ds_read_b64_tr_b16 %s, v%d offset:%d" % (v(FB + 4 * sl + 2 * nn, 2), waddr(n)[T & 1],
                                                                    ss * 6144 + (T >> 1) * 1024 + nn * 256))

    def mfma(it, sl):
        n, ss, ti = it
        kind, c = ORD[n]
        first = (c == 0 and ss == 0)
        if kind == "P":
            d = (RE, IM)[ti]
            A.e("v_mfma_f32_32x32x16_bf16 %s, %s, %s, %s" % (v(d, 16), a(16 * c + 4 * ss, 4), v(FB + 4 * sl, 4), "0" if first else v(d, 16)))
        else:
            d = ACC + 16 * ti
            A.e("v_mfma_f32_32x32x16_bf16 %s, %s, %s, %s" % (v(d, 16), v(FB + 4 * sl, 4), a(16 * c + 4 * ss, 4), "0" if first else v(d, 16)))

    nst = [0]
    def after(it, mp):
        n, ss, ti = it
        if n == lastP and ss == 3 and ti == 1:
            S.fill.append(("dist", S.ninstr()))
            S.fill += endstate_ops()
        if n == 15 and ss == 3:
            S.fill.append(("dist", S.ninstr()))
            S.fill += swiglu_ops(ACC + 16 * ti, 1024 * ti)

    S.pre, S.post, S.read, S.mfma, S.after = pre, post, read, mfma, after
    S.run()
    A.fs(16)
    S.flush()
    if X == "a":
        A.e("s_branch L_k1_Stail")
        return
    A.lab("L_k1_Stail")
    A.fs(17)
    e_check(len(A.vm) + 2)
    A.fs(18)
    carry_and_scan()


P2_GROUPS = [("W", 0, 8), ("W", 8, 8), ("W", 16, 6), ("C", 0, 8), ("C", 8, 8)]
P2_SEQ = [(k, b, n, m) for (k, b, n) in P2_GROUPS for m in range(n)]
NA, NW = 6, 14
WUNITS = [18, 19] + list(range(12))
def AU(n): return (12 + n % NA) * 8192
def WU(n): return WUNITS[n % NW] * 8192


def p2_load(A):
    N = len(P2_SEQ)
    rA, rCRE, rCIM, rW2 = 44, 48, 52, 56
    A.lab("L_p2_load")
    A.vm, A.lg = ["st"], []
    A.fs(17)
    A.e("s_lshr_b32 s10, s5, 1")
    A.e("s_and_b32 s11, s5, 1")
    A.e("s_and_b32 s13, s10, 3")
    A.e("s_lshl_b32 s13, s13, 1")
    if PAR["urot"]:
        A.e("s_add_u32 s13, s13, s11")
        A.e("s_lshl_b32 s6, s4, 1")
        A.e("s_add_u32 s13, s13, s6")
        A.e("s_and_b32 s13, s13, 7")
    A.e("s_sub_u32 s14, s13, 6")
    A.e("s_cmp_ge_u32 s13, 6")
    A.e("s_cselect_b32 s14, s14, s13")
    A.e("v_bfe_u32 v10, v1, 4, 1")
    A.e("v_lshlrev_b32 v10, 2, v10")
    A.e("v_and_b32 v11, 7, v1")
    A.e("v_xor_b32 v10, v10, v11")
    A.e("v_lshlrev_b32 v10, 4, v10")
    A.e("v_lshrrev_b32 v12, 3, v1")
    A.e("v_lshl_add_u32 v3, v12, 10, v10")
    A.e("s_lshl_b32 s6, s7, 14")
    A.e("s_lshl_b32 s12, s10, 7")
    A.e("s_add_u32 s12, s12, s6")
    A.e("v_add_u32 v3, s12, v3")
    A.e("v_add_u32 v7, 8192, v3")
    A.e("s_lshl_b32 s9, s7, 11")
    srd(A, rW2, sW2, 1376 * 1024)

    def idx(n, reg):
        kind, base, ln, m = P2_SEQ[n]
        if ln == 8:
            A.e("s_add_u32 s%d, s13, %d" % (reg, m))
            A.e("s_and_b32 s%d, s%d, 7" % (reg, reg))
        else:
            A.e("s_add_u32 s%d, s14, %d" % (reg, m))
            A.e("s_sub_u32 s6, s%d, 6" % reg)
            A.e("s_cmp_ge_u32 s%d, 6" % reg)
            A.e("s_cselect_b32 s%d, s6, s%d" % (reg, reg))

    def dma_w(n):
        kind, base, ln, m = P2_SEQ[n]
        idx(n, 12)
        if kind == "W":
            A.e("s_lshl_b32 s12, s12, 16")
            if base:
                A.e("s_add_u32 s12, s12, %d" % (base * 65536))
            r_, va, vb = rW2, "v3", "v7"
        else:
            A.e("s_lshl_b32 s12, s12, 7")
            r_, va, vb = (rCIM if base else rCRE), "v4", "v5"
        A.e("s_add_u32 m0, s9, %d" % WU(n))
        A.e("s_nop 0")
        A.vmi("w%d" % n, "buffer_load_dwordx4 %s, %s, s12 offen lds" % (va, s(r_, 4)))
        A.e("s_add_u32 m0, s9, %d" % (WU(n) + 1024))
        A.e("s_nop 0")
        A.vmi("w%d" % n, "buffer_load_dwordx4 %s, %s, s12 offen lds" % (vb, s(r_, 4)))

    def dma_a(n):
        kind, base, ln, m = P2_SEQ[n]
        idx(n, 12)
        A.e("s_lshl_b32 s12, s12, 12")
        off = (64 + 4 * base) * 1024 if kind == "W" else 4 * base * 1024
        if off:
            A.e("s_add_u32 s12, s12, %d" % off)
        A.e("s_add_u32 m0, s8, %d" % AU(n))
        A.e("s_nop 0")
        A.vmi("a%d" % n, "buffer_load_dwordx4 v2, %s, s12 offen sc1 lds" % s(rA, 4))
        A.vmi("a%d" % n, "buffer_load_dwordx4 v2, %s, s12 offen offset:1024 sc1 lds" % s(rA, 4))

    for n in range(PAR["pre1"]):
        dma_w(n)
    A.e("v_lshrrev_b32 v10, 4, v1")
    A.e("v_xor_b32 v10, v10, v11")
    A.e("v_lshlrev_b32 v10, 4, v10")
    A.e("v_lshl_add_u32 v13, v12, 10, v10")
    A.e("s_lshl_b32 s6, s7, 14")
    A.e("s_lshl_b32 s12, s10, 16")
    A.e("s_add_u32 s12, s12, s6")
    A.e("v_add_u32 v13, s12, v13")
    A.e("v_xor_b32 v5, 64, v13")
    A.e("v_add_u32 v5, 8192, v5")
    srd(A, rCRE, 26, 524288)
    srd(A, rCIM, 28, 524288)
    A.e("s_and_b32 s12, s7, 1")
    A.e("s_lshr_b32 s15, s7, 1")
    A.e("s_lshl_b32 s15, s15, 11")
    A.e("v_add_u32 v2, s15, v6")
    A.e("s_lshl_b32 s8, s12, 12")
    A.e("s_add_u32 s8, s8, s15")
    A.e("s_lshl_b32 s6, s4, 1")
    A.e("s_add_u32 s6, s6, s11")
    A.e("s_lshl_b32 s6, s6, 1")
    A.e("s_add_u32 s6, s6, s12")
    A.e("s_mul_i32 s6, s6, %d" % (NKS * 1024))
    srd(A, rA, sWS, NKS * 1024, "s6")
    A.e("v_and_b32 v14, 15, v1")
    A.e("v_lshlrev_b32 v14, 2, v14")
    A.e("v_add_u32 v14, 0x1000, v14")
    A.vmw("st")
    A.e("v_mov_b32 v4, v13")
    A.e("s_barrier")
    A.fs(18)
    for n in range(PAR["pre1"], NW):
        if n == NW - PAR["pollat"]:
            A.vmi("poll", "buffer_load_dword v15, v14, %s, 0 offen sc1" % s(rEP, 4))
        dma_w(n)
    A.e("s_mov_b32 s15, 0")
    A.vmw("poll")
    A.lab("L_p2_poll")
    A.e("v_cmp_ne_u32 vcc, s86, v15")
    A.e("s_cbranch_vccz L_p2_go")
    A.e("s_sleep 2")
    A.e("buffer_load_dword v15, v14, %s, 0 offen sc1" % s(rEP, 4))
    A.e("s_add_u32 s15, s15, 1")
    A.e("s_cmp_lt_u32 s15, 0x20000")
    A.e("s_waitcnt vmcnt(0)")
    A.e("s_cbranch_scc1 L_p2_poll")
    A.lab("L_p2_go")
    A.fs(19)
    ALA = PAR["ala"]
    assert ALA <= NA - 1
    A.e("s_lshl_b32 s6, s5, 2")
    A.e("s_add_u32 s6, s6, s7")
    A.e("s_cmp_lg_u32 s6, 0")
    A.e("s_cbranch_scc1 L_p2_noep")
    A.e("v_mov_b32 v15, s86")
    A.e("s_mov_b64 exec, 1")
    A.e("buffer_store_dword v15, v19, %s, 0 offen sc1" % s(rEP, 4))
    A.e("s_mov_b64 exec, -1")
    A.lab("L_p2_noep")
    for n in range(ALA + 1):
        dma_a(n)
    wn = NW
    for n in range(N):
        A.vmw("w%d" % n)
        A.vmw("a%d" % n)
        A.e("s_barrier")
        A.fs(20 + n)
        if n >= 1 and n + ALA < N:
            dma_a(n + ALA)
        if n >= PAR["wstart"] and wn < N:
            assert wn - NW <= n - 1 and wn > n + 1
            dma_w(wn)
            wn += 1
    assert wn == N
    A.fs_end()
    A.e("s_endpgm")


def p2_comp(A):
    N = len(P2_SEQ)
    rXs, rO, rGs = 44, 48, 52
    ACCB, ACCA, GV, XV = 32, 48, 64, 96
    A.vm, A.lg = [], []
    A.fs(19)
    A.e("s_and_b32 s9, s7, 1")
    A.e("s_lshr_b32 s10, s7, 1")
    A.e("s_lshl_b32 s12, s4, 1")
    A.e("s_and_b32 s6, s5, 1")
    A.e("s_add_u32 s12, s12, s6")
    A.e("s_lshl_b32 s12, s12, 1")
    A.e("s_add_u32 s12, s12, s9")
    A.e("s_lshl_b32 s12, s12, 5")
    A.e("s_and_b32 s15, s5, 14")
    A.e("s_add_u32 s15, s15, s10")
    A.e("s_lshl_b32 s15, s15, 5")
    A.e("v_lshlrev_b32 v20, 4, v9")
    A.e("v_add_u32 v20, s12, v20")
    A.e("v_add_u32 v21, s15, v8")
    A.e("v_lshlrev_b32 v22, 3, v20")
    A.e("v_lshlrev_b32 v23, 1, v21")
    A.e("v_lshl_add_u32 v24, v20, 10, v23")
    A.e("v_lshlrev_b32 v25, 1, v24")
    A.e("v_add_u32 v26, 4096, v24")
    A.e("v_add_u32 v27, 8192, v24")
    A.e("v_add_u32 v28, 12288, v24")
    srd(A, rXs, sX, 2048 * 1024)
    A.e("s_lshl_b32 s6, s5, 2")
    A.e("s_add_u32 s6, s6, 0x1000")
    A.e("v_mov_b32 v30, s86")
    A.e("v_mov_b32 v31, 0")
    A.e("s_waitcnt vmcnt(0)")
    A.e("s_barrier")
    A.e("s_cmp_lg_u32 s7, 0")
    A.e("s_cbranch_scc1 L_p2_noflag")
    A.e("s_mov_b64 exec, 1")
    A.e("buffer_store_dword v30, v31, %s, s6 offen sc1" % s(rG, 4))
    A.e("s_mov_b64 exec, -1")
    A.lab("L_p2_noflag")
    for r in range(16):
        A.e("buffer_load_ushort %s, %s, %s, 0 offen offset:%d" % (v(XV + r), ("v24", "v26", "v27", "v28")[r >> 2], s(rXs, 4), 1024 * (r & 3)))
    A.e("global_load_ushort v29, v23, s[40:41]")
    srd(A, rGs, sWS, 16384, "0x%x" % G_OFF)
    srd(A, rO, 84, 2048 * 2048)
    A.e("s_lshl_b32 s6, s9, 12")
    A.e("v_add_u32 v7, s6, v6")
    A.e("v_bfe_u32 v10, v1, 1, 3")
    A.e("v_xor_b32 v10, v10, v9")
    A.e("v_lshlrev_b32 v10, 4, v10")
    A.e("v_lshl_add_u32 v12, v8, 7, v10")
    A.e("s_lshl_b32 s6, s10, 12")
    A.e("v_add_u32 v12, s6, v12")
    A.e("v_bfe_u32 v10, v1, 2, 2")
    A.e("v_lshlrev_b32 v13, 7, v10")
    A.e("v_lshl_add_u32 v13, v9, 9, v13")
    A.e("v_bfe_u32 v10, v1, 4, 1")
    A.e("v_lshl_add_u32 v13, v10, 5, v13")
    A.e("v_and_b32 v10, 3, v1")
    A.e("v_lshl_add_u32 v13, v10, 3, v13")
    A.e("v_bfe_u32 v10, v1, 3, 1")
    A.e("v_xor_b32 v10, s10, v10")
    A.e("v_lshl_add_u32 v13, v10, 6, v13")
    A.e("v_add_u32 v14, %d, v7" % AU(0))

    def addr(n):
        if P2_SEQ[n][0] == "W":
            A.e("v_add_u32 v15, %d, v13" % WU(n))
        else:
            A.e("v_add_u32 v15, %d, v12" % WU(n))
            A.e("v_xor_b32 v16, 32, v15")
            A.e("v_xor_b32 v17, 64, v15")
            A.e("v_xor_b32 v18, 0x60, v15")

    def reads(n, ss):
        fb = 32 * (n & 1)
        A.lgi("r", "ds_read_b128 %s, v14 offset:%d" % (a(fb + 4 * ss, 4), AU(n) - AU(0) + 1024 * ss))
        if P2_SEQ[n][0] == "W":
            for nn in range(2):
                A.lgi("r", "ds_read_b64_tr_b16 %s, v15 offset:%d" % (a(fb + 16 + 4 * ss + 2 * nn, 2), 2048 * ss + 1024 * nn))
        else:
            A.lgi("r", "ds_read_b128 %s, %s" % (a(fb + 16 + 4 * ss, 4), v(15 + ss)))

    def mfma(n, ss):
        kind, base, ln, m = P2_SEQ[n]
        fb = 32 * (n & 1)
        acc = ACCB if kind == "W" else ACCA
        first = (base == 0 and m == 0 and ss == 0)
        A.e("v_mfma_f32_32x32x16_bf16 %s, %s, %s, %s" % (v(acc, 16), a(fb + 4 * ss, 4), a(fb + 16 + 4 * ss, 4),
                                                        "0" if first else v(acc, 16)))

    def mid(q):
        if q == 0:
            A.e("s_waitcnt vmcnt(0)")
            A.e("v_lshlrev_b32 v29, 16, v29")
        r0, r1 = 2 * q, 2 * q + 1
        A.e("v_cvt_pk_bf16_f32 v30, %s, %s" % (v(ACCB + r0), v(ACCB + r1)))
        A.e("v_lshlrev_b32 %s, 16, %s" % (v(XV + r0), v(XV + r0)))
        A.e("v_lshlrev_b32 %s, 16, %s" % (v(XV + r1), v(XV + r1)))
        A.e("v_lshlrev_b32 v31, 16, v30")
        A.e("v_and_b32 v30, 0xffff0000, v30")
        A.e("v_mul_f32 %s, %s, v29" % (v(XV + r0), v(XV + r0)))
        A.e("v_mul_f32 %s, %s, v29" % (v(XV + r1), v(XV + r1)))
        A.e("v_mul_f32 v31, %s, v31" % v(GV + 2 * r0 + 1))
        A.e("v_mul_f32 v30, %s, v30" % v(GV + 2 * r1 + 1))
        A.e("v_cvt_pk_bf16_f32 %s, %s, %s" % (v(XV + r0), v(XV + r0), v(XV + r1)))
        A.e("v_cvt_pk_bf16_f32 v30, v31, v30")
        A.e("v_and_b32 %s, 0xffff0000, %s" % (v(XV + r1), v(XV + r0)))
        A.e("v_lshlrev_b32 %s, 16, %s" % (v(XV + r0), v(XV + r0)))
        A.e("v_lshlrev_b32 %s, 16, v30" % v(ACCB + r0))
        A.e("v_and_b32 %s, 0xffff0000, v30" % v(ACCB + r1))

    for n in range(N):
        addr(n)
        A.lgw0()
        A.e("s_barrier")
        for ss in range(4):
            if n >= 1 and ss > 0:
                mfma(n - 1, ss - 1)
            reads(n, ss)
        if n >= 1:
            mfma(n - 1, 3)
        if n == 0:
            for q in range(8):
                A.e("buffer_load_dwordx4 %s, v22, %s, 0 offen offset:%d sc1" % (v(GV + 4 * q, 4), s(rGs, 4), 16 * q))
        if 24 <= n < 32:
            mid(n - 24)
    A.lgw0()
    for ss in range(4):
        mfma(N - 1, ss)
    A.fs(59)
    A.e("s_nop 7")
    A.e("s_nop 3")
    for r in range(16):
        A.e("v_add_f32 %s, %s, %s" % (v(ACCA + r), v(ACCA + r), v(XV + r)))
    for r in range(16):
        A.e("v_fmac_f32 %s, %s, %s" % (v(ACCB + r), v(GV + 2 * r), v(ACCA + r)))
        A.e("s_movk_i32 s6, %d" % (4096 * (r >> 1)))
        A.e("buffer_store_dword %s, v25, %s, s6 offen offset:%d%s" % (v(ACCB + r), s(rO, 4), 2048 * (r & 1), stmod("o")))
    A.fs(60)
    A.fs_end()
    A.e("s_endpgm")


def gen_all(A):
    K = NAME + "_kernel"
    A.L.append(".globl %s\n.p2align 8\n.type %s,@function\n%s:" % (K, K, K))
    k1_prologue(A)
    vm0 = k1_F_prologue(A)
    k1_S_prologue(A)
    k1_F(A, mkord(PAR["ord"]), "a", vm0)
    k1_S(A, mkord(PAR["ord"]), "a")
    k1_F(A, mkord(PAR["ord2"]), "b", vm0)
    k1_S(A, mkord(PAR["ord2"]), "b")
    p2_comp(A)
    p2_load(A)
    A.lab("L_k1_end")
    A.e("s_endpgm")
    A.lab("L_code_end")

def kd(name, nv, acc, ns=102):
    return """.amdhsa_kernel %s
  .amdhsa_next_free_vgpr %d
  .amdhsa_next_free_sgpr %d
  .amdhsa_accum_offset %d
  .amdhsa_group_segment_fixed_size 0
  .amdhsa_kernarg_size 136
  .amdhsa_user_sgpr_count 2
  .amdhsa_user_sgpr_kernarg_segment_ptr 1
  .amdhsa_system_sgpr_workgroup_id_x 1
.end_amdhsa_kernel
""" % (name, nv, ns, acc)


def main(path):
    ref = open("cdna_kernels/%s.s.ref" % NAME).read().splitlines()
    head = [l for l in ref if l.startswith(";") and "@launch" not in l and "Override launch" not in l and "grid=ceil" not in l]
    head = head[:18]
    A = Asm()
    gen_all(A)
    out = head + [
        "; @launch grid=(256,1,1) block=(512,1,1) lds=%d" % K1_LDS,
        '.amdgcn_target "amdgcn-amd-amdhsa--gfx950"', ".text"] + A.L + [
        '.section .rodata,"a"', ".p2align 6", kd(NAME + "_kernel", 256, 128)]
    open(path, "w").write("\n".join(out))


if __name__ == "__main__":
    if "--stamp" in sys.argv:
        STAMP = True
        sys.argv.remove("--stamp")
    for x in list(sys.argv):
        if x.startswith("-O"):
            OPT.add(x[2:]); sys.argv.remove(x)
        elif x.startswith("-P"):
            kk, vv = x[2:].split("=")
            PAR[kk] = vv if kk.startswith("ord") else int(vv)
            sys.argv.remove(x)
    main(sys.argv[1] if len(sys.argv) > 1 else "cdna_kernels/%s.s" % NAME)
```

```python
import sys, struct

NAME = "gated_mix__ssm_conv_s5__glu_gated_swiglu__prompt"

def f2u(x):
    return struct.unpack("<I", struct.pack("<f", x))[0]

LOG2E = 1.4426950408889634
INV2PI = 0.15915494309189535

NKS = 150
A_BYTES = 64 * NKS * 1024
E_OFF = 0xA00000
G_OFF = 0xA20000
EP_OFF = 0xA30000


EPR_OFF = 0xA31000
FL_OFF = 0xA32000

STAMP = False
OPT = {"asc0", "asc1"}
ST_OFF = 0xB00000

class Asm:
    def __init__(self):
        self.L = []
        self.vm = []
        self.lg = []

    def e(self, s):
        if "nomfma" in OPT and s.startswith("v_mfma"):
            s = "s_nop 0"
        if "nolds" in OPT and s.startswith("ds_read"):
            s = "s_nop 0"
        self.L.append("  " + s)

    def c(self, s):
        pass

    def lab(self, s):
        self.L.append(s + ":")

    def fs(self, n):
        if STAMP:
            self.e("%s s[98:99]" % ("s_memrealtime" if "rt" in OPT else "s_memtime"))
            self.e("s_waitcnt lgkmcnt(0)")
            self.lg = []
            self.e("s_sub_u32 s98, s98, s96")
            self.e("v_writelane_b32 v0, s98, %d" % n)

    def dbg_end(self):
        if "dbg" in OPT:
            self.e("s_waitcnt vmcnt(0)")
            self.e("s_memrealtime s[98:99]")
            self.e("s_memtime s[92:93]")
            self.e("s_load_dwordx2 s[8:9], s[0:1], 120")
            self.e("s_waitcnt lgkmcnt(0)")
            self.e("s_mov_b32 s10, 256")
            self.e("s_mov_b32 s11, 0x20000")
            self.e("s_not_b32 s94, s94")
            self.e("s_sub_u32 s92, s92, s96")
            self.e("v_mov_b32 v2, s94")
            self.e("v_mov_b32 v3, s98")
            self.e("v_mov_b32 v4, s92")
            self.e("v_mov_b32 v1, 0")
            self.e("s_cmp_lg_u32 s7, 0")
            self.e("s_cbranch_scc1 L_dbg_done")
            self.e("s_mov_b64 exec, 1")
            self.e("buffer_atomic_umax v2, v1, s[8:11], 0 offen")
            self.e("buffer_atomic_umax v3, v1, s[8:11], 0 offen offset:4")
            self.e("buffer_atomic_umax v4, v1, s[8:11], 0 offen offset:8")
            self.lab("L_dbg_done")

    def stamp_begin(self):
        if STAMP or "dbg" in OPT:
            self.e("s_memrealtime s[94:95]")
            self.e("%s s[96:97]" % ("s_memrealtime" if "rt" in OPT else "s_memtime"))

    def fs_end(self):
        if STAMP:
            self.e("s_waitcnt vmcnt(0)")
            self.fs(61)
            self.e("s_memrealtime s[98:99]")
            self.e("s_waitcnt lgkmcnt(0)")
            self.e("v_writelane_b32 v0, s94, 62")
            self.e("v_writelane_b32 v0, s98, 63")
            self.e("s_add_u32 s8, s%d, 0x%x" % (sWS, ST_OFF))
            self.e("s_addc_u32 s9, s%d, 0" % (sWS + 1))
            self.e("s_mov_b32 s10, 0x80000")
            self.e("s_mov_b32 s11, 0x20000")
            self.e("s_lshl_b32 s6, s2, 11")
            self.e("s_lshl_b32 s12, s3, 8")
            self.e("s_add_u32 s6, s6, s12")
            self.e("v_lshlrev_b32 v1, 2, v1")
            self.e("buffer_store_dword v0, v1, s[8:11], s6 offen")

    def vmi(self, tag, s, cold=False):
        if cold and "nt" in OPT:
            s = s.replace(" lds", " nt lds") if s.endswith(" lds") else s + " nt"
        self.e(s)
        self.vm.append(tag)
        assert len(self.vm) <= 63, "too many vmem ops in flight"

    def vmw(self, tag, extra=""):
        idx = [i for i, t in enumerate(self.vm) if t == tag]
        if not idx:
            return None
        n = len(self.vm) - 1 - idx[-1]
        self.vm = self.vm[idx[-1] + 1:]
        self.e("s_waitcnt vmcnt(%d)%s" % (n, extra))
        return n

    def lgi(self, tag, s):
        self.e(s)
        self.lg.append(tag)

    def lgw(self, tag):
        idx = [i for i, t in enumerate(self.lg) if t == tag]
        if not idx:
            return
        n = len(self.lg) - 1 - idx[-1]
        self.lg = self.lg[idx[-1] + 1:]
        self.e("s_waitcnt lgkmcnt(%d)" % min(n, 15))

    def lgw0(self):
        if self.lg:
            self.e("s_waitcnt lgkmcnt(0)")
        self.lg = []


def stmod(pre="a"):
    return "".join(" " + m for m in ("sc0", "sc1", "nt") if pre + m in OPT)

def v(a, n=1):
    return "v%d" % a if n == 1 else "v[%d:%d]" % (a, a + n - 1)

def a(a_, n=1):
    return "a%d" % a_ if n == 1 else "a[%d:%d]" % (a_, a_ + n - 1)

def s(a_, n=1):
    return "s%d" % a_ if n == 1 else "s[%d:%d]" % (a_, a_ + n - 1)


def srd(A, d, base, nbytes, addlo=None):
    if addlo is None:
        A.e("s_mov_b32 s%d, s%d" % (d, base))
        A.e("s_mov_b32 s%d, s%d" % (d + 1, base + 1))
    else:
        A.e("s_add_u32 s%d, s%d, %s" % (d, base, addlo))
        A.e("s_addc_u32 s%d, s%d, 0" % (d + 1, base + 1))
    A.e("s_mov_b32 s%d, 0x%x" % (d + 2, nbytes))
    A.e("s_mov_b32 s%d, 0x20000" % (d + 3))


SLOT = 24576
NSLOT = 6
MISC = SLOT * NSLOT
K1_LDS = 163840
OOB = 0x40000000

def mkord(sx):
    o, pc, fc = [], 0, 0
    for ch in sx:
        if ch == "P":
            o.append(("P", pc)); pc += 1
        else:
            assert fc < pc
            o.append(("F", fc)); fc += 1
    assert pc == 8 and fc == 8 and sx[:2] == "PP"
    return o
PAR = dict(ord="PPFFPPPPPPFFFFFF", ord2="PPPPPPPPFFFFFFFF", la=2, laf=4, dmagap=2, nt=3, estep=15, fd=5, sd=3,
           ffill=4, sfill=10, rot=1, pf=1, cpf=1, ala=4, wstart=1, pre1=5, pollat=3, urot=1)

sX, sLRE, sLIM, sBRE, sBIM, sLDT = 16, 18, 20, 22, 24, 30
sW1, sW3, sW2, sGW, sWS = 32, 34, 36, 38, 42
rX, rBRE, rBIM, rW1, rW3, rAS, rE, rEP, rG = 44, 48, 52, 56, 60, 64, 68, 72, 76


def swiglu_ops(acc, off):
    o = []
    for r in range(8):
        o.append("v_mul_f32 %s, %s, %s" % (v(acc + 8 + r), v(acc + r), v(acc + 8 + r)))
    for r in range(8):
        o.append("v_mul_f32 %s, s80, %s" % (v(acc + r), v(acc + r)))
    for r in range(8):
        o.append("v_exp_f32 %s, %s" % (v(acc + r), v(acc + r)))
    for r in range(8):
        o.append("v_add_f32 %s, 1.0, %s" % (v(acc + r), v(acc + r)))
    for r in range(8):
        o.append("v_rcp_f32 %s, %s" % (v(acc + r), v(acc + r)))
    for r in range(8):
        o.append("v_mul_f32 %s, %s, %s" % (v(acc + 8 + r), v(acc + 8 + r), v(acc + r)))
    for q in range(4):
        o.append("v_cvt_pk_bf16_f32 %s, %s, %s" % (v(acc + q), v(acc + 8 + 2 * q), v(acc + 9 + 2 * q)))
    o.append("buffer_store_dwordx4 %s, v6, %s, s82 offen offset:%d%s" % (v(acc, 4), s(rAS, 4), off, stmod()))
    return o


class Stream:
    def __init__(self, A, items, NB, D, K):
        self.A, self.items, self.NB, self.D, self.K = A, items, NB, D, K
        self.nb = 0
        self.rp = 0
        self.fill = []
        self.hold = 0

    def ninstr(self):
        return len(self.A.L)

    def pop(self, k):
        while k > 0 and self.fill:
            f = self.fill[0]
            if isinstance(f, tuple):
                if self.ninstr() - f[1] < 14:
                    return
                self.fill.pop(0)
                continue
            self.fill.pop(0)
            if isinstance(f, str):
                self.A.e(f)
            else:
                f()
            k -= 1

    def flush(self):
        while self.fill:
            f = self.fill[0]
            if isinstance(f, tuple):
                d = 14 - (self.ninstr() - f[1])
                if d > 0:
                    self.A.e("s_nop %d" % (d - 1))
                self.fill.pop(0)
                continue
            self.pop(1)

    def barrier(self, n):
        while self.nb <= n:
            b = self.nb
            self.pre(b)
            old = [t for t in self.A.lg if t[0] == "c" and int(t[1:].split("_")[0]) <= b - 2]
            if old:
                self.A.lgw(old[-1])
            self.A.e("s_barrier")
            self.nb += 1
            self.post(b)

    def reads(self, upto, force):
        while self.rp < min(upto, len(self.items)):
            it = self.items[self.rp]
            if not force and it[0] > self.nb:
                return
            self.barrier(it[0])
            self.read(it, self.rp % self.NB, "c%d_%d" % (it[0], self.rp))
            self.rp += 1

    def run(self):
        for mp, it in enumerate(self.items):
            if self.rp <= mp:
                self.reads(mp + 1, True)
                self.reads(mp + 1 + self.D, False)
            self.A.lgw("c%d_%d" % (it[0], mp))
            self.mfma(it, mp % self.NB)
            self.after(it, mp)
            self.reads(min(mp + 1 + self.D, self.rp + 2), False)
            self.pop(self.K)
        self.barrier(15)


def mk_items(ORD, ntile, withP):
    NT = PAR["nt"]
    items = []
    for n in range(16 - NT):
        if ORD[n][0] == "P" and not withP:
            continue
        for ss in range(4):
            for ti in range(ntile):
                items.append((n, ss, ti))
    for t0 in range(0, ntile, 2):
        for n in range(16 - NT, 16):
            assert ORD[n][0] == "F"
            for ss in range(4):
                for ti in (t0, t0 + 1):
                    items.append((n, ss, ti))
    return items


def k1_prologue(A):
    A.e("s_cmp_ge_u32 s2, 256")
    A.e("s_cbranch_scc1 L_k1_end")
    A.stamp_begin()
    A.e("s_load_dwordx16 s[16:31], s[0:1], 0")
    A.e("s_load_dwordx8 s[32:39], s[0:1], 80")
    A.e("s_load_dwordx2 s[42:43], s[0:1], 128")
    A.e("s_load_dwordx2 s[40:41], s[0:1], 64")
    A.e("s_load_dwordx2 s[84:85], s[0:1], 112")
    A.e("v_lshrrev_b32 v2, 6, v0")
    A.e("v_and_b32 v1, 63, v0")
    A.e("v_readfirstlane_b32 s3, v2")
    A.e("s_bfe_u32 s4, s2, 0x20001")
    A.e("s_lshl_b32 s4, s4, 2")
    A.e("s_bfe_u32 s6, s2, 0x20003")
    A.e("s_add_u32 s4, s4, s6")
    A.e("s_and_b32 s5, s2, 1")
    A.e("s_lshl_b32 s5, s5, 3")
    A.e("s_lshr_b32 s6, s2, 5")
    A.e("s_add_u32 s5, s5, s6")
    A.e("s_and_b32 s7, s3, 3")
    A.e("v_and_b32 v8, 31, v1")
    A.e("v_lshrrev_b32 v9, 5, v1")
    A.e("s_lshl_b32 s8, s7, 12")
    A.e("s_cmp_lt_u32 s3, 4")
    A.e("s_cbranch_scc1 L_k1_Spro")


def k1_common_late(A):
    A.e("s_mov_b32 s80, 0x%x" % f2u(-LOG2E))
    A.e("v_bfe_u32 v10, v1, 1, 3")
    A.e("v_xor_b32 v10, v10, v9")
    A.e("v_lshlrev_b32 v10, 4, v10")
    A.e("v_lshl_add_u32 v7, v8, 7, v10")
    A.e("v_bfe_u32 v10, v1, 4, 1")
    A.e("v_mul_u32_u24 v12, 3104, v10")
    A.e("v_lshlrev_b32 v11, 9, v9")
    A.e("v_add_u32 v12, v12, v11")
    A.e("v_bfe_u32 v11, v1, 2, 2")
    A.e("v_lshl_add_u32 v12, v11, 6, v12")
    A.e("v_and_b32 v11, 3, v1")
    A.e("v_lshl_add_u32 v12, v11, 3, v12")
    A.e("v_xor_b32 v13, 32, v12")
    A.e("v_lshlrev_b32 v6, 4, v1")
    A.e("s_lshl_b32 s6, s4, 2")
    A.e("s_add_u32 s6, s6, s7")
    A.e("s_mul_i32 s81, s6, %d" % (NKS * 1024))
    A.e("s_mul_i32 s6, s5, 6144")
    A.e("s_add_u32 s82, s81, s6")
    srd(A, rAS, sWS, A_BYTES)


def dma_ops(A, ORD, n):
    kind, c = ORD[n]
    slot = (n % NSLOT) * SLOT
    tag = "ch%d" % n
    ops = []
    def mk(pre, m0, ins):
        def f():
            for x in pre:
                A.e(x)
            A.e(m0)
            A.e("s_nop 0")
            A.vmi(tag, ins)
        return f
    if kind == "P":
        pre = ["s_add_u32 s11, s83, %d" % c, "s_and_b32 s11, s11, 7", "s_lshl_b32 s11, s11, 7", "s_add_u32 s12, s11, 8192"]
        for q in range(4):
            ops.append(mk(pre if q == 0 else [], "s_add_u32 m0, s8, %d" % (slot + 1024 * q),
                          "buffer_load_dwordx4 %s, %s, s%d offen lds" % ("v3" if q & 1 else "v2", s(rX, 4), 12 if q >= 2 else 11)))
        ops.append(mk([], "s_add_u32 m0, s9, %d" % (slot + 16384), "buffer_load_dwordx4 v4, %s, s11 offen lds" % s(rBRE, 4)))
        ops.append(mk([], "s_add_u32 m0, s9, %d" % (slot + 20480), "buffer_load_dwordx4 v4, %s, s11 offen lds" % s(rBIM, 4)))
    else:
        pre = ["s_add_u32 s11, s83, %d" % c, "s_and_b32 s11, s11, 7", "s_mul_i32 s11, s11, 176128",
               "s_add_u32 s12, s11, s15", "s_add_u32 s11, s11, s14"]
        for m in range(2):
            for q in range(3):
                ops.append(mk(pre if m == 0 and q == 0 else [], "s_add_u32 m0, s10, %d" % (slot + m * 3072 + 1024 * q - 64 * q),
                              "buffer_load_dwordx4 %s, %s, s%d offen offset:%d lds" % ("v16" if m else "v5", s(rW3 if m else rW1, 4), 12 if q else 11, 64 * q)))
    return ops


def k1_F_prologue(A):
    A.vm, A.lg = [], []
    if PAR["rot"]:
        A.e("s_lshl_b32 s83, s4, 1")
        A.e("s_add_u32 s83, s83, s5")
    else:
        A.e("s_mov_b32 s83, 0")
    A.e("v_lshrrev_b32 v10, 4, v1")
    A.e("v_and_b32 v11, 7, v1")
    A.e("v_xor_b32 v10, v10, v11")
    A.e("v_lshlrev_b32 v10, 4, v10")
    A.e("v_bfe_u32 v11, v1, 3, 2")
    A.e("v_lshl_add_u32 v2, v11, 10, v10")
    A.e("v_lshl_add_u32 v2, v9, 14, v2")
    A.e("s_lshl_b32 s6, s7, 15")
    A.e("v_add_u32 v2, s6, v2")
    A.e("v_xor_b32 v3, 64, v2")
    A.e("v_add_u32 v3, 4096, v3")
    A.e("s_lshl_b32 s9, s7, 10")
    A.e("s_mul_i32 s10, s7, 6144")
    A.e("s_and_b32 s6, s7, 1")
    A.e("s_lshl_b32 s6, s6, 6")
    A.e("v_xor_b32 v4, s6, v10")
    A.e("v_lshrrev_b32 v11, 3, v1")
    A.e("v_lshl_add_u32 v4, v11, 10, v4")
    A.e("s_lshl_b32 s6, s7, 13")
    A.e("v_add_u32 v4, s6, v4")
    A.e("s_lshl_b32 s6, s4, 17")
    A.e("s_lshl_b32 s13, s5, 15")
    A.e("s_waitcnt lgkmcnt(0)")
    srd(A, rX, sX, 131072, "s6")
    srd(A, rBRE, sBRE, 32768, "s13")
    srd(A, rBIM, sBIM, 32768, "s13")
    O = mkord(PAR["ord"])
    for f in dma_ops(A, O, 0):
        f()
    A.e("s_lshl_b32 s6, s5, 3")
    A.e("s_lshl_b32 s13, s7, 1")
    A.e("s_add_u32 s13, s13, s6")
    A.e("s_lshl_b32 s6, s13, 10")
    A.e("v_lshlrev_b32 v17, 4, v8")
    A.e("v_lshl_add_u32 v18, v9, 10, v17")
    A.e("v_add_u32 v18, s6, v18")
    A.vmi("g", "buffer_load_dwordx4 v[64:67], v18, %s, 0 offen" % s(rX, 4))
    A.vmi("g", "buffer_load_dwordx4 v[68:71], v18, %s, 0 offen offset:512" % s(rX, 4))
    A.vmi("g", "global_load_dwordx4 v[72:75], v17, %s" % s(sGW, 2))
    A.vmi("g", "global_load_dwordx4 v[76:79], v17, %s offset:512" % s(sGW, 2))
    A.e("s_lshl_b32 s6, s4, 7")
    A.e("s_add_u32 s6, s6, 0x%x" % EPR_OFF)
    srd(A, rEP, sWS, FL_OFF - EPR_OFF + 64, "s6")
    A.e("v_mov_b32 v19, 0")
    A.vmi("g", "buffer_load_dword v84, v19, %s, 0 offen sc1" % s(rEP, 4))
    for f in dma_ops(A, O, 1):
        f()
    k1_common_late(A)
    srd(A, rW1, sW1, 512 * 2752)
    srd(A, rW3, sW3, 512 * 2752)
    srd(A, rG, sWS, 16384, "0x%x" % G_OFF)
    A.e("v_lshrrev_b32 v10, 2, v1")
    A.e("s_lshl_b32 s6, s7, 4")
    A.e("v_add_u32 v10, s6, v10")
    A.e("v_mul_u32_u24 v5, 2752, v10")
    A.e("s_mul_i32 s6, s5, 192")
    A.e("v_add_u32 v5, s6, v5")
    A.e("v_and_b32 v10, 3, v1")
    A.e("v_lshl_add_u32 v5, v10, 4, v5")
    A.e("v_xor_b32 v16, 32, v5")
    A.e("v_add_u32 v7, s8, v7")
    A.e("s_cmp_ge_u32 s5, 15")
    A.e("s_cselect_b32 s14, 0x%x, 0" % OOB)
    A.e("s_cmp_ge_u32 s5, 14")
    A.e("s_cselect_b32 s15, 0x%x, 0" % OOB)
    A.e("s_add_u32 s82, s82, %d" % (65536 + 2048))
    A.e("s_add_u32 s82, s82, s15")
    A.e("s_bitcmp1_b32 s4, 0")
    A.e("s_cbranch_scc1 L_k1_Fb")
    A.e("s_branch L_k1_Fa")
    return list(A.vm)


def k1_F(A, ORD, X, vm0):
    A.vm, A.lg = list(vm0), []
    A.lab("L_k1_F" + X)
    ACC, FB = 64, 32
    LA, LAF, NT = PAR["la"], PAR["laf"], PAR["nt"]
    assert LAF <= 4 and LA <= LAF

    def g_compute():
        A.c("g = sigmoid(sum bf16(x*gate_w))")
        A.vmw("g")
        A.e("v_readfirstlane_b32 s86, v84")
        A.e("s_add_u32 s86, s86, 1")
        A.e("s_bitset1_b32 s86, 31")
        A.e("v_mov_b32 v20, 0")
        for d in range(8):
            xx, ww = 64 + d, 72 + d
            A.e("v_lshlrev_b32 v80, 16, %s" % v(xx))
            A.e("v_and_b32 v81, 0xffff0000, %s" % v(xx))
            A.e("v_lshlrev_b32 v82, 16, %s" % v(ww))
            A.e("v_and_b32 v83, 0xffff0000, %s" % v(ww))
            A.e("v_mul_f32 v80, v80, v82")
            A.e("v_mul_f32 v81, v81, v83")
            A.e("v_cvt_pk_bf16_f32 v80, v80, v81")
            A.e("v_lshlrev_b32 v81, 16, v80")
            A.e("v_and_b32 v80, 0xffff0000, v80")
            A.e("v_add_f32 v20, v20, v81")
            A.e("v_add_f32 v20, v20, v80")
        for sh in (1, 2, 4, 8):
            A.e("s_nop 1")
            A.e("v_add_f32_dpp v20, v20, v20 row_shr:%d row_mask:0xf bank_mask:0xf bound_ctrl:0" % sh)
        A.e("s_nop 1")
        A.e("v_add_f32_dpp v20, v20, v20 row_bcast:15 row_mask:0xa bank_mask:0xf")
        A.e("v_cvt_pk_bf16_f32 v20, v20, v20")
        A.e("v_and_b32 v20, 0xffff0000, v20")
        A.e("v_mul_f32 v20, s80, v20")
        A.e("v_exp_f32 v20, v20")
        A.e("s_nop 0")
        A.e("v_add_f32 v20, 1.0, v20")
        A.e("v_rcp_f32 v20, v20")
        A.e("s_nop 0")
        A.e("v_cvt_pk_bf16_f32 v20, v20, v20")
        A.e("v_and_b32 v20, 0xffff0000, v20")
        A.e("v_sub_f32 v21, 1.0, v20")
        A.e("v_cvt_pk_bf16_f32 v21, v21, v21")
        A.e("v_and_b32 v21, 0xffff0000, v21")
        A.e("s_lshl_b32 s6, s4, 7")
        A.e("s_add_u32 s6, s6, s13")
        A.e("s_lshl_b32 s6, s6, 3")
        A.e("v_lshlrev_b32 v22, 3, v9")
        A.e("s_mov_b32 exec_lo, 0x80000000")
        A.e("s_mov_b32 exec_hi, 0x80000000")
        A.vmi("gst", "buffer_store_dwordx2 v[20:21], v22, %s, s6 offen%s" % (s(rG, 4), stmod()))
        A.e("s_mov_b64 exec, -1")

    def prefetch_w2():
        A.c("pull this XCD's share of w2 into L2 for the second launch")
        A.e("s_lshr_b32 s6, s2, 3")
        A.e("s_mul_i32 s12, s6, 43")
        A.e("s_mul_i32 s13, s7, 11")
        A.e("s_add_u32 s12, s12, s13")
        A.e("s_lshl_b32 s12, s12, 1")
        A.e("s_and_b32 s11, s2, 1")
        A.e("s_add_u32 s12, s12, s11")
        A.e("s_lshl_b32 s12, s12, 9")
        A.e("v_lshrrev_b32 v2, 2, v1")
        A.e("v_and_b32 v3, 3, v1")
        A.e("v_lshlrev_b32 v2, 10, v2")
        A.e("v_lshl_add_u32 v2, v3, 7, v2")
        srd(A, rX, sW2, 1376 * 1024)
        A.e("s_mov_b32 exec_hi, 0xfff")
        A.vmi("pf", "buffer_load_dword v4, v2, %s, s12 offen" % s(rX, 4))
        A.e("s_mov_b64 exec, -1")

    tiles = [2, 3, 4, 5]
    S = Stream(A, mk_items(ORD, 4, False), 8, PAR["fd"], PAR["ffill"])
    dq = []
    for n in range(2, 16):
        dq += [(n, f) for f in dma_ops(A, ORD, n)]
    if PAR["pf"]:
        dq.append((15, prefetch_w2))

    def dma_upto(m, maxops=999):
        while dq and dq[0][0] <= m and maxops > 0:
            dq.pop(0)[1]()
            maxops -= 1

    def waddr(n):
        return ((14, 15), (28, 29), (30, 31))[n % 3]

    def pre(b):
        kind, c = ORD[b]
        slot = (b % NSLOT) * SLOT
        dma_upto(b - 1 + LA)
        if kind == "P":
            A.e("v_add_u32 v24, %d, v7" % slot)
            A.e("v_xor_b32 v25, 32, v24")
            A.e("v_xor_b32 v26, 64, v24")
            A.e("v_xor_b32 v27, 0x60, v24")
        else:
            A.e("v_add_u32 v%d, %d, v12" % (waddr(b)[0], slot))
            A.e("v_add_u32 v%d, %d, v13" % (waddr(b)[1], slot))
        A.vmw("ch%d" % b)

    def post(b):
        kind, c = ORD[b]
        A.fs(b)
        if kind == "P":
            for ss in range(4):
                A.lgi("c%d_x" % b, "ds_read_b128 %s, %s" % (a(16 * c + 4 * ss, 4), v(24 + ss)))
            dma_upto(b + LA)
        if b == 0:
            g_compute()

    def read(it, sl, tag):
        n, ss, ti = it
        T = tiles[ti]
        for nn in range(2):
            A.lgi(tag, "ds_read_b64_tr_b16 %s, v%d offset:%d" % (v(FB + 4 * sl + 2 * nn, 2), waddr(n)[T & 1],
                                                                ss * 6144 + (T >> 1) * 1024 + nn * 256))

    def mfma(it, sl):
        n, ss, ti = it
        c = ORD[n][1]
        first = (c == 0 and ss == 0)
        A.e("v_mfma_f32_32x32x16_bf16 %s, %s, %s, %s" % (v(ACC + 16 * ti, 16), v(FB + 4 * sl, 4), a(16 * c + 4 * ss, 4),
                                                        "0" if first else v(ACC + 16 * ti, 16)))

    def after(it, mp):
        n, ss, ti = it
        if mp % PAR["dmagap"] == 0:
            dma_upto(S.nb - 1 + LAF, 1)
        if n == 15 and ss == 3:
            S.fill.append(("dist", S.ninstr()))
            S.fill += swiglu_ops(ACC + 16 * ti, 1024 * ti)

    S.pre, S.post, S.read, S.mfma, S.after = pre, post, read, mfma, after
    S.run()
    assert not dq
    A.fs(16)
    S.flush()
    A.e("s_branch L_p2_load")


def cpow(A, n_scale, dre, dim, t0, t1, va, vb):
    if n_scale == 1.0:
        A.e("v_exp_f32 %s, %s" % (t0, va))
        A.e("v_fract_f32 %s, %s" % (t1, vb))
    else:
        ns = n_scale if isinstance(n_scale, str) else "0x%x" % f2u(n_scale)
        A.e("v_mul_f32 %s, %s, %s" % (t0, ns, va))
        A.e("v_mul_f32 %s, %s, %s" % (t1, ns, vb))
        A.e("v_exp_f32 %s, %s" % (t0, t0))
        A.e("v_fract_f32 %s, %s" % (t1, t1))
    A.e("v_cos_f32 %s, %s" % (dre, t1))
    A.e("v_sin_f32 %s, %s" % (dim, t1))
    A.e("s_nop 0")
    A.e("v_mul_f32 %s, %s, %s" % (dre, dre, t0))
    A.e("v_mul_f32 %s, %s, %s" % (dim, dim, t0))


def cfma_ops(dr, di, mr, mi, xr, xi, ar, ai):
    return ["v_fma_f32 %s, %s, %s, %s" % (dr, mr, xr, ar),
            "v_fma_f32 %s, %s, %s, %s" % (di, mr, xi, ai),
            "v_fma_f32 %s, -%s, %s, %s" % (dr, mi, xi, dr),
            "v_fma_f32 %s, %s, %s, %s" % (di, mi, xr, di)]

def cfma(A, *args):
    for x in cfma_ops(*args):
        A.e(x)

LR, LI, NLI = "v16", "v17", "v5"
L16R, L16I, L128R, L128I, L256R, L256I = "v18", "v19", "v20", "v21", "v22", "v23"
CR, CI, PR, PI = "v2", "v3", "v10", "v11"
ER, EI, SR, SI = "v56", "v57", "v58", "v59"


def k1_S_prologue(A):
    A.vm, A.lg = [], []
    A.lab("L_k1_Spro")
    A.e("s_lshl_b32 s6, s5, 6")
    A.e("v_lshlrev_b32 v4, 1, v8")
    A.e("v_add_u32 v4, s6, v4")
    A.e("s_lshl_b32 s6, s5, 7")
    A.e("s_add_u32 s6, s6, 0x%x" % EP_OFF)
    A.e("v_mov_b32 v55, 0")
    if PAR["cpf"]:
        A.c("pull the code of both launches into this XCD's L2: 4 lines per wave")
        A.e("s_getpc_b64 s[44:45]")
        A.lab("L_k1_pc")
        A.e("s_mov_b32 s46, L_code_end - L_k1_pc")
        A.e("s_mov_b32 s47, 0x20000")
        A.e("s_lshr_b32 s9, s2, 3")
        A.e("s_lshl_b32 s9, s9, 2")
        A.e("s_add_u32 s9, s9, s7")
        A.e("s_lshl_b32 s9, s9, 9")
        A.e("v_lshlrev_b32 v53, 7, v1")
        A.e("s_mov_b64 exec, 15")
        A.vmi("par", "buffer_load_dword v52, v53, s[44:47], s9 offen")
        A.e("s_mov_b64 exec, -1")
    A.e("s_waitcnt lgkmcnt(0)")
    A.vmi("par", "global_load_ushort v60, v4, %s" % s(sLRE, 2))
    A.vmi("par", "global_load_ushort v61, v4, %s" % s(sLIM, 2))
    A.vmi("par", "global_load_ushort v62, v4, %s" % s(sLDT, 2))
    srd(A, rEP, sWS, 4, "s6")
    A.vmi("par", "buffer_load_dword v54, v55, %s, 0 offen sc1" % s(rEP, 4))
    A.e("s_lshl_b32 s6, s4, 7")
    A.e("s_add_u32 s6, s6, 0x%x" % EPR_OFF)
    srd(A, rG, sWS, FL_OFF - EPR_OFF + 64, "s6")
    A.vmi("par", "buffer_load_dword v56, v55, %s, 0 offen sc1" % s(rG, 4))
    k1_common_late(A)
    A.e("s_lshl_b32 s6, s5, 13")
    A.e("s_add_u32 s6, s6, 0x%x" % E_OFF)
    srd(A, rE, sWS, 8192, "s6")
    srd(A, rBRE, 26, 524288)
    srd(A, rBIM, 28, 524288)
    A.e("s_cmp_ge_u32 s5, 15")
    A.e("s_cselect_b32 s6, 0x%x, 0" % OOB)
    A.e("s_add_u32 s82, s82, 65536")
    A.e("s_add_u32 s82, s82, s6")
    A.e("v_lshlrev_b32 v4, 3, v0")
    A.e("v_add_u32 v4, %d, v4" % (MISC + 2048))
    A.e("v_mov_b32 v48, 0")
    A.e("v_mov_b32 v49, 0")
    A.e("ds_write_b64 v4, v[48:49]")
    A.e("s_lshl_b32 s6, s7, 1")
    A.e("v_add_u32 v63, s6, v9")
    A.e("v_sub_u32 v4, 7, v63")
    A.e("v_lshlrev_b32 v4, 8, v4")
    A.e("v_lshl_add_u32 v4, v8, 3, v4")
    A.e("v_add_u32 v4, %d, v4" % MISC)
    A.e("v_lshlrev_b32 v63, 4, v63")
    A.e("v_cvt_f32_u32 v63, v63")
    A.vmw("par", " lgkmcnt(0)")
    A.e("v_readfirstlane_b32 s14, v54")
    A.e("s_add_u32 s14, s14, 1")
    A.e("s_bitset1_b32 s14, 31")
    A.e("v_readfirstlane_b32 s86, v56")
    A.e("s_add_u32 s86, s86, 1")
    A.e("s_bitset1_b32 s86, 31")
    A.e("v_lshlrev_b32 v60, 16, v60")
    A.e("v_lshlrev_b32 v61, 16, v61")
    A.e("v_lshlrev_b32 v62, 16, v62")
    A.e("v_mul_f32 v62, 0x%x, v62" % f2u(LOG2E))
    A.e("v_exp_f32 v62, v62")
    A.e("s_nop 0")
    A.e("v_cvt_pk_bf16_f32 v62, v62, v62")
    A.e("v_and_b32 v62, 0xffff0000, v62")
    A.e("v_mul_f32 v50, v62, v60")
    A.e("v_mul_f32 v51, v62, v61")
    A.e("v_mul_f32 v50, 0x%x, v50" % f2u(LOG2E))
    A.e("v_mul_f32 v51, 0x%x, v51" % f2u(INV2PI))
    cpow(A, 1.0, LR, LI, "v52", "v53", "v50", "v51")
    cpow(A, 16.0, L16R, L16I, "v52", "v53", "v50", "v51")
    cpow(A, 128.0, L128R, L128I, "v52", "v53", "v50", "v51")
    cpow(A, 256.0, L256R, L256I, "v52", "v53", "v50", "v51")
    cpow(A, "v63", PR, PI, "v52", "v53", "v50", "v51")
    A.e("v_sub_f32 %s, 0, %s" % (NLI, LI))
    A.e("v_mul_f32 v52, v60, v60")
    A.e("v_fmac_f32 v52, v61, v61")
    A.e("v_rcp_f32 v52, v52")
    A.e("v_add_f32 v53, -1.0, %s" % LR)
    A.e("v_mul_f32 %s, v53, v60" % CR)
    A.e("v_fmac_f32 %s, %s, v61" % (CR, LI))
    A.e("v_mul_f32 %s, %s, v60" % (CI, LI))
    A.e("v_fma_f32 %s, -v53, v61, %s" % (CI, CI))
    A.e("v_add_f32 v52, v52, v52")
    A.e("v_mul_f32 %s, %s, v52" % (CR, CR))
    A.e("v_mul_f32 %s, %s, v52" % (CI, CI))
    A.e("s_bitcmp1_b32 s4, 0")
    A.e("s_cbranch_scc1 L_k1_Sb")
    A.e("s_branch L_k1_Sa")


def k1_S(A, ORD, X):
    A.vm, A.lg = [], []
    A.lab("L_k1_S" + X)
    RE, IM, ACC, FB = 64, 80, 96, 32
    NT = PAR["nt"]
    tiles = [0, 1]
    lastP = max(n for n in range(16) if ORD[n][0] == "P")
    assert lastP + 3 < 16 - NT + 1 and lastP + 2 < PAR["estep"]
    S = Stream(A, mk_items(ORD, 2, True), 4, PAR["sd"], PAR["sfill"])

    def er(m):
        b = 24 + 2 * m if m < 4 else 48 + 2 * (m - 4)
        return v(b), v(b + 1)

    def waddr(n):
        return (14, 15) if n <= 16 - NT else ((24, 25), (26, 27))[n - (17 - NT)]

    def endstate_ops():
        o = []
        cur = (v(RE), v(IM))
        tmp = [("v48", "v49"), ("v50", "v51")]
        for r in range(1, 16):
            d = (ER, EI) if r == 15 else tmp[r & 1]
            o += cfma_ops(d[0], d[1], LR, LI, cur[0], cur[1], v(RE + r), v(IM + r))
            cur = d
        o.append(lambda: A.lgi("ew", "ds_write_b64 v4, v[56:57]"))
        return o

    def publish():
        A.e("s_cmp_lg_u32 s7, 3")
        A.e("s_cbranch_scc1 L_k1_S_nopub" + X)
        cfma(A, "v52", "v54", L16R, L16I, SR, SI, ER, EI)
        A.e("v_mov_b32 v53, s14")
        A.e("v_mov_b32 v55, s14")
        A.e("s_sub_u32 s6, 15, s4")
        A.e("s_lshl_b32 s6, s6, 9")
        A.e("v_lshlrev_b32 v60, 4, v8")
        A.e("s_mov_b32 exec_lo, 0")
        A.e("buffer_store_dwordx4 v[52:55], v60, %s, s6 offen sc1" % s(rE, 4))
        A.e("s_mov_b64 exec, -1")
        A.lab("L_k1_S_nopub" + X)

    def prefix_ops():
        o = [lambda: A.lgw("er")]
        cur = er(6)
        tmp = [("v54", "v55"), ("v60", "v61")]
        for m in range(5, -1, -1):
            d = (SR, SI) if m == 0 else tmp[m & 1]
            o += cfma_ops(d[0], d[1], L16R, L16I, cur[0], cur[1], er(m)[0], er(m)[1])
            cur = d
        o.append(publish)
        return o

    def coef_ops():
        o = []
        for r in range(16):
            t = "v%d" % (48 + (r & 3))
            o.append("v_mul_f32 %s, %s, %s" % (t, CI, v(RE + r)))
            o.append("v_mul_f32 %s, %s, %s" % (v(RE + r), CR, v(RE + r)))
            o.append("v_fma_f32 %s, -%s, %s, %s" % (v(RE + r), CI, v(IM + r), v(RE + r)))
            o.append("v_fma_f32 %s, %s, %s, %s" % (v(IM + r), CR, v(IM + r), t))
        return o

    def e_issue():
        for m in range(8):
            A.e("buffer_load_dwordx4 %s, %s, %s, 0 offen offset:%d sc1" % (a(4 * m, 4), "v61" if m >= 4 else "v60", s(rE, 4), 1024 * (m & 3)))

    def e_loads():
        A.e("s_sub_u32 s6, 16, s4")
        A.e("s_lshl_b32 s6, s6, 9")
        A.e("v_lshlrev_b32 v60, 4, v8")
        A.e("v_lshl_add_u32 v60, v9, 9, v60")
        A.e("v_add_u32 v60, s6, v60")
        A.e("v_add_u32 v61, 4096, v60")
        e_issue()
        A.vm = []
        A.e("v_sub_u32 v62, s4, v9")
        A.e("v_add_u32 v62, 1, v62")
        A.e("v_and_b32 v62, -2, v62")
        if PAR["pf"]:
            A.c("pull this XCD's share of C_re / C_im into L2 for the second launch")
            A.e("s_and_b32 s13, s2, 1")
            A.e("s_lshl_b32 s13, s13, 18")
            A.e("s_lshr_b32 s6, s2, 3")
            A.e("s_lshl_b32 s6, s6, 13")
            A.e("s_add_u32 s13, s13, s6")
            A.e("s_lshl_b32 s6, s7, 11")
            A.e("s_add_u32 s13, s13, s6")
            A.e("v_lshlrev_b32 v63, 7, v1")
            A.e("s_mov_b64 exec, 0xffff")
            A.vmi("x", "buffer_load_dword v52, v63, %s, s13 offen" % s(rBRE, 4))
            A.vmi("x", "buffer_load_dword v53, v63, %s, s13 offen" % s(rBIM, 4))
            A.e("s_mov_b64 exec, -1")

    def e_check(nyoung):
        A.e("s_mov_b32 s13, 0")
        A.e("s_waitcnt vmcnt(%d)" % nyoung)
        A.lab("L_k1_S_poll" + X)
        A.e("v_mov_b32 v63, 0")
        for m in range(8):
            A.e("v_accvgpr_read_b32 %s, %s" % (v(24 + m), a(4 * m + 1)))
            A.e("v_accvgpr_read_b32 %s, %s" % (v(32 + m), a(4 * m + 3)))
        for g0 in range(0, 16, 4):
            for q in range(4):
                A.e("v_cmp_eq_u32 s[%d:%d], s14, %s" % (18 + 2 * q, 19 + 2 * q, v(24 + g0 + q)))
            for q in range(4):
                A.e("v_addc_co_u32 v63, vcc, 0, v63, s[%d:%d]" % (18 + 2 * q, 19 + 2 * q))
        A.e("v_cmp_ne_u32 vcc, v62, v63")
        A.e("s_cbranch_vccz L_k1_S_ready" + X)
        A.e("s_sleep 1")
        e_issue()
        A.e("s_add_u32 s13, s13, 1")
        A.e("s_cmp_lt_u32 s13, 0x20000")
        A.e("s_waitcnt vmcnt(0)")
        A.e("s_cbranch_scc1 L_k1_S_poll" + X)
        A.lab("L_k1_S_ready" + X)
        for m in range(8):
            A.e("v_accvgpr_read_b32 %s, %s" % (v(24 + 2 * m), a(4 * m)))
            A.e("v_accvgpr_read_b32 %s, %s" % (v(25 + 2 * m), a(4 * m + 2)))
        A.e("s_lshl_b32 s6, s7, 4")
        A.e("s_add_u32 s6, s6, s4")
        A.e("s_cmp_lg_u32 s6, 15")
        A.e("s_cbranch_scc1 L_k1_S_noep" + X)
        A.e("v_mov_b32 v62, s14")
        A.e("v_mov_b32 v63, 0")
        A.e("s_mov_b64 exec, 1")
        A.e("buffer_store_dword v62, v63, %s, 0 offen sc1" % s(rEP, 4))
        A.e("s_mov_b64 exec, -1")
        A.lab("L_k1_S_noep" + X)

    def carry_and_scan():
        e2 = lambda m: (v(24 + 2 * m), v(25 + 2 * m))
        cur = e2(7)
        tmp = [("v60", "v61"), ("v40", "v41")]
        for m in range(6, -1, -1):
            d = tmp[m & 1]
            cfma(A, d[0], d[1], L256R, L256I, cur[0], cur[1], e2(m)[0], e2(m)[1])
            cur = d
        A.e("v_mov_b32 v40, v60")
        A.e("v_mov_b32 v41, v61")
        A.e("s_nop 1")
        A.e("v_permlane32_swap_b32 v60, v40")
        A.e("v_permlane32_swap_b32 v61, v41")
        A.e("s_nop 1")
        cfma(A, "v48", "v49", L128R, L128I, "v40", "v41", "v60", "v61")
        cfma(A, "v50", "v51", PR, PI, "v48", "v49", SR, SI)
        A.e("v_mul_f32 v48, %s, v50" % CR)
        A.e("v_mul_f32 v49, %s, v51" % CR)
        A.e("v_fma_f32 v48, -%s, v51, v48" % CI)
        A.e("v_fmac_f32 v49, %s, v50" % CI)
        cur = ("v48", "v49")
        for r in range(16):
            A.e("v_fmac_f32 %s, %s, %s" % (v(RE + r), LR, cur[0]))
            A.e("v_fmac_f32 %s, %s, %s" % (v(IM + r), LR, cur[1]))
            A.e("v_fmac_f32 %s, %s, %s" % (v(RE + r), NLI, cur[1]))
            A.e("v_fmac_f32 %s, %s, %s" % (v(IM + r), LI, cur[0]))
            cur = (v(RE + r), v(IM + r))
        for q in range(8):
            A.e("v_cvt_pk_bf16_f32 %s, %s, %s" % (v(32 + q), v(RE + 2 * q), v(RE + 2 * q + 1)))
        for q in range(8):
            A.e("v_cvt_pk_bf16_f32 %s, -%s, -%s" % (v(40 + q), v(IM + 2 * q), v(IM + 2 * q + 1)))
        A.e("ds_write_b128 v54, v[32:35]")
        A.e("ds_write_b128 v54, v[36:39] offset:16")
        A.e("ds_write_b128 v54, v[40:43] offset:2048")
        A.e("ds_write_b128 v54, v[44:47] offset:2064")
        A.e("s_lshl_b32 s6, s5, 11")
        A.e("s_add_u32 s6, s6, s81")
        A.e("s_add_u32 s13, s6, 32768")
        A.e("s_waitcnt lgkmcnt(0)")
        for ks in range(4):
            for nn in range(2):
                A.e("ds_read_b64_tr_b16 %s, v55 offset:%d" % (v(64 + 4 * ks + 2 * nn, 2), ks * 1024 + nn * 256))
        for ks in range(4):
            A.e("s_waitcnt lgkmcnt(%d)" % (6 - 2 * ks))
            A.e("buffer_store_dwordx4 %s, v6, %s, s%d offen offset:%d%s" % (v(64 + 4 * ks, 4), s(rAS, 4), 13 if ks >= 2 else 6, 1024 * (ks & 1), stmod()))

    def tr_addr_ops():
        base = 4 * SLOT
        return ["v_lshlrev_b32 v54, 6, v8", "v_lshl_add_u32 v54, v9, 5, v54", "v_add_u32 v54, s8, v54", "v_add_u32 v54, %d, v54" % base,
                "v_bfe_u32 v55, v1, 2, 2", "v_lshlrev_b32 v55, 6, v55", "v_lshl_add_u32 v55, v9, 9, v55",
                "v_and_b32 v50, 1, v1", "v_lshl_add_u32 v55, v50, 5, v55", "v_bfe_u32 v50, v1, 4, 1", "v_lshl_add_u32 v55, v50, 4, v55",
                "v_bfe_u32 v50, v1, 1, 1", "v_lshl_add_u32 v55, v50, 3, v55", "v_add_u32 v55, s8, v55", "v_add_u32 v55, %d, v55" % base]

    def pre(b):
        kind, c = ORD[b]
        slot = (b % NSLOT) * SLOT
        if b == lastP + 2:
            S.flush()
            A.lgw("ew")
        if b == 17 - NT:
            S.flush()
        if kind == "P":
            A.e("v_add_u32 v28, %d, v7" % slot)
            A.e("v_xor_b32 v29, 32, v28")
            A.e("v_xor_b32 v30, 64, v28")
            A.e("v_xor_b32 v31, 0x60, v28")
            for q in range(4):
                A.e("v_add_u32 %s, s8, %s" % (v(24 + q), v(28 + q)))
        else:
            A.e("v_add_u32 v%d, %d, v12" % (waddr(b)[0], slot))
            A.e("v_add_u32 v%d, %d, v13" % (waddr(b)[1], slot))

    def post(b):
        A.fs(b)
        if b == lastP + 2:
            for m in range(7):
                A.lgi("er", "ds_read_b64 v[%s:%s], v4 offset:%d" % (er(m)[0][1:], er(m)[1][1:], 256 * (m + 1)))
            S.fill += prefix_ops() + coef_ops() + tr_addr_ops()
        if b == PAR["estep"]:
            S.fill.append(e_loads)

    def read(it, sl, tag):
        n, ss, ti = it
        kind, c = ORD[n]
        if kind == "P":
            if ti == 0:
                A.lgi(tag, "ds_read_b128 %s, %s" % (a(16 * c + 4 * ss, 4), v(24 + ss)))
            A.lgi(tag, "ds_read_b128 %s, %s offset:%d" % (v(FB + 4 * sl, 4), v(28 + ss), 16384 + 4096 * ti))
        else:
            T = tiles[ti]
            for nn in range(2):
                A.lgi(tag, "ds_read_b64_tr_b16 %s, v%d offset:%d" % (v(FB + 4 * sl + 2 * nn, 2), waddr(n)[T & 1],
                                                                    ss * 6144 + (T >> 1) * 1024 + nn * 256))

    def mfma(it, sl):
        n, ss, ti = it
        kind, c = ORD[n]
        first = (c == 0 and ss == 0)
        if kind == "P":
            d = (RE, IM)[ti]
            A.e("v_mfma_f32_32x32x16_bf16 %s, %s, %s, %s" % (v(d, 16), a(16 * c + 4 * ss, 4), v(FB + 4 * sl, 4), "0" if first else v(d, 16)))
        else:
            d = ACC + 16 * ti
            A.e("v_mfma_f32_32x32x16_bf16 %s, %s, %s, %s" % (v(d, 16), v(FB + 4 * sl, 4), a(16 * c + 4 * ss, 4), "0" if first else v(d, 16)))

    nst = [0]
    def after(it, mp):
        n, ss, ti = it
        if n == lastP and ss == 3 and ti == 1:
            S.fill.append(("dist", S.ninstr()))
            S.fill += endstate_ops()
        if n == 15 and ss == 3:
            S.fill.append(("dist", S.ninstr()))
            S.fill += swiglu_ops(ACC + 16 * ti, 1024 * ti)

    S.pre, S.post, S.read, S.mfma, S.after = pre, post, read, mfma, after
    S.run()
    A.fs(16)
    S.flush()
    if X == "a":
        A.e("s_branch L_k1_Stail")
        return
    A.lab("L_k1_Stail")
    A.fs(17)
    e_check(len(A.vm) + 2)
    A.fs(18)
    carry_and_scan()


P2_GROUPS = [("W", 0, 8), ("W", 8, 8), ("W", 16, 6), ("C", 0, 8), ("C", 8, 8)]
P2_SEQ = [(k, b, n, m) for (k, b, n) in P2_GROUPS for m in range(n)]
NA, NW = 6, 14
WUNITS = [18, 19] + list(range(12))
def AU(n): return (12 + n % NA) * 8192
def WU(n): return WUNITS[n % NW] * 8192


def p2_load(A):
    N = len(P2_SEQ)
    rA, rCRE, rCIM, rW2 = 44, 48, 52, 56
    A.lab("L_p2_load")
    A.vm, A.lg = ["st"], []
    A.fs(17)
    A.e("s_lshr_b32 s10, s5, 1")
    A.e("s_and_b32 s11, s5, 1")
    A.e("s_and_b32 s13, s10, 3")
    A.e("s_lshl_b32 s13, s13, 1")
    if PAR["urot"]:
        A.e("s_add_u32 s13, s13, s11")
        A.e("s_lshl_b32 s6, s4, 1")
        A.e("s_add_u32 s13, s13, s6")
        A.e("s_and_b32 s13, s13, 7")
    A.e("s_sub_u32 s14, s13, 6")
    A.e("s_cmp_ge_u32 s13, 6")
    A.e("s_cselect_b32 s14, s14, s13")
    A.e("v_bfe_u32 v10, v1, 4, 1")
    A.e("v_lshlrev_b32 v10, 2, v10")
    A.e("v_and_b32 v11, 7, v1")
    A.e("v_xor_b32 v10, v10, v11")
    A.e("v_lshlrev_b32 v10, 4, v10")
    A.e("v_lshrrev_b32 v12, 3, v1")
    A.e("v_lshl_add_u32 v3, v12, 10, v10")
    A.e("s_lshl_b32 s6, s7, 14")
    A.e("s_lshl_b32 s12, s10, 7")
    A.e("s_add_u32 s12, s12, s6")
    A.e("v_add_u32 v3, s12, v3")
    A.e("v_add_u32 v7, 8192, v3")
    A.e("s_lshl_b32 s9, s7, 11")
    srd(A, rW2, sW2, 1376 * 1024)

    def idx(n, reg):
        kind, base, ln, m = P2_SEQ[n]
        if ln == 8:
            A.e("s_add_u32 s%d, s13, %d" % (reg, m))
            A.e("s_and_b32 s%d, s%d, 7" % (reg, reg))
        else:
            A.e("s_add_u32 s%d, s14, %d" % (reg, m))
            A.e("s_sub_u32 s6, s%d, 6" % reg)
            A.e("s_cmp_ge_u32 s%d, 6" % reg)
            A.e("s_cselect_b32 s%d, s6, s%d" % (reg, reg))

    def dma_w(n):
        kind, base, ln, m = P2_SEQ[n]
        idx(n, 12)
        if kind == "W":
            A.e("s_lshl_b32 s12, s12, 16")
            if base:
                A.e("s_add_u32 s12, s12, %d" % (base * 65536))
            r_, va, vb = rW2, "v3", "v7"
        else:
            A.e("s_lshl_b32 s12, s12, 7")
            r_, va, vb = (rCIM if base else rCRE), "v4", "v5"
        A.e("s_add_u32 m0, s9, %d" % WU(n))
        A.e("s_nop 0")
        A.vmi("w%d" % n, "buffer_load_dwordx4 %s, %s, s12 offen lds" % (va, s(r_, 4)))
        A.e("s_add_u32 m0, s9, %d" % (WU(n) + 1024))
        A.e("s_nop 0")
        A.vmi("w%d" % n, "buffer_load_dwordx4 %s, %s, s12 offen lds" % (vb, s(r_, 4)))

    def dma_a(n):
        kind, base, ln, m = P2_SEQ[n]
        idx(n, 12)
        A.e("s_lshl_b32 s12, s12, 12")
        off = (64 + 4 * base) * 1024 if kind == "W" else 4 * base * 1024
        if off:
            A.e("s_add_u32 s12, s12, %d" % off)
        A.e("s_add_u32 m0, s8, %d" % AU(n))
        A.e("s_nop 0")
        A.vmi("a%d" % n, "buffer_load_dwordx4 v2, %s, s12 offen sc1 lds" % s(rA, 4))
        A.vmi("a%d" % n, "buffer_load_dwordx4 v2, %s, s12 offen offset:1024 sc1 lds" % s(rA, 4))

    for n in range(PAR["pre1"]):
        dma_w(n)
    A.e("v_lshrrev_b32 v10, 4, v1")
    A.e("v_xor_b32 v10, v10, v11")
    A.e("v_lshlrev_b32 v10, 4, v10")
    A.e("v_lshl_add_u32 v13, v12, 10, v10")
    A.e("s_lshl_b32 s6, s7, 14")
    A.e("s_lshl_b32 s12, s10, 16")
    A.e("s_add_u32 s12, s12, s6")
    A.e("v_add_u32 v13, s12, v13")
    A.e("v_xor_b32 v5, 64, v13")
    A.e("v_add_u32 v5, 8192, v5")
    srd(A, rCRE, 26, 524288)
    srd(A, rCIM, 28, 524288)
    A.e("s_and_b32 s12, s7, 1")
    A.e("s_lshr_b32 s15, s7, 1")
    A.e("s_lshl_b32 s15, s15, 11")
    A.e("v_add_u32 v2, s15, v6")
    A.e("s_lshl_b32 s8, s12, 12")
    A.e("s_add_u32 s8, s8, s15")
    A.e("s_lshl_b32 s6, s4, 1")
    A.e("s_add_u32 s6, s6, s11")
    A.e("s_lshl_b32 s6, s6, 1")
    A.e("s_add_u32 s6, s6, s12")
    A.e("s_mul_i32 s6, s6, %d" % (NKS * 1024))
    srd(A, rA, sWS, NKS * 1024, "s6")
    A.e("v_and_b32 v14, 15, v1")
    A.e("v_lshlrev_b32 v14, 2, v14")
    A.e("v_add_u32 v14, 0x1000, v14")
    A.vmw("st")
    A.e("v_mov_b32 v4, v13")
    A.e("s_barrier")
    A.fs(18)
    for n in range(PAR["pre1"], NW):
        if n == NW - PAR["pollat"]:
            A.vmi("poll", "buffer_load_dword v15, v14, %s, 0 offen sc1" % s(rEP, 4))
        dma_w(n)
    A.e("s_mov_b32 s15, 0")
    A.vmw("poll")
    A.lab("L_p2_poll")
    A.e("v_cmp_ne_u32 vcc, s86, v15")
    A.e("s_cbranch_vccz L_p2_go")
    A.e("s_sleep 2")
    A.e("buffer_load_dword v15, v14, %s, 0 offen sc1" % s(rEP, 4))
    A.e("s_add_u32 s15, s15, 1")
    A.e("s_cmp_lt_u32 s15, 0x20000")
    A.e("s_waitcnt vmcnt(0)")
    A.e("s_cbranch_scc1 L_p2_poll")
    A.lab("L_p2_go")
    A.fs(19)
    ALA = PAR["ala"]
    assert ALA <= NA - 1
    A.e("s_lshl_b32 s6, s5, 2")
    A.e("s_add_u32 s6, s6, s7")
    A.e("s_cmp_lg_u32 s6, 0")
    A.e("s_cbranch_scc1 L_p2_noep")
    A.e("v_mov_b32 v15, s86")
    A.e("s_mov_b64 exec, 1")
    A.e("buffer_store_dword v15, v19, %s, 0 offen sc1" % s(rEP, 4))
    A.e("s_mov_b64 exec, -1")
    A.lab("L_p2_noep")
    for n in range(ALA + 1):
        dma_a(n)
    wn = NW
    for n in range(N):
        A.vmw("w%d" % n)
        A.vmw("a%d" % n)
        A.e("s_barrier")
        A.fs(20 + n)
        if n >= 1 and n + ALA < N:
            dma_a(n + ALA)
        if n >= PAR["wstart"] and wn < N:
            assert wn - NW <= n - 1 and wn > n + 1
            dma_w(wn)
            wn += 1
    assert wn == N
    A.fs_end()
    A.e("s_endpgm")


def p2_comp(A):
    N = len(P2_SEQ)
    rXs, rO, rGs = 44, 48, 52
    ACCB, ACCA, GV, XV = 32, 48, 64, 96
    A.vm, A.lg = [], []
    A.fs(19)
    A.e("s_and_b32 s9, s7, 1")
    A.e("s_lshr_b32 s10, s7, 1")
    A.e("s_lshl_b32 s12, s4, 1")
    A.e("s_and_b32 s6, s5, 1")
    A.e("s_add_u32 s12, s12, s6")
    A.e("s_lshl_b32 s12, s12, 1")
    A.e("s_add_u32 s12, s12, s9")
    A.e("s_lshl_b32 s12, s12, 5")
    A.e("s_and_b32 s15, s5, 14")
    A.e("s_add_u32 s15, s15, s10")
    A.e("s_lshl_b32 s15, s15, 5")
    A.e("v_lshlrev_b32 v20, 4, v9")
    A.e("v_add_u32 v20, s12, v20")
    A.e("v_add_u32 v21, s15, v8")
    A.e("v_lshlrev_b32 v22, 3, v20")
    A.e("v_lshlrev_b32 v23, 1, v21")
    A.e("v_lshl_add_u32 v24, v20, 10, v23")
    A.e("v_lshlrev_b32 v25, 1, v24")
    A.e("v_add_u32 v26, 4096, v24")
    A.e("v_add_u32 v27, 8192, v24")
    A.e("v_add_u32 v28, 12288, v24")
    srd(A, rXs, sX, 2048 * 1024)
    A.e("s_lshl_b32 s6, s5, 2")
    A.e("s_add_u32 s6, s6, 0x1000")
    A.e("v_mov_b32 v30, s86")
    A.e("v_mov_b32 v31, 0")
    A.e("s_waitcnt vmcnt(0)")
    A.e("s_barrier")
    A.e("s_cmp_lg_u32 s7, 0")
    A.e("s_cbranch_scc1 L_p2_noflag")
    A.e("s_mov_b64 exec, 1")
    A.e("buffer_store_dword v30, v31, %s, s6 offen sc1" % s(rG, 4))
    A.e("s_mov_b64 exec, -1")
    A.lab("L_p2_noflag")
    for r in range(16):
        A.e("buffer_load_ushort %s, %s, %s, 0 offen offset:%d" % (v(XV + r), ("v24", "v26", "v27", "v28")[r >> 2], s(rXs, 4), 1024 * (r & 3)))
    A.e("global_load_ushort v29, v23, s[40:41]")
    srd(A, rGs, sWS, 16384, "0x%x" % G_OFF)
    srd(A, rO, 84, 2048 * 2048)
    A.e("s_lshl_b32 s6, s9, 12")
    A.e("v_add_u32 v7, s6, v6")
    A.e("v_bfe_u32 v10, v1, 1, 3")
    A.e("v_xor_b32 v10, v10, v9")
    A.e("v_lshlrev_b32 v10, 4, v10")
    A.e("v_lshl_add_u32 v12, v8, 7, v10")
    A.e("s_lshl_b32 s6, s10, 12")
    A.e("v_add_u32 v12, s6, v12")
    A.e("v_bfe_u32 v10, v1, 2, 2")
    A.e("v_lshlrev_b32 v13, 7, v10")
    A.e("v_lshl_add_u32 v13, v9, 9, v13")
    A.e("v_bfe_u32 v10, v1, 4, 1")
    A.e("v_lshl_add_u32 v13, v10, 5, v13")
    A.e("v_and_b32 v10, 3, v1")
    A.e("v_lshl_add_u32 v13, v10, 3, v13")
    A.e("v_bfe_u32 v10, v1, 3, 1")
    A.e("v_xor_b32 v10, s10, v10")
    A.e("v_lshl_add_u32 v13, v10, 6, v13")
    A.e("v_add_u32 v14, %d, v7" % AU(0))

    def addr(n):
        if P2_SEQ[n][0] == "W":
            A.e("v_add_u32 v15, %d, v13" % WU(n))
        else:
            A.e("v_add_u32 v15, %d, v12" % WU(n))
            A.e("v_xor_b32 v16, 32, v15")
            A.e("v_xor_b32 v17, 64, v15")
            A.e("v_xor_b32 v18, 0x60, v15")

    def reads(n, ss):
        fb = 32 * (n & 1)
        A.lgi("r", "ds_read_b128 %s, v14 offset:%d" % (a(fb + 4 * ss, 4), AU(n) - AU(0) + 1024 * ss))
        if P2_SEQ[n][0] == "W":
            for nn in range(2):
                A.lgi("r", "ds_read_b64_tr_b16 %s, v15 offset:%d" % (a(fb + 16 + 4 * ss + 2 * nn, 2), 2048 * ss + 1024 * nn))
        else:
            A.lgi("r", "ds_read_b128 %s, %s" % (a(fb + 16 + 4 * ss, 4), v(15 + ss)))

    def mfma(n, ss):
        kind, base, ln, m = P2_SEQ[n]
        fb = 32 * (n & 1)
        acc = ACCB if kind == "W" else ACCA
        first = (base == 0 and m == 0 and ss == 0)
        A.e("v_mfma_f32_32x32x16_bf16 %s, %s, %s, %s" % (v(acc, 16), a(fb + 4 * ss, 4), a(fb + 16 + 4 * ss, 4),
                                                        "0" if first else v(acc, 16)))

    def mid(q):
        if q == 0:
            A.e("s_waitcnt vmcnt(0)")
            A.e("v_lshlrev_b32 v29, 16, v29")
        r0, r1 = 2 * q, 2 * q + 1
        A.e("v_cvt_pk_bf16_f32 v30, %s, %s" % (v(ACCB + r0), v(ACCB + r1)))
        A.e("v_lshlrev_b32 %s, 16, %s" % (v(XV + r0), v(XV + r0)))
        A.e("v_lshlrev_b32 %s, 16, %s" % (v(XV + r1), v(XV + r1)))
        A.e("v_lshlrev_b32 v31, 16, v30")
        A.e("v_and_b32 v30, 0xffff0000, v30")
        A.e("v_mul_f32 %s, %s, v29" % (v(XV + r0), v(XV + r0)))
        A.e("v_mul_f32 %s, %s, v29" % (v(XV + r1), v(XV + r1)))
        A.e("v_mul_f32 v31, %s, v31" % v(GV + 2 * r0 + 1))
        A.e("v_mul_f32 v30, %s, v30" % v(GV + 2 * r1 + 1))
        A.e("v_cvt_pk_bf16_f32 %s, %s, %s" % (v(XV + r0), v(XV + r0), v(XV + r1)))
        A.e("v_cvt_pk_bf16_f32 v30, v31, v30")
        A.e("v_and_b32 %s, 0xffff0000, %s" % (v(XV + r1), v(XV + r0)))
        A.e("v_lshlrev_b32 %s, 16, %s" % (v(XV + r0), v(XV + r0)))
        A.e("v_lshlrev_b32 %s, 16, v30" % v(ACCB + r0))
        A.e("v_and_b32 %s, 0xffff0000, v30" % v(ACCB + r1))

    for n in range(N):
        addr(n)
        A.lgw0()
        A.e("s_barrier")
        for ss in range(4):
            if n >= 1 and ss > 0:
                mfma(n - 1, ss - 1)
            reads(n, ss)
        if n >= 1:
            mfma(n - 1, 3)
        if n == 0:
            for q in range(8):
                A.e("buffer_load_dwordx4 %s, v22, %s, 0 offen offset:%d sc1" % (v(GV + 4 * q, 4), s(rGs, 4), 16 * q))
        if 24 <= n < 32:
            mid(n - 24)
    A.lgw0()
    for ss in range(4):
        mfma(N - 1, ss)
    A.fs(59)
    A.e("s_nop 7")
    A.e("s_nop 3")
    for r in range(16):
        A.e("v_add_f32 %s, %s, %s" % (v(ACCA + r), v(ACCA + r), v(XV + r)))
    for r in range(16):
        A.e("v_fmac_f32 %s, %s, %s" % (v(ACCB + r), v(GV + 2 * r), v(ACCA + r)))
        A.e("s_movk_i32 s6, %d" % (4096 * (r >> 1)))
        A.e("buffer_store_dword %s, v25, %s, s6 offen offset:%d%s" % (v(ACCB + r), s(rO, 4), 2048 * (r & 1), stmod("o")))
    A.fs(60)
    A.fs_end()
    A.dbg_end()
    A.e("s_endpgm")


def gen_all(A):
    K = NAME + "_kernel"
    A.L.append(".globl %s\n.p2align 8\n.type %s,@function\n%s:" % (K, K, K))
    k1_prologue(A)
    vm0 = k1_F_prologue(A)
    k1_S_prologue(A)
    k1_F(A, mkord(PAR["ord"]), "a", vm0)
    k1_S(A, mkord(PAR["ord"]), "a")
    k1_F(A, mkord(PAR["ord2"]), "b", vm0)
    k1_S(A, mkord(PAR["ord2"]), "b")
    p2_comp(A)
    p2_load(A)
    A.lab("L_k1_end")
    A.e("s_endpgm")
    A.lab("L_code_end")

def kd(name, nv, acc, ns=102):
    return """.amdhsa_kernel %s
  .amdhsa_next_free_vgpr %d
  .amdhsa_next_free_sgpr %d
  .amdhsa_accum_offset %d
  .amdhsa_group_segment_fixed_size 0
  .amdhsa_kernarg_size 136
  .amdhsa_user_sgpr_count 2
  .amdhsa_user_sgpr_kernarg_segment_ptr 1
  .amdhsa_system_sgpr_workgroup_id_x 1
.end_amdhsa_kernel
""" % (name, nv, ns, acc)


def main(path):
    ref = open("cdna_kernels/%s.s.ref" % NAME).read().splitlines()
    head = [l for l in ref if l.startswith(";") and "@launch" not in l and "Override launch" not in l and "grid=ceil" not in l]
    head = head[:18]
    A = Asm()
    gen_all(A)
    out = head + [
        "; @launch grid=(256,1,1) block=(512,1,1) lds=%d" % K1_LDS,
        '.amdgcn_target "amdgcn-amd-amdhsa--gfx950"', ".text"] + A.L + [
        '.section .rodata,"a"', ".p2align 6", kd(NAME + "_kernel", 256, 128)]
    open(path, "w").write("\n".join(out))


if __name__ == "__main__":
    if "--stamp" in sys.argv:
        STAMP = True
        sys.argv.remove("--stamp")
    for x in list(sys.argv):
        if x.startswith("-O"):
            OPT.add(x[2:]); sys.argv.remove(x)
        elif x.startswith("-P"):
            kk, vv = x[2:].split("=")
            PAR[kk] = vv if kk.startswith("ord") else int(vv)
            sys.argv.remove(x)
    main(sys.argv[1] if len(sys.argv) > 1 else "cdna_kernels/%s.s" % NAME)
```

```python
import sys, struct

NAME = "gated_mix__ssm_conv_s5__glu_gated_swiglu__prompt"

def f2u(x):
    return struct.unpack("<I", struct.pack("<f", x))[0]

LOG2E = 1.4426950408889634
INV2PI = 0.15915494309189535

NKS = 150
A_BYTES = 64 * NKS * 1024
E_OFF = 0xA00000
G_OFF = 0xA20000
EP_OFF = 0xA30000


EPR_OFF = 0xA31000
FL_OFF = 0xA40000

STAMP = False
OPT = {"asc0", "asc1"}
ST_OFF = 0xB00000

class Asm:
    def __init__(self):
        self.L = []
        self.vm = []
        self.lg = []

    def e(self, s):
        if "nomfma" in OPT and s.startswith("v_mfma"):
            s = "s_nop 0"
        if "nolds" in OPT and s.startswith("ds_read"):
            s = "s_nop 0"
        self.L.append("  " + s)

    def c(self, s):
        pass

    def lab(self, s):
        self.L.append(s + ":")

    def fs(self, n):
        if STAMP:
            self.e("%s s[98:99]" % ("s_memrealtime" if "rt" in OPT else "s_memtime"))
            self.e("s_waitcnt lgkmcnt(0)")
            self.lg = []
            self.e("s_sub_u32 s98, s98, s96")
            self.e("v_writelane_b32 v0, s98, %d" % n)

    def dbg_end(self):
        if "dbg" in OPT:
            self.e("s_waitcnt vmcnt(0)")
            self.e("s_memrealtime s[98:99]")
            self.e("s_memtime s[92:93]")
            self.e("s_load_dwordx2 s[8:9], s[0:1], 120")
            self.e("s_waitcnt lgkmcnt(0)")
            self.e("s_mov_b32 s10, 256")
            self.e("s_mov_b32 s11, 0x20000")
            self.e("s_not_b32 s94, s94")
            self.e("s_sub_u32 s92, s92, s96")
            self.e("v_mov_b32 v2, s94")
            self.e("v_mov_b32 v3, s98")
            self.e("v_mov_b32 v4, s92")
            self.e("v_mov_b32 v1, 0")
            self.e("s_cmp_lg_u32 s7, 0")
            self.e("s_cbranch_scc1 L_dbg_done")
            self.e("s_mov_b64 exec, 1")
            self.e("buffer_atomic_umax v2, v1, s[8:11], 0 offen")
            self.e("buffer_atomic_umax v3, v1, s[8:11], 0 offen offset:4")
            self.e("buffer_atomic_umax v4, v1, s[8:11], 0 offen offset:8")
            self.lab("L_dbg_done")

    def stamp_begin(self):
        if STAMP or "dbg" in OPT:
            self.e("s_memrealtime s[94:95]")
            self.e("%s s[96:97]" % ("s_memrealtime" if "rt" in OPT else "s_memtime"))

    def fs_end(self):
        if STAMP:
            self.e("s_waitcnt vmcnt(0)")
            self.fs(61)
            self.e("s_memrealtime s[98:99]")
            self.e("s_waitcnt lgkmcnt(0)")
            self.e("v_writelane_b32 v0, s94, 62")
            self.e("v_writelane_b32 v0, s98, 63")
            self.e("s_add_u32 s8, s%d, 0x%x" % (sWS, ST_OFF))
            self.e("s_addc_u32 s9, s%d, 0" % (sWS + 1))
            self.e("s_mov_b32 s10, 0x80000")
            self.e("s_mov_b32 s11, 0x20000")
            self.e("s_lshl_b32 s6, s2, 11")
            self.e("s_lshl_b32 s12, s3, 8")
            self.e("s_add_u32 s6, s6, s12")
            self.e("v_lshlrev_b32 v1, 2, v1")
            self.e("buffer_store_dword v0, v1, s[8:11], s6 offen")

    def vmi(self, tag, s, cold=False):
        if cold and "nt" in OPT:
            s = s.replace(" lds", " nt lds") if s.endswith(" lds") else s + " nt"
        self.e(s)
        self.vm.append(tag)
        assert len(self.vm) <= 63, "too many vmem ops in flight"

    def vmw(self, tag, extra=""):
        idx = [i for i, t in enumerate(self.vm) if t == tag]
        if not idx:
            return None
        n = len(self.vm) - 1 - idx[-1]
        self.vm = self.vm[idx[-1] + 1:]
        self.e("s_waitcnt vmcnt(%d)%s" % (n, extra))
        return n

    def lgi(self, tag, s):
        self.e(s)
        self.lg.append(tag)

    def lgw(self, tag):
        idx = [i for i, t in enumerate(self.lg) if t == tag]
        if not idx:
            return
        n = len(self.lg) - 1 - idx[-1]
        self.lg = self.lg[idx[-1] + 1:]
        self.e("s_waitcnt lgkmcnt(%d)" % min(n, 15))

    def lgw0(self):
        if self.lg:
            self.e("s_waitcnt lgkmcnt(0)")
        self.lg = []


def stmod(pre="a"):
    return "".join(" " + m for m in ("sc0", "sc1", "nt") if pre + m in OPT)

def v(a, n=1):
    return "v%d" % a if n == 1 else "v[%d:%d]" % (a, a + n - 1)

def a(a_, n=1):
    return "a%d" % a_ if n == 1 else "a[%d:%d]" % (a_, a_ + n - 1)

def s(a_, n=1):
    return "s%d" % a_ if n == 1 else "s[%d:%d]" % (a_, a_ + n - 1)


def srd(A, d, base, nbytes, addlo=None):
    if addlo is None:
        A.e("s_mov_b32 s%d, s%d" % (d, base))
        A.e("s_mov_b32 s%d, s%d" % (d + 1, base + 1))
    else:
        A.e("s_add_u32 s%d, s%d, %s" % (d, base, addlo))
        A.e("s_addc_u32 s%d, s%d, 0" % (d + 1, base + 1))
    A.e("s_mov_b32 s%d, 0x%x" % (d + 2, nbytes))
    A.e("s_mov_b32 s%d, 0x20000" % (d + 3))


SLOT = 24576
NSLOT = 6
MISC = SLOT * NSLOT
K1_LDS = 163840
OOB = 0x40000000

def mkord(sx):
    o, pc, fc = [], 0, 0
    for ch in sx:
        if ch == "P":
            o.append(("P", pc)); pc += 1
        else:
            assert fc < pc
            o.append(("F", fc)); fc += 1
    assert pc == 8 and fc == 8 and sx[:2] == "PP"
    return o
PAR = dict(ord="PPFFPPPPPPFFFFFF", ord2="PPPPPPPPFFFFFFFF", la=2, laf=4, dmagap=2, nt=3, estep=9, cstep=10, sfill2=14, fpoll=14, fd=5, sd=3,
           ffill=4, sfill=10, rot=1, pf=1, cpf=1, ala=4, wstart=1, pre1=3, pollat=3, urot=1, acc2=0, p2poll=12, chk2=14, fl2=3, wla=4, slp=8, single=1, hstep=14, cdelay=0, pfw=14, stgap=1, ew=22, ec=6)

sX, sLRE, sLIM, sBRE, sBIM, sLDT = 16, 18, 20, 22, 24, 30
sW1, sW3, sW2, sGW, sWS = 32, 34, 36, 38, 42
rX, rBRE, rBIM, rW1, rW3, rAS, rE, rEP, rG, rFL = 44, 48, 52, 56, 60, 64, 68, 72, 76, 88


def swiglu_ops(A, acc, off):
    o = []
    for r in range(8):
        o.append("v_mul_f32 %s, %s, %s" % (v(acc + 8 + r), v(acc + r), v(acc + 8 + r)))
    for r in range(8):
        o.append("v_mul_f32 %s, s80, %s" % (v(acc + r), v(acc + r)))
    for r in range(8):
        o.append("v_exp_f32 %s, %s" % (v(acc + r), v(acc + r)))
    for r in range(8):
        o.append("v_add_f32 %s, 1.0, %s" % (v(acc + r), v(acc + r)))
    for r in range(8):
        o.append("v_rcp_f32 %s, %s" % (v(acc + r), v(acc + r)))
    for r in range(8):
        o.append("v_mul_f32 %s, %s, %s" % (v(acc + 8 + r), v(acc + 8 + r), v(acc + r)))
    for q in range(4):
        o.append("v_cvt_pk_bf16_f32 %s, %s, %s" % (v(acc + q), v(acc + 8 + 2 * q), v(acc + 9 + 2 * q)))
    o.append(lambda: A.vmi("st", "buffer_store_dwordx4 %s, v6, %s, s82 offen offset:%d%s" % (v(acc, 4), s(rAS, 4), off, stmod())))
    return o


class Stream:
    def __init__(self, A, items, NB, D, K):
        self.A, self.items, self.NB, self.D, self.K = A, items, NB, D, K
        self.nb = 0
        self.rp = 0
        self.fill = []
        self.fence = -1
        self.hold = 0

    def ninstr(self):
        return len(self.A.L)

    def pop(self, k):
        while k > 0 and self.fill:
            f = self.fill[0]
            if isinstance(f, tuple):
                if f[0] == "gap":
                    self.fill.pop(0)
                    return
                if f[0] == "bar" and self.nb <= f[1]:
                    return
                if f[0] == "dist" and self.ninstr() - f[1] < 14:
                    return
                self.fill.pop(0)
                continue
            self.fill.pop(0)
            if isinstance(f, str):
                self.A.e(f)
            else:
                f()
            k -= 1

    def flush(self):
        while self.fill:
            f = self.fill[0]
            if isinstance(f, tuple):
                if f[0] in ("bar", "gap"):
                    assert f[0] == "gap" or self.nb > f[1]
                    self.fill.pop(0)
                    continue
                d = 14 - (self.ninstr() - f[1])
                if d > 0:
                    self.A.e("s_nop %d" % (d - 1))
                self.fill.pop(0)
                continue
            self.pop(1)

    def barrier(self, n):
        while self.nb <= n:
            b = self.nb
            self.pre(b)
            old = [t for t in self.A.lg if t[0] == "c" and int(t[1:].split("_")[0]) <= b - 2]
            if old:
                self.A.lgw(old[-1])
            self.A.e("s_barrier")
            self.nb += 1
            self.post(b)

    def reads(self, upto, force):
        while self.rp < min(upto, len(self.items)):
            it = self.items[self.rp]
            if not force and (it[0] > self.nb or (it[0] == self.fence and self.nb <= it[0])):
                return
            self.barrier(it[0])
            self.read(it, self.rp % self.NB, "c%d_%d" % (it[0], self.rp))
            self.rp += 1

    def run(self):
        for mp, it in enumerate(self.items):
            if self.rp <= mp:
                self.reads(mp + 1, True)
                self.reads(mp + 1 + self.D, False)
            self.A.lgw("c%d_%d" % (it[0], mp))
            self.mfma(it, mp % self.NB)
            self.after(it, mp)
            self.reads(min(mp + 1 + self.D, self.rp + 2), False)
            self.pop(self.K)
        self.barrier(15)


def mk_items(ORD, ntile, withP):
    NT = PAR["nt"]
    items = []
    for n in range(16 - NT):
        if ORD[n][0] == "P" and not withP:
            continue
        for ss in range(4):
            for ti in range(ntile):
                items.append((n, ss, ti))
    for t0 in range(0, ntile, 2):
        for n in range(16 - NT, 16):
            assert ORD[n][0] == "F"
            for ss in range(4):
                for ti in (t0, t0 + 1):
                    items.append((n, ss, ti))
    return items


def k1_prologue(A):
    A.e("s_cmp_ge_u32 s2, 256")
    A.e("s_cbranch_scc1 L_k1_end")
    A.stamp_begin()
    A.e("s_load_dwordx16 s[16:31], s[0:1], 0")
    A.e("s_load_dwordx8 s[32:39], s[0:1], 80")
    A.e("s_load_dwordx2 s[42:43], s[0:1], 128")
    A.e("s_load_dwordx2 s[40:41], s[0:1], 64")
    A.e("s_load_dwordx2 s[84:85], s[0:1], 112")
    A.e("v_lshrrev_b32 v2, 6, v0")
    A.e("v_and_b32 v1, 63, v0")
    A.e("v_readfirstlane_b32 s3, v2")
    A.e("s_bfe_u32 s4, s2, 0x20001")
    A.e("s_lshl_b32 s4, s4, 2")
    A.e("s_bfe_u32 s6, s2, 0x20003")
    A.e("s_add_u32 s4, s4, s6")
    A.e("s_and_b32 s5, s2, 1")
    A.e("s_lshl_b32 s5, s5, 3")
    A.e("s_lshr_b32 s6, s2, 5")
    A.e("s_add_u32 s5, s5, s6")
    A.e("s_and_b32 s7, s3, 3")
    A.e("v_and_b32 v8, 31, v1")
    A.e("v_lshrrev_b32 v9, 5, v1")
    A.e("s_lshl_b32 s8, s7, 12")
    A.e("s_cmp_lt_u32 s3, 4")
    A.e("s_cbranch_scc1 L_k1_Spro")


def k1_common_late(A):
    A.e("s_mov_b32 s80, 0x%x" % f2u(-LOG2E))
    A.e("v_bfe_u32 v10, v1, 1, 3")
    A.e("v_xor_b32 v10, v10, v9")
    A.e("v_lshlrev_b32 v10, 4, v10")
    A.e("v_lshl_add_u32 v7, v8, 7, v10")
    A.e("v_bfe_u32 v10, v1, 4, 1")
    A.e("v_mul_u32_u24 v12, 3104, v10")
    A.e("v_lshlrev_b32 v11, 9, v9")
    A.e("v_add_u32 v12, v12, v11")
    A.e("v_bfe_u32 v11, v1, 2, 2")
    A.e("v_lshl_add_u32 v12, v11, 6, v12")
    A.e("v_and_b32 v11, 3, v1")
    A.e("v_lshl_add_u32 v12, v11, 3, v12")
    A.e("v_xor_b32 v13, 32, v12")
    A.e("v_lshlrev_b32 v6, 4, v1")
    A.e("s_lshl_b32 s6, s4, 2")
    A.e("s_add_u32 s6, s6, s7")
    A.e("s_mul_i32 s81, s6, %d" % (NKS * 1024))
    A.e("s_mul_i32 s6, s5, 6144")
    A.e("s_add_u32 s82, s81, s6")
    srd(A, rAS, sWS, A_BYTES)
    A.e("s_lshl_b32 s6, s4, 9")
    A.e("s_add_u32 s6, s6, 0x%x" % FL_OFF)
    srd(A, rFL, sWS, 512, "s6")
    A.e("s_lshl_b32 s87, s5, 2")


def flag_store(A, off, vt, vz, L):
    A.e("s_cmp_lg_u32 s3, 0")
    A.e("s_cbranch_scc1 " + L)
    A.e("v_mov_b32 %s, s86" % vt)
    A.e("v_mov_b32 %s, 0" % vz)
    A.e("s_mov_b64 exec, 1")
    A.e("buffer_store_dword %s, %s, %s, s87 offen offset:%d sc1" % (vt, vz, s(rFL, 4), off))
    A.e("s_mov_b64 exec, -1")
    A.lab(L)


def dma_ops(A, ORD, n):
    kind, c = ORD[n]
    slot = (n % NSLOT) * SLOT
    tag = "ch%d" % n
    ops = []
    def mk(pre, m0, ins):
        def f():
            for x in pre:
                A.e(x)
            A.e(m0)
            A.e("s_nop 0")
            A.vmi(tag, ins)
        return f
    if kind == "P":
        pre = ["s_add_u32 s11, s83, %d" % c, "s_and_b32 s11, s11, 7", "s_lshl_b32 s11, s11, 7", "s_add_u32 s12, s11, 8192"]
        for q in range(4):
            ops.append(mk(pre if q == 0 else [], "s_add_u32 m0, s8, %d" % (slot + 1024 * q),
                          "buffer_load_dwordx4 %s, %s, s%d offen lds" % ("v3" if q & 1 else "v2", s(rX, 4), 12 if q >= 2 else 11)))
        ops.append(mk([], "s_add_u32 m0, s9, %d" % (slot + 16384), "buffer_load_dwordx4 v4, %s, s11 offen lds" % s(rBRE, 4)))
        ops.append(mk([], "s_add_u32 m0, s9, %d" % (slot + 20480), "buffer_load_dwordx4 v4, %s, s11 offen lds" % s(rBIM, 4)))
    else:
        pre = ["s_add_u32 s11, s83, %d" % c, "s_and_b32 s11, s11, 7", "s_mul_i32 s11, s11, 176128",
               "s_add_u32 s12, s11, s15", "s_add_u32 s11, s11, s14"]
        for m in range(2):
            for q in range(3):
                ops.append(mk(pre if m == 0 and q == 0 else [], "s_add_u32 m0, s10, %d" % (slot + m * 3072 + 1024 * q - 64 * q),
                              "buffer_load_dwordx4 %s, %s, s%d offen offset:%d lds" % ("v16" if m else "v5", s(rW3 if m else rW1, 4), 12 if q else 11, 64 * q)))
    return ops


def k1_F_prologue(A):
    A.vm, A.lg = [], []
    if PAR["rot"]:
        A.e("s_lshl_b32 s83, s4, 1")
        A.e("s_add_u32 s83, s83, s5")
    else:
        A.e("s_mov_b32 s83, 0")
    A.e("v_lshrrev_b32 v10, 4, v1")
    A.e("v_and_b32 v11, 7, v1")
    A.e("v_xor_b32 v10, v10, v11")
    A.e("v_lshlrev_b32 v10, 4, v10")
    A.e("v_bfe_u32 v11, v1, 3, 2")
    A.e("v_lshl_add_u32 v2, v11, 10, v10")
    A.e("v_lshl_add_u32 v2, v9, 14, v2")
    A.e("s_lshl_b32 s6, s7, 15")
    A.e("v_add_u32 v2, s6, v2")
    A.e("v_xor_b32 v3, 64, v2")
    A.e("v_add_u32 v3, 4096, v3")
    A.e("s_lshl_b32 s9, s7, 10")
    A.e("s_mul_i32 s10, s7, 6144")
    A.e("s_and_b32 s6, s7, 1")
    A.e("s_lshl_b32 s6, s6, 6")
    A.e("v_xor_b32 v4, s6, v10")
    A.e("v_lshrrev_b32 v11, 3, v1")
    A.e("v_lshl_add_u32 v4, v11, 10, v4")
    A.e("s_lshl_b32 s6, s7, 13")
    A.e("v_add_u32 v4, s6, v4")
    A.e("s_lshl_b32 s6, s4, 17")
    A.e("s_lshl_b32 s13, s5, 15")
    A.e("s_waitcnt lgkmcnt(0)")
    srd(A, rX, sX, 131072, "s6")
    srd(A, rBRE, sBRE, 32768, "s13")
    srd(A, rBIM, sBIM, 32768, "s13")
    O = mkord(PAR["ord"])
    for f in dma_ops(A, O, 0):
        f()
    A.e("s_lshl_b32 s6, s5, 3")
    A.e("s_lshl_b32 s13, s7, 1")
    A.e("s_add_u32 s13, s13, s6")
    A.e("s_lshl_b32 s6, s13, 10")
    A.e("v_lshlrev_b32 v17, 4, v8")
    A.e("v_lshl_add_u32 v18, v9, 10, v17")
    A.e("v_add_u32 v18, s6, v18")
    A.vmi("g", "buffer_load_dwordx4 v[64:67], v18, %s, 0 offen" % s(rX, 4))
    A.vmi("g", "buffer_load_dwordx4 v[68:71], v18, %s, 0 offen offset:512" % s(rX, 4))
    A.vmi("g", "global_load_dwordx4 v[72:75], v17, %s" % s(sGW, 2))
    A.vmi("g", "global_load_dwordx4 v[76:79], v17, %s offset:512" % s(sGW, 2))
    A.e("s_lshl_b32 s6, s4, 7")
    A.e("s_add_u32 s6, s6, 0x%x" % EPR_OFF)
    srd(A, rEP, sWS, 4, "s6")
    A.e("v_mov_b32 v19, 0")
    A.vmi("g", "buffer_load_dword v84, v19, %s, 0 offen sc1" % s(rEP, 4))
    for f in dma_ops(A, O, 1):
        f()
    k1_common_late(A)
    srd(A, rW1, sW1, 512 * 2752)
    srd(A, rW3, sW3, 512 * 2752)
    srd(A, rG, sWS, 16384, "0x%x" % G_OFF)
    A.e("v_lshrrev_b32 v10, 2, v1")
    A.e("s_lshl_b32 s6, s7, 4")
    A.e("v_add_u32 v10, s6, v10")
    A.e("v_mul_u32_u24 v5, 2752, v10")
    A.e("s_mul_i32 s6, s5, 192")
    A.e("v_add_u32 v5, s6, v5")
    A.e("v_and_b32 v10, 3, v1")
    A.e("v_lshl_add_u32 v5, v10, 4, v5")
    A.e("v_xor_b32 v16, 32, v5")
    A.e("v_add_u32 v7, s8, v7")
    A.e("s_cmp_ge_u32 s5, 15")
    A.e("s_cselect_b32 s14, 0x%x, 0" % OOB)
    A.e("s_cmp_ge_u32 s5, 14")
    A.e("s_cselect_b32 s15, 0x%x, 0" % OOB)
    A.e("s_add_u32 s82, s82, %d" % (65536 + 2048))
    A.e("s_add_u32 s82, s82, s15")
    if not PAR["single"]:
        A.e("s_bitcmp0_b32 s4, 0")
        A.e("s_cbranch_scc1 L_k1_Fa")
    A.e("s_branch L_k1_Fb")
    return list(A.vm)


def k1_F(A, ORD, X, vm0):
    A.vm, A.lg = list(vm0), []
    A.lab("L_k1_F" + X)
    ACC, FB = 64, 32
    LA, LAF, NT = PAR["la"], PAR["laf"], PAR["nt"]
    assert LAF <= 4 and LA <= LAF

    def g_compute():
        A.c("g = sigmoid(sum bf16(x*gate_w))")
        A.vmw("g")
        A.e("v_readfirstlane_b32 s86, v84")
        A.e("s_add_u32 s86, s86, 1")
        A.e("s_bitset1_b32 s86, 31")
        A.e("v_mov_b32 v20, 0")
        for d in range(8):
            xx, ww = 64 + d, 72 + d
            A.e("v_lshlrev_b32 v80, 16, %s" % v(xx))
            A.e("v_and_b32 v81, 0xffff0000, %s" % v(xx))
            A.e("v_lshlrev_b32 v82, 16, %s" % v(ww))
            A.e("v_and_b32 v83, 0xffff0000, %s" % v(ww))
            A.e("v_mul_f32 v80, v80, v82")
            A.e("v_mul_f32 v81, v81, v83")
            A.e("v_cvt_pk_bf16_f32 v80, v80, v81")
            A.e("v_lshlrev_b32 v81, 16, v80")
            A.e("v_and_b32 v80, 0xffff0000, v80")
            A.e("v_add_f32 v20, v20, v81")
            A.e("v_add_f32 v20, v20, v80")
        for sh in (1, 2, 4, 8):
            A.e("s_nop 1")
            A.e("v_add_f32_dpp v20, v20, v20 row_shr:%d row_mask:0xf bank_mask:0xf bound_ctrl:0" % sh)
        A.e("s_nop 1")
        A.e("v_add_f32_dpp v20, v20, v20 row_bcast:15 row_mask:0xa bank_mask:0xf")
        A.e("v_cvt_pk_bf16_f32 v20, v20, v20")
        A.e("v_and_b32 v20, 0xffff0000, v20")
        A.e("v_mul_f32 v20, s80, v20")
        A.e("v_exp_f32 v20, v20")
        A.e("s_nop 0")
        A.e("v_add_f32 v20, 1.0, v20")
        A.e("v_rcp_f32 v20, v20")
        A.e("s_nop 0")
        A.e("v_cvt_pk_bf16_f32 v20, v20, v20")
        A.e("v_and_b32 v20, 0xffff0000, v20")
        A.e("v_sub_f32 v21, 1.0, v20")
        A.e("v_cvt_pk_bf16_f32 v21, v21, v21")
        A.e("v_and_b32 v21, 0xffff0000, v21")
        A.e("s_lshl_b32 s6, s4, 7")
        A.e("s_add_u32 s6, s6, s13")
        A.e("s_lshl_b32 s6, s6, 3")
        A.e("v_lshlrev_b32 v22, 3, v9")
        A.e("s_mov_b32 exec_lo, 0x80000000")
        A.e("s_mov_b32 exec_hi, 0x80000000")
        A.vmi("gst", "buffer_store_dwordx2 v[20:21], v22, %s, s6 offen%s" % (s(rG, 4), stmod()))
        A.e("s_mov_b64 exec, -1")

    def prefetch_c():
        A.e("s_and_b32 s13, s2, 1")
        A.e("s_lshl_b32 s13, s13, 18")
        A.e("s_lshr_b32 s6, s2, 3")
        A.e("s_lshl_b32 s6, s6, 13")
        A.e("s_add_u32 s13, s13, s6")
        A.e("s_lshl_b32 s6, s7, 11")
        A.e("s_add_u32 s13, s13, s6")
        A.e("v_lshlrev_b32 v2, 7, v1")
        srd(A, rBRE, 26, 524288)
        srd(A, rBIM, 28, 524288)
        A.e("s_mov_b64 exec, 0xffff")
        A.vmi("pf", "buffer_load_dword v20, v2, %s, s13 offen" % s(rBRE, 4))
        A.vmi("pf", "buffer_load_dword v21, v2, %s, s13 offen" % s(rBIM, 4))
        A.e("s_mov_b64 exec, -1")

    def poll1():
        A.vmi("poll", "buffer_load_dword v18, v17, %s, 0 offen sc1" % s(rFL, 4))

    tiles = [2, 3, 4, 5]
    S = Stream(A, mk_items(ORD, 4, False), 8, PAR["fd"], PAR["ffill"])
    dq = []
    for n in range(2, 16):
        dq += [(n, f) for f in dma_ops(A, ORD, n)]
    if PAR["pf"]:
        dq.append((15, prefetch_c))
    dq += [(16, f) for f in p2_setup_ops(A)]

    def dma_upto(m, maxops=999):
        while dq and dq[0][0] <= m and maxops > 0:
            dq.pop(0)[1]()
            maxops -= 1

    def waddr(n):
        return ((14, 15), (28, 29), (30, 31))[n % 3]

    def pre(b):
        kind, c = ORD[b]
        slot = (b % NSLOT) * SLOT
        dma_upto(b - 1 + LA)
        if kind == "P":
            A.e("v_add_u32 v24, %d, v7" % slot)
            A.e("v_xor_b32 v25, 32, v24")
            A.e("v_xor_b32 v26, 64, v24")
            A.e("v_xor_b32 v27, 0x60, v24")
        else:
            A.e("v_add_u32 v%d, %d, v12" % (waddr(b)[0], slot))
            A.e("v_add_u32 v%d, %d, v13" % (waddr(b)[1], slot))
        A.vmw("ch%d" % b)

    def post(b):
        kind, c = ORD[b]
        A.fs(b)
        if kind == "P":
            for ss in range(4):
                A.lgi("c%d_x" % b, "ds_read_b128 %s, %s" % (a(16 * c + 4 * ss, 4), v(24 + ss)))
            dma_upto(b + LA)
        if b == 0:
            g_compute()

    def read(it, sl, tag):
        n, ss, ti = it
        T = tiles[ti]
        for nn in range(2):
            A.lgi(tag, "ds_read_b64_tr_b16 %s, v%d offset:%d" % (v(FB + 4 * sl + 2 * nn, 2), waddr(n)[T & 1],
                                                                ss * 6144 + (T >> 1) * 1024 + nn * 256))

    def mfma(it, sl):
        n, ss, ti = it
        c = ORD[n][1]
        first = (c == 0 and ss == 0)
        A.e("v_mfma_f32_32x32x16_bf16 %s, %s, %s, %s" % (v(ACC + 16 * ti, 16), v(FB + 4 * sl, 4), a(16 * c + 4 * ss, 4),
                                                        "0" if first else v(ACC + 16 * ti, 16)))

    def after(it, mp):
        n, ss, ti = it
        if mp % PAR["dmagap"] == 0:
            dma_upto(S.nb - 1 + LAF, 1)
        left = len(S.items) - mp
        if left in (PAR["ew"], PAR["ew"] - 2, PAR["ew"] - 4):
            assert not dq and S.nb > 14
            p2_dma_w(A, (PAR["ew"] - left) // 2)
        if left == PAR["fpoll"]:
            poll1()
        if left == PAR["ec"]:
            A.fs(17)
            p2_check(A, "poll", 0, "L_p2a" + X)
            A.fs(18)
        if left in (PAR["ec"], PAR["ec"] - 2, PAR["ec"] - 4):
            p2_dma_a(A, (PAR["ec"] - left) // 2)
        if n == 15 and ss == 3 and ti < 2:
            S.fill.append(("dist", S.ninstr()))
            S.fill += swiglu_ops(A, ACC + 16 * ti, 1024 * ti)

    S.pre, S.post, S.read, S.mfma, S.after = pre, post, read, mfma, after
    S.run()
    assert not dq
    A.fs(16)
    S.flush()
    A.e("s_branch L_p2_load")
    return list(A.vm)


def cpow(A, n_scale, dre, dim, t0, t1, va, vb):
    if n_scale == 1.0:
        A.e("v_exp_f32 %s, %s" % (t0, va))
        A.e("v_fract_f32 %s, %s" % (t1, vb))
    else:
        ns = n_scale if isinstance(n_scale, str) else "0x%x" % f2u(n_scale)
        A.e("v_mul_f32 %s, %s, %s" % (t0, ns, va))
        A.e("v_mul_f32 %s, %s, %s" % (t1, ns, vb))
        A.e("v_exp_f32 %s, %s" % (t0, t0))
        A.e("v_fract_f32 %s, %s" % (t1, t1))
    A.e("v_cos_f32 %s, %s" % (dre, t1))
    A.e("v_sin_f32 %s, %s" % (dim, t1))
    A.e("s_nop 0")
    A.e("v_mul_f32 %s, %s, %s" % (dre, dre, t0))
    A.e("v_mul_f32 %s, %s, %s" % (dim, dim, t0))


def cfma_ops(dr, di, mr, mi, xr, xi, ar, ai):
    return ["v_fma_f32 %s, %s, %s, %s" % (dr, mr, xr, ar),
            "v_fma_f32 %s, %s, %s, %s" % (di, mr, xi, ai),
            "v_fma_f32 %s, -%s, %s, %s" % (dr, mi, xi, dr),
            "v_fma_f32 %s, %s, %s, %s" % (di, mi, xr, di)]

def cfma(A, *args):
    for x in cfma_ops(*args):
        A.e(x)

LR, LI, NLI = "v16", "v17", "v5"
L16R, L16I, L128R, L128I, L256R, L256I = "v18", "v19", "v20", "v21", "v22", "v23"
CR, CI, PR, PI = "v2", "v3", "v10", "v11"
ER, EI, SR, SI = "v56", "v57", "v58", "v59"


def k1_S_prologue(A):
    A.vm, A.lg = [], []
    A.lab("L_k1_Spro")
    A.e("s_lshl_b32 s6, s5, 6")
    A.e("v_lshlrev_b32 v4, 1, v8")
    A.e("v_add_u32 v4, s6, v4")
    A.e("s_lshl_b32 s6, s5, 7")
    A.e("s_add_u32 s6, s6, 0x%x" % EP_OFF)
    A.e("v_mov_b32 v55, 0")
    if PAR["cpf"]:
        A.c("pull the code of both launches into this XCD's L2: 4 lines per wave")
        A.e("s_getpc_b64 s[44:45]")
        A.lab("L_k1_pc")
        A.e("s_mov_b32 s46, L_code_end - L_k1_pc")
        A.e("s_mov_b32 s47, 0x20000")
        A.e("s_lshr_b32 s9, s2, 3")
        A.e("s_lshl_b32 s9, s9, 2")
        A.e("s_add_u32 s9, s9, s7")
        A.e("s_lshl_b32 s9, s9, 9")
        A.e("v_lshlrev_b32 v53, 7, v1")
        A.e("s_mov_b64 exec, 15")
        A.vmi("par", "buffer_load_dword v52, v53, s[44:47], s9 offen")
        A.e("s_mov_b64 exec, -1")
    A.e("s_waitcnt lgkmcnt(0)")
    A.vmi("par", "global_load_ushort v60, v4, %s" % s(sLRE, 2))
    A.vmi("par", "global_load_ushort v61, v4, %s" % s(sLIM, 2))
    A.vmi("par", "global_load_ushort v62, v4, %s" % s(sLDT, 2))
    srd(A, rEP, sWS, 4, "s6")
    A.vmi("par", "buffer_load_dword v54, v55, %s, 0 offen sc1" % s(rEP, 4))
    A.e("s_lshl_b32 s6, s4, 7")
    A.e("s_add_u32 s6, s6, 0x%x" % EPR_OFF)
    srd(A, rG, sWS, 4, "s6")
    A.vmi("par", "buffer_load_dword v56, v55, %s, 0 offen sc1" % s(rG, 4))
    k1_common_late(A)
    A.e("s_lshl_b32 s6, s5, 13")
    A.e("s_add_u32 s6, s6, 0x%x" % E_OFF)
    srd(A, rE, sWS, 8192, "s6")
    srd(A, rBRE, sW2, 1376 * 1024)
    A.e("s_cmp_ge_u32 s5, 15")
    A.e("s_cselect_b32 s6, 0x%x, 0" % OOB)
    A.e("s_add_u32 s82, s82, 65536")
    A.e("s_add_u32 s82, s82, s6")
    A.e("v_lshlrev_b32 v4, 3, v0")
    A.e("v_add_u32 v4, %d, v4" % (MISC + 2048))
    A.e("v_mov_b32 v48, 0")
    A.e("v_mov_b32 v49, 0")
    A.e("ds_write_b64 v4, v[48:49]")
    A.e("ds_write_b32 v4, v48 offset:2048")
    A.e("s_lshl_b32 s6, s7, 1")
    A.e("v_add_u32 v63, s6, v9")
    A.e("v_sub_u32 v4, 7, v63")
    A.e("v_lshlrev_b32 v4, 8, v4")
    A.e("v_lshl_add_u32 v4, v8, 3, v4")
    A.e("v_add_u32 v4, %d, v4" % MISC)
    A.e("v_lshlrev_b32 v63, 4, v63")
    A.e("v_cvt_f32_u32 v63, v63")
    A.vmw("par", " lgkmcnt(0)")
    A.e("v_readfirstlane_b32 s14, v54")
    A.e("s_add_u32 s14, s14, 1")
    A.e("s_bitset1_b32 s14, 31")
    A.e("v_readfirstlane_b32 s86, v56")
    A.e("s_add_u32 s86, s86, 1")
    A.e("s_bitset1_b32 s86, 31")
    A.e("v_lshlrev_b32 v60, 16, v60")
    A.e("v_lshlrev_b32 v61, 16, v61")
    A.e("v_lshlrev_b32 v62, 16, v62")
    A.e("v_mul_f32 v62, 0x%x, v62" % f2u(LOG2E))
    A.e("v_exp_f32 v62, v62")
    A.e("s_nop 0")
    A.e("v_cvt_pk_bf16_f32 v62, v62, v62")
    A.e("v_and_b32 v62, 0xffff0000, v62")
    A.e("v_mul_f32 v50, v62, v60")
    A.e("v_mul_f32 v51, v62, v61")
    A.e("v_mul_f32 v50, 0x%x, v50" % f2u(LOG2E))
    A.e("v_mul_f32 v51, 0x%x, v51" % f2u(INV2PI))
    cpow(A, 1.0, LR, LI, "v52", "v53", "v50", "v51")
    cpow(A, 16.0, L16R, L16I, "v52", "v53", "v50", "v51")
    A.e("s_lshl_b32 s6, s7, 9")
    A.e("v_lshlrev_b32 v57, 7, v9")
    A.e("v_add_u32 v57, s6, v57")
    A.e("v_cvt_f32_u32 v57, v57")
    cpow(A, "v57", L128R, L128I, "v52", "v53", "v50", "v51")
    cpow(A, 256.0, L256R, L256I, "v52", "v53", "v50", "v51")
    cpow(A, "v63", PR, PI, "v52", "v53", "v50", "v51")
    A.e("v_sub_f32 %s, 0, %s" % (NLI, LI))
    A.e("v_mul_f32 v52, v60, v60")
    A.e("v_fmac_f32 v52, v61, v61")
    A.e("v_rcp_f32 v52, v52")
    A.e("v_add_f32 v53, -1.0, %s" % LR)
    A.e("v_mul_f32 %s, v53, v60" % CR)
    A.e("v_fmac_f32 %s, %s, v61" % (CR, LI))
    A.e("v_mul_f32 %s, %s, v60" % (CI, LI))
    A.e("v_fma_f32 %s, -v53, v61, %s" % (CI, CI))
    A.e("v_add_f32 v52, v52, v52")
    A.e("v_mul_f32 %s, %s, v52" % (CR, CR))
    A.e("v_mul_f32 %s, %s, v52" % (CI, CI))
    if not PAR["single"]:
        A.e("s_bitcmp0_b32 s4, 0")
        A.e("s_cbranch_scc1 L_k1_Sa")
    A.e("s_branch L_k1_Sb")


def k1_S(A, ORD, X):
    A.vm, A.lg = [], []
    A.lab("L_k1_S" + X)
    RE, IM, ACC, FB = 64, 80, 96, 32
    NT = PAR["nt"]
    tiles = [0, 1]
    lastP = max(n for n in range(16) if ORD[n][0] == "P")
    assert lastP + 1 <= PAR["estep"] <= PAR["cstep"] and PAR["cstep"] + 2 < PAR["hstep"] <= 15
    S = Stream(A, mk_items(ORD, 2, True), 4, PAR["sd"], PAR["sfill"])
    S.fence = lastP + 1

    def er(m):
        b = 24 + 2 * m if m < 4 else 48 + 2 * (m - 4)
        return v(b), v(b + 1)

    def waddr(n):
        return (14, 15)

    def endstate_ops():
        o = []
        cur = (v(RE), v(IM))
        tmp = [("v48", "v49"), ("v50", "v51")]
        for r in range(1, 16):
            d = (ER, EI) if r == 15 else tmp[r & 1]
            o += cfma_ops(d[0], d[1], LR, LI, cur[0], cur[1], v(RE + r), v(IM + r))
            cur = d
        o.append(lambda: A.lgi("ew", "ds_write_b64 v4, v[56:57]"))
        return o

    def publish():
        A.e("s_cmp_lg_u32 s7, 3")
        A.e("s_cbranch_scc1 L_k1_S_nopub" + X)
        cfma(A, "v52", "v54", L16R, L16I, SR, SI, ER, EI)
        A.e("v_mov_b32 v53, s14")
        A.e("v_mov_b32 v55, s14")
        A.e("s_sub_u32 s6, 15, s4")
        A.e("s_lshl_b32 s6, s6, 9")
        A.e("v_lshlrev_b32 v60, 4, v8")
        A.e("s_mov_b32 exec_lo, 0")
        A.e("buffer_store_dwordx4 v[52:55], v60, %s, s6 offen sc1" % s(rE, 4))
        A.e("s_mov_b64 exec, -1")
        A.lab("L_k1_S_nopub" + X)

    def prefix_ops():
        o = [lambda: A.lgw("er")]
        cur = er(6)
        tmp = [("v54", "v55"), ("v60", "v61")]
        for m in range(5, -1, -1):
            d = (SR, SI) if m == 0 else tmp[m & 1]
            o += cfma_ops(d[0], d[1], L16R, L16I, cur[0], cur[1], er(m)[0], er(m)[1])
            cur = d
        o.append(publish)
        return o

    def coef_ops():
        o = []
        for r in range(16):
            t = "v%d" % (48 + (r & 3))
            o.append("v_mul_f32 %s, %s, %s" % (t, CI, v(RE + r)))
            o.append("v_mul_f32 %s, %s, %s" % (v(RE + r), CR, v(RE + r)))
            o.append("v_fma_f32 %s, -%s, %s, %s" % (v(RE + r), CI, v(IM + r), v(RE + r)))
            o.append("v_fma_f32 %s, %s, %s, %s" % (v(IM + r), CR, v(IM + r), t))
        return o

    def e_issue(tag=None):
        for m in range(2):
            x = "buffer_load_dwordx4 %s, v60, %s, 0 offen offset:%d sc1" % (v(24 + 4 * m, 4), s(rE, 4), 1024 * m)
            if tag:
                A.vmi(tag, x)
            else:
                A.e(x)

    def e_addr_ops():
        return ["s_lshl_b32 s6, s7, 2", "s_sub_u32 s6, s6, s4", "s_add_u32 s6, s6, 16",
                "v_add_u32 v62, s6, v9", "v_lshlrev_b32 v60, 9, v62", "v_lshl_add_u32 v60, v8, 4, v60",
                "v_sub_u32 v62, 17, v62", "v_and_b32 v62, -2, v62", "v_max_i32 v62, 0, v62", "v_min_i32 v62, 4, v62",
                "v_lshlrev_b32 v63, 3, v8", "v_add_u32 v63, %d, v63" % (MISC + 8192),
                "s_lshl_b32 s6, s7, 9", "v_lshl_add_u32 v61, v9, 8, v63", "v_add_u32 v61, s6, v61"]

    def prefetch_w2():
        A.e("s_lshr_b32 s6, s2, 3")
        A.e("s_mul_i32 s12, s6, 43")
        A.e("s_mul_i32 s13, s7, 11")
        A.e("s_add_u32 s12, s12, s13")
        A.e("s_lshl_b32 s12, s12, 1")
        A.e("s_and_b32 s6, s2, 1")
        A.e("s_add_u32 s12, s12, s6")
        A.e("s_lshl_b32 s12, s12, 9")
        A.e("v_lshrrev_b32 v52, 2, v1")
        A.e("v_and_b32 v53, 3, v1")
        A.e("v_lshlrev_b32 v52, 10, v52")
        A.e("v_lshl_add_u32 v52, v53, 7, v52")
        A.e("s_mov_b32 exec_hi, 0xfff")
        A.vmi("pf", "buffer_load_dword v53, v52, %s, s12 offen" % s(rBRE, 4))
        A.e("s_mov_b64 exec, -1")

    def e_check():
        A.fs(17)
        A.e("s_mov_b32 s13, 0")
        A.vmw("e")
        A.lab("L_k1_S_poll" + X)
        A.e("v_mov_b32 v48, 0")
        for q in range(4):
            A.e("v_cmp_eq_u32 s[%d:%d], s14, %s" % (18 + 2 * q, 19 + 2 * q, v(25 + 2 * q)))
        for q in range(4):
            A.e("v_addc_co_u32 v48, vcc, 0, v48, s[%d:%d]" % (18 + 2 * q, 19 + 2 * q))
        A.e("v_cmp_ne_u32 vcc, v62, v48")
        A.e("s_cbranch_vccz L_k1_S_ready" + X)
        A.e("s_sleep 2")
        e_issue()
        A.e("s_add_u32 s13, s13, 1")
        A.e("s_cmp_lt_u32 s13, 0x20000")
        A.e("s_waitcnt vmcnt(0)")
        A.e("s_cbranch_scc1 L_k1_S_poll" + X)
        A.lab("L_k1_S_ready" + X)
        cfma(A, "v48", "v49", L256R, L256I, "v28", "v30", "v24", "v26")
        A.e("v_mul_f32 v50, %s, v48" % L128R)
        A.e("v_mul_f32 v51, %s, v49" % L128R)
        A.e("v_fma_f32 v50, -%s, v49, v50" % L128I)
        A.e("v_fmac_f32 v51, %s, v48" % L128I)
        A.lgi("pw", "ds_write_b64 v61, v[50:51]")
        A.fs(18)

    def epoch_bump():
        A.e("s_lshl_b32 s6, s7, 4")
        A.e("s_add_u32 s6, s6, s4")
        A.e("s_cmp_lg_u32 s6, 15")
        A.e("s_cbranch_scc1 L_k1_S_noep" + X)
        A.e("v_mov_b32 v60, s14")
        A.e("v_mov_b32 v61, 0")
        A.e("s_mov_b64 exec, 1")
        A.e("buffer_store_dword v60, v61, %s, 0 offen sc1" % s(rEP, 4))
        A.e("s_mov_b64 exec, -1")
        A.lab("L_k1_S_noep" + X)

    def scan_ops():
        o = []
        pr = [24, 26, 28, 30, 48, 50, 52, 56]
        def prd():
            for q in range(8):
                A.lgi("pr", "ds_read_b64 %s, v63 offset:%d" % (v(pr[q], 2), 256 * q))
        o += [prd, epoch_bump, lambda: A.lgw("pr")]
        for (x, y) in ((0, 1), (2, 3), (4, 5), (6, 7), (0, 2), (4, 6), (4, 0)):
            o.append("v_add_f32 %s, %s, %s" % (v(pr[x]), v(pr[x]), v(pr[y])))
            o.append("v_add_f32 %s, %s, %s" % (v(pr[x] + 1), v(pr[x] + 1), v(pr[y] + 1)))
        o += cfma_ops("v50", "v51", PR, PI, "v48", "v49", SR, SI)
        o += ["v_mul_f32 v48, %s, v50" % CR, "v_mul_f32 v49, %s, v51" % CR, "v_fma_f32 v48, -%s, v51, v48" % CI, "v_fmac_f32 v49, %s, v50" % CI]
        cur = ("v48", "v49")
        for r in range(16):
            o.append("v_fmac_f32 %s, %s, %s" % (v(RE + r), LR, cur[0]))
            o.append("v_fmac_f32 %s, %s, %s" % (v(IM + r), LR, cur[1]))
            o.append("v_fmac_f32 %s, %s, %s" % (v(RE + r), NLI, cur[1]))
            o.append("v_fmac_f32 %s, %s, %s" % (v(IM + r), LI, cur[0]))
            cur = (v(RE + r), v(IM + r))
        for q in range(8):
            o.append("v_cvt_pk_bf16_f32 %s, %s, %s" % (v(RE + q), v(RE + 2 * q), v(RE + 2 * q + 1)))
        for q in range(8):
            o.append("v_cvt_pk_bf16_f32 %s, -%s, -%s" % (v(IM + q), v(IM + 2 * q), v(IM + 2 * q + 1)))
        o.append(("bar", PAR["cstep"] + 2))
        o += ["v_xor_b32 v48, 16, v54", "v_xor_b32 v49, 32, v55"]
        for b_, ad, off in ((RE, "v54", 0), (RE + 4, "v48", 0), (IM, "v54", 2048), (IM + 4, "v48", 2048)):
            o.append(lambda b_=b_, ad=ad, off=off: A.lgi("tw", "ds_write_b128 %s, %s offset:%d" % (ad, v(b_, 4), off)))
        o += ["s_lshl_b32 s12, s5, 11", "s_add_u32 s12, s12, s81", "s_add_u32 s13, s12, 32768"]
        dst = [RE + 8, RE + 12, IM + 8, IM + 12]
        def rd():
            A.lgw("tw")
            for ks in range(4):
                for nn in range(2):
                    A.lgi("tr%d" % ks, "ds_read_b64_tr_b16 %s, %s offset:%d" % (v(dst[ks] + 2 * nn, 2), "v49" if nn else "v55", ks * 1024 + nn * 256))
        o += [("gap",), rd, ("gap",)]
        def st(ks):
            A.lgw("tr%d" % ks)
            A.vmi("hst", "buffer_store_dwordx4 %s, v6, %s, s%d offen offset:%d%s" % (v(dst[ks], 4), s(rAS, 4), 13 if ks >= 2 else 12, 1024 * (ks & 1), stmod()))
            if ks == 3:
                A.fs(19)
        for ks in range(4):
            o.append(lambda ks=ks: st(ks))
            o += [("gap",)] * PAR["stgap"]
        return o

    def tr_addr_ops():
        base = MISC
        return ["v_lshlrev_b32 v54, 6, v8", "v_lshl_add_u32 v54, v9, 5, v54", "v_bfe_u32 v50, v1, 1, 2", "v_lshlrev_b32 v50, 4, v50",
                "v_xor_b32 v54, v50, v54", "v_add_u32 v54, s8, v54", "v_add_u32 v54, %d, v54" % base,
                "v_bfe_u32 v55, v1, 2, 2", "v_lshlrev_b32 v55, 6, v55", "v_lshl_add_u32 v55, v9, 9, v55",
                "v_and_b32 v50, 1, v1", "v_lshl_add_u32 v55, v50, 5, v55", "v_bfe_u32 v50, v1, 4, 1", "v_lshl_add_u32 v55, v50, 4, v55",
                "v_bfe_u32 v50, v1, 1, 1", "v_lshl_add_u32 v55, v50, 3, v55", "v_bfe_u32 v50, v1, 3, 1", "v_lshlrev_b32 v50, 4, v50",
                "v_xor_b32 v55, v50, v55", "v_add_u32 v55, s8, v55", "v_add_u32 v55, %d, v55" % base]

    def pre(b):
        kind, c = ORD[b]
        slot = (b % NSLOT) * SLOT
        if b == lastP + 1:
            S.flush()
            A.e("v_mov_b32 v48, %d" % (MISC + 4096))
            A.e("v_mov_b32 v49, 1")
            A.e("s_mov_b64 exec, 1")
            A.e("ds_add_u32 v48, v49")
            A.e("s_mov_b64 exec, -1")
            A.e("s_mov_b32 s13, 0")
            A.lab("L_k1_S_sync" + X)
            A.e("ds_read_b32 v49, v48")
            A.e("s_add_u32 s13, s13, 1")
            A.e("s_waitcnt lgkmcnt(0)")
            A.e("v_readfirstlane_b32 s6, v49")
            A.e("s_cmp_lt_u32 s13, 0x100000")
            A.e("s_cselect_b32 s6, s6, 4")
            A.e("s_cmp_lt_u32 s6, 4")
            A.e("s_cbranch_scc1 L_k1_S_sync" + X)
            A.lg = []
            for m in range(7):
                A.lgi("er", "ds_read_b64 v[%s:%s], v4 offset:%d" % (er(m)[0][1:], er(m)[1][1:], 256 * (m + 1)))
            S.fill += prefix_ops()
            S.flush()
            A.fs(56)
            S.fill += coef_ops() + tr_addr_ops() + e_addr_ops()
            S.flush()
        if b == PAR["cstep"] + 1:
            S.flush()
            A.lgw("pw")
        if b == PAR["cstep"] + 2:
            assert "pr" not in A.lg
        if b == PAR["hstep"]:
            S.flush()
            A.vmw("hst")
        if kind == "P":
            A.e("v_add_u32 v28, %d, v7" % slot)
            A.e("v_xor_b32 v29, 32, v28")
            A.e("v_xor_b32 v30, 64, v28")
            A.e("v_xor_b32 v31, 0x60, v28")
            for q in range(4):
                A.e("v_add_u32 %s, s8, %s" % (v(24 + q), v(28 + q)))
        else:
            A.e("v_add_u32 v14, %d, v12" % slot)
            A.e("v_add_u32 v15, %d, v13" % slot)

    def post(b):
        A.fs(b)
        if b == PAR["estep"]:
            e_issue("e")
        if b == PAR["cstep"]:
            S.fill += [("gap",)] * PAR["cdelay"] + [e_check]
        if b == PAR["cstep"] + 1:
            S.fill += scan_ops()
            S.K = PAR["sfill2"]
        if b == PAR["hstep"]:
            flag_store(A, 0, "v24", "v25", "L_k1_S_nofl" + X)
            A.fs(57)
        if b == PAR["pfw"] and PAR["pf"]:
            S.fill.append(prefetch_w2)

    def read(it, sl, tag):
        n, ss, ti = it
        kind, c = ORD[n]
        if kind == "P":
            if ti == 0:
                A.lgi(tag, "ds_read_b128 %s, %s" % (a(16 * c + 4 * ss, 4), v(24 + ss)))
            A.lgi(tag, "ds_read_b128 %s, %s offset:%d" % (v(FB + 4 * sl, 4), v(28 + ss), 16384 + 4096 * ti))
        else:
            T = tiles[ti]
            for nn in range(2):
                A.lgi(tag, "ds_read_b64_tr_b16 %s, v%d offset:%d" % (v(FB + 4 * sl + 2 * nn, 2), waddr(n)[T & 1],
                                                                    ss * 6144 + (T >> 1) * 1024 + nn * 256))

    def mfma(it, sl):
        n, ss, ti = it
        kind, c = ORD[n]
        first = (c == 0 and ss == 0)
        if kind == "P":
            d = (RE, IM)[ti]
            A.e("v_mfma_f32_32x32x16_bf16 %s, %s, %s, %s" % (v(d, 16), a(16 * c + 4 * ss, 4), v(FB + 4 * sl, 4), "0" if first else v(d, 16)))
        else:
            d = ACC + 16 * ti
            A.e("v_mfma_f32_32x32x16_bf16 %s, %s, %s, %s" % (v(d, 16), v(FB + 4 * sl, 4), a(16 * c + 4 * ss, 4), "0" if first else v(d, 16)))

    def after(it, mp):
        n, ss, ti = it
        if n == lastP and ss == 3 and ti == 1:
            S.fill.append(("dist", S.ninstr()))
            S.fill += endstate_ops()
        if n == 15 and ss == 3:
            S.fill.append(("dist", S.ninstr()))
            S.fill += swiglu_ops(A, ACC + 16 * ti, 1024 * ti)

    S.pre, S.post, S.read, S.mfma, S.after = pre, post, read, mfma, after
    S.run()
    A.fs(16)
    S.flush()
    if X == "a":
        A.e("s_branch L_p2_comp")


P2_GROUPS = [("C", 0, 8), ("C", 8, 8), ("W", 0, 8), ("W", 8, 8), ("W", 16, 6)]
P2_SEQ = [(k, b, n, m) for (k, b, n) in P2_GROUPS for m in range(n)]
NA, NW = 6, 14
WUNITS = list(range(12)) + [18, 19]
def AU(n): return (12 + n % NA) * 8192
def WU(n): return WUNITS[n % NW] * 8192


rA2, rCRE, rCIM, rW2 = 44, 48, 52, 56


def p2_setup_ops(A):
    def f1():
        A.e("s_lshr_b32 s10, s5, 1")
        A.e("s_and_b32 s11, s5, 1")
        A.e("s_and_b32 s13, s10, 3")
        A.e("s_lshl_b32 s13, s13, 1")
        if PAR["urot"]:
            A.e("s_add_u32 s13, s13, s11")
            A.e("s_lshl_b32 s6, s4, 1")
            A.e("s_add_u32 s13, s13, s6")
            A.e("s_and_b32 s13, s13, 7")
        A.e("s_sub_u32 s14, s13, 6")
        A.e("s_cmp_ge_u32 s13, 6")
        A.e("s_cselect_b32 s14, s14, s13")
        A.e("s_lshl_b32 s9, s7, 11")
        srd(A, rW2, sW2, 1376 * 1024)
    def f2():
        A.e("v_bfe_u32 v10, v1, 4, 1")
        A.e("v_lshlrev_b32 v10, 2, v10")
        A.e("v_and_b32 v11, 7, v1")
        A.e("v_xor_b32 v10, v10, v11")
        A.e("v_lshlrev_b32 v10, 4, v10")
        A.e("v_lshrrev_b32 v22, 3, v1")
    def f3():
        A.e("v_lshl_add_u32 v3, v22, 10, v10")
        A.e("s_lshl_b32 s6, s7, 14")
        A.e("s_lshl_b32 s12, s10, 7")
        A.e("s_add_u32 s12, s12, s6")
        A.e("v_add_u32 v3, s12, v3")
        A.e("v_add_u32 v7, 8192, v3")
        A.e("v_lshrrev_b32 v10, 4, v1")
        A.e("v_xor_b32 v10, v10, v11")
        A.e("v_lshlrev_b32 v10, 4, v10")
    def f4():
        A.e("v_lshl_add_u32 v4, v22, 10, v10")
        A.e("s_lshl_b32 s6, s7, 14")
        A.e("s_lshl_b32 s12, s10, 16")
        A.e("s_add_u32 s12, s12, s6")
        A.e("v_add_u32 v4, s12, v4")
        A.e("v_xor_b32 v5, 64, v4")
        A.e("v_add_u32 v5, 8192, v5")
        srd(A, rCRE, 26, 524288)
        srd(A, rCIM, 28, 524288)
    def f5():
        A.e("s_and_b32 s12, s7, 1")
        A.e("s_lshr_b32 s15, s7, 1")
        A.e("s_lshl_b32 s15, s15, 11")
        A.e("v_add_u32 v2, s15, v6")
        A.e("s_lshl_b32 s8, s12, 12")
        A.e("s_add_u32 s8, s8, s15")
        A.e("s_lshl_b32 s6, s4, 1")
        A.e("s_add_u32 s6, s6, s11")
        A.e("s_lshl_b32 s6, s6, 1")
        A.e("s_add_u32 s6, s6, s12")
        A.e("s_mul_i32 s6, s6, %d" % (NKS * 1024))
        srd(A, rA2, sWS, NKS * 1024, "s6")
    def f6():
        A.e("v_and_b32 v17, 15, v1")
        A.e("v_lshlrev_b32 v17, 2, v17")
    return [f1, f2, f3, f4, f5, f6]


def p2_idx(A, n, reg):
    kind, base, ln, m = P2_SEQ[n]
    if ln == 8:
        A.e("s_add_u32 s%d, s13, %d" % (reg, m))
        A.e("s_and_b32 s%d, s%d, 7" % (reg, reg))
    else:
        A.e("s_add_u32 s%d, s14, %d" % (reg, m))
        A.e("s_sub_u32 s6, s%d, 6" % reg)
        A.e("s_cmp_ge_u32 s%d, 6" % reg)
        A.e("s_cselect_b32 s%d, s6, s%d" % (reg, reg))


def p2_dma_w(A, n):
    kind, base, ln, m = P2_SEQ[n]
    p2_idx(A, n, 12)
    if kind == "W":
        A.e("s_lshl_b32 s12, s12, 16")
        if base:
            A.e("s_add_u32 s12, s12, %d" % (base * 65536))
        r_, va, vb = rW2, "v3", "v7"
    else:
        A.e("s_lshl_b32 s12, s12, 7")
        r_, va, vb = (rCIM if base else rCRE), "v4", "v5"
    A.e("s_add_u32 m0, s9, %d" % WU(n))
    A.e("s_nop 0")
    A.vmi("w%d" % n, "buffer_load_dwordx4 %s, %s, s12 offen lds" % (va, s(r_, 4)))
    A.e("s_add_u32 m0, s9, %d" % (WU(n) + 1024))
    A.e("s_nop 0")
    A.vmi("w%d" % n, "buffer_load_dwordx4 %s, %s, s12 offen lds" % (vb, s(r_, 4)))


def p2_dma_a(A, n):
    kind, base, ln, m = P2_SEQ[n]
    p2_idx(A, n, 12)
    A.e("s_lshl_b32 s12, s12, 12")
    off = (64 + 4 * base) * 1024 if kind == "W" else 4 * base * 1024
    if off:
        A.e("s_add_u32 s12, s12, %d" % off)
    A.e("s_add_u32 m0, s8, %d" % AU(n))
    A.e("s_nop 0")
    A.vmi("a%d" % n, "buffer_load_dwordx4 v2, %s, s12 offen sc1 lds" % s(rA2, 4))
    A.vmi("a%d" % n, "buffer_load_dwordx4 v2, %s, s12 offen offset:1024 sc1 lds" % s(rA2, 4))


def p2_check(A, tag, off, L):
    A.e("s_mov_b32 s15, 0")
    A.vmw(tag)
    A.lab(L + "_poll")
    A.e("v_cmp_ne_u32 vcc, s86, v18")
    A.e("s_cbranch_vccz %s_go" % L)
    A.e("s_sleep %d" % PAR["slp"])
    A.e("buffer_load_dword v18, v17, %s, 0 offen offset:%d sc1" % (s(rFL, 4), off))
    A.e("s_add_u32 s15, s15, 1")
    A.e("s_cmp_lt_u32 s15, 0x20000")
    A.e("s_waitcnt vmcnt(0)")
    A.e("s_cbranch_scc1 %s_poll" % L)
    A.lab(L + "_go")


def p2_load(A, vm0):
    N = len(P2_SEQ)
    A.lab("L_p2_load")
    A.vm, A.lg = list(vm0), []
    LA2 = PAR["ala"]
    assert LA2 <= NA - 2
    dma_w = lambda n: p2_dma_w(A, n)
    dma_a = lambda n: p2_dma_a(A, n)

    def emit(ops):
        for x in ops:
            if isinstance(x, str):
                A.e(x)
            else:
                x()

    A.e("s_nop 7")
    A.e("s_nop 3")
    emit(swiglu_ops(A, 64 + 32, 2048))
    for n in range(3, LA2 + 1):
        dma_a(n)
    emit(swiglu_ops(A, 64 + 48, 3072))
    A.fs(19)
    wn, an = 3, LA2 + 1
    for n in range(N):
        A.vmw("w%d" % n)
        A.vmw("a%d" % n)
        if n == PAR["fl2"]:
            A.vmw("st")
        A.e("s_barrier")
        A.fs(20 + n)
        if n == PAR["chk2"]:
            p2_check(A, "poll2", 256, "L_p2b")
            A.e("s_lshl_b32 s6, s5, 2")
            A.e("s_add_u32 s6, s6, s7")
            A.e("s_cmp_lg_u32 s6, 0")
            A.e("s_cbranch_scc1 L_p2_noep")
            A.e("v_mov_b32 v18, s86")
            A.e("s_mov_b64 exec, 1")
            A.e("buffer_store_dword v18, v19, %s, 0 offen sc1" % s(rEP, 4))
            A.e("s_mov_b64 exec, -1")
            A.lab("L_p2_noep")
        if n == PAR["p2poll"]:
            A.vmi("poll2", "buffer_load_dword v18, v17, %s, 0 offen offset:256 sc1" % s(rFL, 4))
        budget = 3 if n in (0, PAR["chk2"]) else 2
        while budget > 0:
            a_ok = an < N and an <= n + LA2 and (an < 16 or n >= PAR["chk2"])
            w_ok = wn < N and wn - NW <= n - 2
            if w_ok and (wn <= min(an, n + 2) or not a_ok):
                if not a_ok and wn > n + PAR["wla"] and not (an == 16 and n < PAR["chk2"]):
                    break
                dma_w(wn); wn += 1
            elif a_ok:
                dma_a(an); an += 1
            else:
                break
            budget -= 1
        assert (an > n + 1 or an == N) and (wn > n + 1 or wn == N)
    assert an == N
    assert wn == N
    A.fs_end()
    A.e("s_endpgm")


def p2_comp(A):
    N = len(P2_SEQ)
    rXs, rO, rGs = 44, 48, 52
    ACCB, ACCA, GV, XV = 32, 48, 64, 96
    A.lab("L_p2_comp")
    A.vm, A.lg = [], []
    A.fs(58)
    A.e("s_and_b32 s9, s7, 1")
    A.e("s_lshr_b32 s10, s7, 1")
    A.e("s_lshl_b32 s12, s4, 1")
    A.e("s_and_b32 s6, s5, 1")
    A.e("s_add_u32 s12, s12, s6")
    A.e("s_lshl_b32 s12, s12, 1")
    A.e("s_add_u32 s12, s12, s9")
    A.e("s_lshl_b32 s12, s12, 5")
    A.e("s_and_b32 s15, s5, 14")
    A.e("s_add_u32 s15, s15, s10")
    A.e("s_lshl_b32 s15, s15, 5")
    A.e("v_lshlrev_b32 v20, 4, v9")
    A.e("v_add_u32 v20, s12, v20")
    A.e("v_add_u32 v21, s15, v8")
    A.e("v_lshlrev_b32 v22, 3, v20")
    A.e("v_lshlrev_b32 v23, 1, v21")
    A.e("v_lshl_add_u32 v19, v20, 10, v23")
    A.e("v_lshlrev_b32 v5, 1, v19")
    A.e("v_add_u32 v26, 4096, v19")
    A.e("v_add_u32 v27, 8192, v19")
    A.e("v_add_u32 v28, 12288, v19")
    srd(A, rXs, sX, 2048 * 1024)
    srd(A, rGs, sWS, 16384, "0x%x" % G_OFF)
    A.e("s_lshl_b32 s6, s9, 12")
    A.e("v_add_u32 v7, s6, v6")
    A.e("v_bfe_u32 v10, v1, 1, 3")
    A.e("v_xor_b32 v10, v10, v9")
    A.e("v_lshlrev_b32 v10, 4, v10")
    A.e("v_lshl_add_u32 v12, v8, 7, v10")
    A.e("s_lshl_b32 s6, s10, 12")
    A.e("v_add_u32 v12, s6, v12")
    A.e("v_bfe_u32 v10, v1, 2, 2")
    A.e("v_lshlrev_b32 v13, 7, v10")
    A.e("v_lshl_add_u32 v13, v9, 9, v13")
    A.e("v_bfe_u32 v10, v1, 4, 1")
    A.e("v_lshl_add_u32 v13, v10, 5, v13")
    A.e("v_and_b32 v10, 3, v1")
    A.e("v_lshl_add_u32 v13, v10, 3, v13")
    A.e("v_bfe_u32 v10, v1, 3, 1")
    A.e("v_xor_b32 v10, s10, v10")
    A.e("v_lshl_add_u32 v13, v10, 6, v13")
    A.e("v_add_u32 v14, %d, v7" % AU(0))
    A.e("s_waitcnt vmcnt(0)")
    for r in range(16):
        A.e("buffer_load_ushort %s, %s, %s, 0 offen offset:%d" % (v(XV + r), ("v19", "v26", "v27", "v28")[r >> 2], s(rXs, 4), 1024 * (r & 3)))
    A.e("global_load_ushort v29, v23, s[40:41]")
    srd(A, rO, 84, 2048 * 2048)

    def addr(n):
        if P2_SEQ[n][0] == "W":
            A.e("v_add_u32 v15, %d, v13" % WU(n))
        else:
            A.e("v_add_u32 v15, %d, v12" % WU(n))
            A.e("v_xor_b32 v16, 32, v15")
            A.e("v_xor_b32 v17, 64, v15")
            A.e("v_xor_b32 v18, 0x60, v15")

    def reads(n, ss):
        fb = 32 * (n & 1)
        tg = "r%d_%d" % (n, ss)
        A.lgi(tg, "ds_read_b128 %s, v14 offset:%d" % (a(fb + 4 * ss, 4), AU(n) - AU(0) + 1024 * ss))
        if P2_SEQ[n][0] == "W":
            for nn in range(2):
                A.lgi(tg, "ds_read_b64_tr_b16 %s, v15 offset:%d" % (a(fb + 16 + 4 * ss + 2 * nn, 2), 2048 * ss + 1024 * nn))
        else:
            A.lgi(tg, "ds_read_b128 %s, %s" % (a(fb + 16 + 4 * ss, 4), v(15 + ss)))

    def mfma(n, ss):
        kind, base, ln, m = P2_SEQ[n]
        fb = 32 * (n & 1)
        acc = v(ACCB if kind == "W" else ACCA, 16)
        first = (base == 0 and m == 0 and ss == 0)
        A.lgw("r%d_%d" % (n, ss))
        A.e("v_mfma_f32_32x32x16_bf16 %s, %s, %s, %s" % (acc, a(fb + 4 * ss, 4), a(fb + 16 + 4 * ss, 4), "0" if first else acc))

    def xd(q):
        if q == 0:
            A.e("s_waitcnt vmcnt(0)")
            A.e("v_lshlrev_b32 v29, 16, v29")
        r0, r1 = 2 * q, 2 * q + 1
        A.e("v_lshlrev_b32 %s, 16, %s" % (v(XV + r0), v(XV + r0)))
        A.e("v_lshlrev_b32 %s, 16, %s" % (v(XV + r1), v(XV + r1)))
        A.e("v_mul_f32 %s, %s, v29" % (v(XV + r0), v(XV + r0)))
        A.e("v_mul_f32 %s, %s, v29" % (v(XV + r1), v(XV + r1)))
        A.e("v_cvt_pk_bf16_f32 %s, %s, %s" % (v(XV + r0), v(XV + r0), v(XV + r1)))
        A.e("v_and_b32 %s, 0xffff0000, %s" % (v(XV + r1), v(XV + r0)))
        A.e("v_lshlrev_b32 %s, 16, %s" % (v(XV + r0), v(XV + r0)))

    def fold(q):
        for r in range(4 * q, 4 * q + 4):
            A.e("v_add_f32 %s, %s, %s" % (v(ACCA + r), v(ACCA + r), v(XV + r)))
        for r in range(4 * q, 4 * q + 4):
            A.e("v_mul_f32 %s, %s, %s" % (v(ACCA + r), v(GV + 2 * r), v(ACCA + r)))

    for n in range(N):
        addr(n)
        A.e("s_barrier")
        if n == PAR["fl2"]:
            flag_store(A, 256, "v30", "v31", "L_p2_nofl")
        for ss in range(4):
            if n >= 1:
                mfma(n - 1, ss)
            reads(n, ss)
        if n == 0:
            for q in range(8):
                A.e("buffer_load_dwordx4 %s, v22, %s, 0 offen offset:%d sc1" % (v(GV + 4 * q, 4), s(rGs, 4), 16 * q))
        if 8 <= n < 16:
            xd(n - 8)
        if 18 <= n < 22:
            fold(n - 18)
    for ss in range(4):
        mfma(N - 1, ss)
    A.fs(59)
    A.e("s_nop 7")
    A.e("s_nop 3")
    for q in range(8):
        A.e("v_cvt_pk_bf16_f32 %s, %s, %s" % (v(XV + q), v(ACCB + 2 * q), v(ACCB + 2 * q + 1)))
    for q in range(8):
        A.e("v_lshlrev_b32 %s, 16, %s" % (v(ACCB + 2 * q), v(XV + q)))
        A.e("v_and_b32 %s, 0xffff0000, %s" % (v(ACCB + 2 * q + 1), v(XV + q)))
    for r in range(16):
        A.e("v_mul_f32 %s, %s, %s" % (v(ACCB + r), v(GV + 2 * r + 1), v(ACCB + r)))
    for q in range(8):
        A.e("v_cvt_pk_bf16_f32 %s, %s, %s" % (v(XV + q), v(ACCB + 2 * q), v(ACCB + 2 * q + 1)))
    for q in range(8):
        A.e("v_lshlrev_b32 %s, 16, %s" % (v(ACCB + 2 * q), v(XV + q)))
        A.e("v_and_b32 %s, 0xffff0000, %s" % (v(ACCB + 2 * q + 1), v(XV + q)))
        A.e("s_movk_i32 s6, %d" % (4096 * q))
        for r in (2 * q, 2 * q + 1):
            A.e("v_add_f32 %s, %s, %s" % (v(ACCB + r), v(ACCB + r), v(ACCA + r)))
            A.e("buffer_store_dword %s, v5, %s, s6 offen offset:%d%s" % (v(ACCB + r), s(rO, 4), 2048 * (r & 1), stmod("o")))
    A.fs(60)
    A.fs_end()
    A.dbg_end()
    A.e("s_endpgm")


def gen_all(A):
    K = NAME + "_kernel"
    A.L.append(".globl %s\n.p2align 8\n.type %s,@function\n%s:" % (K, K, K))
    k1_prologue(A)
    vm0 = k1_F_prologue(A)
    k1_S_prologue(A)
    if not PAR["single"]:
        va = k1_F(A, mkord(PAR["ord"]), "a", vm0)
        k1_S(A, mkord(PAR["ord"]), "a")
    vb = k1_F(A, mkord(PAR["ord2"]), "b", vm0)
    if PAR["single"]:
        va = vb
    assert va == vb
    k1_S(A, mkord(PAR["ord2"]), "b")
    p2_comp(A)
    p2_load(A, va)
    A.lab("L_k1_end")
    A.e("s_endpgm")
    A.lab("L_code_end")


def kd(name, nv, acc, ns=102):
    return """.amdhsa_kernel %s
  .amdhsa_next_free_vgpr %d
  .amdhsa_next_free_sgpr %d
  .amdhsa_accum_offset %d
  .amdhsa_group_segment_fixed_size 0
  .amdhsa_kernarg_size 136
  .amdhsa_user_sgpr_count 2
  .amdhsa_user_sgpr_kernarg_segment_ptr 1
  .amdhsa_system_sgpr_workgroup_id_x 1
.end_amdhsa_kernel
""" % (name, nv, ns, acc)


def main(path):
    ref = open("cdna_kernels/%s.s.ref" % NAME).read().splitlines()
    head = [l for l in ref if l.startswith(";") and "@launch" not in l and "Override launch" not in l and "grid=ceil" not in l]
    head = head[:18]
    A = Asm()
    gen_all(A)
    out = head + [
        "; @launch grid=(256,1,1) block=(512,1,1) lds=%d" % K1_LDS,
        '.amdgcn_target "amdgcn-amd-amdhsa--gfx950"', ".text"] + A.L + [
        '.section .rodata,"a"', ".p2align 6", kd(NAME + "_kernel", 256, 128)]
    open(path, "w").write("\n".join(out))


if __name__ == "__main__":
    if "--stamp" in sys.argv:
        STAMP = True
        sys.argv.remove("--stamp")
    for x in list(sys.argv):
        if x.startswith("-O"):
            OPT.add(x[2:]); sys.argv.remove(x)
        elif x.startswith("-P"):
            kk, vv = x[2:].split("=")
            PAR[kk] = vv if kk.startswith("ord") else int(vv)
            sys.argv.remove(x)
    main(sys.argv[1] if len(sys.argv) > 1 else "cdna_kernels/%s.s" % NAME)
```

```python
import sys, struct

NAME = "gated_mix__ssm_conv_s5__glu_gated_swiglu__prompt"

def f2u(x):
    return struct.unpack("<I", struct.pack("<f", x))[0]

LOG2E = 1.4426950408889634
INV2PI = 0.15915494309189535

NKS = 150
A_BYTES = 64 * NKS * 1024
E_OFF = 0xA00000
G_OFF = 0xA20000
EP_OFF = 0xA30000


EPR_OFF = 0xA31000
FL_OFF = 0xA40000

STAMP = False
OPT = {"asc0", "asc1"}
ST_OFF = 0xB00000

class Asm:
    def __init__(self):
        self.L = []
        self.vm = []
        self.lg = []

    def e(self, s):
        if "nomfma" in OPT and s.startswith("v_mfma"):
            s = "s_nop 0"
        if "nolds" in OPT and s.startswith("ds_read"):
            s = "s_nop 0"
        self.L.append("  " + s)

    def c(self, s):
        pass

    def lab(self, s):
        self.L.append(s + ":")

    def fs(self, n):
        if STAMP:
            self.e("%s s[98:99]" % ("s_memrealtime" if "rt" in OPT else "s_memtime"))
            self.e("s_waitcnt lgkmcnt(0)")
            self.lg = []
            self.e("s_sub_u32 s98, s98, s96")
            self.e("v_writelane_b32 v0, s98, %d" % n)

    def dbg_end(self):
        if "hold2" in OPT:
            self.e("s_load_dwordx2 s[8:9], s[0:1], 120")
            self.e("s_waitcnt vmcnt(0) lgkmcnt(0)")
            self.e("s_mov_b32 s10, 256")
            self.e("s_mov_b32 s11, 0x20000")
            self.e("s_not_b32 s12, s94")
            self.e("v_mov_b32 v2, s12")
            self.e("v_mov_b32 v1, 0")
            self.e("s_mov_b64 exec, 1")
            self.e("s_cmp_lg_u32 s7, 0")
            self.e("s_cbranch_scc1 L_hold_a")
            self.e("buffer_atomic_umax v2, v1, s[8:11], 0 offen")
            self.lab("L_hold_a")
            self.e("s_sleep 4")
            self.e("s_memrealtime s[98:99]")
            self.e("s_waitcnt lgkmcnt(0)")
            self.e("s_sub_u32 s98, s98, s94")
            self.e("s_cmp_lt_u32 s98, 4000")
            self.e("s_cbranch_scc1 L_hold_a")
            self.e("buffer_load_dword v2, v1, s[8:11], 0 offen sc1")
            self.e("s_waitcnt vmcnt(0)")
            self.e("v_readfirstlane_b32 s94, v2")
            self.e("s_not_b32 s94, s94")
        if "hold" in OPT:
            self.lab("L_hold")
            self.e("s_sleep 4")
            self.e("s_memrealtime s[98:99]")
            self.e("s_waitcnt lgkmcnt(0)")
            self.e("s_sub_u32 s98, s98, s94")
            self.e("s_cmp_lt_u32 s98, %d" % PAR["hold"])
            self.e("s_cbranch_scc1 L_hold")
        if "dbg" in OPT:
            self.e("s_waitcnt vmcnt(0)")
            self.e("s_memrealtime s[98:99]")
            self.e("s_memtime s[92:93]")
            self.e("s_load_dwordx2 s[8:9], s[0:1], 120")
            self.e("s_waitcnt lgkmcnt(0)")
            self.e("s_mov_b32 s10, 256")
            self.e("s_mov_b32 s11, 0x20000")
            self.e("s_not_b32 s94, s94")
            self.e("s_sub_u32 s92, s92, s96")
            self.e("v_mov_b32 v2, s94")
            self.e("v_mov_b32 v3, s98")
            self.e("v_mov_b32 v4, s92")
            self.e("v_mov_b32 v1, 0")
            self.e("s_cmp_lg_u32 s7, 0")
            self.e("s_cbranch_scc1 L_dbg_done")
            self.e("s_mov_b64 exec, 1")
            self.e("buffer_atomic_umax v2, v1, s[8:11], 0 offen")
            self.e("buffer_atomic_umax v3, v1, s[8:11], 0 offen offset:4")
            self.e("buffer_atomic_umax v4, v1, s[8:11], 0 offen offset:8")
            self.lab("L_dbg_done")

    def stamp_begin(self):
        if STAMP or "dbg" in OPT or "hold" in OPT:
            self.e("s_memrealtime s[94:95]")
            self.e("%s s[96:97]" % ("s_memrealtime" if "rt" in OPT else "s_memtime"))

    def fs_end(self):
        if STAMP:
            self.e("s_waitcnt vmcnt(0)")
            self.fs(61)
            self.e("s_memrealtime s[98:99]")
            self.e("s_waitcnt lgkmcnt(0)")
            self.e("v_writelane_b32 v0, s94, 62")
            self.e("v_writelane_b32 v0, s98, 63")
            self.e("s_add_u32 s8, s%d, 0x%x" % (sWS, ST_OFF))
            self.e("s_addc_u32 s9, s%d, 0" % (sWS + 1))
            self.e("s_mov_b32 s10, 0x80000")
            self.e("s_mov_b32 s11, 0x20000")
            self.e("s_lshl_b32 s6, s2, 11")
            self.e("s_lshl_b32 s12, s3, 8")
            self.e("s_add_u32 s6, s6, s12")
            self.e("v_lshlrev_b32 v1, 2, v1")
            self.e("buffer_store_dword v0, v1, s[8:11], s6 offen")

    def vmi(self, tag, s, cold=False):
        if cold and "nt" in OPT:
            s = s.replace(" lds", " nt lds") if s.endswith(" lds") else s + " nt"
        self.e(s)
        self.vm.append(tag)
        assert len(self.vm) <= 63, "too many vmem ops in flight"

    def vmw(self, tag, extra=""):
        idx = [i for i, t in enumerate(self.vm) if t == tag]
        if not idx:
            return None
        n = len(self.vm) - 1 - idx[-1]
        self.vm = self.vm[idx[-1] + 1:]
        self.e("s_waitcnt vmcnt(%d)%s" % (n, extra))
        return n

    def lgi(self, tag, s):
        self.e(s)
        self.lg.append(tag)

    def lgw(self, tag):
        idx = [i for i, t in enumerate(self.lg) if t == tag]
        if not idx:
            return
        n = len(self.lg) - 1 - idx[-1]
        self.lg = self.lg[idx[-1] + 1:]
        self.e("s_waitcnt lgkmcnt(%d)" % min(n, 15))

    def lgw0(self):
        if self.lg:
            self.e("s_waitcnt lgkmcnt(0)")
        self.lg = []


def stmod(pre="a"):
    return "".join(" " + m for m in ("sc0", "sc1", "nt") if pre + m in OPT)

def v(a, n=1):
    return "v%d" % a if n == 1 else "v[%d:%d]" % (a, a + n - 1)

def a(a_, n=1):
    return "a%d" % a_ if n == 1 else "a[%d:%d]" % (a_, a_ + n - 1)

def s(a_, n=1):
    return "s%d" % a_ if n == 1 else "s[%d:%d]" % (a_, a_ + n - 1)


def srd(A, d, base, nbytes, addlo=None):
    if addlo is None:
        A.e("s_mov_b32 s%d, s%d" % (d, base))
        A.e("s_mov_b32 s%d, s%d" % (d + 1, base + 1))
    else:
        A.e("s_add_u32 s%d, s%d, %s" % (d, base, addlo))
        A.e("s_addc_u32 s%d, s%d, 0" % (d + 1, base + 1))
    A.e("s_mov_b32 s%d, 0x%x" % (d + 2, nbytes))
    A.e("s_mov_b32 s%d, 0x20000" % (d + 3))


SLOT = 24576
NSLOT = 6
MISC = SLOT * NSLOT
K1_LDS = 163840
OOB = 0x40000000

def mkord(sx):
    o, pc, fc = [], 0, 0
    for ch in sx:
        if ch == "P":
            o.append(("P", pc)); pc += 1
        else:
            assert fc < pc
            o.append(("F", fc)); fc += 1
    assert pc == 8 and fc == 8 and sx[:2] == "PP"
    return o
PAR = dict(ord="PPFFPPPPPPFFFFFF", ord2="PPPPPPPPFFFFFFFF", la=2, laf=4, dmagap=2, nt=3, estep=9, cstep=10, sfill2=14, fpoll=14, fd=5, sd=3,
           ffill=4, sfill=10, rot=1, pf=1, cpf=1, ala=4, wstart=1, pre1=3, pollat=3, urot=1, acc2=0, p2poll=12, chk2=14, fl2=3, wla=4, slp=8, single=1, hstep=14, cdelay=0, pfw=14, hold=4000, stgap=1, ew=22, ec=6)

sX, sLRE, sLIM, sBRE, sBIM, sLDT = 16, 18, 20, 22, 24, 30
sW1, sW3, sW2, sGW, sWS = 32, 34, 36, 38, 42
rX, rBRE, rBIM, rW1, rW3, rAS, rE, rEP, rG, rFL = 44, 48, 52, 56, 60, 64, 68, 72, 76, 88


def swiglu_ops(A, acc, off):
    o = []
    for r in range(8):
        o.append("v_mul_f32 %s, %s, %s" % (v(acc + 8 + r), v(acc + r), v(acc + 8 + r)))
    for r in range(8):
        o.append("v_mul_f32 %s, s80, %s" % (v(acc + r), v(acc + r)))
    for r in range(8):
        o.append("v_exp_f32 %s, %s" % (v(acc + r), v(acc + r)))
    for r in range(8):
        o.append("v_add_f32 %s, 1.0, %s" % (v(acc + r), v(acc + r)))
    for r in range(8):
        o.append("v_rcp_f32 %s, %s" % (v(acc + r), v(acc + r)))
    for r in range(8):
        o.append("v_mul_f32 %s, %s, %s" % (v(acc + 8 + r), v(acc + 8 + r), v(acc + r)))
    for q in range(4):
        o.append("v_cvt_pk_bf16_f32 %s, %s, %s" % (v(acc + q), v(acc + 8 + 2 * q), v(acc + 9 + 2 * q)))
    o.append(lambda: A.vmi("st", "buffer_store_dwordx4 %s, v6, %s, s82 offen offset:%d%s" % (v(acc, 4), s(rAS, 4), off, stmod())))
    return o


class Stream:
    def __init__(self, A, items, NB, D, K):
        self.A, self.items, self.NB, self.D, self.K = A, items, NB, D, K
        self.nb = 0
        self.rp = 0
        self.fill = []
        self.fence = -1
        self.hold = 0

    def ninstr(self):
        return len(self.A.L)

    def pop(self, k):
        while k > 0 and self.fill:
            f = self.fill[0]
            if isinstance(f, tuple):
                if f[0] == "gap":
                    self.fill.pop(0)
                    return
                if f[0] == "bar" and self.nb <= f[1]:
                    return
                if f[0] == "dist" and self.ninstr() - f[1] < 14:
                    return
                self.fill.pop(0)
                continue
            self.fill.pop(0)
            if isinstance(f, str):
                self.A.e(f)
            else:
                f()
            k -= 1

    def flush(self):
        while self.fill:
            f = self.fill[0]
            if isinstance(f, tuple):
                if f[0] in ("bar", "gap"):
                    assert f[0] == "gap" or self.nb > f[1]
                    self.fill.pop(0)
                    continue
                d = 14 - (self.ninstr() - f[1])
                if d > 0:
                    self.A.e("s_nop %d" % (d - 1))
                self.fill.pop(0)
                continue
            self.pop(1)

    def barrier(self, n):
        while self.nb <= n:
            b = self.nb
            self.pre(b)
            old = [t for t in self.A.lg if t[0] == "c" and int(t[1:].split("_")[0]) <= b - 2]
            if old:
                self.A.lgw(old[-1])
            self.A.e("s_barrier")
            self.nb += 1
            self.post(b)

    def reads(self, upto, force):
        while self.rp < min(upto, len(self.items)):
            it = self.items[self.rp]
            if not force and (it[0] > self.nb or (it[0] == self.fence and self.nb <= it[0])):
                return
            self.barrier(it[0])
            self.read(it, self.rp % self.NB, "c%d_%d" % (it[0], self.rp))
            self.rp += 1

    def run(self):
        for mp, it in enumerate(self.items):
            if self.rp <= mp:
                self.reads(mp + 1, True)
                self.reads(mp + 1 + self.D, False)
            self.A.lgw("c%d_%d" % (it[0], mp))
            self.mfma(it, mp % self.NB)
            self.after(it, mp)
            self.reads(min(mp + 1 + self.D, self.rp + 2), False)
            self.pop(self.K)
        self.barrier(15)


def mk_items(ORD, ntile, withP):
    NT = PAR["nt"]
    items = []
    for n in range(16 - NT):
        if ORD[n][0] == "P" and not withP:
            continue
        for ss in range(4):
            for ti in range(ntile):
                items.append((n, ss, ti))
    for t0 in range(0, ntile, 2):
        for n in range(16 - NT, 16):
            assert ORD[n][0] == "F"
            for ss in range(4):
                for ti in (t0, t0 + 1):
                    items.append((n, ss, ti))
    return items


def k1_prologue(A):
    A.e("s_cmp_ge_u32 s2, 256")
    A.e("s_cbranch_scc1 L_k1_end")
    A.stamp_begin()
    A.e("s_load_dwordx16 s[16:31], s[0:1], 0")
    A.e("s_load_dwordx8 s[32:39], s[0:1], 80")
    A.e("s_load_dwordx2 s[42:43], s[0:1], 128")
    A.e("s_load_dwordx2 s[40:41], s[0:1], 64")
    A.e("s_load_dwordx2 s[84:85], s[0:1], 112")
    A.e("v_lshrrev_b32 v2, 6, v0")
    A.e("v_and_b32 v1, 63, v0")
    A.e("v_readfirstlane_b32 s3, v2")
    A.e("s_bfe_u32 s4, s2, 0x20001")
    A.e("s_lshl_b32 s4, s4, 2")
    A.e("s_bfe_u32 s6, s2, 0x20003")
    A.e("s_add_u32 s4, s4, s6")
    A.e("s_and_b32 s5, s2, 1")
    A.e("s_lshl_b32 s5, s5, 3")
    A.e("s_lshr_b32 s6, s2, 5")
    A.e("s_add_u32 s5, s5, s6")
    A.e("s_and_b32 s7, s3, 3")
    A.e("v_and_b32 v8, 31, v1")
    A.e("v_lshrrev_b32 v9, 5, v1")
    A.e("s_lshl_b32 s8, s7, 12")
    A.e("s_cmp_lt_u32 s3, 4")
    A.e("s_cbranch_scc1 L_k1_Spro")


def k1_common_late(A):
    A.e("s_mov_b32 s80, 0x%x" % f2u(-LOG2E))
    A.e("v_bfe_u32 v10, v1, 1, 3")
    A.e("v_xor_b32 v10, v10, v9")
    A.e("v_lshlrev_b32 v10, 4, v10")
    A.e("v_lshl_add_u32 v7, v8, 7, v10")
    A.e("v_bfe_u32 v10, v1, 4, 1")
    A.e("v_mul_u32_u24 v12, 3104, v10")
    A.e("v_lshlrev_b32 v11, 9, v9")
    A.e("v_add_u32 v12, v12, v11")
    A.e("v_bfe_u32 v11, v1, 2, 2")
    A.e("v_lshl_add_u32 v12, v11, 6, v12")
    A.e("v_and_b32 v11, 3, v1")
    A.e("v_lshl_add_u32 v12, v11, 3, v12")
    A.e("v_xor_b32 v13, 32, v12")
    A.e("v_lshlrev_b32 v6, 4, v1")
    A.e("s_lshl_b32 s6, s4, 2")
    A.e("s_add_u32 s6, s6, s7")
    A.e("s_mul_i32 s81, s6, %d" % (NKS * 1024))
    A.e("s_mul_i32 s6, s5, 6144")
    A.e("s_add_u32 s82, s81, s6")
    srd(A, rAS, sWS, A_BYTES)
    A.e("s_lshl_b32 s6, s4, 9")
    A.e("s_add_u32 s6, s6, 0x%x" % FL_OFF)
    srd(A, rFL, sWS, 512, "s6")
    A.e("s_lshl_b32 s87, s5, 2")


def flag_store(A, off, vt, vz, L):
    A.e("s_cmp_lg_u32 s3, 0")
    A.e("s_cbranch_scc1 " + L)
    A.e("v_mov_b32 %s, s86" % vt)
    A.e("v_mov_b32 %s, 0" % vz)
    A.e("s_mov_b64 exec, 1")
    A.e("buffer_store_dword %s, %s, %s, s87 offen offset:%d sc1" % (vt, vz, s(rFL, 4), off))
    A.e("s_mov_b64 exec, -1")
    A.lab(L)


def dma_ops(A, ORD, n):
    kind, c = ORD[n]
    slot = (n % NSLOT) * SLOT
    tag = "ch%d" % n
    ops = []
    def mk(pre, m0, ins):
        def f():
            for x in pre:
                A.e(x)
            A.e(m0)
            A.e("s_nop 0")
            A.vmi(tag, ins)
        return f
    if kind == "P":
        pre = ["s_add_u32 s11, s83, %d" % c, "s_and_b32 s11, s11, 7", "s_lshl_b32 s11, s11, 7", "s_add_u32 s12, s11, 8192"]
        for q in range(4):
            ops.append(mk(pre if q == 0 else [], "s_add_u32 m0, s8, %d" % (slot + 1024 * q),
                          "buffer_load_dwordx4 %s, %s, s%d offen lds" % ("v3" if q & 1 else "v2", s(rX, 4), 12 if q >= 2 else 11)))
        ops.append(mk([], "s_add_u32 m0, s9, %d" % (slot + 16384), "buffer_load_dwordx4 v4, %s, s11 offen lds" % s(rBRE, 4)))
        ops.append(mk([], "s_add_u32 m0, s9, %d" % (slot + 20480), "buffer_load_dwordx4 v4, %s, s11 offen lds" % s(rBIM, 4)))
    else:
        pre = ["s_add_u32 s11, s83, %d" % c, "s_and_b32 s11, s11, 7", "s_mul_i32 s11, s11, 176128",
               "s_add_u32 s12, s11, s15", "s_add_u32 s11, s11, s14"]
        for m in range(2):
            for q in range(3):
                ops.append(mk(pre if m == 0 and q == 0 else [], "s_add_u32 m0, s10, %d" % (slot + m * 3072 + 1024 * q - 64 * q),
                              "buffer_load_dwordx4 %s, %s, s%d offen offset:%d lds" % ("v16" if m else "v5", s(rW3 if m else rW1, 4), 12 if q else 11, 64 * q)))
    return ops


def k1_F_prologue(A):
    A.vm, A.lg = [], []
    if PAR["rot"]:
        A.e("s_lshl_b32 s83, s4, 1")
        A.e("s_add_u32 s83, s83, s5")
    else:
        A.e("s_mov_b32 s83, 0")
    A.e("v_lshrrev_b32 v10, 4, v1")
    A.e("v_and_b32 v11, 7, v1")
    A.e("v_xor_b32 v10, v10, v11")
    A.e("v_lshlrev_b32 v10, 4, v10")
    A.e("v_bfe_u32 v11, v1, 3, 2")
    A.e("v_lshl_add_u32 v2, v11, 10, v10")
    A.e("v_lshl_add_u32 v2, v9, 14, v2")
    A.e("s_lshl_b32 s6, s7, 15")
    A.e("v_add_u32 v2, s6, v2")
    A.e("v_xor_b32 v3, 64, v2")
    A.e("v_add_u32 v3, 4096, v3")
    A.e("s_lshl_b32 s9, s7, 10")
    A.e("s_mul_i32 s10, s7, 6144")
    A.e("s_and_b32 s6, s7, 1")
    A.e("s_lshl_b32 s6, s6, 6")
    A.e("v_xor_b32 v4, s6, v10")
    A.e("v_lshrrev_b32 v11, 3, v1")
    A.e("v_lshl_add_u32 v4, v11, 10, v4")
    A.e("s_lshl_b32 s6, s7, 13")
    A.e("v_add_u32 v4, s6, v4")
    A.e("s_lshl_b32 s6, s4, 17")
    A.e("s_lshl_b32 s13, s5, 15")
    A.e("s_waitcnt lgkmcnt(0)")
    srd(A, rX, sX, 131072, "s6")
    srd(A, rBRE, sBRE, 32768, "s13")
    srd(A, rBIM, sBIM, 32768, "s13")
    O = mkord(PAR["ord"])
    for f in dma_ops(A, O, 0):
        f()
    A.e("s_lshl_b32 s6, s5, 3")
    A.e("s_lshl_b32 s13, s7, 1")
    A.e("s_add_u32 s13, s13, s6")
    A.e("s_lshl_b32 s6, s13, 10")
    A.e("v_lshlrev_b32 v17, 4, v8")
    A.e("v_lshl_add_u32 v18, v9, 10, v17")
    A.e("v_add_u32 v18, s6, v18")
    A.vmi("g", "buffer_load_dwordx4 v[64:67], v18, %s, 0 offen" % s(rX, 4))
    A.vmi("g", "buffer_load_dwordx4 v[68:71], v18, %s, 0 offen offset:512" % s(rX, 4))
    A.vmi("g", "global_load_dwordx4 v[72:75], v17, %s" % s(sGW, 2))
    A.vmi("g", "global_load_dwordx4 v[76:79], v17, %s offset:512" % s(sGW, 2))
    A.e("s_lshl_b32 s6, s4, 7")
    A.e("s_add_u32 s6, s6, 0x%x" % EPR_OFF)
    srd(A, rEP, sWS, 4, "s6")
    A.e("v_mov_b32 v19, 0")
    A.vmi("g", "buffer_load_dword v84, v19, %s, 0 offen sc1" % s(rEP, 4))
    for f in dma_ops(A, O, 1):
        f()
    k1_common_late(A)
    srd(A, rW1, sW1, 512 * 2752)
    srd(A, rW3, sW3, 512 * 2752)
    srd(A, rG, sWS, 16384, "0x%x" % G_OFF)
    A.e("v_lshrrev_b32 v10, 2, v1")
    A.e("s_lshl_b32 s6, s7, 4")
    A.e("v_add_u32 v10, s6, v10")
    A.e("v_mul_u32_u24 v5, 2752, v10")
    A.e("s_mul_i32 s6, s5, 192")
    A.e("v_add_u32 v5, s6, v5")
    A.e("v_and_b32 v10, 3, v1")
    A.e("v_lshl_add_u32 v5, v10, 4, v5")
    A.e("v_xor_b32 v16, 32, v5")
    A.e("v_add_u32 v7, s8, v7")
    A.e("s_cmp_ge_u32 s5, 15")
    A.e("s_cselect_b32 s14, 0x%x, 0" % OOB)
    A.e("s_cmp_ge_u32 s5, 14")
    A.e("s_cselect_b32 s15, 0x%x, 0" % OOB)
    A.e("s_add_u32 s82, s82, %d" % (65536 + 2048))
    A.e("s_add_u32 s82, s82, s15")
    if not PAR["single"]:
        A.e("s_bitcmp0_b32 s4, 0")
        A.e("s_cbranch_scc1 L_k1_Fa")
    A.e("s_branch L_k1_Fb")
    return list(A.vm)


def k1_F(A, ORD, X, vm0):
    A.vm, A.lg = list(vm0), []
    A.lab("L_k1_F" + X)
    ACC, FB = 64, 32
    LA, LAF, NT = PAR["la"], PAR["laf"], PAR["nt"]
    assert LAF <= 4 and LA <= LAF

    def g_compute():
        A.c("g = sigmoid(sum bf16(x*gate_w))")
        A.vmw("g")
        A.e("v_readfirstlane_b32 s86, v84")
        A.e("s_add_u32 s86, s86, 1")
        A.e("s_bitset1_b32 s86, 31")
        A.e("v_mov_b32 v20, 0")
        for d in range(8):
            xx, ww = 64 + d, 72 + d
            A.e("v_lshlrev_b32 v80, 16, %s" % v(xx))
            A.e("v_and_b32 v81, 0xffff0000, %s" % v(xx))
            A.e("v_lshlrev_b32 v82, 16, %s" % v(ww))
            A.e("v_and_b32 v83, 0xffff0000, %s" % v(ww))
            A.e("v_mul_f32 v80, v80, v82")
            A.e("v_mul_f32 v81, v81, v83")
            A.e("v_cvt_pk_bf16_f32 v80, v80, v81")
            A.e("v_lshlrev_b32 v81, 16, v80")
            A.e("v_and_b32 v80, 0xffff0000, v80")
            A.e("v_add_f32 v20, v20, v81")
            A.e("v_add_f32 v20, v20, v80")
        for sh in (1, 2, 4, 8):
            A.e("s_nop 1")
            A.e("v_add_f32_dpp v20, v20, v20 row_shr:%d row_mask:0xf bank_mask:0xf bound_ctrl:0" % sh)
        A.e("s_nop 1")
        A.e("v_add_f32_dpp v20, v20, v20 row_bcast:15 row_mask:0xa bank_mask:0xf")
        A.e("v_cvt_pk_bf16_f32 v20, v20, v20")
        A.e("v_and_b32 v20, 0xffff0000, v20")
        A.e("v_mul_f32 v20, s80, v20")
        A.e("v_exp_f32 v20, v20")
        A.e("s_nop 0")
        A.e("v_add_f32 v20, 1.0, v20")
        A.e("v_rcp_f32 v20, v20")
        A.e("s_nop 0")
        A.e("v_cvt_pk_bf16_f32 v20, v20, v20")
        A.e("v_and_b32 v20, 0xffff0000, v20")
        A.e("v_sub_f32 v21, 1.0, v20")
        A.e("v_cvt_pk_bf16_f32 v21, v21, v21")
        A.e("v_and_b32 v21, 0xffff0000, v21")
        A.e("s_lshl_b32 s6, s4, 7")
        A.e("s_add_u32 s6, s6, s13")
        A.e("s_lshl_b32 s6, s6, 3")
        A.e("v_lshlrev_b32 v22, 3, v9")
        A.e("s_mov_b32 exec_lo, 0x80000000")
        A.e("s_mov_b32 exec_hi, 0x80000000")
        A.vmi("gst", "buffer_store_dwordx2 v[20:21], v22, %s, s6 offen%s" % (s(rG, 4), stmod()))
        A.e("s_mov_b64 exec, -1")

    def prefetch_c():
        A.e("s_and_b32 s13, s2, 1")
        A.e("s_lshl_b32 s13, s13, 18")
        A.e("s_lshr_b32 s6, s2, 3")
        A.e("s_lshl_b32 s6, s6, 13")
        A.e("s_add_u32 s13, s13, s6")
        A.e("s_lshl_b32 s6, s7, 11")
        A.e("s_add_u32 s13, s13, s6")
        A.e("v_lshlrev_b32 v2, 7, v1")
        srd(A, rBRE, 26, 524288)
        srd(A, rBIM, 28, 524288)
        A.e("s_mov_b64 exec, 0xffff")
        A.vmi("pf", "buffer_load_dword v20, v2, %s, s13 offen" % s(rBRE, 4))
        A.vmi("pf", "buffer_load_dword v21, v2, %s, s13 offen" % s(rBIM, 4))
        A.e("s_mov_b64 exec, -1")

    def poll1():
        A.vmi("poll", "buffer_load_dword v18, v17, %s, 0 offen sc1" % s(rFL, 4))

    tiles = [2, 3, 4, 5]
    S = Stream(A, mk_items(ORD, 4, False), 8, PAR["fd"], PAR["ffill"])
    dq = []
    for n in range(2, 16):
        dq += [(n, f) for f in dma_ops(A, ORD, n)]
    if PAR["pf"]:
        dq.append((15, prefetch_c))
    dq += [(16, f) for f in p2_setup_ops(A)]

    def dma_upto(m, maxops=999):
        while dq and dq[0][0] <= m and maxops > 0:
            dq.pop(0)[1]()
            maxops -= 1

    def waddr(n):
        return ((14, 15), (28, 29), (30, 31))[n % 3]

    def pre(b):
        kind, c = ORD[b]
        slot = (b % NSLOT) * SLOT
        dma_upto(b - 1 + LA)
        if kind == "P":
            A.e("v_add_u32 v24, %d, v7" % slot)
            A.e("v_xor_b32 v25, 32, v24")
            A.e("v_xor_b32 v26, 64, v24")
            A.e("v_xor_b32 v27, 0x60, v24")
        else:
            A.e("v_add_u32 v%d, %d, v12" % (waddr(b)[0], slot))
            A.e("v_add_u32 v%d, %d, v13" % (waddr(b)[1], slot))
        A.vmw("ch%d" % b)

    def post(b):
        kind, c = ORD[b]
        A.fs(b)
        if kind == "P":
            for ss in range(4):
                A.lgi("c%d_x" % b, "ds_read_b128 %s, %s" % (a(16 * c + 4 * ss, 4), v(24 + ss)))
            dma_upto(b + LA)
        if b == 0:
            g_compute()

    def read(it, sl, tag):
        n, ss, ti = it
        T = tiles[ti]
        for nn in range(2):
            A.lgi(tag, "ds_read_b64_tr_b16 %s, v%d offset:%d" % (v(FB + 4 * sl + 2 * nn, 2), waddr(n)[T & 1],
                                                                ss * 6144 + (T >> 1) * 1024 + nn * 256))

    def mfma(it, sl):
        n, ss, ti = it
        c = ORD[n][1]
        first = (c == 0 and ss == 0)
        A.e("v_mfma_f32_32x32x16_bf16 %s, %s, %s, %s" % (v(ACC + 16 * ti, 16), v(FB + 4 * sl, 4), a(16 * c + 4 * ss, 4),
                                                        "0" if first else v(ACC + 16 * ti, 16)))

    def after(it, mp):
        n, ss, ti = it
        if mp % PAR["dmagap"] == 0:
            dma_upto(S.nb - 1 + LAF, 1)
        left = len(S.items) - mp
        if left in (PAR["ew"], PAR["ew"] - 2, PAR["ew"] - 4):
            assert not dq and S.nb > 14
            p2_dma_w(A, (PAR["ew"] - left) // 2)
        if left == PAR["fpoll"]:
            poll1()
        if left == PAR["ec"]:
            A.fs(17)
            p2_check(A, "poll", 0, "L_p2a" + X)
            A.fs(18)
        if left in (PAR["ec"], PAR["ec"] - 2, PAR["ec"] - 4):
            p2_dma_a(A, (PAR["ec"] - left) // 2)
        if n == 15 and ss == 3 and ti < 2:
            S.fill.append(("dist", S.ninstr()))
            S.fill += swiglu_ops(A, ACC + 16 * ti, 1024 * ti)

    S.pre, S.post, S.read, S.mfma, S.after = pre, post, read, mfma, after
    S.run()
    assert not dq
    A.fs(16)
    S.flush()
    A.e("s_branch L_p2_load")
    return list(A.vm)


def cpow(A, n_scale, dre, dim, t0, t1, va, vb):
    if n_scale == 1.0:
        A.e("v_exp_f32 %s, %s" % (t0, va))
        A.e("v_fract_f32 %s, %s" % (t1, vb))
    else:
        ns = n_scale if isinstance(n_scale, str) else "0x%x" % f2u(n_scale)
        A.e("v_mul_f32 %s, %s, %s" % (t0, ns, va))
        A.e("v_mul_f32 %s, %s, %s" % (t1, ns, vb))
        A.e("v_exp_f32 %s, %s" % (t0, t0))
        A.e("v_fract_f32 %s, %s" % (t1, t1))
    A.e("v_cos_f32 %s, %s" % (dre, t1))
    A.e("v_sin_f32 %s, %s" % (dim, t1))
    A.e("s_nop 0")
    A.e("v_mul_f32 %s, %s, %s" % (dre, dre, t0))
    A.e("v_mul_f32 %s, %s, %s" % (dim, dim, t0))


def cfma_ops(dr, di, mr, mi, xr, xi, ar, ai):
    return ["v_fma_f32 %s, %s, %s, %s" % (dr, mr, xr, ar),
            "v_fma_f32 %s, %s, %s, %s" % (di, mr, xi, ai),
            "v_fma_f32 %s, -%s, %s, %s" % (dr, mi, xi, dr),
            "v_fma_f32 %s, %s, %s, %s" % (di, mi, xr, di)]

def cfma(A, *args):
    for x in cfma_ops(*args):
        A.e(x)

LR, LI, NLI = "v16", "v17", "v5"
L16R, L16I, L128R, L128I, L256R, L256I = "v18", "v19", "v20", "v21", "v22", "v23"
CR, CI, PR, PI = "v2", "v3", "v10", "v11"
ER, EI, SR, SI = "v56", "v57", "v58", "v59"


def k1_S_prologue(A):
    A.vm, A.lg = [], []
    A.lab("L_k1_Spro")
    A.e("s_lshl_b32 s6, s5, 6")
    A.e("v_lshlrev_b32 v4, 1, v8")
    A.e("v_add_u32 v4, s6, v4")
    A.e("s_lshl_b32 s6, s5, 7")
    A.e("s_add_u32 s6, s6, 0x%x" % EP_OFF)
    A.e("v_mov_b32 v55, 0")
    if PAR["cpf"]:
        A.c("pull the code of both launches into this XCD's L2: 4 lines per wave")
        A.e("s_getpc_b64 s[44:45]")
        A.lab("L_k1_pc")
        A.e("s_mov_b32 s46, L_code_end - L_k1_pc")
        A.e("s_mov_b32 s47, 0x20000")
        A.e("s_lshr_b32 s9, s2, 3")
        A.e("s_lshl_b32 s9, s9, 2")
        A.e("s_add_u32 s9, s9, s7")
        A.e("s_lshl_b32 s9, s9, 9")
        A.e("v_lshlrev_b32 v53, 7, v1")
        A.e("s_mov_b64 exec, 15")
        A.vmi("par", "buffer_load_dword v52, v53, s[44:47], s9 offen")
        A.e("s_mov_b64 exec, -1")
    A.e("s_waitcnt lgkmcnt(0)")
    A.vmi("par", "global_load_ushort v60, v4, %s" % s(sLRE, 2))
    A.vmi("par", "global_load_ushort v61, v4, %s" % s(sLIM, 2))
    A.vmi("par", "global_load_ushort v62, v4, %s" % s(sLDT, 2))
    srd(A, rEP, sWS, 4, "s6")
    A.vmi("par", "buffer_load_dword v54, v55, %s, 0 offen sc1" % s(rEP, 4))
    A.e("s_lshl_b32 s6, s4, 7")
    A.e("s_add_u32 s6, s6, 0x%x" % EPR_OFF)
    srd(A, rG, sWS, 4, "s6")
    A.vmi("par", "buffer_load_dword v56, v55, %s, 0 offen sc1" % s(rG, 4))
    k1_common_late(A)
    A.e("s_lshl_b32 s6, s5, 13")
    A.e("s_add_u32 s6, s6, 0x%x" % E_OFF)
    srd(A, rE, sWS, 8192, "s6")
    srd(A, rBRE, sW2, 1376 * 1024)
    A.e("s_cmp_ge_u32 s5, 15")
    A.e("s_cselect_b32 s6, 0x%x, 0" % OOB)
    A.e("s_add_u32 s82, s82, 65536")
    A.e("s_add_u32 s82, s82, s6")
    A.e("v_lshlrev_b32 v4, 3, v0")
    A.e("v_add_u32 v4, %d, v4" % (MISC + 2048))
    A.e("v_mov_b32 v48, 0")
    A.e("v_mov_b32 v49, 0")
    A.e("ds_write_b64 v4, v[48:49]")
    A.e("ds_write_b32 v4, v48 offset:2048")
    A.e("s_lshl_b32 s6, s7, 1")
    A.e("v_add_u32 v63, s6, v9")
    A.e("v_sub_u32 v4, 7, v63")
    A.e("v_lshlrev_b32 v4, 8, v4")
    A.e("v_lshl_add_u32 v4, v8, 3, v4")
    A.e("v_add_u32 v4, %d, v4" % MISC)
    A.e("v_lshlrev_b32 v63, 4, v63")
    A.e("v_cvt_f32_u32 v63, v63")
    A.vmw("par", " lgkmcnt(0)")
    A.e("v_readfirstlane_b32 s14, v54")
    A.e("s_add_u32 s14, s14, 1")
    A.e("s_bitset1_b32 s14, 31")
    A.e("v_readfirstlane_b32 s86, v56")
    A.e("s_add_u32 s86, s86, 1")
    A.e("s_bitset1_b32 s86, 31")
    A.e("v_lshlrev_b32 v60, 16, v60")
    A.e("v_lshlrev_b32 v61, 16, v61")
    A.e("v_lshlrev_b32 v62, 16, v62")
    A.e("v_mul_f32 v62, 0x%x, v62" % f2u(LOG2E))
    A.e("v_exp_f32 v62, v62")
    A.e("s_nop 0")
    A.e("v_cvt_pk_bf16_f32 v62, v62, v62")
    A.e("v_and_b32 v62, 0xffff0000, v62")
    A.e("v_mul_f32 v50, v62, v60")
    A.e("v_mul_f32 v51, v62, v61")
    A.e("v_mul_f32 v50, 0x%x, v50" % f2u(LOG2E))
    A.e("v_mul_f32 v51, 0x%x, v51" % f2u(INV2PI))
    cpow(A, 1.0, LR, LI, "v52", "v53", "v50", "v51")
    cpow(A, 16.0, L16R, L16I, "v52", "v53", "v50", "v51")
    A.e("s_lshl_b32 s6, s7, 9")
    A.e("v_lshlrev_b32 v57, 7, v9")
    A.e("v_add_u32 v57, s6, v57")
    A.e("v_cvt_f32_u32 v57, v57")
    cpow(A, "v57", L128R, L128I, "v52", "v53", "v50", "v51")
    cpow(A, 256.0, L256R, L256I, "v52", "v53", "v50", "v51")
    cpow(A, "v63", PR, PI, "v52", "v53", "v50", "v51")
    A.e("v_sub_f32 %s, 0, %s" % (NLI, LI))
    A.e("v_mul_f32 v52, v60, v60")
    A.e("v_fmac_f32 v52, v61, v61")
    A.e("v_rcp_f32 v52, v52")
    A.e("v_add_f32 v53, -1.0, %s" % LR)
    A.e("v_mul_f32 %s, v53, v60" % CR)
    A.e("v_fmac_f32 %s, %s, v61" % (CR, LI))
    A.e("v_mul_f32 %s, %s, v60" % (CI, LI))
    A.e("v_fma_f32 %s, -v53, v61, %s" % (CI, CI))
    A.e("v_add_f32 v52, v52, v52")
    A.e("v_mul_f32 %s, %s, v52" % (CR, CR))
    A.e("v_mul_f32 %s, %s, v52" % (CI, CI))
    if not PAR["single"]:
        A.e("s_bitcmp0_b32 s4, 0")
        A.e("s_cbranch_scc1 L_k1_Sa")
    A.e("s_branch L_k1_Sb")


def k1_S(A, ORD, X):
    A.vm, A.lg = [], []
    A.lab("L_k1_S" + X)
    RE, IM, ACC, FB = 64, 80, 96, 32
    NT = PAR["nt"]
    tiles = [0, 1]
    lastP = max(n for n in range(16) if ORD[n][0] == "P")
    assert lastP + 1 <= PAR["estep"] <= PAR["cstep"] and PAR["cstep"] + 2 < PAR["hstep"] <= 15
    S = Stream(A, mk_items(ORD, 2, True), 4, PAR["sd"], PAR["sfill"])
    S.fence = lastP + 1

    def er(m):
        b = 24 + 2 * m if m < 4 else 48 + 2 * (m - 4)
        return v(b), v(b + 1)

    def waddr(n):
        return (14, 15)

    def endstate_ops():
        o = []
        cur = (v(RE), v(IM))
        tmp = [("v48", "v49"), ("v50", "v51")]
        for r in range(1, 16):
            d = (ER, EI) if r == 15 else tmp[r & 1]
            o += cfma_ops(d[0], d[1], LR, LI, cur[0], cur[1], v(RE + r), v(IM + r))
            cur = d
        o.append(lambda: A.lgi("ew", "ds_write_b64 v4, v[56:57]"))
        return o

    def publish():
        A.e("s_cmp_lg_u32 s7, 3")
        A.e("s_cbranch_scc1 L_k1_S_nopub" + X)
        cfma(A, "v52", "v54", L16R, L16I, SR, SI, ER, EI)
        A.e("v_mov_b32 v53, s14")
        A.e("v_mov_b32 v55, s14")
        A.e("s_sub_u32 s6, 15, s4")
        A.e("s_lshl_b32 s6, s6, 9")
        A.e("v_lshlrev_b32 v60, 4, v8")
        A.e("s_mov_b32 exec_lo, 0")
        A.e("buffer_store_dwordx4 v[52:55], v60, %s, s6 offen sc1" % s(rE, 4))
        A.e("s_mov_b64 exec, -1")
        A.lab("L_k1_S_nopub" + X)

    def prefix_ops():
        o = [lambda: A.lgw("er")]
        cur = er(6)
        tmp = [("v54", "v55"), ("v60", "v61")]
        for m in range(5, -1, -1):
            d = (SR, SI) if m == 0 else tmp[m & 1]
            o += cfma_ops(d[0], d[1], L16R, L16I, cur[0], cur[1], er(m)[0], er(m)[1])
            cur = d
        o.append(publish)
        return o

    def coef_ops():
        o = []
        for r in range(16):
            t = "v%d" % (48 + (r & 3))
            o.append("v_mul_f32 %s, %s, %s" % (t, CI, v(RE + r)))
            o.append("v_mul_f32 %s, %s, %s" % (v(RE + r), CR, v(RE + r)))
            o.append("v_fma_f32 %s, -%s, %s, %s" % (v(RE + r), CI, v(IM + r), v(RE + r)))
            o.append("v_fma_f32 %s, %s, %s, %s" % (v(IM + r), CR, v(IM + r), t))
        return o

    def e_issue(tag=None):
        for m in range(2):
            x = "buffer_load_dwordx4 %s, v60, %s, 0 offen offset:%d sc1" % (v(24 + 4 * m, 4), s(rE, 4), 1024 * m)
            if tag:
                A.vmi(tag, x)
            else:
                A.e(x)

    def e_addr_ops():
        return ["s_lshl_b32 s6, s7, 2", "s_sub_u32 s6, s6, s4", "s_add_u32 s6, s6, 16",
                "v_add_u32 v62, s6, v9", "v_lshlrev_b32 v60, 9, v62", "v_lshl_add_u32 v60, v8, 4, v60",
                "v_sub_u32 v62, 17, v62", "v_and_b32 v62, -2, v62", "v_max_i32 v62, 0, v62", "v_min_i32 v62, 4, v62",
                "v_lshlrev_b32 v63, 3, v8", "v_add_u32 v63, %d, v63" % (MISC + 8192),
                "s_lshl_b32 s6, s7, 9", "v_lshl_add_u32 v61, v9, 8, v63", "v_add_u32 v61, s6, v61"]

    def prefetch_w2():
        A.e("s_lshr_b32 s6, s2, 3")
        A.e("s_mul_i32 s12, s6, 43")
        A.e("s_mul_i32 s13, s7, 11")
        A.e("s_add_u32 s12, s12, s13")
        A.e("s_lshl_b32 s12, s12, 1")
        A.e("s_and_b32 s6, s2, 1")
        A.e("s_add_u32 s12, s12, s6")
        A.e("s_lshl_b32 s12, s12, 9")
        A.e("v_lshrrev_b32 v52, 2, v1")
        A.e("v_and_b32 v53, 3, v1")
        A.e("v_lshlrev_b32 v52, 10, v52")
        A.e("v_lshl_add_u32 v52, v53, 7, v52")
        A.e("s_mov_b32 exec_hi, 0xfff")
        A.vmi("pf", "buffer_load_dword v53, v52, %s, s12 offen" % s(rBRE, 4))
        A.e("s_mov_b64 exec, -1")

    def e_check():
        A.fs(17)
        A.e("s_mov_b32 s13, 0")
        A.vmw("e")
        A.lab("L_k1_S_poll" + X)
        A.e("v_mov_b32 v48, 0")
        for q in range(4):
            A.e("v_cmp_eq_u32 s[%d:%d], s14, %s" % (18 + 2 * q, 19 + 2 * q, v(25 + 2 * q)))
        for q in range(4):
            A.e("v_addc_co_u32 v48, vcc, 0, v48, s[%d:%d]" % (18 + 2 * q, 19 + 2 * q))
        A.e("v_cmp_ne_u32 vcc, v62, v48")
        A.e("s_cbranch_vccz L_k1_S_ready" + X)
        A.e("s_sleep 2")
        e_issue()
        A.e("s_add_u32 s13, s13, 1")
        A.e("s_cmp_lt_u32 s13, 0x20000")
        A.e("s_waitcnt vmcnt(0)")
        A.e("s_cbranch_scc1 L_k1_S_poll" + X)
        A.lab("L_k1_S_ready" + X)
        cfma(A, "v48", "v49", L256R, L256I, "v28", "v30", "v24", "v26")
        A.e("v_mul_f32 v50, %s, v48" % L128R)
        A.e("v_mul_f32 v51, %s, v49" % L128R)
        A.e("v_fma_f32 v50, -%s, v49, v50" % L128I)
        A.e("v_fmac_f32 v51, %s, v48" % L128I)
        A.lgi("pw", "ds_write_b64 v61, v[50:51]")
        A.fs(18)

    def epoch_bump():
        A.e("s_lshl_b32 s6, s7, 4")
        A.e("s_add_u32 s6, s6, s4")
        A.e("s_cmp_lg_u32 s6, 15")
        A.e("s_cbranch_scc1 L_k1_S_noep" + X)
        A.e("v_mov_b32 v60, s14")
        A.e("v_mov_b32 v61, 0")
        A.e("s_mov_b64 exec, 1")
        A.e("buffer_store_dword v60, v61, %s, 0 offen sc1" % s(rEP, 4))
        A.e("s_mov_b64 exec, -1")
        A.lab("L_k1_S_noep" + X)

    def scan_ops():
        o = []
        pr = [24, 26, 28, 30, 48, 50, 52, 56]
        def prd():
            for q in range(8):
                A.lgi("pr", "ds_read_b64 %s, v63 offset:%d" % (v(pr[q], 2), 256 * q))
        o += [prd, epoch_bump, lambda: A.lgw("pr")]
        for (x, y) in ((0, 1), (2, 3), (4, 5), (6, 7), (0, 2), (4, 6), (4, 0)):
            o.append("v_add_f32 %s, %s, %s" % (v(pr[x]), v(pr[x]), v(pr[y])))
            o.append("v_add_f32 %s, %s, %s" % (v(pr[x] + 1), v(pr[x] + 1), v(pr[y] + 1)))
        o += cfma_ops("v50", "v51", PR, PI, "v48", "v49", SR, SI)
        o += ["v_mul_f32 v48, %s, v50" % CR, "v_mul_f32 v49, %s, v51" % CR, "v_fma_f32 v48, -%s, v51, v48" % CI, "v_fmac_f32 v49, %s, v50" % CI]
        cur = ("v48", "v49")
        for r in range(16):
            o.append("v_fmac_f32 %s, %s, %s" % (v(RE + r), LR, cur[0]))
            o.append("v_fmac_f32 %s, %s, %s" % (v(IM + r), LR, cur[1]))
            o.append("v_fmac_f32 %s, %s, %s" % (v(RE + r), NLI, cur[1]))
            o.append("v_fmac_f32 %s, %s, %s" % (v(IM + r), LI, cur[0]))
            cur = (v(RE + r), v(IM + r))
        for q in range(8):
            o.append("v_cvt_pk_bf16_f32 %s, %s, %s" % (v(RE + q), v(RE + 2 * q), v(RE + 2 * q + 1)))
        for q in range(8):
            o.append("v_cvt_pk_bf16_f32 %s, -%s, -%s" % (v(IM + q), v(IM + 2 * q), v(IM + 2 * q + 1)))
        o.append(("bar", PAR["cstep"] + 2))
        o += ["v_xor_b32 v48, 16, v54", "v_xor_b32 v49, 32, v55"]
        for b_, ad, off in ((RE, "v54", 0), (RE + 4, "v48", 0), (IM, "v54", 2048), (IM + 4, "v48", 2048)):
            o.append(lambda b_=b_, ad=ad, off=off: A.lgi("tw", "ds_write_b128 %s, %s offset:%d" % (ad, v(b_, 4), off)))
        o += ["s_lshl_b32 s12, s5, 11", "s_add_u32 s12, s12, s81", "s_add_u32 s13, s12, 32768"]
        dst = [RE + 8, RE + 12, IM + 8, IM + 12]
        def rd():
            A.lgw("tw")
            for ks in range(4):
                for nn in range(2):
                    A.lgi("tr%d" % ks, "ds_read_b64_tr_b16 %s, %s offset:%d" % (v(dst[ks] + 2 * nn, 2), "v49" if nn else "v55", ks * 1024 + nn * 256))
        o += [("gap",), rd, ("gap",)]
        def st(ks):
            A.lgw("tr%d" % ks)
            A.vmi("hst", "buffer_store_dwordx4 %s, v6, %s, s%d offen offset:%d%s" % (v(dst[ks], 4), s(rAS, 4), 13 if ks >= 2 else 12, 1024 * (ks & 1), stmod()))
            if ks == 3:
                A.fs(19)
        for ks in range(4):
            o.append(lambda ks=ks: st(ks))
            o += [("gap",)] * PAR["stgap"]
        return o

    def tr_addr_ops():
        base = MISC
        return ["v_lshlrev_b32 v54, 6, v8", "v_lshl_add_u32 v54, v9, 5, v54", "v_bfe_u32 v50, v1, 1, 2", "v_lshlrev_b32 v50, 4, v50",
                "v_xor_b32 v54, v50, v54", "v_add_u32 v54, s8, v54", "v_add_u32 v54, %d, v54" % base,
                "v_bfe_u32 v55, v1, 2, 2", "v_lshlrev_b32 v55, 6, v55", "v_lshl_add_u32 v55, v9, 9, v55",
                "v_and_b32 v50, 1, v1", "v_lshl_add_u32 v55, v50, 5, v55", "v_bfe_u32 v50, v1, 4, 1", "v_lshl_add_u32 v55, v50, 4, v55",
                "v_bfe_u32 v50, v1, 1, 1", "v_lshl_add_u32 v55, v50, 3, v55", "v_bfe_u32 v50, v1, 3, 1", "v_lshlrev_b32 v50, 4, v50",
                "v_xor_b32 v55, v50, v55", "v_add_u32 v55, s8, v55", "v_add_u32 v55, %d, v55" % base]

    def pre(b):
        kind, c = ORD[b]
        slot = (b % NSLOT) * SLOT
        if b == lastP + 1:
            S.flush()
            A.e("v_mov_b32 v48, %d" % (MISC + 4096))
            A.e("v_mov_b32 v49, 1")
            A.e("s_mov_b64 exec, 1")
            A.e("ds_add_u32 v48, v49")
            A.e("s_mov_b64 exec, -1")
            A.e("s_mov_b32 s13, 0")
            A.lab("L_k1_S_sync" + X)
            A.e("ds_read_b32 v49, v48")
            A.e("s_add_u32 s13, s13, 1")
            A.e("s_waitcnt lgkmcnt(0)")
            A.e("v_readfirstlane_b32 s6, v49")
            A.e("s_cmp_lt_u32 s13, 0x100000")
            A.e("s_cselect_b32 s6, s6, 4")
            A.e("s_cmp_lt_u32 s6, 4")
            A.e("s_cbranch_scc1 L_k1_S_sync" + X)
            A.lg = []
            for m in range(7):
                A.lgi("er", "ds_read_b64 v[%s:%s], v4 offset:%d" % (er(m)[0][1:], er(m)[1][1:], 256 * (m + 1)))
            S.fill += prefix_ops()
            S.flush()
            A.fs(56)
            S.fill += coef_ops() + tr_addr_ops() + e_addr_ops()
            S.flush()
        if b == PAR["cstep"] + 1:
            S.flush()
            A.lgw("pw")
        if b == PAR["cstep"] + 2:
            assert "pr" not in A.lg
        if b == PAR["hstep"]:
            S.flush()
            A.vmw("hst")
        if kind == "P":
            A.e("v_add_u32 v28, %d, v7" % slot)
            A.e("v_xor_b32 v29, 32, v28")
            A.e("v_xor_b32 v30, 64, v28")
            A.e("v_xor_b32 v31, 0x60, v28")
            for q in range(4):
                A.e("v_add_u32 %s, s8, %s" % (v(24 + q), v(28 + q)))
        else:
            A.e("v_add_u32 v14, %d, v12" % slot)
            A.e("v_add_u32 v15, %d, v13" % slot)

    def post(b):
        A.fs(b)
        if b == PAR["estep"]:
            e_issue("e")
        if b == PAR["cstep"]:
            S.fill += [("gap",)] * PAR["cdelay"] + [e_check]
        if b == PAR["cstep"] + 1:
            S.fill += scan_ops()
            S.K = PAR["sfill2"]
        if b == PAR["hstep"]:
            flag_store(A, 0, "v24", "v25", "L_k1_S_nofl" + X)
            A.fs(57)
        if b == PAR["pfw"] and PAR["pf"]:
            S.fill.append(prefetch_w2)

    def read(it, sl, tag):
        n, ss, ti = it
        kind, c = ORD[n]
        if kind == "P":
            if ti == 0:
                A.lgi(tag, "ds_read_b128 %s, %s" % (a(16 * c + 4 * ss, 4), v(24 + ss)))
            A.lgi(tag, "ds_read_b128 %s, %s offset:%d" % (v(FB + 4 * sl, 4), v(28 + ss), 16384 + 4096 * ti))
        else:
            T = tiles[ti]
            for nn in range(2):
                A.lgi(tag, "ds_read_b64_tr_b16 %s, v%d offset:%d" % (v(FB + 4 * sl + 2 * nn, 2), waddr(n)[T & 1],
                                                                    ss * 6144 + (T >> 1) * 1024 + nn * 256))

    def mfma(it, sl):
        n, ss, ti = it
        kind, c = ORD[n]
        first = (c == 0 and ss == 0)
        if kind == "P":
            d = (RE, IM)[ti]
            A.e("v_mfma_f32_32x32x16_bf16 %s, %s, %s, %s" % (v(d, 16), a(16 * c + 4 * ss, 4), v(FB + 4 * sl, 4), "0" if first else v(d, 16)))
        else:
            d = ACC + 16 * ti
            A.e("v_mfma_f32_32x32x16_bf16 %s, %s, %s, %s" % (v(d, 16), v(FB + 4 * sl, 4), a(16 * c + 4 * ss, 4), "0" if first else v(d, 16)))

    def after(it, mp):
        n, ss, ti = it
        if n == lastP and ss == 3 and ti == 1:
            S.fill.append(("dist", S.ninstr()))
            S.fill += endstate_ops()
        if n == 15 and ss == 3:
            S.fill.append(("dist", S.ninstr()))
            S.fill += swiglu_ops(A, ACC + 16 * ti, 1024 * ti)

    S.pre, S.post, S.read, S.mfma, S.after = pre, post, read, mfma, after
    S.run()
    A.fs(16)
    S.flush()
    if X == "a":
        A.e("s_branch L_p2_comp")


P2_GROUPS = [("C", 0, 8), ("C", 8, 8), ("W", 0, 8), ("W", 8, 8), ("W", 16, 6)]
P2_SEQ = [(k, b, n, m) for (k, b, n) in P2_GROUPS for m in range(n)]
NA, NW = 6, 14
WUNITS = list(range(12)) + [18, 19]
def AU(n): return (12 + n % NA) * 8192
def WU(n): return WUNITS[n % NW] * 8192


rA2, rCRE, rCIM, rW2 = 44, 48, 52, 56


def p2_setup_ops(A):
    def f1():
        A.e("s_lshr_b32 s10, s5, 1")
        A.e("s_and_b32 s11, s5, 1")
        A.e("s_and_b32 s13, s10, 3")
        A.e("s_lshl_b32 s13, s13, 1")
        if PAR["urot"]:
            A.e("s_add_u32 s13, s13, s11")
            A.e("s_lshl_b32 s6, s4, 1")
            A.e("s_add_u32 s13, s13, s6")
            A.e("s_and_b32 s13, s13, 7")
        A.e("s_sub_u32 s14, s13, 6")
        A.e("s_cmp_ge_u32 s13, 6")
        A.e("s_cselect_b32 s14, s14, s13")
        A.e("s_lshl_b32 s9, s7, 11")
        srd(A, rW2, sW2, 1376 * 1024)
    def f2():
        A.e("v_bfe_u32 v10, v1, 4, 1")
        A.e("v_lshlrev_b32 v10, 2, v10")
        A.e("v_and_b32 v11, 7, v1")
        A.e("v_xor_b32 v10, v10, v11")
        A.e("v_lshlrev_b32 v10, 4, v10")
        A.e("v_lshrrev_b32 v22, 3, v1")
    def f3():
        A.e("v_lshl_add_u32 v3, v22, 10, v10")
        A.e("s_lshl_b32 s6, s7, 14")
        A.e("s_lshl_b32 s12, s10, 7")
        A.e("s_add_u32 s12, s12, s6")
        A.e("v_add_u32 v3, s12, v3")
        A.e("v_add_u32 v7, 8192, v3")
        A.e("v_lshrrev_b32 v10, 4, v1")
        A.e("v_xor_b32 v10, v10, v11")
        A.e("v_lshlrev_b32 v10, 4, v10")
    def f4():
        A.e("v_lshl_add_u32 v4, v22, 10, v10")
        A.e("s_lshl_b32 s6, s7, 14")
        A.e("s_lshl_b32 s12, s10, 16")
        A.e("s_add_u32 s12, s12, s6")
        A.e("v_add_u32 v4, s12, v4")
        A.e("v_xor_b32 v5, 64, v4")
        A.e("v_add_u32 v5, 8192, v5")
        srd(A, rCRE, 26, 524288)
        srd(A, rCIM, 28, 524288)
    def f5():
        A.e("s_and_b32 s12, s7, 1")
        A.e("s_lshr_b32 s15, s7, 1")
        A.e("s_lshl_b32 s15, s15, 11")
        A.e("v_add_u32 v2, s15, v6")
        A.e("s_lshl_b32 s8, s12, 12")
        A.e("s_add_u32 s8, s8, s15")
        A.e("s_lshl_b32 s6, s4, 1")
        A.e("s_add_u32 s6, s6, s11")
        A.e("s_lshl_b32 s6, s6, 1")
        A.e("s_add_u32 s6, s6, s12")
        A.e("s_mul_i32 s6, s6, %d" % (NKS * 1024))
        srd(A, rA2, sWS, NKS * 1024, "s6")
    def f6():
        A.e("v_and_b32 v17, 15, v1")
        A.e("v_lshlrev_b32 v17, 2, v17")
    return [f1, f2, f3, f4, f5, f6]


def p2_idx(A, n, reg):
    kind, base, ln, m = P2_SEQ[n]
    if ln == 8:
        A.e("s_add_u32 s%d, s13, %d" % (reg, m))
        A.e("s_and_b32 s%d, s%d, 7" % (reg, reg))
    else:
        A.e("s_add_u32 s%d, s14, %d" % (reg, m))
        A.e("s_sub_u32 s6, s%d, 6" % reg)
        A.e("s_cmp_ge_u32 s%d, 6" % reg)
        A.e("s_cselect_b32 s%d, s6, s%d" % (reg, reg))


def p2_dma_w(A, n):
    kind, base, ln, m = P2_SEQ[n]
    p2_idx(A, n, 12)
    if kind == "W":
        A.e("s_lshl_b32 s12, s12, 16")
        if base:
            A.e("s_add_u32 s12, s12, %d" % (base * 65536))
        r_, va, vb = rW2, "v3", "v7"
    else:
        A.e("s_lshl_b32 s12, s12, 7")
        r_, va, vb = (rCIM if base else rCRE), "v4", "v5"
    A.e("s_add_u32 m0, s9, %d" % WU(n))
    A.e("s_nop 0")
    A.vmi("w%d" % n, "buffer_load_dwordx4 %s, %s, s12 offen lds" % (va, s(r_, 4)))
    A.e("s_add_u32 m0, s9, %d" % (WU(n) + 1024))
    A.e("s_nop 0")
    A.vmi("w%d" % n, "buffer_load_dwordx4 %s, %s, s12 offen lds" % (vb, s(r_, 4)))


def p2_dma_a(A, n):
    kind, base, ln, m = P2_SEQ[n]
    p2_idx(A, n, 12)
    A.e("s_lshl_b32 s12, s12, 12")
    off = (64 + 4 * base) * 1024 if kind == "W" else 4 * base * 1024
    if off:
        A.e("s_add_u32 s12, s12, %d" % off)
    A.e("s_add_u32 m0, s8, %d" % AU(n))
    A.e("s_nop 0")
    A.vmi("a%d" % n, "buffer_load_dwordx4 v2, %s, s12 offen sc1 lds" % s(rA2, 4))
    A.vmi("a%d" % n, "buffer_load_dwordx4 v2, %s, s12 offen offset:1024 sc1 lds" % s(rA2, 4))


def p2_check(A, tag, off, L):
    A.e("s_mov_b32 s15, 0")
    A.vmw(tag)
    A.lab(L + "_poll")
    A.e("v_cmp_ne_u32 vcc, s86, v18")
    A.e("s_cbranch_vccz %s_go" % L)
    A.e("s_sleep %d" % PAR["slp"])
    A.e("buffer_load_dword v18, v17, %s, 0 offen offset:%d sc1" % (s(rFL, 4), off))
    A.e("s_add_u32 s15, s15, 1")
    A.e("s_cmp_lt_u32 s15, 0x20000")
    A.e("s_waitcnt vmcnt(0)")
    A.e("s_cbranch_scc1 %s_poll" % L)
    A.lab(L + "_go")


def p2_load(A, vm0):
    N = len(P2_SEQ)
    A.lab("L_p2_load")
    A.vm, A.lg = list(vm0), []
    LA2 = PAR["ala"]
    assert LA2 <= NA - 2
    dma_w = lambda n: p2_dma_w(A, n)
    dma_a = lambda n: p2_dma_a(A, n)

    def emit(ops):
        for x in ops:
            if isinstance(x, str):
                A.e(x)
            else:
                x()

    A.e("s_nop 7")
    A.e("s_nop 3")
    emit(swiglu_ops(A, 64 + 32, 2048))
    for n in range(3, LA2 + 1):
        dma_a(n)
    emit(swiglu_ops(A, 64 + 48, 3072))
    A.fs(19)
    wn, an = 3, LA2 + 1
    for n in range(N):
        A.vmw("w%d" % n)
        A.vmw("a%d" % n)
        if n == PAR["fl2"]:
            A.vmw("st")
        A.e("s_barrier")
        A.fs(20 + n)
        if n == PAR["chk2"]:
            p2_check(A, "poll2", 256, "L_p2b")
            A.e("s_lshl_b32 s6, s5, 2")
            A.e("s_add_u32 s6, s6, s7")
            A.e("s_cmp_lg_u32 s6, 0")
            A.e("s_cbranch_scc1 L_p2_noep")
            A.e("v_mov_b32 v18, s86")
            A.e("s_mov_b64 exec, 1")
            A.e("buffer_store_dword v18, v19, %s, 0 offen sc1" % s(rEP, 4))
            A.e("s_mov_b64 exec, -1")
            A.lab("L_p2_noep")
        if n == PAR["p2poll"]:
            A.vmi("poll2", "buffer_load_dword v18, v17, %s, 0 offen offset:256 sc1" % s(rFL, 4))
        budget = 3 if n in (0, PAR["chk2"]) else 2
        while budget > 0:
            a_ok = an < N and an <= n + LA2 and (an < 16 or n >= PAR["chk2"])
            w_ok = wn < N and wn - NW <= n - 2
            if w_ok and (wn <= min(an, n + 2) or not a_ok):
                if not a_ok and wn > n + PAR["wla"] and not (an == 16 and n < PAR["chk2"]):
                    break
                dma_w(wn); wn += 1
            elif a_ok:
                dma_a(an); an += 1
            else:
                break
            budget -= 1
        assert (an > n + 1 or an == N) and (wn > n + 1 or wn == N)
    assert an == N
    assert wn == N
    A.fs_end()
    A.e("s_endpgm")


def p2_comp(A):
    N = len(P2_SEQ)
    rXs, rO, rGs = 44, 48, 52
    ACCB, ACCA, GV, XV = 32, 48, 64, 96
    A.lab("L_p2_comp")
    A.vm, A.lg = [], []
    A.fs(58)
    A.e("s_and_b32 s9, s7, 1")
    A.e("s_lshr_b32 s10, s7, 1")
    A.e("s_lshl_b32 s12, s4, 1")
    A.e("s_and_b32 s6, s5, 1")
    A.e("s_add_u32 s12, s12, s6")
    A.e("s_lshl_b32 s12, s12, 1")
    A.e("s_add_u32 s12, s12, s9")
    A.e("s_lshl_b32 s12, s12, 5")
    A.e("s_and_b32 s15, s5, 14")
    A.e("s_add_u32 s15, s15, s10")
    A.e("s_lshl_b32 s15, s15, 5")
    A.e("v_lshlrev_b32 v20, 4, v9")
    A.e("v_add_u32 v20, s12, v20")
    A.e("v_add_u32 v21, s15, v8")
    A.e("v_lshlrev_b32 v22, 3, v20")
    A.e("v_lshlrev_b32 v23, 1, v21")
    A.e("v_lshl_add_u32 v19, v20, 10, v23")
    A.e("v_lshlrev_b32 v5, 1, v19")
    A.e("v_add_u32 v26, 4096, v19")
    A.e("v_add_u32 v27, 8192, v19")
    A.e("v_add_u32 v28, 12288, v19")
    srd(A, rXs, sX, 2048 * 1024)
    srd(A, rGs, sWS, 16384, "0x%x" % G_OFF)
    A.e("s_lshl_b32 s6, s9, 12")
    A.e("v_add_u32 v7, s6, v6")
    A.e("v_bfe_u32 v10, v1, 1, 3")
    A.e("v_xor_b32 v10, v10, v9")
    A.e("v_lshlrev_b32 v10, 4, v10")
    A.e("v_lshl_add_u32 v12, v8, 7, v10")
    A.e("s_lshl_b32 s6, s10, 12")
    A.e("v_add_u32 v12, s6, v12")
    A.e("v_bfe_u32 v10, v1, 2, 2")
    A.e("v_lshlrev_b32 v13, 7, v10")
    A.e("v_lshl_add_u32 v13, v9, 9, v13")
    A.e("v_bfe_u32 v10, v1, 4, 1")
    A.e("v_lshl_add_u32 v13, v10, 5, v13")
    A.e("v_and_b32 v10, 3, v1")
    A.e("v_lshl_add_u32 v13, v10, 3, v13")
    A.e("v_bfe_u32 v10, v1, 3, 1")
    A.e("v_xor_b32 v10, s10, v10")
    A.e("v_lshl_add_u32 v13, v10, 6, v13")
    A.e("v_add_u32 v14, %d, v7" % AU(0))
    A.e("s_waitcnt vmcnt(0)")
    for r in range(16):
        A.e("buffer_load_ushort %s, %s, %s, 0 offen offset:%d" % (v(XV + r), ("v19", "v26", "v27", "v28")[r >> 2], s(rXs, 4), 1024 * (r & 3)))
    A.e("global_load_ushort v29, v23, s[40:41]")
    srd(A, rO, 84, 2048 * 2048)

    def addr(n):
        if P2_SEQ[n][0] == "W":
            A.e("v_add_u32 v15, %d, v13" % WU(n))
        else:
            A.e("v_add_u32 v15, %d, v12" % WU(n))
            A.e("v_xor_b32 v16, 32, v15")
            A.e("v_xor_b32 v17, 64, v15")
            A.e("v_xor_b32 v18, 0x60, v15")

    def reads(n, ss):
        fb = 32 * (n & 1)
        tg = "r%d_%d" % (n, ss)
        A.lgi(tg, "ds_read_b128 %s, v14 offset:%d" % (a(fb + 4 * ss, 4), AU(n) - AU(0) + 1024 * ss))
        if P2_SEQ[n][0] == "W":
            for nn in range(2):
                A.lgi(tg, "ds_read_b64_tr_b16 %s, v15 offset:%d" % (a(fb + 16 + 4 * ss + 2 * nn, 2), 2048 * ss + 1024 * nn))
        else:
            A.lgi(tg, "ds_read_b128 %s, %s" % (a(fb + 16 + 4 * ss, 4), v(15 + ss)))

    def mfma(n, ss):
        kind, base, ln, m = P2_SEQ[n]
        fb = 32 * (n & 1)
        acc = v(ACCB if kind == "W" else ACCA, 16)
        first = (base == 0 and m == 0 and ss == 0)
        A.lgw("r%d_%d" % (n, ss))
        A.e("v_mfma_f32_32x32x16_bf16 %s, %s, %s, %s" % (acc, a(fb + 4 * ss, 4), a(fb + 16 + 4 * ss, 4), "0" if first else acc))

    def xd(q):
        if q == 0:
            A.e("s_waitcnt vmcnt(0)")
            A.e("v_lshlrev_b32 v29, 16, v29")
        r0, r1 = 2 * q, 2 * q + 1
        A.e("v_lshlrev_b32 %s, 16, %s" % (v(XV + r0), v(XV + r0)))
        A.e("v_lshlrev_b32 %s, 16, %s" % (v(XV + r1), v(XV + r1)))
        A.e("v_mul_f32 %s, %s, v29" % (v(XV + r0), v(XV + r0)))
        A.e("v_mul_f32 %s, %s, v29" % (v(XV + r1), v(XV + r1)))
        A.e("v_cvt_pk_bf16_f32 %s, %s, %s" % (v(XV + r0), v(XV + r0), v(XV + r1)))
        A.e("v_and_b32 %s, 0xffff0000, %s" % (v(XV + r1), v(XV + r0)))
        A.e("v_lshlrev_b32 %s, 16, %s" % (v(XV + r0), v(XV + r0)))

    def fold(q):
        for r in range(4 * q, 4 * q + 4):
            A.e("v_add_f32 %s, %s, %s" % (v(ACCA + r), v(ACCA + r), v(XV + r)))
        for r in range(4 * q, 4 * q + 4):
            A.e("v_mul_f32 %s, %s, %s" % (v(ACCA + r), v(GV + 2 * r), v(ACCA + r)))

    for n in range(N):
        addr(n)
        A.e("s_barrier")
        if n == PAR["fl2"]:
            flag_store(A, 256, "v30", "v31", "L_p2_nofl")
        for ss in range(4):
            if n >= 1:
                mfma(n - 1, ss)
            reads(n, ss)
        if n == 0:
            for q in range(8):
                A.e("buffer_load_dwordx4 %s, v22, %s, 0 offen offset:%d sc1" % (v(GV + 4 * q, 4), s(rGs, 4), 16 * q))
        if 8 <= n < 16:
            xd(n - 8)
        if 18 <= n < 22:
            fold(n - 18)
    for ss in range(4):
        mfma(N - 1, ss)
    A.fs(59)
    A.e("s_nop 7")
    A.e("s_nop 3")
    for q in range(8):
        A.e("v_cvt_pk_bf16_f32 %s, %s, %s" % (v(XV + q), v(ACCB + 2 * q), v(ACCB + 2 * q + 1)))
    for q in range(8):
        A.e("v_lshlrev_b32 %s, 16, %s" % (v(ACCB + 2 * q), v(XV + q)))
        A.e("v_and_b32 %s, 0xffff0000, %s" % (v(ACCB + 2 * q + 1), v(XV + q)))
    for r in range(16):
        A.e("v_mul_f32 %s, %s, %s" % (v(ACCB + r), v(GV + 2 * r + 1), v(ACCB + r)))
    for q in range(8):
        A.e("v_cvt_pk_bf16_f32 %s, %s, %s" % (v(XV + q), v(ACCB + 2 * q), v(ACCB + 2 * q + 1)))
    for q in range(8):
        A.e("v_lshlrev_b32 %s, 16, %s" % (v(ACCB + 2 * q), v(XV + q)))
        A.e("v_and_b32 %s, 0xffff0000, %s" % (v(ACCB + 2 * q + 1), v(XV + q)))
        A.e("s_movk_i32 s6, %d" % (4096 * q))
        for r in (2 * q, 2 * q + 1):
            A.e("v_add_f32 %s, %s, %s" % (v(ACCB + r), v(ACCB + r), v(ACCA + r)))
            A.e("buffer_store_dword %s, v5, %s, s6 offen offset:%d%s" % (v(ACCB + r), s(rO, 4), 2048 * (r & 1), stmod("o")))
    A.fs(60)
    A.fs_end()
    A.dbg_end()
    A.e("s_endpgm")


def gen_all(A):
    K = NAME + "_kernel"
    A.L.append(".globl %s\n.p2align 8\n.type %s,@function\n%s:" % (K, K, K))
    k1_prologue(A)
    vm0 = k1_F_prologue(A)
    k1_S_prologue(A)
    if not PAR["single"]:
        va = k1_F(A, mkord(PAR["ord"]), "a", vm0)
        k1_S(A, mkord(PAR["ord"]), "a")
    vb = k1_F(A, mkord(PAR["ord2"]), "b", vm0)
    if PAR["single"]:
        va = vb
    assert va == vb
    k1_S(A, mkord(PAR["ord2"]), "b")
    p2_comp(A)
    p2_load(A, va)
    A.lab("L_k1_end")
    A.e("s_endpgm")
    A.lab("L_code_end")


def kd(name, nv, acc, ns=102):
    return """.amdhsa_kernel %s
  .amdhsa_next_free_vgpr %d
  .amdhsa_next_free_sgpr %d
  .amdhsa_accum_offset %d
  .amdhsa_group_segment_fixed_size 0
  .amdhsa_kernarg_size 136
  .amdhsa_user_sgpr_count 2
  .amdhsa_user_sgpr_kernarg_segment_ptr 1
  .amdhsa_system_sgpr_workgroup_id_x 1
.end_amdhsa_kernel
""" % (name, nv, ns, acc)


def main(path):
    ref = open("cdna_kernels/%s.s.ref" % NAME).read().splitlines()
    head = [l for l in ref if l.startswith(";") and "@launch" not in l and "Override launch" not in l and "grid=ceil" not in l]
    head = head[:18]
    A = Asm()
    gen_all(A)
    out = head + [
        "; @launch grid=(256,1,1) block=(512,1,1) lds=%d" % K1_LDS,
        '.amdgcn_target "amdgcn-amd-amdhsa--gfx950"', ".text"] + A.L + [
        '.section .rodata,"a"', ".p2align 6", kd(NAME + "_kernel", 256, 128)]
    open(path, "w").write("\n".join(out))


if __name__ == "__main__":
    if "--stamp" in sys.argv:
        STAMP = True
        sys.argv.remove("--stamp")
    for x in list(sys.argv):
        if x.startswith("-O"):
            OPT.add(x[2:]); sys.argv.remove(x)
        elif x.startswith("-P"):
            kk, vv = x[2:].split("=")
            PAR[kk] = vv if kk.startswith("ord") else int(vv)
            sys.argv.remove(x)
    main(sys.argv[1] if len(sys.argv) > 1 else "cdna_kernels/%s.s" % NAME)
```

```python
import sys, struct

NAME = "gated_mix__ssm_conv_s5__glu_gated_swiglu__prompt"

def f2u(x):
    return struct.unpack("<I", struct.pack("<f", x))[0]

LOG2E = 1.4426950408889634
INV2PI = 0.15915494309189535

NKS = 150
A_BYTES = 64 * NKS * 1024
E_OFF = 0xA00000
G_OFF = 0xA20000
EP_OFF = 0xA30000


EPR_OFF = 0xA31000
FL_OFF = 0xA40000

STAMP = False
OPT = {"asc0", "asc1", "osc0", "osc1"}
ST_OFF = 0xB00000

class Asm:
    def __init__(self):
        self.L = []
        self.ni = 0
        self.cond = False
        self.vm = []
        self.lg = []

    def e(self, s):
        if "nomfma" in OPT and s.startswith("v_mfma"):
            s = "s_nop 0"
        if "nolds" in OPT and s.startswith("ds_read"):
            s = "s_nop 0"
        self.L.append("  " + s)
        if not self.cond:
            self.ni += 1

    def c(self, s):
        pass

    def lab(self, s):
        self.L.append(s + ":")

    def fs2(self, n):
        if "vw" in OPT:
            self.fs(n, True)

    def fs(self, n, vw=False):
        if "vw" in OPT and not vw and 20 <= n < 55:
            return
        if STAMP and ("light" not in OPT or n in (0, 7, 9, 13, 15, 16, 19, 20, 36, 55, 58, 59, 61)):
            self.e("%s s[98:99]" % ("s_memrealtime" if "rt" in OPT else "s_memtime"))
            self.e("s_waitcnt lgkmcnt(0)")
            self.lg = []
            self.e("s_sub_u32 s98, s98, s96")
            self.e("v_writelane_b32 v0, s98, %d" % n)

    def dbg_end(self):
        if "hold2" in OPT:
            self.e("s_load_dwordx2 s[8:9], s[0:1], 120")
            self.e("s_waitcnt vmcnt(0) lgkmcnt(0)")
            self.e("s_mov_b32 s10, 256")
            self.e("s_mov_b32 s11, 0x20000")
            self.e("s_not_b32 s12, s94")
            self.e("v_mov_b32 v2, s12")
            self.e("v_mov_b32 v1, 0")
            self.e("s_mov_b64 exec, 1")
            self.e("s_cmp_lg_u32 s7, 0")
            self.e("s_cbranch_scc1 L_hold_a")
            self.e("buffer_atomic_umax v2, v1, s[8:11], 0 offen")
            self.lab("L_hold_a")
            self.e("s_sleep 4")
            self.e("s_memrealtime s[98:99]")
            self.e("s_waitcnt lgkmcnt(0)")
            self.e("s_sub_u32 s98, s98, s94")
            self.e("s_cmp_lt_u32 s98, 4000")
            self.e("s_cbranch_scc1 L_hold_a")
            self.e("buffer_load_dword v2, v1, s[8:11], 0 offen sc1")
            self.e("s_waitcnt vmcnt(0)")
            self.e("v_readfirstlane_b32 s94, v2")
            self.e("s_not_b32 s94, s94")
        if "hold" in OPT:
            self.lab("L_hold")
            self.e("s_sleep 4")
            self.e("s_memrealtime s[98:99]")
            self.e("s_waitcnt lgkmcnt(0)")
            self.e("s_sub_u32 s98, s98, s94")
            self.e("s_cmp_lt_u32 s98, %d" % PAR["hold"])
            self.e("s_cbranch_scc1 L_hold")
        if "dbg" in OPT:
            self.e("s_waitcnt vmcnt(0)")
            self.e("s_memrealtime s[98:99]")
            self.e("s_memtime s[92:93]")
            self.e("s_load_dwordx2 s[8:9], s[0:1], 120")
            self.e("s_waitcnt lgkmcnt(0)")
            self.e("s_mov_b32 s10, 256")
            self.e("s_mov_b32 s11, 0x20000")
            self.e("s_not_b32 s94, s94")
            self.e("s_sub_u32 s92, s92, s96")
            self.e("v_mov_b32 v2, s94")
            self.e("v_mov_b32 v3, s98")
            self.e("v_mov_b32 v4, s92")
            self.e("v_mov_b32 v1, 0")
            self.e("s_cmp_lg_u32 s7, 0")
            self.e("s_cbranch_scc1 L_dbg_done")
            self.e("s_mov_b64 exec, 1")
            self.e("buffer_atomic_umax v2, v1, s[8:11], 0 offen")
            self.e("buffer_atomic_umax v3, v1, s[8:11], 0 offen offset:4")
            self.e("buffer_atomic_umax v4, v1, s[8:11], 0 offen offset:8")
            self.lab("L_dbg_done")

    def stamp_begin(self):
        if STAMP or "dbg" in OPT or "hold" in OPT:
            self.e("s_memrealtime s[94:95]")
            self.e("%s s[96:97]" % ("s_memrealtime" if "rt" in OPT else "s_memtime"))

    def fs_end(self):
        if STAMP:
            self.e("s_waitcnt vmcnt(0)")
            self.fs(61)
            self.e("s_memrealtime s[98:99]")
            self.e("s_waitcnt lgkmcnt(0)")
            self.e("v_writelane_b32 v0, s94, 62")
            self.e("v_writelane_b32 v0, s98, 63")
            self.e("s_add_u32 s8, s%d, 0x%x" % (sWS, ST_OFF))
            self.e("s_addc_u32 s9, s%d, 0" % (sWS + 1))
            self.e("s_mov_b32 s10, 0x80000")
            self.e("s_mov_b32 s11, 0x20000")
            self.e("s_lshl_b32 s6, s2, 11")
            self.e("s_lshl_b32 s12, s3, 8")
            self.e("s_add_u32 s6, s6, s12")
            self.e("v_lshlrev_b32 v1, 2, v1")
            self.e("buffer_store_dword v0, v1, s[8:11], s6 offen")

    def vmi(self, tag, s, cold=False):
        if cold and "nt" in OPT:
            s = s.replace(" lds", " nt lds") if s.endswith(" lds") else s + " nt"
        self.e(s)
        self.vm.append(tag)
        assert len(self.vm) <= 63, "too many vmem ops in flight"

    def vmw(self, tag, extra=""):
        idx = [i for i, t in enumerate(self.vm) if t == tag]
        if not idx:
            return None
        n = len(self.vm) - 1 - idx[-1]
        self.vm = self.vm[idx[-1] + 1:]
        self.e("s_waitcnt vmcnt(%d)%s" % (n, extra))
        return n

    def lgi(self, tag, s):
        self.e(s)
        self.lg.append(tag)

    def lgw(self, tag):
        idx = [i for i, t in enumerate(self.lg) if t == tag]
        if not idx:
            return
        n = len(self.lg) - 1 - idx[-1]
        self.lg = self.lg[idx[-1] + 1:]
        self.e("s_waitcnt lgkmcnt(%d)" % min(n, 15))

    def lgw0(self):
        if self.lg:
            self.e("s_waitcnt lgkmcnt(0)")
        self.lg = []


def stmod(pre="a"):
    return "".join(" " + m for m in ("sc0", "sc1", "nt") if pre + m in OPT)

def v(a, n=1):
    return "v%d" % a if n == 1 else "v[%d:%d]" % (a, a + n - 1)

def a(a_, n=1):
    return "a%d" % a_ if n == 1 else "a[%d:%d]" % (a_, a_ + n - 1)

def s(a_, n=1):
    return "s%d" % a_ if n == 1 else "s[%d:%d]" % (a_, a_ + n - 1)


def srd(A, d, base, nbytes, addlo=None):
    if addlo is None:
        A.e("s_mov_b32 s%d, s%d" % (d, base))
        A.e("s_mov_b32 s%d, s%d" % (d + 1, base + 1))
    else:
        A.e("s_add_u32 s%d, s%d, %s" % (d, base, addlo))
        A.e("s_addc_u32 s%d, s%d, 0" % (d + 1, base + 1))
    A.e("s_mov_b32 s%d, 0x%x" % (d + 2, nbytes))
    A.e("s_mov_b32 s%d, 0x20000" % (d + 3))


SLOT = 24576
NSLOT = 6
MISC = SLOT * NSLOT
K1_LDS = 163840
OOB = 0x40000000

ORD = [("P", c) for c in range(8)] + [("F", c) for c in range(8)]
LASTP = 7
PAR = dict(la=2, laf=4, nt=3, estep=9, cstep=10, hstep=14, cdelay=0, stgap=1, fd=5, sd=3, ffill=4, sfill=10, sfill2=14,
           rot=1, pf=1, cpf=1, pfc=12, pfw=14, ala=4, wla=4, urot=1, p2poll=12, chk2=14, fl2=3, slp=8, prio=0, hold=4000, pk=1)

sX, sLRE, sLIM, sBRE, sBIM, sCRE, sCIM, sLDT = 16, 18, 20, 22, 24, 26, 28, 30
sW1, sW3, sW2, sGW, sDS, sWS, sOUT = 32, 34, 36, 38, 40, 42, 84
rX, rBRE, rBIM, rW1, rW3, rAS, rE, rEP, rG, rFL = 44, 48, 52, 56, 60, 64, 68, 72, 76, 88


def swiglu_ops(A, acc, off, pk):
    o = []
    if pk:
        for r in range(0, 8, 2):
            o.append("v_pk_mul_f32 %s, %s, %s" % (v(acc + 8 + r, 2), v(acc + r, 2), v(acc + 8 + r, 2)))
        for r in range(0, 8, 2):
            o.append("v_pk_mul_f32 %s, %s, s[80:81] op_sel_hi:[1,0]" % (v(acc + r, 2), v(acc + r, 2)))
        for r in range(8):
            o.append("v_exp_f32 %s, %s" % (v(acc + r), v(acc + r)))
        for r in range(0, 8, 2):
            o.append("v_pk_add_f32 %s, %s, 1.0 op_sel_hi:[1,0]" % (v(acc + r, 2), v(acc + r, 2)))
        for r in range(8):
            o.append("v_rcp_f32 %s, %s" % (v(acc + r), v(acc + r)))
        for r in range(0, 8, 2):
            o.append("v_pk_mul_f32 %s, %s, %s" % (v(acc + 8 + r, 2), v(acc + 8 + r, 2), v(acc + r, 2)))
        for q in range(4):
            o.append("v_cvt_pk_bf16_f32 %s, %s, %s" % (v(acc + q), v(acc + 8 + 2 * q), v(acc + 9 + 2 * q)))
        o.append(lambda: A.vmi("st", "buffer_store_dwordx4 %s, v6, %s, s82 offen offset:%d%s" % (v(acc, 4), s(rAS, 4), off, stmod())))
        return o
    for r in range(8):
        o.append("v_mul_f32 %s, %s, %s" % (v(acc + 8 + r), v(acc + r), v(acc + 8 + r)))
    for r in range(8):
        o.append("v_mul_f32 %s, s80, %s" % (v(acc + r), v(acc + r)))
    for r in range(8):
        o.append("v_exp_f32 %s, %s" % (v(acc + r), v(acc + r)))
    for r in range(8):
        o.append("v_add_f32 %s, 1.0, %s" % (v(acc + r), v(acc + r)))
    for r in range(8):
        o.append("v_rcp_f32 %s, %s" % (v(acc + r), v(acc + r)))
    for r in range(8):
        o.append("v_mul_f32 %s, %s, %s" % (v(acc + 8 + r), v(acc + 8 + r), v(acc + r)))
    for q in range(4):
        o.append("v_cvt_pk_bf16_f32 %s, %s, %s" % (v(acc + q), v(acc + 8 + 2 * q), v(acc + 9 + 2 * q)))
    o.append(lambda: A.vmi("st", "buffer_store_dwordx4 %s, v6, %s, s82 offen offset:%d%s" % (v(acc, 4), s(rAS, 4), off, stmod())))
    return o


class Stream:
    def __init__(self, A, items, NB, D, K):
        self.A, self.items, self.NB, self.D, self.K = A, items, NB, D, K
        self.nb = 0
        self.rp = 0
        self.fill = []
        self.fence = -1
        self.hold = 0

    def ninstr(self):
        return self.A.ni

    def pop(self, k):
        while k > 0 and self.fill:
            f = self.fill[0]
            if isinstance(f, tuple):
                if f[0] == "gap":
                    self.fill.pop(0)
                    return
                if f[0] == "bar" and self.nb <= f[1]:
                    return
                if f[0] == "dist" and self.ninstr() - f[1] < 12:
                    return
                self.fill.pop(0)
                continue
            self.fill.pop(0)
            if isinstance(f, str):
                self.A.e(f)
            else:
                f()
            k -= 1

    def flush(self):
        while self.fill:
            f = self.fill[0]
            if isinstance(f, tuple):
                if f[0] in ("bar", "gap"):
                    assert f[0] == "gap" or self.nb > f[1]
                    self.fill.pop(0)
                    continue
                d = 12 - (self.ninstr() - f[1])
                if d > 0:
                    self.A.e("s_nop %d" % (d - 1))
                self.fill.pop(0)
                continue
            self.pop(1)

    def barrier(self, n):
        while self.nb <= n:
            b = self.nb
            self.pre(b)
            old = [t for t in self.A.lg if t[0] == "c" and int(t[1:].split("_")[0]) <= b - 2]
            if old:
                self.A.lgw(old[-1])
            self.A.e("s_barrier")
            self.nb += 1
            self.post(b)

    def reads(self, upto, force):
        while self.rp < min(upto, len(self.items)):
            it = self.items[self.rp]
            if not force and (it[0] > self.nb or (it[0] == self.fence and self.nb <= it[0])):
                return
            self.barrier(it[0])
            self.read(it, self.rp % self.NB, "c%d_%d" % (it[0], self.rp))
            self.rp += 1

    def run(self):
        for mp, it in enumerate(self.items):
            if self.rp <= mp:
                self.reads(mp + 1, True)
                self.reads(mp + 1 + self.D, False)
            self.A.lgw("c%d_%d" % (it[0], mp))
            self.mfma(it, mp % self.NB)
            self.after(it, mp)
            self.reads(min(mp + 1 + self.D, self.rp + 2), False)
            self.pop(self.K)
        self.barrier(15)


def mk_items(ORD, ntile, withP):
    NT = PAR["nt"]
    items = []
    for n in range(16 - NT):
        if ORD[n][0] == "P" and not withP:
            continue
        for ss in range(4):
            for ti in range(ntile):
                items.append((n, ss, ti))
    for t0 in range(0, ntile, 2):
        for n in range(16 - NT, 16):
            assert ORD[n][0] == "F"
            for ss in range(4):
                for ti in (t0, t0 + 1):
                    items.append((n, ss, ti))
    return items


def emit(A, ops):
    for x in ops:
        if isinstance(x, str):
            A.e(x)
        else:
            x()


def prologue(A):
    A.e("s_cmp_ge_u32 s2, 256")
    A.e("s_cbranch_scc1 L_end")
    A.stamp_begin()
    A.e("s_load_dwordx16 s[16:31], s[0:1], 0")
    A.e("s_load_dwordx8 s[32:39], s[0:1], 80")
    A.e("s_load_dwordx2 s[42:43], s[0:1], 128")
    A.e("s_load_dwordx2 s[40:41], s[0:1], 64")
    A.e("s_load_dwordx2 s[84:85], s[0:1], 112")
    A.e("v_lshrrev_b32 v2, 6, v0")
    A.e("v_and_b32 v1, 63, v0")
    A.e("v_readfirstlane_b32 s3, v2")
    A.e("s_bfe_u32 s4, s2, 0x20001")
    A.e("s_lshl_b32 s4, s4, 2")
    A.e("s_bfe_u32 s6, s2, 0x20003")
    A.e("s_add_u32 s4, s4, s6")
    A.e("s_and_b32 s5, s2, 1")
    A.e("s_lshl_b32 s5, s5, 3")
    A.e("s_lshr_b32 s6, s2, 5")
    A.e("s_add_u32 s5, s5, s6")
    A.e("s_and_b32 s7, s3, 3")
    A.e("v_and_b32 v8, 31, v1")
    A.e("v_lshrrev_b32 v9, 5, v1")
    A.e("s_lshl_b32 s8, s7, 12")
    if PAR["rot"]:
        A.e("s_lshl_b32 s83, s4, 1")
        A.e("s_add_u32 s83, s83, s5")
    else:
        A.e("s_mov_b32 s83, 0")
    A.e("s_cmp_lt_u32 s3, 4")
    A.e("s_cbranch_scc1 L_S")


def common_late(A):
    A.e("s_mov_b32 s80, 0x%x" % f2u(-LOG2E))
    A.e("v_bfe_u32 v10, v1, 1, 3")
    A.e("v_xor_b32 v10, v10, v9")
    A.e("v_lshlrev_b32 v10, 4, v10")
    A.e("v_lshl_add_u32 v7, v8, 7, v10")
    A.e("v_bfe_u32 v10, v1, 4, 1")
    A.e("v_mul_u32_u24 v12, 3104, v10")
    A.e("v_lshlrev_b32 v11, 9, v9")
    A.e("v_add_u32 v12, v12, v11")
    A.e("v_bfe_u32 v11, v1, 2, 2")
    A.e("v_lshl_add_u32 v12, v11, 6, v12")
    A.e("v_and_b32 v11, 3, v1")
    A.e("v_lshl_add_u32 v12, v11, 3, v12")
    A.e("v_xor_b32 v13, 32, v12")
    A.e("v_lshlrev_b32 v6, 4, v1")
    A.e("s_lshl_b32 s6, s4, 2")
    A.e("s_add_u32 s6, s6, s7")
    A.e("s_mul_i32 s81, s6, %d" % (NKS * 1024))
    A.e("s_mul_i32 s6, s5, 6144")
    A.e("s_add_u32 s82, s81, s6")
    srd(A, rAS, sWS, A_BYTES)
    srd(A, rW1, sW1, 512 * 2752)
    srd(A, rW3, sW3, 512 * 2752)
    A.e("s_mul_i32 s10, s7, 6144")
    A.e("s_cmp_ge_u32 s5, 15")
    A.e("s_cselect_b32 s92, 0x%x, 0" % OOB)
    A.e("s_cmp_ge_u32 s5, 14")
    A.e("s_cselect_b32 s93, 0x%x, 0" % OOB)


def wdma_addr_ops(d1, d3, tmp):
    return ["v_lshrrev_b32 %s, 2, v1" % tmp, "s_lshl_b32 s6, s7, 4", "v_add_u32 %s, s6, %s" % (tmp, tmp),
            "v_mul_u32_u24 %s, 2752, %s" % (d1, tmp), "s_mul_i32 s6, s5, 192", "v_add_u32 %s, s6, %s" % (d1, d1),
            "v_and_b32 %s, 3, v1" % tmp, "v_lshl_add_u32 %s, %s, 4, %s" % (d1, tmp, d1), "v_xor_b32 %s, 32, %s" % (d3, d1)]


def dma_ops(A, n, w1, w3):
    kind, c = ORD[n]
    slot = (n % NSLOT) * SLOT
    tag = "ch%d" % n
    ops = []
    def mk(pre, m0, ins):
        def f():
            for x in pre:
                A.e(x)
            A.e(m0)
            A.e("s_nop 0")
            A.vmi(tag, ins)
        return f
    if kind == "P":
        pre = ["s_add_u32 s11, s83, %d" % c, "s_and_b32 s11, s11, 7", "s_lshl_b32 s11, s11, 7", "s_add_u32 s12, s11, 8192"]
        for q in range(4):
            ops.append(mk(pre if q == 0 else [], "s_add_u32 m0, s8, %d" % (slot + 1024 * q),
                          "buffer_load_dwordx4 %s, %s, s%d offen lds" % ("v3" if q & 1 else "v2", s(rX, 4), 12 if q >= 2 else 11)))
        ops.append(mk([], "s_add_u32 m0, s9, %d" % (slot + 16384), "buffer_load_dwordx4 v4, %s, s11 offen lds" % s(rBRE, 4)))
        ops.append(mk([], "s_add_u32 m0, s9, %d" % (slot + 20480), "buffer_load_dwordx4 v4, %s, s11 offen lds" % s(rBIM, 4)))
    else:
        pre = ["s_add_u32 s11, s83, %d" % c, "s_and_b32 s11, s11, 7", "s_mul_i32 s11, s11, 176128",
               "s_add_u32 s12, s11, s93", "s_add_u32 s11, s11, s92"]
        for m in range(2):
            for q in range(3):
                ops.append(mk(pre if m == 0 and q == 0 else [], "s_add_u32 m0, s10, %d" % (slot + m * 3072 + 1024 * q - 64 * q),
                              "buffer_load_dwordx4 %s, %s, s%d offen offset:%d lds" % (w3 if m else w1, s(rW3 if m else rW1, 4), 12 if q else 11, 64 * q)))
    return ops


P2_GROUPS = [("C", 0, 8), ("C", 8, 8), ("W", 0, 8), ("W", 8, 8), ("W", 16, 6)]
P2_SEQ = [(k, b, n, m) for (k, b, n) in P2_GROUPS for m in range(n)]
NA, NW = 6, 14
WUNITS = [0, 1, 2, 18, 19] + list(range(3, 12))
def AU(n): return (12 + n % NA) * 8192
def WU(n): return WUNITS[n % NW] * 8192


def role_F(A):
    A.vm, A.lg = [], []
    ACC, FB = 64, 32
    LA = PAR["la"]
    if PAR["prio"]:
        A.e("s_setprio %d" % PAR["prio"])
    A.e("v_lshrrev_b32 v10, 4, v1")
    A.e("v_and_b32 v11, 7, v1")
    A.e("v_xor_b32 v10, v10, v11")
    A.e("v_lshlrev_b32 v10, 4, v10")
    A.e("v_bfe_u32 v11, v1, 3, 2")
    A.e("v_lshl_add_u32 v2, v11, 10, v10")
    A.e("v_lshl_add_u32 v2, v9, 14, v2")
    A.e("s_lshl_b32 s6, s7, 15")
    A.e("v_add_u32 v2, s6, v2")
    A.e("v_xor_b32 v3, 64, v2")
    A.e("v_add_u32 v3, 4096, v3")
    A.e("s_lshl_b32 s9, s7, 10")
    A.e("s_and_b32 s6, s7, 1")
    A.e("s_lshl_b32 s6, s6, 6")
    A.e("v_xor_b32 v4, s6, v10")
    A.e("v_lshrrev_b32 v11, 3, v1")
    A.e("v_lshl_add_u32 v4, v11, 10, v4")
    A.e("s_lshl_b32 s6, s7, 13")
    A.e("v_add_u32 v4, s6, v4")
    A.e("s_lshl_b32 s6, s4, 17")
    A.e("s_lshl_b32 s13, s5, 15")
    A.e("s_waitcnt lgkmcnt(0)")
    srd(A, rX, sX, 131072, "s6")
    srd(A, rBRE, sBRE, 32768, "s13")
    srd(A, rBIM, sBIM, 32768, "s13")
    emit(A, dma_ops(A, 0, "v5", "v16"))
    A.e("s_lshl_b32 s6, s5, 3")
    A.e("s_lshl_b32 s13, s7, 1")
    A.e("s_add_u32 s13, s13, s6")
    A.e("s_lshl_b32 s6, s13, 10")
    A.e("v_lshlrev_b32 v17, 4, v8")
    A.e("v_lshl_add_u32 v18, v9, 10, v17")
    A.e("v_add_u32 v18, s6, v18")
    A.vmi("g", "buffer_load_dwordx4 v[64:67], v18, %s, 0 offen" % s(rX, 4))
    A.vmi("g", "buffer_load_dwordx4 v[68:71], v18, %s, 0 offen offset:512" % s(rX, 4))
    A.vmi("g", "global_load_dwordx4 v[72:75], v17, %s" % s(sGW, 2))
    A.vmi("g", "global_load_dwordx4 v[76:79], v17, %s offset:512" % s(sGW, 2))
    emit(A, dma_ops(A, 1, "v5", "v16"))
    common_late(A)
    srd(A, rG, sWS, 16384, "0x%x" % G_OFF)
    emit(A, wdma_addr_ops("v5", "v16", "v10"))
    A.e("v_add_u32 v7, s8, v7")
    A.e("s_add_u32 s82, s82, %d" % (65536 + 2048))
    A.e("s_add_u32 s82, s82, s93")
    A.e("s_branch L_Fmain")
    A.fmain = len(A.L)
    A.lab("L_Fmain")

    def g_compute():
        A.vmw("g")
        A.e("v_mov_b32 v20, 0")
        for d in range(8):
            xx, ww = 64 + d, 72 + d
            A.e("v_lshlrev_b32 v80, 16, %s" % v(xx))
            A.e("v_and_b32 v81, 0xffff0000, %s" % v(xx))
            A.e("v_lshlrev_b32 v82, 16, %s" % v(ww))
            A.e("v_and_b32 v83, 0xffff0000, %s" % v(ww))
            A.e("v_mul_f32 v80, v80, v82")
            A.e("v_mul_f32 v81, v81, v83")
            A.e("v_cvt_pk_bf16_f32 v80, v80, v81")
            A.e("v_lshlrev_b32 v81, 16, v80")
            A.e("v_and_b32 v80, 0xffff0000, v80")
            A.e("v_add_f32 v20, v20, v81")
            A.e("v_add_f32 v20, v20, v80")
        for sh in (1, 2, 4, 8):
            A.e("s_nop 1")
            A.e("v_add_f32_dpp v20, v20, v20 row_shr:%d row_mask:0xf bank_mask:0xf bound_ctrl:0" % sh)
        A.e("s_nop 1")
        A.e("v_add_f32_dpp v20, v20, v20 row_bcast:15 row_mask:0xa bank_mask:0xf")
        A.e("v_cvt_pk_bf16_f32 v20, v20, v20")
        A.e("v_and_b32 v20, 0xffff0000, v20")
        A.e("v_mul_f32 v20, s80, v20")
        A.e("v_exp_f32 v20, v20")
        A.e("s_nop 0")
        A.e("v_add_f32 v20, 1.0, v20")
        A.e("v_rcp_f32 v20, v20")
        A.e("s_nop 0")
        A.e("v_cvt_pk_bf16_f32 v20, v20, v20")
        A.e("v_and_b32 v20, 0xffff0000, v20")
        A.e("v_sub_f32 v21, 1.0, v20")
        A.e("v_cvt_pk_bf16_f32 v21, v21, v21")
        A.e("v_and_b32 v21, 0xffff0000, v21")
        A.e("s_lshl_b32 s6, s4, 7")
        A.e("s_add_u32 s6, s6, s13")
        A.e("s_lshl_b32 s6, s6, 3")
        A.e("v_lshlrev_b32 v22, 3, v9")
        A.e("s_mov_b32 exec_lo, 0x80000000")
        A.e("s_mov_b32 exec_hi, 0x80000000")
        A.vmi("gst", "buffer_store_dwordx2 v[20:21], v22, %s, s6 offen%s" % (s(rG, 4), stmod()))
        A.e("s_mov_b64 exec, -1")

    rXs, rO = 44, 48

    def p2_setup():
        A.e("s_and_b32 s9, s7, 1")
        A.e("s_lshr_b32 s10, s7, 1")
        A.e("s_lshl_b32 s12, s4, 1")
        A.e("s_and_b32 s6, s5, 1")
        A.e("s_add_u32 s12, s12, s6")
        A.e("s_lshl_b32 s12, s12, 1")
        A.e("s_add_u32 s12, s12, s9")
        A.e("s_lshl_b32 s12, s12, 5")
        A.e("s_and_b32 s15, s5, 14")
        A.e("s_add_u32 s15, s15, s10")
        A.e("s_lshl_b32 s15, s15, 5")
        A.e("v_lshlrev_b32 v10, 4, v9")
        A.e("v_add_u32 v10, s12, v10")
        A.e("v_add_u32 v18, s15, v8")
        A.e("v_lshlrev_b32 v18, 1, v18")
        A.e("v_lshlrev_b32 v17, 3, v10")
        A.e("v_lshl_add_u32 v16, v10, 10, v18")
        A.e("v_lshlrev_b32 v5, 1, v16")
        srd(A, rXs, sX, 2048 * 1024)
        srd(A, rO, sOUT, 2048 * 2048)
        A.e("s_lshl_b32 s6, s9, 12")
        A.e("s_add_u32 s6, s6, %d" % AU(0))
        A.e("v_add_u32 v2, s6, v6")
        A.e("v_subrev_u32 v3, s8, v7")
        A.e("s_lshl_b32 s6, s10, 12")
        A.e("v_add_u32 v3, s6, v3")
        A.e("v_bfe_u32 v10, v1, 2, 2")
        A.e("v_lshlrev_b32 v4, 7, v10")
        A.e("v_lshl_add_u32 v4, v9, 9, v4")
        A.e("v_bfe_u32 v10, v1, 4, 1")
        A.e("v_lshl_add_u32 v4, v10, 5, v4")
        A.e("v_and_b32 v10, 3, v1")
        A.e("v_lshl_add_u32 v4, v10, 3, v4")
        A.e("v_bfe_u32 v10, v1, 3, 1")
        A.e("v_xor_b32 v10, s10, v10")
        A.e("v_lshl_add_u32 v4, v10, 6, v4")

    tiles = [2, 3, 4, 5]
    S = Stream(A, mk_items(ORD, 4, False), 8, PAR["fd"], PAR["ffill"])

    def waddr(n):
        return ((14, 15), (28, 29), (30, 31))[n % 3]

    def pre(b):
        kind, c = ORD[b]
        slot = (b % NSLOT) * SLOT
        if b == LASTP + 1:
            p2_setup()
        if kind == "P":
            A.e("v_add_u32 v24, %d, v7" % slot)
            A.e("v_xor_b32 v25, 32, v24")
            A.e("v_xor_b32 v26, 64, v24")
            A.e("v_xor_b32 v27, 0x60, v24")
        else:
            A.e("v_add_u32 v%d, %d, v12" % (waddr(b)[0], slot))
            A.e("v_add_u32 v%d, %d, v13" % (waddr(b)[1], slot))
        A.fs2(20 + b)
        A.vmw("ch%d" % b)
        A.fs2(36 + b)

    def post(b):
        kind, c = ORD[b]
        A.fs(b)
        if kind == "P":
            for ss in range(4):
                A.lgi("c%d_x" % b, "ds_read_b128 %s, %s" % (a(16 * c + 4 * ss, 4), v(24 + ss)))
            for n in range(2, 16):
                if (n == b + LA) or (b == 0 and n < LA):
                    emit(A, dma_ops(A, n, "v5", "v16"))
        if b == 0:
            g_compute()

    def read(it, sl, tag):
        n, ss, ti = it
        T = tiles[ti]
        for nn in range(2):
            A.lgi(tag, "ds_read_b64_tr_b16 %s, v%d offset:%d" % (v(FB + 4 * sl + 2 * nn, 2), waddr(n)[T & 1],
                                                                ss * 6144 + (T >> 1) * 1024 + nn * 256))

    def mfma(it, sl):
        n, ss, ti = it
        c = ORD[n][1]
        first = (c == 0 and ss == 0)
        A.e("v_mfma_f32_32x32x16_bf16 %s, %s, %s, %s" % (v(ACC + 16 * ti, 16), v(FB + 4 * sl, 4), a(16 * c + 4 * ss, 4),
                                                        "0" if first else v(ACC + 16 * ti, 16)))

    def after(it, mp):
        n, ss, ti = it
        if n == 15 and ss == 3:
            S.fill.append(("dist", S.ninstr()))
            S.fill += swiglu_ops(A, ACC + 16 * ti, 1024 * ti, PAR["pk"] and ti >= 2)

    S.pre, S.post, S.read, S.mfma, S.after = pre, post, read, mfma, after
    S.run()
    A.fs(16)
    S.flush()
    A.fs(19)

    N = len(P2_SEQ)
    ACCB, ACCA, GV, XV = 32, 48, 64, 96
    A.lg = []

    def addr(n):
        if P2_SEQ[n][0] == "W":
            A.e("v_add_u32 v24, %d, v4" % WU(n))
        else:
            A.e("v_add_u32 v24, %d, v3" % WU(n))
            A.e("v_xor_b32 v25, 32, v24")
            A.e("v_xor_b32 v26, 64, v24")
            A.e("v_xor_b32 v27, 0x60, v24")

    def reads2(n, ss):
        fb = 32 * (n & 1)
        tg = "r%d_%d" % (n, ss)
        A.lgi(tg, "ds_read_b128 %s, v2 offset:%d" % (a(fb + 4 * ss, 4), AU(n) - AU(0) + 1024 * ss))
        if P2_SEQ[n][0] == "W":
            for nn in range(2):
                A.lgi(tg, "ds_read_b64_tr_b16 %s, v24 offset:%d" % (a(fb + 16 + 4 * ss + 2 * nn, 2), 2048 * ss + 1024 * nn))
        else:
            A.lgi(tg, "ds_read_b128 %s, %s" % (a(fb + 16 + 4 * ss, 4), v(24 + ss)))

    def mfma2(n, ss):
        kind, base, ln, m = P2_SEQ[n]
        fb = 32 * (n & 1)
        acc = v(ACCB if kind == "W" else ACCA, 16)
        first = (base == 0 and m == 0 and ss == 0)
        A.lgw("r%d_%d" % (n, ss))
        A.e("v_mfma_f32_32x32x16_bf16 %s, %s, %s, %s" % (acc, a(fb + 4 * ss, 4), a(fb + 16 + 4 * ss, 4), "0" if first else acc))

    small = []
    for q in range(8):
        small.append(["buffer_load_dwordx4 %s, v17, %s, 0 offen offset:%d sc1" % (v(GV + 4 * q, 4), s(rG, 4), 16 * q)])
    for r in range(16):
        small.append(["s_movk_i32 s6, %d" % (4096 * (r >> 2)),
                      "buffer_load_ushort %s, v16, %s, s6 offen offset:%d" % (v(XV + r), s(rXs, 4), 1024 * (r & 3))])
    small.append(["global_load_ushort v19, v18, %s" % s(sDS, 2)])

    def xd(q):
        if q == 0:
            A.vmw("small")
            A.e("v_lshlrev_b32 v19, 16, v19")
        r0, r1 = 2 * q, 2 * q + 1
        A.e("v_lshlrev_b32 %s, 16, %s" % (v(XV + r0), v(XV + r0)))
        A.e("v_lshlrev_b32 %s, 16, %s" % (v(XV + r1), v(XV + r1)))
        A.e("v_mul_f32 %s, %s, v19" % (v(XV + r0), v(XV + r0)))
        A.e("v_mul_f32 %s, %s, v19" % (v(XV + r1), v(XV + r1)))
        A.e("v_cvt_pk_bf16_f32 %s, %s, %s" % (v(XV + r0), v(XV + r0), v(XV + r1)))
        A.e("v_and_b32 %s, 0xffff0000, %s" % (v(XV + r1), v(XV + r0)))
        A.e("v_lshlrev_b32 %s, 16, %s" % (v(XV + r0), v(XV + r0)))

    def fold(q):
        for r in range(4 * q, 4 * q + 4):
            A.e("v_add_f32 %s, %s, %s" % (v(ACCA + r), v(ACCA + r), v(XV + r)))
        for r in range(4 * q, 4 * q + 4):
            A.e("v_mul_f32 %s, %s, %s" % (v(ACCA + r), v(GV + 2 * r), v(ACCA + r)))

    for n in range(N):
        addr(n)
        if n == PAR["fl2"]:
            A.vmw("st")
        A.e("s_barrier")
        for ss in range(4):
            if n >= 1:
                mfma2(n - 1, ss)
            reads2(n, ss)
        if n >= PAR["fl2"]:
            for _ in range(2):
                if small:
                    x = small.pop(0)
                    for y in x[:-1]:
                        A.e(y)
                    A.vmi("small", x[-1])
        if 20 <= n < 28:
            xd(n - 20)
        if 28 <= n < 32:
            fold(n - 28)
    for ss in range(4):
        mfma2(N - 1, ss)
    A.fs(59)
    A.e("s_nop 7")
    A.e("s_nop 3")
    for q in range(8):
        A.e("v_cvt_pk_bf16_f32 %s, %s, %s" % (v(XV + q), v(ACCB + 2 * q), v(ACCB + 2 * q + 1)))
    for q in range(8):
        A.e("v_lshlrev_b32 %s, 16, %s" % (v(ACCB + 2 * q), v(XV + q)))
        A.e("v_and_b32 %s, 0xffff0000, %s" % (v(ACCB + 2 * q + 1), v(XV + q)))
    for r in range(16):
        A.e("v_mul_f32 %s, %s, %s" % (v(ACCB + r), v(GV + 2 * r + 1), v(ACCB + r)))
    for q in range(8):
        A.e("v_cvt_pk_bf16_f32 %s, %s, %s" % (v(XV + q), v(ACCB + 2 * q), v(ACCB + 2 * q + 1)))
    for q in range(8):
        A.e("v_lshlrev_b32 %s, 16, %s" % (v(ACCB + 2 * q), v(XV + q)))
        A.e("v_and_b32 %s, 0xffff0000, %s" % (v(ACCB + 2 * q + 1), v(XV + q)))
        A.e("s_movk_i32 s6, %d" % (4096 * q))
        for r in (2 * q, 2 * q + 1):
            A.e("v_add_f32 %s, %s, %s" % (v(ACCB + r), v(ACCB + r), v(ACCA + r)))
            A.e("buffer_store_dword %s, v5, %s, s6 offen offset:%d%s" % (v(ACCB + r), s(rO, 4), 2048 * (r & 1), stmod("o")))
    A.fs(60)
    A.fs_end()
    A.dbg_end()
    A.e("s_endpgm")


def cpow(A, n_scale, dre, dim, t0, t1, va, vb):
    if n_scale == 1.0:
        A.e("v_exp_f32 %s, %s" % (t0, va))
        A.e("v_fract_f32 %s, %s" % (t1, vb))
    else:
        ns = n_scale if isinstance(n_scale, str) else "0x%x" % f2u(n_scale)
        A.e("v_mul_f32 %s, %s, %s" % (t0, ns, va))
        A.e("v_mul_f32 %s, %s, %s" % (t1, ns, vb))
        A.e("v_exp_f32 %s, %s" % (t0, t0))
        A.e("v_fract_f32 %s, %s" % (t1, t1))
    A.e("v_cos_f32 %s, %s" % (dre, t1))
    A.e("v_sin_f32 %s, %s" % (dim, t1))
    A.e("s_nop 0")
    A.e("v_mul_f32 %s, %s, %s" % (dre, dre, t0))
    A.e("v_mul_f32 %s, %s, %s" % (dim, dim, t0))


def cfma_ops(dr, di, mr, mi, xr, xi, ar, ai):
    return ["v_fma_f32 %s, %s, %s, %s" % (dr, mr, xr, ar),
            "v_fma_f32 %s, %s, %s, %s" % (di, mr, xi, ai),
            "v_fma_f32 %s, -%s, %s, %s" % (dr, mi, xi, dr),
            "v_fma_f32 %s, %s, %s, %s" % (di, mi, xr, di)]


def lane0_store(A, cond, val, srd_, soff, off, vt, vz, L):
    for x in cond:
        A.e(x)
    A.e("s_cbranch_scc1 " + L)
    A.cond = True
    A.e("v_mov_b32 %s, %s" % (vt, val))
    A.e("v_mov_b32 %s, 0" % vz)
    A.e("s_mov_b64 exec, 1")
    A.e("buffer_store_dword %s, %s, %s, %s offen offset:%d sc1" % (vt, vz, s(srd_, 4), soff, off))
    A.e("s_mov_b64 exec, -1")
    A.cond = False
    A.lab(L)


def role_S(A):
    A.vm, A.lg = [], []
    A.lab("L_S")
    LR, LI, NLI = "v16", "v17", "v5"
    L16R, L16I, QR, QI, L256R, L256I = "v18", "v19", "v20", "v21", "v22", "v23"
    CR, CI, PR, PI = "v2", "v3", "v10", "v11"
    ER, EI, SR, SI = "v56", "v57", "v58", "v59"
    RE, IM, ACC, FB = 64, 80, 96, 32
    A.e("s_lshl_b32 s6, s5, 6")
    A.e("v_lshlrev_b32 v4, 1, v8")
    A.e("v_add_u32 v4, s6, v4")
    A.e("s_lshl_b32 s6, s5, 7")
    A.e("s_add_u32 s6, s6, 0x%x" % EP_OFF)
    A.e("v_mov_b32 v55, 0")
    if PAR["cpf"]:
        A.e("s_getpc_b64 s[44:45]")
        A.lab("L_pc")
        A.e("s_sub_u32 s44, s44, L_pc - %s_kernel" % NAME)
        A.e("s_subb_u32 s45, s45, 0")
        A.e("s_mov_b32 s46, L_code_end - %s_kernel" % NAME)
        A.e("s_mov_b32 s47, 0x20000")
        A.e("s_lshr_b32 s9, s2, 3")
        A.e("s_lshl_b32 s9, s9, 2")
        A.e("s_add_u32 s9, s9, s7")
        A.e("s_lshl_b32 s9, s9, 8")
        A.e("v_lshlrev_b32 v53, 7, v1")
        A.e("s_mov_b64 exec, 3")
        A.vmi("par", "buffer_load_dword v52, v53, s[44:47], s9 offen")
        A.e("s_mov_b64 exec, -1")
    A.e("s_waitcnt lgkmcnt(0)")
    A.vmi("par", "global_load_ushort v60, v4, %s" % s(sLRE, 2))
    A.vmi("par", "global_load_ushort v61, v4, %s" % s(sLIM, 2))
    A.vmi("par", "global_load_ushort v62, v4, %s" % s(sLDT, 2))
    srd(A, rEP, sWS, 4, "s6")
    A.vmi("par", "buffer_load_dword v54, v55, %s, 0 offen sc1" % s(rEP, 4))
    A.e("s_lshl_b32 s6, s4, 7")
    A.e("s_add_u32 s6, s6, 0x%x" % EPR_OFF)
    srd(A, rG, sWS, 4, "s6")
    A.vmi("par", "buffer_load_dword v56, v55, %s, 0 offen sc1" % s(rG, 4))
    common_late(A)
    A.e("s_lshl_b32 s6, s5, 13")
    A.e("s_add_u32 s6, s6, 0x%x" % E_OFF)
    srd(A, rE, sWS, 8192, "s6")
    A.e("s_lshl_b32 s6, s4, 9")
    A.e("s_add_u32 s6, s6, 0x%x" % FL_OFF)
    srd(A, rFL, sWS, 512, "s6")
    A.e("s_lshl_b32 s87, s5, 2")
    rCRE, rCIM, rW2, rA2 = 48, 52, 44, 56
    srd(A, rCRE, sCRE, 524288)
    srd(A, rCIM, sCIM, 524288)
    A.e("s_add_u32 s82, s82, 65536")
    A.e("s_add_u32 s82, s82, s92")
    A.e("s_lshl_b32 s100, s5, 11")
    A.e("s_add_u32 s100, s100, s81")
    A.e("s_add_u32 s101, s100, 32768")
    A.e("v_lshlrev_b32 v4, 3, v0")
    A.e("v_add_u32 v4, %d, v4" % (MISC + 2048))
    A.e("v_mov_b32 v48, 0")
    A.e("v_mov_b32 v49, 0")
    A.e("ds_write_b64 v4, v[48:49]")
    A.e("ds_write_b32 v4, v48 offset:2048")
    A.e("s_lshl_b32 s6, s7, 1")
    A.e("v_add_u32 v63, s6, v9")
    A.e("v_sub_u32 v4, 7, v63")
    A.e("v_lshlrev_b32 v4, 8, v4")
    A.e("v_lshl_add_u32 v4, v8, 3, v4")
    A.e("v_add_u32 v4, %d, v4" % MISC)
    A.e("v_lshlrev_b32 v63, 4, v63")
    A.e("v_cvt_f32_u32 v63, v63")
    A.e("s_lshl_b32 s6, s7, 9")
    A.e("v_lshlrev_b32 v57, 7, v9")
    A.e("v_add_u32 v57, s6, v57")
    A.e("v_cvt_f32_u32 v57, v57")
    A.vmw("par", " lgkmcnt(0)")
    srd(A, rW2, sW2, 1376 * 1024)
    A.e("v_readfirstlane_b32 s14, v54")
    A.e("v_readfirstlane_b32 s86, v56")
    A.e("s_add_u32 s14, s14, 1")
    A.e("s_bitset1_b32 s14, 31")
    A.e("s_add_u32 s86, s86, 1")
    A.e("s_bitset1_b32 s86, 31")
    A.e("v_lshlrev_b32 v60, 16, v60")
    A.e("v_lshlrev_b32 v61, 16, v61")
    A.e("v_lshlrev_b32 v62, 16, v62")
    A.e("v_mul_f32 v62, 0x%x, v62" % f2u(LOG2E))
    A.e("v_exp_f32 v62, v62")
    A.e("s_nop 0")
    A.e("v_cvt_pk_bf16_f32 v62, v62, v62")
    A.e("v_and_b32 v62, 0xffff0000, v62")
    A.e("v_mul_f32 v50, v62, v60")
    A.e("v_mul_f32 v51, v62, v61")
    A.e("v_mul_f32 v50, 0x%x, v50" % f2u(LOG2E))
    A.e("v_mul_f32 v51, 0x%x, v51" % f2u(INV2PI))
    cpow(A, 1.0, LR, LI, "v52", "v53", "v50", "v51")
    cpow(A, 16.0, L16R, L16I, "v52", "v53", "v50", "v51")
    cpow(A, "v57", QR, QI, "v52", "v53", "v50", "v51")
    cpow(A, 256.0, L256R, L256I, "v52", "v53", "v50", "v51")
    cpow(A, "v63", PR, PI, "v52", "v53", "v50", "v51")
    A.e("v_sub_f32 %s, 0, %s" % (NLI, LI))
    A.e("v_mul_f32 v52, v60, v60")
    A.e("v_fmac_f32 v52, v61, v61")
    A.e("v_rcp_f32 v52, v52")
    A.e("v_add_f32 v53, -1.0, %s" % LR)
    A.e("v_mul_f32 %s, v53, v60" % CR)
    A.e("v_fmac_f32 %s, %s, v61" % (CR, LI))
    A.e("v_mul_f32 %s, %s, v60" % (CI, LI))
    A.e("v_fma_f32 %s, -v53, v61, %s" % (CI, CI))
    A.e("v_add_f32 v52, v52, v52")
    A.e("v_mul_f32 %s, %s, v52" % (CR, CR))
    A.e("v_mul_f32 %s, %s, v52" % (CI, CI))
    emit(A, ["v_lshlrev_b32 v54, 6, v8", "v_lshl_add_u32 v54, v9, 5, v54", "v_bfe_u32 v50, v1, 1, 2", "v_lshlrev_b32 v50, 4, v50",
             "v_xor_b32 v54, v50, v54", "v_add_u32 v54, s8, v54", "v_add_u32 v54, %d, v54" % MISC,
             "v_bfe_u32 v55, v1, 2, 2", "v_lshlrev_b32 v55, 6, v55", "v_lshl_add_u32 v55, v9, 9, v55",
             "v_and_b32 v50, 1, v1", "v_lshl_add_u32 v55, v50, 5, v55", "v_bfe_u32 v50, v1, 4, 1", "v_lshl_add_u32 v55, v50, 4, v55",
             "v_bfe_u32 v50, v1, 1, 1", "v_lshl_add_u32 v55, v50, 3, v55", "v_bfe_u32 v50, v1, 3, 1", "v_lshlrev_b32 v50, 4, v50",
             "v_xor_b32 v55, v50, v55", "v_add_u32 v55, s8, v55", "v_add_u32 v55, %d, v55" % MISC])
    emit(A, ["s_lshl_b32 s6, s7, 2", "s_sub_u32 s6, s6, s4", "s_add_u32 s6, s6, 16",
             "v_add_u32 v62, s6, v9", "v_lshlrev_b32 v60, 9, v62", "v_lshl_add_u32 v60, v8, 4, v60",
             "v_sub_u32 v62, 17, v62", "v_and_b32 v62, -2, v62", "v_max_i32 v62, 0, v62", "v_min_i32 v62, 4, v62",
             "v_lshlrev_b32 v63, 3, v8", "v_add_u32 v63, %d, v63" % (MISC + 8192),
             "s_lshl_b32 s6, s7, 9", "v_lshl_add_u32 v61, v9, 8, v63", "v_add_u32 v61, s6, v61"])

    tiles = [0, 1]
    LA, LAF = PAR["la"], PAR["laf"]
    assert LA <= LAF <= 4
    assert LASTP + 1 <= PAR["estep"] <= PAR["cstep"] and PAR["cstep"] + 2 < PAR["hstep"] <= 15
    S = Stream(A, mk_items(ORD, 2, True), 4, PAR["sd"], PAR["sfill"])
    S.fence = LASTP + 1
    dq = []
    for n in range(LASTP + LA + 1, 16):
        dq += [(n, f) for f in dma_ops(A, n, "v4", "v7")]

    def dma_upto(m, maxops=999):
        while dq and dq[0][0] <= m and maxops > 0:
            dq.pop(0)[1]()
            maxops -= 1

    def ssm_publish():
        A.e("s_nop 7")
        A.e("s_nop 3")
        cur = (v(RE), v(IM))
        tmp = [("v48", "v49"), ("v50", "v51")]
        for r in range(1, 16):
            d = (ER, EI) if r == 15 else tmp[r & 1]
            emit(A, cfma_ops(d[0], d[1], LR, LI, cur[0], cur[1], v(RE + r), v(IM + r)))
            cur = d
        A.e("ds_write_b64 v4, v[56:57]")
        A.e("v_mov_b32 v48, %d" % (MISC + 4096))
        A.e("v_mov_b32 v49, 1")
        A.e("s_mov_b64 exec, 1")
        A.e("ds_add_u32 v48, v49")
        A.e("s_mov_b64 exec, -1")
        A.e("s_mov_b32 s13, 0")
        A.lab("L_S_sync")
        A.e("ds_read_b32 v49, v48")
        A.e("s_add_u32 s13, s13, 1")
        A.e("s_waitcnt lgkmcnt(0)")
        A.e("v_readfirstlane_b32 s6, v49")
        A.e("s_cmp_lt_u32 s13, 0x100000")
        A.e("s_cselect_b32 s6, s6, 4")
        A.e("s_cmp_lt_u32 s6, 4")
        A.e("s_cbranch_scc1 L_S_sync")
        A.lg = []
        er = lambda m: (24 + 2 * m if m < 4 else 32 + 2 * (m - 4))
        for m in range(6, -1, -1):
            A.lgi("er%d" % m, "ds_read_b64 %s, v4 offset:%d" % (v(er(m), 2), 256 * (m + 1)))
        cur = (v(er(6)), v(er(6) + 1))
        for m in range(5, -1, -1):
            d = (SR, SI) if m == 0 else tmp[m & 1]
            A.lgw("er%d" % m)
            emit(A, cfma_ops(d[0], d[1], L16R, L16I, cur[0], cur[1], v(er(m)), v(er(m) + 1)))
            cur = d
        A.e("s_cmp_lg_u32 s7, 3")
        A.e("s_cbranch_scc1 L_S_nopub")
        A.cond = True
        emit(A, cfma_ops("v24", "v26", L16R, L16I, SR, SI, ER, EI))
        A.e("v_mov_b32 v25, s14")
        A.e("v_mov_b32 v27, s14")
        A.e("s_sub_u32 s6, 15, s4")
        A.e("s_lshl_b32 s6, s6, 9")
        A.e("v_lshlrev_b32 v28, 4, v8")
        A.e("s_mov_b32 exec_lo, 0")
        A.e("buffer_store_dwordx4 v[24:27], v28, %s, s6 offen sc1" % s(rE, 4))
        A.e("s_mov_b64 exec, -1")
        A.cond = False
        A.lab("L_S_nopub")
        A.fs(56)
        for r in range(16):
            t = "v%d" % (48 + (r & 3))
            A.e("v_mul_f32 %s, %s, %s" % (t, CI, v(RE + r)))
            A.e("v_mul_f32 %s, %s, %s" % (v(RE + r), CR, v(RE + r)))
            A.e("v_fma_f32 %s, -%s, %s, %s" % (v(RE + r), CI, v(IM + r), v(RE + r)))
            A.e("v_fma_f32 %s, %s, %s, %s" % (v(IM + r), CR, v(IM + r), t))
        emit(A, wdma_addr_ops("v4", "v7", "v48"))

    def e_issue(tag=None):
        for m in range(2):
            x = "buffer_load_dwordx4 %s, v60, %s, 0 offen offset:%d sc1" % (v(24 + 4 * m, 4), s(rE, 4), 1024 * m)
            if tag:
                A.vmi(tag, x)
            else:
                A.e(x)

    def e_check():
        A.fs(17)
        A.e("s_mov_b32 s13, 0")
        A.vmw("e")
        A.lab("L_S_poll")
        A.e("v_mov_b32 v48, 0")
        for q in range(4):
            A.e("v_cmp_eq_u32 s[%d:%d], s14, %s" % (18 + 2 * q, 19 + 2 * q, v(25 + 2 * q)))
        for q in range(4):
            A.e("v_addc_co_u32 v48, vcc, 0, v48, s[%d:%d]" % (18 + 2 * q, 19 + 2 * q))
        A.e("v_cmp_ne_u32 vcc, v62, v48")
        A.e("s_cbranch_vccz L_S_ready")
        A.cond = True
        A.e("s_sleep 2")
        e_issue()
        A.e("s_add_u32 s13, s13, 1")
        A.e("s_cmp_lt_u32 s13, 0x20000")
        A.e("s_waitcnt vmcnt(0)")
        A.e("s_cbranch_scc1 L_S_poll")
        A.cond = False
        A.lab("L_S_ready")
        emit(A, cfma_ops("v48", "v49", L256R, L256I, "v28", "v30", "v24", "v26"))
        A.e("v_mul_f32 v50, %s, v48" % QR)
        A.e("v_mul_f32 v51, %s, v49" % QR)
        A.e("v_fma_f32 v50, -%s, v49, v50" % QI)
        A.e("v_fmac_f32 v51, %s, v48" % QI)
        A.lgi("pw", "ds_write_b64 v61, v[50:51]")
        A.fs(18)

    def scan_ops():
        o = []
        pr = [24, 26, 28, 30, 48, 50, 52, 56]
        def prd():
            for q in range(8):
                A.lgi("pr", "ds_read_b64 %s, v63 offset:%d" % (v(pr[q], 2), 256 * q))
        bump = lambda: lane0_store(A, ["s_lshl_b32 s6, s7, 4", "s_add_u32 s6, s6, s4", "s_cmp_lg_u32 s6, 15"], "s14", rEP, "0", 0, "v60", "v61", "L_S_noep")
        o += [prd, bump, lambda: A.lgw("pr")]
        for (x, y) in ((0, 1), (2, 3), (4, 5), (6, 7), (0, 2), (4, 6), (4, 0)):
            o.append("v_add_f32 %s, %s, %s" % (v(pr[x]), v(pr[x]), v(pr[y])))
            o.append("v_add_f32 %s, %s, %s" % (v(pr[x] + 1), v(pr[x] + 1), v(pr[y] + 1)))
        o += cfma_ops("v50", "v51", PR, PI, "v48", "v49", SR, SI)
        o += ["v_mul_f32 v48, %s, v50" % CR, "v_mul_f32 v49, %s, v51" % CR, "v_fma_f32 v48, -%s, v51, v48" % CI, "v_fmac_f32 v49, %s, v50" % CI]
        cur = ("v48", "v49")
        for r in range(16):
            o.append("v_fmac_f32 %s, %s, %s" % (v(RE + r), LR, cur[0]))
            o.append("v_fmac_f32 %s, %s, %s" % (v(IM + r), LR, cur[1]))
            o.append("v_fmac_f32 %s, %s, %s" % (v(RE + r), NLI, cur[1]))
            o.append("v_fmac_f32 %s, %s, %s" % (v(IM + r), LI, cur[0]))
            cur = (v(RE + r), v(IM + r))
        for q in range(8):
            o.append("v_cvt_pk_bf16_f32 %s, %s, %s" % (v(RE + q), v(RE + 2 * q), v(RE + 2 * q + 1)))
        for q in range(8):
            o.append("v_cvt_pk_bf16_f32 %s, -%s, -%s" % (v(IM + q), v(IM + 2 * q), v(IM + 2 * q + 1)))
        o.append(("bar", PAR["cstep"] + 2))
        o += ["v_xor_b32 v48, 16, v54", "v_xor_b32 v49, 32, v55"]
        for b_, ad, off in ((RE, "v54", 0), (RE + 4, "v48", 0), (IM, "v54", 2048), (IM + 4, "v48", 2048)):
            o.append(lambda b_=b_, ad=ad, off=off: A.lgi("tw", "ds_write_b128 %s, %s offset:%d" % (ad, v(b_, 4), off)))
        dst = [RE + 8, RE + 12, IM + 8, IM + 12]
        def rd():
            A.lgw("tw")
            for ks in range(4):
                for nn in range(2):
                    A.lgi("tr%d" % ks, "ds_read_b64_tr_b16 %s, %s offset:%d" % (v(dst[ks] + 2 * nn, 2), "v49" if nn else "v55", ks * 1024 + nn * 256))
        o += [("gap",), rd, ("gap",)]
        def st(ks):
            A.lgw("tr%d" % ks)
            A.vmi("hst", "buffer_store_dwordx4 %s, v6, %s, s%d offen offset:%d%s" % (v(dst[ks], 4), s(rAS, 4), 101 if ks >= 2 else 100, 1024 * (ks & 1), stmod()))
            if ks == 3:
                A.fs(19)
        for ks in range(4):
            o.append(lambda ks=ks: st(ks))
            o += [("gap",)] * PAR["stgap"]
        return o

    def prefetch_c():
        A.e("s_and_b32 s13, s2, 1")
        A.e("s_lshl_b32 s13, s13, 18")
        A.e("s_lshr_b32 s6, s2, 3")
        A.e("s_lshl_b32 s6, s6, 13")
        A.e("s_add_u32 s13, s13, s6")
        A.e("s_lshl_b32 s6, s7, 11")
        A.e("s_add_u32 s13, s13, s6")
        A.e("v_lshlrev_b32 v18, 7, v1")
        A.e("s_mov_b64 exec, 0xffff")
        A.vmi("pf", "buffer_load_dword v19, v18, %s, s13 offen" % s(rCRE, 4))
        A.vmi("pf", "buffer_load_dword v19, v18, %s, s13 offen" % s(rCIM, 4))
        A.e("s_mov_b64 exec, -1")

    def prefetch_w2():
        A.e("s_lshr_b32 s6, s2, 3")
        A.e("s_mul_i32 s15, s6, 43")
        A.e("s_mul_i32 s13, s7, 11")
        A.e("s_add_u32 s15, s15, s13")
        A.e("s_lshl_b32 s15, s15, 1")
        A.e("s_and_b32 s6, s2, 1")
        A.e("s_add_u32 s15, s15, s6")
        A.e("s_lshl_b32 s15, s15, 9")
        A.e("v_lshrrev_b32 v18, 2, v1")
        A.e("v_lshlrev_b32 v18, 3, v18")
        A.e("v_and_or_b32 v18, v1, 3, v18")
        A.e("v_lshlrev_b32 v18, 7, v18")
        A.e("s_mov_b32 exec_hi, 0xfff")
        A.vmi("pf", "buffer_load_dword v19, v18, %s, s15 offen" % s(rW2, 4))
        A.e("s_mov_b64 exec, -1")

    if PAR["pf"]:
        dq.append((PAR["pfc"] + LAF, prefetch_c))
        dq.append((PAR["pfw"] + LAF, prefetch_w2))

    def pre(b):
        kind, c = ORD[b]
        slot = (b % NSLOT) * SLOT
        if b == LASTP + 1:
            ssm_publish()
        if b == PAR["cstep"] + 1:
            S.flush()
            A.lgw("pw")
        if b == PAR["cstep"] + 2:
            assert "pr" not in A.lg
        if b == PAR["hstep"]:
            S.flush()
            A.vmw("hst")
        dma_upto(min(b - 1 + LA, 15))
        if kind == "P":
            A.e("v_add_u32 v28, %d, v7" % slot)
            A.e("v_xor_b32 v29, 32, v28")
            A.e("v_xor_b32 v30, 64, v28")
            A.e("v_xor_b32 v31, 0x60, v28")
            for q in range(4):
                A.e("v_add_u32 %s, s8, %s" % (v(24 + q), v(28 + q)))
        else:
            A.e("v_add_u32 v14, %d, v12" % slot)
            A.e("v_add_u32 v15, %d, v13" % slot)
        A.fs2(20 + b)
        A.vmw("ch%d" % b)
        A.fs2(36 + b)

    def post(b):
        A.fs(b)
        if b == PAR["estep"]:
            e_issue("e")
        if b == PAR["cstep"]:
            S.fill += [("gap",)] * PAR["cdelay"] + [e_check]
        if b == PAR["cstep"] + 1:
            S.fill += scan_ops()
            S.K = PAR["sfill2"]
        if b == PAR["hstep"]:
            lane0_store(A, ["s_cmp_lg_u32 s3, 0"], "s86", rFL, "s87", 0, "v24", "v25", "L_S_nofl")
            A.fs(57)

    def read(it, sl, tag):
        n, ss, ti = it
        kind, c = ORD[n]
        if kind == "P":
            if ti == 0:
                A.lgi(tag, "ds_read_b128 %s, %s" % (a(16 * c + 4 * ss, 4), v(24 + ss)))
            A.lgi(tag, "ds_read_b128 %s, %s offset:%d" % (v(FB + 4 * sl, 4), v(28 + ss), 16384 + 4096 * ti))
        else:
            T = tiles[ti]
            for nn in range(2):
                A.lgi(tag, "ds_read_b64_tr_b16 %s, v%d offset:%d" % (v(FB + 4 * sl + 2 * nn, 2), 14 + (T & 1),
                                                                    ss * 6144 + (T >> 1) * 1024 + nn * 256))

    def mfma(it, sl):
        n, ss, ti = it
        kind, c = ORD[n]
        first = (c == 0 and ss == 0)
        if kind == "P":
            d = (RE, IM)[ti]
            A.e("v_mfma_f32_32x32x16_bf16 %s, %s, %s, %s" % (v(d, 16), a(16 * c + 4 * ss, 4), v(FB + 4 * sl, 4), "0" if first else v(d, 16)))
        else:
            d = ACC + 16 * ti
            A.e("v_mfma_f32_32x32x16_bf16 %s, %s, %s, %s" % (v(d, 16), v(FB + 4 * sl, 4), a(16 * c + 4 * ss, 4), "0" if first else v(d, 16)))

    def after(it, mp):
        n, ss, ti = it
        if n == 15 and ss == 3:
            S.fill.append(("dist", S.ninstr()))
            S.fill += swiglu_ops(A, ACC + 16 * ti, 1024 * ti, False)
        if n > LASTP:
            dma_upto(S.nb - 1 + LAF, 1)

    S.pre, S.post, S.read, S.mfma, S.after = pre, post, read, mfma, after
    S.run()
    assert not dq
    A.fs(16)
    A.e("v_and_b32 v17, 15, v1")
    A.e("v_lshlrev_b32 v17, 2, v17")
    S.flush()
    A.vmi("poll", "buffer_load_dword v16, v17, %s, 0 offen sc1" % s(rFL, 4))
    A.fs(58)

    N = len(P2_SEQ)
    LA2 = PAR["ala"]
    assert LA2 <= NA - 2
    A.e("s_lshr_b32 s10, s5, 1")
    A.e("s_and_b32 s11, s5, 1")
    A.e("s_and_b32 s13, s10, 3")
    A.e("s_lshl_b32 s13, s13, 1")
    if PAR["urot"]:
        A.e("s_add_u32 s13, s13, s11")
        A.e("s_lshl_b32 s6, s4, 1")
        A.e("s_add_u32 s13, s13, s6")
        A.e("s_and_b32 s13, s13, 7")
    A.e("s_sub_u32 s14, s13, 6")
    A.e("s_cmp_ge_u32 s13, 6")
    A.e("s_cselect_b32 s14, s14, s13")
    A.e("s_lshl_b32 s9, s7, 11")
    A.e("v_and_b32 v11, 7, v1")
    A.e("v_lshrrev_b32 v22, 3, v1")
    A.e("v_lshrrev_b32 v10, 4, v1")
    A.e("v_xor_b32 v10, v10, v11")
    A.e("v_lshlrev_b32 v10, 4, v10")
    A.e("v_lshl_add_u32 v4, v22, 10, v10")
    A.e("s_lshl_b32 s6, s7, 14")
    A.e("s_lshl_b32 s12, s10, 16")
    A.e("s_add_u32 s12, s12, s6")
    A.e("v_add_u32 v4, s12, v4")
    A.e("v_xor_b32 v5, 64, v4")
    A.e("v_add_u32 v5, 8192, v5")

    def idx(n):
        kind, base, ln, m = P2_SEQ[n]
        if ln == 8:
            A.e("s_add_u32 s12, s13, %d" % m)
            A.e("s_and_b32 s12, s12, 7")
        else:
            A.e("s_add_u32 s12, s14, %d" % m)
            A.e("s_sub_u32 s6, s12, 6")
            A.e("s_cmp_ge_u32 s12, 6")
            A.e("s_cselect_b32 s12, s6, s12")

    def dma_w(n):
        kind, base, ln, m = P2_SEQ[n]
        idx(n)
        if kind == "W":
            A.e("s_lshl_b32 s12, s12, 16")
            if base:
                A.e("s_add_u32 s12, s12, %d" % (base * 65536))
            r_, va, vb = rW2, "v3", "v7"
        else:
            A.e("s_lshl_b32 s12, s12, 7")
            r_, va, vb = (rCIM if base else rCRE), "v4", "v5"
        A.e("s_add_u32 m0, s9, %d" % WU(n))
        A.e("s_nop 0")
        A.vmi("w%d" % n, "buffer_load_dwordx4 %s, %s, s12 offen lds" % (va, s(r_, 4)))
        A.e("s_add_u32 m0, s9, %d" % (WU(n) + 1024))
        A.e("s_nop 0")
        A.vmi("w%d" % n, "buffer_load_dwordx4 %s, %s, s12 offen lds" % (vb, s(r_, 4)))

    def dma_a(n):
        kind, base, ln, m = P2_SEQ[n]
        idx(n)
        A.e("s_lshl_b32 s12, s12, 12")
        off = (64 + 4 * base) * 1024 if kind == "W" else 4 * base * 1024
        if off:
            A.e("s_add_u32 s12, s12, %d" % off)
        A.e("s_add_u32 m0, s8, %d" % AU(n))
        A.e("s_nop 0")
        A.vmi("a%d" % n, "buffer_load_dwordx4 v2, %s, s12 offen sc1 lds" % s(rA2, 4))
        A.vmi("a%d" % n, "buffer_load_dwordx4 v2, %s, s12 offen offset:1024 sc1 lds" % s(rA2, 4))

    def check(tag, off, L):
        A.e("s_mov_b32 s15, 0")
        A.vmw(tag)
        A.lab(L + "_poll")
        A.e("v_cmp_ne_u32 vcc, s86, v16")
        A.e("s_cbranch_vccz %s_go" % L)
        A.e("s_sleep %d" % PAR["slp"])
        A.e("buffer_load_dword v16, v17, %s, 0 offen offset:%d sc1" % (s(rFL, 4), off))
        A.e("s_add_u32 s15, s15, 1")
        A.e("s_cmp_lt_u32 s15, 0x20000")
        A.e("s_waitcnt vmcnt(0)")
        A.e("s_cbranch_scc1 %s_poll" % L)
        A.lab(L + "_go")

    NW0 = 5 + 3 * (3 - PAR["nt"]) if PAR["nt"] >= 2 else 8
    for n in range(2):
        dma_w(n)
    A.e("s_and_b32 s12, s7, 1")
    A.e("s_lshr_b32 s15, s7, 1")
    A.e("s_lshl_b32 s15, s15, 11")
    A.e("v_add_u32 v2, s15, v6")
    A.e("s_lshl_b32 s8, s12, 12")
    A.e("s_add_u32 s8, s8, s15")
    A.e("s_lshl_b32 s6, s4, 1")
    A.e("s_add_u32 s6, s6, s11")
    A.e("s_lshl_b32 s6, s6, 1")
    A.e("s_add_u32 s6, s6, s12")
    A.e("s_mul_i32 s6, s6, %d" % (NKS * 1024))
    srd(A, rA2, sWS, NKS * 1024, "s6")
    A.e("v_bfe_u32 v10, v1, 4, 1")
    A.e("v_lshlrev_b32 v10, 2, v10")
    A.e("v_xor_b32 v10, v10, v11")
    A.e("v_lshlrev_b32 v10, 4, v10")
    A.e("v_lshl_add_u32 v3, v22, 10, v10")
    A.e("s_lshl_b32 s6, s7, 14")
    A.e("s_lshl_b32 s12, s10, 7")
    A.e("s_add_u32 s12, s12, s6")
    A.e("v_add_u32 v3, s12, v3")
    A.e("v_add_u32 v7, 8192, v3")
    check("poll", 0, "L_p2a")
    A.fs(55)
    for n in range(max(NA, NW0)):
        if n < NA:
            dma_a(n)
        if 2 <= n < NW0:
            dma_w(n)
    wn, an = NW0, NA
    for n in range(N):
        A.vmw("w%d" % n)
        A.vmw("a%d" % n)
        A.e("s_barrier")
        A.fs(20 + n) if n < 35 else None
        if n == PAR["fl2"]:
            lane0_store(A, ["s_cmp_lg_u32 s3, 0"], "s86", rFL, "s87", 256, "v10", "v11", "L_p2_nofl")
        if n == PAR["chk2"]:
            check("poll2", 256, "L_p2b")
            lane0_store(A, ["s_lshl_b32 s6, s5, 2", "s_add_u32 s6, s6, s7", "s_cmp_lg_u32 s6, 0"], "s86", rG, "0", 0, "v10", "v11", "L_p2_noep")
        if n == PAR["p2poll"]:
            A.vmi("poll2", "buffer_load_dword v16, v17, %s, 0 offen offset:256 sc1" % s(rFL, 4))
        budget = 3 if n == PAR["chk2"] else 2
        while budget > 0:
            a_ok = an < N and an <= n + LA2 and (an < 16 or n >= PAR["chk2"])
            w_ok = wn < N and wn - NW <= n - 2
            if w_ok and (wn <= min(an, n + 2) or not a_ok):
                if not a_ok and wn > n + PAR["wla"] and not (an == 16 and n < PAR["chk2"]):
                    break
                dma_w(wn); wn += 1
            elif a_ok:
                dma_a(an); an += 1
            else:
                break
            budget -= 1
        assert (an > n + 1 or an == N) and (wn > n + 1 or wn == N)
    assert an == N and wn == N
    A.fs_end()
    A.e("s_endpgm")


def gen_all(A):
    K = NAME + "_kernel"
    A.L.append(".globl %s\n.p2align 8\n.type %s,@function\n%s:" % (K, K, K))
    prologue(A)
    role_F(A)
    fm = A.L[A.fmain:]
    del A.L[A.fmain:]
    role_S(A)
    A.L += fm
    A.lab("L_end")
    A.e("s_endpgm")
    A.lab("L_code_end")


def kd(name, nv, acc, ns=102):
    return """.amdhsa_kernel %s
  .amdhsa_next_free_vgpr %d
  .amdhsa_next_free_sgpr %d
  .amdhsa_accum_offset %d
  .amdhsa_group_segment_fixed_size 0
  .amdhsa_kernarg_size 136
  .amdhsa_user_sgpr_count 2
  .amdhsa_user_sgpr_kernarg_segment_ptr 1
  .amdhsa_system_sgpr_workgroup_id_x 1
.end_amdhsa_kernel
""" % (name, nv, ns, acc)


def main(path):
    ref = open("cdna_kernels/%s.s.ref" % NAME).read().splitlines()
    head = [l for l in ref if l.startswith(";") and "@launch" not in l and "Override launch" not in l and "grid=ceil" not in l]
    head = head[:18]
    A = Asm()
    gen_all(A)
    out = head + [
        "; @launch grid=(256,1,1) block=(512,1,1) lds=%d" % K1_LDS,
        '.amdgcn_target "amdgcn-amd-amdhsa--gfx950"', ".text"] + A.L + [
        '.section .rodata,"a"', ".p2align 6", kd(NAME + "_kernel", 256, 128)]
    open(path, "w").write("\n".join(out))


if __name__ == "__main__":
    if "--stamp" in sys.argv:
        STAMP = True
        sys.argv.remove("--stamp")
    for x in list(sys.argv):
        if x.startswith("-O"):
            OPT.add(x[2:]); sys.argv.remove(x)
        elif x.startswith("-P"):
            kk, vv = x[2:].split("=")
            PAR[kk] = vv if kk.startswith("ord") else int(vv)
            sys.argv.remove(x)
    main(sys.argv[1] if len(sys.argv) > 1 else "cdna_kernels/%s.s" % NAME)
```

```python
import sys, struct

NAME = "gated_mix__ssm_conv_s5__glu_gated_swiglu__prompt"

def f2u(x):
    return struct.unpack("<I", struct.pack("<f", x))[0]

LOG2E = 1.4426950408889634
INV2PI = 0.15915494309189535

NKS = 150
A_BYTES = 64 * NKS * 1024
E_OFF = 0xA00000
G_OFF = 0xA20000
EP_OFF = 0xA30000


EPR_OFF = 0xA31000
FL_OFF = 0xA40000

STAMP = False
OPT = {"asc0", "asc1", "osc0", "osc1"}
ST_OFF = 0xB00000

class Asm:
    def __init__(self):
        self.L = []
        self.ni = 0
        self.cond = False
        self.vm = []
        self.lg = []

    def e(self, s):
        if "nomfma" in OPT and s.startswith("v_mfma"):
            s = "s_nop 0"
        if "nolds" in OPT and s.startswith("ds_read"):
            s = "s_nop 0"
        if "nohst" in OPT and s.startswith("buffer_store_dwordx4") and ("s100" in s or "s101" in s):
            s = "s_nop 0"
        if "notw" in OPT and s.startswith("ds_write_b128"):
            s = "s_nop 0"
        if "noscan" in OPT and s.startswith("v_fmac_f32"):
            return
        self.L.append("  " + s)
        if not self.cond:
            self.ni += 1

    def c(self, s):
        pass

    def lab(self, s):
        self.L.append(s + ":")

    def fs2(self, n):
        if "vw" in OPT:
            self.fs(n, True)

    def fs(self, n, vw=False):
        if "vw" in OPT and not vw and 20 <= n < 55:
            return
        if "so" in OPT and n != 61:
            return
        if STAMP and ("light" not in OPT or n in (0, 7, 9, 13, 15, 16, 19, 20, 36, 55, 58, 59, 61)):
            self.e("%s s[98:99]" % ("s_memrealtime" if "rt" in OPT else "s_memtime"))
            self.e("s_waitcnt lgkmcnt(0)")
            self.lg = []
            self.e("s_sub_u32 s98, s98, s96")
            self.e("v_writelane_b32 v0, s98, %d" % n)

    def dbg_end(self):
        if "hold2" in OPT:
            self.e("s_load_dwordx2 s[8:9], s[0:1], 120")
            self.e("s_waitcnt vmcnt(0) lgkmcnt(0)")
            self.e("s_mov_b32 s10, 256")
            self.e("s_mov_b32 s11, 0x20000")
            self.e("s_not_b32 s12, s94")
            self.e("v_mov_b32 v2, s12")
            self.e("v_mov_b32 v1, 0")
            self.e("s_mov_b64 exec, 1")
            self.e("s_cmp_lg_u32 s7, 0")
            self.e("s_cbranch_scc1 L_hold_a")
            self.e("buffer_atomic_umax v2, v1, s[8:11], 0 offen")
            self.lab("L_hold_a")
            self.e("s_sleep 4")
            self.e("s_memrealtime s[98:99]")
            self.e("s_waitcnt lgkmcnt(0)")
            self.e("s_sub_u32 s98, s98, s94")
            self.e("s_cmp_lt_u32 s98, 4000")
            self.e("s_cbranch_scc1 L_hold_a")
            self.e("buffer_load_dword v2, v1, s[8:11], 0 offen sc1")
            self.e("s_waitcnt vmcnt(0)")
            self.e("v_readfirstlane_b32 s94, v2")
            self.e("s_not_b32 s94, s94")
        if "hold" in OPT:
            self.lab("L_hold")
            self.e("s_sleep 4")
            self.e("s_memrealtime s[98:99]")
            self.e("s_waitcnt lgkmcnt(0)")
            self.e("s_sub_u32 s98, s98, s94")
            self.e("s_cmp_lt_u32 s98, %d" % PAR["hold"])
            self.e("s_cbranch_scc1 L_hold")
        if "dbg" in OPT:
            self.e("s_waitcnt vmcnt(0)")
            self.e("s_memrealtime s[98:99]")
            self.e("s_memtime s[92:93]")
            self.e("s_load_dwordx2 s[8:9], s[0:1], 120")
            self.e("s_waitcnt lgkmcnt(0)")
            self.e("s_mov_b32 s10, 256")
            self.e("s_mov_b32 s11, 0x20000")
            self.e("s_not_b32 s94, s94")
            self.e("s_sub_u32 s92, s92, s96")
            self.e("v_mov_b32 v2, s94")
            self.e("v_mov_b32 v3, s98")
            self.e("v_mov_b32 v4, s92")
            self.e("v_mov_b32 v1, 0")
            self.e("s_cmp_lg_u32 s7, 0")
            self.e("s_cbranch_scc1 L_dbg_done")
            self.e("s_mov_b64 exec, 1")
            self.e("buffer_atomic_umax v2, v1, s[8:11], 0 offen")
            self.e("buffer_atomic_umax v3, v1, s[8:11], 0 offen offset:4")
            self.e("buffer_atomic_umax v4, v1, s[8:11], 0 offen offset:8")
            self.lab("L_dbg_done")

    def stamp_begin(self):
        if STAMP or "dbg" in OPT or "hold" in OPT:
            self.e("s_memrealtime s[94:95]")
            self.e("%s s[96:97]" % ("s_memrealtime" if "rt" in OPT else "s_memtime"))

    def fs_end(self):
        if STAMP:
            self.e("s_waitcnt vmcnt(0)")
            self.fs(61)
            self.e("s_memrealtime s[98:99]")
            self.e("s_waitcnt lgkmcnt(0)")
            self.e("v_writelane_b32 v0, s94, 62")
            self.e("v_writelane_b32 v0, s98, 63")
            self.e("s_add_u32 s8, s%d, 0x%x" % (sWS, ST_OFF))
            self.e("s_addc_u32 s9, s%d, 0" % (sWS + 1))
            self.e("s_mov_b32 s10, 0x80000")
            self.e("s_mov_b32 s11, 0x20000")
            self.e("s_lshl_b32 s6, s2, 11")
            self.e("s_lshl_b32 s12, s3, 8")
            self.e("s_add_u32 s6, s6, s12")
            self.e("v_lshlrev_b32 v1, 2, v1")
            self.e("buffer_store_dword v0, v1, s[8:11], s6 offen")

    def vmi(self, tag, s, cold=False):
        if cold and "nt" in OPT:
            s = s.replace(" lds", " nt lds") if s.endswith(" lds") else s + " nt"
        self.e(s)
        self.vm.append(tag)
        assert len(self.vm) <= 63, "too many vmem ops in flight"

    def vmw(self, tag, extra=""):
        idx = [i for i, t in enumerate(self.vm) if t == tag]
        if not idx:
            return None
        n = len(self.vm) - 1 - idx[-1]
        self.vm = self.vm[idx[-1] + 1:]
        self.e("s_waitcnt vmcnt(%d)%s" % (n, extra))
        return n

    def lgi(self, tag, s):
        self.e(s)
        self.lg.append(tag)

    def lgw(self, tag):
        idx = [i for i, t in enumerate(self.lg) if t == tag]
        if not idx:
            return
        n = len(self.lg) - 1 - idx[-1]
        self.lg = self.lg[idx[-1] + 1:]
        self.e("s_waitcnt lgkmcnt(%d)" % min(n, 15))

    def lgw0(self):
        if self.lg:
            self.e("s_waitcnt lgkmcnt(0)")
        self.lg = []


def stmod(pre="a"):
    return "".join(" " + m for m in ("sc0", "sc1", "nt") if pre + m in OPT)

def v(a, n=1):
    return "v%d" % a if n == 1 else "v[%d:%d]" % (a, a + n - 1)

def a(a_, n=1):
    return "a%d" % a_ if n == 1 else "a[%d:%d]" % (a_, a_ + n - 1)

def s(a_, n=1):
    return "s%d" % a_ if n == 1 else "s[%d:%d]" % (a_, a_ + n - 1)


def srd(A, d, base, nbytes, addlo=None):
    if addlo is None:
        A.e("s_mov_b32 s%d, s%d" % (d, base))
        A.e("s_mov_b32 s%d, s%d" % (d + 1, base + 1))
    else:
        A.e("s_add_u32 s%d, s%d, %s" % (d, base, addlo))
        A.e("s_addc_u32 s%d, s%d, 0" % (d + 1, base + 1))
    A.e("s_mov_b32 s%d, 0x%x" % (d + 2, nbytes))
    A.e("s_mov_b32 s%d, 0x20000" % (d + 3))


SLOT = 24576
NSLOT = 6
MISC = SLOT * NSLOT
K1_LDS = 163840
OOB = 0x40000000
LDS_CNT = 4 * SLOT

ORD = [("P", c) for c in range(8)] + [("F", c) for c in range(8)]
LASTP = 7
def slot_of(n):
    return ((n % NSLOT) if n >= 8 else (4, 5, 0, 1)[n & 3]) * SLOT
PAR = dict(la=2, laf=4, nt=2, estep=9, cstep=10, hstep=14, cdelay=0, stgap=1, fd=5, sd=3, ffill=6, sfill=10, sfill2=14,
           rot=1, pf=1, cpf=1, pfc=13, pfw=15, ala=4, wla=4, urot=1, p2poll=13, chk2=15, fl2=8, slp=8, prio=0, hold=4000, pk=1, gam=0, lastbar=14, hsp=0, xstep=6, map=1, defF=2, defS=2, e0=3, pfw2=2, coeff=1, g0=46)

sX, sLRE, sLIM, sBRE, sBIM, sCRE, sCIM, sLDT = 16, 18, 20, 22, 24, 26, 28, 30
sW1, sW3, sW2, sGW, sDS, sWS, sOUT = 32, 34, 36, 38, 40, 42, 84
rX, rBRE, rBIM, rW1, rW3, rAS, rE, rEP, rG, rFL = 44, 48, 52, 56, 60, 64, 68, 72, 76, 88


def swiglu_ops(A, acc, off, pk, defer=None):
    o = []
    if pk:
        for r in range(0, 8, 2):
            o.append("v_pk_mul_f32 %s, %s, %s" % (v(acc + 8 + r, 2), v(acc + r, 2), v(acc + 8 + r, 2)))
        for r in range(0, 8, 2):
            o.append("v_pk_mul_f32 %s, %s, s[80:81] op_sel_hi:[1,0]" % (v(acc + r, 2), v(acc + r, 2)))
        for r in range(8):
            o.append("v_exp_f32 %s, %s" % (v(acc + r), v(acc + r)))
        for r in range(0, 8, 2):
            o.append("v_pk_add_f32 %s, %s, 1.0 op_sel_hi:[1,0]" % (v(acc + r, 2), v(acc + r, 2)))
        for r in range(8):
            o.append("v_rcp_f32 %s, %s" % (v(acc + r), v(acc + r)))
        for r in range(0, 8, 2):
            o.append("v_pk_mul_f32 %s, %s, %s" % (v(acc + 8 + r, 2), v(acc + 8 + r, 2), v(acc + r, 2)))
        for q in range(4):
            o.append("v_cvt_pk_bf16_f32 %s, %s, %s" % (v(acc + q), v(acc + 8 + 2 * q), v(acc + 9 + 2 * q)))
        (o if defer is None else defer).append(lambda: A.vmi("st", "buffer_store_dwordx4 %s, v6, %s, s82 offen offset:%d%s" % (v(acc, 4), s(rAS, 4), off, stmod())))
        return o
    for r in range(8):
        o.append("v_mul_f32 %s, %s, %s" % (v(acc + 8 + r), v(acc + r), v(acc + 8 + r)))
    for r in range(8):
        o.append("v_mul_f32 %s, s80, %s" % (v(acc + r), v(acc + r)))
    for r in range(8):
        o.append("v_exp_f32 %s, %s" % (v(acc + r), v(acc + r)))
    for r in range(8):
        o.append("v_add_f32 %s, 1.0, %s" % (v(acc + r), v(acc + r)))
    for r in range(8):
        o.append("v_rcp_f32 %s, %s" % (v(acc + r), v(acc + r)))
    for r in range(8):
        o.append("v_mul_f32 %s, %s, %s" % (v(acc + 8 + r), v(acc + 8 + r), v(acc + r)))
    for q in range(4):
        o.append("v_cvt_pk_bf16_f32 %s, %s, %s" % (v(acc + q), v(acc + 8 + 2 * q), v(acc + 9 + 2 * q)))
    (o if defer is None else defer).append(lambda: A.vmi("st", "buffer_store_dwordx4 %s, v6, %s, s82 offen offset:%d%s" % (v(acc, 4), s(rAS, 4), off, stmod())))
    return o


class Stream:
    def __init__(self, A, items, NB, D, K):
        self.A, self.items, self.NB, self.D, self.K = A, items, NB, D, K
        self.nb = 0
        self.rp = 0
        self.fill = []
        self.fence = -1
        self.hold = 0

    def ninstr(self):
        return self.A.ni

    def pop(self, k):
        while k > 0 and self.fill:
            f = self.fill[0]
            if isinstance(f, tuple):
                if f[0] == "gap":
                    self.fill.pop(0)
                    return
                if f[0] == "bar" and self.nb <= f[1]:
                    return
                if f[0] == "dist" and self.ninstr() - f[1] < 12:
                    return
                self.fill.pop(0)
                continue
            self.fill.pop(0)
            if isinstance(f, str):
                self.A.e(f)
            else:
                f()
            k -= 1

    def flush(self):
        while self.fill:
            f = self.fill[0]
            if isinstance(f, tuple):
                if f[0] in ("bar", "gap"):
                    assert f[0] == "gap" or self.nb > f[1]
                    self.fill.pop(0)
                    continue
                d = 12 - (self.ninstr() - f[1])
                if d > 0:
                    self.A.e("s_nop %d" % (d - 1))
                self.fill.pop(0)
                continue
            self.pop(1)

    def barrier(self, n):
        while self.nb <= n:
            b = self.nb
            self.pre(b)
            lim = b - 1 if b == PAR["lastbar"] else b - 2
            old = [t for t in self.A.lg if t[0] == "c" and int(t[1:].split("_")[0]) <= lim]
            if b <= PAR["lastbar"]:
                if old:
                    self.A.lgw(old[-1])
                self.A.e("s_barrier")
            self.nb += 1
            self.post(b)

    def reads(self, upto, force):
        while self.rp < min(upto, len(self.items)):
            it = self.items[self.rp]
            if not force and (it[0] > self.nb or (it[0] == self.fence and self.nb <= it[0])):
                return
            self.barrier(it[0])
            self.read(it, self.rp % self.NB, "c%d_%d" % (it[0], self.rp))
            self.rp += 1

    def run(self):
        for mp, it in enumerate(self.items):
            if self.rp <= mp:
                self.reads(mp + 1, True)
                self.reads(mp + 1 + self.D, False)
            self.A.lgw("c%d_%d" % (it[0], mp))
            self.mfma(it, mp % self.NB)
            self.after(it, mp)
            self.reads(min(mp + 1 + self.D, self.rp + 2), False)
            self.pop(self.K)
        self.barrier(15)


def mk_items(ORD, ntile, withP):
    NT = PAR["nt"]
    items = []
    for n in range(16 - NT):
        if ORD[n][0] == "P" and not withP:
            continue
        for ss in range(4):
            for ti in range(ntile):
                items.append((n, ss, ti))
    for t0 in range(0, ntile, 2):
        for n in range(16 - NT, 16):
            assert ORD[n][0] == "F"
            for ss in range(4):
                for ti in (t0, t0 + 1):
                    items.append((n, ss, ti))
    return items


def emit(A, ops):
    for x in ops:
        if isinstance(x, str):
            A.e(x)
        else:
            x()


def prologue(A):
    A.e("s_cmp_ge_u32 s2, 256")
    A.e("s_cbranch_scc1 L_end")
    A.stamp_begin()
    A.e("s_load_dwordx16 s[16:31], s[0:1], 0")
    A.e("s_load_dwordx8 s[32:39], s[0:1], 80")
    A.e("s_load_dwordx2 s[42:43], s[0:1], 128")
    A.e("s_load_dwordx2 s[40:41], s[0:1], 64")
    A.e("s_load_dwordx2 s[84:85], s[0:1], 112")
    A.e("v_lshrrev_b32 v2, 6, v0")
    A.e("v_and_b32 v1, 63, v0")
    A.e("v_readfirstlane_b32 s3, v2")
    if PAR["map"] == 0:
        A.e("s_bfe_u32 s4, s2, 0x20001")
        A.e("s_lshl_b32 s4, s4, 2")
        A.e("s_bfe_u32 s6, s2, 0x20003")
        A.e("s_add_u32 s4, s4, s6")
        A.e("s_and_b32 s5, s2, 1")
        A.e("s_lshl_b32 s5, s5, 3")
        A.e("s_lshr_b32 s6, s2, 5")
        A.e("s_add_u32 s5, s5, s6")
    else:
        A.e("s_bfe_u32 s4, s2, 0x10002")
        A.e("s_lshl_b32 s4, s4, 3")
        A.e("s_bfe_u32 s6, s2, 0x30003")
        A.e("s_add_u32 s4, s4, s6")
        A.e("s_and_b32 s5, s2, 3")
        A.e("s_lshl_b32 s5, s5, 2")
        A.e("s_lshr_b32 s6, s2, 6")
        A.e("s_add_u32 s5, s5, s6")
    A.e("s_and_b32 s7, s3, 3")
    A.e("v_and_b32 v8, 31, v1")
    A.e("v_lshrrev_b32 v9, 5, v1")
    A.e("s_lshl_b32 s8, s7, 12")
    if PAR["rot"]:
        A.e("s_add_u32 s15, s4, s5")
        A.e("s_and_b32 s15, s15, 1")
        if PAR["map"]:
            A.e("s_add_u32 s83, s4, s5")
        elif PAR["gam"]:
            A.e("s_sub_u32 s83, s4, s15")
            A.e("s_lshl_b32 s83, s83, 1")
        else:
            A.e("s_lshl_b32 s83, s4, 1")
        A.e("s_add_u32 s83, s83, s5")
    else:
        A.e("s_mov_b32 s83, 0")
    A.e("s_cmp_lt_u32 s3, 4")
    A.e("s_cbranch_scc1 L_S")


def tile_of(A, half, ct):
    if PAR["map"] == 0:
        A.e("s_and_b32 %s, s5, 1" % half)
        A.e("s_lshr_b32 %s, s5, 1" % ct)
    else:
        A.e("s_lshr_b32 %s, s5, 3" % ct)
        A.e("s_lshl_b32 %s, %s, 2" % (ct, ct))
        A.e("s_and_b32 %s, s5, 3" % half)
        A.e("s_add_u32 %s, %s, %s" % (ct, ct, half))
        A.e("s_bfe_u32 %s, s5, 0x10002" % half)


def common_late(A):
    A.e("s_mov_b32 s80, 0x%x" % f2u(-LOG2E))
    A.e("v_bfe_u32 v10, v1, 1, 3")
    A.e("v_xor_b32 v10, v10, v9")
    A.e("v_lshlrev_b32 v10, 4, v10")
    A.e("v_lshl_add_u32 v7, v8, 7, v10")
    A.e("v_bfe_u32 v10, v1, 4, 1")
    A.e("v_mul_u32_u24 v12, 3104, v10")
    A.e("v_lshlrev_b32 v11, 9, v9")
    A.e("v_add_u32 v12, v12, v11")
    A.e("v_bfe_u32 v11, v1, 2, 2")
    A.e("v_lshl_add_u32 v12, v11, 6, v12")
    A.e("v_and_b32 v11, 3, v1")
    A.e("v_lshl_add_u32 v12, v11, 3, v12")
    A.e("v_xor_b32 v13, 32, v12")
    A.e("v_lshlrev_b32 v6, 4, v1")
    A.e("s_lshl_b32 s6, s4, 2")
    A.e("s_add_u32 s6, s6, s7")
    A.e("s_mul_i32 s81, s6, %d" % (NKS * 1024))
    A.e("s_mul_i32 s6, s5, 6144")
    A.e("s_add_u32 s82, s81, s6")
    srd(A, rAS, sWS, A_BYTES)


def w_scalars(A):
    A.e("s_mul_i32 s10, s7, 6144")
    A.e("s_cmp_ge_u32 s5, 15")
    A.e("s_cselect_b32 s92, 0x%x, 0" % OOB)
    A.e("s_cmp_ge_u32 s5, 14")
    A.e("s_cselect_b32 s93, 0x%x, 0" % OOB)


def wdma_addr_ops(d1, d3, tmp):
    return ["v_lshrrev_b32 %s, 2, v1" % tmp, "s_lshl_b32 s6, s7, 4", "v_add_u32 %s, s6, %s" % (tmp, tmp),
            "v_mul_u32_u24 %s, 2752, %s" % (d1, tmp), "s_mul_i32 s6, s5, 192", "v_add_u32 %s, s6, %s" % (d1, d1),
            "v_and_b32 %s, 3, v1" % tmp, "v_lshl_add_u32 %s, %s, 4, %s" % (d1, tmp, d1), "v_xor_b32 %s, 32, %s" % (d3, d1)]


def dma_ops(A, n, w1, w3):
    kind, c = ORD[n]
    slot = slot_of(n)
    tag = "ch%d" % n
    ops = []
    def mk(pre, m0, ins):
        def f():
            for x in pre:
                A.e(x)
            A.e(m0)
            A.e("s_nop 0")
            A.vmi(tag, ins)
        return f
    if kind == "P":
        pre = ["s_add_u32 s11, s83, %d" % c, "s_and_b32 s11, s11, 7", "s_lshl_b32 s11, s11, 7", "s_add_u32 s12, s11, 8192"]
        for q in range(4):
            ops.append(mk(pre if q == 0 else [], "s_add_u32 m0, s8, %d" % (slot + 1024 * q),
                          "buffer_load_dwordx4 %s, %s, s%d offen lds" % ("v3" if q & 1 else "v2", s(rX, 4), 12 if q >= 2 else 11)))
        ops.append(mk([], "s_add_u32 m0, s9, %d" % (slot + 16384), "buffer_load_dwordx4 v4, %s, s11 offen lds" % s(rBRE, 4)))
        ops.append(mk([], "s_add_u32 m0, s9, %d" % (slot + 20480), "buffer_load_dwordx4 v4, %s, s11 offen lds" % s(rBIM, 4)))
    else:
        pre = ["s_add_u32 s11, s83, %d" % c, "s_and_b32 s11, s11, 7", "s_mul_i32 s11, s11, 176128",
               "s_add_u32 s12, s11, s93", "s_add_u32 s11, s11, s92"]
        for m in range(2):
            for q in range(3):
                ops.append(mk(pre if m == 0 and q == 0 else [], "s_add_u32 m0, s10, %d" % (slot + m * 3072 + 1024 * q - 64 * q),
                              "buffer_load_dwordx4 %s, %s, s%d offen offset:%d lds" % (w3 if m else w1, s(rW3 if m else rW1, 4), 12 if q else 11, 64 * q)))
    return ops


P2_GROUPS = [("C", 0, 8), ("C", 8, 8), ("W", 0, 8), ("W", 8, 8), ("W", 16, 6)]
P2_SEQ = [(k, b, n, m) for (k, b, n) in P2_GROUPS for m in range(n)]
P2_SEQ.insert(12, ("X", 0, 1, 0))
NSSM = 17
NA, NW = 6, 14
WUNITS = [0, 1, 2, 18, 19] + list(range(3, 12))
def AU(n): return (12 + n % NA) * 8192
def WU(n): return WUNITS[n % NW] * 8192


def role_F(A):
    A.vm, A.lg = [], []
    ACC, FB = 64, 32
    LA = PAR["la"]
    if PAR["prio"]:
        A.e("s_setprio %d" % PAR["prio"])
    A.e("v_lshrrev_b32 v10, 4, v1")
    A.e("v_and_b32 v11, 7, v1")
    A.e("v_xor_b32 v10, v10, v11")
    A.e("v_lshlrev_b32 v10, 4, v10")
    A.e("v_bfe_u32 v11, v1, 3, 2")
    A.e("v_lshl_add_u32 v2, v11, 10, v10")
    A.e("v_lshl_add_u32 v2, v9, 14, v2")
    A.e("s_lshl_b32 s6, s7, 15")
    A.e("v_add_u32 v2, s6, v2")
    A.e("v_xor_b32 v3, 64, v2")
    A.e("v_add_u32 v3, 4096, v3")
    A.e("s_lshl_b32 s9, s7, 10")
    A.e("s_and_b32 s6, s7, 1")
    A.e("s_lshl_b32 s6, s6, 6")
    A.e("v_xor_b32 v4, s6, v10")
    A.e("v_lshrrev_b32 v11, 3, v1")
    A.e("v_lshl_add_u32 v4, v11, 10, v4")
    A.e("s_lshl_b32 s6, s7, 13")
    A.e("v_add_u32 v4, s6, v4")
    emit(A, wdma_addr_ops("v5", "v16", "v10"))
    w_scalars(A)
    A.e("s_lshl_b32 s6, s4, 17")
    A.e("s_lshl_b32 s13, s5, 15")
    A.e("s_waitcnt lgkmcnt(0)")
    srd(A, rW1, sW1, 512 * 2752)
    srd(A, rW3, sW3, 512 * 2752)
    if PAR["gam"]:
        assert LA == 2
        A.e("s_cmp_lg_u32 s15, 0")
        A.e("s_cbranch_scc1 L_F_now")
        emit(A, dma_ops(A, 8, "v5", "v16") + dma_ops(A, 9, "v5", "v16"))
        A.vm = []
        A.lab("L_F_now")
    srd(A, rX, sX, 131072, "s6")
    srd(A, rBRE, sBRE, 32768, "s13")
    srd(A, rBIM, sBIM, 32768, "s13")
    emit(A, dma_ops(A, 0, "v5", "v16"))
    A.e("s_lshl_b32 s6, s5, 3")
    A.e("s_lshl_b32 s13, s7, 1")
    A.e("s_add_u32 s13, s13, s6")
    A.e("s_lshl_b32 s6, s13, 10")
    A.e("v_lshlrev_b32 v17, 4, v8")
    A.e("v_lshl_add_u32 v18, v9, 10, v17")
    A.e("v_add_u32 v18, s6, v18")
    A.vmi("g", "buffer_load_dwordx4 v[64:67], v18, %s, 0 offen" % s(rX, 4))
    A.vmi("g", "buffer_load_dwordx4 v[68:71], v18, %s, 0 offen offset:512" % s(rX, 4))
    A.vmi("g", "global_load_dwordx4 v[72:75], v17, %s" % s(sGW, 2))
    A.vmi("g", "global_load_dwordx4 v[76:79], v17, %s offset:512" % s(sGW, 2))
    emit(A, dma_ops(A, 1, "v5", "v16"))
    common_late(A)
    srd(A, rG, sWS, 16384, "0x%x" % G_OFF)
    A.e("v_add_u32 v7, s8, v7")
    A.e("s_add_u32 s82, s82, %d" % (65536 + 2048))
    A.e("s_add_u32 s82, s82, s93")
    A.e("s_branch L_Fmain")
    A.fmain = len(A.L)
    A.lab("L_Fmain")

    def g_ops():
        o = [lambda: A.vmw("g"), "v_mov_b32 v84, 0"]
        for d in range(8):
            xx, ww = 64 + d, 72 + d
            o += ["v_lshlrev_b32 v80, 16, %s" % v(xx), "v_and_b32 v81, 0xffff0000, %s" % v(xx),
                  "v_lshlrev_b32 v82, 16, %s" % v(ww), "v_and_b32 v83, 0xffff0000, %s" % v(ww),
                  "v_mul_f32 v80, v80, v82", "v_mul_f32 v81, v81, v83", "v_cvt_pk_bf16_f32 v80, v80, v81",
                  "v_lshlrev_b32 v81, 16, v80", "v_and_b32 v80, 0xffff0000, v80",
                  "v_add_f32 v84, v84, v81", "v_add_f32 v84, v84, v80"]
        for sh in (1, 2, 4, 8):
            o += ["s_nop 1", "v_add_f32_dpp v84, v84, v84 row_shr:%d row_mask:0xf bank_mask:0xf bound_ctrl:0" % sh]
        o += ["s_nop 1", "v_add_f32_dpp v84, v84, v84 row_bcast:15 row_mask:0xa bank_mask:0xf",
              "v_cvt_pk_bf16_f32 v84, v84, v84", "v_and_b32 v84, 0xffff0000, v84", "v_mul_f32 v84, s80, v84",
              "v_exp_f32 v84, v84", "s_nop 0", "v_add_f32 v84, 1.0, v84", "v_rcp_f32 v84, v84", "s_nop 0",
              "v_cvt_pk_bf16_f32 v84, v84, v84", "v_and_b32 v84, 0xffff0000, v84",
              "v_sub_f32 v85, 1.0, v84", "v_cvt_pk_bf16_f32 v85, v85, v85", "v_and_b32 v85, 0xffff0000, v85"]
        return o

    def g_store():
        A.e("s_lshl_b32 s6, s4, 7")
        A.e("s_add_u32 s6, s6, s13")
        A.e("s_lshl_b32 s6, s6, 3")
        A.e("v_lshlrev_b32 v86, 3, v9")
        A.e("s_mov_b32 exec_lo, 0x80000000")
        A.e("s_mov_b32 exec_hi, 0x80000000")
        A.vmi("gst", "buffer_store_dwordx2 v[84:85], v86, %s, s6 offen%s" % (s(rG, 4), stmod()))
        A.e("s_mov_b64 exec, -1")

    gq = g_ops()
    rO = 68
    A.e("s_and_b32 s72, s7, 1")
    A.e("s_lshr_b32 s73, s7, 1")
    tile_of(A, "s6", "s74")
    A.e("s_lshl_b32 s75, s4, 1")
    A.e("s_add_u32 s75, s75, s6")
    A.e("s_lshl_b32 s75, s75, 1")
    A.e("s_add_u32 s75, s75, s72")
    A.e("s_lshl_b32 s75, s75, 16")
    A.e("s_lshl_b32 s74, s74, 1")
    A.e("s_add_u32 s74, s74, s73")
    A.e("s_lshl_b32 s74, s74, 7")
    A.e("s_add_u32 s75, s75, s74")
    A.e("v_lshlrev_b32 v20, 15, v9")
    A.e("v_lshl_add_u32 v20, v8, 2, v20")
    A.e("v_add_u32 v20, s75, v20")
    srd(A, rO, sOUT, 2048 * 2048)
    A.e("s_lshl_b32 s6, s72, 12")
    A.e("s_add_u32 s6, s6, %d" % AU(0))
    A.e("v_add_u32 v17, s6, v6")
    A.e("v_subrev_u32 v18, s8, v7")
    A.e("s_lshl_b32 s6, s73, 12")
    A.e("v_add_u32 v18, s6, v18")
    A.e("v_bfe_u32 v10, v1, 2, 2")
    A.e("v_lshlrev_b32 v19, 7, v10")
    A.e("v_lshl_add_u32 v19, v9, 9, v19")
    A.e("v_bfe_u32 v10, v1, 4, 1")
    A.e("v_lshl_add_u32 v19, v10, 5, v19")
    A.e("v_and_b32 v10, 3, v1")
    A.e("v_lshl_add_u32 v19, v10, 3, v19")
    A.e("v_bfe_u32 v10, v1, 3, 1")
    A.e("v_xor_b32 v10, s73, v10")
    A.e("v_lshl_add_u32 v19, v10, 6, v19")
    XN = [q for q, x in enumerate(P2_SEQ) if x[0] == "X"][0]
    A.e("s_lshl_b32 s6, s73, 6")
    A.e("v_lshl_add_u32 v23, v8, 1, s6")
    A.e("s_lshl_b32 s6, s72, 1")
    A.e("v_add_u32 v10, s6, v9")
    A.e("v_lshl_add_u32 v21, v10, 11, v23")
    A.e("v_add_u32 v21, %d, v21" % WU(XN))
    A.e("v_lshlrev_b32 v22, 7, v10")
    A.e("v_add_u32 v22, %d, v22" % AU(XN))
    A.e("v_add_u32 v23, %d, v23" % (AU(XN) + 1024))

    tiles = [2, 3, 4, 5]
    S = Stream(A, mk_items(ORD, 4, False), 8, PAR["fd"], PAR["ffill"])
    late = []

    def waddr(n):
        return ((14, 15), (28, 29), (30, 31))[n % 3]

    def pre(b):
        kind, c = ORD[b]
        slot = slot_of(b)
        if b == LASTP + 1:
            emit(A, gq)
            g_store()
        if b == PAR["lastbar"]:
            A.vmw("gst")
        if kind == "P":
            A.e("v_add_u32 v24, %d, v7" % slot)
            A.e("v_xor_b32 v25, 32, v24")
            A.e("v_xor_b32 v26, 64, v24")
            A.e("v_xor_b32 v27, 0x60, v24")
        else:
            A.e("v_add_u32 v%d, %d, v12" % (waddr(b)[0], slot))
            A.e("v_add_u32 v%d, %d, v13" % (waddr(b)[1], slot))
        A.fs2(20 + b)
        A.vmw("ch%d" % b)
        if PAR["gam"] and b == 7:
            A.e("s_cmp_lg_u32 s15, 0")
            A.e("s_cbranch_scc1 L_F_w7")
            A.e("s_waitcnt vmcnt(0)")
            A.lab("L_F_w7")
        A.fs2(36 + b)

    def post(b):
        kind, c = ORD[b]
        A.fs(b)
        if kind == "P":
            for ss in range(4):
                A.lgi("c%d_x" % b, "ds_read_b128 %s, %s" % (a(16 * c + 4 * ss, 4), v(24 + ss)))
            for n in range(2, 16):
                if (n == b + LA) or (b == 0 and n < LA):
                    if PAR["gam"] and n >= 8:
                        A.e("s_cmp_eq_u32 s15, 0")
                        A.e("s_cbranch_scc1 L_F_skip%d" % n)
                    emit(A, dma_ops(A, n, "v5", "v16"))
                    if PAR["gam"] and n >= 8:
                        A.lab("L_F_skip%d" % n)
            if b == 0:
                emit(A, gq[:PAR["g0"]])
                del gq[:PAR["g0"]]

    def read(it, sl, tag):
        n, ss, ti = it
        T = tiles[ti]
        for nn in range(2):
            A.lgi(tag, "ds_read_b64_tr_b16 %s, v%d offset:%d" % (v(FB + 4 * sl + 2 * nn, 2), waddr(n)[T & 1],
                                                                ss * 6144 + (T >> 1) * 1024 + nn * 256))

    def mfma(it, sl):
        n, ss, ti = it
        c = ORD[n][1]
        first = (c == 0 and ss == 0)
        A.e("v_mfma_f32_32x32x16_bf16 %s, %s, %s, %s" % (v(ACC + 16 * ti, 16), v(FB + 4 * sl, 4), a(16 * c + 4 * ss, 4),
                                                        "0" if first else v(ACC + 16 * ti, 16)))

    def after(it, mp):
        n, ss, ti = it
        if n == 15 and ss == 3:
            S.fill.append(("dist", S.ninstr()))
            S.fill += swiglu_ops(A, ACC + 16 * ti, 1024 * ti, PAR["pk"] and ti >= 2, late if ti >= 4 - PAR["defF"] else None)

    S.pre, S.post, S.read, S.mfma, S.after = pre, post, read, mfma, after
    S.run()
    A.fs(16)
    S.flush()
    A.fs(19)

    N = len(P2_SEQ)
    ACCB, ACCA, GV, XV = 32, 48, 64, 96
    A.lg = []

    def addr(n):
        if P2_SEQ[n][0] == "W":
            A.e("v_add_u32 v24, %d, v19" % WU(n))
        elif P2_SEQ[n][0] == "C":
            A.e("v_add_u32 v24, %d, v18" % WU(n))
            A.e("v_xor_b32 v25, 32, v24")
            A.e("v_xor_b32 v26, 64, v24")
            A.e("v_xor_b32 v27, 0x60, v24")

    def reads2(n, ss):
        fb = 32 * (n & 1)
        tg = "r%d_%d" % (n, ss)
        if P2_SEQ[n][0] == "X":
            for q in (2 * ss, 2 * ss + 1):
                A.lgi(tg, "ds_read_b128 %s, v22 offset:%d" % (v(GV + 4 * q, 4), 16 * q))
            for r in range(4 * ss, 4 * ss + 4):
                A.lgi(tg, "ds_read_u16 %s, v21 offset:%d" % (v(XV + r), 128 * r))
            if ss == 3:
                A.lgi(tg, "ds_read_u16 v16, v23")
            return
        A.lgi(tg, "ds_read_b128 %s, v17 offset:%d" % (a(fb + 4 * ss, 4), AU(n) - AU(0) + 1024 * ss))
        if P2_SEQ[n][0] == "W":
            for nn in range(2):
                A.lgi(tg, "ds_read_b64_tr_b16 %s, v24 offset:%d" % (a(fb + 16 + 4 * ss + 2 * nn, 2), 2048 * ss + 1024 * nn))
        else:
            A.lgi(tg, "ds_read_b128 %s, %s" % (a(fb + 16 + 4 * ss, 4), v(24 + ss)))

    def mfma2(n, ss):
        kind, base, ln, m = P2_SEQ[n]
        fb = 32 * (n & 1)
        A.lgw("r%d_%d" % (n, ss))
        if kind == "X":
            return
        acc = v(ACCB if kind == "W" else ACCA, 16)
        first = (base == 0 and m == 0 and ss == 0)
        A.e("v_mfma_f32_32x32x16_bf16 %s, %s, %s, %s" % (acc, a(fb + 4 * ss, 4), a(fb + 16 + 4 * ss, 4), "0" if first else acc))

    def xd(q):
        if q == 0:
            A.e("v_lshlrev_b32 v16, 16, v16")
        r0, r1 = 2 * q, 2 * q + 1
        A.e("v_lshlrev_b32 %s, 16, %s" % (v(XV + r0), v(XV + r0)))
        A.e("v_lshlrev_b32 %s, 16, %s" % (v(XV + r1), v(XV + r1)))
        A.e("v_mul_f32 %s, %s, v16" % (v(XV + r0), v(XV + r0)))
        A.e("v_mul_f32 %s, %s, v16" % (v(XV + r1), v(XV + r1)))
        A.e("v_cvt_pk_bf16_f32 %s, %s, %s" % (v(XV + r0), v(XV + r0), v(XV + r1)))
        A.e("v_and_b32 %s, 0xffff0000, %s" % (v(XV + r1), v(XV + r0)))
        A.e("v_lshlrev_b32 %s, 16, %s" % (v(XV + r0), v(XV + r0)))

    def fold(q):
        for r in range(4 * q, 4 * q + 4):
            A.e("v_add_f32 %s, %s, %s" % (v(ACCA + r), v(ACCA + r), v(XV + r)))
        for r in range(4 * q, 4 * q + 4):
            A.e("v_mul_f32 %s, %s, %s" % (v(ACCA + r), v(GV + 2 * r), v(ACCA + r)))

    assert PAR["fl2"] <= XN
    for n in range(N):
        addr(n)
        if n == PAR["fl2"]:
            assert not late
            A.vmw("st")
        A.e("s_barrier")
        for ss in range(4):
            if n >= 1:
                mfma2(n - 1, ss)
            reads2(n, ss)
        if late:
            late.pop(0)()
        if 20 <= n < 28:
            xd(n - 20)
        if 28 <= n < 32:
            fold(n - 28)
    for ss in range(4):
        mfma2(N - 1, ss)
    A.fs(59)
    A.e("s_nop 7")
    A.e("s_nop 3")
    for q in range(8):
        A.e("v_cvt_pk_bf16_f32 %s, %s, %s" % (v(XV + q), v(ACCB + 2 * q), v(ACCB + 2 * q + 1)))
    for q in range(8):
        A.e("v_lshlrev_b32 %s, 16, %s" % (v(ACCB + 2 * q), v(XV + q)))
        A.e("v_and_b32 %s, 0xffff0000, %s" % (v(ACCB + 2 * q + 1), v(XV + q)))
    for r in range(16):
        A.e("v_mul_f32 %s, %s, %s" % (v(ACCB + r), v(GV + 2 * r + 1), v(ACCB + r)))
    for q in range(8):
        A.e("v_cvt_pk_bf16_f32 %s, %s, %s" % (v(XV + q), v(ACCB + 2 * q), v(ACCB + 2 * q + 1)))
    for q in range(8):
        A.e("v_lshlrev_b32 %s, 16, %s" % (v(ACCB + 2 * q), v(XV + q)))
        A.e("v_and_b32 %s, 0xffff0000, %s" % (v(ACCB + 2 * q + 1), v(XV + q)))
        A.e("s_movk_i32 s6, %d" % (4096 * q))
        for r in (2 * q, 2 * q + 1):
            A.e("v_add_f32 %s, %s, %s" % (v(ACCB + r), v(ACCB + r), v(ACCA + r)))
            A.e("buffer_store_dword %s, v20, %s, s6 offen offset:%d%s" % (v(ACCB + r), s(rO, 4), 2048 * (r & 1), stmod("o")))
    A.fs(60)
    A.fs_end()
    A.dbg_end()
    A.e("s_endpgm")


def cpow(A, n_scale, dre, dim, t0, t1, va, vb):
    if n_scale == 1.0:
        A.e("v_exp_f32 %s, %s" % (t0, va))
        A.e("v_fract_f32 %s, %s" % (t1, vb))
    else:
        ns = n_scale if isinstance(n_scale, str) else "0x%x" % f2u(n_scale)
        A.e("v_mul_f32 %s, %s, %s" % (t0, ns, va))
        A.e("v_mul_f32 %s, %s, %s" % (t1, ns, vb))
        A.e("v_exp_f32 %s, %s" % (t0, t0))
        A.e("v_fract_f32 %s, %s" % (t1, t1))
    A.e("v_cos_f32 %s, %s" % (dre, t1))
    A.e("v_sin_f32 %s, %s" % (dim, t1))
    A.e("s_nop 0")
    A.e("v_mul_f32 %s, %s, %s" % (dre, dre, t0))
    A.e("v_mul_f32 %s, %s, %s" % (dim, dim, t0))


def cfma_ops(dr, di, mr, mi, xr, xi, ar, ai):
    return ["v_fma_f32 %s, %s, %s, %s" % (dr, mr, xr, ar),
            "v_fma_f32 %s, %s, %s, %s" % (di, mr, xi, ai),
            "v_fma_f32 %s, -%s, %s, %s" % (dr, mi, xi, dr),
            "v_fma_f32 %s, %s, %s, %s" % (di, mi, xr, di)]


def lane0_store(A, cond, val, srd_, soff, off, vt, vz, L):
    for x in cond:
        A.e(x)
    A.e("s_cbranch_scc1 " + L)
    A.cond = True
    A.e("v_mov_b32 %s, %s" % (vt, val))
    A.e("v_mov_b32 %s, 0" % vz)
    A.e("s_mov_b64 exec, 1")
    A.e("buffer_store_dword %s, %s, %s, %s offen offset:%d sc1" % (vt, vz, s(srd_, 4), soff, off))
    A.e("s_mov_b64 exec, -1")
    A.cond = False
    A.lab(L)


def role_S(A):
    A.vm, A.lg = [], []
    A.lab("L_S")
    LR, LI, NLI = "v16", "v17", "v5"
    L16R, L16I, QR, QI, L256R, L256I = "v18", "v19", "v20", "v21", "v22", "v23"
    CR, CI, PR, PI = "v2", "v3", "v10", "v11"
    ER, EI, SR, SI = "v56", "v57", "v58", "v59"
    RE, IM, ACC, FB = 64, 80, 96, 32
    A.e("s_lshl_b32 s6, s5, 6")
    A.e("v_lshlrev_b32 v4, 1, v8")
    A.e("v_add_u32 v4, s6, v4")
    A.e("s_lshl_b32 s6, s5, 7")
    A.e("s_add_u32 s6, s6, 0x%x" % EP_OFF)
    A.e("v_mov_b32 v55, 0")
    if PAR["cpf"]:
        A.e("s_getpc_b64 s[44:45]")
        A.lab("L_pc")
        A.e("s_sub_u32 s44, s44, L_pc - %s_kernel" % NAME)
        A.e("s_subb_u32 s45, s45, 0")
        A.e("s_mov_b32 s46, L_code_end - %s_kernel" % NAME)
        A.e("s_mov_b32 s47, 0x20000")
        A.e("s_lshr_b32 s9, s2, 3")
        A.e("s_lshl_b32 s9, s9, 2")
        A.e("s_add_u32 s9, s9, s7")
        A.e("s_lshl_b32 s9, s9, 8")
        A.e("v_lshlrev_b32 v53, 7, v1")
        A.e("s_mov_b64 exec, 3")
        A.vmi("par", "buffer_load_dword v52, v53, s[44:47], s9 offen")
        A.e("s_mov_b64 exec, -1")
    A.e("s_waitcnt lgkmcnt(0)")
    A.vmi("par", "global_load_ushort v60, v4, %s" % s(sLRE, 2))
    A.vmi("par", "global_load_ushort v61, v4, %s" % s(sLIM, 2))
    A.vmi("par", "global_load_ushort v62, v4, %s" % s(sLDT, 2))
    srd(A, rEP, sWS, 4, "s6")
    A.vmi("par", "buffer_load_dword v54, v55, %s, 0 offen sc1" % s(rEP, 4))
    A.e("s_lshl_b32 s6, s4, 7")
    A.e("s_add_u32 s6, s6, 0x%x" % EPR_OFF)
    srd(A, rG, sWS, 4, "s6")
    A.vmi("par", "buffer_load_dword v56, v55, %s, 0 offen sc1" % s(rG, 4))
    common_late(A)
    w_scalars(A)
    srd(A, rW1, sW1, 512 * 2752)
    srd(A, rW3, sW3, 512 * 2752)
    A.e("s_lshl_b32 s6, s5, 13")
    A.e("s_add_u32 s6, s6, 0x%x" % E_OFF)
    srd(A, rE, sWS, 8192, "s6")
    A.e("s_lshl_b32 s6, s4, 9")
    A.e("s_add_u32 s6, s6, 0x%x" % FL_OFF)
    srd(A, rFL, sWS, 512, "s6")
    A.e("s_lshl_b32 s87, s5, 2")
    rCRE, rCIM, rW2, rA2 = 48, 52, 44, 56
    srd(A, rCRE, sCRE, 524288)
    srd(A, rCIM, sCIM, 524288)
    A.e("s_add_u32 s82, s82, 65536")
    A.e("s_add_u32 s82, s82, s92")
    A.e("s_lshl_b32 s100, s5, 11")
    A.e("s_add_u32 s100, s100, s81")
    A.e("s_add_u32 s101, s100, 32768")
    A.e("v_lshlrev_b32 v4, 3, v0")
    A.e("v_add_u32 v4, %d, v4" % (MISC + 2048))
    A.e("v_mov_b32 v48, 0")
    A.e("v_mov_b32 v49, 0")
    A.e("ds_write_b64 v4, v[48:49]")
    A.e("ds_write_b32 v4, v48 offset:2048")
    A.e("s_lshl_b32 s6, s7, 1")
    A.e("v_add_u32 v63, s6, v9")
    A.e("v_sub_u32 v4, 7, v63")
    A.e("v_lshlrev_b32 v4, 8, v4")
    A.e("v_lshl_add_u32 v4, v8, 3, v4")
    A.e("v_add_u32 v4, %d, v4" % MISC)
    A.e("v_lshlrev_b32 v63, 4, v63")
    A.e("v_cvt_f32_u32 v63, v63")
    A.e("s_lshl_b32 s6, s7, 9")
    A.e("v_lshlrev_b32 v57, 7, v9")
    A.e("v_add_u32 v57, s6, v57")
    A.e("v_cvt_f32_u32 v57, v57")
    A.vmw("par", " lgkmcnt(0)")
    srd(A, rW2, sW2, 1376 * 1024)
    A.e("v_readfirstlane_b32 s14, v54")
    A.e("v_readfirstlane_b32 s86, v56")
    A.e("s_add_u32 s14, s14, 1")
    A.e("s_bitset1_b32 s14, 31")
    A.e("s_add_u32 s86, s86, 1")
    A.e("s_bitset1_b32 s86, 31")
    A.e("v_lshlrev_b32 v60, 16, v60")
    A.e("v_lshlrev_b32 v61, 16, v61")
    A.e("v_lshlrev_b32 v62, 16, v62")
    A.e("v_mul_f32 v62, 0x%x, v62" % f2u(LOG2E))
    A.e("v_exp_f32 v62, v62")
    A.e("s_nop 0")
    A.e("v_cvt_pk_bf16_f32 v62, v62, v62")
    A.e("v_and_b32 v62, 0xffff0000, v62")
    A.e("v_mul_f32 v50, v62, v60")
    A.e("v_mul_f32 v51, v62, v61")
    A.e("v_mul_f32 v50, 0x%x, v50" % f2u(LOG2E))
    A.e("v_mul_f32 v51, 0x%x, v51" % f2u(INV2PI))
    cpow(A, 1.0, LR, LI, "v52", "v53", "v50", "v51")
    cpow(A, 16.0, L16R, L16I, "v52", "v53", "v50", "v51")
    cpow(A, "v57", QR, QI, "v52", "v53", "v50", "v51")
    cpow(A, 256.0, L256R, L256I, "v52", "v53", "v50", "v51")
    cpow(A, "v63", PR, PI, "v52", "v53", "v50", "v51")
    A.e("v_sub_f32 %s, 0, %s" % (NLI, LI))
    A.e("v_mul_f32 v52, v60, v60")
    A.e("v_fmac_f32 v52, v61, v61")
    A.e("v_rcp_f32 v52, v52")
    A.e("v_add_f32 v53, -1.0, %s" % LR)
    A.e("v_mul_f32 %s, v53, v60" % CR)
    A.e("v_fmac_f32 %s, %s, v61" % (CR, LI))
    A.e("v_mul_f32 %s, %s, v60" % (CI, LI))
    A.e("v_fma_f32 %s, -v53, v61, %s" % (CI, CI))
    A.e("v_add_f32 v52, v52, v52")
    A.e("v_mul_f32 %s, %s, v52" % (CR, CR))
    A.e("v_mul_f32 %s, %s, v52" % (CI, CI))
    emit(A, ["v_lshlrev_b32 v54, 6, v8", "v_lshl_add_u32 v54, v9, 5, v54", "v_bfe_u32 v50, v1, 1, 2", "v_lshlrev_b32 v50, 4, v50",
             "v_xor_b32 v54, v50, v54", "v_add_u32 v54, s8, v54", "v_add_u32 v54, %d, v54" % MISC,
             "v_bfe_u32 v55, v1, 2, 2", "v_lshlrev_b32 v55, 6, v55", "v_lshl_add_u32 v55, v9, 9, v55",
             "v_and_b32 v50, 1, v1", "v_lshl_add_u32 v55, v50, 5, v55", "v_bfe_u32 v50, v1, 4, 1", "v_lshl_add_u32 v55, v50, 4, v55",
             "v_bfe_u32 v50, v1, 1, 1", "v_lshl_add_u32 v55, v50, 3, v55", "v_bfe_u32 v50, v1, 3, 1", "v_lshlrev_b32 v50, 4, v50",
             "v_xor_b32 v55, v50, v55", "v_add_u32 v55, s8, v55", "v_add_u32 v55, %d, v55" % MISC])
    emit(A, ["s_lshl_b32 s6, s7, 2", "s_sub_u32 s6, s6, s4", "s_add_u32 s6, s6, 16",
             "v_add_u32 v62, s6, v9", "v_lshlrev_b32 v60, 9, v62", "v_lshl_add_u32 v60, v8, 4, v60",
             "v_sub_u32 v62, 17, v62", "v_and_b32 v62, -2, v62", "v_max_i32 v62, 0, v62", "v_min_i32 v62, 4, v62",
             "v_lshlrev_b32 v63, 3, v8", "v_add_u32 v63, %d, v63" % (MISC + 8192),
             "s_lshl_b32 s6, s7, 9", "v_lshl_add_u32 v61, v9, 8, v63", "v_add_u32 v61, s6, v61"])

    tiles = [0, 1]
    LA, LAF = PAR["la"], PAR["laf"]
    assert LA <= LAF <= 4
    assert LASTP + 1 <= PAR["estep"] <= PAR["cstep"] and PAR["cstep"] + 2 <= PAR["lastbar"] <= PAR["hstep"] <= 15 and PAR["lastbar"] >= 13
    S = Stream(A, mk_items(ORD, 2, True), 4, PAR["sd"], PAR["sfill"])
    S.fence = LASTP + 1
    late = []
    dq = []
    for n in range(LASTP + LA + 1, 16):
        dq += [(n, f) for f in dma_ops(A, n, "v4", "v7")]

    def dma_upto(m, maxops=999):
        while dq and dq[0][0] <= m and maxops > 0:
            dq.pop(0)[1]()
            maxops -= 1

    def ssm_publish():
        A.e("s_nop 7")
        A.e("s_nop 3")
        cur = (v(RE), v(IM))
        tmp = [("v48", "v49"), ("v50", "v51")]
        for r in range(1, 16):
            d = (ER, EI) if r == 15 else tmp[r & 1]
            emit(A, cfma_ops(d[0], d[1], LR, LI, cur[0], cur[1], v(RE + r), v(IM + r)))
            cur = d
        A.e("ds_write_b64 v4, v[56:57]")
        A.e("v_mov_b32 v48, %d" % (MISC + 4096))
        A.e("v_mov_b32 v49, 1")
        A.e("s_mov_b64 exec, 1")
        A.e("ds_add_u32 v48, v49")
        A.e("s_mov_b64 exec, -1")
        A.e("s_mov_b32 s13, 0")
        A.lab("L_S_sync")
        A.e("ds_read_b32 v49, v48")
        A.e("s_add_u32 s13, s13, 1")
        A.e("s_waitcnt lgkmcnt(0)")
        A.e("v_readfirstlane_b32 s6, v49")
        A.e("s_cmp_lt_u32 s13, 0x100000")
        A.e("s_cselect_b32 s6, s6, 4")
        A.e("s_cmp_lt_u32 s6, 4")
        A.e("s_cbranch_scc1 L_S_sync")
        A.lg = []
        er = lambda m: (24 + 2 * m if m < 4 else 32 + 2 * (m - 4))
        for m in range(6, -1, -1):
            A.lgi("er%d" % m, "ds_read_b64 %s, v4 offset:%d" % (v(er(m), 2), 256 * (m + 1)))
        cur = (v(er(6)), v(er(6) + 1))
        for m in range(5, -1, -1):
            d = (SR, SI) if m == 0 else tmp[m & 1]
            A.lgw("er%d" % m)
            emit(A, cfma_ops(d[0], d[1], L16R, L16I, cur[0], cur[1], v(er(m)), v(er(m) + 1)))
            cur = d
        A.e("s_cmp_lg_u32 s7, 3")
        A.e("s_cbranch_scc1 L_S_nopub")
        A.cond = True
        emit(A, cfma_ops("v24", "v26", L16R, L16I, SR, SI, ER, EI))
        A.e("v_mov_b32 v25, s14")
        A.e("v_mov_b32 v27, s14")
        A.e("s_sub_u32 s6, 15, s4")
        A.e("s_lshl_b32 s6, s6, 9")
        A.e("v_lshlrev_b32 v28, 4, v8")
        A.e("s_mov_b32 exec_lo, 0")
        A.e("buffer_store_dwordx4 v[24:27], v28, %s, s6 offen sc1" % s(rE, 4))
        A.e("s_mov_b64 exec, -1")
        A.cond = False
        A.lab("L_S_nopub")
        A.fs(56)
        emit(A, wdma_addr_ops("v4", "v7", "v48"))
        for r in range(16):
            t = "v%d" % (48 + (r & 3))
            S.fill += ["v_mul_f32 %s, %s, %s" % (t, CI, v(RE + r)), "v_mul_f32 %s, %s, %s" % (v(RE + r), CR, v(RE + r)),
                       "v_fma_f32 %s, -%s, %s, %s" % (v(RE + r), CI, v(IM + r), v(RE + r)), "v_fma_f32 %s, %s, %s, %s" % (v(IM + r), CR, v(IM + r), t)]
        if not PAR["coeff"]:
            S.flush()

    def e_issue(tag=None):
        for m in range(2):
            x = "buffer_load_dwordx4 %s, v60, %s, 0 offen offset:%d sc1" % (v(24 + 4 * m, 4), s(rE, 4), 1024 * m)
            if tag:
                A.vmi(tag, x)
            else:
                A.e(x)

    def e_check():
        A.fs(17)
        A.e("s_mov_b32 s13, 0")
        A.vmw("e")
        A.lab("L_S_poll")
        A.e("v_mov_b32 v48, 0")
        for q in range(4):
            A.e("v_cmp_eq_u32 s[%d:%d], s14, %s" % (18 + 2 * q, 19 + 2 * q, v(25 + 2 * q)))
        for q in range(4):
            A.e("v_addc_co_u32 v48, vcc, 0, v48, s[%d:%d]" % (18 + 2 * q, 19 + 2 * q))
        A.e("v_cmp_ne_u32 vcc, v62, v48")
        A.e("s_cbranch_vccz L_S_ready")
        A.cond = True
        A.e("s_sleep 2")
        e_issue()
        A.e("s_add_u32 s13, s13, 1")
        A.e("s_cmp_lt_u32 s13, 0x20000")
        A.e("s_waitcnt vmcnt(0)")
        A.e("s_cbranch_scc1 L_S_poll")
        A.cond = False
        A.lab("L_S_ready")
        emit(A, cfma_ops("v48", "v49", L256R, L256I, "v28", "v30", "v24", "v26"))
        A.e("v_mul_f32 v50, %s, v48" % QR)
        A.e("v_mul_f32 v51, %s, v49" % QR)
        A.e("v_fma_f32 v50, -%s, v49, v50" % QI)
        A.e("v_fmac_f32 v51, %s, v48" % QI)
        A.lgi("pw", "ds_write_b64 v61, v[50:51]")
        A.fs(18)

    def scan_ops():
        o = []
        pr = [24, 26, 28, 30, 48, 50, 52, 56]
        def prd():
            for q in range(8):
                A.lgi("pr", "ds_read_b64 %s, v63 offset:%d" % (v(pr[q], 2), 256 * q))
        bump = lambda: lane0_store(A, ["s_lshl_b32 s6, s7, 4", "s_add_u32 s6, s6, s4", "s_cmp_lg_u32 s6, 15"], "s14", rEP, "0", 0, "v60", "v61", "L_S_noep")
        o += [prd, bump, lambda: A.lgw("pr")]
        for (x, y) in ((0, 1), (2, 3), (4, 5), (6, 7), (0, 2), (4, 6), (4, 0)):
            o.append("v_add_f32 %s, %s, %s" % (v(pr[x]), v(pr[x]), v(pr[y])))
            o.append("v_add_f32 %s, %s, %s" % (v(pr[x] + 1), v(pr[x] + 1), v(pr[y] + 1)))
        o += cfma_ops("v50", "v51", PR, PI, "v48", "v49", SR, SI)
        o += ["v_mul_f32 v48, %s, v50" % CR, "v_mul_f32 v49, %s, v51" % CR, "v_fma_f32 v48, -%s, v51, v48" % CI, "v_fmac_f32 v49, %s, v50" % CI]
        cur = ("v48", "v49")
        for r in range(16):
            o.append("v_fmac_f32 %s, %s, %s" % (v(RE + r), LR, cur[0]))
            o.append("v_fmac_f32 %s, %s, %s" % (v(IM + r), LR, cur[1]))
            o.append("v_fmac_f32 %s, %s, %s" % (v(RE + r), NLI, cur[1]))
            o.append("v_fmac_f32 %s, %s, %s" % (v(IM + r), LI, cur[0]))
            cur = (v(RE + r), v(IM + r))
        for q in range(8):
            o.append("v_cvt_pk_bf16_f32 %s, %s, %s" % (v(RE + q), v(RE + 2 * q), v(RE + 2 * q + 1)))
        for q in range(8):
            o.append("v_cvt_pk_bf16_f32 %s, -%s, -%s" % (v(IM + q), v(IM + 2 * q), v(IM + 2 * q + 1)))
        o.append(("bar", PAR["cstep"] + 2))
        o += ["v_xor_b32 v48, 16, v54", "v_xor_b32 v49, 32, v55"]
        for b_, ad, off in ((RE, "v54", 0), (RE + 4, "v48", 0), (IM, "v54", 2048), (IM + 4, "v48", 2048)):
            o.append(lambda b_=b_, ad=ad, off=off: A.lgi("tw", "ds_write_b128 %s, %s offset:%d" % (ad, v(b_, 4), off)))
        dst = [RE + 8, RE + 12, IM + 8, IM + 12]
        def rd():
            A.lgw("tw")
            for ks in range(4):
                for nn in range(2):
                    A.lgi("tr%d" % ks, "ds_read_b64_tr_b16 %s, %s offset:%d" % (v(dst[ks] + 2 * nn, 2), "v49" if nn else "v55", ks * 1024 + nn * 256))
        o += [("gap",), rd, ("gap",)]
        def st(ks):
            A.lgw("tr%d" % ks)
            A.vmi("hst", "buffer_store_dwordx4 %s, v6, %s, s%d offen offset:%d%s" % (v(dst[ks], 4), s(rAS, 4), 101 if ks >= 2 else 100, 1024 * (ks & 1), stmod()))
            if ks == 3:
                A.fs(19)
        for ks in range(4):
            o.append(lambda ks=ks: st(ks))
            o += [("gap",)] * PAR["stgap"]
        return o

    def prefetch_c():
        A.e("s_lshr_b32 s13, s5, 3")
        A.e("s_lshl_b32 s13, s13, 18")
        A.e("s_lshr_b32 s6, s2, 3")
        A.e("s_lshl_b32 s6, s6, 13")
        A.e("s_add_u32 s13, s13, s6")
        A.e("s_lshl_b32 s6, s7, 11")
        A.e("s_add_u32 s13, s13, s6")
        A.e("v_lshlrev_b32 v18, 7, v1")
        A.e("s_mov_b64 exec, 0xffff")
        A.vmi("pf", "buffer_load_dword v19, v18, %s, s13 offen" % s(rCRE, 4))
        A.vmi("pf", "buffer_load_dword v19, v18, %s, s13 offen" % s(rCIM, 4))
        A.e("s_mov_b64 exec, -1")

    def prefetch_w2():
        A.e("s_lshr_b32 s6, s2, 3")
        A.e("s_mul_i32 s15, s6, 43")
        A.e("s_mul_i32 s6, s7, 11")
        A.e("s_add_u32 s15, s15, s6")
        A.e("s_lshl_b32 s15, s15, 1")
        A.e("s_lshr_b32 s6, s5, 3")
        A.e("s_add_u32 s15, s15, s6")
        A.e("s_lshl_b32 s15, s15, 9")
        A.e("v_lshrrev_b32 v18, 2, v1")
        A.e("v_lshlrev_b32 v18, 3, v18")
        A.e("v_and_or_b32 v18, v1, 3, v18")
        A.e("v_lshlrev_b32 v18, 7, v18")
        A.e("s_mov_b32 exec_hi, 0xfff")
        A.vmi("pf", "buffer_load_dword v19, v18, %s, s15 offen" % s(rW2, 4))
        A.e("s_mov_b64 exec, -1")

    if PAR["pf"]:
        dq.append((PAR["pfc"] + LAF, prefetch_c))
        if PAR["pfw"] <= 15:
            dq.append((PAR["pfw"] + LAF, prefetch_w2))

    def pre(b):
        kind, c = ORD[b]
        slot = slot_of(b)
        if b == LASTP + 1:
            ssm_publish()
        if b == PAR["cstep"] + 1:
            S.flush()
            A.lgw("pw")
        if b == PAR["cstep"] + 2:
            assert "pr" not in A.lg
        dma_upto(min(b - 1 + LA, 15) if b != PAR["lastbar"] else 15)
        if kind == "P":
            A.e("v_add_u32 v28, %d, v7" % slot)
            A.e("v_xor_b32 v29, 32, v28")
            A.e("v_xor_b32 v30, 64, v28")
            A.e("v_xor_b32 v31, 0x60, v28")
            for q in range(4):
                A.e("v_add_u32 %s, s8, %s" % (v(24 + q), v(28 + q)))
        else:
            A.e("v_add_u32 v14, %d, v12" % slot)
            A.e("v_add_u32 v15, %d, v13" % slot)
        A.fs2(20 + b)
        A.vmw("ch%d" % (b if b != PAR["lastbar"] else 15))
        A.fs2(36 + b)

    def hflag():
        assert "hst" in A.vm or True
        A.vmw("hst")
        A.e("v_mov_b32 v24, %d" % (LDS_CNT))
        A.e("v_mov_b32 v25, 1")
        A.e("s_mov_b64 exec, 1")
        A.lgi("hc", "ds_add_rtn_u32 v26, v24, v25")
        A.e("s_mov_b64 exec, -1")

    def hflag2():
        A.lgw("hc")
        A.e("v_readfirstlane_b32 s6, v26")
        lane0_store(A, ["s_cmp_lg_u32 s6, 3"], "s86", rFL, "s87", 0, "v24", "v25", "L_S_nofl")
        A.fs(57)

    def post(b):
        A.fs(b)
        if b == 12:
            A.e("v_mov_b32 v18, %d" % LDS_CNT)
            A.e("v_mov_b32 v19, 0")
            A.lgi("c0_z", "ds_write_b32 v18, v19")
        if b == PAR["estep"]:
            e_issue("e")
        if b == PAR["cstep"]:
            S.fill += [("gap",)] * PAR["cdelay"] + [e_check]
        if b == PAR["cstep"] + 1:
            S.fill += scan_ops()
            S.K = PAR["sfill2"]
        if b == PAR["hstep"]:
            S.fill += [hflag, ("gap",), hflag2]

    def read(it, sl, tag):
        n, ss, ti = it
        kind, c = ORD[n]
        if kind == "P":
            if ti == 0:
                A.lgi(tag, "ds_read_b128 %s, %s" % (a(16 * c + 4 * ss, 4), v(24 + ss)))
            A.lgi(tag, "ds_read_b128 %s, %s offset:%d" % (v(FB + 4 * sl, 4), v(28 + ss), 16384 + 4096 * ti))
        else:
            T = tiles[ti]
            for nn in range(2):
                A.lgi(tag, "ds_read_b64_tr_b16 %s, v%d offset:%d" % (v(FB + 4 * sl + 2 * nn, 2), 14 + (T & 1),
                                                                    ss * 6144 + (T >> 1) * 1024 + nn * 256))

    def mfma(it, sl):
        n, ss, ti = it
        kind, c = ORD[n]
        first = (c == 0 and ss == 0)
        if kind == "P":
            d = (RE, IM)[ti]
            A.e("v_mfma_f32_32x32x16_bf16 %s, %s, %s, %s" % (v(d, 16), a(16 * c + 4 * ss, 4), v(FB + 4 * sl, 4), "0" if first else v(d, 16)))
        else:
            d = ACC + 16 * ti
            A.e("v_mfma_f32_32x32x16_bf16 %s, %s, %s, %s" % (v(d, 16), v(FB + 4 * sl, 4), a(16 * c + 4 * ss, 4), "0" if first else v(d, 16)))

    def after(it, mp):
        n, ss, ti = it
        if n == 15 and ss == 3:
            S.fill.append(("dist", S.ninstr()))
            S.fill += swiglu_ops(A, ACC + 16 * ti, 1024 * ti, False, late if ti >= 2 - PAR["defS"] else None)
        if n > LASTP:
            dma_upto(S.nb - 1 + LAF, 1)

    S.pre, S.post, S.read, S.mfma, S.after = pre, post, read, mfma, after
    S.run()
    assert not dq
    A.fs(16)
    A.e("v_and_b32 v17, 15, v1")
    A.e("v_lshlrev_b32 v17, 2, v17")
    S.flush()
    A.vmi("poll", "buffer_load_dword v16, v17, %s, 0 offen sc1" % s(rFL, 4))
    A.fs(58)

    N = len(P2_SEQ)
    LA2 = PAR["ala"]
    assert LA2 <= NA - 2
    tile_of(A, "s11", "s10")
    A.e("s_and_b32 s13, s10, 3")
    A.e("s_lshl_b32 s13, s13, 1")
    if PAR["urot"] and PAR["map"]:
        A.e("s_add_u32 s13, s13, s4")
        A.e("s_and_b32 s13, s13, 7")
    elif PAR["urot"]:
        A.e("s_add_u32 s13, s13, s11")
        A.e("s_lshl_b32 s6, s4, 1")
        A.e("s_add_u32 s13, s13, s6")
        A.e("s_and_b32 s13, s13, 7")
    A.e("s_sub_u32 s14, s13, 6")
    A.e("s_cmp_ge_u32 s13, 6")
    A.e("s_cselect_b32 s14, s14, s13")
    A.e("s_lshl_b32 s9, s7, 11")
    A.e("v_and_b32 v11, 7, v1")
    A.e("v_lshrrev_b32 v22, 3, v1")
    A.e("v_lshrrev_b32 v10, 4, v1")
    A.e("v_xor_b32 v10, v10, v11")
    A.e("v_lshlrev_b32 v10, 4, v10")
    A.e("v_lshl_add_u32 v4, v22, 10, v10")
    A.e("s_lshl_b32 s6, s7, 14")
    A.e("s_lshl_b32 s12, s10, 16")
    A.e("s_add_u32 s12, s12, s6")
    A.e("v_add_u32 v4, s12, v4")
    A.e("v_xor_b32 v5, 64, v4")
    A.e("v_add_u32 v5, 8192, v5")

    def idx(n):
        kind, base, ln, m = P2_SEQ[n]
        if ln == 8:
            A.e("s_add_u32 s12, s13, %d" % m)
            A.e("s_and_b32 s12, s12, 7")
        else:
            A.e("s_add_u32 s12, s14, %d" % m)
            A.e("s_sub_u32 s6, s12, 6")
            A.e("s_cmp_ge_u32 s12, 6")
            A.e("s_cselect_b32 s12, s6, s12")

    def dma_w(n):
        kind, base, ln, m = P2_SEQ[n]
        if kind == "X":
            srd(A, rE, sX, 2048 * 1024)
            A.e("s_lshl_b32 s6, s4, 1")
            A.e("s_add_u32 s6, s6, s11")
            A.e("s_lshl_b32 s6, s6, 2")
            A.e("s_add_u32 s6, s6, s7")
            A.e("s_lshl_b32 s6, s6, 14")
            A.e("s_lshl_b32 s12, s10, 7")
            A.e("s_add_u32 s12, s12, s6")
            A.e("v_and_b32 v10, 7, v1")
            A.e("v_lshlrev_b32 v10, 4, v10")
            A.e("v_lshl_add_u32 v10, v22, 10, v10")
            A.e("s_add_u32 m0, s9, %d" % WU(n))
            A.e("s_add_u32 s6, s12, 8192")
            A.vmi("w%d" % n, "buffer_load_dwordx4 v10, %s, s12 offen lds" % s(rE, 4))
            A.e("s_add_u32 m0, s9, %d" % (WU(n) + 1024))
            A.e("s_nop 0")
            A.vmi("w%d" % n, "buffer_load_dwordx4 v10, %s, s6 offen lds" % s(rE, 4))
            return
        idx(n)
        if kind == "W":
            A.e("s_lshl_b32 s12, s12, 16")
            if base:
                A.e("s_add_u32 s12, s12, %d" % (base * 65536))
            r_, va, vb = rW2, "v3", "v7"
        else:
            A.e("s_lshl_b32 s12, s12, 7")
            r_, va, vb = (rCIM if base else rCRE), "v4", "v5"
        A.e("s_add_u32 m0, s9, %d" % WU(n))
        A.e("s_nop 0")
        A.vmi("w%d" % n, "buffer_load_dwordx4 %s, %s, s12 offen lds" % (va, s(r_, 4)))
        A.e("s_add_u32 m0, s9, %d" % (WU(n) + 1024))
        A.e("s_nop 0")
        A.vmi("w%d" % n, "buffer_load_dwordx4 %s, %s, s12 offen lds" % (vb, s(r_, 4)))

    def dma_a(n):
        kind, base, ln, m = P2_SEQ[n]
        if kind == "X":
            srd(A, rEP, sWS, 16384, "0x%x" % G_OFF)
            A.e("s_lshl_b32 s12, s4, 1")
            A.e("s_add_u32 s12, s12, s11")
            A.e("s_lshl_b32 s12, s12, 9")
            A.e("s_mov_b32 m0, %d" % AU(n))
            A.e("s_mov_b32 exec_hi, 0")
            A.vmi("a%d" % n, "buffer_load_dwordx4 v6, %s, s12 offen sc1 lds" % s(rEP, 4))
            srd(A, rEP, sDS, 1024)
            A.e("s_lshl_b32 s12, s10, 7")
            A.e("s_mov_b32 m0, %d" % (AU(n) + 1024))
            A.e("s_mov_b64 exec, 0xff")
            A.vmi("a%d" % n, "buffer_load_dwordx4 v6, %s, s12 offen lds" % s(rEP, 4))
            A.e("s_mov_b64 exec, -1")
            return
        idx(n)
        A.e("s_lshl_b32 s12, s12, 12")
        off = (64 + 4 * base) * 1024 if kind == "W" else 4 * base * 1024
        if off:
            A.e("s_add_u32 s12, s12, %d" % off)
        A.e("s_add_u32 m0, s8, %d" % AU(n))
        A.e("s_nop 0")
        A.vmi("a%d" % n, "buffer_load_dwordx4 v2, %s, s12 offen sc1 lds" % s(rA2, 4))
        A.vmi("a%d" % n, "buffer_load_dwordx4 v2, %s, s12 offen offset:1024 sc1 lds" % s(rA2, 4))

    def check(tag, off, L):
        A.e("s_mov_b32 s15, 0")
        A.vmw(tag)
        A.lab(L + "_poll")
        A.e("v_cmp_ne_u32 vcc, s86, v16")
        A.e("s_cbranch_vccz %s_go" % L)
        A.e("s_sleep %d" % PAR["slp"])
        A.e("buffer_load_dword v16, v17, %s, 0 offen offset:%d sc1" % (s(rFL, 4), off))
        A.e("s_add_u32 s15, s15, 1")
        A.e("s_cmp_lt_u32 s15, 0x20000")
        A.e("s_waitcnt vmcnt(0)")
        A.e("s_cbranch_scc1 %s_poll" % L)
        A.lab(L + "_go")

    NW0 = 5 + 3 * (min(PAR["lastbar"], 16 - PAR["nt"]) - 13)
    for n in range(2):
        dma_w(n)
    A.e("s_and_b32 s12, s7, 1")
    A.e("s_lshr_b32 s15, s7, 1")
    A.e("s_lshl_b32 s15, s15, 11")
    A.e("v_add_u32 v2, s15, v6")
    A.e("s_lshl_b32 s8, s12, 12")
    A.e("s_add_u32 s8, s8, s15")
    A.e("s_lshl_b32 s6, s4, 1")
    A.e("s_add_u32 s6, s6, s11")
    A.e("s_lshl_b32 s6, s6, 1")
    A.e("s_add_u32 s6, s6, s12")
    A.e("s_mul_i32 s6, s6, %d" % (NKS * 1024))
    srd(A, rA2, sWS, NKS * 1024, "s6")
    A.e("v_bfe_u32 v10, v1, 4, 1")
    A.e("v_lshlrev_b32 v10, 2, v10")
    A.e("v_xor_b32 v10, v10, v11")
    A.e("v_lshlrev_b32 v10, 4, v10")
    A.e("v_lshl_add_u32 v3, v22, 10, v10")
    A.e("s_lshl_b32 s6, s7, 14")
    A.e("s_lshl_b32 s12, s10, 7")
    A.e("s_add_u32 s12, s12, s6")
    A.e("v_add_u32 v3, s12, v3")
    A.e("v_add_u32 v7, 8192, v3")
    check("poll", 0, "L_p2a")
    A.fs(55)
    E0 = PAR["e0"]
    assert E0 <= min(NA, NW0)
    for n in range(E0):
        dma_a(n)
        if n >= 2:
            dma_w(n)
    wn, an = max(E0, 2), E0
    for n in range(N):
        A.vmw("w%d" % n)
        A.vmw("a%d" % n)
        if n == PAR["fl2"]:
            assert not late
            A.vmw("st")
        A.e("s_barrier")
        A.fs(20 + n) if n < 35 else None
        if n == PAR["fl2"]:
            lane0_store(A, ["s_cmp_lg_u32 s3, 0"], "s86", rFL, "s87", 256, "v10", "v11", "L_p2_nofl")
        if n == PAR["chk2"]:
            check("poll2", 256, "L_p2b")
            lane0_store(A, ["s_lshl_b32 s6, s5, 2", "s_add_u32 s6, s6, s7", "s_cmp_lg_u32 s6, 0"], "s86", rG, "0", 0, "v10", "v11", "L_p2_noep")
        if n == PAR["p2poll"]:
            A.vmi("poll2", "buffer_load_dword v16, v17, %s, 0 offen offset:256 sc1" % s(rFL, 4))
        budget = 3 if (n == PAR["chk2"] or n < 4) else 2
        while budget > 0:
            a_ok = an < N and an <= n + LA2 and (an < NSSM or n >= PAR["chk2"])
            w_ok = wn < N and wn - NW <= n - 2
            if w_ok and (wn < an or not a_ok):
                if not a_ok and wn > n + PAR["wla"] and not (an == NSSM and n < PAR["chk2"]):
                    break
                dma_w(wn); wn += 1
            elif a_ok:
                dma_a(an); an += 1
            else:
                break
            budget -= 1
        if late and n >= 1 and n % 2 == 1:
            late.pop(0)()
        if PAR["pf"] and PAR["pfw"] > 15 and n == PAR["pfw2"]:
            prefetch_w2()
        assert (an > n + 1 or an == N) and (wn > n + 1 or wn == N)
    assert an == N and wn == N
    A.fs_end()
    A.e("s_endpgm")


def gen_all(A):
    K = NAME + "_kernel"
    A.L.append(".globl %s\n.p2align 8\n.type %s,@function\n%s:" % (K, K, K))
    prologue(A)
    role_F(A)
    fm = A.L[A.fmain:]
    del A.L[A.fmain:]
    role_S(A)
    A.L += fm
    A.lab("L_end")
    A.e("s_endpgm")
    A.lab("L_code_end")


def kd(name, nv, acc, ns=102):
    return """.amdhsa_kernel %s
  .amdhsa_next_free_vgpr %d
  .amdhsa_next_free_sgpr %d
  .amdhsa_accum_offset %d
  .amdhsa_group_segment_fixed_size 0
  .amdhsa_kernarg_size 136
  .amdhsa_user_sgpr_count 2
  .amdhsa_user_sgpr_kernarg_segment_ptr 1
  .amdhsa_system_sgpr_workgroup_id_x 1
.end_amdhsa_kernel
""" % (name, nv, ns, acc)


def main(path):
    ref = open("cdna_kernels/%s.s.ref" % NAME).read().splitlines()
    head = [l for l in ref if l.startswith(";") and "@launch" not in l and "Override launch" not in l and "grid=ceil" not in l]
    head = head[:18]
    A = Asm()
    gen_all(A)
    out = head + [
        "; @launch grid=(256,1,1) block=(512,1,1) lds=%d" % K1_LDS,
        '.amdgcn_target "amdgcn-amd-amdhsa--gfx950"', ".text"] + A.L + [
        '.section .rodata,"a"', ".p2align 6", kd(NAME + "_kernel", 256, 128)]
    open(path, "w").write("\n".join(out))


if __name__ == "__main__":
    if "--stamp" in sys.argv:
        STAMP = True
        sys.argv.remove("--stamp")
    for x in list(sys.argv):
        if x.startswith("-O"):
            OPT.add(x[2:]); sys.argv.remove(x)
        elif x.startswith("-P"):
            kk, vv = x[2:].split("=")
            PAR[kk] = vv if kk.startswith("ord") else int(vv)
            sys.argv.remove(x)
    main(sys.argv[1] if len(sys.argv) > 1 else "cdna_kernels/%s.s" % NAME)
```

```python
import sys, struct

NAME = "gated_mix__ssm_conv_s5__glu_gated_swiglu__prompt"

def f2u(x):
    return struct.unpack("<I", struct.pack("<f", x))[0]

LOG2E = 1.4426950408889634
INV2PI = 0.15915494309189535

NKS = 150
A_BYTES = 64 * NKS * 1024
E_OFF = 0xA00000
G_OFF = 0xA20000
EP_OFF = 0xA30000


EPR_OFF = 0xA31000
FL_OFF = 0xA40000

STAMP = False
OPT = {"asc0", "asc1", "osc0", "osc1"}
ST_OFF = 0xB00000

class Asm:
    def __init__(self):
        self.L = []
        self.ni = 0
        self.cond = False
        self.thr = 99
        self.vm = []
        self.lg = []

    def e(self, s):
        if "nomfma" in OPT and s.startswith("v_mfma"):
            s = "s_nop 0"
        if "nolds" in OPT and s.startswith("ds_read"):
            s = "s_nop 0"
        if "nohst" in OPT and s.startswith("buffer_store_dwordx4") and ("s100" in s or "s101" in s):
            s = "s_nop 0"
        if "noHst" in OPT and s.startswith("buffer_store_dwordx4") and "s82" in s:
            s = "s_nop 0"
        if "noout" in OPT and s.startswith("buffer_store_dword ") and "v20," in s:
            s = "s_nop 0"
        if "notw" in OPT and s.startswith("ds_write_b128"):
            s = "s_nop 0"
        if "noscan" in OPT and s.startswith("v_fmac_f32"):
            return
        if "m16" in OPT and s.startswith("v_mfma_f32_32x32x16"):
            import re as _re
            m_ = _re.match(r"v_mfma_f32_32x32x16_bf16 v\[(\d+):\d+\], (\S+), (\S+), (\S+)", s)
            d_ = int(m_.group(1)); self.m16 = getattr(self, "m16", 0) + 1
            for q_ in range(2):
                dd = d_ + 4 * (2 * ((self.m16 >> 2) & 1) + q_)
                self.L.append("  v_mfma_f32_16x16x32_bf16 v[%d:%d], %s, %s, %s" % (dd, dd + 3, m_.group(2), m_.group(3), "0" if m_.group(4) == "0" else "v[%d:%d]" % (dd, dd + 3)))
                self.ni += 1
            return
        self.L.append("  " + s)
        if not self.cond:
            self.ni += 1

    def c(self, s):
        pass

    def lab(self, s):
        self.L.append(s + ":")

    def fs2(self, n):
        if "vw" in OPT:
            self.fs(n, True)

    def fs(self, n, vw=False):
        if "vw" in OPT and not vw and 20 <= n < 55:
            return
        if "so" in OPT and n != 61:
            return
        if STAMP and ("light" not in OPT or n in (0, 7, 9, 13, 15, 16, 19, 20, 36, 55, 58, 59, 61)):
            self.e("%s s[98:99]" % ("s_memrealtime" if "rt" in OPT else "s_memtime"))
            self.e("s_waitcnt lgkmcnt(0)")
            self.lg = []
            self.e("s_sub_u32 s98, s98, s96")
            self.e("v_writelane_b32 v0, s98, %d" % n)

    def dbg_end(self):
        if "hold2" in OPT:
            self.e("s_load_dwordx2 s[8:9], s[0:1], 120")
            self.e("s_waitcnt vmcnt(0) lgkmcnt(0)")
            self.e("s_mov_b32 s10, 256")
            self.e("s_mov_b32 s11, 0x20000")
            self.e("s_not_b32 s12, s94")
            self.e("v_mov_b32 v2, s12")
            self.e("v_mov_b32 v1, 0")
            self.e("s_mov_b64 exec, 1")
            self.e("s_cmp_lg_u32 s7, 0")
            self.e("s_cbranch_scc1 L_hold_a")
            self.e("buffer_atomic_umax v2, v1, s[8:11], 0 offen")
            self.lab("L_hold_a")
            self.e("s_sleep 4")
            self.e("s_memrealtime s[98:99]")
            self.e("s_waitcnt lgkmcnt(0)")
            self.e("s_sub_u32 s98, s98, s94")
            self.e("s_cmp_lt_u32 s98, 4000")
            self.e("s_cbranch_scc1 L_hold_a")
            self.e("buffer_load_dword v2, v1, s[8:11], 0 offen sc1")
            self.e("s_waitcnt vmcnt(0)")
            self.e("v_readfirstlane_b32 s94, v2")
            self.e("s_not_b32 s94, s94")
        if "hold" in OPT:
            self.lab("L_hold")
            self.e("s_sleep 4")
            self.e("s_memrealtime s[98:99]")
            self.e("s_waitcnt lgkmcnt(0)")
            self.e("s_sub_u32 s98, s98, s94")
            self.e("s_cmp_lt_u32 s98, %d" % PAR["hold"])
            self.e("s_cbranch_scc1 L_hold")
        if "dbg" in OPT:
            self.e("s_waitcnt vmcnt(0)")
            self.e("s_memrealtime s[98:99]")
            self.e("s_memtime s[92:93]")
            self.e("s_load_dwordx2 s[8:9], s[0:1], 120")
            self.e("s_waitcnt lgkmcnt(0)")
            self.e("s_mov_b32 s10, 256")
            self.e("s_mov_b32 s11, 0x20000")
            self.e("s_not_b32 s94, s94")
            self.e("s_sub_u32 s92, s92, s96")
            self.e("v_mov_b32 v2, s94")
            self.e("v_mov_b32 v3, s98")
            self.e("v_mov_b32 v4, s92")
            self.e("v_mov_b32 v1, 0")
            self.e("s_cmp_lg_u32 s7, 0")
            self.e("s_cbranch_scc1 L_dbg_done")
            self.e("s_mov_b64 exec, 1")
            self.e("buffer_atomic_umax v2, v1, s[8:11], 0 offen")
            self.e("buffer_atomic_umax v3, v1, s[8:11], 0 offen offset:4")
            self.e("buffer_atomic_umax v4, v1, s[8:11], 0 offen offset:8")
            self.lab("L_dbg_done")

    def stamp_begin(self):
        if STAMP or "dbg" in OPT or "hold" in OPT:
            self.e("s_memrealtime s[94:95]")
            self.e("%s s[96:97]" % ("s_memrealtime" if "rt" in OPT else "s_memtime"))

    def fs_end(self):
        if STAMP:
            self.e("s_waitcnt vmcnt(0)")
            self.fs(61)
            self.e("s_memrealtime s[98:99]")
            self.e("s_waitcnt lgkmcnt(0)")
            self.e("v_writelane_b32 v0, s94, 62")
            self.e("v_writelane_b32 v0, s98, 63")
            self.e("s_add_u32 s8, s%d, 0x%x" % (sWS, ST_OFF))
            self.e("s_addc_u32 s9, s%d, 0" % (sWS + 1))
            self.e("s_mov_b32 s10, 0x80000")
            self.e("s_mov_b32 s11, 0x20000")
            self.e("s_lshl_b32 s6, s2, 11")
            self.e("s_lshl_b32 s12, s3, 8")
            self.e("s_add_u32 s6, s6, s12")
            self.e("v_lshlrev_b32 v1, 2, v1")
            self.e("buffer_store_dword v0, v1, s[8:11], s6 offen")

    def throttle(self, k):
        if len(self.vm) > k:
            self.e("s_waitcnt vmcnt(%d)" % k)
            self.vm = self.vm[len(self.vm) - k:] if k else []

    def vmi(self, tag, s, cold=False):
        self.throttle(self.thr)
        if cold and "nt" in OPT:
            s = s.replace(" lds", " nt lds") if s.endswith(" lds") else s + " nt"
        self.e(s)
        self.vm.append(tag)
        assert len(self.vm) <= 63, "too many vmem ops in flight"

    def vmw(self, tag, extra=""):
        idx = [i for i, t in enumerate(self.vm) if t == tag]
        if not idx:
            return None
        n = len(self.vm) - 1 - idx[-1]
        self.vm = self.vm[idx[-1] + 1:]
        self.e("s_waitcnt vmcnt(%d)%s" % (n, extra))
        return n

    def lgi(self, tag, s):
        self.e(s)
        self.lg.append(tag)

    def lgw(self, tag):
        idx = [i for i, t in enumerate(self.lg) if t == tag]
        if not idx:
            return
        n = len(self.lg) - 1 - idx[-1]
        self.lg = self.lg[idx[-1] + 1:]
        self.e("s_waitcnt lgkmcnt(%d)" % min(n, 15))

    def lgw0(self):
        if self.lg:
            self.e("s_waitcnt lgkmcnt(0)")
        self.lg = []


def stmod(pre="a"):
    return "".join(" " + m for m in ("sc0", "sc1", "nt") if pre + m in OPT)

def v(a, n=1):
    return "v%d" % a if n == 1 else "v[%d:%d]" % (a, a + n - 1)

def a(a_, n=1):
    return "a%d" % a_ if n == 1 else "a[%d:%d]" % (a_, a_ + n - 1)

def s(a_, n=1):
    return "s%d" % a_ if n == 1 else "s[%d:%d]" % (a_, a_ + n - 1)


def srd(A, d, base, nbytes, addlo=None):
    if addlo is None:
        A.e("s_mov_b32 s%d, s%d" % (d, base))
        A.e("s_mov_b32 s%d, s%d" % (d + 1, base + 1))
    else:
        A.e("s_add_u32 s%d, s%d, %s" % (d, base, addlo))
        A.e("s_addc_u32 s%d, s%d, 0" % (d + 1, base + 1))
    A.e("s_mov_b32 s%d, 0x%x" % (d + 2, nbytes))
    A.e("s_mov_b32 s%d, 0x20000" % (d + 3))


SLOT = 24576
NSLOT = 6
MISC = SLOT * NSLOT
K1_LDS = 163840
OOB = 0x40000000
LDS_CNT = MISC + 4096 + 8

ORD = [("P", c) for c in range(8)] + [("F", c) for c in range(8)]
LASTP = 7
def slot_of(n):
    return ((n % NSLOT) if n >= 8 else (4, 5, 0, 1)[n & 3]) * SLOT
PAR = dict(la=2, laf=4, nt=2, estep=9, cstep=10, hstep=14, cdelay=0, stgap=1, fd=5, sd=3, ffill=6, sfill=10, sfill2=14,
           rot=1, pf=1, cpf=1, pfc=13, pfw=15, ala=4, wla=4, urot=1, p2poll=13, chk2=15, fl2=8, slp=8, prio=0, hold=4000, pk=1, gam=0, lastbar=14, hsp=0, xstep=6, map=1, defF=2, defS=2, e0=3, pfw2=2, coeff=1, g0=46, spf=0, spf0=9, spfn=6, spfgap=2, mpf=-1, wpf=-1, tlb=0, thr=99, thr2=99, thrp=99, stag=0, sper=4, dyn=0, split=1, fgap=4)

sX, sLRE, sLIM, sBRE, sBIM, sCRE, sCIM, sLDT = 16, 18, 20, 22, 24, 26, 28, 30
sW1, sW3, sW2, sGW, sDS, sWS, sOUT = 32, 34, 36, 38, 40, 42, 84
rX, rBRE, rBIM, rW1, rW3, rAS, rE, rEP, rG, rFL = 44, 48, 52, 56, 60, 64, 68, 72, 76, 88


def swiglu_ops(A, acc, off, pk, defer=None):
    o = []
    if pk:
        for r in range(0, 8, 2):
            o.append("v_pk_mul_f32 %s, %s, %s" % (v(acc + 8 + r, 2), v(acc + r, 2), v(acc + 8 + r, 2)))
        for r in range(0, 8, 2):
            o.append("v_pk_mul_f32 %s, %s, s[80:81] op_sel_hi:[1,0]" % (v(acc + r, 2), v(acc + r, 2)))
        for r in range(8):
            o.append("v_exp_f32 %s, %s" % (v(acc + r), v(acc + r)))
        for r in range(0, 8, 2):
            o.append("v_pk_add_f32 %s, %s, 1.0 op_sel_hi:[1,0]" % (v(acc + r, 2), v(acc + r, 2)))
        for r in range(8):
            o.append("v_rcp_f32 %s, %s" % (v(acc + r), v(acc + r)))
        for r in range(0, 8, 2):
            o.append("v_pk_mul_f32 %s, %s, %s" % (v(acc + 8 + r, 2), v(acc + 8 + r, 2), v(acc + r, 2)))
        for q in range(4):
            o.append("v_cvt_pk_bf16_f32 %s, %s, %s" % (v(acc + q), v(acc + 8 + 2 * q), v(acc + 9 + 2 * q)))
        (o if defer is None else defer).append(lambda: A.vmi("st", "buffer_store_dwordx4 %s, v6, %s, s82 offen offset:%d%s" % (v(acc, 4), s(rAS, 4), off, stmod())))
        return o
    for r in range(8):
        o.append("v_mul_f32 %s, %s, %s" % (v(acc + 8 + r), v(acc + r), v(acc + 8 + r)))
    for r in range(8):
        o.append("v_mul_f32 %s, s80, %s" % (v(acc + r), v(acc + r)))
    for r in range(8):
        o.append("v_exp_f32 %s, %s" % (v(acc + r), v(acc + r)))
    for r in range(8):
        o.append("v_add_f32 %s, 1.0, %s" % (v(acc + r), v(acc + r)))
    for r in range(8):
        o.append("v_rcp_f32 %s, %s" % (v(acc + r), v(acc + r)))
    for r in range(8):
        o.append("v_mul_f32 %s, %s, %s" % (v(acc + 8 + r), v(acc + 8 + r), v(acc + r)))
    for q in range(4):
        o.append("v_cvt_pk_bf16_f32 %s, %s, %s" % (v(acc + q), v(acc + 8 + 2 * q), v(acc + 9 + 2 * q)))
    (o if defer is None else defer).append(lambda: A.vmi("st", "buffer_store_dwordx4 %s, v6, %s, s82 offen offset:%d%s" % (v(acc, 4), s(rAS, 4), off, stmod())))
    return o


class Stream:
    def __init__(self, A, items, NB, D, K):
        self.A, self.items, self.NB, self.D, self.K = A, items, NB, D, K
        self.nb = 0
        self.rp = 0
        self.fill = []
        self.fence = -1
        self.dyn = False
        self.hold = 0

    def ninstr(self):
        return self.A.ni

    def pop(self, k):
        while k > 0 and self.fill:
            f = self.fill[0]
            if isinstance(f, tuple):
                if f[0] == "gap":
                    self.fill.pop(0)
                    return
                if f[0] == "bar" and self.nb <= f[1]:
                    return
                if f[0] == "dist" and self.ninstr() - f[1] < 12:
                    return
                self.fill.pop(0)
                continue
            self.fill.pop(0)
            if isinstance(f, str):
                self.A.e(f)
            else:
                f()
            k -= 1

    def flush(self):
        while self.fill:
            f = self.fill[0]
            if isinstance(f, tuple):
                if f[0] in ("bar", "gap"):
                    assert f[0] == "gap" or self.nb > f[1]
                    self.fill.pop(0)
                    continue
                d = 12 - (self.ninstr() - f[1])
                if d > 0:
                    self.A.e("s_nop %d" % (d - 1))
                self.fill.pop(0)
                continue
            self.pop(1)

    def barrier(self, n):
        while self.nb <= n:
            b = self.nb
            self.pre(b)
            lim = b - 1 if b == PAR["lastbar"] else b - 2
            old = [t for t in self.A.lg if t[0] == "c" and int(t[1:].split("_")[0]) <= lim]
            if b <= PAR["lastbar"]:
                if old:
                    self.A.lgw(old[-1])
                self.A.e("s_barrier")
            self.nb += 1
            self.post(b)

    def reads(self, upto, force):
        while self.rp < min(upto, len(self.items)):
            it = self.items[self.rp]
            if not force and (it[0] > self.nb or (it[0] == self.fence and self.nb <= it[0])):
                return
            self.barrier(it[0])
            self.read(it, self.rp % self.NB, "c%d_%d" % (it[0], self.rp))
            self.rp += 1

    def run(self):
        for mp, it in enumerate(self.items):
            if self.rp <= mp:
                self.reads(mp + 1, True)
                self.reads(mp + 1 + self.D, False)
            self.A.lgw("c%d_%d" % (it[0], mp))
            self.mfma(it, mp % self.NB)
            self.after(it, mp)
            self.reads(min(mp + 1 + self.D, self.rp + 2), False)
            if self.dyn and self.fill:
                n0 = len(self.A.L)
                self.A.e("s_setprio 0")
                self.pop(self.K)
                if len(self.A.L) == n0 + 1:
                    self.A.L.pop(); self.A.ni -= 1
                else:
                    self.A.e("s_setprio 2")
            else:
                self.pop(self.K)
        self.barrier(15)


def mk_items(ORD, ntile, withP):
    NT = PAR["nt"]
    items = []
    for n in range(16 - NT):
        if ORD[n][0] == "P" and not withP:
            continue
        for ss in range(4):
            for ti in range(ntile):
                items.append((n, ss, ti))
    for t0 in range(0, ntile, 2):
        for n in range(16 - NT, 16):
            assert ORD[n][0] == "F"
            for ss in range(4):
                for ti in (t0, t0 + 1):
                    items.append((n, ss, ti))
    return items


def emit(A, ops):
    for x in ops:
        if isinstance(x, str):
            A.e(x)
        else:
            x()


def prologue(A):
    A.e("s_cmp_ge_u32 s2, 256")
    A.e("s_cbranch_scc1 L_end")
    A.stamp_begin()
    A.e("s_load_dwordx16 s[16:31], s[0:1], 0")
    A.e("s_load_dwordx8 s[32:39], s[0:1], 80")
    A.e("s_load_dwordx2 s[42:43], s[0:1], 128")
    A.e("s_load_dwordx2 s[40:41], s[0:1], 64")
    A.e("s_load_dwordx2 s[84:85], s[0:1], 112")
    A.e("v_lshrrev_b32 v2, 6, v0")
    A.e("v_and_b32 v1, 63, v0")
    A.e("v_readfirstlane_b32 s3, v2")
    if PAR["map"] == 0:
        A.e("s_bfe_u32 s4, s2, 0x20001")
        A.e("s_lshl_b32 s4, s4, 2")
        A.e("s_bfe_u32 s6, s2, 0x20003")
        A.e("s_add_u32 s4, s4, s6")
        A.e("s_and_b32 s5, s2, 1")
        A.e("s_lshl_b32 s5, s5, 3")
        A.e("s_lshr_b32 s6, s2, 5")
        A.e("s_add_u32 s5, s5, s6")
    else:
        A.e("s_bfe_u32 s4, s2, 0x10002")
        A.e("s_lshl_b32 s4, s4, 3")
        A.e("s_bfe_u32 s6, s2, 0x30003")
        A.e("s_add_u32 s4, s4, s6")
        A.e("s_and_b32 s5, s2, 3")
        A.e("s_lshl_b32 s5, s5, 2")
        A.e("s_lshr_b32 s6, s2, 6")
        A.e("s_add_u32 s5, s5, s6")
    A.e("s_and_b32 s7, s3, 3")
    A.e("v_and_b32 v8, 31, v1")
    A.e("v_lshrrev_b32 v9, 5, v1")
    A.e("s_lshl_b32 s8, s7, 12")
    if PAR["rot"]:
        A.e("s_add_u32 s15, s4, s5")
        A.e("s_and_b32 s15, s15, 1")
        if PAR["map"]:
            A.e("s_add_u32 s83, s4, s5")
        elif PAR["gam"]:
            A.e("s_sub_u32 s83, s4, s15")
            A.e("s_lshl_b32 s83, s83, 1")
        else:
            A.e("s_lshl_b32 s83, s4, 1")
        A.e("s_add_u32 s83, s83, s5")
    else:
        A.e("s_mov_b32 s83, 0")
    A.e("s_cmp_lt_u32 s3, 4")
    A.e("s_cbranch_scc1 L_S")


def tile_of(A, half, ct):
    if PAR["map"] == 0:
        A.e("s_and_b32 %s, s5, 1" % half)
        A.e("s_lshr_b32 %s, s5, 1" % ct)
    else:
        A.e("s_lshr_b32 %s, s5, 3" % ct)
        A.e("s_lshl_b32 %s, %s, 2" % (ct, ct))
        A.e("s_and_b32 %s, s5, 3" % half)
        A.e("s_add_u32 %s, %s, %s" % (ct, ct, half))
        A.e("s_bfe_u32 %s, s5, 0x10002" % half)


def common_late(A):
    A.e("s_mov_b32 s80, 0x%x" % f2u(-LOG2E))
    A.e("v_bfe_u32 v10, v1, 1, 3")
    A.e("v_xor_b32 v10, v10, v9")
    A.e("v_lshlrev_b32 v10, 4, v10")
    A.e("v_lshl_add_u32 v7, v8, 7, v10")
    A.e("v_bfe_u32 v10, v1, 4, 1")
    A.e("v_mul_u32_u24 v12, 3104, v10")
    A.e("v_lshlrev_b32 v11, 9, v9")
    A.e("v_add_u32 v12, v12, v11")
    A.e("v_bfe_u32 v11, v1, 2, 2")
    A.e("v_lshl_add_u32 v12, v11, 6, v12")
    A.e("v_and_b32 v11, 3, v1")
    A.e("v_lshl_add_u32 v12, v11, 3, v12")
    A.e("v_xor_b32 v13, 32, v12")
    A.e("v_lshlrev_b32 v6, 4, v1")
    A.e("s_lshl_b32 s6, s4, 2")
    A.e("s_add_u32 s6, s6, s7")
    A.e("s_mul_i32 s81, s6, %d" % (NKS * 1024))
    A.e("s_mul_i32 s6, s5, 6144")
    A.e("s_add_u32 s82, s81, s6")
    srd(A, rAS, sWS, A_BYTES)


def w_scalars(A):
    A.e("s_mul_i32 s10, s7, 6144")
    A.e("s_cmp_ge_u32 s5, 15")
    A.e("s_cselect_b32 s92, 0x%x, 0" % OOB)
    A.e("s_cmp_ge_u32 s5, 14")
    A.e("s_cselect_b32 s93, 0x%x, 0" % OOB)


def wdma_addr_ops(d1, d3, tmp):
    return ["v_lshrrev_b32 %s, 2, v1" % tmp, "s_lshl_b32 s6, s7, 4", "v_add_u32 %s, s6, %s" % (tmp, tmp),
            "v_mul_u32_u24 %s, 2752, %s" % (d1, tmp), "s_mul_i32 s6, s5, 192", "v_add_u32 %s, s6, %s" % (d1, d1),
            "v_and_b32 %s, 3, v1" % tmp, "v_lshl_add_u32 %s, %s, 4, %s" % (d1, tmp, d1), "v_xor_b32 %s, 32, %s" % (d3, d1)]


def dma_ops(A, n, w1, w3, mats=(0, 1)):
    kind, c = ORD[n]
    slot = slot_of(n)
    tag = "ch%d" % n
    ops = []
    def mk(pre, m0, ins):
        def f():
            for x in pre:
                A.e(x)
            A.e(m0)
            A.e("s_nop 0")
            A.vmi(tag, ins)
        return f
    if kind == "P":
        pre = ["s_add_u32 s11, s83, %d" % c, "s_and_b32 s11, s11, 7", "s_lshl_b32 s11, s11, 7", "s_add_u32 s12, s11, 8192"]
        for q in range(4):
            ops.append(mk(pre if q == 0 else [], "s_add_u32 m0, s8, %d" % (slot + 1024 * q),
                          "buffer_load_dwordx4 %s, %s, s%d offen lds" % ("v3" if q & 1 else "v2", s(rX, 4), 12 if q >= 2 else 11)))
        ops.append(mk([], "s_add_u32 m0, s9, %d" % (slot + 16384), "buffer_load_dwordx4 v4, %s, s11 offen lds" % s(rBRE, 4)))
        ops.append(mk([], "s_add_u32 m0, s9, %d" % (slot + 20480), "buffer_load_dwordx4 v4, %s, s11 offen lds" % s(rBIM, 4)))
    else:
        pre = ["s_add_u32 s11, s83, %d" % c, "s_and_b32 s11, s11, 7", "s_mul_i32 s11, s11, 176128",
               "s_add_u32 s12, s11, s93", "s_add_u32 s11, s11, s92"]
        for m in mats:
            for q in range(3):
                ops.append(mk(pre if m == mats[0] and q == 0 else [], "s_add_u32 m0, s10, %d" % (slot + m * 3072 + 1024 * q - 64 * q),
                              "buffer_load_dwordx4 %s, %s, s%d offen offset:%d lds" % (w3 if m else w1, s(rW3 if m else rW1, 4), 12 if q else 11, 64 * q)))
    return ops


P2_GROUPS = [("C", 0, 8), ("C", 8, 8), ("W", 0, 8), ("W", 8, 8), ("W", 16, 6)]
P2_SEQ = [(k, b, n, m) for (k, b, n) in P2_GROUPS for m in range(n)]
P2_SEQ.insert(12, ("X", 0, 1, 0))
NSSM = 17
NA, NW = 6, 14
WUNITS = [0, 1, 2, 18, 19] + list(range(3, 12))
def AU(n): return (12 + n % NA) * 8192
def WU(n): return WUNITS[n % NW] * 8192


def role_F(A):
    A.vm, A.lg = [], []
    A.thr = PAR["thrp"]
    ACC, FB = 64, 32
    LA = PAR["la"]
    if PAR["prio"] or PAR["dyn"]:
        A.e("s_setprio 1")
    A.e("v_lshrrev_b32 v10, 4, v1")
    A.e("v_and_b32 v11, 7, v1")
    A.e("v_xor_b32 v10, v10, v11")
    A.e("v_lshlrev_b32 v10, 4, v10")
    A.e("v_bfe_u32 v11, v1, 3, 2")
    A.e("v_lshl_add_u32 v2, v11, 10, v10")
    A.e("v_lshl_add_u32 v2, v9, 14, v2")
    A.e("s_lshl_b32 s6, s7, 15")
    A.e("v_add_u32 v2, s6, v2")
    A.e("v_xor_b32 v3, 64, v2")
    A.e("v_add_u32 v3, 4096, v3")
    A.e("s_lshl_b32 s9, s7, 10")
    A.e("s_and_b32 s6, s7, 1")
    A.e("s_lshl_b32 s6, s6, 6")
    A.e("v_xor_b32 v4, s6, v10")
    A.e("v_lshrrev_b32 v11, 3, v1")
    A.e("v_lshl_add_u32 v4, v11, 10, v4")
    A.e("s_lshl_b32 s6, s7, 13")
    A.e("v_add_u32 v4, s6, v4")
    emit(A, wdma_addr_ops("v5", "v16", "v10"))
    w_scalars(A)
    A.e("s_lshl_b32 s6, s4, 17")
    A.e("s_lshl_b32 s13, s5, 15")
    A.e("s_waitcnt lgkmcnt(0)")
    A.fs(52)
    srd(A, rW1, sW1, 512 * 2752)
    srd(A, rW3, sW3, 512 * 2752)
    if PAR["gam"]:
        assert LA == 2
        A.e("s_cmp_lg_u32 s15, 0")
        A.e("s_cbranch_scc1 L_F_now")
        emit(A, dma_ops(A, 8, "v5", "v16") + dma_ops(A, 9, "v5", "v16"))
        A.vm = []
        A.lab("L_F_now")
    srd(A, rX, sX, 131072, "s6")
    srd(A, rBRE, sBRE, 32768, "s13")
    srd(A, rBIM, sBIM, 32768, "s13")
    emit(A, dma_ops(A, 0, "v5", "v16"))
    A.fs(53)
    A.e("s_lshl_b32 s6, s5, 3")
    A.e("s_lshl_b32 s13, s7, 1")
    A.e("s_add_u32 s13, s13, s6")
    A.e("s_lshl_b32 s6, s13, 10")
    A.e("v_lshlrev_b32 v17, 4, v8")
    A.e("v_lshl_add_u32 v18, v9, 10, v17")
    A.e("v_add_u32 v18, s6, v18")
    A.vmi("g", "buffer_load_dwordx4 v[64:67], v18, %s, 0 offen" % s(rX, 4))
    A.vmi("g", "buffer_load_dwordx4 v[68:71], v18, %s, 0 offen offset:512" % s(rX, 4))
    A.vmi("g", "global_load_dwordx4 v[72:75], v17, %s" % s(sGW, 2))
    A.vmi("g", "global_load_dwordx4 v[76:79], v17, %s offset:512" % s(sGW, 2))
    emit(A, dma_ops(A, 1, "v5", "v16"))
    A.fs(54)
    common_late(A)
    srd(A, rG, sWS, 16384, "0x%x" % G_OFF)
    A.e("v_add_u32 v7, s8, v7")
    A.e("s_add_u32 s82, s82, %d" % (65536 + 2048))
    A.e("s_add_u32 s82, s82, s93")
    A.e("s_branch L_Fmain")
    A.fmain = len(A.L)
    A.lab("L_Fmain")

    def g_ops():
        o = [lambda: A.vmw("g"), "v_mov_b32 v84, 0"]
        for d in range(8):
            xx, ww = 64 + d, 72 + d
            o += ["v_lshlrev_b32 v80, 16, %s" % v(xx), "v_and_b32 v81, 0xffff0000, %s" % v(xx),
                  "v_lshlrev_b32 v82, 16, %s" % v(ww), "v_and_b32 v83, 0xffff0000, %s" % v(ww),
                  "v_mul_f32 v80, v80, v82", "v_mul_f32 v81, v81, v83", "v_cvt_pk_bf16_f32 v80, v80, v81",
                  "v_lshlrev_b32 v81, 16, v80", "v_and_b32 v80, 0xffff0000, v80",
                  "v_add_f32 v84, v84, v81", "v_add_f32 v84, v84, v80"]
        for sh in (1, 2, 4, 8):
            o += ["s_nop 1", "v_add_f32_dpp v84, v84, v84 row_shr:%d row_mask:0xf bank_mask:0xf bound_ctrl:0" % sh]
        o += ["s_nop 1", "v_add_f32_dpp v84, v84, v84 row_bcast:15 row_mask:0xa bank_mask:0xf",
              "v_cvt_pk_bf16_f32 v84, v84, v84", "v_and_b32 v84, 0xffff0000, v84", "v_mul_f32 v84, s80, v84",
              "v_exp_f32 v84, v84", "s_nop 0", "v_add_f32 v84, 1.0, v84", "v_rcp_f32 v84, v84", "s_nop 0",
              "v_cvt_pk_bf16_f32 v84, v84, v84", "v_and_b32 v84, 0xffff0000, v84",
              "v_sub_f32 v85, 1.0, v84", "v_cvt_pk_bf16_f32 v85, v85, v85", "v_and_b32 v85, 0xffff0000, v85"]
        return o

    def g_store():
        A.e("s_lshl_b32 s6, s4, 7")
        A.e("s_add_u32 s6, s6, s13")
        A.e("s_lshl_b32 s6, s6, 3")
        A.e("v_lshlrev_b32 v86, 3, v9")
        A.e("s_mov_b32 exec_lo, 0x80000000")
        A.e("s_mov_b32 exec_hi, 0x80000000")
        A.vmi("gst", "buffer_store_dwordx2 v[84:85], v86, %s, s6 offen%s" % (s(rG, 4), stmod()))
        A.e("s_mov_b64 exec, -1")

    gq = g_ops()
    rO = 68
    A.e("s_and_b32 s72, s7, 1")
    A.e("s_lshr_b32 s73, s7, 1")
    tile_of(A, "s6", "s74")
    A.e("s_lshl_b32 s75, s4, 1")
    A.e("s_add_u32 s75, s75, s6")
    A.e("s_lshl_b32 s75, s75, 1")
    A.e("s_add_u32 s75, s75, s72")
    A.e("s_lshl_b32 s75, s75, 16")
    A.e("s_lshl_b32 s74, s74, 1")
    A.e("s_add_u32 s74, s74, s73")
    A.e("s_lshl_b32 s74, s74, 7")
    A.e("s_add_u32 s75, s75, s74")
    A.e("v_lshlrev_b32 v20, 15, v9")
    A.e("v_lshl_add_u32 v20, v8, 2, v20")
    A.e("v_add_u32 v20, s75, v20")
    srd(A, rO, sOUT, 2048 * 2048)
    A.e("s_lshl_b32 s6, s72, 12")
    A.e("s_add_u32 s6, s6, %d" % AU(0))
    A.e("v_add_u32 v17, s6, v6")
    A.e("v_subrev_u32 v18, s8, v7")
    A.e("s_lshl_b32 s6, s73, 12")
    A.e("v_add_u32 v18, s6, v18")
    A.e("v_bfe_u32 v10, v1, 2, 2")
    A.e("v_lshlrev_b32 v19, 7, v10")
    A.e("v_lshl_add_u32 v19, v9, 9, v19")
    A.e("v_bfe_u32 v10, v1, 4, 1")
    A.e("v_lshl_add_u32 v19, v10, 5, v19")
    A.e("v_and_b32 v10, 3, v1")
    A.e("v_lshl_add_u32 v19, v10, 3, v19")
    A.e("v_bfe_u32 v10, v1, 3, 1")
    A.e("v_xor_b32 v10, s73, v10")
    A.e("v_lshl_add_u32 v19, v10, 6, v19")
    XN = [q for q, x in enumerate(P2_SEQ) if x[0] == "X"][0]
    A.e("s_lshl_b32 s6, s73, 6")
    A.e("v_lshl_add_u32 v23, v8, 1, s6")
    A.e("s_lshl_b32 s6, s72, 1")
    A.e("v_add_u32 v10, s6, v9")
    A.e("v_lshl_add_u32 v21, v10, 11, v23")
    A.e("v_add_u32 v21, %d, v21" % WU(XN))
    A.e("v_lshlrev_b32 v22, 7, v10")
    A.e("v_add_u32 v22, %d, v22" % AU(XN))
    A.e("v_add_u32 v23, %d, v23" % (AU(XN) + 1024))
    A.e("v_bfe_u32 v10, v1, 4, 1")
    A.e("v_mul_u32_u24 v11, 1152, v10")
    A.e("v_lshl_add_u32 v11, v9, 8, v11")
    A.e("v_bfe_u32 v10, v1, 2, 2")
    A.e("v_lshl_add_u32 v11, v10, 5, v11")
    A.e("v_and_b32 v10, 1, v1")
    A.e("v_lshl_add_u32 v11, v10, 4, v11")
    A.e("v_bfe_u32 v10, v1, 1, 1")
    A.e("v_lshl_add_u32 v11, v10, 3, v11")
    A.e("s_lshl_b32 s6, s72, 12")
    A.e("s_add_u32 s6, s6, %d" % AU(0))
    A.e("v_add_u32 v11, s6, v11")
    A.e("v_xor_b32 v10, 0x80, v11")

    tiles = [2, 3, 4, 5]
    S = Stream(A, mk_items(ORD, 4, False), 8, PAR["fd"], PAR["ffill"])
    late = []
    dq = []
    if PAR["split"]:
        for n in range(LASTP + LA + 1, 16):
            dq += [(n, f) for f in dma_ops(A, n, "v5", "v16", (1,))]

    def dma_upto(m, maxops=999):
        while dq and dq[0][0] <= m and maxops > 0:
            dq.pop(0)[1]()
            maxops -= 1

    def waddr(n):
        return ((14, 15), (28, 29), (30, 31))[n % 3]

    def pre(b):
        kind, c = ORD[b]
        slot = slot_of(b)
        if b == LASTP + 1:
            emit(A, gq)
            g_store()
        dma_upto(min(b - 1 + LA, 15) if b != PAR["lastbar"] else 15)
        if b == 10:
            A.vmw("gst")
        if b == PAR["lastbar"]:
            A.vmw("ch15")
        if kind == "P":
            A.e("v_add_u32 v24, %d, v7" % slot)
            A.e("v_xor_b32 v25, 32, v24")
            A.e("v_xor_b32 v26, 64, v24")
            A.e("v_xor_b32 v27, 0x60, v24")
        else:
            A.e("v_add_u32 v%d, %d, v12" % (waddr(b)[0], slot))
            A.e("v_add_u32 v%d, %d, v13" % (waddr(b)[1], slot))
        A.fs2(20 + b)
        A.vmw("ch%d" % b)
        if PAR["gam"] and b == 7:
            A.e("s_cmp_lg_u32 s15, 0")
            A.e("s_cbranch_scc1 L_F_w7")
            A.e("s_waitcnt vmcnt(0)")
            A.lab("L_F_w7")
        A.fs2(36 + b)

    def post(b):
        kind, c = ORD[b]
        A.fs(b)
        if kind == "P":
            for ss in range(4):
                A.lgi("c%d_x" % b, "ds_read_b128 %s, %s" % (a(16 * c + 4 * ss, 4), v(24 + ss)))
            for n in range(2, 16):
                if (n == b + LA) or (b == 0 and n < LA):
                    if PAR["gam"] and n >= 8:
                        A.e("s_cmp_eq_u32 s15, 0")
                        A.e("s_cbranch_scc1 L_F_skip%d" % n)
                    emit(A, dma_ops(A, n, "v5", "v16"))
                    if PAR["gam"] and n >= 8:
                        A.lab("L_F_skip%d" % n)
            if b == 0:
                emit(A, gq[:PAR["g0"]])
                del gq[:PAR["g0"]]

    def read(it, sl, tag):
        n, ss, ti = it
        T = tiles[ti]
        for nn in range(2):
            A.lgi(tag, "ds_read_b64_tr_b16 %s, v%d offset:%d" % (v(FB + 4 * sl + 2 * nn, 2), waddr(n)[T & 1],
                                                                ss * 6144 + (T >> 1) * 1024 + nn * 256))

    def mfma(it, sl):
        n, ss, ti = it
        c = ORD[n][1]
        first = (c == 0 and ss == 0)
        A.e("v_mfma_f32_32x32x16_bf16 %s, %s, %s, %s" % (v(ACC + 16 * ti, 16), v(FB + 4 * sl, 4), a(16 * c + 4 * ss, 4),
                                                        "0" if first else v(ACC + 16 * ti, 16)))

    def after(it, mp):
        n, ss, ti = it
        if n == 15 and ss == 3:
            S.fill.append(("dist", S.ninstr()))
            S.fill += swiglu_ops(A, ACC + 16 * ti, 1024 * ti, PAR["pk"] and ti >= 2, late if ti >= 4 - PAR["defF"] else None)
        if mp % PAR["fgap"] == 0:
            dma_upto(S.nb - 1 + PAR["laf"], 1)

    S.pre, S.post, S.read, S.mfma, S.after = pre, post, read, mfma, after
    S.run()
    A.fs(16)
    S.flush()
    A.fs(19)

    N = len(P2_SEQ)
    ACCB, ACCA, GV, XV = 32, 48, 64, 96
    A.lg = []

    def addr(n):
        if P2_SEQ[n][0] == "W":
            A.e("v_add_u32 v24, %d, v19" % WU(n))
        elif P2_SEQ[n][0] == "C":
            A.e("v_add_u32 v24, %d, v18" % WU(n))
            A.e("v_xor_b32 v25, 32, v24")
            A.e("v_xor_b32 v26, 64, v24")
            A.e("v_xor_b32 v27, 0x60, v24")

    def reads2(n, ss):
        fb = 32 * (n & 1)
        tg = "r%d_%d" % (n, ss)
        if P2_SEQ[n][0] == "X":
            for q in (2 * ss, 2 * ss + 1):
                A.lgi(tg, "ds_read_b128 %s, v22 offset:%d" % (v(GV + 4 * q, 4), 16 * q))
            for r in range(4 * ss, 4 * ss + 4):
                A.lgi(tg, "ds_read_u16 %s, v21 offset:%d" % (v(XV + r), 128 * r))
            if ss == 3:
                A.lgi(tg, "ds_read_u16 v16, v23")
            return
        if P2_SEQ[n][0] == "W":
            A.lgi(tg, "ds_read_b128 %s, v17 offset:%d" % (a(fb + 4 * ss, 4), AU(n) - AU(0) + 1024 * ss))
        else:
            for nn in range(2):
                A.lgi(tg, "ds_read_b64_tr_b16 %s, %s offset:%d" % (a(fb + 4 * ss + 2 * nn, 2), "v10" if nn else "v11",
                                                                  AU(n) - AU(0) + 2048 * (ss >> 1) + 512 * (ss & 1)))
        if P2_SEQ[n][0] == "W":
            for nn in range(2):
                A.lgi(tg, "ds_read_b64_tr_b16 %s, v24 offset:%d" % (a(fb + 16 + 4 * ss + 2 * nn, 2), 2048 * ss + 1024 * nn))
        else:
            A.lgi(tg, "ds_read_b128 %s, %s" % (a(fb + 16 + 4 * ss, 4), v(24 + ss)))

    def mfma2(n, ss):
        kind, base, ln, m = P2_SEQ[n]
        fb = 32 * (n & 1)
        A.lgw("r%d_%d" % (n, ss))
        if kind == "X":
            return
        acc = v(ACCB if kind == "W" else ACCA, 16)
        first = (base == 0 and m == 0 and ss == 0)
        A.e("v_mfma_f32_32x32x16_bf16 %s, %s, %s, %s" % (acc, a(fb + 4 * ss, 4), a(fb + 16 + 4 * ss, 4), "0" if first else acc))

    def xd(q):
        if q == 0:
            A.e("v_lshlrev_b32 v16, 16, v16")
        r0, r1 = 2 * q, 2 * q + 1
        A.e("v_lshlrev_b32 %s, 16, %s" % (v(XV + r0), v(XV + r0)))
        A.e("v_lshlrev_b32 %s, 16, %s" % (v(XV + r1), v(XV + r1)))
        A.e("v_mul_f32 %s, %s, v16" % (v(XV + r0), v(XV + r0)))
        A.e("v_mul_f32 %s, %s, v16" % (v(XV + r1), v(XV + r1)))
        A.e("v_cvt_pk_bf16_f32 %s, %s, %s" % (v(XV + r0), v(XV + r0), v(XV + r1)))
        A.e("v_and_b32 %s, 0xffff0000, %s" % (v(XV + r1), v(XV + r0)))
        A.e("v_lshlrev_b32 %s, 16, %s" % (v(XV + r0), v(XV + r0)))

    def fold(q):
        for r in range(4 * q, 4 * q + 4):
            A.e("v_add_f32 %s, %s, %s" % (v(ACCA + r), v(ACCA + r), v(XV + r)))
        for r in range(4 * q, 4 * q + 4):
            A.e("v_mul_f32 %s, %s, %s" % (v(ACCA + r), v(GV + 2 * r), v(ACCA + r)))

    assert PAR["fl2"] <= XN
    for n in range(N):
        addr(n)
        if n == PAR["fl2"]:
            assert not late
            A.e("s_waitcnt vmcnt(0)")
        A.e("s_barrier")
        for ss in range(4):
            if n >= 1:
                mfma2(n - 1, ss)
            reads2(n, ss)
        if late and not PAR["stag"]:
            late.pop(0)()
        elif late:
            sp = PAR["sper"]
            A.e("s_and_b32 s6, s7, %d" % (sp - 1))
            A.e("s_cmp_lg_u32 s6, %d" % (n % sp))
            A.e("s_cbranch_scc1 L_F_st%d" % n)
            A.cond = True
            late[0]()
            A.cond = False
            A.lab("L_F_st%d" % n)
            if n % sp == sp - 1:
                late.pop(0)
        if 20 <= n < 28:
            xd(n - 20)
        if 28 <= n < 32:
            fold(n - 28)
    for ss in range(4):
        mfma2(N - 1, ss)
    A.fs(59)
    A.e("s_nop 7")
    A.e("s_nop 3")
    for q in range(8):
        A.e("v_cvt_pk_bf16_f32 %s, %s, %s" % (v(XV + q), v(ACCB + 2 * q), v(ACCB + 2 * q + 1)))
    for q in range(8):
        A.e("v_lshlrev_b32 %s, 16, %s" % (v(ACCB + 2 * q), v(XV + q)))
        A.e("v_and_b32 %s, 0xffff0000, %s" % (v(ACCB + 2 * q + 1), v(XV + q)))
    for r in range(16):
        A.e("v_mul_f32 %s, %s, %s" % (v(ACCB + r), v(GV + 2 * r + 1), v(ACCB + r)))
    for q in range(8):
        A.e("v_cvt_pk_bf16_f32 %s, %s, %s" % (v(XV + q), v(ACCB + 2 * q), v(ACCB + 2 * q + 1)))
    for q in range(8):
        A.e("v_lshlrev_b32 %s, 16, %s" % (v(ACCB + 2 * q), v(XV + q)))
        A.e("v_and_b32 %s, 0xffff0000, %s" % (v(ACCB + 2 * q + 1), v(XV + q)))
        A.e("s_movk_i32 s6, %d" % (4096 * q))
        for r in (2 * q, 2 * q + 1):
            A.e("v_add_f32 %s, %s, %s" % (v(ACCB + r), v(ACCB + r), v(ACCA + r)))
            A.e("buffer_store_dword %s, v20, %s, s6 offen offset:%d%s" % (v(ACCB + r), s(rO, 4), 2048 * (r & 1), stmod("o")))
    A.fs(60)
    A.fs_end()
    A.dbg_end()
    A.e("s_endpgm")


def cpow(A, n_scale, dre, dim, t0, t1, va, vb):
    if n_scale == 1.0:
        A.e("v_exp_f32 %s, %s" % (t0, va))
        A.e("v_fract_f32 %s, %s" % (t1, vb))
    else:
        ns = n_scale if isinstance(n_scale, str) else "0x%x" % f2u(n_scale)
        A.e("v_mul_f32 %s, %s, %s" % (t0, ns, va))
        A.e("v_mul_f32 %s, %s, %s" % (t1, ns, vb))
        A.e("v_exp_f32 %s, %s" % (t0, t0))
        A.e("v_fract_f32 %s, %s" % (t1, t1))
    A.e("v_cos_f32 %s, %s" % (dre, t1))
    A.e("v_sin_f32 %s, %s" % (dim, t1))
    A.e("s_nop 0")
    A.e("v_mul_f32 %s, %s, %s" % (dre, dre, t0))
    A.e("v_mul_f32 %s, %s, %s" % (dim, dim, t0))


def cfma_ops(dr, di, mr, mi, xr, xi, ar, ai):
    return ["v_fma_f32 %s, %s, %s, %s" % (dr, mr, xr, ar),
            "v_fma_f32 %s, %s, %s, %s" % (di, mr, xi, ai),
            "v_fma_f32 %s, -%s, %s, %s" % (dr, mi, xi, dr),
            "v_fma_f32 %s, %s, %s, %s" % (di, mi, xr, di)]


def lane0_store(A, cond, val, srd_, soff, off, vt, vz, L):
    for x in cond:
        A.e(x)
    A.e("s_cbranch_scc1 " + L)
    A.cond = True
    A.e("v_mov_b32 %s, %s" % (vt, val))
    A.e("v_mov_b32 %s, 0" % vz)
    A.e("s_mov_b64 exec, 1")
    A.e("buffer_store_dword %s, %s, %s, %s offen offset:%d sc1" % (vt, vz, s(srd_, 4), soff, off))
    A.e("s_mov_b64 exec, -1")
    A.cond = False
    A.lab(L)


def role_S(A):
    A.vm, A.lg = [], []
    A.thr = 99
    A.lab("L_S")
    LR, LI, NLI = "v16", "v17", "v5"
    L16R, L16I, QR, QI, L256R, L256I = "v18", "v19", "v20", "v21", "v22", "v23"
    CR, CI, PR, PI = "v2", "v3", "v10", "v11"
    ER, EI, SR, SI = "v56", "v57", "v58", "v59"
    RE, IM, ACC, FB = 64, 80, 96, 32
    A.e("s_lshl_b32 s6, s5, 6")
    A.e("v_lshlrev_b32 v4, 1, v8")
    A.e("v_add_u32 v4, s6, v4")
    A.e("s_lshl_b32 s6, s5, 7")
    A.e("s_add_u32 s6, s6, 0x%x" % EP_OFF)
    A.e("v_mov_b32 v55, 0")
    if PAR["cpf"]:
        A.e("s_getpc_b64 s[44:45]")
        A.lab("L_pc")
        A.e("s_sub_u32 s44, s44, L_pc - %s_kernel" % NAME)
        A.e("s_subb_u32 s45, s45, 0")
        A.e("s_mov_b32 s46, L_code_end - %s_kernel" % NAME)
        A.e("s_mov_b32 s47, 0x20000")
        A.e("s_lshr_b32 s9, s2, 3")
        A.e("s_lshl_b32 s9, s9, 2")
        A.e("s_add_u32 s9, s9, s7")
        A.e("s_lshl_b32 s9, s9, 8")
        A.e("v_lshlrev_b32 v53, 7, v1")
        A.e("s_mov_b64 exec, 3")
        A.vmi("par", "buffer_load_dword v52, v53, s[44:47], s9 offen")
        A.e("s_mov_b64 exec, -1")
    A.e("s_waitcnt lgkmcnt(0)")
    A.vmi("par", "global_load_ushort v60, v4, %s" % s(sLRE, 2))
    A.vmi("par", "global_load_ushort v61, v4, %s" % s(sLIM, 2))
    A.vmi("par", "global_load_ushort v62, v4, %s" % s(sLDT, 2))
    srd(A, rEP, sWS, 4, "s6")
    A.vmi("par", "buffer_load_dword v54, v55, %s, 0 offen sc1" % s(rEP, 4))
    A.e("s_lshl_b32 s6, s4, 7")
    A.e("s_add_u32 s6, s6, 0x%x" % EPR_OFF)
    srd(A, rG, sWS, 4, "s6")
    A.vmi("par", "buffer_load_dword v56, v55, %s, 0 offen sc1" % s(rG, 4))
    if PAR["tlb"]:
        A.e("s_cmp_lg_u32 s7, 0")
        A.e("s_cbranch_scc1 L_S_notlb")
        A.e("v_lshlrev_b32 v53, 21, v1")
        A.e("s_mov_b64 exec, 1")
        for ptr in (sW1, sW3, sW2, sCRE, sCIM, sDS):
            A.e("global_load_dword v52, v55, %s" % s(ptr, 2))
        A.e("s_mov_b64 exec, 3")
        A.e("global_load_dword v52, v53, %s" % s(sOUT, 2))
        A.e("s_mov_b64 exec, 31")
        A.e("global_load_dword v52, v53, %s" % s(sWS, 2))
        A.e("s_mov_b64 exec, -1")
        A.lab("L_S_notlb")
    common_late(A)
    w_scalars(A)
    srd(A, rW1, sW1, 512 * 2752)
    srd(A, rW3, sW3, 512 * 2752)
    A.e("s_lshl_b32 s6, s5, 13")
    A.e("s_add_u32 s6, s6, 0x%x" % E_OFF)
    srd(A, rE, sWS, 8192, "s6")
    A.e("s_lshl_b32 s6, s4, 9")
    A.e("s_add_u32 s6, s6, 0x%x" % FL_OFF)
    srd(A, rFL, sWS, 512, "s6")
    A.e("s_lshl_b32 s87, s5, 2")
    rCRE, rCIM, rW2, rA2 = 48, 52, 44, 56
    srd(A, rCRE, sCRE, 524288)
    srd(A, rCIM, sCIM, 524288)
    A.e("s_add_u32 s82, s82, 65536")
    A.e("s_add_u32 s82, s82, s92")
    A.e("s_lshl_b32 s100, s5, 11")
    A.e("s_add_u32 s100, s100, s81")
    A.e("s_add_u32 s101, s100, 32768")
    A.e("v_lshlrev_b32 v4, 3, v0")
    A.e("v_add_u32 v4, %d, v4" % (MISC + 2048))
    A.e("v_mov_b32 v48, 0")
    A.e("v_mov_b32 v49, 0")
    A.e("ds_write_b64 v4, v[48:49]")
    A.e("ds_write_b32 v4, v48 offset:2048")
    A.e("s_lshl_b32 s6, s7, 1")
    A.e("v_add_u32 v63, s6, v9")
    A.e("v_sub_u32 v4, 7, v63")
    A.e("v_lshlrev_b32 v4, 8, v4")
    A.e("v_lshl_add_u32 v4, v8, 3, v4")
    A.e("v_add_u32 v4, %d, v4" % MISC)
    A.e("v_lshlrev_b32 v63, 4, v63")
    A.e("v_cvt_f32_u32 v63, v63")
    A.e("s_lshl_b32 s6, s7, 9")
    A.e("v_lshlrev_b32 v57, 7, v9")
    A.e("v_add_u32 v57, s6, v57")
    A.e("v_cvt_f32_u32 v57, v57")
    A.vmw("par", " lgkmcnt(0)")
    srd(A, rW2, sW2, 1376 * 1024)
    A.e("v_readfirstlane_b32 s14, v54")
    A.e("v_readfirstlane_b32 s86, v56")
    A.e("s_add_u32 s14, s14, 1")
    A.e("s_bitset1_b32 s14, 31")
    A.e("s_add_u32 s86, s86, 1")
    A.e("s_bitset1_b32 s86, 31")
    A.e("v_lshlrev_b32 v60, 16, v60")
    A.e("v_lshlrev_b32 v61, 16, v61")
    A.e("v_lshlrev_b32 v62, 16, v62")
    A.e("v_mul_f32 v62, 0x%x, v62" % f2u(LOG2E))
    A.e("v_exp_f32 v62, v62")
    A.e("s_nop 0")
    A.e("v_cvt_pk_bf16_f32 v62, v62, v62")
    A.e("v_and_b32 v62, 0xffff0000, v62")
    A.e("v_mul_f32 v50, v62, v60")
    A.e("v_mul_f32 v51, v62, v61")
    A.e("v_mul_f32 v50, 0x%x, v50" % f2u(LOG2E))
    A.e("v_mul_f32 v51, 0x%x, v51" % f2u(INV2PI))
    cpow(A, 1.0, LR, LI, "v52", "v53", "v50", "v51")
    cpow(A, 16.0, L16R, L16I, "v52", "v53", "v50", "v51")
    cpow(A, "v57", QR, QI, "v52", "v53", "v50", "v51")
    cpow(A, 256.0, L256R, L256I, "v52", "v53", "v50", "v51")
    cpow(A, "v63", PR, PI, "v52", "v53", "v50", "v51")
    A.e("v_sub_f32 %s, 0, %s" % (NLI, LI))
    A.e("v_mul_f32 v52, v60, v60")
    A.e("v_fmac_f32 v52, v61, v61")
    A.e("v_rcp_f32 v52, v52")
    A.e("v_add_f32 v53, -1.0, %s" % LR)
    A.e("v_mul_f32 %s, v53, v60" % CR)
    A.e("v_fmac_f32 %s, %s, v61" % (CR, LI))
    A.e("v_mul_f32 %s, %s, v60" % (CI, LI))
    A.e("v_fma_f32 %s, -v53, v61, %s" % (CI, CI))
    A.e("v_add_f32 v52, v52, v52")
    A.e("v_mul_f32 %s, %s, v52" % (CR, CR))
    A.e("v_mul_f32 %s, %s, v52" % (CI, CI))
    emit(A, ["v_lshlrev_b32 v54, 5, v8", "v_lshl_add_u32 v54, v9, 4, v54", "v_xor_b32 v55, 0x80, v54"])
    emit(A, ["s_lshl_b32 s6, s7, 2", "s_sub_u32 s6, s6, s4", "s_add_u32 s6, s6, 16",
             "v_add_u32 v62, s6, v9", "v_lshlrev_b32 v60, 9, v62", "v_lshl_add_u32 v60, v8, 4, v60",
             "v_sub_u32 v62, 17, v62", "v_and_b32 v62, -2, v62", "v_max_i32 v62, 0, v62", "v_min_i32 v62, 4, v62",
             "v_lshlrev_b32 v63, 3, v8", "v_add_u32 v63, %d, v63" % (MISC + 8192),
             "s_lshl_b32 s6, s7, 9", "v_lshl_add_u32 v61, v9, 8, v63", "v_add_u32 v61, s6, v61"])

    tiles = [0, 1]
    LA, LAF = PAR["la"], PAR["laf"]
    assert LA <= LAF <= 4
    assert LASTP + 1 <= PAR["estep"] <= PAR["cstep"] and PAR["cstep"] + 1 <= PAR["lastbar"] and PAR["cstep"] + 1 < PAR["hstep"] <= 15 and PAR["lastbar"] >= 13
    S = Stream(A, mk_items(ORD, 2, True), 4, PAR["sd"], PAR["sfill"])
    S.fence = LASTP + 1
    if PAR["dyn"]:
        S.dyn = True
        A.e("s_setprio 2")
    late = []
    dq = []
    for n in range(LASTP + LA + 1, 16):
        dq += [(n, f) for f in dma_ops(A, n, "v4", "v7", (0,) if PAR["split"] else (0, 1))]

    def dma_upto(m, maxops=999):
        while dq and dq[0][0] <= m and maxops > 0:
            dq.pop(0)[1]()
            maxops -= 1

    def ssm_publish():
        A.e("s_nop 7")
        A.e("s_nop 3")
        cur = (v(RE), v(IM))
        tmp = [("v48", "v49"), ("v50", "v51")]
        for r in range(1, 16):
            d = (ER, EI) if r == 15 else tmp[r & 1]
            emit(A, cfma_ops(d[0], d[1], LR, LI, cur[0], cur[1], v(RE + r), v(IM + r)))
            cur = d
        A.e("ds_write_b64 v4, v[56:57]")
        A.e("v_mov_b32 v48, %d" % (MISC + 4096))
        A.e("v_mov_b32 v49, 1")
        A.e("s_mov_b64 exec, 1")
        A.e("ds_add_u32 v48, v49")
        A.e("s_mov_b64 exec, -1")
        A.e("s_mov_b32 s13, 0")
        A.lab("L_S_sync")
        A.e("ds_read_b32 v49, v48")
        A.e("s_add_u32 s13, s13, 1")
        A.e("s_waitcnt lgkmcnt(0)")
        A.e("v_readfirstlane_b32 s6, v49")
        A.e("s_cmp_lt_u32 s13, 0x100000")
        A.e("s_cselect_b32 s6, s6, 4")
        A.e("s_cmp_lt_u32 s6, 4")
        A.e("s_cbranch_scc1 L_S_sync")
        A.lg = []
        er = lambda m: (24 + 2 * m if m < 4 else 32 + 2 * (m - 4))
        for m in range(6, -1, -1):
            A.lgi("er%d" % m, "ds_read_b64 %s, v4 offset:%d" % (v(er(m), 2), 256 * (m + 1)))
        cur = (v(er(6)), v(er(6) + 1))
        for m in range(5, -1, -1):
            d = (SR, SI) if m == 0 else tmp[m & 1]
            A.lgw("er%d" % m)
            emit(A, cfma_ops(d[0], d[1], L16R, L16I, cur[0], cur[1], v(er(m)), v(er(m) + 1)))
            cur = d
        A.e("s_cmp_lg_u32 s7, 3")
        A.e("s_cbranch_scc1 L_S_nopub")
        A.cond = True
        emit(A, cfma_ops("v24", "v26", L16R, L16I, SR, SI, ER, EI))
        A.e("v_mov_b32 v25, s14")
        A.e("v_mov_b32 v27, s14")
        A.e("s_sub_u32 s6, 15, s4")
        A.e("s_lshl_b32 s6, s6, 9")
        A.e("v_lshlrev_b32 v28, 4, v8")
        A.e("s_mov_b32 exec_lo, 0")
        A.e("buffer_store_dwordx4 v[24:27], v28, %s, s6 offen sc1" % s(rE, 4))
        A.e("s_mov_b64 exec, -1")
        A.cond = False
        A.lab("L_S_nopub")
        A.fs(56)
        emit(A, wdma_addr_ops("v4", "v7", "v48"))
        for r in range(16):
            t = "v%d" % (48 + (r & 3))
            S.fill += ["v_mul_f32 %s, %s, %s" % (t, CI, v(RE + r)), "v_mul_f32 %s, %s, %s" % (v(RE + r), CR, v(RE + r)),
                       "v_fma_f32 %s, -%s, %s, %s" % (v(RE + r), CI, v(IM + r), v(RE + r)), "v_fma_f32 %s, %s, %s, %s" % (v(IM + r), CR, v(IM + r), t)]
        if not PAR["coeff"]:
            S.flush()

    def e_issue(tag=None):
        for m in range(2):
            x = "buffer_load_dwordx4 %s, v60, %s, 0 offen offset:%d sc1" % (v(24 + 4 * m, 4), s(rE, 4), 1024 * m)
            if tag:
                A.vmi(tag, x)
            else:
                A.e(x)

    def e_check():
        A.fs(17)
        A.e("s_mov_b32 s13, 0")
        A.vmw("e")
        A.lab("L_S_poll")
        A.e("v_mov_b32 v48, 0")
        for q in range(4):
            A.e("v_cmp_eq_u32 s[%d:%d], s14, %s" % (18 + 2 * q, 19 + 2 * q, v(25 + 2 * q)))
        for q in range(4):
            A.e("v_addc_co_u32 v48, vcc, 0, v48, s[%d:%d]" % (18 + 2 * q, 19 + 2 * q))
        A.e("v_cmp_ne_u32 vcc, v62, v48")
        A.e("s_cbranch_vccz L_S_ready")
        A.cond = True
        A.e("s_sleep 2")
        e_issue()
        A.e("s_add_u32 s13, s13, 1")
        A.e("s_cmp_lt_u32 s13, 0x20000")
        A.e("s_waitcnt vmcnt(0)")
        A.e("s_cbranch_scc1 L_S_poll")
        A.cond = False
        A.lab("L_S_ready")
        emit(A, cfma_ops("v48", "v49", L256R, L256I, "v28", "v30", "v24", "v26"))
        A.e("v_mul_f32 v50, %s, v48" % QR)
        A.e("v_mul_f32 v51, %s, v49" % QR)
        A.e("v_fma_f32 v50, -%s, v49, v50" % QI)
        A.e("v_fmac_f32 v51, %s, v48" % QI)
        A.lgi("pw", "ds_write_b64 v61, v[50:51]")
        A.fs(18)

    def scan_ops():
        o = []
        pr = [24, 26, 28, 30, 48, 50, 52, 56]
        def prd():
            for q in range(8):
                A.lgi("pr", "ds_read_b64 %s, v63 offset:%d" % (v(pr[q], 2), 256 * q))
        bump = lambda: lane0_store(A, ["s_lshl_b32 s6, s7, 4", "s_add_u32 s6, s6, s4", "s_cmp_lg_u32 s6, 15"], "s14", rEP, "0", 0, "v60", "v61", "L_S_noep")
        o += [prd, bump, lambda: A.lgw("pr")]
        for (x, y) in ((0, 1), (2, 3), (4, 5), (6, 7), (0, 2), (4, 6), (4, 0)):
            o.append("v_add_f32 %s, %s, %s" % (v(pr[x]), v(pr[x]), v(pr[y])))
            o.append("v_add_f32 %s, %s, %s" % (v(pr[x] + 1), v(pr[x] + 1), v(pr[y] + 1)))
        o += cfma_ops("v50", "v51", PR, PI, "v48", "v49", SR, SI)
        o += ["v_mul_f32 v48, %s, v50" % CR, "v_mul_f32 v49, %s, v51" % CR, "v_fma_f32 v48, -%s, v51, v48" % CI, "v_fmac_f32 v49, %s, v50" % CI]
        cur = ("v48", "v49")
        for r in range(16):
            o.append("v_fmac_f32 %s, %s, %s" % (v(RE + r), LR, cur[0]))
            o.append("v_fmac_f32 %s, %s, %s" % (v(IM + r), LR, cur[1]))
            o.append("v_fmac_f32 %s, %s, %s" % (v(RE + r), NLI, cur[1]))
            o.append("v_fmac_f32 %s, %s, %s" % (v(IM + r), LI, cur[0]))
            cur = (v(RE + r), v(IM + r))
        for q in range(8):
            o.append("v_cvt_pk_bf16_f32 %s, %s, %s" % (v(RE + q), v(RE + 2 * q), v(RE + 2 * q + 1)))
        for q in range(8):
            o.append("v_cvt_pk_bf16_f32 %s, -%s, -%s" % (v(IM + q), v(IM + 2 * q), v(IM + 2 * q + 1)))
        def st(ks):
            A.vmi("hst", "buffer_store_dwordx4 %s, %s, %s, s%d offen offset:%d%s" % (v((RE, RE + 4, IM, IM + 4)[ks], 4), "v55" if ks & 1 else "v54", s(rAS, 4),
                                                                                   101 if ks >= 2 else 100, 1024 * (ks & 1), stmod()))
            if ks == 3:
                A.fs(19)
        for ks in range(4):
            o.append(lambda ks=ks: st(ks))
            o += [("gap",)] * PAR["stgap"]
        return o

    def prefetch_c():
        A.e("s_lshr_b32 s13, s5, 3")
        A.e("s_lshl_b32 s13, s13, 18")
        A.e("s_lshr_b32 s6, s2, 3")
        A.e("s_lshl_b32 s6, s6, 13")
        A.e("s_add_u32 s13, s13, s6")
        A.e("s_lshl_b32 s6, s7, 11")
        A.e("s_add_u32 s13, s13, s6")
        A.e("v_lshlrev_b32 v18, 7, v1")
        A.e("s_mov_b64 exec, 0xffff")
        A.vmi("pf", "buffer_load_dword v19, v18, %s, s13 offen" % s(rCRE, 4))
        A.vmi("pf", "buffer_load_dword v19, v18, %s, s13 offen" % s(rCIM, 4))
        A.e("s_mov_b64 exec, -1")

    def prefetch_w2():
        A.e("s_lshr_b32 s6, s2, 3")
        A.e("s_mul_i32 s15, s6, 43")
        A.e("s_mul_i32 s6, s7, 11")
        A.e("s_add_u32 s15, s15, s6")
        A.e("s_lshl_b32 s15, s15, 1")
        A.e("s_lshr_b32 s6, s5, 3")
        A.e("s_add_u32 s15, s15, s6")
        A.e("s_lshl_b32 s15, s15, 9")
        A.e("v_lshrrev_b32 v18, 2, v1")
        A.e("v_lshlrev_b32 v18, 3, v18")
        A.e("v_and_or_b32 v18, v1, 3, v18")
        A.e("v_lshlrev_b32 v18, 7, v18")
        A.e("s_mov_b32 exec_hi, 0xfff")
        A.vmi("pf", "buffer_load_dword v19, v18, %s, s15 offen" % s(rW2, 4))
        A.e("s_mov_b64 exec, -1")

    def spf_setup():
        n_ = PAR["spfn"]
        A.e("s_lshr_b32 s6, s2, 3")
        A.e("s_mul_i32 s30, s6, %d" % ((255 + n_) // n_))
        A.e("s_lshr_b32 s30, s30, 8")
        A.e("s_mul_i32 s30, s30, %d" % n_)
        A.e("s_sub_u32 s30, s6, s30")
        A.e("s_lshr_b32 s9, s5, 3")
        A.e("s_lshl_b32 s9, s9, 18")
        A.e("s_lshl_b32 s15, s6, 13")
        A.e("s_add_u32 s9, s9, s15")
        A.e("s_lshl_b32 s15, s7, 11")
        A.e("s_add_u32 s9, s9, s15")
        A.e("s_mul_i32 s15, s6, 43")
        A.e("s_mul_i32 s6, s7, 11")
        A.e("s_add_u32 s15, s15, s6")
        A.e("s_lshl_b32 s15, s15, 1")
        A.e("s_lshr_b32 s6, s5, 3")
        A.e("s_add_u32 s15, s15, s6")
        A.e("s_lshl_b32 s15, s15, 9")

    def spf_site(q, va='v18', vd='v19'):
        def f():
            A.e("s_cmp_lg_u32 s30, %d" % q)
            A.e("s_cbranch_scc1 L_spf%d" % q)
            A.cond = True
            A.e(("v_lshlrev_b32 v18, 7, v1").replace("v18", va).replace("v19", vd))
            A.e("s_mov_b64 exec, 0xffff")
            A.e(("buffer_load_dword v19, v18, %s, s9 offen" % s(rCRE, 4)).replace("v18", va).replace("v19", vd))
            A.e(("buffer_load_dword v19, v18, %s, s9 offen" % s(rCIM, 4)).replace("v18", va).replace("v19", vd))
            A.e("s_mov_b64 exec, -1")
            A.e(("v_lshrrev_b32 v18, 2, v1").replace("v18", va).replace("v19", vd))
            A.e(("v_lshlrev_b32 v18, 3, v18").replace("v18", va).replace("v19", vd))
            A.e(("v_and_or_b32 v18, v1, 3, v18").replace("v18", va).replace("v19", vd))
            A.e(("v_lshlrev_b32 v18, 7, v18").replace("v18", va).replace("v19", vd))
            A.e("s_mov_b32 exec_hi, 0xfff")
            A.e(("buffer_load_dword v19, v18, %s, s15 offen" % s(rW2, 4)).replace("v18", va).replace("v19", vd))
            A.e("s_mov_b64 exec, -1")
            A.cond = False
            A.lab("L_spf%d" % q)
        return f

    def warm_w():
        A.e("s_and_b32 s6, s83, 7")
        A.e("s_lshl_b32 s6, s6, 2")
        A.e("s_add_u32 s6, s6, s7")
        A.e("s_mul_i32 s6, s6, %d" % (16 * 2752))
        A.e("s_mul_i32 s13, s5, 192")
        A.e("s_add_u32 s6, s6, s13")
        A.e("s_add_u32 s6, s6, s92")
        A.e("v_lshrrev_b32 v52, 1, v8")
        A.e("v_mul_u32_u24 v52, 2752, v52")
        A.e("v_and_b32 v53, 1, v1")
        A.e("v_lshl_add_u32 v52, v53, 7, v52")
        A.e("s_mov_b32 exec_hi, 0")
        A.e("s_bitcmp1_b32 s4, 3")
        A.e("s_cbranch_scc1 L_ww3")
        A.e("buffer_load_dword v53, v52, %s, s6 offen" % s(rW1, 4))
        A.e("s_branch L_ww")
        A.lab("L_ww3")
        A.e("buffer_load_dword v53, v52, %s, s6 offen" % s(rW3, 4))
        A.lab("L_ww")
        A.e("s_mov_b64 exec, -1")

    if PAR["spf"] or PAR["mpf"] >= 0:
        spf_setup()
    if PAR["mpf"] >= 0:
        A.e("s_bfe_u32 s6, s2, 0x10002")
        A.e("s_lshl_b32 s6, s6, 1")
        A.e("s_and_b32 s30, s2, 1")
        A.e("s_add_u32 s30, s30, s6")
        A.e("s_sub_u32 s30, s30, s7")
    if PAR["pf"] and not PAR["spf"]:
        dq.append((PAR["pfc"] + LAF, prefetch_c))
        if PAR["pfw"] <= 15:
            dq.append((PAR["pfw"] + LAF, prefetch_w2))

    def pre(b):
        kind, c = ORD[b]
        slot = slot_of(b)
        if b == 0 and PAR["wpf"] == 99:
            warm_w()
        if b == 0 and PAR["mpf"] == 99:
            spf_site(0, "v52", "v53")()
        if b == LASTP + 1:
            ssm_publish()
            A.thr = PAR["thr"]
        if b == PAR["cstep"] + 1:
            S.flush()
            A.lgw("pw")
        if b == PAR["cstep"] + 2:
            assert "pr" not in A.lg
        dma_upto(min(b - 1 + LA, 15) if b != PAR["lastbar"] else 15)
        if kind == "P":
            A.e("v_add_u32 v28, %d, v7" % slot)
            A.e("v_xor_b32 v29, 32, v28")
            A.e("v_xor_b32 v30, 64, v28")
            A.e("v_xor_b32 v31, 0x60, v28")
            for q in range(4):
                A.e("v_add_u32 %s, s8, %s" % (v(24 + q), v(28 + q)))
        else:
            A.e("v_add_u32 v14, %d, v12" % slot)
            A.e("v_add_u32 v15, %d, v13" % slot)
        A.fs2(20 + b)
        A.vmw("ch%d" % (b if b != PAR["lastbar"] else 15))
        A.fs2(36 + b)

    def hflag():
        assert "hst" in A.vm or True
        A.vmw("hst")
        A.e("v_mov_b32 v24, %d" % (LDS_CNT))
        A.e("v_mov_b32 v25, 1")
        A.e("s_mov_b64 exec, 1")
        A.lgi("hc", "ds_add_rtn_u32 v26, v24, v25")
        A.e("s_mov_b64 exec, -1")

    def hflag2():
        A.lgw("hc")
        A.e("v_readfirstlane_b32 s6, v26")
        lane0_store(A, ["s_cmp_lg_u32 s6, 3"], "s86", rFL, "s87", 0, "v24", "v25", "L_S_nofl")
        A.fs(57)

    def post(b):
        A.fs(b)
        if b == PAR["wpf"]:
            warm_w()
        if b == PAR["mpf"]:
            spf_site(0, "v52", "v53")()
        if PAR["spf"] and 0 <= b - PAR["spf0"] < PAR["spfn"]:
            spf_site(b - PAR["spf0"])()
        if b == PAR["estep"]:
            e_issue("e")
        if b == PAR["cstep"]:
            S.fill += [("gap",)] * PAR["cdelay"] + [e_check]
        if b == PAR["cstep"] + 1:
            S.fill += scan_ops()
            S.K = PAR["sfill2"]
        if b == PAR["hstep"]:
            S.fill += [hflag, ("gap",), hflag2]

    def read(it, sl, tag):
        n, ss, ti = it
        kind, c = ORD[n]
        if kind == "P":
            if ti == 0:
                A.lgi(tag, "ds_read_b128 %s, %s" % (a(16 * c + 4 * ss, 4), v(24 + ss)))
            A.lgi(tag, "ds_read_b128 %s, %s offset:%d" % (v(FB + 4 * sl, 4), v(28 + ss), 16384 + 4096 * ti))
        else:
            T = tiles[ti]
            for nn in range(2):
                A.lgi(tag, "ds_read_b64_tr_b16 %s, v%d offset:%d" % (v(FB + 4 * sl + 2 * nn, 2), 14 + (T & 1),
                                                                    ss * 6144 + (T >> 1) * 1024 + nn * 256))

    def mfma(it, sl):
        n, ss, ti = it
        kind, c = ORD[n]
        first = (c == 0 and ss == 0)
        if kind == "P":
            d = (RE, IM)[ti]
            A.e("v_mfma_f32_32x32x16_bf16 %s, %s, %s, %s" % (v(d, 16), a(16 * c + 4 * ss, 4), v(FB + 4 * sl, 4), "0" if first else v(d, 16)))
        else:
            d = ACC + 16 * ti
            A.e("v_mfma_f32_32x32x16_bf16 %s, %s, %s, %s" % (v(d, 16), v(FB + 4 * sl, 4), a(16 * c + 4 * ss, 4), "0" if first else v(d, 16)))

    def after(it, mp):
        n, ss, ti = it
        if n == 15 and ss == 3:
            S.fill.append(("dist", S.ninstr()))
            S.fill += swiglu_ops(A, ACC + 16 * ti, 1024 * ti, False, late if ti >= 2 - PAR["defS"] else None)
        if n > LASTP and (not PAR["split"] or mp % 2 == 0):
            dma_upto(S.nb - 1 + LAF, 1)

    S.pre, S.post, S.read, S.mfma, S.after = pre, post, read, mfma, after
    S.run()
    assert not dq
    A.fs(16)
    A.e("v_and_b32 v17, 15, v1")
    A.e("v_lshlrev_b32 v17, 2, v17")
    if PAR["dyn"] == 1:
        A.e("s_setprio 0")
    S.flush()
    if PAR["dyn"]:
        A.e("s_setprio 2")
    A.vmi("poll", "buffer_load_dword v16, v17, %s, 0 offen sc1" % s(rFL, 4))
    A.fs(58)

    A.thr = PAR["thr2"]
    N = len(P2_SEQ)
    LA2 = PAR["ala"]
    assert LA2 <= NA - 2
    tile_of(A, "s11", "s10")
    A.e("s_and_b32 s13, s10, 3")
    A.e("s_lshl_b32 s13, s13, 1")
    if PAR["urot"] and PAR["map"]:
        A.e("s_add_u32 s13, s13, s4")
        A.e("s_and_b32 s13, s13, 7")
    elif PAR["urot"]:
        A.e("s_add_u32 s13, s13, s11")
        A.e("s_lshl_b32 s6, s4, 1")
        A.e("s_add_u32 s13, s13, s6")
        A.e("s_and_b32 s13, s13, 7")
    A.e("s_sub_u32 s14, s13, 6")
    A.e("s_cmp_ge_u32 s13, 6")
    A.e("s_cselect_b32 s14, s14, s13")
    A.e("s_lshl_b32 s9, s7, 11")
    A.e("v_and_b32 v11, 7, v1")
    A.e("v_lshrrev_b32 v22, 3, v1")
    A.e("v_lshrrev_b32 v10, 4, v1")
    A.e("v_xor_b32 v10, v10, v11")
    A.e("v_lshlrev_b32 v10, 4, v10")
    A.e("v_lshl_add_u32 v4, v22, 10, v10")
    A.e("s_lshl_b32 s6, s7, 14")
    A.e("s_lshl_b32 s12, s10, 16")
    A.e("s_add_u32 s12, s12, s6")
    A.e("v_add_u32 v4, s12, v4")
    A.e("v_xor_b32 v5, 64, v4")
    A.e("v_add_u32 v5, 8192, v5")

    def idx(n):
        kind, base, ln, m = P2_SEQ[n]
        if ln == 8:
            A.e("s_add_u32 s12, s13, %d" % m)
            A.e("s_and_b32 s12, s12, 7")
        else:
            A.e("s_add_u32 s12, s14, %d" % m)
            A.e("s_sub_u32 s6, s12, 6")
            A.e("s_cmp_ge_u32 s12, 6")
            A.e("s_cselect_b32 s12, s6, s12")

    def dma_w(n):
        kind, base, ln, m = P2_SEQ[n]
        if kind == "X":
            srd(A, rE, sX, 2048 * 1024)
            A.e("s_lshl_b32 s6, s4, 1")
            A.e("s_add_u32 s6, s6, s11")
            A.e("s_lshl_b32 s6, s6, 2")
            A.e("s_add_u32 s6, s6, s7")
            A.e("s_lshl_b32 s6, s6, 14")
            A.e("s_lshl_b32 s12, s10, 7")
            A.e("s_add_u32 s12, s12, s6")
            A.e("v_and_b32 v10, 7, v1")
            A.e("v_lshlrev_b32 v10, 4, v10")
            A.e("v_lshl_add_u32 v10, v22, 10, v10")
            A.e("s_add_u32 m0, s9, %d" % WU(n))
            A.e("s_add_u32 s6, s12, 8192")
            A.vmi("w%d" % n, "buffer_load_dwordx4 v10, %s, s12 offen lds" % s(rE, 4))
            A.e("s_add_u32 m0, s9, %d" % (WU(n) + 1024))
            A.e("s_nop 0")
            A.vmi("w%d" % n, "buffer_load_dwordx4 v10, %s, s6 offen lds" % s(rE, 4))
            return
        idx(n)
        if "whot" in OPT:
            kind, base = "C", 0
        if kind == "W":
            A.e("s_lshl_b32 s12, s12, 16")
            if base:
                A.e("s_add_u32 s12, s12, %d" % (base * 65536))
            r_, va, vb = rW2, "v3", "v7"
        else:
            A.e("s_lshl_b32 s12, s12, 7")
            r_, va, vb = (rCIM if base else rCRE), "v4", "v5"
        A.e("s_add_u32 m0, s9, %d" % WU(n))
        A.e("s_nop 0")
        A.vmi("w%d" % n, "buffer_load_dwordx4 %s, %s, s12 offen lds" % (va, s(r_, 4)))
        A.e("s_add_u32 m0, s9, %d" % (WU(n) + 1024))
        A.e("s_nop 0")
        A.vmi("w%d" % n, "buffer_load_dwordx4 %s, %s, s12 offen lds" % (vb, s(r_, 4)))

    def dma_a(n):
        kind, base, ln, m = P2_SEQ[n]
        if kind == "X":
            srd(A, rEP, sWS, 16384, "0x%x" % G_OFF)
            A.e("s_lshl_b32 s12, s4, 1")
            A.e("s_add_u32 s12, s12, s11")
            A.e("s_lshl_b32 s12, s12, 9")
            A.e("s_mov_b32 m0, %d" % AU(n))
            A.e("s_mov_b32 exec_hi, 0")
            A.vmi("a%d" % n, "buffer_load_dwordx4 v6, %s, s12 offen sc1 lds" % s(rEP, 4))
            srd(A, rEP, sDS, 1024)
            A.e("s_lshl_b32 s12, s10, 7")
            A.e("s_mov_b32 m0, %d" % (AU(n) + 1024))
            A.e("s_mov_b64 exec, 0xff")
            A.vmi("a%d" % n, "buffer_load_dwordx4 v6, %s, s12 offen lds" % s(rEP, 4))
            A.e("s_mov_b64 exec, -1")
            return
        idx(n)
        A.e("s_lshl_b32 s12, s12, 12")
        off = (64 + 4 * base) * 1024 if kind == "W" else 4 * base * 1024
        if "ahot" in OPT:
            off = 0
        if off:
            A.e("s_add_u32 s12, s12, %d" % off)
        A.e("s_add_u32 m0, s8, %d" % AU(n))
        A.e("s_nop 0")
        A.vmi("a%d" % n, "buffer_load_dwordx4 v2, %s, s12 offen sc1 lds" % s(rA2, 4))
        A.vmi("a%d" % n, "buffer_load_dwordx4 v2, %s, s12 offen offset:1024 sc1 lds" % s(rA2, 4))

    def check(tag, off, L):
        A.e("s_mov_b32 s15, 0")
        A.vmw(tag)
        A.lab(L + "_poll")
        A.e("v_cmp_ne_u32 vcc, s86, v16")
        A.e("s_cbranch_vccz %s_go" % L)
        A.e("s_sleep %d" % PAR["slp"])
        A.e("buffer_load_dword v16, v17, %s, 0 offen offset:%d sc1" % (s(rFL, 4), off))
        A.e("s_add_u32 s15, s15, 1")
        A.e("s_cmp_lt_u32 s15, 0x20000")
        A.e("s_waitcnt vmcnt(0)")
        A.e("s_cbranch_scc1 %s_poll" % L)
        A.lab(L + "_go")

    NW0 = 5 + 3 * (min(PAR["lastbar"], 16 - PAR["nt"]) - 13)
    for n in range(2):
        dma_w(n)
    A.e("s_and_b32 s12, s7, 1")
    A.e("s_lshr_b32 s15, s7, 1")
    A.e("s_lshl_b32 s15, s15, 11")
    A.e("v_add_u32 v2, s15, v6")
    A.e("s_lshl_b32 s8, s12, 12")
    A.e("s_add_u32 s8, s8, s15")
    A.e("s_lshl_b32 s6, s4, 1")
    A.e("s_add_u32 s6, s6, s11")
    A.e("s_lshl_b32 s6, s6, 1")
    A.e("s_add_u32 s6, s6, s12")
    A.e("s_mul_i32 s6, s6, %d" % (NKS * 1024))
    srd(A, rA2, sWS, NKS * 1024, "s6")
    A.e("v_bfe_u32 v10, v1, 4, 1")
    A.e("v_lshlrev_b32 v10, 2, v10")
    A.e("v_xor_b32 v10, v10, v11")
    A.e("v_lshlrev_b32 v10, 4, v10")
    A.e("v_lshl_add_u32 v3, v22, 10, v10")
    A.e("s_lshl_b32 s6, s7, 14")
    A.e("s_lshl_b32 s12, s10, 7")
    A.e("s_add_u32 s12, s12, s6")
    A.e("v_add_u32 v3, s12, v3")
    A.e("v_add_u32 v7, 8192, v3")
    check("poll", 0, "L_p2a")
    A.fs(55)
    E0 = PAR["e0"]
    assert E0 <= min(NA, NW0)
    for n in range(E0):
        dma_a(n)
        if n >= 2:
            dma_w(n)
    wn, an = max(E0, 2), E0
    for n in range(N):
        A.vmw("w%d" % n)
        A.vmw("a%d" % n)
        if n == PAR["fl2"]:
            assert not late
            A.vmw("st")
        A.e("s_barrier")
        A.fs(20 + n) if n < 35 else None
        if n == PAR["fl2"]:
            lane0_store(A, ["s_cmp_lg_u32 s3, 0"], "s86", rFL, "s87", 256, "v10", "v11", "L_p2_nofl")
        if n == PAR["chk2"]:
            check("poll2", 256, "L_p2b")
            lane0_store(A, ["s_lshl_b32 s6, s5, 2", "s_add_u32 s6, s6, s7", "s_cmp_lg_u32 s6, 0"], "s86", rG, "0", 0, "v10", "v11", "L_p2_noep")
        if n == PAR["p2poll"]:
            A.vmi("poll2", "buffer_load_dword v16, v17, %s, 0 offen offset:256 sc1" % s(rFL, 4))
        budget = 3 if (n == PAR["chk2"] or n < 4) else 2
        while budget > 0:
            a_ok = an < N and an <= n + LA2 and (an < NSSM or n >= PAR["chk2"])
            w_ok = wn < N and wn - NW <= n - 2
            if w_ok and (wn < an or not a_ok):
                if not a_ok and wn > n + PAR["wla"] and not (an == NSSM and n < PAR["chk2"]):
                    break
                dma_w(wn); wn += 1
            elif a_ok:
                dma_a(an); an += 1
            else:
                break
            budget -= 1
        if late and n >= 1 and n % 2 == 1:
            late.pop(0)()
        if PAR["pf"] and not PAR["spf"] and PAR["pfw"] > 15 and n == PAR["pfw2"]:
            prefetch_w2()
        assert (an > n + 1 or an == N) and (wn > n + 1 or wn == N)
    assert an == N and wn == N
    A.fs_end()
    A.e("s_endpgm")


def gen_all(A):
    K = NAME + "_kernel"
    A.L.append(".globl %s\n.p2align 8\n.type %s,@function\n%s:" % (K, K, K))
    prologue(A)
    role_F(A)
    fm = A.L[A.fmain:]
    del A.L[A.fmain:]
    role_S(A)
    A.L += fm
    A.lab("L_end")
    A.e("s_endpgm")
    A.lab("L_code_end")


def kd(name, nv, acc, ns=102):
    return """.amdhsa_kernel %s
  .amdhsa_next_free_vgpr %d
  .amdhsa_next_free_sgpr %d
  .amdhsa_accum_offset %d
  .amdhsa_group_segment_fixed_size 0
  .amdhsa_kernarg_size 136
  .amdhsa_user_sgpr_count 2
  .amdhsa_user_sgpr_kernarg_segment_ptr 1
  .amdhsa_system_sgpr_workgroup_id_x 1
.end_amdhsa_kernel
""" % (name, nv, ns, acc)


def main(path):
    ref = open("cdna_kernels/%s.s.ref" % NAME).read().splitlines()
    head = [l for l in ref if l.startswith(";") and "@launch" not in l and "Override launch" not in l and "grid=ceil" not in l]
    head = head[:18]
    A = Asm()
    gen_all(A)
    out = head + [
        "; @launch grid=(256,1,1) block=(512,1,1) lds=%d" % K1_LDS,
        '.amdgcn_target "amdgcn-amd-amdhsa--gfx950"', ".text"] + A.L + [
        '.section .rodata,"a"', ".p2align 6", kd(NAME + "_kernel", 256, 128)]
    open(path, "w").write("\n".join(out))


if __name__ == "__main__":
    if "--stamp" in sys.argv:
        STAMP = True
        sys.argv.remove("--stamp")
    for x in list(sys.argv):
        if x.startswith("-O"):
            OPT.add(x[2:]); sys.argv.remove(x)
        elif x.startswith("-P"):
            kk, vv = x[2:].split("=")
            PAR[kk] = vv if kk.startswith("ord") else int(vv)
            sys.argv.remove(x)
    main(sys.argv[1] if len(sys.argv) > 1 else "cdna_kernels/%s.s" % NAME)
```

```python
import sys, struct

NAME = "gated_mix__ssm_conv_s5__glu_gated_swiglu__prompt"

def f2u(x):
    return struct.unpack("<I", struct.pack("<f", x))[0]

LOG2E = 1.4426950408889634
INV2PI = 0.15915494309189535

NKS = 150
A_BYTES = 64 * NKS * 1024
E_OFF = 0xA00000
G_OFF = 0xA20000
EP_OFF = 0xA30000


EPR_OFF = 0xA31000
FL_OFF = 0xA40000

STAMP = False
OPT = {"asc0", "asc1", "osc0", "osc1"}
ST_OFF = 0xB00000

class Asm:
    def __init__(self):
        self.L = []
        self.ni = 0
        self.cond = False
        self.thr = 99
        self.vm = []
        self.lg = []

    def e(self, s):
        if "nomfma" in OPT and s.startswith("v_mfma"):
            s = "s_nop 0"
        if "nolds" in OPT and s.startswith("ds_read"):
            s = "s_nop 0"
        if "nohst" in OPT and s.startswith("buffer_store_dwordx4") and ("s100" in s or "s101" in s):
            s = "s_nop 0"
        if "noHst" in OPT and s.startswith("buffer_store_dwordx4") and "s82" in s:
            s = "s_nop 0"
        if "noout" in OPT and s.startswith("buffer_store_dword ") and "v20," in s:
            s = "s_nop 0"
        if "notw" in OPT and s.startswith("ds_write_b128"):
            s = "s_nop 0"
        if "noscan" in OPT and s.startswith("v_fmac_f32"):
            return
        if "m16" in OPT and s.startswith("v_mfma_f32_32x32x16"):
            import re as _re
            m_ = _re.match(r"v_mfma_f32_32x32x16_bf16 v\[(\d+):\d+\], (\S+), (\S+), (\S+)", s)
            d_ = int(m_.group(1)); self.m16 = getattr(self, "m16", 0) + 1
            for q_ in range(2):
                dd = d_ + 4 * (2 * ((self.m16 >> 2) & 1) + q_)
                self.L.append("  v_mfma_f32_16x16x32_bf16 v[%d:%d], %s, %s, %s" % (dd, dd + 3, m_.group(2), m_.group(3), "0" if m_.group(4) == "0" else "v[%d:%d]" % (dd, dd + 3)))
                self.ni += 1
            return
        self.L.append("  " + s)
        if not self.cond:
            self.ni += 1

    def c(self, s):
        pass

    def lab(self, s):
        self.L.append(s + ":")

    def fs2(self, n):
        if "vw" in OPT:
            self.fs(n, True)

    def fs(self, n, vw=False):
        if "hold" in OPT and n == PAR["probe"]:
            self.e("s_memrealtime s[96:97]")
            return
        if "vw" in OPT and not vw and 20 <= n < 55:
            return
        if "so" in OPT and n != 61:
            return
        if STAMP and ("light" not in OPT or n in (0, 7, 9, 13, 15, 16, 19, 20, 36, 55, 58, 59, 61)):
            self.e("%s s[98:99]" % ("s_memrealtime" if "rt" in OPT else "s_memtime"))
            self.e("s_waitcnt lgkmcnt(0)")
            self.lg = []
            self.e("s_sub_u32 s98, s98, s96")
            self.e("v_writelane_b32 v0, s98, %d" % n)

    def dbg_end(self):
        if "hold2" in OPT:
            self.e("s_load_dwordx2 s[8:9], s[0:1], 120")
            self.e("s_waitcnt vmcnt(0) lgkmcnt(0)")
            self.e("s_mov_b32 s10, 256")
            self.e("s_mov_b32 s11, 0x20000")
            self.e("s_not_b32 s12, s94")
            self.e("v_mov_b32 v2, s12")
            self.e("v_mov_b32 v1, 0")
            self.e("s_mov_b64 exec, 1")
            self.e("s_cmp_lg_u32 s7, 0")
            self.e("s_cbranch_scc1 L_hold_a")
            self.e("buffer_atomic_umax v2, v1, s[8:11], 0 offen")
            self.lab("L_hold_a")
            self.e("s_sleep 4")
            self.e("s_memrealtime s[98:99]")
            self.e("s_waitcnt lgkmcnt(0)")
            self.e("s_sub_u32 s98, s98, s94")
            self.e("s_cmp_lt_u32 s98, 4000")
            self.e("s_cbranch_scc1 L_hold_a")
            self.e("buffer_load_dword v2, v1, s[8:11], 0 offen sc1")
            self.e("s_waitcnt vmcnt(0)")
            self.e("v_readfirstlane_b32 s94, v2")
            self.e("s_not_b32 s94, s94")
        if "hold" in OPT:
            self.lab("L_hold")
            self.e("s_sleep 4")
            self.e("s_memrealtime s[98:99]")
            self.e("s_waitcnt lgkmcnt(0)")
            self.e("s_sub_u32 s98, s98, s%d" % (96 if PAR["probe"] >= 0 else 94))
            self.e("s_cmp_lt_u32 s98, %d" % PAR["hold"])
            self.e("s_cbranch_scc1 L_hold")
        if "dbg" in OPT:
            self.e("s_waitcnt vmcnt(0)")
            self.e("s_memrealtime s[98:99]")
            self.e("s_memtime s[92:93]")
            self.e("s_load_dwordx2 s[8:9], s[0:1], 120")
            self.e("s_waitcnt lgkmcnt(0)")
            self.e("s_mov_b32 s10, 256")
            self.e("s_mov_b32 s11, 0x20000")
            self.e("s_not_b32 s94, s94")
            self.e("s_sub_u32 s92, s92, s96")
            self.e("v_mov_b32 v2, s94")
            self.e("v_mov_b32 v3, s98")
            self.e("v_mov_b32 v4, s92")
            self.e("v_mov_b32 v1, 0")
            self.e("s_cmp_lg_u32 s7, 0")
            self.e("s_cbranch_scc1 L_dbg_done")
            self.e("s_mov_b64 exec, 1")
            self.e("buffer_atomic_umax v2, v1, s[8:11], 0 offen")
            self.e("buffer_atomic_umax v3, v1, s[8:11], 0 offen offset:4")
            self.e("buffer_atomic_umax v4, v1, s[8:11], 0 offen offset:8")
            self.lab("L_dbg_done")

    def stamp_begin(self):
        if STAMP or "dbg" in OPT or "hold" in OPT:
            self.e("s_memrealtime s[94:95]")
            self.e("%s s[96:97]" % ("s_memrealtime" if "rt" in OPT else "s_memtime"))

    def fs_end(self):
        if STAMP:
            self.e("s_waitcnt vmcnt(0)")
            self.fs(61)
            self.e("s_memrealtime s[98:99]")
            self.e("s_waitcnt lgkmcnt(0)")
            self.e("v_writelane_b32 v0, s94, 62")
            self.e("v_writelane_b32 v0, s98, 63")
            self.e("s_add_u32 s8, s%d, 0x%x" % (sWS, ST_OFF))
            self.e("s_addc_u32 s9, s%d, 0" % (sWS + 1))
            self.e("s_mov_b32 s10, 0x80000")
            self.e("s_mov_b32 s11, 0x20000")
            self.e("s_lshl_b32 s6, s2, 11")
            self.e("s_lshl_b32 s12, s3, 8")
            self.e("s_add_u32 s6, s6, s12")
            self.e("v_lshlrev_b32 v1, 2, v1")
            self.e("buffer_store_dword v0, v1, s[8:11], s6 offen")

    def throttle(self, k):
        if len(self.vm) > k:
            self.e("s_waitcnt vmcnt(%d)" % k)
            self.vm = self.vm[len(self.vm) - k:] if k else []

    def vmi(self, tag, s, cold=False):
        self.throttle(self.thr)
        if cold and "nt" in OPT:
            s = s.replace(" lds", " nt lds") if s.endswith(" lds") else s + " nt"
        self.e(s)
        self.vm.append(tag)
        assert len(self.vm) <= 63, "too many vmem ops in flight"

    def vmw(self, tag, extra=""):
        idx = [i for i, t in enumerate(self.vm) if t == tag]
        if not idx:
            return None
        n = len(self.vm) - 1 - idx[-1]
        self.vm = self.vm[idx[-1] + 1:]
        self.e("s_waitcnt vmcnt(%d)%s" % (n, extra))
        return n

    def lgi(self, tag, s):
        self.e(s)
        self.lg.append(tag)

    def lgw(self, tag):
        idx = [i for i, t in enumerate(self.lg) if t == tag]
        if not idx:
            return
        n = len(self.lg) - 1 - idx[-1]
        self.lg = self.lg[idx[-1] + 1:]
        self.e("s_waitcnt lgkmcnt(%d)" % min(n, 15))

    def lgw0(self):
        if self.lg:
            self.e("s_waitcnt lgkmcnt(0)")
        self.lg = []


def stmod(pre="a"):
    return "".join(" " + m for m in ("sc0", "sc1", "nt") if pre + m in OPT)

def v(a, n=1):
    return "v%d" % a if n == 1 else "v[%d:%d]" % (a, a + n - 1)

def a(a_, n=1):
    return "a%d" % a_ if n == 1 else "a[%d:%d]" % (a_, a_ + n - 1)

def s(a_, n=1):
    return "s%d" % a_ if n == 1 else "s[%d:%d]" % (a_, a_ + n - 1)


def srd(A, d, base, nbytes, addlo=None):
    if addlo is None:
        A.e("s_mov_b32 s%d, s%d" % (d, base))
        A.e("s_mov_b32 s%d, s%d" % (d + 1, base + 1))
    else:
        A.e("s_add_u32 s%d, s%d, %s" % (d, base, addlo))
        A.e("s_addc_u32 s%d, s%d, 0" % (d + 1, base + 1))
    A.e("s_mov_b32 s%d, 0x%x" % (d + 2, nbytes))
    A.e("s_mov_b32 s%d, 0x20000" % (d + 3))


SLOT = 24576
NSLOT = 6
MISC = SLOT * NSLOT
K1_LDS = 163840
OOB = 0x40000000
LDS_CNT = MISC + 4096 + 8

ORD = [("P", c) for c in range(8)] + [("F", c) for c in range(8)]
LASTP = 7
def slot_of(n):
    return ((n % NSLOT) if n >= 8 else (4, 5, 0, 1)[n & 3]) * SLOT
PAR = dict(la=2, laf=4, nt=2, estep=9, cstep=10, hstep=14, cdelay=0, stgap=1, fd=5, sd=3, ffill=6, sfill=10, sfill2=14,
           rot=1, pf=1, cpf=1, pfc=13, pfw=15, ala=4, wla=4, urot=1, p2poll=13, chk2=15, fl2=3, slp=8, prio=0, hold=4000, pk=1, gam=0, lastbar=14, hsp=0, xstep=6, map=1, defF=0, defS=0, e0=3, pfw2=2, coeff=0, g0=46, spf=0, spf0=9, spfn=6, spfgap=2, mpf=-1, wpf=-1, tlb=0, thr=99, thr2=99, thrp=99, stag=0, sper=4, dyn=0, split=1, fgap=4, probe=-1)

sX, sLRE, sLIM, sBRE, sBIM, sCRE, sCIM, sLDT = 16, 18, 20, 22, 24, 26, 28, 30
sW1, sW3, sW2, sGW, sDS, sWS, sOUT = 32, 34, 36, 38, 40, 42, 84
rX, rBRE, rBIM, rW1, rW3, rAS, rE, rEP, rG, rFL = 44, 48, 52, 56, 60, 64, 68, 72, 76, 88


def swiglu_ops(A, acc, off, pk, defer=None):
    o = []
    if pk:
        for r in range(0, 8, 2):
            o.append("v_pk_mul_f32 %s, %s, %s" % (v(acc + 8 + r, 2), v(acc + r, 2), v(acc + 8 + r, 2)))
        for r in range(0, 8, 2):
            o.append("v_pk_mul_f32 %s, %s, s[80:81] op_sel_hi:[1,0]" % (v(acc + r, 2), v(acc + r, 2)))
        for r in range(8):
            o.append("v_exp_f32 %s, %s" % (v(acc + r), v(acc + r)))
        for r in range(0, 8, 2):
            o.append("v_pk_add_f32 %s, %s, 1.0 op_sel_hi:[1,0]" % (v(acc + r, 2), v(acc + r, 2)))
        for r in range(8):
            o.append("v_rcp_f32 %s, %s" % (v(acc + r), v(acc + r)))
        for r in range(0, 8, 2):
            o.append("v_pk_mul_f32 %s, %s, %s" % (v(acc + 8 + r, 2), v(acc + 8 + r, 2), v(acc + r, 2)))
        for q in range(4):
            o.append("v_cvt_pk_bf16_f32 %s, %s, %s" % (v(acc + q), v(acc + 8 + 2 * q), v(acc + 9 + 2 * q)))
        (o if defer is None else defer).append(lambda: A.vmi("st", "buffer_store_dwordx4 %s, v6, %s, s82 offen offset:%d%s" % (v(acc, 4), s(rAS, 4), off, stmod())))
        return o
    for r in range(8):
        o.append("v_mul_f32 %s, %s, %s" % (v(acc + 8 + r), v(acc + r), v(acc + 8 + r)))
    for r in range(8):
        o.append("v_mul_f32 %s, s80, %s" % (v(acc + r), v(acc + r)))
    for r in range(8):
        o.append("v_exp_f32 %s, %s" % (v(acc + r), v(acc + r)))
    for r in range(8):
        o.append("v_add_f32 %s, 1.0, %s" % (v(acc + r), v(acc + r)))
    for r in range(8):
        o.append("v_rcp_f32 %s, %s" % (v(acc + r), v(acc + r)))
    for r in range(8):
        o.append("v_mul_f32 %s, %s, %s" % (v(acc + 8 + r), v(acc + 8 + r), v(acc + r)))
    for q in range(4):
        o.append("v_cvt_pk_bf16_f32 %s, %s, %s" % (v(acc + q), v(acc + 8 + 2 * q), v(acc + 9 + 2 * q)))
    (o if defer is None else defer).append(lambda: A.vmi("st", "buffer_store_dwordx4 %s, v6, %s, s82 offen offset:%d%s" % (v(acc, 4), s(rAS, 4), off, stmod())))
    return o


class Stream:
    def __init__(self, A, items, NB, D, K):
        self.A, self.items, self.NB, self.D, self.K = A, items, NB, D, K
        self.nb = 0
        self.rp = 0
        self.fill = []
        self.fence = -1
        self.dyn = False
        self.hold = 0

    def ninstr(self):
        return self.A.ni

    def pop(self, k):
        while k > 0 and self.fill:
            f = self.fill[0]
            if isinstance(f, tuple):
                if f[0] == "gap":
                    self.fill.pop(0)
                    return
                if f[0] == "bar" and self.nb <= f[1]:
                    return
                if f[0] == "dist" and self.ninstr() - f[1] < 12:
                    return
                self.fill.pop(0)
                continue
            self.fill.pop(0)
            if isinstance(f, str):
                self.A.e(f)
            else:
                f()
            k -= 1

    def flush(self):
        while self.fill:
            f = self.fill[0]
            if isinstance(f, tuple):
                if f[0] in ("bar", "gap"):
                    assert f[0] == "gap" or self.nb > f[1]
                    self.fill.pop(0)
                    continue
                d = 12 - (self.ninstr() - f[1])
                if d > 0:
                    self.A.e("s_nop %d" % (d - 1))
                self.fill.pop(0)
                continue
            self.pop(1)

    def barrier(self, n):
        while self.nb <= n:
            b = self.nb
            self.pre(b)
            lim = b - 1 if b == PAR["lastbar"] else b - 2
            old = [t for t in self.A.lg if t[0] == "c" and int(t[1:].split("_")[0]) <= lim]
            if b <= PAR["lastbar"]:
                if old:
                    self.A.lgw(old[-1])
                self.A.e("s_barrier")
            self.nb += 1
            self.post(b)

    def reads(self, upto, force):
        while self.rp < min(upto, len(self.items)):
            it = self.items[self.rp]
            if not force and (it[0] > self.nb or (it[0] == self.fence and self.nb <= it[0])):
                return
            self.barrier(it[0])
            self.read(it, self.rp % self.NB, "c%d_%d" % (it[0], self.rp))
            self.rp += 1

    def run(self):
        for mp, it in enumerate(self.items):
            if self.rp <= mp:
                self.reads(mp + 1, True)
                self.reads(mp + 1 + self.D, False)
            self.A.lgw("c%d_%d" % (it[0], mp))
            self.mfma(it, mp % self.NB)
            self.after(it, mp)
            self.reads(min(mp + 1 + self.D, self.rp + 2), False)
            if self.dyn and self.fill:
                n0 = len(self.A.L)
                self.A.e("s_setprio 0")
                self.pop(self.K)
                if len(self.A.L) == n0 + 1:
                    self.A.L.pop(); self.A.ni -= 1
                else:
                    self.A.e("s_setprio 2")
            else:
                self.pop(self.K)
        self.barrier(15)


def mk_items(ORD, ntile, withP):
    NT = PAR["nt"]
    items = []
    for n in range(16 - NT):
        if ORD[n][0] == "P" and not withP:
            continue
        for ss in range(4):
            for ti in range(ntile):
                items.append((n, ss, ti))
    for t0 in range(0, ntile, 2):
        for n in range(16 - NT, 16):
            assert ORD[n][0] == "F"
            for ss in range(4):
                for ti in (t0, t0 + 1):
                    items.append((n, ss, ti))
    return items


def emit(A, ops):
    for x in ops:
        if isinstance(x, str):
            A.e(x)
        else:
            x()


def prologue(A):
    A.e("s_cmp_ge_u32 s2, 256")
    A.e("s_cbranch_scc1 L_end")
    A.stamp_begin()
    A.e("s_load_dwordx16 s[16:31], s[0:1], 0")
    A.e("s_load_dwordx8 s[32:39], s[0:1], 80")
    A.e("s_load_dwordx2 s[42:43], s[0:1], 128")
    A.e("s_load_dwordx2 s[40:41], s[0:1], 64")
    A.e("s_load_dwordx2 s[84:85], s[0:1], 112")
    A.e("v_lshrrev_b32 v2, 6, v0")
    A.e("v_and_b32 v1, 63, v0")
    A.e("v_readfirstlane_b32 s3, v2")
    if PAR["map"] == 0:
        A.e("s_bfe_u32 s4, s2, 0x20001")
        A.e("s_lshl_b32 s4, s4, 2")
        A.e("s_bfe_u32 s6, s2, 0x20003")
        A.e("s_add_u32 s4, s4, s6")
        A.e("s_and_b32 s5, s2, 1")
        A.e("s_lshl_b32 s5, s5, 3")
        A.e("s_lshr_b32 s6, s2, 5")
        A.e("s_add_u32 s5, s5, s6")
    else:
        A.e("s_bfe_u32 s4, s2, 0x10002")
        A.e("s_lshl_b32 s4, s4, 3")
        A.e("s_bfe_u32 s6, s2, 0x30003")
        A.e("s_add_u32 s4, s4, s6")
        A.e("s_and_b32 s5, s2, 3")
        A.e("s_lshl_b32 s5, s5, 2")
        A.e("s_lshr_b32 s6, s2, 6")
        A.e("s_add_u32 s5, s5, s6")
    A.e("s_and_b32 s7, s3, 3")
    A.e("v_and_b32 v8, 31, v1")
    A.e("v_lshrrev_b32 v9, 5, v1")
    A.e("s_lshl_b32 s8, s7, 12")
    if PAR["rot"]:
        A.e("s_add_u32 s15, s4, s5")
        A.e("s_and_b32 s15, s15, 1")
        if PAR["map"]:
            A.e("s_add_u32 s83, s4, s5")
        elif PAR["gam"]:
            A.e("s_sub_u32 s83, s4, s15")
            A.e("s_lshl_b32 s83, s83, 1")
        else:
            A.e("s_lshl_b32 s83, s4, 1")
        A.e("s_add_u32 s83, s83, s5")
    else:
        A.e("s_mov_b32 s83, 0")
    A.e("s_cmp_lt_u32 s3, 4")
    A.e("s_cbranch_scc1 L_S")


def tile_of(A, half, ct):
    if PAR["map"] == 0:
        A.e("s_and_b32 %s, s5, 1" % half)
        A.e("s_lshr_b32 %s, s5, 1" % ct)
    else:
        A.e("s_lshr_b32 %s, s5, 3" % ct)
        A.e("s_lshl_b32 %s, %s, 2" % (ct, ct))
        A.e("s_and_b32 %s, s5, 3" % half)
        A.e("s_add_u32 %s, %s, %s" % (ct, ct, half))
        A.e("s_bfe_u32 %s, s5, 0x10002" % half)


def common_late(A):
    A.e("s_mov_b32 s80, 0x%x" % f2u(-LOG2E))
    A.e("v_bfe_u32 v10, v1, 1, 3")
    A.e("v_xor_b32 v10, v10, v9")
    A.e("v_lshlrev_b32 v10, 4, v10")
    A.e("v_lshl_add_u32 v7, v8, 7, v10")
    A.e("v_bfe_u32 v10, v1, 4, 1")
    A.e("v_mul_u32_u24 v12, 3104, v10")
    A.e("v_lshlrev_b32 v11, 9, v9")
    A.e("v_add_u32 v12, v12, v11")
    A.e("v_bfe_u32 v11, v1, 2, 2")
    A.e("v_lshl_add_u32 v12, v11, 6, v12")
    A.e("v_and_b32 v11, 3, v1")
    A.e("v_lshl_add_u32 v12, v11, 3, v12")
    A.e("v_xor_b32 v13, 32, v12")
    A.e("v_lshlrev_b32 v6, 4, v1")
    A.e("s_lshl_b32 s6, s4, 2")
    A.e("s_add_u32 s6, s6, s7")
    A.e("s_mul_i32 s81, s6, %d" % (NKS * 1024))
    A.e("s_mul_i32 s6, s5, 6144")
    A.e("s_add_u32 s82, s81, s6")
    srd(A, rAS, sWS, A_BYTES)


def w_scalars(A):
    A.e("s_mul_i32 s10, s7, 6144")
    A.e("s_cmp_ge_u32 s5, 15")
    A.e("s_cselect_b32 s92, 0x%x, 0" % OOB)
    A.e("s_cmp_ge_u32 s5, 14")
    A.e("s_cselect_b32 s93, 0x%x, 0" % OOB)


def wdma_addr_ops(d1, d3, tmp):
    return ["v_lshrrev_b32 %s, 2, v1" % tmp, "s_lshl_b32 s6, s7, 4", "v_add_u32 %s, s6, %s" % (tmp, tmp),
            "v_mul_u32_u24 %s, 2752, %s" % (d1, tmp), "s_mul_i32 s6, s5, 192", "v_add_u32 %s, s6, %s" % (d1, d1),
            "v_and_b32 %s, 3, v1" % tmp, "v_lshl_add_u32 %s, %s, 4, %s" % (d1, tmp, d1), "v_xor_b32 %s, 32, %s" % (d3, d1)]


def dma_ops(A, n, w1, w3, mats=(0, 1)):
    kind, c = ORD[n]
    slot = slot_of(n)
    tag = "ch%d" % n
    ops = []
    def mk(pre, m0, ins):
        def f():
            for x in pre:
                A.e(x)
            A.e(m0)
            A.e("s_nop 0")
            A.vmi(tag, ins)
        return f
    if kind == "P":
        pre = ["s_add_u32 s11, s83, %d" % c, "s_and_b32 s11, s11, 7", "s_lshl_b32 s11, s11, 7", "s_add_u32 s12, s11, 8192"]
        for q in range(4):
            ops.append(mk(pre if q == 0 else [], "s_add_u32 m0, s8, %d" % (slot + 1024 * q),
                          "buffer_load_dwordx4 %s, %s, s%d offen lds" % ("v3" if q & 1 else "v2", s(rX, 4), 12 if q >= 2 else 11)))
        ops.append(mk([], "s_add_u32 m0, s9, %d" % (slot + 16384), "buffer_load_dwordx4 v4, %s, s11 offen lds" % s(rBRE, 4)))
        ops.append(mk([], "s_add_u32 m0, s9, %d" % (slot + 20480), "buffer_load_dwordx4 v4, %s, s11 offen lds" % s(rBIM, 4)))
    else:
        pre = ["s_add_u32 s11, s83, %d" % c, "s_and_b32 s11, s11, 7", "s_mul_i32 s11, s11, 176128",
               "s_add_u32 s12, s11, s93", "s_add_u32 s11, s11, s92"]
        for m in mats:
            for q in range(3):
                ops.append(mk(pre if m == mats[0] and q == 0 else [], "s_add_u32 m0, s10, %d" % (slot + m * 3072 + 1024 * q - 64 * q),
                              "buffer_load_dwordx4 %s, %s, s%d offen offset:%d lds" % (w3 if m else w1, s(rW3 if m else rW1, 4), 12 if q else 11, 64 * q)))
    return ops


P2_GROUPS = [("C", 0, 8), ("C", 8, 8), ("W", 0, 8), ("W", 8, 8), ("W", 16, 6)]
P2_SEQ = [(k, b, n, m) for (k, b, n) in P2_GROUPS for m in range(n)]
P2_SEQ.insert(12, ("X", 0, 1, 0))
NSSM = 17
NA, NW = 6, 14
WUNITS = [0, 1, 2, 18, 19] + list(range(3, 12))
def AU(n): return (12 + n % NA) * 8192
def WU(n): return WUNITS[n % NW] * 8192


def role_F(A):
    A.vm, A.lg = [], []
    A.thr = PAR["thrp"]
    ACC, FB = 64, 32
    LA = PAR["la"]
    if PAR["prio"] or PAR["dyn"]:
        A.e("s_setprio 1")
    A.e("v_lshrrev_b32 v10, 4, v1")
    A.e("v_and_b32 v11, 7, v1")
    A.e("v_xor_b32 v10, v10, v11")
    A.e("v_lshlrev_b32 v10, 4, v10")
    A.e("v_bfe_u32 v11, v1, 3, 2")
    A.e("v_lshl_add_u32 v2, v11, 10, v10")
    A.e("v_lshl_add_u32 v2, v9, 14, v2")
    A.e("s_lshl_b32 s6, s7, 15")
    A.e("v_add_u32 v2, s6, v2")
    A.e("v_xor_b32 v3, 64, v2")
    A.e("v_add_u32 v3, 4096, v3")
    A.e("s_lshl_b32 s9, s7, 10")
    A.e("s_and_b32 s6, s7, 1")
    A.e("s_lshl_b32 s6, s6, 6")
    A.e("v_xor_b32 v4, s6, v10")
    A.e("v_lshrrev_b32 v11, 3, v1")
    A.e("v_lshl_add_u32 v4, v11, 10, v4")
    A.e("s_lshl_b32 s6, s7, 13")
    A.e("v_add_u32 v4, s6, v4")
    emit(A, wdma_addr_ops("v5", "v16", "v10"))
    w_scalars(A)
    A.e("s_lshl_b32 s6, s4, 17")
    A.e("s_lshl_b32 s13, s5, 15")
    A.e("s_waitcnt lgkmcnt(0)")
    A.fs(52)
    srd(A, rW1, sW1, 512 * 2752)
    srd(A, rW3, sW3, 512 * 2752)
    if PAR["gam"]:
        assert LA == 2
        A.e("s_cmp_lg_u32 s15, 0")
        A.e("s_cbranch_scc1 L_F_now")
        emit(A, dma_ops(A, 8, "v5", "v16") + dma_ops(A, 9, "v5", "v16"))
        A.vm = []
        A.lab("L_F_now")
    srd(A, rX, sX, 131072, "s6")
    srd(A, rBRE, sBRE, 32768, "s13")
    srd(A, rBIM, sBIM, 32768, "s13")
    emit(A, dma_ops(A, 0, "v5", "v16"))
    A.fs(53)
    A.e("s_lshl_b32 s6, s5, 3")
    A.e("s_lshl_b32 s13, s7, 1")
    A.e("s_add_u32 s13, s13, s6")
    A.e("s_lshl_b32 s6, s13, 10")
    A.e("v_lshlrev_b32 v17, 4, v8")
    A.e("v_lshl_add_u32 v18, v9, 10, v17")
    A.e("v_add_u32 v18, s6, v18")
    A.vmi("g", "buffer_load_dwordx4 v[64:67], v18, %s, 0 offen" % s(rX, 4))
    A.vmi("g", "buffer_load_dwordx4 v[68:71], v18, %s, 0 offen offset:512" % s(rX, 4))
    A.vmi("g", "global_load_dwordx4 v[72:75], v17, %s" % s(sGW, 2))
    A.vmi("g", "global_load_dwordx4 v[76:79], v17, %s offset:512" % s(sGW, 2))
    emit(A, dma_ops(A, 1, "v5", "v16"))
    A.fs(54)
    common_late(A)
    srd(A, rG, sWS, 16384, "0x%x" % G_OFF)
    A.e("v_add_u32 v7, s8, v7")
    A.e("s_add_u32 s82, s82, %d" % (65536 + 2048))
    A.e("s_add_u32 s82, s82, s93")
    A.e("s_branch L_Fmain")
    A.fmain = len(A.L)
    A.lab("L_Fmain")

    def g_ops():
        o = [lambda: A.vmw("g"), "v_mov_b32 v84, 0"]
        for d in range(8):
            xx, ww = 64 + d, 72 + d
            o += ["v_lshlrev_b32 v80, 16, %s" % v(xx), "v_and_b32 v81, 0xffff0000, %s" % v(xx),
                  "v_lshlrev_b32 v82, 16, %s" % v(ww), "v_and_b32 v83, 0xffff0000, %s" % v(ww),
                  "v_mul_f32 v80, v80, v82", "v_mul_f32 v81, v81, v83", "v_cvt_pk_bf16_f32 v80, v80, v81",
                  "v_lshlrev_b32 v81, 16, v80", "v_and_b32 v80, 0xffff0000, v80",
                  "v_add_f32 v84, v84, v81", "v_add_f32 v84, v84, v80"]
        for sh in (1, 2, 4, 8):
            o += ["s_nop 1", "v_add_f32_dpp v84, v84, v84 row_shr:%d row_mask:0xf bank_mask:0xf bound_ctrl:0" % sh]
        o += ["s_nop 1", "v_add_f32_dpp v84, v84, v84 row_bcast:15 row_mask:0xa bank_mask:0xf",
              "v_cvt_pk_bf16_f32 v84, v84, v84", "v_and_b32 v84, 0xffff0000, v84", "v_mul_f32 v84, s80, v84",
              "v_exp_f32 v84, v84", "s_nop 0", "v_add_f32 v84, 1.0, v84", "v_rcp_f32 v84, v84", "s_nop 0",
              "v_cvt_pk_bf16_f32 v84, v84, v84", "v_and_b32 v84, 0xffff0000, v84",
              "v_sub_f32 v85, 1.0, v84", "v_cvt_pk_bf16_f32 v85, v85, v85", "v_and_b32 v85, 0xffff0000, v85"]
        return o

    def g_store():
        A.e("s_lshl_b32 s6, s4, 7")
        A.e("s_add_u32 s6, s6, s13")
        A.e("s_lshl_b32 s6, s6, 3")
        A.e("v_lshlrev_b32 v86, 3, v9")
        A.e("s_mov_b32 exec_lo, 0x80000000")
        A.e("s_mov_b32 exec_hi, 0x80000000")
        A.vmi("gst", "buffer_store_dwordx2 v[84:85], v86, %s, s6 offen%s" % (s(rG, 4), stmod()))
        A.e("s_mov_b64 exec, -1")

    gq = g_ops()
    rO = 68
    A.e("s_and_b32 s72, s7, 1")
    A.e("s_lshr_b32 s73, s7, 1")
    tile_of(A, "s6", "s74")
    A.e("s_lshl_b32 s75, s4, 1")
    A.e("s_add_u32 s75, s75, s6")
    A.e("s_lshl_b32 s75, s75, 1")
    A.e("s_add_u32 s75, s75, s72")
    A.e("s_lshl_b32 s75, s75, 16")
    A.e("s_lshl_b32 s74, s74, 1")
    A.e("s_add_u32 s74, s74, s73")
    A.e("s_lshl_b32 s74, s74, 7")
    A.e("s_add_u32 s75, s75, s74")
    A.e("v_lshlrev_b32 v20, 15, v9")
    A.e("v_lshl_add_u32 v20, v8, 2, v20")
    A.e("v_add_u32 v20, s75, v20")
    srd(A, rO, sOUT, 2048 * 2048)
    A.e("s_lshl_b32 s6, s72, 12")
    A.e("s_add_u32 s6, s6, %d" % AU(0))
    A.e("v_add_u32 v17, s6, v6")
    A.e("v_subrev_u32 v18, s8, v7")
    A.e("s_lshl_b32 s6, s73, 12")
    A.e("v_add_u32 v18, s6, v18")
    A.e("v_bfe_u32 v10, v1, 2, 2")
    A.e("v_lshlrev_b32 v19, 7, v10")
    A.e("v_lshl_add_u32 v19, v9, 9, v19")
    A.e("v_bfe_u32 v10, v1, 4, 1")
    A.e("v_lshl_add_u32 v19, v10, 5, v19")
    A.e("v_and_b32 v10, 3, v1")
    A.e("v_lshl_add_u32 v19, v10, 3, v19")
    A.e("v_bfe_u32 v10, v1, 3, 1")
    A.e("v_xor_b32 v10, s73, v10")
    A.e("v_lshl_add_u32 v19, v10, 6, v19")
    XN = [q for q, x in enumerate(P2_SEQ) if x[0] == "X"][0]
    A.e("s_lshl_b32 s6, s73, 6")
    A.e("v_lshl_add_u32 v23, v8, 1, s6")
    A.e("s_lshl_b32 s6, s72, 1")
    A.e("v_add_u32 v10, s6, v9")
    A.e("v_lshl_add_u32 v21, v10, 11, v23")
    A.e("v_add_u32 v21, %d, v21" % WU(XN))
    A.e("v_lshlrev_b32 v22, 7, v10")
    A.e("v_add_u32 v22, %d, v22" % AU(XN))
    A.e("v_add_u32 v23, %d, v23" % (AU(XN) + 1024))
    A.e("v_bfe_u32 v10, v1, 4, 1")
    A.e("v_mul_u32_u24 v11, 1152, v10")
    A.e("v_lshl_add_u32 v11, v9, 8, v11")
    A.e("v_bfe_u32 v10, v1, 2, 2")
    A.e("v_lshl_add_u32 v11, v10, 5, v11")
    A.e("v_and_b32 v10, 1, v1")
    A.e("v_lshl_add_u32 v11, v10, 4, v11")
    A.e("v_bfe_u32 v10, v1, 1, 1")
    A.e("v_lshl_add_u32 v11, v10, 3, v11")
    A.e("s_lshl_b32 s6, s72, 12")
    A.e("s_add_u32 s6, s6, %d" % AU(0))
    A.e("v_add_u32 v11, s6, v11")
    A.e("v_xor_b32 v10, 0x80, v11")

    tiles = [2, 3, 4, 5]
    S = Stream(A, mk_items(ORD, 4, False), 8, PAR["fd"], PAR["ffill"])
    late = []
    dq = []
    if PAR["split"]:
        for n in range(LASTP + LA + 1, 16):
            dq += [(n, f) for f in dma_ops(A, n, "v5", "v16", (1,))]

    def dma_upto(m, maxops=999):
        while dq and dq[0][0] <= m and maxops > 0:
            dq.pop(0)[1]()
            maxops -= 1

    def waddr(n):
        return ((14, 15), (28, 29), (30, 31))[n % 3]

    def pre(b):
        kind, c = ORD[b]
        slot = slot_of(b)
        if b == LASTP + 1:
            emit(A, gq)
            g_store()
        dma_upto(min(b - 1 + LA, 15) if b != PAR["lastbar"] else 15)
        if b == 10:
            A.vmw("gst")
        if b == PAR["lastbar"]:
            A.vmw("ch15")
        if kind == "P":
            A.e("v_add_u32 v24, %d, v7" % slot)
            A.e("v_xor_b32 v25, 32, v24")
            A.e("v_xor_b32 v26, 64, v24")
            A.e("v_xor_b32 v27, 0x60, v24")
        else:
            A.e("v_add_u32 v%d, %d, v12" % (waddr(b)[0], slot))
            A.e("v_add_u32 v%d, %d, v13" % (waddr(b)[1], slot))
        A.fs2(20 + b)
        A.vmw("ch%d" % b)
        if PAR["gam"] and b == 7:
            A.e("s_cmp_lg_u32 s15, 0")
            A.e("s_cbranch_scc1 L_F_w7")
            A.e("s_waitcnt vmcnt(0)")
            A.lab("L_F_w7")
        A.fs2(36 + b)

    def post(b):
        kind, c = ORD[b]
        A.fs(b)
        if kind == "P":
            for ss in range(4):
                A.lgi("c%d_x" % b, "ds_read_b128 %s, %s" % (a(16 * c + 4 * ss, 4), v(24 + ss)))
            for n in range(2, 16):
                if (n == b + LA) or (b == 0 and n < LA):
                    if PAR["gam"] and n >= 8:
                        A.e("s_cmp_eq_u32 s15, 0")
                        A.e("s_cbranch_scc1 L_F_skip%d" % n)
                    emit(A, dma_ops(A, n, "v5", "v16"))
                    if PAR["gam"] and n >= 8:
                        A.lab("L_F_skip%d" % n)
            if b == 0:
                emit(A, gq[:PAR["g0"]])
                del gq[:PAR["g0"]]

    def read(it, sl, tag):
        n, ss, ti = it
        T = tiles[ti]
        for nn in range(2):
            A.lgi(tag, "ds_read_b64_tr_b16 %s, v%d offset:%d" % (v(FB + 4 * sl + 2 * nn, 2), waddr(n)[T & 1],
                                                                ss * 6144 + (T >> 1) * 1024 + nn * 256))

    def mfma(it, sl):
        n, ss, ti = it
        c = ORD[n][1]
        first = (c == 0 and ss == 0)
        A.e("v_mfma_f32_32x32x16_bf16 %s, %s, %s, %s" % (v(ACC + 16 * ti, 16), v(FB + 4 * sl, 4), a(16 * c + 4 * ss, 4),
                                                        "0" if first else v(ACC + 16 * ti, 16)))

    def after(it, mp):
        n, ss, ti = it
        if n == 15 and ss == 3:
            S.fill.append(("dist", S.ninstr()))
            S.fill += swiglu_ops(A, ACC + 16 * ti, 1024 * ti, PAR["pk"] and ti >= 2, late if ti >= 4 - PAR["defF"] else None)
        if mp % PAR["fgap"] == 0:
            dma_upto(S.nb - 1 + PAR["laf"], 1)

    S.pre, S.post, S.read, S.mfma, S.after = pre, post, read, mfma, after
    S.run()
    A.fs(16)
    S.flush()
    A.fs(19)

    N = len(P2_SEQ)
    ACCB, ACCA, GV, XV = 32, 48, 64, 96
    A.lg = []

    def addr(n):
        if P2_SEQ[n][0] == "W":
            A.e("v_add_u32 v24, %d, v19" % WU(n))
        elif P2_SEQ[n][0] == "C":
            A.e("v_add_u32 v24, %d, v18" % WU(n))
            A.e("v_xor_b32 v25, 32, v24")
            A.e("v_xor_b32 v26, 64, v24")
            A.e("v_xor_b32 v27, 0x60, v24")

    def reads2(n, ss):
        fb = 32 * (n & 1)
        tg = "r%d_%d" % (n, ss)
        if P2_SEQ[n][0] == "X":
            for q in (2 * ss, 2 * ss + 1):
                A.lgi(tg, "ds_read_b128 %s, v22 offset:%d" % (v(GV + 4 * q, 4), 16 * q))
            for r in range(4 * ss, 4 * ss + 4):
                A.lgi(tg, "ds_read_u16 %s, v21 offset:%d" % (v(XV + r), 128 * r))
            if ss == 3:
                A.lgi(tg, "ds_read_u16 v16, v23")
            return
        if P2_SEQ[n][0] == "W":
            A.lgi(tg, "ds_read_b128 %s, v17 offset:%d" % (a(fb + 4 * ss, 4), AU(n) - AU(0) + 1024 * ss))
        else:
            for nn in range(2):
                A.lgi(tg, "ds_read_b64_tr_b16 %s, %s offset:%d" % (a(fb + 4 * ss + 2 * nn, 2), "v10" if nn else "v11",
                                                                  AU(n) - AU(0) + 2048 * (ss >> 1) + 512 * (ss & 1)))
        if P2_SEQ[n][0] == "W":
            for nn in range(2):
                A.lgi(tg, "ds_read_b64_tr_b16 %s, v24 offset:%d" % (a(fb + 16 + 4 * ss + 2 * nn, 2), 2048 * ss + 1024 * nn))
        else:
            A.lgi(tg, "ds_read_b128 %s, %s" % (a(fb + 16 + 4 * ss, 4), v(24 + ss)))

    def mfma2(n, ss):
        kind, base, ln, m = P2_SEQ[n]
        fb = 32 * (n & 1)
        A.lgw("r%d_%d" % (n, ss))
        if kind == "X":
            return
        acc = v(ACCB if kind == "W" else ACCA, 16)
        first = (base == 0 and m == 0 and ss == 0)
        A.e("v_mfma_f32_32x32x16_bf16 %s, %s, %s, %s" % (acc, a(fb + 4 * ss, 4), a(fb + 16 + 4 * ss, 4), "0" if first else acc))

    def xd(q):
        if q == 0:
            A.e("v_lshlrev_b32 v16, 16, v16")
        r0, r1 = 2 * q, 2 * q + 1
        A.e("v_lshlrev_b32 %s, 16, %s" % (v(XV + r0), v(XV + r0)))
        A.e("v_lshlrev_b32 %s, 16, %s" % (v(XV + r1), v(XV + r1)))
        A.e("v_mul_f32 %s, %s, v16" % (v(XV + r0), v(XV + r0)))
        A.e("v_mul_f32 %s, %s, v16" % (v(XV + r1), v(XV + r1)))
        A.e("v_cvt_pk_bf16_f32 %s, %s, %s" % (v(XV + r0), v(XV + r0), v(XV + r1)))
        A.e("v_and_b32 %s, 0xffff0000, %s" % (v(XV + r1), v(XV + r0)))
        A.e("v_lshlrev_b32 %s, 16, %s" % (v(XV + r0), v(XV + r0)))

    def fold(q):
        for r in range(4 * q, 4 * q + 4):
            A.e("v_add_f32 %s, %s, %s" % (v(ACCA + r), v(ACCA + r), v(XV + r)))
        for r in range(4 * q, 4 * q + 4):
            A.e("v_mul_f32 %s, %s, %s" % (v(ACCA + r), v(GV + 2 * r), v(ACCA + r)))

    assert PAR["fl2"] <= XN
    for n in range(N):
        addr(n)
        if n == PAR["fl2"]:
            assert not late
            A.e("s_waitcnt vmcnt(0)")
        A.e("s_barrier")
        if "hold" in OPT:
            A.fs(100 + n)
        for ss in range(4):
            if n >= 1:
                mfma2(n - 1, ss)
            reads2(n, ss)
        if late and not PAR["stag"]:
            late.pop(0)()
        elif late:
            sp = PAR["sper"]
            A.e("s_and_b32 s6, s7, %d" % (sp - 1))
            A.e("s_cmp_lg_u32 s6, %d" % (n % sp))
            A.e("s_cbranch_scc1 L_F_st%d" % n)
            A.cond = True
            late[0]()
            A.cond = False
            A.lab("L_F_st%d" % n)
            if n % sp == sp - 1:
                late.pop(0)
        if 20 <= n < 28:
            xd(n - 20)
        if 28 <= n < 32:
            fold(n - 28)
    for ss in range(4):
        mfma2(N - 1, ss)
    A.fs(59)
    A.e("s_nop 7")
    A.e("s_nop 3")
    for q in range(8):
        A.e("v_cvt_pk_bf16_f32 %s, %s, %s" % (v(XV + q), v(ACCB + 2 * q), v(ACCB + 2 * q + 1)))
    for q in range(8):
        A.e("v_lshlrev_b32 %s, 16, %s" % (v(ACCB + 2 * q), v(XV + q)))
        A.e("v_and_b32 %s, 0xffff0000, %s" % (v(ACCB + 2 * q + 1), v(XV + q)))
    for r in range(16):
        A.e("v_mul_f32 %s, %s, %s" % (v(ACCB + r), v(GV + 2 * r + 1), v(ACCB + r)))
    for q in range(8):
        A.e("v_cvt_pk_bf16_f32 %s, %s, %s" % (v(XV + q), v(ACCB + 2 * q), v(ACCB + 2 * q + 1)))
    for q in range(8):
        A.e("v_lshlrev_b32 %s, 16, %s" % (v(ACCB + 2 * q), v(XV + q)))
        A.e("v_and_b32 %s, 0xffff0000, %s" % (v(ACCB + 2 * q + 1), v(XV + q)))
        A.e("s_movk_i32 s6, %d" % (4096 * q))
        for r in (2 * q, 2 * q + 1):
            A.e("v_add_f32 %s, %s, %s" % (v(ACCB + r), v(ACCB + r), v(ACCA + r)))
            A.e("buffer_store_dword %s, v20, %s, s6 offen offset:%d%s" % (v(ACCB + r), s(rO, 4), 2048 * (r & 1), stmod("o")))
    A.fs(60)
    A.fs_end()
    A.dbg_end()
    A.e("s_endpgm")


def cpow(A, n_scale, dre, dim, t0, t1, va, vb):
    if n_scale == 1.0:
        A.e("v_exp_f32 %s, %s" % (t0, va))
        A.e("v_fract_f32 %s, %s" % (t1, vb))
    else:
        ns = n_scale if isinstance(n_scale, str) else "0x%x" % f2u(n_scale)
        A.e("v_mul_f32 %s, %s, %s" % (t0, ns, va))
        A.e("v_mul_f32 %s, %s, %s" % (t1, ns, vb))
        A.e("v_exp_f32 %s, %s" % (t0, t0))
        A.e("v_fract_f32 %s, %s" % (t1, t1))
    A.e("v_cos_f32 %s, %s" % (dre, t1))
    A.e("v_sin_f32 %s, %s" % (dim, t1))
    A.e("s_nop 0")
    A.e("v_mul_f32 %s, %s, %s" % (dre, dre, t0))
    A.e("v_mul_f32 %s, %s, %s" % (dim, dim, t0))


def cfma_ops(dr, di, mr, mi, xr, xi, ar, ai):
    return ["v_fma_f32 %s, %s, %s, %s" % (dr, mr, xr, ar),
            "v_fma_f32 %s, %s, %s, %s" % (di, mr, xi, ai),
            "v_fma_f32 %s, -%s, %s, %s" % (dr, mi, xi, dr),
            "v_fma_f32 %s, %s, %s, %s" % (di, mi, xr, di)]


def lane0_store(A, cond, val, srd_, soff, off, vt, vz, L):
    for x in cond:
        A.e(x)
    A.e("s_cbranch_scc1 " + L)
    A.cond = True
    A.e("v_mov_b32 %s, %s" % (vt, val))
    A.e("v_mov_b32 %s, 0" % vz)
    A.e("s_mov_b64 exec, 1")
    A.e("buffer_store_dword %s, %s, %s, %s offen offset:%d sc1" % (vt, vz, s(srd_, 4), soff, off))
    A.e("s_mov_b64 exec, -1")
    A.cond = False
    A.lab(L)


def role_S(A):
    A.vm, A.lg = [], []
    A.thr = 99
    A.lab("L_S")
    LR, LI, NLI = "v16", "v17", "v5"
    L16R, L16I, QR, QI, L256R, L256I = "v18", "v19", "v20", "v21", "v22", "v23"
    CR, CI, PR, PI = "v2", "v3", "v10", "v11"
    ER, EI, SR, SI = "v56", "v57", "v58", "v59"
    RE, IM, ACC, FB = 64, 80, 96, 32
    A.e("s_lshl_b32 s6, s5, 6")
    A.e("v_lshlrev_b32 v4, 1, v8")
    A.e("v_add_u32 v4, s6, v4")
    A.e("s_lshl_b32 s6, s5, 7")
    A.e("s_add_u32 s6, s6, 0x%x" % EP_OFF)
    A.e("v_mov_b32 v55, 0")
    if PAR["cpf"]:
        A.e("s_getpc_b64 s[44:45]")
        A.lab("L_pc")
        A.e("s_sub_u32 s44, s44, L_pc - %s_kernel" % NAME)
        A.e("s_subb_u32 s45, s45, 0")
        A.e("s_mov_b32 s46, L_code_end - %s_kernel" % NAME)
        A.e("s_mov_b32 s47, 0x20000")
        A.e("s_lshr_b32 s9, s2, 3")
        A.e("s_lshl_b32 s9, s9, 2")
        A.e("s_add_u32 s9, s9, s7")
        A.e("s_lshl_b32 s9, s9, 8")
        A.e("v_lshlrev_b32 v53, 7, v1")
        A.e("s_mov_b64 exec, 3")
        A.vmi("par", "buffer_load_dword v52, v53, s[44:47], s9 offen")
        A.e("s_mov_b64 exec, -1")
    A.e("s_waitcnt lgkmcnt(0)")
    A.vmi("par", "global_load_ushort v60, v4, %s" % s(sLRE, 2))
    A.vmi("par", "global_load_ushort v61, v4, %s" % s(sLIM, 2))
    A.vmi("par", "global_load_ushort v62, v4, %s" % s(sLDT, 2))
    srd(A, rEP, sWS, 4, "s6")
    A.vmi("par", "buffer_load_dword v54, v55, %s, 0 offen sc1" % s(rEP, 4))
    A.e("s_lshl_b32 s6, s4, 7")
    A.e("s_add_u32 s6, s6, 0x%x" % EPR_OFF)
    srd(A, rG, sWS, 4, "s6")
    A.vmi("par", "buffer_load_dword v56, v55, %s, 0 offen sc1" % s(rG, 4))
    if PAR["tlb"]:
        A.e("s_cmp_lg_u32 s7, 0")
        A.e("s_cbranch_scc1 L_S_notlb")
        A.e("v_lshlrev_b32 v53, 21, v1")
        A.e("s_mov_b64 exec, 1")
        for ptr in (sW1, sW3, sW2, sCRE, sCIM, sDS):
            A.e("global_load_dword v52, v55, %s" % s(ptr, 2))
        A.e("s_mov_b64 exec, 3")
        A.e("global_load_dword v52, v53, %s" % s(sOUT, 2))
        A.e("s_mov_b64 exec, 31")
        A.e("global_load_dword v52, v53, %s" % s(sWS, 2))
        A.e("s_mov_b64 exec, -1")
        A.lab("L_S_notlb")
    common_late(A)
    w_scalars(A)
    srd(A, rW1, sW1, 512 * 2752)
    srd(A, rW3, sW3, 512 * 2752)
    A.e("s_lshl_b32 s6, s5, 13")
    A.e("s_add_u32 s6, s6, 0x%x" % E_OFF)
    srd(A, rE, sWS, 8192, "s6")
    A.e("s_lshl_b32 s6, s4, 9")
    A.e("s_add_u32 s6, s6, 0x%x" % FL_OFF)
    srd(A, rFL, sWS, 512, "s6")
    A.e("s_lshl_b32 s87, s5, 2")
    rCRE, rCIM, rW2, rA2 = 48, 52, 44, 56
    srd(A, rCRE, sCRE, 524288)
    srd(A, rCIM, sCIM, 524288)
    A.e("s_add_u32 s82, s82, 65536")
    A.e("s_add_u32 s82, s82, s92")
    A.e("s_lshl_b32 s100, s5, 11")
    A.e("s_add_u32 s100, s100, s81")
    A.e("s_add_u32 s101, s100, 32768")
    A.e("v_lshlrev_b32 v4, 3, v0")
    A.e("v_add_u32 v4, %d, v4" % (MISC + 2048))
    A.e("v_mov_b32 v48, 0")
    A.e("v_mov_b32 v49, 0")
    A.e("ds_write_b64 v4, v[48:49]")
    A.e("ds_write_b32 v4, v48 offset:2048")
    A.e("s_lshl_b32 s6, s7, 1")
    A.e("v_add_u32 v63, s6, v9")
    A.e("v_sub_u32 v4, 7, v63")
    A.e("v_lshlrev_b32 v4, 8, v4")
    A.e("v_lshl_add_u32 v4, v8, 3, v4")
    A.e("v_add_u32 v4, %d, v4" % MISC)
    A.e("v_lshlrev_b32 v63, 4, v63")
    A.e("v_cvt_f32_u32 v63, v63")
    A.e("s_lshl_b32 s6, s7, 9")
    A.e("v_lshlrev_b32 v57, 7, v9")
    A.e("v_add_u32 v57, s6, v57")
    A.e("v_cvt_f32_u32 v57, v57")
    A.vmw("par", " lgkmcnt(0)")
    srd(A, rW2, sW2, 1376 * 1024)
    A.e("v_readfirstlane_b32 s14, v54")
    A.e("v_readfirstlane_b32 s86, v56")
    A.e("s_add_u32 s14, s14, 1")
    A.e("s_bitset1_b32 s14, 31")
    A.e("s_add_u32 s86, s86, 1")
    A.e("s_bitset1_b32 s86, 31")
    A.e("v_lshlrev_b32 v60, 16, v60")
    A.e("v_lshlrev_b32 v61, 16, v61")
    A.e("v_lshlrev_b32 v62, 16, v62")
    A.e("v_mul_f32 v62, 0x%x, v62" % f2u(LOG2E))
    A.e("v_exp_f32 v62, v62")
    A.e("s_nop 0")
    A.e("v_cvt_pk_bf16_f32 v62, v62, v62")
    A.e("v_and_b32 v62, 0xffff0000, v62")
    A.e("v_mul_f32 v50, v62, v60")
    A.e("v_mul_f32 v51, v62, v61")
    A.e("v_mul_f32 v50, 0x%x, v50" % f2u(LOG2E))
    A.e("v_mul_f32 v51, 0x%x, v51" % f2u(INV2PI))
    cpow(A, 1.0, LR, LI, "v52", "v53", "v50", "v51")
    cpow(A, 16.0, L16R, L16I, "v52", "v53", "v50", "v51")
    cpow(A, "v57", QR, QI, "v52", "v53", "v50", "v51")
    cpow(A, 256.0, L256R, L256I, "v52", "v53", "v50", "v51")
    cpow(A, "v63", PR, PI, "v52", "v53", "v50", "v51")
    A.e("v_sub_f32 %s, 0, %s" % (NLI, LI))
    A.e("v_mul_f32 v52, v60, v60")
    A.e("v_fmac_f32 v52, v61, v61")
    A.e("v_rcp_f32 v52, v52")
    A.e("v_add_f32 v53, -1.0, %s" % LR)
    A.e("v_mul_f32 %s, v53, v60" % CR)
    A.e("v_fmac_f32 %s, %s, v61" % (CR, LI))
    A.e("v_mul_f32 %s, %s, v60" % (CI, LI))
    A.e("v_fma_f32 %s, -v53, v61, %s" % (CI, CI))
    A.e("v_add_f32 v52, v52, v52")
    A.e("v_mul_f32 %s, %s, v52" % (CR, CR))
    A.e("v_mul_f32 %s, %s, v52" % (CI, CI))
    emit(A, ["v_lshlrev_b32 v54, 5, v8", "v_lshl_add_u32 v54, v9, 4, v54", "v_xor_b32 v55, 0x80, v54"])
    emit(A, ["s_lshl_b32 s6, s7, 2", "s_sub_u32 s6, s6, s4", "s_add_u32 s6, s6, 16",
             "v_add_u32 v62, s6, v9", "v_lshlrev_b32 v60, 9, v62", "v_lshl_add_u32 v60, v8, 4, v60",
             "v_sub_u32 v62, 17, v62", "v_and_b32 v62, -2, v62", "v_max_i32 v62, 0, v62", "v_min_i32 v62, 4, v62",
             "v_lshlrev_b32 v63, 3, v8", "v_add_u32 v63, %d, v63" % (MISC + 8192),
             "s_lshl_b32 s6, s7, 9", "v_lshl_add_u32 v61, v9, 8, v63", "v_add_u32 v61, s6, v61"])

    tiles = [0, 1]
    LA, LAF = PAR["la"], PAR["laf"]
    assert LA <= LAF <= 4
    assert LASTP + 1 <= PAR["estep"] <= PAR["cstep"] and PAR["cstep"] + 1 <= PAR["lastbar"] and PAR["cstep"] + 1 < PAR["hstep"] <= 15 and PAR["lastbar"] >= 13
    S = Stream(A, mk_items(ORD, 2, True), 4, PAR["sd"], PAR["sfill"])
    S.fence = LASTP + 1
    if PAR["dyn"]:
        S.dyn = True
        A.e("s_setprio 2")
    late = []
    dq = []
    for n in range(LASTP + LA + 1, 16):
        dq += [(n, f) for f in dma_ops(A, n, "v4", "v7", (0,) if PAR["split"] else (0, 1))]

    def dma_upto(m, maxops=999):
        while dq and dq[0][0] <= m and maxops > 0:
            dq.pop(0)[1]()
            maxops -= 1

    def ssm_publish():
        A.e("s_nop 7")
        A.e("s_nop 3")
        cur = (v(RE), v(IM))
        tmp = [("v48", "v49"), ("v50", "v51")]
        for r in range(1, 16):
            d = (ER, EI) if r == 15 else tmp[r & 1]
            emit(A, cfma_ops(d[0], d[1], LR, LI, cur[0], cur[1], v(RE + r), v(IM + r)))
            cur = d
        A.e("ds_write_b64 v4, v[56:57]")
        A.e("v_mov_b32 v48, %d" % (MISC + 4096))
        A.e("v_mov_b32 v49, 1")
        A.e("s_mov_b64 exec, 1")
        A.e("ds_add_u32 v48, v49")
        A.e("s_mov_b64 exec, -1")
        A.e("s_mov_b32 s13, 0")
        A.lab("L_S_sync")
        A.e("ds_read_b32 v49, v48")
        A.e("s_add_u32 s13, s13, 1")
        A.e("s_waitcnt lgkmcnt(0)")
        A.e("v_readfirstlane_b32 s6, v49")
        A.e("s_cmp_lt_u32 s13, 0x100000")
        A.e("s_cselect_b32 s6, s6, 4")
        A.e("s_cmp_lt_u32 s6, 4")
        A.e("s_cbranch_scc1 L_S_sync")
        A.lg = []
        er = lambda m: (24 + 2 * m if m < 4 else 32 + 2 * (m - 4))
        for m in range(6, -1, -1):
            A.lgi("er%d" % m, "ds_read_b64 %s, v4 offset:%d" % (v(er(m), 2), 256 * (m + 1)))
        cur = (v(er(6)), v(er(6) + 1))
        for m in range(5, -1, -1):
            d = (SR, SI) if m == 0 else tmp[m & 1]
            A.lgw("er%d" % m)
            emit(A, cfma_ops(d[0], d[1], L16R, L16I, cur[0], cur[1], v(er(m)), v(er(m) + 1)))
            cur = d
        A.e("s_cmp_lg_u32 s7, 3")
        A.e("s_cbranch_scc1 L_S_nopub")
        A.cond = True
        emit(A, cfma_ops("v24", "v26", L16R, L16I, SR, SI, ER, EI))
        A.e("v_mov_b32 v25, s14")
        A.e("v_mov_b32 v27, s14")
        A.e("s_sub_u32 s6, 15, s4")
        A.e("s_lshl_b32 s6, s6, 9")
        A.e("v_lshlrev_b32 v28, 4, v8")
        A.e("s_mov_b32 exec_lo, 0")
        A.e("buffer_store_dwordx4 v[24:27], v28, %s, s6 offen sc1" % s(rE, 4))
        A.e("s_mov_b64 exec, -1")
        A.cond = False
        A.lab("L_S_nopub")
        A.fs(56)
        emit(A, wdma_addr_ops("v4", "v7", "v48"))
        for r in range(16):
            t = "v%d" % (48 + (r & 3))
            S.fill += ["v_mul_f32 %s, %s, %s" % (t, CI, v(RE + r)), "v_mul_f32 %s, %s, %s" % (v(RE + r), CR, v(RE + r)),
                       "v_fma_f32 %s, -%s, %s, %s" % (v(RE + r), CI, v(IM + r), v(RE + r)), "v_fma_f32 %s, %s, %s, %s" % (v(IM + r), CR, v(IM + r), t)]
        if not PAR["coeff"]:
            S.flush()

    def e_issue(tag=None):
        for m in range(2):
            x = "buffer_load_dwordx4 %s, v60, %s, 0 offen offset:%d sc1" % (v(24 + 4 * m, 4), s(rE, 4), 1024 * m)
            if tag:
                A.vmi(tag, x)
            else:
                A.e(x)

    def e_check():
        A.fs(17)
        A.e("s_mov_b32 s13, 0")
        A.vmw("e")
        A.lab("L_S_poll")
        A.e("v_mov_b32 v48, 0")
        for q in range(4):
            A.e("v_cmp_eq_u32 s[%d:%d], s14, %s" % (18 + 2 * q, 19 + 2 * q, v(25 + 2 * q)))
        for q in range(4):
            A.e("v_addc_co_u32 v48, vcc, 0, v48, s[%d:%d]" % (18 + 2 * q, 19 + 2 * q))
        A.e("v_cmp_ne_u32 vcc, v62, v48")
        A.e("s_cbranch_vccz L_S_ready")
        A.cond = True
        A.e("s_sleep 2")
        e_issue()
        A.e("s_add_u32 s13, s13, 1")
        A.e("s_cmp_lt_u32 s13, 0x20000")
        A.e("s_waitcnt vmcnt(0)")
        A.e("s_cbranch_scc1 L_S_poll")
        A.cond = False
        A.lab("L_S_ready")
        emit(A, cfma_ops("v48", "v49", L256R, L256I, "v28", "v30", "v24", "v26"))
        A.e("v_mul_f32 v50, %s, v48" % QR)
        A.e("v_mul_f32 v51, %s, v49" % QR)
        A.e("v_fma_f32 v50, -%s, v49, v50" % QI)
        A.e("v_fmac_f32 v51, %s, v48" % QI)
        A.lgi("pw", "ds_write_b64 v61, v[50:51]")
        A.fs(18)

    def scan_ops():
        o = []
        pr = [24, 26, 28, 30, 48, 50, 52, 56]
        def prd():
            for q in range(8):
                A.lgi("pr", "ds_read_b64 %s, v63 offset:%d" % (v(pr[q], 2), 256 * q))
        bump = lambda: lane0_store(A, ["s_lshl_b32 s6, s7, 4", "s_add_u32 s6, s6, s4", "s_cmp_lg_u32 s6, 15"], "s14", rEP, "0", 0, "v60", "v61", "L_S_noep")
        o += [prd, bump, lambda: A.lgw("pr")]
        for (x, y) in ((0, 1), (2, 3), (4, 5), (6, 7), (0, 2), (4, 6), (4, 0)):
            o.append("v_add_f32 %s, %s, %s" % (v(pr[x]), v(pr[x]), v(pr[y])))
            o.append("v_add_f32 %s, %s, %s" % (v(pr[x] + 1), v(pr[x] + 1), v(pr[y] + 1)))
        o += cfma_ops("v50", "v51", PR, PI, "v48", "v49", SR, SI)
        o += ["v_mul_f32 v48, %s, v50" % CR, "v_mul_f32 v49, %s, v51" % CR, "v_fma_f32 v48, -%s, v51, v48" % CI, "v_fmac_f32 v49, %s, v50" % CI]
        cur = ("v48", "v49")
        for r in range(16):
            o.append("v_fmac_f32 %s, %s, %s" % (v(RE + r), LR, cur[0]))
            o.append("v_fmac_f32 %s, %s, %s" % (v(IM + r), LR, cur[1]))
            o.append("v_fmac_f32 %s, %s, %s" % (v(RE + r), NLI, cur[1]))
            o.append("v_fmac_f32 %s, %s, %s" % (v(IM + r), LI, cur[0]))
            cur = (v(RE + r), v(IM + r))
        for q in range(8):
            o.append("v_cvt_pk_bf16_f32 %s, %s, %s" % (v(RE + q), v(RE + 2 * q), v(RE + 2 * q + 1)))
        for q in range(8):
            o.append("v_cvt_pk_bf16_f32 %s, -%s, -%s" % (v(IM + q), v(IM + 2 * q), v(IM + 2 * q + 1)))
        def st(ks):
            A.vmi("hst", "buffer_store_dwordx4 %s, %s, %s, s%d offen offset:%d%s" % (v((RE, RE + 4, IM, IM + 4)[ks], 4), "v55" if ks & 1 else "v54", s(rAS, 4),
                                                                                   101 if ks >= 2 else 100, 1024 * (ks & 1), stmod()))
            if ks == 3:
                A.fs(19)
        for ks in range(4):
            o.append(lambda ks=ks: st(ks))
            o += [("gap",)] * PAR["stgap"]
        return o

    def prefetch_c():
        A.e("s_lshr_b32 s13, s5, 3")
        A.e("s_lshl_b32 s13, s13, 18")
        A.e("s_lshr_b32 s6, s2, 3")
        A.e("s_lshl_b32 s6, s6, 13")
        A.e("s_add_u32 s13, s13, s6")
        A.e("s_lshl_b32 s6, s7, 11")
        A.e("s_add_u32 s13, s13, s6")
        A.e("v_lshlrev_b32 v18, 7, v1")
        A.e("s_mov_b64 exec, 0xffff")
        A.vmi("pf", "buffer_load_dword v19, v18, %s, s13 offen" % s(rCRE, 4))
        A.vmi("pf", "buffer_load_dword v19, v18, %s, s13 offen" % s(rCIM, 4))
        A.e("s_mov_b64 exec, -1")

    def prefetch_w2():
        A.e("s_lshr_b32 s6, s2, 3")
        A.e("s_mul_i32 s15, s6, 43")
        A.e("s_mul_i32 s6, s7, 11")
        A.e("s_add_u32 s15, s15, s6")
        A.e("s_lshl_b32 s15, s15, 1")
        A.e("s_lshr_b32 s6, s5, 3")
        A.e("s_add_u32 s15, s15, s6")
        A.e("s_lshl_b32 s15, s15, 9")
        A.e("v_lshrrev_b32 v18, 2, v1")
        A.e("v_lshlrev_b32 v18, 3, v18")
        A.e("v_and_or_b32 v18, v1, 3, v18")
        A.e("v_lshlrev_b32 v18, 7, v18")
        A.e("s_mov_b32 exec_hi, 0xfff")
        A.vmi("pf", "buffer_load_dword v19, v18, %s, s15 offen" % s(rW2, 4))
        A.e("s_mov_b64 exec, -1")

    def spf_setup():
        n_ = PAR["spfn"]
        A.e("s_lshr_b32 s6, s2, 3")
        A.e("s_mul_i32 s30, s6, %d" % ((255 + n_) // n_))
        A.e("s_lshr_b32 s30, s30, 8")
        A.e("s_mul_i32 s30, s30, %d" % n_)
        A.e("s_sub_u32 s30, s6, s30")
        A.e("s_lshr_b32 s9, s5, 3")
        A.e("s_lshl_b32 s9, s9, 18")
        A.e("s_lshl_b32 s15, s6, 13")
        A.e("s_add_u32 s9, s9, s15")
        A.e("s_lshl_b32 s15, s7, 11")
        A.e("s_add_u32 s9, s9, s15")
        A.e("s_mul_i32 s15, s6, 43")
        A.e("s_mul_i32 s6, s7, 11")
        A.e("s_add_u32 s15, s15, s6")
        A.e("s_lshl_b32 s15, s15, 1")
        A.e("s_lshr_b32 s6, s5, 3")
        A.e("s_add_u32 s15, s15, s6")
        A.e("s_lshl_b32 s15, s15, 9")

    def spf_site(q, va='v18', vd='v19'):
        def f():
            A.e("s_cmp_lg_u32 s30, %d" % q)
            A.e("s_cbranch_scc1 L_spf%d" % q)
            A.cond = True
            A.e(("v_lshlrev_b32 v18, 7, v1").replace("v18", va).replace("v19", vd))
            A.e("s_mov_b64 exec, 0xffff")
            A.e(("buffer_load_dword v19, v18, %s, s9 offen" % s(rCRE, 4)).replace("v18", va).replace("v19", vd))
            A.e(("buffer_load_dword v19, v18, %s, s9 offen" % s(rCIM, 4)).replace("v18", va).replace("v19", vd))
            A.e("s_mov_b64 exec, -1")
            A.e(("v_lshrrev_b32 v18, 2, v1").replace("v18", va).replace("v19", vd))
            A.e(("v_lshlrev_b32 v18, 3, v18").replace("v18", va).replace("v19", vd))
            A.e(("v_and_or_b32 v18, v1, 3, v18").replace("v18", va).replace("v19", vd))
            A.e(("v_lshlrev_b32 v18, 7, v18").replace("v18", va).replace("v19", vd))
            A.e("s_mov_b32 exec_hi, 0xfff")
            A.e(("buffer_load_dword v19, v18, %s, s15 offen" % s(rW2, 4)).replace("v18", va).replace("v19", vd))
            A.e("s_mov_b64 exec, -1")
            A.cond = False
            A.lab("L_spf%d" % q)
        return f

    def warm_w():
        A.e("s_and_b32 s6, s83, 7")
        A.e("s_lshl_b32 s6, s6, 2")
        A.e("s_add_u32 s6, s6, s7")
        A.e("s_mul_i32 s6, s6, %d" % (16 * 2752))
        A.e("s_mul_i32 s13, s5, 192")
        A.e("s_add_u32 s6, s6, s13")
        A.e("s_add_u32 s6, s6, s92")
        A.e("v_lshrrev_b32 v52, 1, v8")
        A.e("v_mul_u32_u24 v52, 2752, v52")
        A.e("v_and_b32 v53, 1, v1")
        A.e("v_lshl_add_u32 v52, v53, 7, v52")
        A.e("s_mov_b32 exec_hi, 0")
        A.e("s_bitcmp1_b32 s4, 3")
        A.e("s_cbranch_scc1 L_ww3")
        A.e("buffer_load_dword v53, v52, %s, s6 offen" % s(rW1, 4))
        A.e("s_branch L_ww")
        A.lab("L_ww3")
        A.e("buffer_load_dword v53, v52, %s, s6 offen" % s(rW3, 4))
        A.lab("L_ww")
        A.e("s_mov_b64 exec, -1")

    if PAR["spf"] or PAR["mpf"] >= 0:
        spf_setup()
    if PAR["mpf"] >= 0:
        A.e("s_bfe_u32 s6, s2, 0x10002")
        A.e("s_lshl_b32 s6, s6, 1")
        A.e("s_and_b32 s30, s2, 1")
        A.e("s_add_u32 s30, s30, s6")
        A.e("s_sub_u32 s30, s30, s7")
    if PAR["pf"] and not PAR["spf"]:
        dq.append((PAR["pfc"] + LAF, prefetch_c))
        if PAR["pfw"] <= 15:
            dq.append((PAR["pfw"] + LAF, prefetch_w2))

    def pre(b):
        kind, c = ORD[b]
        slot = slot_of(b)
        if b == 0 and PAR["wpf"] == 99:
            warm_w()
        if b == 0 and PAR["mpf"] == 99:
            spf_site(0, "v52", "v53")()
        if b == LASTP + 1:
            ssm_publish()
            A.thr = PAR["thr"]
        if b == PAR["cstep"] + 1:
            S.flush()
            A.lgw("pw")
        if b == PAR["cstep"] + 2:
            assert "pr" not in A.lg
        dma_upto(min(b - 1 + LA, 15) if b != PAR["lastbar"] else 15)
        if kind == "P":
            A.e("v_add_u32 v28, %d, v7" % slot)
            A.e("v_xor_b32 v29, 32, v28")
            A.e("v_xor_b32 v30, 64, v28")
            A.e("v_xor_b32 v31, 0x60, v28")
            for q in range(4):
                A.e("v_add_u32 %s, s8, %s" % (v(24 + q), v(28 + q)))
        else:
            A.e("v_add_u32 v14, %d, v12" % slot)
            A.e("v_add_u32 v15, %d, v13" % slot)
        A.fs2(20 + b)
        A.vmw("ch%d" % (b if b != PAR["lastbar"] else 15))
        A.fs2(36 + b)

    def hflag():
        assert "hst" in A.vm or True
        A.vmw("hst")
        A.e("v_mov_b32 v24, %d" % (LDS_CNT))
        A.e("v_mov_b32 v25, 1")
        A.e("s_mov_b64 exec, 1")
        A.lgi("hc", "ds_add_rtn_u32 v26, v24, v25")
        A.e("s_mov_b64 exec, -1")

    def hflag2():
        A.lgw("hc")
        A.e("v_readfirstlane_b32 s6, v26")
        lane0_store(A, ["s_cmp_lg_u32 s6, 3"], "s86", rFL, "s87", 0, "v24", "v25", "L_S_nofl")
        A.fs(57)

    def post(b):
        A.fs(b)
        if b == PAR["wpf"]:
            warm_w()
        if b == PAR["mpf"]:
            spf_site(0, "v52", "v53")()
        if PAR["spf"] and 0 <= b - PAR["spf0"] < PAR["spfn"]:
            spf_site(b - PAR["spf0"])()
        if b == PAR["estep"]:
            e_issue("e")
        if b == PAR["cstep"]:
            S.fill += [("gap",)] * PAR["cdelay"] + [e_check]
        if b == PAR["cstep"] + 1:
            S.fill += scan_ops()
            S.K = PAR["sfill2"]
        if b == PAR["hstep"]:
            S.fill += [hflag, ("gap",), hflag2]

    def read(it, sl, tag):
        n, ss, ti = it
        kind, c = ORD[n]
        if kind == "P":
            if ti == 0:
                A.lgi(tag, "ds_read_b128 %s, %s" % (a(16 * c + 4 * ss, 4), v(24 + ss)))
            A.lgi(tag, "ds_read_b128 %s, %s offset:%d" % (v(FB + 4 * sl, 4), v(28 + ss), 16384 + 4096 * ti))
        else:
            T = tiles[ti]
            for nn in range(2):
                A.lgi(tag, "ds_read_b64_tr_b16 %s, v%d offset:%d" % (v(FB + 4 * sl + 2 * nn, 2), 14 + (T & 1),
                                                                    ss * 6144 + (T >> 1) * 1024 + nn * 256))

    def mfma(it, sl):
        n, ss, ti = it
        kind, c = ORD[n]
        first = (c == 0 and ss == 0)
        if kind == "P":
            d = (RE, IM)[ti]
            A.e("v_mfma_f32_32x32x16_bf16 %s, %s, %s, %s" % (v(d, 16), a(16 * c + 4 * ss, 4), v(FB + 4 * sl, 4), "0" if first else v(d, 16)))
        else:
            d = ACC + 16 * ti
            A.e("v_mfma_f32_32x32x16_bf16 %s, %s, %s, %s" % (v(d, 16), v(FB + 4 * sl, 4), a(16 * c + 4 * ss, 4), "0" if first else v(d, 16)))

    def after(it, mp):
        n, ss, ti = it
        if n == 15 and ss == 3:
            S.fill.append(("dist", S.ninstr()))
            S.fill += swiglu_ops(A, ACC + 16 * ti, 1024 * ti, False, late if ti >= 2 - PAR["defS"] else None)
        if n > LASTP and (not PAR["split"] or mp % 2 == 0):
            dma_upto(S.nb - 1 + LAF, 1)

    S.pre, S.post, S.read, S.mfma, S.after = pre, post, read, mfma, after
    S.run()
    assert not dq
    A.fs(16)
    A.e("v_and_b32 v17, 15, v1")
    A.e("v_lshlrev_b32 v17, 2, v17")
    if PAR["dyn"] == 1:
        A.e("s_setprio 0")
    S.flush()
    if PAR["dyn"]:
        A.e("s_setprio 2")
    A.vmi("poll", "buffer_load_dword v16, v17, %s, 0 offen sc1" % s(rFL, 4))
    A.fs(58)

    A.thr = PAR["thr2"]
    N = len(P2_SEQ)
    LA2 = PAR["ala"]
    assert LA2 <= NA - 2
    tile_of(A, "s11", "s10")
    A.e("s_and_b32 s13, s10, 3")
    A.e("s_lshl_b32 s13, s13, 1")
    if PAR["urot"] and PAR["map"]:
        A.e("s_add_u32 s13, s13, s4")
        A.e("s_and_b32 s13, s13, 7")
    elif PAR["urot"]:
        A.e("s_add_u32 s13, s13, s11")
        A.e("s_lshl_b32 s6, s4, 1")
        A.e("s_add_u32 s13, s13, s6")
        A.e("s_and_b32 s13, s13, 7")
    A.e("s_sub_u32 s14, s13, 6")
    A.e("s_cmp_ge_u32 s13, 6")
    A.e("s_cselect_b32 s14, s14, s13")
    A.e("s_lshl_b32 s9, s7, 11")
    A.e("v_and_b32 v11, 7, v1")
    A.e("v_lshrrev_b32 v22, 3, v1")
    A.e("v_lshrrev_b32 v10, 4, v1")
    A.e("v_xor_b32 v10, v10, v11")
    A.e("v_lshlrev_b32 v10, 4, v10")
    A.e("v_lshl_add_u32 v4, v22, 10, v10")
    A.e("s_lshl_b32 s6, s7, 14")
    A.e("s_lshl_b32 s12, s10, 16")
    A.e("s_add_u32 s12, s12, s6")
    A.e("v_add_u32 v4, s12, v4")
    A.e("v_xor_b32 v5, 64, v4")
    A.e("v_add_u32 v5, 8192, v5")

    def idx(n):
        kind, base, ln, m = P2_SEQ[n]
        if ln == 8:
            A.e("s_add_u32 s12, s13, %d" % m)
            A.e("s_and_b32 s12, s12, 7")
        else:
            A.e("s_add_u32 s12, s14, %d" % m)
            A.e("s_sub_u32 s6, s12, 6")
            A.e("s_cmp_ge_u32 s12, 6")
            A.e("s_cselect_b32 s12, s6, s12")

    def dma_w(n):
        kind, base, ln, m = P2_SEQ[n]
        if kind == "X":
            srd(A, rE, sX, 2048 * 1024)
            A.e("s_lshl_b32 s6, s4, 1")
            A.e("s_add_u32 s6, s6, s11")
            A.e("s_lshl_b32 s6, s6, 2")
            A.e("s_add_u32 s6, s6, s7")
            A.e("s_lshl_b32 s6, s6, 14")
            A.e("s_lshl_b32 s12, s10, 7")
            A.e("s_add_u32 s12, s12, s6")
            A.e("v_and_b32 v10, 7, v1")
            A.e("v_lshlrev_b32 v10, 4, v10")
            A.e("v_lshl_add_u32 v10, v22, 10, v10")
            A.e("s_add_u32 m0, s9, %d" % WU(n))
            A.e("s_add_u32 s6, s12, 8192")
            A.vmi("w%d" % n, "buffer_load_dwordx4 v10, %s, s12 offen lds" % s(rE, 4))
            A.e("s_add_u32 m0, s9, %d" % (WU(n) + 1024))
            A.e("s_nop 0")
            A.vmi("w%d" % n, "buffer_load_dwordx4 v10, %s, s6 offen lds" % s(rE, 4))
            return
        idx(n)
        if "whot" in OPT:
            kind, base = "C", 0
        if kind == "W":
            A.e("s_lshl_b32 s12, s12, 16")
            if base:
                A.e("s_add_u32 s12, s12, %d" % (base * 65536))
            r_, va, vb = rW2, "v3", "v7"
        else:
            A.e("s_lshl_b32 s12, s12, 7")
            r_, va, vb = (rCIM if base else rCRE), "v4", "v5"
        A.e("s_add_u32 m0, s9, %d" % WU(n))
        A.e("s_nop 0")
        A.vmi("w%d" % n, "buffer_load_dwordx4 %s, %s, s12 offen lds" % (va, s(r_, 4)))
        A.e("s_add_u32 m0, s9, %d" % (WU(n) + 1024))
        A.e("s_nop 0")
        A.vmi("w%d" % n, "buffer_load_dwordx4 %s, %s, s12 offen lds" % (vb, s(r_, 4)))

    def dma_a(n):
        kind, base, ln, m = P2_SEQ[n]
        if kind == "X":
            srd(A, rEP, sWS, 16384, "0x%x" % G_OFF)
            A.e("s_lshl_b32 s12, s4, 1")
            A.e("s_add_u32 s12, s12, s11")
            A.e("s_lshl_b32 s12, s12, 9")
            A.e("s_mov_b32 m0, %d" % AU(n))
            A.e("s_mov_b32 exec_hi, 0")
            A.vmi("a%d" % n, "buffer_load_dwordx4 v6, %s, s12 offen sc1 lds" % s(rEP, 4))
            srd(A, rEP, sDS, 1024)
            A.e("s_lshl_b32 s12, s10, 7")
            A.e("s_mov_b32 m0, %d" % (AU(n) + 1024))
            A.e("s_mov_b64 exec, 0xff")
            A.vmi("a%d" % n, "buffer_load_dwordx4 v6, %s, s12 offen lds" % s(rEP, 4))
            A.e("s_mov_b64 exec, -1")
            return
        idx(n)
        A.e("s_lshl_b32 s12, s12, 12")
        off = (64 + 4 * base) * 1024 if kind == "W" else 4 * base * 1024
        if "ahot" in OPT:
            off = 0
        if off:
            A.e("s_add_u32 s12, s12, %d" % off)
        A.e("s_add_u32 m0, s8, %d" % AU(n))
        A.e("s_nop 0")
        A.vmi("a%d" % n, "buffer_load_dwordx4 v2, %s, s12 offen sc1 lds" % s(rA2, 4))
        A.vmi("a%d" % n, "buffer_load_dwordx4 v2, %s, s12 offen offset:1024 sc1 lds" % s(rA2, 4))

    def check(tag, off, L):
        A.e("s_mov_b32 s15, 0")
        A.vmw(tag)
        A.lab(L + "_poll")
        A.e("v_cmp_ne_u32 vcc, s86, v16")
        A.e("s_cbranch_vccz %s_go" % L)
        A.e("s_sleep %d" % PAR["slp"])
        A.e("buffer_load_dword v16, v17, %s, 0 offen offset:%d sc1" % (s(rFL, 4), off))
        A.e("s_add_u32 s15, s15, 1")
        A.e("s_cmp_lt_u32 s15, 0x20000")
        A.e("s_waitcnt vmcnt(0)")
        A.e("s_cbranch_scc1 %s_poll" % L)
        A.lab(L + "_go")

    NW0 = 5 + 3 * (min(PAR["lastbar"], 16 - PAR["nt"]) - 13)
    for n in range(2):
        dma_w(n)
    A.e("s_and_b32 s12, s7, 1")
    A.e("s_lshr_b32 s15, s7, 1")
    A.e("s_lshl_b32 s15, s15, 11")
    A.e("v_add_u32 v2, s15, v6")
    A.e("s_lshl_b32 s8, s12, 12")
    A.e("s_add_u32 s8, s8, s15")
    A.e("s_lshl_b32 s6, s4, 1")
    A.e("s_add_u32 s6, s6, s11")
    A.e("s_lshl_b32 s6, s6, 1")
    A.e("s_add_u32 s6, s6, s12")
    A.e("s_mul_i32 s6, s6, %d" % (NKS * 1024))
    srd(A, rA2, sWS, NKS * 1024, "s6")
    A.e("v_bfe_u32 v10, v1, 4, 1")
    A.e("v_lshlrev_b32 v10, 2, v10")
    A.e("v_xor_b32 v10, v10, v11")
    A.e("v_lshlrev_b32 v10, 4, v10")
    A.e("v_lshl_add_u32 v3, v22, 10, v10")
    A.e("s_lshl_b32 s6, s7, 14")
    A.e("s_lshl_b32 s12, s10, 7")
    A.e("s_add_u32 s12, s12, s6")
    A.e("v_add_u32 v3, s12, v3")
    A.e("v_add_u32 v7, 8192, v3")
    check("poll", 0, "L_p2a")
    A.fs(55)
    E0 = PAR["e0"]
    assert E0 <= min(NA, NW0)
    for n in range(E0):
        dma_a(n)
        if n >= 2:
            dma_w(n)
    wn, an = max(E0, 2), E0
    for n in range(N):
        A.vmw("w%d" % n)
        A.vmw("a%d" % n)
        if n == PAR["fl2"]:
            assert not late
            A.vmw("st")
        A.e("s_barrier")
        A.fs(20 + n) if n < 35 else None
        if n == PAR["fl2"]:
            lane0_store(A, ["s_cmp_lg_u32 s3, 0"], "s86", rFL, "s87", 256, "v10", "v11", "L_p2_nofl")
        if n == PAR["chk2"]:
            check("poll2", 256, "L_p2b")
            lane0_store(A, ["s_lshl_b32 s6, s5, 2", "s_add_u32 s6, s6, s7", "s_cmp_lg_u32 s6, 0"], "s86", rG, "0", 0, "v10", "v11", "L_p2_noep")
        if n == PAR["p2poll"]:
            A.vmi("poll2", "buffer_load_dword v16, v17, %s, 0 offen offset:256 sc1" % s(rFL, 4))
        budget = 3 if (n == PAR["chk2"] or n < 4) else 2
        while budget > 0:
            a_ok = an < N and an <= n + LA2 and (an < NSSM or n >= PAR["chk2"])
            w_ok = wn < N and wn - NW <= n - 2
            if w_ok and (wn < an or not a_ok):
                if not a_ok and wn > n + PAR["wla"] and not (an == NSSM and n < PAR["chk2"]):
                    break
                dma_w(wn); wn += 1
            elif a_ok:
                dma_a(an); an += 1
            else:
                break
            budget -= 1
        if late and n >= 1 and n % 2 == 1:
            late.pop(0)()
        if PAR["pf"] and not PAR["spf"] and PAR["pfw"] > 15 and n == PAR["pfw2"]:
            prefetch_w2()
        assert (an > n + 1 or an == N) and (wn > n + 1 or wn == N)
    assert an == N and wn == N
    A.fs_end()
    A.e("s_endpgm")


def gen_all(A):
    K = NAME + "_kernel"
    A.L.append(".globl %s\n.p2align 8\n.type %s,@function\n%s:" % (K, K, K))
    prologue(A)
    role_F(A)
    fm = A.L[A.fmain:]
    del A.L[A.fmain:]
    role_S(A)
    A.L += fm
    A.lab("L_end")
    A.e("s_endpgm")
    A.lab("L_code_end")


def kd(name, nv, acc, ns=102):
    return """.amdhsa_kernel %s
  .amdhsa_next_free_vgpr %d
  .amdhsa_next_free_sgpr %d
  .amdhsa_accum_offset %d
  .amdhsa_group_segment_fixed_size 0
  .amdhsa_kernarg_size 136
  .amdhsa_user_sgpr_count 2
  .amdhsa_user_sgpr_kernarg_segment_ptr 1
  .amdhsa_system_sgpr_workgroup_id_x 1
.end_amdhsa_kernel
""" % (name, nv, ns, acc)


def main(path):
    ref = open("cdna_kernels/%s.s.ref" % NAME).read().splitlines()
    head = [l for l in ref if l.startswith(";") and "@launch" not in l and "Override launch" not in l and "grid=ceil" not in l]
    head = head[:18]
    A = Asm()
    gen_all(A)
    out = head + [
        "; @launch grid=(256,1,1) block=(512,1,1) lds=%d" % K1_LDS,
        '.amdgcn_target "amdgcn-amd-amdhsa--gfx950"', ".text"] + A.L + [
        '.section .rodata,"a"', ".p2align 6", kd(NAME + "_kernel", 256, 128)]
    open(path, "w").write("\n".join(out))


if __name__ == "__main__":
    if "--stamp" in sys.argv:
        STAMP = True
        sys.argv.remove("--stamp")
    for x in list(sys.argv):
        if x.startswith("-O"):
            OPT.add(x[2:]); sys.argv.remove(x)
        elif x.startswith("-P"):
            kk, vv = x[2:].split("=")
            PAR[kk] = vv if kk.startswith("ord") else int(vv)
            sys.argv.remove(x)
    main(sys.argv[1] if len(sys.argv) > 1 else "cdna_kernels/%s.s" % NAME)
```

```python
import sys, struct

NAME = "gated_mix__ssm_conv_s5__glu_gated_swiglu__prompt"

def f2u(x):
    return struct.unpack("<I", struct.pack("<f", x))[0]

LOG2E = 1.4426950408889634
INV2PI = 0.15915494309189535

NKS = 150
A_BYTES = 64 * NKS * 1024
E_OFF = 0xA00000
G_OFF = 0xA20000
EP_OFF = 0xA30000


EPR_OFF = 0xA31000
FL_OFF = 0xA40000

STAMP = False
OPT = {"asc0", "asc1", "osc0", "osc1"}
ST_OFF = 0xB00000

class Asm:
    def __init__(self):
        self.L = []
        self.ni = 0
        self.cond = False
        self.thr = 99
        self.vm = []
        self.lg = []

    def e(self, s):
        if "nomfma" in OPT and s.startswith("v_mfma"):
            s = "s_nop 0"
        if "nolds" in OPT and s.startswith("ds_read"):
            s = "s_nop 0"
        if "nohst" in OPT and s.startswith("buffer_store_dwordx4") and ("s100" in s or "s101" in s):
            s = "s_nop 0"
        if "noHst" in OPT and s.startswith("buffer_store_dwordx4") and ("s82" in s or "s87" in s):
            s = "s_nop 0"
        if "noout" in OPT and s.startswith("buffer_store_dword ") and "v20," in s:
            s = "s_nop 0"
        if "notw" in OPT and s.startswith("ds_write_b128"):
            s = "s_nop 0"
        if "noscan" in OPT and s.startswith("v_fmac_f32"):
            return
        if "m16" in OPT and s.startswith("v_mfma_f32_32x32x16"):
            import re as _re
            m_ = _re.match(r"v_mfma_f32_32x32x16_bf16 v\[(\d+):\d+\], (\S+), (\S+), (\S+)", s)
            d_ = int(m_.group(1)); self.m16 = getattr(self, "m16", 0) + 1
            for q_ in range(2):
                dd = d_ + 4 * (2 * ((self.m16 >> 2) & 1) + q_)
                self.L.append("  v_mfma_f32_16x16x32_bf16 v[%d:%d], %s, %s, %s" % (dd, dd + 3, m_.group(2), m_.group(3), "0" if m_.group(4) == "0" else "v[%d:%d]" % (dd, dd + 3)))
                self.ni += 1
            return
        self.L.append("  " + s)
        if not self.cond:
            self.ni += 1

    def c(self, s):
        pass

    def lab(self, s):
        self.L.append(s + ":")

    def fs2(self, n):
        if "vw" in OPT:
            self.fs(n, True)

    def fs(self, n, vw=False):
        if "hold" in OPT and n == PAR["probe"]:
            self.e("s_memrealtime s[96:97]")
            return
        if "vw" in OPT and not vw and 20 <= n < 55:
            return
        if "so" in OPT and n != 61:
            return
        if STAMP and ("light" not in OPT or n in (0, 7, 9, 13, 15, 16, 19, 20, 36, 55, 58, 59, 61)):
            self.e("%s s[98:99]" % ("s_memrealtime" if "rt" in OPT else "s_memtime"))
            self.e("s_waitcnt lgkmcnt(0)")
            self.lg = []
            self.e("s_sub_u32 s98, s98, s96")
            self.e("v_writelane_b32 v0, s98, %d" % n)

    def dbg_end(self):
        if "hold2" in OPT:
            self.e("s_load_dwordx2 s[8:9], s[0:1], 120")
            self.e("s_waitcnt vmcnt(0) lgkmcnt(0)")
            self.e("s_mov_b32 s10, 256")
            self.e("s_mov_b32 s11, 0x20000")
            self.e("s_not_b32 s12, s94")
            self.e("v_mov_b32 v2, s12")
            self.e("v_mov_b32 v1, 0")
            self.e("s_mov_b64 exec, 1")
            self.e("s_cmp_lg_u32 s7, 0")
            self.e("s_cbranch_scc1 L_hold_a")
            self.e("buffer_atomic_umax v2, v1, s[8:11], 0 offen")
            self.lab("L_hold_a")
            self.e("s_sleep 4")
            self.e("s_memrealtime s[98:99]")
            self.e("s_waitcnt lgkmcnt(0)")
            self.e("s_sub_u32 s98, s98, s94")
            self.e("s_cmp_lt_u32 s98, 4000")
            self.e("s_cbranch_scc1 L_hold_a")
            self.e("buffer_load_dword v2, v1, s[8:11], 0 offen sc1")
            self.e("s_waitcnt vmcnt(0)")
            self.e("v_readfirstlane_b32 s94, v2")
            self.e("s_not_b32 s94, s94")
        if "hold" in OPT:
            self.lab("L_hold")
            self.e("s_sleep 4")
            self.e("s_memrealtime s[98:99]")
            self.e("s_waitcnt lgkmcnt(0)")
            self.e("s_sub_u32 s98, s98, s%d" % (96 if PAR["probe"] >= 0 else 94))
            self.e("s_cmp_lt_u32 s98, %d" % PAR["hold"])
            self.e("s_cbranch_scc1 L_hold")
        if "dbg" in OPT:
            self.e("s_waitcnt vmcnt(0)")
            self.e("s_memrealtime s[98:99]")
            self.e("s_memtime s[92:93]")
            self.e("s_load_dwordx2 s[8:9], s[0:1], 120")
            self.e("s_waitcnt lgkmcnt(0)")
            self.e("s_mov_b32 s10, 256")
            self.e("s_mov_b32 s11, 0x20000")
            self.e("s_not_b32 s94, s94")
            self.e("s_sub_u32 s92, s92, s96")
            self.e("v_mov_b32 v2, s94")
            self.e("v_mov_b32 v3, s98")
            self.e("v_mov_b32 v4, s92")
            self.e("v_mov_b32 v1, 0")
            self.e("s_cmp_lg_u32 s7, 0")
            self.e("s_cbranch_scc1 L_dbg_done")
            self.e("s_mov_b64 exec, 1")
            self.e("buffer_atomic_umax v2, v1, s[8:11], 0 offen")
            self.e("buffer_atomic_umax v3, v1, s[8:11], 0 offen offset:4")
            self.e("buffer_atomic_umax v4, v1, s[8:11], 0 offen offset:8")
            self.lab("L_dbg_done")

    def stamp_begin(self):
        if STAMP or "dbg" in OPT or "hold" in OPT:
            self.e("s_memrealtime s[94:95]")
            self.e("%s s[96:97]" % ("s_memrealtime" if "rt" in OPT else "s_memtime"))

    def fs_end(self):
        if STAMP:
            self.e("s_waitcnt vmcnt(0)")
            self.fs(61)
            self.e("s_memrealtime s[98:99]")
            self.e("s_waitcnt lgkmcnt(0)")
            self.e("v_writelane_b32 v0, s94, 62")
            self.e("v_writelane_b32 v0, s98, 63")
            self.e("s_add_u32 s8, s%d, 0x%x" % (sWS, ST_OFF))
            self.e("s_addc_u32 s9, s%d, 0" % (sWS + 1))
            self.e("s_mov_b32 s10, 0x80000")
            self.e("s_mov_b32 s11, 0x20000")
            self.e("s_lshl_b32 s6, s2, 11")
            self.e("s_lshl_b32 s12, s3, 8")
            self.e("s_add_u32 s6, s6, s12")
            self.e("v_lshlrev_b32 v1, 2, v1")
            self.e("buffer_store_dword v0, v1, s[8:11], s6 offen")

    def throttle(self, k):
        if len(self.vm) > k:
            self.e("s_waitcnt vmcnt(%d)" % k)
            self.vm = self.vm[len(self.vm) - k:] if k else []

    def vmi(self, tag, s, cold=False):
        self.throttle(self.thr)
        if cold and "nt" in OPT:
            s = s.replace(" lds", " nt lds") if s.endswith(" lds") else s + " nt"
        self.e(s)
        self.vm.append(tag)
        assert len(self.vm) <= 63, "too many vmem ops in flight"

    def vmw(self, tag, extra=""):
        idx = [i for i, t in enumerate(self.vm) if t == tag]
        if not idx:
            return None
        n = len(self.vm) - 1 - idx[-1]
        self.vm = self.vm[idx[-1] + 1:]
        self.e("s_waitcnt vmcnt(%d)%s" % (n, extra))
        return n

    def lgi(self, tag, s):
        self.e(s)
        self.lg.append(tag)

    def lgw(self, tag):
        idx = [i for i, t in enumerate(self.lg) if t == tag]
        if not idx:
            return
        n = len(self.lg) - 1 - idx[-1]
        self.lg = self.lg[idx[-1] + 1:]
        self.e("s_waitcnt lgkmcnt(%d)" % min(n, 15))

    def lgw0(self):
        if self.lg:
            self.e("s_waitcnt lgkmcnt(0)")
        self.lg = []


def stmod(pre="a"):
    return "".join(" " + m for m in ("sc0", "sc1", "nt") if pre + m in OPT)

def v(a, n=1):
    return "v%d" % a if n == 1 else "v[%d:%d]" % (a, a + n - 1)

def a(a_, n=1):
    return "a%d" % a_ if n == 1 else "a[%d:%d]" % (a_, a_ + n - 1)

def s(a_, n=1):
    return "s%d" % a_ if n == 1 else "s[%d:%d]" % (a_, a_ + n - 1)


def srd(A, d, base, nbytes, addlo=None):
    if addlo is None:
        A.e("s_mov_b32 s%d, s%d" % (d, base))
        A.e("s_mov_b32 s%d, s%d" % (d + 1, base + 1))
    else:
        A.e("s_add_u32 s%d, s%d, %s" % (d, base, addlo))
        A.e("s_addc_u32 s%d, s%d, 0" % (d + 1, base + 1))
    A.e("s_mov_b32 s%d, 0x%x" % (d + 2, nbytes))
    A.e("s_mov_b32 s%d, 0x20000" % (d + 3))


SLOT = 24576
NSLOT = 6
MISC = SLOT * NSLOT
K1_LDS = 163840
OOB = 0x40000000
LDS_CNT = MISC + 4096 + 8

ORD = [("P", c) for c in range(8)] + [("F", c) for c in range(8)]
LASTP = 7
def slot_of(n):
    return ((n % NSLOT) if n >= 8 else (4, 5, 0, 1)[n & 3]) * SLOT
PAR = dict(la=2, laf=4, nt=2, estep=9, cstep=10, hstep=14, cdelay=0, stgap=1, fd=5, sd=3, ffill=6, sfill=10, sfill2=14,
           rot=1, pf=1, cpf=1, pfc=11, pfw=12, ala=4, wla=8, urot=1, p2poll=10, chk2=13, fl2=2, slp=8, prio=0, hold=4000, pk=1, gam=0, lastbar=14, hsp=0, xstep=6, map=1, defF=0, defS=0, e0=3, pfw2=2, coeff=0, g0=46, spf=0, spf0=9, spfn=6, spfgap=2, mpf=-1, wpf=-1, tlb=0, thr=99, thr2=99, thrp=99, stag=0, sper=4, dyn=0, split=1, fgap=4, probe=-1, ew=6, ea=4, dph=0, pfill=3, fpf=1)

sX, sLRE, sLIM, sBRE, sBIM, sCRE, sCIM, sLDT = 16, 18, 20, 22, 24, 26, 28, 30
sW1, sW3, sW2, sGW, sDS, sWS, sOUT = 32, 34, 36, 38, 40, 42, 84
rX, rBRE, rBIM, rW1, rW3, rAS, rE, rEP, rG, rFL = 44, 48, 52, 56, 60, 64, 68, 72, 76, 88


def swiglu_ops(A, acc, off, pk, defer=None):
    o = []
    if pk:
        for r in range(0, 8, 2):
            o.append("v_pk_mul_f32 %s, %s, %s" % (v(acc + 8 + r, 2), v(acc + r, 2), v(acc + 8 + r, 2)))
        for r in range(0, 8, 2):
            o.append("v_pk_mul_f32 %s, %s, s[80:81] op_sel_hi:[1,0]" % (v(acc + r, 2), v(acc + r, 2)))
        for r in range(8):
            o.append("v_exp_f32 %s, %s" % (v(acc + r), v(acc + r)))
        for r in range(0, 8, 2):
            o.append("v_pk_add_f32 %s, %s, 1.0 op_sel_hi:[1,0]" % (v(acc + r, 2), v(acc + r, 2)))
        for r in range(8):
            o.append("v_rcp_f32 %s, %s" % (v(acc + r), v(acc + r)))
        for r in range(0, 8, 2):
            o.append("v_pk_mul_f32 %s, %s, %s" % (v(acc + 8 + r, 2), v(acc + 8 + r, 2), v(acc + r, 2)))
        for q in range(4):
            o.append("v_cvt_pk_bf16_f32 %s, %s, %s" % (v(acc + q), v(acc + 8 + 2 * q), v(acc + 9 + 2 * q)))
        (o if defer is None else defer).append(lambda: A.vmi("st", "buffer_store_dwordx4 %s, v6, %s, %s offen offset:%d%s" % (v(acc, 4), s(rAS, 4), "s87" if off >= 2048 else "s82", off, stmod())))
        return o
    for r in range(8):
        o.append("v_mul_f32 %s, %s, %s" % (v(acc + 8 + r), v(acc + r), v(acc + 8 + r)))
    for r in range(8):
        o.append("v_mul_f32 %s, s80, %s" % (v(acc + r), v(acc + r)))
    for r in range(8):
        o.append("v_exp_f32 %s, %s" % (v(acc + r), v(acc + r)))
    for r in range(8):
        o.append("v_add_f32 %s, 1.0, %s" % (v(acc + r), v(acc + r)))
    for r in range(8):
        o.append("v_rcp_f32 %s, %s" % (v(acc + r), v(acc + r)))
    for r in range(8):
        o.append("v_mul_f32 %s, %s, %s" % (v(acc + 8 + r), v(acc + 8 + r), v(acc + r)))
    for q in range(4):
        o.append("v_cvt_pk_bf16_f32 %s, %s, %s" % (v(acc + q), v(acc + 8 + 2 * q), v(acc + 9 + 2 * q)))
    (o if defer is None else defer).append(lambda: A.vmi("st", "buffer_store_dwordx4 %s, v6, %s, %s offen offset:%d%s" % (v(acc, 4), s(rAS, 4), "s87" if off >= 2048 else "s82", off, stmod())))
    return o


class Stream:
    def __init__(self, A, items, NB, D, K):
        self.A, self.items, self.NB, self.D, self.K = A, items, NB, D, K
        self.nb = 0
        self.rp = 0
        self.fill = []
        self.fence = -1
        self.dyn = False
        self.hold = 0

    def ninstr(self):
        return self.A.ni

    def pop(self, k):
        while k > 0 and self.fill:
            f = self.fill[0]
            if isinstance(f, tuple):
                if f[0] == "gap":
                    self.fill.pop(0)
                    return
                if f[0] == "bar" and self.nb <= f[1]:
                    return
                if f[0] == "dist" and self.ninstr() - f[1] < 12:
                    return
                self.fill.pop(0)
                continue
            self.fill.pop(0)
            if isinstance(f, str):
                self.A.e(f)
            else:
                f()
            k -= 1

    def flush(self):
        while self.fill:
            f = self.fill[0]
            if isinstance(f, tuple):
                if f[0] in ("bar", "gap"):
                    assert f[0] == "gap" or self.nb > f[1]
                    self.fill.pop(0)
                    continue
                d = 12 - (self.ninstr() - f[1])
                if d > 0:
                    self.A.e("s_nop %d" % (d - 1))
                self.fill.pop(0)
                continue
            self.pop(1)

    def barrier(self, n):
        while self.nb <= n:
            b = self.nb
            self.pre(b)
            lim = b - 1 if b == PAR["lastbar"] else b - 2
            old = [t for t in self.A.lg if t[0] == "c" and int(t[1:].split("_")[0]) <= lim]
            if b <= PAR["lastbar"]:
                if old:
                    self.A.lgw(old[-1])
                self.A.e("s_barrier")
            self.nb += 1
            self.post(b)

    def reads(self, upto, force):
        while self.rp < min(upto, len(self.items)):
            it = self.items[self.rp]
            if not force and (it[0] > self.nb or (it[0] == self.fence and self.nb <= it[0])):
                return
            self.barrier(it[0])
            self.read(it, self.rp % self.NB, "c%d_%d" % (it[0], self.rp))
            self.rp += 1

    def run(self):
        for mp, it in enumerate(self.items):
            if self.rp <= mp:
                self.reads(mp + 1, True)
                self.reads(mp + 1 + self.D, False)
            self.A.lgw("c%d_%d" % (it[0], mp))
            self.mfma(it, mp % self.NB)
            self.after(it, mp)
            self.reads(min(mp + 1 + self.D, self.rp + 2), False)
            if self.dyn and self.fill:
                n0 = len(self.A.L)
                self.A.e("s_setprio 0")
                self.pop(self.K)
                if len(self.A.L) == n0 + 1:
                    self.A.L.pop(); self.A.ni -= 1
                else:
                    self.A.e("s_setprio 2")
            else:
                self.pop(self.K)
        self.barrier(15)


def mk_items(ORD, ntile, withP):
    NT = PAR["nt"]
    items = []
    for n in range(16 - NT):
        if ORD[n][0] == "P" and not withP:
            continue
        for ss in range(4):
            for ti in range(ntile):
                items.append((n, ss, ti))
    for t0 in range(0, ntile, 2):
        for n in range(16 - NT, 16):
            assert ORD[n][0] == "F"
            for ss in range(4):
                for ti in (t0, t0 + 1):
                    items.append((n, ss, ti))
    return items


def emit(A, ops):
    for x in ops:
        if isinstance(x, str):
            A.e(x)
        else:
            x()


def prologue(A):
    A.e("s_cmp_ge_u32 s2, 256")
    A.e("s_cbranch_scc1 L_end")
    A.stamp_begin()
    A.e("s_load_dwordx16 s[16:31], s[0:1], 0")
    A.e("s_load_dwordx8 s[32:39], s[0:1], 80")
    A.e("s_load_dwordx2 s[42:43], s[0:1], 128")
    A.e("s_load_dwordx2 s[40:41], s[0:1], 64")
    A.e("s_load_dwordx2 s[84:85], s[0:1], 112")
    A.e("v_lshrrev_b32 v2, 6, v0")
    A.e("v_and_b32 v1, 63, v0")
    A.e("v_readfirstlane_b32 s3, v2")
    if PAR["map"] == 0:
        A.e("s_bfe_u32 s4, s2, 0x20001")
        A.e("s_lshl_b32 s4, s4, 2")
        A.e("s_bfe_u32 s6, s2, 0x20003")
        A.e("s_add_u32 s4, s4, s6")
        A.e("s_and_b32 s5, s2, 1")
        A.e("s_lshl_b32 s5, s5, 3")
        A.e("s_lshr_b32 s6, s2, 5")
        A.e("s_add_u32 s5, s5, s6")
    else:
        A.e("s_bfe_u32 s4, s2, 0x10002")
        A.e("s_lshl_b32 s4, s4, 3")
        A.e("s_bfe_u32 s6, s2, 0x30003")
        A.e("s_add_u32 s4, s4, s6")
        A.e("s_and_b32 s5, s2, 3")
        A.e("s_lshl_b32 s5, s5, 2")
        A.e("s_lshr_b32 s6, s2, 6")
        A.e("s_add_u32 s5, s5, s6")
    A.e("s_and_b32 s7, s3, 3")
    A.e("v_and_b32 v8, 31, v1")
    A.e("v_lshrrev_b32 v9, 5, v1")
    A.e("s_lshl_b32 s8, s7, 12")
    if PAR["rot"]:
        A.e("s_add_u32 s15, s4, s5")
        A.e("s_and_b32 s15, s15, 1")
        if PAR["map"]:
            A.e("s_add_u32 s83, s4, s5")
            if PAR["dph"]:
                A.e("s_and_b32 s6, s2, 1")
                A.e("s_add_u32 s83, s83, s6")
        elif PAR["gam"]:
            A.e("s_sub_u32 s83, s4, s15")
            A.e("s_lshl_b32 s83, s83, 1")
        else:
            A.e("s_lshl_b32 s83, s4, 1")
        A.e("s_add_u32 s83, s83, s5")
    else:
        A.e("s_mov_b32 s83, 0")
    A.e("s_cmp_lt_u32 s3, 4")
    A.e("s_cbranch_scc1 L_S")


def tile_of(A, half, ct):
    if PAR["map"] == 0:
        A.e("s_and_b32 %s, s5, 1" % half)
        A.e("s_lshr_b32 %s, s5, 1" % ct)
    else:
        A.e("s_lshr_b32 %s, s5, 3" % ct)
        A.e("s_lshl_b32 %s, %s, 2" % (ct, ct))
        A.e("s_and_b32 %s, s5, 3" % half)
        A.e("s_add_u32 %s, %s, %s" % (ct, ct, half))
        A.e("s_bfe_u32 %s, s5, 0x10002" % half)


def piece_base(d, tmp):
    return ["s_lshr_b32 %s, s5, 2" % tmp, "s_mul_i32 %s, s5, 3" % d, "s_sub_u32 %s, %s, %s" % (d, d, tmp)]


def common_late(A):
    A.e("s_mov_b32 s80, 0x%x" % f2u(-LOG2E))
    A.e("v_bfe_u32 v10, v1, 1, 3")
    A.e("v_xor_b32 v10, v10, v9")
    A.e("v_lshlrev_b32 v10, 4, v10")
    A.e("v_lshl_add_u32 v7, v8, 7, v10")
    A.e("v_bfe_u32 v10, v1, 4, 1")
    A.e("v_mul_u32_u24 v12, 3104, v10")
    A.e("v_lshlrev_b32 v11, 9, v9")
    A.e("v_add_u32 v12, v12, v11")
    A.e("v_bfe_u32 v11, v1, 2, 2")
    A.e("v_lshl_add_u32 v12, v11, 6, v12")
    A.e("v_and_b32 v11, 3, v1")
    A.e("v_lshl_add_u32 v12, v11, 3, v12")
    A.e("v_xor_b32 v13, 32, v12")
    A.e("v_lshlrev_b32 v6, 4, v1")
    A.e("s_lshl_b32 s6, s4, 2")
    A.e("s_add_u32 s6, s6, s7")
    A.e("s_mul_i32 s81, s6, %d" % (NKS * 1024))
    emit(A, piece_base("s6", "s82"))
    A.e("s_lshl_b32 s6, s6, 11")
    A.e("s_add_u32 s82, s81, s6")
    srd(A, rAS, sWS, A_BYTES)


def w_scalars(A):
    A.e("s_mul_i32 s10, s7, 6144")
    A.e("s_cmp_ge_u32 s5, 15")
    A.e("s_cselect_b32 s92, 0x%x, 0" % OOB)
    A.e("s_and_b32 s93, s5, 3")
    A.e("s_cmp_eq_u32 s93, 3")
    A.e("s_cselect_b32 s93, 0x%x, 0" % OOB)


def wdma_addr_ops(d1, d3, tmp):
    return ["v_lshrrev_b32 %s, 2, v1" % tmp, "s_lshl_b32 s6, s7, 4", "v_add_u32 %s, s6, %s" % (tmp, tmp),
            "v_mul_u32_u24 %s, 2752, %s" % (d1, tmp)] + piece_base("s6", "s11") + ["s_lshl_b32 s6, s6, 6", "v_add_u32 %s, s6, %s" % (d1, d1),
            "v_and_b32 %s, 3, v1" % tmp, "v_lshl_add_u32 %s, %s, 4, %s" % (d1, tmp, d1), "v_xor_b32 %s, 32, %s" % (d3, d1)]


def dma_ops(A, n, w1, w3, mats=(0, 1)):
    kind, c = ORD[n]
    slot = slot_of(n)
    tag = "ch%d" % n
    ops = []
    def mk(pre, m0, ins, gap="s_nop 0"):
        def f():
            for x in pre:
                A.e(x)
            A.e(m0)
            A.e(gap)
            A.vmi(tag, ins)
        return f
    if kind == "P":
        pre = ["s_add_u32 s11, s83, %d" % c, "s_and_b32 s11, s11, 7", "s_lshl_b32 s11, s11, 7", "s_add_u32 s12, s11, 8192"]
        for q in range(4):
            ops.append(mk(pre if q == 0 else [], "s_add_u32 m0, s8, %d" % (slot + 1024 * q),
                          "buffer_load_dwordx4 %s, %s, s%d offen lds" % ("v3" if q & 1 else "v2", s(rX, 4), 12 if q >= 2 else 11)))
        ops.append(mk([], "s_add_u32 m0, s9, %d" % (slot + 16384), "buffer_load_dwordx4 v4, %s, s11 offen lds" % s(rBRE, 4)))
        ops.append(mk([], "s_add_u32 m0, s9, %d" % (slot + 20480), "buffer_load_dwordx4 v4, %s, s11 offen lds" % s(rBIM, 4)))
    else:
        pre = ["s_add_u32 s11, s83, %d" % c, "s_and_b32 s11, s11, 7", "s_mul_i32 s11, s11, 176128"]
        for m in mats:
            for q in range(3):
                ops.append(mk(pre if m == mats[0] and q == 0 else [], "s_add_u32 m0, s10, %d" % (slot + m * 3072 + 1024 * q - 64 * q),
                              "buffer_load_dwordx4 %s, %s, s%d offen offset:%d lds" % (w3 if m else w1, s(rW3 if m else rW1, 4), 12 if q else 11, 64 * q),
                              "s_add_u32 s12, s11, s%d" % (91 + q) if q else "s_nop 0"))
    return ops


P2_GROUPS = [("C", 0, 8), ("C", 8, 8), ("W", 0, 8), ("W", 8, 8), ("W", 16, 6)]
P2_SEQ = [(k, b, n, m) for (k, b, n) in P2_GROUPS for m in range(n)]
P2_SEQ.insert(12, ("X", 0, 1, 0))
NSSM = 17
NA, NW = 6, 14
WUNITS = [0, 1, 2, 3, 4, 5, 19, 18] + list(range(6, 12))
def AU(n): return (12 + n % NA) * 8192
def WU(n): return WUNITS[n % NW] * 8192


def role_F(A):
    A.vm, A.lg = [], []
    A.thr = PAR["thrp"]
    ACC, FB = 64, 32
    LA = PAR["la"]
    if PAR["prio"] or PAR["dyn"]:
        A.e("s_setprio 1")
    A.e("v_lshrrev_b32 v10, 4, v1")
    A.e("v_and_b32 v11, 7, v1")
    A.e("v_xor_b32 v10, v10, v11")
    A.e("v_lshlrev_b32 v10, 4, v10")
    A.e("v_bfe_u32 v11, v1, 3, 2")
    A.e("v_lshl_add_u32 v2, v11, 10, v10")
    A.e("v_lshl_add_u32 v2, v9, 14, v2")
    A.e("s_lshl_b32 s6, s7, 15")
    A.e("v_add_u32 v2, s6, v2")
    A.e("v_xor_b32 v3, 64, v2")
    A.e("v_add_u32 v3, 4096, v3")
    A.e("s_lshl_b32 s9, s7, 10")
    A.e("s_and_b32 s6, s7, 1")
    A.e("s_lshl_b32 s6, s6, 6")
    A.e("v_xor_b32 v4, s6, v10")
    A.e("v_lshrrev_b32 v11, 3, v1")
    A.e("v_lshl_add_u32 v4, v11, 10, v4")
    A.e("s_lshl_b32 s6, s7, 13")
    A.e("v_add_u32 v4, s6, v4")
    emit(A, wdma_addr_ops("v5", "v16", "v10"))
    w_scalars(A)
    A.e("s_lshl_b32 s6, s4, 17")
    A.e("s_lshl_b32 s13, s5, 15")
    A.e("s_waitcnt lgkmcnt(0)")
    A.fs(52)
    if PAR["gam"]:
        srd(A, rW1, sW1, 512 * 2752)
        srd(A, rW3, sW3, 512 * 2752)
    if PAR["gam"]:
        assert LA == 2
        A.e("s_cmp_lg_u32 s15, 0")
        A.e("s_cbranch_scc1 L_F_now")
        emit(A, dma_ops(A, 8, "v5", "v16") + dma_ops(A, 9, "v5", "v16"))
        A.vm = []
        A.lab("L_F_now")
    srd(A, rX, sX, 131072, "s6")
    d0 = dma_ops(A, 0, "v5", "v16")
    emit(A, d0[:4])
    srd(A, rBRE, sBRE, 32768, "s13")
    srd(A, rBIM, sBIM, 32768, "s13")
    emit(A, d0[4:])
    A.fs(53)
    A.e("s_lshl_b32 s6, s5, 3")
    A.e("s_lshl_b32 s13, s7, 1")
    A.e("s_add_u32 s13, s13, s6")
    A.e("s_lshl_b32 s6, s13, 10")
    A.e("v_lshlrev_b32 v17, 4, v8")
    A.e("v_lshl_add_u32 v18, v9, 10, v17")
    A.e("v_add_u32 v18, s6, v18")
    A.vmi("g", "buffer_load_dwordx4 v[64:67], v18, %s, 0 offen" % s(rX, 4))
    A.vmi("g", "buffer_load_dwordx4 v[68:71], v18, %s, 0 offen offset:512" % s(rX, 4))
    A.vmi("g", "global_load_dwordx4 v[72:75], v17, %s" % s(sGW, 2))
    A.vmi("g", "global_load_dwordx4 v[76:79], v17, %s offset:512" % s(sGW, 2))
    emit(A, dma_ops(A, 1, "v5", "v16"))
    A.fs(54)
    srd(A, rW1, sW1, 512 * 2752)
    srd(A, rW3, sW3, 512 * 2752)
    common_late(A)
    srd(A, rG, sWS, 16384, "0x%x" % G_OFF)
    A.e("v_add_u32 v7, s8, v7")
    A.e("s_add_u32 s82, s82, %d" % (65536 + 2048))
    A.e("s_add_u32 s87, s82, s93")
    A.e("s_add_u32 s82, s82, s92")
    A.e("s_branch L_Fmain")
    A.fmain = len(A.L)
    A.lab("L_Fmain")

    def g_ops():
        o = [lambda: A.vmw("g"), "v_mov_b32 v84, 0"]
        for d in range(8):
            xx, ww = 64 + d, 72 + d
            o += ["v_lshlrev_b32 v80, 16, %s" % v(xx), "v_and_b32 v81, 0xffff0000, %s" % v(xx),
                  "v_lshlrev_b32 v82, 16, %s" % v(ww), "v_and_b32 v83, 0xffff0000, %s" % v(ww),
                  "v_mul_f32 v80, v80, v82", "v_mul_f32 v81, v81, v83", "v_cvt_pk_bf16_f32 v80, v80, v81",
                  "v_lshlrev_b32 v81, 16, v80", "v_and_b32 v80, 0xffff0000, v80",
                  "v_add_f32 v84, v84, v81", "v_add_f32 v84, v84, v80"]
        for sh in (1, 2, 4, 8):
            o += ["s_nop 1", "v_add_f32_dpp v84, v84, v84 row_shr:%d row_mask:0xf bank_mask:0xf bound_ctrl:0" % sh]
        o += ["s_nop 1", "v_add_f32_dpp v84, v84, v84 row_bcast:15 row_mask:0xa bank_mask:0xf",
              "v_cvt_pk_bf16_f32 v84, v84, v84", "v_and_b32 v84, 0xffff0000, v84", "v_mul_f32 v84, s80, v84",
              "v_exp_f32 v84, v84", "s_nop 0", "v_add_f32 v84, 1.0, v84", "v_rcp_f32 v84, v84", "s_nop 0",
              "v_cvt_pk_bf16_f32 v84, v84, v84", "v_and_b32 v84, 0xffff0000, v84",
              "v_sub_f32 v85, 1.0, v84", "v_cvt_pk_bf16_f32 v85, v85, v85", "v_and_b32 v85, 0xffff0000, v85"]
        return o

    def g_store():
        A.e("s_lshl_b32 s6, s4, 7")
        A.e("s_add_u32 s6, s6, s13")
        A.e("s_lshl_b32 s6, s6, 3")
        A.e("v_lshlrev_b32 v86, 3, v9")
        A.e("s_mov_b32 exec_lo, 0x80000000")
        A.e("s_mov_b32 exec_hi, 0x80000000")
        A.vmi("gst", "buffer_store_dwordx2 v[84:85], v86, %s, s6 offen%s" % (s(rG, 4), stmod()))
        A.e("s_mov_b64 exec, -1")

    gq = g_ops()
    rO = 68
    A.e("s_and_b32 s72, s7, 1")
    A.e("s_lshr_b32 s73, s7, 1")
    tile_of(A, "s6", "s74")
    A.e("s_lshl_b32 s75, s4, 1")
    A.e("s_add_u32 s75, s75, s6")
    A.e("s_lshl_b32 s75, s75, 1")
    A.e("s_add_u32 s75, s75, s72")
    A.e("s_lshl_b32 s75, s75, 16")
    A.e("s_lshl_b32 s74, s74, 1")
    A.e("s_add_u32 s74, s74, s73")
    A.e("s_lshl_b32 s74, s74, 7")
    A.e("s_add_u32 s75, s75, s74")
    A.e("v_lshlrev_b32 v20, 15, v9")
    A.e("v_lshl_add_u32 v20, v8, 2, v20")
    A.e("v_add_u32 v20, s75, v20")
    srd(A, rO, sOUT, 2048 * 2048)
    A.e("s_lshl_b32 s6, s72, 12")
    A.e("s_add_u32 s6, s6, %d" % AU(0))
    A.e("v_add_u32 v17, s6, v6")
    A.e("v_subrev_u32 v18, s8, v7")
    A.e("s_lshl_b32 s6, s73, 12")
    A.e("v_add_u32 v18, s6, v18")
    A.e("v_bfe_u32 v10, v1, 2, 2")
    A.e("v_lshlrev_b32 v19, 7, v10")
    A.e("v_lshl_add_u32 v19, v9, 9, v19")
    A.e("v_bfe_u32 v10, v1, 4, 1")
    A.e("v_lshl_add_u32 v19, v10, 5, v19")
    A.e("v_and_b32 v10, 3, v1")
    A.e("v_lshl_add_u32 v19, v10, 3, v19")
    A.e("v_bfe_u32 v10, v1, 3, 1")
    A.e("v_xor_b32 v10, s73, v10")
    A.e("v_lshl_add_u32 v19, v10, 6, v19")
    XN = [q for q, x in enumerate(P2_SEQ) if x[0] == "X"][0]
    A.e("s_lshl_b32 s6, s73, 6")
    A.e("v_lshl_add_u32 v23, v8, 1, s6")
    A.e("s_lshl_b32 s6, s72, 1")
    A.e("v_add_u32 v10, s6, v9")
    A.e("v_lshl_add_u32 v21, v10, 11, v23")
    A.e("v_add_u32 v21, %d, v21" % WU(XN))
    A.e("v_lshlrev_b32 v22, 7, v10")
    A.e("v_add_u32 v22, %d, v22" % AU(XN))
    A.e("v_add_u32 v23, %d, v23" % (AU(XN) + 1024))
    A.e("v_bfe_u32 v10, v1, 4, 1")
    A.e("v_mul_u32_u24 v11, 1152, v10")
    A.e("v_lshl_add_u32 v11, v9, 8, v11")
    A.e("v_bfe_u32 v10, v1, 2, 2")
    A.e("v_lshl_add_u32 v11, v10, 5, v11")
    A.e("v_and_b32 v10, 1, v1")
    A.e("v_lshl_add_u32 v11, v10, 4, v11")
    A.e("v_bfe_u32 v10, v1, 1, 1")
    A.e("v_lshl_add_u32 v11, v10, 3, v11")
    A.e("s_lshl_b32 s6, s72, 12")
    A.e("s_add_u32 s6, s6, %d" % AU(0))
    A.e("v_add_u32 v11, s6, v11")
    A.e("v_xor_b32 v10, 0x80, v11")

    tiles = [2, 3, 4, 5]
    S = Stream(A, mk_items(ORD, 4, False), 8, PAR["fd"], PAR["ffill"])
    late = []
    dq = []
    if PAR["split"]:
        for n in range(LASTP + LA + 1, 16):
            dq += [(n, f) for f in dma_ops(A, n, "v5", "v16", (1,))]

    def pf_setup():
        srd(A, 44, sW2, 1376 * 1024)
        srd(A, 48, sCRE, 524288)
        srd(A, 52, sCIM, 524288)
        A.e("s_lshr_b32 s6, s2, 3")
        A.e("s_lshr_b32 s14, s5, 3")
        A.e("s_lshl_b32 s9, s14, 18")
        A.e("s_lshl_b32 s15, s6, 13")
        A.e("s_add_u32 s9, s9, s15")
        A.e("s_lshl_b32 s15, s7, 11")
        A.e("s_add_u32 s9, s9, s15")
        A.e("s_mul_i32 s15, s6, 43")
        A.e("s_mul_i32 s6, s7, 11")
        A.e("s_add_u32 s15, s15, s6")
        A.e("s_lshl_b32 s15, s15, 1")
        A.e("s_add_u32 s15, s15, s14")
        A.e("s_lshl_b32 s15, s15, 9")
        A.e("v_lshlrev_b32 v2, 7, v1")
        A.e("v_lshrrev_b32 v3, 2, v1")
        A.e("v_lshlrev_b32 v3, 3, v3")
        A.e("v_and_or_b32 v3, v1, 3, v3")
        A.e("v_lshlrev_b32 v3, 7, v3")

    def pf_c():
        A.e("s_mov_b64 exec, 0xffff")
        A.vmi("pf", "buffer_load_dword v4, v2, s[48:51], s9 offen")
        A.vmi("pf", "buffer_load_dword v4, v2, s[52:55], s9 offen")
        A.e("s_mov_b64 exec, -1")

    def pf_w():
        A.e("s_mov_b32 exec_hi, 0xfff")
        A.vmi("pf", "buffer_load_dword v4, v3, s[44:47], s15 offen")
        A.e("s_mov_b64 exec, -1")

    if PAR["pf"] and PAR["fpf"]:
        dq += sorted([(PAR["pfc"] + PAR["laf"], pf_c), (PAR["pfw"] + PAR["laf"], pf_w)], key=lambda x: x[0])

    def dma_upto(m, maxops=999):
        while dq and dq[0][0] <= m and maxops > 0:
            dq.pop(0)[1]()
            maxops -= 1

    def waddr(n):
        return ((14, 15), (28, 29), (30, 31))[n % 3]

    def pre(b):
        kind, c = ORD[b]
        slot = slot_of(b)
        if b == LASTP + 1:
            emit(A, gq)
            g_store()
            if PAR["pf"] and PAR["fpf"]:
                pf_setup()
        dma_upto(min(b - 1 + LA, 15) if b != PAR["lastbar"] else 15)
        if b == 10:
            A.vmw("gst")
        if b == PAR["lastbar"]:
            A.vmw("ch15")
        if kind == "P":
            A.e("v_add_u32 v24, %d, v7" % slot)
            A.e("v_xor_b32 v25, 32, v24")
            A.e("v_xor_b32 v26, 64, v24")
            A.e("v_xor_b32 v27, 0x60, v24")
        else:
            A.e("v_add_u32 v%d, %d, v12" % (waddr(b)[0], slot))
            A.e("v_add_u32 v%d, %d, v13" % (waddr(b)[1], slot))
        A.fs2(20 + b)
        A.vmw("ch%d" % b)
        if PAR["gam"] and b == 7:
            A.e("s_cmp_lg_u32 s15, 0")
            A.e("s_cbranch_scc1 L_F_w7")
            A.e("s_waitcnt vmcnt(0)")
            A.lab("L_F_w7")
        A.fs2(36 + b)

    def post(b):
        kind, c = ORD[b]
        A.fs(b)
        if kind == "P":
            for ss in range(4):
                A.lgi("c%d_x" % b, "ds_read_b128 %s, %s" % (a(16 * c + 4 * ss, 4), v(24 + ss)))
            for n in range(2, 16):
                if (n == b + LA) or (b == 0 and n < LA):
                    if PAR["gam"] and n >= 8:
                        A.e("s_cmp_eq_u32 s15, 0")
                        A.e("s_cbranch_scc1 L_F_skip%d" % n)
                    emit(A, dma_ops(A, n, "v5", "v16"))
                    if PAR["gam"] and n >= 8:
                        A.lab("L_F_skip%d" % n)
            if b == 0:
                emit(A, gq[:PAR["g0"]])
                del gq[:PAR["g0"]]

    def read(it, sl, tag):
        n, ss, ti = it
        T = tiles[ti]
        for nn in range(2):
            A.lgi(tag, "ds_read_b64_tr_b16 %s, v%d offset:%d" % (v(FB + 4 * sl + 2 * nn, 2), waddr(n)[T & 1],
                                                                ss * 6144 + (T >> 1) * 1024 + nn * 256))

    def mfma(it, sl):
        n, ss, ti = it
        c = ORD[n][1]
        first = (c == 0 and ss == 0)
        A.e("v_mfma_f32_32x32x16_bf16 %s, %s, %s, %s" % (v(ACC + 16 * ti, 16), v(FB + 4 * sl, 4), a(16 * c + 4 * ss, 4),
                                                        "0" if first else v(ACC + 16 * ti, 16)))

    def after(it, mp):
        n, ss, ti = it
        if n == 15 and ss == 3:
            S.fill.append(("dist", S.ninstr()))
            S.fill += swiglu_ops(A, ACC + 16 * ti, 1024 * ti, PAR["pk"] and ti >= 2, late if ti >= 4 - PAR["defF"] else None)
        if mp % PAR["fgap"] == 0:
            dma_upto(S.nb - 1 + PAR["laf"], 1)

    S.pre, S.post, S.read, S.mfma, S.after = pre, post, read, mfma, after
    S.run()
    assert not dq
    A.fs(16)
    S.flush()
    A.fs(19)

    N = len(P2_SEQ)
    ACCB, ACCA, GV, XV = 32, 48, 64, 96
    A.lg = []

    def addr(n):
        if P2_SEQ[n][0] == "W":
            A.e("v_add_u32 v24, %d, v19" % WU(n))
        elif P2_SEQ[n][0] == "C":
            A.e("v_add_u32 v24, %d, v18" % WU(n))
            A.e("v_xor_b32 v25, 32, v24")
            A.e("v_xor_b32 v26, 64, v24")
            A.e("v_xor_b32 v27, 0x60, v24")

    def reads2(n, ss):
        fb = 32 * (n & 1)
        tg = "r%d_%d" % (n, ss)
        if P2_SEQ[n][0] == "X":
            for q in (2 * ss, 2 * ss + 1):
                A.lgi(tg, "ds_read_b128 %s, v22 offset:%d" % (v(GV + 4 * q, 4), 16 * q))
            for r in range(4 * ss, 4 * ss + 4):
                A.lgi(tg, "ds_read_u16 %s, v21 offset:%d" % (v(XV + r), 128 * r))
            if ss == 3:
                A.lgi(tg, "ds_read_u16 v16, v23")
            return
        if P2_SEQ[n][0] == "W":
            A.lgi(tg, "ds_read_b128 %s, v17 offset:%d" % (a(fb + 4 * ss, 4), AU(n) - AU(0) + 1024 * ss))
        else:
            for nn in range(2):
                A.lgi(tg, "ds_read_b64_tr_b16 %s, %s offset:%d" % (a(fb + 4 * ss + 2 * nn, 2), "v10" if nn else "v11",
                                                                  AU(n) - AU(0) + 2048 * (ss >> 1) + 512 * (ss & 1)))
        if P2_SEQ[n][0] == "W":
            for nn in range(2):
                A.lgi(tg, "ds_read_b64_tr_b16 %s, v24 offset:%d" % (a(fb + 16 + 4 * ss + 2 * nn, 2), 2048 * ss + 1024 * nn))
        else:
            A.lgi(tg, "ds_read_b128 %s, %s" % (a(fb + 16 + 4 * ss, 4), v(24 + ss)))

    def mfma2(n, ss):
        kind, base, ln, m = P2_SEQ[n]
        fb = 32 * (n & 1)
        A.lgw("r%d_%d" % (n, ss))
        if kind == "X":
            return
        acc = v(ACCB if kind == "W" else ACCA, 16)
        first = (base == 0 and m == 0 and ss == 0)
        A.e("v_mfma_f32_32x32x16_bf16 %s, %s, %s, %s" % (acc, a(fb + 4 * ss, 4), a(fb + 16 + 4 * ss, 4), "0" if first else acc))

    def xd(q):
        if q == 0:
            A.e("v_lshlrev_b32 v16, 16, v16")
        r0, r1 = 2 * q, 2 * q + 1
        A.e("v_lshlrev_b32 %s, 16, %s" % (v(XV + r0), v(XV + r0)))
        A.e("v_lshlrev_b32 %s, 16, %s" % (v(XV + r1), v(XV + r1)))
        A.e("v_mul_f32 %s, %s, v16" % (v(XV + r0), v(XV + r0)))
        A.e("v_mul_f32 %s, %s, v16" % (v(XV + r1), v(XV + r1)))
        A.e("v_cvt_pk_bf16_f32 %s, %s, %s" % (v(XV + r0), v(XV + r0), v(XV + r1)))
        A.e("v_and_b32 %s, 0xffff0000, %s" % (v(XV + r1), v(XV + r0)))
        A.e("v_lshlrev_b32 %s, 16, %s" % (v(XV + r0), v(XV + r0)))

    def fold(q):
        for r in range(4 * q, 4 * q + 4):
            A.e("v_add_f32 %s, %s, %s" % (v(ACCA + r), v(ACCA + r), v(XV + r)))
        for r in range(4 * q, 4 * q + 4):
            A.e("v_mul_f32 %s, %s, %s" % (v(ACCA + r), v(GV + 2 * r), v(ACCA + r)))

    assert PAR["fl2"] <= XN
    for n in range(N):
        addr(n)
        if n == PAR["fl2"]:
            assert not late
            A.e("s_waitcnt vmcnt(0)")
        A.e("s_barrier")
        if "hold" in OPT:
            A.fs(100 + n)
        for ss in range(4):
            if n >= 1:
                mfma2(n - 1, ss)
            reads2(n, ss)
        if late and not PAR["stag"]:
            late.pop(0)()
        elif late:
            sp = PAR["sper"]
            A.e("s_and_b32 s6, s7, %d" % (sp - 1))
            A.e("s_cmp_lg_u32 s6, %d" % (n % sp))
            A.e("s_cbranch_scc1 L_F_st%d" % n)
            A.cond = True
            late[0]()
            A.cond = False
            A.lab("L_F_st%d" % n)
            if n % sp == sp - 1:
                late.pop(0)
        if 20 <= n < 28:
            xd(n - 20)
        if 28 <= n < 32:
            fold(n - 28)
    for ss in range(4):
        mfma2(N - 1, ss)
    A.fs(59)
    A.e("s_nop 7")
    A.e("s_nop 3")
    for q in range(8):
        A.e("v_cvt_pk_bf16_f32 %s, %s, %s" % (v(XV + q), v(ACCB + 2 * q), v(ACCB + 2 * q + 1)))
    for q in range(8):
        A.e("v_lshlrev_b32 %s, 16, %s" % (v(ACCB + 2 * q), v(XV + q)))
        A.e("v_and_b32 %s, 0xffff0000, %s" % (v(ACCB + 2 * q + 1), v(XV + q)))
    for r in range(16):
        A.e("v_mul_f32 %s, %s, %s" % (v(ACCB + r), v(GV + 2 * r + 1), v(ACCB + r)))
    for q in range(8):
        A.e("v_cvt_pk_bf16_f32 %s, %s, %s" % (v(XV + q), v(ACCB + 2 * q), v(ACCB + 2 * q + 1)))
    for q in range(8):
        A.e("v_lshlrev_b32 %s, 16, %s" % (v(ACCB + 2 * q), v(XV + q)))
        A.e("v_and_b32 %s, 0xffff0000, %s" % (v(ACCB + 2 * q + 1), v(XV + q)))
        A.e("s_movk_i32 s6, %d" % (4096 * q))
        for r in (2 * q, 2 * q + 1):
            A.e("v_add_f32 %s, %s, %s" % (v(ACCB + r), v(ACCB + r), v(ACCA + r)))
            A.e("buffer_store_dword %s, v20, %s, s6 offen offset:%d%s" % (v(ACCB + r), s(rO, 4), 2048 * (r & 1), stmod("o")))
    A.fs(60)
    A.fs_end()
    A.dbg_end()
    A.e("s_endpgm")


def cpow(A, n_scale, dre, dim, t0, t1, va, vb):
    if n_scale == 1.0:
        A.e("v_exp_f32 %s, %s" % (t0, va))
        A.e("v_fract_f32 %s, %s" % (t1, vb))
    else:
        ns = n_scale if isinstance(n_scale, str) else "0x%x" % f2u(n_scale)
        A.e("v_mul_f32 %s, %s, %s" % (t0, ns, va))
        A.e("v_mul_f32 %s, %s, %s" % (t1, ns, vb))
        A.e("v_exp_f32 %s, %s" % (t0, t0))
        A.e("v_fract_f32 %s, %s" % (t1, t1))
    A.e("v_cos_f32 %s, %s" % (dre, t1))
    A.e("v_sin_f32 %s, %s" % (dim, t1))
    A.e("s_nop 0")
    A.e("v_mul_f32 %s, %s, %s" % (dre, dre, t0))
    A.e("v_mul_f32 %s, %s, %s" % (dim, dim, t0))


def cfma_ops(dr, di, mr, mi, xr, xi, ar, ai):
    return ["v_fma_f32 %s, %s, %s, %s" % (dr, mr, xr, ar),
            "v_fma_f32 %s, %s, %s, %s" % (di, mr, xi, ai),
            "v_fma_f32 %s, -%s, %s, %s" % (dr, mi, xi, dr),
            "v_fma_f32 %s, %s, %s, %s" % (di, mi, xr, di)]


def lane0_store(A, cond, val, srd_, soff, off, vt, vz, L):
    for x in cond:
        A.e(x)
    A.e("s_cbranch_scc1 " + L)
    A.cond = True
    A.e("v_mov_b32 %s, %s" % (vt, val))
    A.e("v_mov_b32 %s, 0" % vz)
    A.e("s_mov_b64 exec, 1")
    A.e("buffer_store_dword %s, %s, %s, %s offen offset:%d sc1" % (vt, vz, s(srd_, 4), soff, off))
    A.e("s_mov_b64 exec, -1")
    A.cond = False
    A.lab(L)


def role_S(A):
    A.vm, A.lg = [], []
    A.thr = 99
    A.lab("L_S")
    LR, LI, NLI = "v16", "v17", "v5"
    L16R, L16I, QR, QI, L256R, L256I = "v18", "v19", "v20", "v21", "v22", "v23"
    CR, CI, PR, PI = "v2", "v3", "v10", "v11"
    ER, EI, SR, SI = "v56", "v57", "v58", "v59"
    RE, IM, ACC, FB = 64, 80, 96, 32
    A.e("s_lshl_b32 s6, s5, 6")
    A.e("v_lshlrev_b32 v4, 1, v8")
    A.e("v_add_u32 v4, s6, v4")
    A.e("s_lshl_b32 s6, s5, 7")
    A.e("s_add_u32 s6, s6, 0x%x" % EP_OFF)
    A.e("v_mov_b32 v55, 0")
    if PAR["cpf"]:
        A.e("s_getpc_b64 s[44:45]")
        A.lab("L_pc")
        A.e("s_sub_u32 s44, s44, L_pc - %s_kernel" % NAME)
        A.e("s_subb_u32 s45, s45, 0")
        A.e("s_mov_b32 s46, L_code_end - %s_kernel" % NAME)
        A.e("s_mov_b32 s47, 0x20000")
        A.e("s_lshr_b32 s9, s2, 3")
        A.e("s_lshl_b32 s9, s9, 2")
        A.e("s_add_u32 s9, s9, s7")
        A.e("s_lshl_b32 s9, s9, 8")
        A.e("v_lshlrev_b32 v53, 7, v1")
        A.e("s_mov_b64 exec, 3")
        A.vmi("par", "buffer_load_dword v52, v53, s[44:47], s9 offen")
        A.e("s_mov_b64 exec, -1")
    A.e("s_waitcnt lgkmcnt(0)")
    A.vmi("par", "global_load_ushort v60, v4, %s" % s(sLRE, 2))
    A.vmi("par", "global_load_ushort v61, v4, %s" % s(sLIM, 2))
    A.vmi("par", "global_load_ushort v62, v4, %s" % s(sLDT, 2))
    srd(A, rEP, sWS, 4, "s6")
    A.vmi("par", "buffer_load_dword v54, v55, %s, 0 offen sc1" % s(rEP, 4))
    A.e("s_lshl_b32 s6, s4, 7")
    A.e("s_add_u32 s6, s6, 0x%x" % EPR_OFF)
    srd(A, rG, sWS, 4, "s6")
    A.vmi("par", "buffer_load_dword v56, v55, %s, 0 offen sc1" % s(rG, 4))
    if PAR["tlb"]:
        A.e("s_cmp_lg_u32 s7, 0")
        A.e("s_cbranch_scc1 L_S_notlb")
        A.e("v_lshlrev_b32 v53, 21, v1")
        A.e("s_mov_b64 exec, 1")
        for ptr in (sW1, sW3, sW2, sCRE, sCIM, sDS):
            A.e("global_load_dword v52, v55, %s" % s(ptr, 2))
        A.e("s_mov_b64 exec, 3")
        A.e("global_load_dword v52, v53, %s" % s(sOUT, 2))
        A.e("s_mov_b64 exec, 31")
        A.e("global_load_dword v52, v53, %s" % s(sWS, 2))
        A.e("s_mov_b64 exec, -1")
        A.lab("L_S_notlb")
    common_late(A)
    w_scalars(A)
    srd(A, rW1, sW1, 512 * 2752)
    srd(A, rW3, sW3, 512 * 2752)
    A.e("s_lshl_b32 s6, s5, 13")
    A.e("s_add_u32 s6, s6, 0x%x" % E_OFF)
    srd(A, rE, sWS, 8192, "s6")
    A.e("s_lshl_b32 s6, s4, 9")
    A.e("s_add_u32 s6, s6, 0x%x" % FL_OFF)
    srd(A, rFL, sWS, 512, "s6")
    A.e("s_lshl_b32 s87, s5, 2")
    rCRE, rCIM, rW2, rA2 = 48, 52, 44, 56
    srd(A, rCRE, sCRE, 524288)
    srd(A, rCIM, sCIM, 524288)
    A.e("s_add_u32 s82, s82, 65536")
    A.e("s_lshl_b32 s100, s5, 11")
    A.e("s_add_u32 s100, s100, s81")
    A.e("s_add_u32 s101, s100, 32768")
    A.e("v_lshlrev_b32 v4, 3, v0")
    A.e("v_add_u32 v4, %d, v4" % (MISC + 2048))
    A.e("v_mov_b32 v48, 0")
    A.e("v_mov_b32 v49, 0")
    A.e("ds_write_b64 v4, v[48:49]")
    A.e("ds_write_b32 v4, v48 offset:2048")
    A.e("s_lshl_b32 s6, s7, 1")
    A.e("v_add_u32 v63, s6, v9")
    A.e("v_sub_u32 v4, 7, v63")
    A.e("v_lshlrev_b32 v4, 8, v4")
    A.e("v_lshl_add_u32 v4, v8, 3, v4")
    A.e("v_add_u32 v4, %d, v4" % MISC)
    A.e("v_lshlrev_b32 v63, 4, v63")
    A.e("v_cvt_f32_u32 v63, v63")
    A.e("s_lshl_b32 s6, s7, 9")
    A.e("v_lshlrev_b32 v57, 7, v9")
    A.e("v_add_u32 v57, s6, v57")
    A.e("v_cvt_f32_u32 v57, v57")
    A.e("s_waitcnt lgkmcnt(0)")
    real, A.L = A.L, []
    ni0 = A.ni
    srd(A, rW2, sW2, 1376 * 1024)
    A.e("v_readfirstlane_b32 s14, v54")
    A.e("v_readfirstlane_b32 s86, v56")
    A.e("s_add_u32 s14, s14, 1")
    A.e("s_bitset1_b32 s14, 31")
    A.e("s_add_u32 s86, s86, 1")
    A.e("s_bitset1_b32 s86, 31")
    A.e("v_lshlrev_b32 v60, 16, v60")
    A.e("v_lshlrev_b32 v61, 16, v61")
    A.e("v_lshlrev_b32 v62, 16, v62")
    A.e("v_mul_f32 v62, 0x%x, v62" % f2u(LOG2E))
    A.e("v_exp_f32 v62, v62")
    A.e("s_nop 0")
    A.e("v_cvt_pk_bf16_f32 v62, v62, v62")
    A.e("v_and_b32 v62, 0xffff0000, v62")
    A.e("v_mul_f32 v50, v62, v60")
    A.e("v_mul_f32 v51, v62, v61")
    A.e("v_mul_f32 v50, 0x%x, v50" % f2u(LOG2E))
    A.e("v_mul_f32 v51, 0x%x, v51" % f2u(INV2PI))
    cpow(A, 1.0, LR, LI, "v52", "v53", "v50", "v51")
    cpow(A, 16.0, L16R, L16I, "v52", "v53", "v50", "v51")
    cpow(A, "v57", QR, QI, "v52", "v53", "v50", "v51")
    cpow(A, 256.0, L256R, L256I, "v52", "v53", "v50", "v51")
    cpow(A, "v63", PR, PI, "v52", "v53", "v50", "v51")
    A.e("v_sub_f32 %s, 0, %s" % (NLI, LI))
    A.e("v_mul_f32 v52, v60, v60")
    A.e("v_fmac_f32 v52, v61, v61")
    A.e("v_rcp_f32 v52, v52")
    A.e("v_add_f32 v53, -1.0, %s" % LR)
    A.e("v_mul_f32 %s, v53, v60" % CR)
    A.e("v_fmac_f32 %s, %s, v61" % (CR, LI))
    A.e("v_mul_f32 %s, %s, v60" % (CI, LI))
    A.e("v_fma_f32 %s, -v53, v61, %s" % (CI, CI))
    A.e("v_add_f32 v52, v52, v52")
    A.e("v_mul_f32 %s, %s, v52" % (CR, CR))
    A.e("v_mul_f32 %s, %s, v52" % (CI, CI))
    emit(A, ["v_lshlrev_b32 v54, 5, v8", "v_lshl_add_u32 v54, v9, 4, v54", "v_xor_b32 v55, 0x80, v54"])
    emit(A, ["s_lshl_b32 s6, s7, 2", "s_sub_u32 s6, s6, s4", "s_add_u32 s6, s6, 16",
             "v_add_u32 v62, s6, v9", "v_lshlrev_b32 v60, 9, v62", "v_lshl_add_u32 v60, v8, 4, v60",
             "v_sub_u32 v62, 17, v62", "v_and_b32 v62, -2, v62", "v_max_i32 v62, 0, v62", "v_min_i32 v62, 4, v62",
             "v_lshlrev_b32 v63, 3, v8", "v_add_u32 v63, %d, v63" % (MISC + 8192),
             "s_lshl_b32 s6, s7, 9", "v_lshl_add_u32 v61, v9, 8, v63", "v_add_u32 v61, s6, v61"])

    par_ops = [x.strip() for x in A.L]
    A.L, A.ni = real, ni0

    tiles = [0, 1]
    LA, LAF = PAR["la"], PAR["laf"]
    assert LA <= LAF <= 4
    assert LASTP + 1 <= PAR["estep"] <= PAR["cstep"] and PAR["cstep"] + 1 <= PAR["lastbar"] and PAR["cstep"] + 1 < PAR["hstep"] <= 15 and PAR["lastbar"] >= 13
    S = Stream(A, mk_items(ORD, 2, True), 4, PAR["sd"], PAR["sfill"])
    S.fence = LASTP + 1
    sw = []
    if PAR["dyn"]:
        S.dyn = True
        A.e("s_setprio 2")
    late = []
    dq = []
    for n in range(LASTP + LA + 1, 16):
        dq += [(n, f) for f in dma_ops(A, n, "v4", "v7", (0,) if PAR["split"] else (0, 1))]

    def dma_upto(m, maxops=999):
        while dq and dq[0][0] <= m and maxops > 0:
            dq.pop(0)[1]()
            maxops -= 1

    def ssm_publish():
        A.e("s_nop 7")
        A.e("s_nop 3")
        cur = (v(RE), v(IM))
        tmp = [("v48", "v49"), ("v50", "v51")]
        for r in range(1, 16):
            d = (ER, EI) if r == 15 else tmp[r & 1]
            emit(A, cfma_ops(d[0], d[1], LR, LI, cur[0], cur[1], v(RE + r), v(IM + r)))
            cur = d
        A.e("ds_write_b64 v4, v[56:57]")
        A.e("v_mov_b32 v48, %d" % (MISC + 4096))
        A.e("v_mov_b32 v49, 1")
        A.e("s_mov_b64 exec, 1")
        A.e("ds_add_u32 v48, v49")
        A.e("s_mov_b64 exec, -1")
        A.e("s_mov_b32 s13, 0")
        A.lab("L_S_sync")
        A.e("ds_read_b32 v49, v48")
        A.e("s_add_u32 s13, s13, 1")
        A.e("s_waitcnt lgkmcnt(0)")
        A.e("v_readfirstlane_b32 s6, v49")
        A.e("s_cmp_lt_u32 s13, 0x100000")
        A.e("s_cselect_b32 s6, s6, 4")
        A.e("s_cmp_lt_u32 s6, 4")
        A.e("s_cbranch_scc1 L_S_sync")
        A.lg = []
        er = lambda m: (24 + 2 * m if m < 4 else 32 + 2 * (m - 4))
        for m in range(6, -1, -1):
            A.lgi("er%d" % m, "ds_read_b64 %s, v4 offset:%d" % (v(er(m), 2), 256 * (m + 1)))
        cur = (v(er(6)), v(er(6) + 1))
        for m in range(5, -1, -1):
            d = (SR, SI) if m == 0 else tmp[m & 1]
            A.lgw("er%d" % m)
            emit(A, cfma_ops(d[0], d[1], L16R, L16I, cur[0], cur[1], v(er(m)), v(er(m) + 1)))
            cur = d
        A.e("s_cmp_lg_u32 s7, 3")
        A.e("s_cbranch_scc1 L_S_nopub")
        A.cond = True
        emit(A, cfma_ops("v24", "v26", L16R, L16I, SR, SI, ER, EI))
        A.e("v_mov_b32 v25, s14")
        A.e("v_mov_b32 v27, s14")
        A.e("s_sub_u32 s6, 15, s4")
        A.e("s_lshl_b32 s6, s6, 9")
        A.e("v_lshlrev_b32 v28, 4, v8")
        A.e("s_mov_b32 exec_lo, 0")
        A.e("buffer_store_dwordx4 v[24:27], v28, %s, s6 offen sc1" % s(rE, 4))
        A.e("s_mov_b64 exec, -1")
        A.cond = False
        A.lab("L_S_nopub")
        A.fs(56)
        emit(A, wdma_addr_ops("v4", "v7", "v48"))
        for r in range(16):
            t = "v%d" % (48 + (r & 3))
            S.fill += ["v_mul_f32 %s, %s, %s" % (t, CI, v(RE + r)), "v_mul_f32 %s, %s, %s" % (v(RE + r), CR, v(RE + r)),
                       "v_fma_f32 %s, -%s, %s, %s" % (v(RE + r), CI, v(IM + r), v(RE + r)), "v_fma_f32 %s, %s, %s, %s" % (v(IM + r), CR, v(IM + r), t)]
        if not PAR["coeff"]:
            S.flush()

    def e_issue(tag=None):
        for m in range(2):
            x = "buffer_load_dwordx4 %s, v60, %s, 0 offen offset:%d sc1" % (v(24 + 4 * m, 4), s(rE, 4), 1024 * m)
            if tag:
                A.vmi(tag, x)
            else:
                A.e(x)

    def e_check():
        A.fs(17)
        A.e("s_mov_b32 s13, 0")
        A.vmw("e")
        A.lab("L_S_poll")
        A.e("v_mov_b32 v48, 0")
        for q in range(4):
            A.e("v_cmp_eq_u32 s[%d:%d], s14, %s" % (18 + 2 * q, 19 + 2 * q, v(25 + 2 * q)))
        for q in range(4):
            A.e("v_addc_co_u32 v48, vcc, 0, v48, s[%d:%d]" % (18 + 2 * q, 19 + 2 * q))
        A.e("v_cmp_ne_u32 vcc, v62, v48")
        A.e("s_cbranch_vccz L_S_ready")
        A.cond = True
        A.e("s_sleep 2")
        e_issue()
        A.e("s_add_u32 s13, s13, 1")
        A.e("s_cmp_lt_u32 s13, 0x20000")
        A.e("s_waitcnt vmcnt(0)")
        A.e("s_cbranch_scc1 L_S_poll")
        A.cond = False
        A.lab("L_S_ready")
        emit(A, cfma_ops("v48", "v49", L256R, L256I, "v28", "v30", "v24", "v26"))
        A.e("v_mul_f32 v50, %s, v48" % QR)
        A.e("v_mul_f32 v51, %s, v49" % QR)
        A.e("v_fma_f32 v50, -%s, v49, v50" % QI)
        A.e("v_fmac_f32 v51, %s, v48" % QI)
        A.lgi("pw", "ds_write_b64 v61, v[50:51]")
        A.fs(18)

    def scan_ops():
        o = []
        pr = [24, 26, 28, 30, 48, 50, 52, 56]
        def prd():
            for q in range(8):
                A.lgi("pr", "ds_read_b64 %s, v63 offset:%d" % (v(pr[q], 2), 256 * q))
        bump = lambda: lane0_store(A, ["s_lshl_b32 s6, s7, 4", "s_add_u32 s6, s6, s4", "s_cmp_lg_u32 s6, 15"], "s14", rEP, "0", 0, "v60", "v61", "L_S_noep")
        o += [prd, bump, lambda: A.lgw("pr")]
        for (x, y) in ((0, 1), (2, 3), (4, 5), (6, 7), (0, 2), (4, 6), (4, 0)):
            o.append("v_add_f32 %s, %s, %s" % (v(pr[x]), v(pr[x]), v(pr[y])))
            o.append("v_add_f32 %s, %s, %s" % (v(pr[x] + 1), v(pr[x] + 1), v(pr[y] + 1)))
        o += cfma_ops("v50", "v51", PR, PI, "v48", "v49", SR, SI)
        o += ["v_mul_f32 v48, %s, v50" % CR, "v_mul_f32 v49, %s, v51" % CR, "v_fma_f32 v48, -%s, v51, v48" % CI, "v_fmac_f32 v49, %s, v50" % CI]
        cur = ("v48", "v49")
        for r in range(16):
            o.append("v_fmac_f32 %s, %s, %s" % (v(RE + r), LR, cur[0]))
            o.append("v_fmac_f32 %s, %s, %s" % (v(IM + r), LR, cur[1]))
            o.append("v_fmac_f32 %s, %s, %s" % (v(RE + r), NLI, cur[1]))
            o.append("v_fmac_f32 %s, %s, %s" % (v(IM + r), LI, cur[0]))
            cur = (v(RE + r), v(IM + r))
        for q in range(8):
            o.append("v_cvt_pk_bf16_f32 %s, %s, %s" % (v(RE + q), v(RE + 2 * q), v(RE + 2 * q + 1)))
        for q in range(8):
            o.append("v_cvt_pk_bf16_f32 %s, -%s, -%s" % (v(IM + q), v(IM + 2 * q), v(IM + 2 * q + 1)))
        def st(ks):
            A.vmi("hst", "buffer_store_dwordx4 %s, %s, %s, s%d offen offset:%d%s" % (v((RE, RE + 4, IM, IM + 4)[ks], 4), "v55" if ks & 1 else "v54", s(rAS, 4),
                                                                                   101 if ks >= 2 else 100, 1024 * (ks & 1), stmod()))
            if ks == 3:
                A.fs(19)
        for ks in range(4):
            o.append(lambda ks=ks: st(ks))
            o += [("gap",)] * PAR["stgap"]
        return o

    def prefetch_c():
        A.e("s_lshr_b32 s15, s5, 3")
        A.e("s_lshl_b32 s15, s15, 18")
        A.e("s_lshr_b32 s6, s2, 3")
        A.e("s_lshl_b32 s6, s6, 13")
        A.e("s_add_u32 s15, s15, s6")
        A.e("s_lshl_b32 s6, s7, 11")
        A.e("s_add_u32 s15, s15, s6")
        A.e("v_lshlrev_b32 v18, 7, v1")
        A.e("s_mov_b64 exec, 0xffff")
        A.vmi("pf", "buffer_load_dword v19, v18, %s, s15 offen" % s(rCRE, 4))
        A.vmi("pf", "buffer_load_dword v19, v18, %s, s15 offen" % s(rCIM, 4))
        A.e("s_mov_b64 exec, -1")

    def prefetch_w2():
        A.e("s_lshr_b32 s6, s2, 3")
        A.e("s_mul_i32 s15, s6, 43")
        A.e("s_mul_i32 s6, s7, 11")
        A.e("s_add_u32 s15, s15, s6")
        A.e("s_lshl_b32 s15, s15, 1")
        A.e("s_lshr_b32 s6, s5, 3")
        A.e("s_add_u32 s15, s15, s6")
        A.e("s_lshl_b32 s15, s15, 9")
        A.e("v_lshrrev_b32 v18, 2, v1")
        A.e("v_lshlrev_b32 v18, 3, v18")
        A.e("v_and_or_b32 v18, v1, 3, v18")
        A.e("v_lshlrev_b32 v18, 7, v18")
        A.e("s_mov_b32 exec_hi, 0xfff")
        A.vmi("pf", "buffer_load_dword v19, v18, %s, s15 offen" % s(rW2, 4))
        A.e("s_mov_b64 exec, -1")

    def spf_setup():
        n_ = PAR["spfn"]
        A.e("s_lshr_b32 s6, s2, 3")
        A.e("s_mul_i32 s30, s6, %d" % ((255 + n_) // n_))
        A.e("s_lshr_b32 s30, s30, 8")
        A.e("s_mul_i32 s30, s30, %d" % n_)
        A.e("s_sub_u32 s30, s6, s30")
        A.e("s_lshr_b32 s9, s5, 3")
        A.e("s_lshl_b32 s9, s9, 18")
        A.e("s_lshl_b32 s15, s6, 13")
        A.e("s_add_u32 s9, s9, s15")
        A.e("s_lshl_b32 s15, s7, 11")
        A.e("s_add_u32 s9, s9, s15")
        A.e("s_mul_i32 s15, s6, 43")
        A.e("s_mul_i32 s6, s7, 11")
        A.e("s_add_u32 s15, s15, s6")
        A.e("s_lshl_b32 s15, s15, 1")
        A.e("s_lshr_b32 s6, s5, 3")
        A.e("s_add_u32 s15, s15, s6")
        A.e("s_lshl_b32 s15, s15, 9")

    def spf_site(q, va='v18', vd='v19'):
        def f():
            A.e("s_cmp_lg_u32 s30, %d" % q)
            A.e("s_cbranch_scc1 L_spf%d" % q)
            A.cond = True
            A.e(("v_lshlrev_b32 v18, 7, v1").replace("v18", va).replace("v19", vd))
            A.e("s_mov_b64 exec, 0xffff")
            A.e(("buffer_load_dword v19, v18, %s, s9 offen" % s(rCRE, 4)).replace("v18", va).replace("v19", vd))
            A.e(("buffer_load_dword v19, v18, %s, s9 offen" % s(rCIM, 4)).replace("v18", va).replace("v19", vd))
            A.e("s_mov_b64 exec, -1")
            A.e(("v_lshrrev_b32 v18, 2, v1").replace("v18", va).replace("v19", vd))
            A.e(("v_lshlrev_b32 v18, 3, v18").replace("v18", va).replace("v19", vd))
            A.e(("v_and_or_b32 v18, v1, 3, v18").replace("v18", va).replace("v19", vd))
            A.e(("v_lshlrev_b32 v18, 7, v18").replace("v18", va).replace("v19", vd))
            A.e("s_mov_b32 exec_hi, 0xfff")
            A.e(("buffer_load_dword v19, v18, %s, s15 offen" % s(rW2, 4)).replace("v18", va).replace("v19", vd))
            A.e("s_mov_b64 exec, -1")
            A.cond = False
            A.lab("L_spf%d" % q)
        return f

    def warm_w():
        A.e("s_and_b32 s6, s83, 7")
        A.e("s_lshl_b32 s6, s6, 2")
        A.e("s_add_u32 s6, s6, s7")
        A.e("s_mul_i32 s6, s6, %d" % (16 * 2752))
        A.e("s_mul_i32 s13, s5, 192")
        A.e("s_add_u32 s6, s6, s13")
        A.e("s_add_u32 s6, s6, s92")
        A.e("v_lshrrev_b32 v52, 1, v8")
        A.e("v_mul_u32_u24 v52, 2752, v52")
        A.e("v_and_b32 v53, 1, v1")
        A.e("v_lshl_add_u32 v52, v53, 7, v52")
        A.e("s_mov_b32 exec_hi, 0")
        A.e("s_bitcmp1_b32 s4, 3")
        A.e("s_cbranch_scc1 L_ww3")
        A.e("buffer_load_dword v53, v52, %s, s6 offen" % s(rW1, 4))
        A.e("s_branch L_ww")
        A.lab("L_ww3")
        A.e("buffer_load_dword v53, v52, %s, s6 offen" % s(rW3, 4))
        A.lab("L_ww")
        A.e("s_mov_b64 exec, -1")

    if PAR["spf"] or PAR["mpf"] >= 0:
        spf_setup()
    if PAR["mpf"] >= 0:
        A.e("s_bfe_u32 s6, s2, 0x10002")
        A.e("s_lshl_b32 s6, s6, 1")
        A.e("s_and_b32 s30, s2, 1")
        A.e("s_add_u32 s30, s30, s6")
        A.e("s_sub_u32 s30, s30, s7")
    if PAR["pf"] and not PAR["spf"] and not PAR["fpf"]:
        dq.append((PAR["pfc"] + LAF, prefetch_c))
        if PAR["pfw"] <= 15:
            dq.append((PAR["pfw"] + LAF, prefetch_w2))

    N = len(P2_SEQ)
    LA2 = PAR["ala"]
    assert LA2 <= NA - 2

    def p2_setup1():
        tile_of(A, "s11", "s10")
        A.e("s_and_b32 s13, s10, 3")
        A.e("s_lshl_b32 s13, s13, 1")
        if PAR["urot"] and PAR["map"]:
            A.e("s_add_u32 s13, s13, s4")
            A.e("s_and_b32 s13, s13, 7")
        elif PAR["urot"]:
            A.e("s_add_u32 s13, s13, s11")
            A.e("s_lshl_b32 s6, s4, 1")
            A.e("s_add_u32 s13, s13, s6")
            A.e("s_and_b32 s13, s13, 7")
        A.e("s_sub_u32 s14, s13, 6")
        A.e("s_cmp_ge_u32 s13, 6")
        A.e("s_cselect_b32 s14, s14, s13")
        A.e("s_lshl_b32 s9, s7, 11")
        A.e("v_and_b32 v11, 7, v1")
        A.e("v_lshrrev_b32 v22, 3, v1")
        A.e("v_lshrrev_b32 v10, 4, v1")
        A.e("v_xor_b32 v10, v10, v11")
        A.e("v_lshlrev_b32 v10, 4, v10")
        A.e("v_lshl_add_u32 v4, v22, 10, v10")
        A.e("s_lshl_b32 s6, s7, 14")
        A.e("s_lshl_b32 s12, s10, 16")
        A.e("s_add_u32 s12, s12, s6")
        A.e("v_add_u32 v4, s12, v4")
        A.e("v_xor_b32 v5, 64, v4")
        A.e("v_add_u32 v5, 8192, v5")

    def p2_setup2():
        A.e("s_and_b32 s12, s7, 1")
        A.e("s_lshr_b32 s15, s7, 1")
        A.e("s_lshl_b32 s15, s15, 11")
        A.e("v_add_u32 v2, s15, v6")
        A.e("s_lshl_b32 s8, s12, 12")
        A.e("s_add_u32 s8, s8, s15")
        A.e("s_lshl_b32 s6, s4, 1")
        A.e("s_add_u32 s6, s6, s11")
        A.e("s_lshl_b32 s6, s6, 1")
        A.e("s_add_u32 s6, s6, s12")
        A.e("s_mul_i32 s6, s6, %d" % (NKS * 1024))
        srd(A, rA2, sWS, NKS * 1024, "s6")
        A.e("v_bfe_u32 v10, v1, 4, 1")
        A.e("v_lshlrev_b32 v10, 2, v10")
        A.e("v_xor_b32 v10, v10, v11")
        A.e("v_lshlrev_b32 v10, 4, v10")
        A.e("v_lshl_add_u32 v3, v22, 10, v10")
        A.e("s_lshl_b32 s6, s7, 14")
        A.e("s_lshl_b32 s12, s10, 7")
        A.e("s_add_u32 s12, s12, s6")
        A.e("v_add_u32 v3, s12, v3")
        A.e("v_add_u32 v7, 8192, v3")
        A.e("v_and_b32 v17, 15, v1")
        A.e("v_lshlrev_b32 v17, 2, v17")

    def idx(n):
        kind, base, ln, m = P2_SEQ[n]
        if ln == 8:
            A.e("s_add_u32 s12, s13, %d" % m)
            A.e("s_and_b32 s12, s12, 7")
        else:
            A.e("s_add_u32 s12, s14, %d" % m)
            A.e("s_sub_u32 s6, s12, 6")
            A.e("s_cmp_ge_u32 s12, 6")
            A.e("s_cselect_b32 s12, s6, s12")

    def dma_w(n):
        kind, base, ln, m = P2_SEQ[n]
        if kind == "X":
            srd(A, rE, sX, 2048 * 1024)
            A.e("s_lshl_b32 s6, s4, 1")
            A.e("s_add_u32 s6, s6, s11")
            A.e("s_lshl_b32 s6, s6, 2")
            A.e("s_add_u32 s6, s6, s7")
            A.e("s_lshl_b32 s6, s6, 14")
            A.e("s_lshl_b32 s12, s10, 7")
            A.e("s_add_u32 s12, s12, s6")
            A.e("v_and_b32 v10, 7, v1")
            A.e("v_lshlrev_b32 v10, 4, v10")
            A.e("v_lshl_add_u32 v10, v22, 10, v10")
            A.e("s_add_u32 m0, s9, %d" % WU(n))
            A.e("s_add_u32 s6, s12, 8192")
            A.vmi("w%d" % n, "buffer_load_dwordx4 v10, %s, s12 offen lds" % s(rE, 4))
            A.e("s_add_u32 m0, s9, %d" % (WU(n) + 1024))
            A.e("s_nop 0")
            A.vmi("w%d" % n, "buffer_load_dwordx4 v10, %s, s6 offen lds" % s(rE, 4))
            return
        idx(n)
        if "whot" in OPT:
            kind, base = "C", 0
        if kind == "W":
            A.e("s_lshl_b32 s12, s12, 16")
            if base:
                A.e("s_add_u32 s12, s12, %d" % (base * 65536))
            r_, va, vb = rW2, "v3", "v7"
        else:
            A.e("s_lshl_b32 s12, s12, 7")
            r_, va, vb = (rCIM if base else rCRE), "v4", "v5"
        A.e("s_add_u32 m0, s9, %d" % WU(n))
        A.e("s_nop 0")
        A.vmi("w%d" % n, "buffer_load_dwordx4 %s, %s, s12 offen lds" % (va, s(r_, 4)))
        A.e("s_add_u32 m0, s9, %d" % (WU(n) + 1024))
        A.e("s_nop 0")
        A.vmi("w%d" % n, "buffer_load_dwordx4 %s, %s, s12 offen lds" % (vb, s(r_, 4)))

    def dma_a(n):
        kind, base, ln, m = P2_SEQ[n]
        if kind == "X":
            srd(A, rEP, sWS, 16384, "0x%x" % G_OFF)
            A.e("s_lshl_b32 s12, s4, 1")
            A.e("s_add_u32 s12, s12, s11")
            A.e("s_lshl_b32 s12, s12, 9")
            A.e("s_mov_b32 m0, %d" % AU(n))
            A.e("s_mov_b32 exec_hi, 0")
            A.vmi("a%d" % n, "buffer_load_dwordx4 v6, %s, s12 offen sc1 lds" % s(rEP, 4))
            srd(A, rEP, sDS, 1024)
            A.e("s_lshl_b32 s12, s10, 7")
            A.e("s_mov_b32 m0, %d" % (AU(n) + 1024))
            A.e("s_mov_b64 exec, 0xff")
            A.vmi("a%d" % n, "buffer_load_dwordx4 v6, %s, s12 offen lds" % s(rEP, 4))
            A.e("s_mov_b64 exec, -1")
            return
        idx(n)
        A.e("s_lshl_b32 s12, s12, 12")
        off = (64 + 4 * base) * 1024 if kind == "W" else 4 * base * 1024
        if "ahot" in OPT:
            off = 0
        if off:
            A.e("s_add_u32 s12, s12, %d" % off)
        A.e("s_add_u32 m0, s8, %d" % AU(n))
        A.e("s_nop 0")
        A.vmi("a%d" % n, "buffer_load_dwordx4 v2, %s, s12 offen sc1 lds" % s(rA2, 4))
        A.vmi("a%d" % n, "buffer_load_dwordx4 v2, %s, s12 offen offset:1024 sc1 lds" % s(rA2, 4))

    def check(tag, off, L):
        A.e("s_mov_b32 s15, 0")
        A.vmw(tag)
        A.lab(L + "_poll")
        A.e("v_cmp_ne_u32 vcc, s86, v16")
        A.e("s_cbranch_vccz %s_go" % L)
        A.e("s_sleep %d" % PAR["slp"])
        A.e("buffer_load_dword v16, v17, %s, 0 offen offset:%d sc1" % (s(rFL, 4), off))
        A.e("s_add_u32 s15, s15, 1")
        A.e("s_cmp_lt_u32 s15, 0x20000")
        A.e("s_waitcnt vmcnt(0)")
        A.e("s_cbranch_scc1 %s_poll" % L)
        A.lab(L + "_go")

    def pre(b):
        kind, c = ORD[b]
        slot = slot_of(b)
        if b == 0 and PAR["wpf"] == 99:
            warm_w()
        if b == 0 and PAR["mpf"] == 99:
            spf_site(0, "v52", "v53")()
        if b == LASTP + 1:
            S.flush()
            S.K = PAR["sfill"]
            ssm_publish()
            A.thr = PAR["thr"]
        if b == PAR["cstep"] + 1:
            S.flush()
            A.lgw("pw")
        if b == PAR["cstep"] + 2:
            assert "pr" not in A.lg
        dma_upto(min(b - 1 + LA, 15) if b != PAR["lastbar"] else 15)
        if kind == "P":
            A.e("v_add_u32 v28, %d, v7" % slot)
            A.e("v_xor_b32 v29, 32, v28")
            A.e("v_xor_b32 v30, 64, v28")
            A.e("v_xor_b32 v31, 0x60, v28")
            for q in range(4):
                A.e("v_add_u32 %s, s8, %s" % (v(24 + q), v(28 + q)))
        else:
            A.e("v_add_u32 v14, %d, v12" % slot)
            A.e("v_add_u32 v15, %d, v13" % slot)
        A.fs2(20 + b)
        A.vmw("ch%d" % (b if b != PAR["lastbar"] else 15))
        A.fs2(36 + b)

    def hflag():
        assert "hst" in A.vm or True
        A.vmw("hst")
        A.e("v_mov_b32 v24, %d" % (LDS_CNT))
        A.e("v_mov_b32 v25, 1")
        A.e("s_mov_b64 exec, 1")
        A.lgi("hc", "ds_add_rtn_u32 v26, v24, v25")
        A.e("s_mov_b64 exec, -1")

    def hflag2():
        A.lgw("hc")
        A.e("v_readfirstlane_b32 s6, v26")
        lane0_store(A, ["s_cmp_lg_u32 s6, 3"], "s86", rFL, "s87", 0, "v24", "v25", "L_S_nofl")
        A.fs(57)

    def post(b):
        A.fs(b)
        if b == 1:
            S.fill += [lambda: A.vmw("par")] + par_ops
            S.K = PAR["pfill"]
        if b == PAR["wpf"]:
            warm_w()
        if b == PAR["mpf"]:
            spf_site(0, "v52", "v53")()
        if PAR["spf"] and 0 <= b - PAR["spf0"] < PAR["spfn"]:
            spf_site(b - PAR["spf0"])()
        if b == PAR["estep"]:
            e_issue("e")
        if b == PAR["cstep"]:
            S.fill += [("gap",)] * PAR["cdelay"] + [e_check]
        if b == PAR["cstep"] + 1:
            S.fill += scan_ops()
            S.K = PAR["sfill2"]
        if b == PAR["hstep"]:
            S.fill += [hflag, ("gap",), hflag2]
        if b == PAR["lastbar"]:
            assert PAR["lastbar"] == 14 and PAR["nt"] <= 2 and 2 <= PAR["ew"] <= 7
            S.fill += [p2_setup1, ("gap",)]
            for n in range(PAR["ew"]):
                S.fill += [lambda n=n: dma_w(n), ("gap",)]
            S.fill += [p2_setup2]

    def read(it, sl, tag):
        n, ss, ti = it
        kind, c = ORD[n]
        if kind == "P":
            if ti == 0:
                A.lgi(tag, "ds_read_b128 %s, %s" % (a(16 * c + 4 * ss, 4), v(24 + ss)))
            A.lgi(tag, "ds_read_b128 %s, %s offset:%d" % (v(FB + 4 * sl, 4), v(28 + ss), 16384 + 4096 * ti))
        else:
            T = tiles[ti]
            for nn in range(2):
                A.lgi(tag, "ds_read_b64_tr_b16 %s, v%d offset:%d" % (v(FB + 4 * sl + 2 * nn, 2), 14 + (T & 1),
                                                                    ss * 6144 + (T >> 1) * 1024 + nn * 256))

    def mfma(it, sl):
        n, ss, ti = it
        kind, c = ORD[n]
        first = (c == 0 and ss == 0)
        if kind == "P":
            d = (RE, IM)[ti]
            A.e("v_mfma_f32_32x32x16_bf16 %s, %s, %s, %s" % (v(d, 16), a(16 * c + 4 * ss, 4), v(FB + 4 * sl, 4), "0" if first else v(d, 16)))
        else:
            d = ACC + 16 * ti
            A.e("v_mfma_f32_32x32x16_bf16 %s, %s, %s, %s" % (v(d, 16), v(FB + 4 * sl, 4), a(16 * c + 4 * ss, 4), "0" if first else v(d, 16)))

    def after(it, mp):
        n, ss, ti = it
        if n == 15 and ss == 3:
            S.fill.append(("dist", S.ninstr()))
            sw.append(swiglu_ops(A, ACC + 16 * ti, 1024 * ti, False, late if ti >= 2 - PAR["defS"] else None))
        if n > LASTP and (not PAR["split"] or mp % 2 == 0):
            dma_upto(S.nb - 1 + LAF, 1)

    S.pre, S.post, S.read, S.mfma, S.after = pre, post, read, mfma, after
    S.run()
    assert not dq
    A.fs(16)
    A.vmi("poll", "buffer_load_dword v16, v17, %s, 0 offen sc1" % s(rFL, 4))
    S.flush()
    emit(A, sw[0])
    A.fs(58)
    A.thr = PAR["thr2"]
    check("poll", 0, "L_p2a")
    A.fs(55)
    for n in range(PAR["ea"]):
        dma_a(n)
    emit(A, sw[1])
    wn, an = PAR["ew"], PAR["ea"]
    for n in range(N):
        A.vmw("w%d" % n)
        A.vmw("a%d" % n)
        if n == PAR["fl2"]:
            assert not late
            A.vmw("st")
        A.e("s_barrier")
        A.fs(20 + n) if n < 35 else None
        if n == PAR["fl2"]:
            lane0_store(A, ["s_cmp_lg_u32 s3, 0"], "s86", rFL, "s87", 256, "v10", "v11", "L_p2_nofl")
        if n == PAR["chk2"]:
            check("poll2", 256, "L_p2b")
            lane0_store(A, ["s_lshl_b32 s6, s5, 2", "s_add_u32 s6, s6, s7", "s_cmp_lg_u32 s6, 0"], "s86", rG, "0", 0, "v10", "v11", "L_p2_noep")
        if n == PAR["p2poll"]:
            A.vmi("poll2", "buffer_load_dword v16, v17, %s, 0 offen offset:256 sc1" % s(rFL, 4))
        budget = 3 if (n == PAR["chk2"] or n < 4) else 2
        while budget > 0:
            a_ok = an < N and an <= n + LA2 and (an < NSSM or n >= PAR["chk2"])
            w_ok = wn < N and wn - NW <= n - 2
            if w_ok and (wn < an or not a_ok):
                if not a_ok and wn > n + PAR["wla"] and not (an == NSSM and n < PAR["chk2"]):
                    break
                dma_w(wn); wn += 1
            elif a_ok:
                dma_a(an); an += 1
            else:
                break
            budget -= 1
        if late and n >= 1 and n % 2 == 1:
            late.pop(0)()
        if PAR["pf"] and not PAR["spf"] and not PAR["fpf"] and PAR["pfw"] > 15 and n == PAR["pfw2"]:
            prefetch_w2()
        assert (an > n + 1 or an == N) and (wn > n + 1 or wn == N)
    assert an == N and wn == N
    A.fs_end()
    A.e("s_endpgm")


def gen_all(A):
    K = NAME + "_kernel"
    A.L.append(".globl %s\n.p2align 8\n.type %s,@function\n%s:" % (K, K, K))
    prologue(A)
    role_F(A)
    fm = A.L[A.fmain:]
    del A.L[A.fmain:]
    role_S(A)
    A.L += fm
    A.lab("L_end")
    A.e("s_endpgm")
    A.lab("L_code_end")


def kd(name, nv, acc, ns=102):
    return """.amdhsa_kernel %s
  .amdhsa_next_free_vgpr %d
  .amdhsa_next_free_sgpr %d
  .amdhsa_accum_offset %d
  .amdhsa_group_segment_fixed_size 0
  .amdhsa_kernarg_size 136
  .amdhsa_user_sgpr_count 2
  .amdhsa_user_sgpr_kernarg_segment_ptr 1
  .amdhsa_system_sgpr_workgroup_id_x 1
.end_amdhsa_kernel
""" % (name, nv, ns, acc)


def main(path):
    ref = open("cdna_kernels/%s.s.ref" % NAME).read().splitlines()
    head = [l for l in ref if l.startswith(";") and "@launch" not in l and "Override launch" not in l and "grid=ceil" not in l]
    head = head[:18]
    A = Asm()
    gen_all(A)
    out = head + [
        "; @launch grid=(256,1,1) block=(512,1,1) lds=%d" % K1_LDS,
        '.amdgcn_target "amdgcn-amd-amdhsa--gfx950"', ".text"] + A.L + [
        '.section .rodata,"a"', ".p2align 6", kd(NAME + "_kernel", 256, 128)]
    open(path, "w").write("\n".join(out))


if __name__ == "__main__":
    if "--stamp" in sys.argv:
        STAMP = True
        sys.argv.remove("--stamp")
    for x in list(sys.argv):
        if x.startswith("-O"):
            OPT.add(x[2:]); sys.argv.remove(x)
        elif x.startswith("-P"):
            kk, vv = x[2:].split("=")
            PAR[kk] = vv if kk.startswith("ord") else int(vv)
            sys.argv.remove(x)
    main(sys.argv[1] if len(sys.argv) > 1 else "cdna_kernels/%s.s" % NAME)
```

```python
import sys, struct

NAME = "gated_mix__ssm_conv_s5__glu_gated_swiglu__prompt"

def f2u(x):
    return struct.unpack("<I", struct.pack("<f", x))[0]

LOG2E = 1.4426950408889634
INV2PI = 0.15915494309189535

NKS = 150
A_BYTES = 64 * NKS * 1024
E_OFF = 0xA00000
G_OFF = 0xA20000
EP_OFF = 0xA30000


EPR_OFF = 0xA31000
FL_OFF = 0xA40000

XB_OFF = 0xC00000

STAMP = False
OPT = {"asc0", "asc1", "osc0", "osc1", "xsc1"}
ST_OFF = 0xB00000

class Asm:
    def __init__(self):
        self.L = []
        self.ni = 0
        self.cond = False
        self.thr = 99
        self.vm = []
        self.lg = []

    def e(self, s):
        if "nomfma" in OPT and s.startswith("v_mfma"):
            s = "s_nop 0"
        if "nolds" in OPT and s.startswith("ds_read"):
            s = "s_nop 0"
        if "nohst" in OPT and s.startswith("buffer_store_dwordx4") and ("s100" in s or "s101" in s):
            s = "s_nop 0"
        if "noHst" in OPT and s.startswith("buffer_store_dwordx4") and ("s82" in s or "s87" in s):
            s = "s_nop 0"
        if "noout" in OPT and s.startswith("buffer_store_dword ") and "v20," in s:
            s = "s_nop 0"
        if "notw" in OPT and s.startswith("ds_write_b128"):
            s = "s_nop 0"
        if "noscan" in OPT and s.startswith("v_fmac_f32"):
            return
        if "m16" in OPT and s.startswith("v_mfma_f32_32x32x16"):
            import re as _re
            m_ = _re.match(r"v_mfma_f32_32x32x16_bf16 v\[(\d+):\d+\], (\S+), (\S+), (\S+)", s)
            d_ = int(m_.group(1)); self.m16 = getattr(self, "m16", 0) + 1
            for q_ in range(2):
                dd = d_ + 4 * (2 * ((self.m16 >> 2) & 1) + q_)
                self.L.append("  v_mfma_f32_16x16x32_bf16 v[%d:%d], %s, %s, %s" % (dd, dd + 3, m_.group(2), m_.group(3), "0" if m_.group(4) == "0" else "v[%d:%d]" % (dd, dd + 3)))
                self.ni += 1
            return
        self.L.append("  " + s)
        if not self.cond:
            self.ni += 1

    def c(self, s):
        pass

    def lab(self, s):
        self.L.append(s + ":")

    def fs2(self, n):
        if "vw" in OPT:
            self.fs(n, True)

    def fs(self, n, vw=False):
        if "hold" in OPT and n == PAR["probe"]:
            self.e("s_memrealtime s[96:97]")
            return
        if "vw" in OPT and not vw and 20 <= n < 55:
            return
        if "so" in OPT and n != 61:
            return
        if STAMP and ("light" not in OPT or n in (0, 7, 9, 13, 15, 16, 19, 20, 36, 55, 58, 59, 61)):
            self.e("%s s[98:99]" % ("s_memrealtime" if "rt" in OPT else "s_memtime"))
            self.e("s_waitcnt lgkmcnt(0)")
            self.lg = []
            self.e("s_sub_u32 s98, s98, s96")
            self.e("v_writelane_b32 v0, s98, %d" % n)

    def dbg_end(self):
        if "hold2" in OPT:
            self.e("s_load_dwordx2 s[8:9], s[0:1], 120")
            self.e("s_waitcnt vmcnt(0) lgkmcnt(0)")
            self.e("s_mov_b32 s10, 256")
            self.e("s_mov_b32 s11, 0x20000")
            self.e("s_not_b32 s12, s94")
            self.e("v_mov_b32 v2, s12")
            self.e("v_mov_b32 v1, 0")
            self.e("s_mov_b64 exec, 1")
            self.e("s_cmp_lg_u32 s7, 0")
            self.e("s_cbranch_scc1 L_hold_a")
            self.e("buffer_atomic_umax v2, v1, s[8:11], 0 offen")
            self.lab("L_hold_a")
            self.e("s_sleep 4")
            self.e("s_memrealtime s[98:99]")
            self.e("s_waitcnt lgkmcnt(0)")
            self.e("s_sub_u32 s98, s98, s94")
            self.e("s_cmp_lt_u32 s98, 4000")
            self.e("s_cbranch_scc1 L_hold_a")
            self.e("buffer_load_dword v2, v1, s[8:11], 0 offen sc1")
            self.e("s_waitcnt vmcnt(0)")
            self.e("v_readfirstlane_b32 s94, v2")
            self.e("s_not_b32 s94, s94")
        if "hold" in OPT:
            self.lab("L_hold")
            self.e("s_sleep 4")
            self.e("s_memrealtime s[98:99]")
            self.e("s_waitcnt lgkmcnt(0)")
            self.e("s_sub_u32 s98, s98, s%d" % (96 if PAR["probe"] >= 0 else 94))
            self.e("s_cmp_lt_u32 s98, %d" % PAR["hold"])
            self.e("s_cbranch_scc1 L_hold")
        if "dbg" in OPT:
            self.e("s_waitcnt vmcnt(0)")
            self.e("s_memrealtime s[98:99]")
            self.e("s_memtime s[92:93]")
            self.e("s_load_dwordx2 s[8:9], s[0:1], 120")
            self.e("s_waitcnt lgkmcnt(0)")
            self.e("s_mov_b32 s10, 256")
            self.e("s_mov_b32 s11, 0x20000")
            self.e("s_not_b32 s94, s94")
            self.e("s_sub_u32 s92, s92, s96")
            self.e("v_mov_b32 v2, s94")
            self.e("v_mov_b32 v3, s98")
            self.e("v_mov_b32 v4, s92")
            self.e("v_mov_b32 v1, 0")
            self.e("s_cmp_lg_u32 s7, 0")
            self.e("s_cbranch_scc1 L_dbg_done")
            self.e("s_mov_b64 exec, 1")
            self.e("buffer_atomic_umax v2, v1, s[8:11], 0 offen")
            self.e("buffer_atomic_umax v3, v1, s[8:11], 0 offen offset:4")
            self.e("buffer_atomic_umax v4, v1, s[8:11], 0 offen offset:8")
            self.lab("L_dbg_done")

    def stamp_begin(self):
        if STAMP or "dbg" in OPT or "hold" in OPT:
            self.e("s_memrealtime s[94:95]")
            self.e("%s s[96:97]" % ("s_memrealtime" if "rt" in OPT else "s_memtime"))

    def fs_end(self):
        if STAMP:
            self.e("s_waitcnt vmcnt(0)")
            self.fs(61)
            self.e("s_memrealtime s[98:99]")
            self.e("s_waitcnt lgkmcnt(0)")
            self.e("v_writelane_b32 v0, s94, 62")
            self.e("v_writelane_b32 v0, s98, 63")
            self.e("s_add_u32 s8, s%d, 0x%x" % (sWS, ST_OFF))
            self.e("s_addc_u32 s9, s%d, 0" % (sWS + 1))
            self.e("s_mov_b32 s10, 0x80000")
            self.e("s_mov_b32 s11, 0x20000")
            self.e("s_lshl_b32 s6, s2, 11")
            self.e("s_lshl_b32 s12, s3, 8")
            self.e("s_add_u32 s6, s6, s12")
            self.e("v_lshlrev_b32 v1, 2, v1")
            self.e("buffer_store_dword v0, v1, s[8:11], s6 offen")

    def throttle(self, k):
        if len(self.vm) > k:
            self.e("s_waitcnt vmcnt(%d)" % k)
            self.vm = self.vm[len(self.vm) - k:] if k else []

    def vmi(self, tag, s, cold=False):
        self.throttle(self.thr)
        if cold and "nt" in OPT:
            s = s.replace(" lds", " nt lds") if s.endswith(" lds") else s + " nt"
        self.e(s)
        self.vm.append(tag)
        assert len(self.vm) <= 63, "too many vmem ops in flight"

    def vmw(self, tag, extra=""):
        idx = [i for i, t in enumerate(self.vm) if t == tag]
        if not idx:
            return None
        n = len(self.vm) - 1 - idx[-1]
        self.vm = self.vm[idx[-1] + 1:]
        self.e("s_waitcnt vmcnt(%d)%s" % (n, extra))
        return n

    def lgi(self, tag, s):
        self.e(s)
        self.lg.append(tag)

    def lgw(self, tag):
        idx = [i for i, t in enumerate(self.lg) if t == tag]
        if not idx:
            return
        n = len(self.lg) - 1 - idx[-1]
        self.lg = self.lg[idx[-1] + 1:]
        self.e("s_waitcnt lgkmcnt(%d)" % min(n, 15))

    def lgw0(self):
        if self.lg:
            self.e("s_waitcnt lgkmcnt(0)")
        self.lg = []


def stmod(pre="a"):
    return "".join(" " + m for m in ("sc0", "sc1", "nt") if pre + m in OPT)

def v(a, n=1):
    return "v%d" % a if n == 1 else "v[%d:%d]" % (a, a + n - 1)

def a(a_, n=1):
    return "a%d" % a_ if n == 1 else "a[%d:%d]" % (a_, a_ + n - 1)

def s(a_, n=1):
    return "s%d" % a_ if n == 1 else "s[%d:%d]" % (a_, a_ + n - 1)


def srd(A, d, base, nbytes, addlo=None):
    if addlo is None:
        A.e("s_mov_b32 s%d, s%d" % (d, base))
        A.e("s_mov_b32 s%d, s%d" % (d + 1, base + 1))
    else:
        A.e("s_add_u32 s%d, s%d, %s" % (d, base, addlo))
        A.e("s_addc_u32 s%d, s%d, 0" % (d + 1, base + 1))
    A.e("s_mov_b32 s%d, 0x%x" % (d + 2, nbytes))
    A.e("s_mov_b32 s%d, 0x20000" % (d + 3))


SLOT = 24576
NSLOT = 6
MISC = SLOT * NSLOT
K1_LDS = 163840
OOB = 0x40000000
LDS_CNT = MISC + 4096 + 8

ORD = [("P", c) for c in range(8)] + [("F", c) for c in range(8)]
LASTP = 7
def slot_of(n):
    return ((n % NSLOT) if n >= 8 else (4, 5, 0, 1)[n & 3]) * SLOT
PAR = dict(la=2, laf=4, nt=2, estep=9, cstep=10, hstep=14, cdelay=0, stgap=1, fd=5, sd=3, ffill=6, sfill=10, sfill2=14,
           rot=1, pf=1, cpf=1, pfc=11, pfw=11, ala=4, wla=8, urot=1, p2poll=10, chk2=12, fl2=2, slp=8, prio=0, hold=4000, pk=1, gam=0, lastbar=14, hsp=0, xstep=6, map=1, defF=0, defS=0, e0=3, pfw2=2, coeff=0, g0=46, spf=0, spf0=9, spfn=6, spfgap=2, mpf=-1, wpf=-1, tlb=0, thr=99, thr2=99, thrp=99, stag=0, sper=4, dyn=0, split=1, fgap=4, probe=-1, ew=7, ea=4, dph=0, pfill=3, fpf=1, burn=4, hoist=1, rl=4, rc=1, ssp=2, p2map=1)

sX, sLRE, sLIM, sBRE, sBIM, sCRE, sCIM, sLDT = 16, 18, 20, 22, 24, 26, 28, 30
sW1, sW3, sW2, sGW, sDS, sWS, sOUT = 32, 34, 36, 38, 40, 42, 84
rX, rBRE, rBIM, rW1, rW3, rAS, rE, rEP, rG, rFL = 44, 48, 52, 56, 60, 64, 68, 72, 76, 88


def swiglu_ops(A, acc, off, pk, defer=None):
    o = []
    if pk:
        for r in range(0, 8, 2):
            o.append("v_pk_mul_f32 %s, %s, %s" % (v(acc + 8 + r, 2), v(acc + r, 2), v(acc + 8 + r, 2)))
        for r in range(0, 8, 2):
            o.append("v_pk_mul_f32 %s, %s, s[80:81] op_sel_hi:[1,0]" % (v(acc + r, 2), v(acc + r, 2)))
        for r in range(8):
            o.append("v_exp_f32 %s, %s" % (v(acc + r), v(acc + r)))
        for r in range(0, 8, 2):
            o.append("v_pk_add_f32 %s, %s, 1.0 op_sel_hi:[1,0]" % (v(acc + r, 2), v(acc + r, 2)))
        for r in range(8):
            o.append("v_rcp_f32 %s, %s" % (v(acc + r), v(acc + r)))
        for r in range(0, 8, 2):
            o.append("v_pk_mul_f32 %s, %s, %s" % (v(acc + 8 + r, 2), v(acc + 8 + r, 2), v(acc + r, 2)))
        for q in range(4):
            o.append("v_cvt_pk_bf16_f32 %s, %s, %s" % (v(acc + q), v(acc + 8 + 2 * q), v(acc + 9 + 2 * q)))
        (o if defer is None else defer).append(lambda: A.vmi("st", "buffer_store_dwordx4 %s, v6, %s, %s offen offset:%d%s" % (v(acc, 4), s(rAS, 4), "s87" if off >= 2048 else "s82", off, stmod())))
        return o
    for r in range(8):
        o.append("v_mul_f32 %s, %s, %s" % (v(acc + 8 + r), v(acc + r), v(acc + 8 + r)))
    for r in range(8):
        o.append("v_mul_f32 %s, s80, %s" % (v(acc + r), v(acc + r)))
    for r in range(8):
        o.append("v_exp_f32 %s, %s" % (v(acc + r), v(acc + r)))
    for r in range(8):
        o.append("v_add_f32 %s, 1.0, %s" % (v(acc + r), v(acc + r)))
    for r in range(8):
        o.append("v_rcp_f32 %s, %s" % (v(acc + r), v(acc + r)))
    for r in range(8):
        o.append("v_mul_f32 %s, %s, %s" % (v(acc + 8 + r), v(acc + 8 + r), v(acc + r)))
    for q in range(4):
        o.append("v_cvt_pk_bf16_f32 %s, %s, %s" % (v(acc + q), v(acc + 8 + 2 * q), v(acc + 9 + 2 * q)))
    (o if defer is None else defer).append(lambda: A.vmi("st", "buffer_store_dwordx4 %s, v6, %s, %s offen offset:%d%s" % (v(acc, 4), s(rAS, 4), "s87" if off >= 2048 else "s82", off, stmod())))
    return o


class Stream:
    def __init__(self, A, items, NB, D, K):
        self.A, self.items, self.NB, self.D, self.K = A, items, NB, D, K
        self.nb = 0
        self.rp = 0
        self.fill = []
        self.fence = -1
        self.dyn = False
        self.hold = 0

    def ninstr(self):
        return self.A.ni

    def pop(self, k):
        while k > 0 and self.fill:
            f = self.fill[0]
            if isinstance(f, tuple):
                if f[0] == "gap":
                    self.fill.pop(0)
                    return
                if f[0] == "bar" and self.nb <= f[1]:
                    return
                if f[0] == "dist" and self.ninstr() - f[1] < 12:
                    return
                self.fill.pop(0)
                continue
            self.fill.pop(0)
            if isinstance(f, str):
                self.A.e(f)
            else:
                f()
            k -= 1

    def flush(self):
        while self.fill:
            f = self.fill[0]
            if isinstance(f, tuple):
                if f[0] in ("bar", "gap"):
                    assert f[0] == "gap" or self.nb > f[1]
                    self.fill.pop(0)
                    continue
                d = 12 - (self.ninstr() - f[1])
                if d > 0:
                    self.A.e("s_nop %d" % (d - 1))
                self.fill.pop(0)
                continue
            self.pop(1)

    def barrier(self, n):
        while self.nb <= n:
            b = self.nb
            self.pre(b)
            lim = b - 1 if b == PAR["lastbar"] else b - 2
            old = [t for t in self.A.lg if t[0] == "c" and int(t[1:].split("_")[0]) <= lim]
            if b <= PAR["lastbar"]:
                if old:
                    self.A.lgw(old[-1])
                self.A.e("s_barrier")
            self.nb += 1
            self.post(b)

    def reads(self, upto, force):
        while self.rp < min(upto, len(self.items)):
            it = self.items[self.rp]
            if not force and (it[0] > self.nb or (it[0] == self.fence and self.nb <= it[0])):
                return
            self.barrier(it[0])
            self.read(it, self.rp % self.NB, "c%d_%d" % (it[0], self.rp))
            self.rp += 1

    def run(self):
        for mp, it in enumerate(self.items):
            if self.rp <= mp:
                self.reads(mp + 1, True)
                self.reads(mp + 1 + self.D, False)
            self.A.lgw("c%d_%d" % (it[0], mp))
            self.mfma(it, mp % self.NB)
            self.after(it, mp)
            self.reads(min(mp + 1 + self.D, self.rp + 2), False)
            if self.dyn and self.fill:
                n0 = len(self.A.L)
                self.A.e("s_setprio 0")
                self.pop(self.K)
                if len(self.A.L) == n0 + 1:
                    self.A.L.pop(); self.A.ni -= 1
                else:
                    self.A.e("s_setprio 2")
            else:
                self.pop(self.K)
        self.barrier(15)


def mk_items(ORD, ntile, withP):
    NT = PAR["nt"]
    items = []
    for n in range(16 - NT):
        if ORD[n][0] == "P" and not withP:
            continue
        for ss in range(4):
            for ti in range(ntile):
                items.append((n, ss, ti))
    for t0 in range(0, ntile, 2):
        for n in range(16 - NT, 16):
            assert ORD[n][0] == "F"
            for ss in range(4):
                for ti in (t0, t0 + 1):
                    items.append((n, ss, ti))
    return items


def emit(A, ops):
    for x in ops:
        if isinstance(x, str):
            A.e(x)
        else:
            x()


def prologue(A):
    A.e("s_cmp_ge_u32 s2, 256")
    A.e("s_cbranch_scc1 L_end")
    A.stamp_begin()
    A.e("s_load_dwordx16 s[16:31], s[0:1], 0")
    A.e("s_load_dwordx8 s[32:39], s[0:1], 80")
    A.e("s_load_dwordx2 s[42:43], s[0:1], 128")
    A.e("s_load_dwordx2 s[40:41], s[0:1], 64")
    A.e("s_load_dwordx2 s[84:85], s[0:1], 112")
    A.e("v_lshrrev_b32 v2, 6, v0")
    A.e("v_and_b32 v1, 63, v0")
    A.e("v_readfirstlane_b32 s3, v2")
    if PAR["map"] == 0:
        A.e("s_bfe_u32 s4, s2, 0x20001")
        A.e("s_lshl_b32 s4, s4, 2")
        A.e("s_bfe_u32 s6, s2, 0x20003")
        A.e("s_add_u32 s4, s4, s6")
        A.e("s_and_b32 s5, s2, 1")
        A.e("s_lshl_b32 s5, s5, 3")
        A.e("s_lshr_b32 s6, s2, 5")
        A.e("s_add_u32 s5, s5, s6")
    else:
        A.e("s_bfe_u32 s4, s2, 0x10002")
        A.e("s_lshl_b32 s4, s4, 3")
        A.e("s_bfe_u32 s6, s2, 0x30003")
        A.e("s_add_u32 s4, s4, s6")
        A.e("s_and_b32 s5, s2, 3")
        A.e("s_lshl_b32 s5, s5, 2")
        A.e("s_lshr_b32 s6, s2, 6")
        A.e("s_add_u32 s5, s5, s6")
    A.e("s_and_b32 s7, s3, 3")
    A.e("v_and_b32 v8, 31, v1")
    A.e("v_lshrrev_b32 v9, 5, v1")
    A.e("s_lshl_b32 s8, s7, 12")
    if PAR["rot"]:
        A.e("s_add_u32 s15, s4, s5")
        A.e("s_and_b32 s15, s15, 1")
        if PAR["map"]:
            A.e("s_add_u32 s83, s4, s5")
            if PAR["dph"]:
                A.e("s_and_b32 s6, s2, 1")
                A.e("s_add_u32 s83, s83, s6")
        elif PAR["gam"]:
            A.e("s_sub_u32 s83, s4, s15")
            A.e("s_lshl_b32 s83, s83, 1")
        else:
            A.e("s_lshl_b32 s83, s4, 1")
        A.e("s_add_u32 s83, s83, s5")
    else:
        A.e("s_mov_b32 s83, 0")
    A.e("s_cmp_lt_u32 s3, 4")
    A.e("s_cbranch_scc1 L_S")


def tile_of(A, half, ct, r2):
    if PAR["p2map"]:
        A.e("s_and_b32 %s, s4, 11" % r2)
        A.e("s_lshr_b32 %s, s5, 3" % half)
        A.e("s_lshl_b32 %s, %s, 2" % (half, half))
        A.e("s_add_u32 %s, %s, %s" % (r2, r2, half))
        A.e("s_and_b32 %s, s4, 4" % ct)
    else:
        A.e("s_mov_b32 %s, s4" % r2)
        A.e("s_lshr_b32 %s, s5, 3" % ct)
        A.e("s_lshl_b32 %s, %s, 2" % (ct, ct))
    A.e("s_and_b32 %s, s5, 3" % half)
    A.e("s_add_u32 %s, %s, %s" % (ct, ct, half))
    A.e("s_bfe_u32 %s, s5, 0x10002" % half)


def piece_base(d, tmp):
    return ["s_lshr_b32 %s, s5, 2" % tmp, "s_mul_i32 %s, s5, 3" % d, "s_sub_u32 %s, %s, %s" % (d, d, tmp)]


def common_late(A):
    A.e("s_mov_b32 s80, 0x%x" % f2u(-LOG2E))
    A.e("v_bfe_u32 v10, v1, 1, 3")
    A.e("v_xor_b32 v10, v10, v9")
    A.e("v_lshlrev_b32 v10, 4, v10")
    A.e("v_lshl_add_u32 v7, v8, 7, v10")
    A.e("v_bfe_u32 v10, v1, 4, 1")
    A.e("v_mul_u32_u24 v12, 3104, v10")
    A.e("v_lshlrev_b32 v11, 9, v9")
    A.e("v_add_u32 v12, v12, v11")
    A.e("v_bfe_u32 v11, v1, 2, 2")
    A.e("v_lshl_add_u32 v12, v11, 6, v12")
    A.e("v_and_b32 v11, 3, v1")
    A.e("v_lshl_add_u32 v12, v11, 3, v12")
    A.e("v_xor_b32 v13, 32, v12")
    A.e("v_lshlrev_b32 v6, 4, v1")
    A.e("s_lshl_b32 s6, s4, 2")
    A.e("s_add_u32 s6, s6, s7")
    A.e("s_mul_i32 s81, s6, %d" % (NKS * 1024))
    emit(A, piece_base("s6", "s82"))
    A.e("s_lshl_b32 s6, s6, 11")
    A.e("s_add_u32 s82, s81, s6")
    srd(A, rAS, sWS, A_BYTES)


def w_scalars(A):
    A.e("s_mul_i32 s10, s7, 6144")
    A.e("s_cmp_ge_u32 s5, 15")
    A.e("s_cselect_b32 s92, 0x%x, 0" % OOB)
    A.e("s_and_b32 s93, s5, 3")
    A.e("s_cmp_eq_u32 s93, 3")
    A.e("s_cselect_b32 s93, 0x%x, 0" % OOB)


def wdma_addr_ops(d1, d3, tmp):
    return ["v_lshrrev_b32 %s, 2, v1" % tmp, "s_lshl_b32 s6, s7, 4", "v_add_u32 %s, s6, %s" % (tmp, tmp),
            "v_mul_u32_u24 %s, 2752, %s" % (d1, tmp)] + piece_base("s6", "s11") + ["s_lshl_b32 s6, s6, 6", "v_add_u32 %s, s6, %s" % (d1, d1),
            "v_and_b32 %s, 3, v1" % tmp, "v_lshl_add_u32 %s, %s, 4, %s" % (d1, tmp, d1), "v_xor_b32 %s, 32, %s" % (d3, d1)]


def dma_ops(A, n, w1, w3, mats=(0, 1)):
    kind, c = ORD[n]
    slot = slot_of(n)
    tag = "ch%d" % n
    ops = []
    def mk(pre, m0, ins, gap="s_nop 0"):
        def f():
            for x in pre:
                A.e(x)
            A.e(m0)
            A.e(gap)
            A.vmi(tag, ins)
        return f
    if kind == "P":
        pre = ["s_add_u32 s11, s83, %d" % c, "s_and_b32 s11, s11, 7", "s_lshl_b32 s11, s11, 7", "s_add_u32 s12, s11, 8192"]
        for q in range(4):
            ops.append(mk(pre if q == 0 else [], "s_add_u32 m0, s8, %d" % (slot + 1024 * q),
                          "buffer_load_dwordx4 %s, %s, s%d offen lds" % ("v3" if q & 1 else "v2", s(rX, 4), 12 if q >= 2 else 11)))
        ops.append(mk([], "s_add_u32 m0, s9, %d" % (slot + 16384), "buffer_load_dwordx4 v4, %s, s11 offen lds" % s(rBRE, 4)))
        ops.append(mk([], "s_add_u32 m0, s9, %d" % (slot + 20480), "buffer_load_dwordx4 v4, %s, s11 offen lds" % s(rBIM, 4)))
    else:
        pre = ["s_add_u32 s11, s83, %d" % c, "s_and_b32 s11, s11, 7", "s_mul_i32 s11, s11, 176128"]
        for m in mats:
            for q in range(3):
                ops.append(mk(pre if m == mats[0] and q == 0 else [], "s_add_u32 m0, s10, %d" % (slot + m * 3072 + 1024 * q - 64 * q),
                              "buffer_load_dwordx4 %s, %s, s%d offen offset:%d lds" % (w3 if m else w1, s(rW3 if m else rW1, 4), 12 if q else 11, 64 * q),
                              "s_add_u32 s12, s11, s%d" % (91 + q) if q else "s_nop 0"))
    return ops


P2_SEQ = [("X", 0, "o", None), ("C", 0, "s", 19), ("C", 1, "s", 5)]
CU = [0, 1, 2, 3, 4, 6]
for m_ in range(6):
    P2_SEQ += [("C", 2 + m_, "s", CU[m_]), ("C", 2 + m_, "o", CU[m_])]
NSSM = len(P2_SEQ)
FU = [7, 8, 9, 10, 11] + CU
P2_SEQ += [("W", m_, "s", FU[m_]) for m_ in range(11)]
NSEND = len(P2_SEQ) - 1
P2_SEQ += [("C", 0, "o", 19), ("C", 1, "o", 5)] + [("W", m_, "o", FU[m_]) for m_ in range(11)]
P2_W = []
for n_, (k_, m_, h_, u_) in enumerate(P2_SEQ):
    if h_ == "s":
        prev = [q for q in range(n_) if P2_SEQ[q][3] == u_]
        P2_W.append((k_, m_, u_, n_, prev[0] + 2 if prev else (-1 if u_ in (0, 1, 2, 3, 4, 5, 19) else 0)))
NA = 6
GU = 18 * 8192
def AU(n): return (12 + n % NA) * 8192


def role_F(A):
    A.vm, A.lg = [], []
    A.thr = PAR["thrp"]
    ACC, FB = 64, 32
    LA = PAR["la"]
    if PAR["prio"] or PAR["dyn"]:
        A.e("s_setprio 1")
    A.e("v_lshrrev_b32 v10, 4, v1")
    A.e("v_and_b32 v11, 7, v1")
    A.e("v_xor_b32 v10, v10, v11")
    A.e("v_lshlrev_b32 v10, 4, v10")
    A.e("v_bfe_u32 v11, v1, 3, 2")
    A.e("v_lshl_add_u32 v2, v11, 10, v10")
    A.e("v_lshl_add_u32 v2, v9, 14, v2")
    A.e("s_lshl_b32 s6, s7, 15")
    A.e("v_add_u32 v2, s6, v2")
    A.e("v_xor_b32 v3, 64, v2")
    A.e("v_add_u32 v3, 4096, v3")
    A.e("s_lshl_b32 s9, s7, 10")
    A.e("s_and_b32 s6, s7, 1")
    A.e("s_lshl_b32 s6, s6, 6")
    A.e("v_xor_b32 v4, s6, v10")
    A.e("v_lshrrev_b32 v11, 3, v1")
    A.e("v_lshl_add_u32 v4, v11, 10, v4")
    A.e("s_lshl_b32 s6, s7, 13")
    A.e("v_add_u32 v4, s6, v4")
    emit(A, wdma_addr_ops("v5", "v16", "v10"))
    w_scalars(A)
    A.e("s_lshl_b32 s6, s4, 17")
    A.e("s_lshl_b32 s13, s5, 15")
    A.e("s_waitcnt lgkmcnt(0)")
    A.fs(52)
    if PAR["gam"]:
        srd(A, rW1, sW1, 512 * 2752)
        srd(A, rW3, sW3, 512 * 2752)
    if PAR["gam"]:
        assert LA == 2
        A.e("s_cmp_lg_u32 s15, 0")
        A.e("s_cbranch_scc1 L_F_now")
        emit(A, dma_ops(A, 8, "v5", "v16") + dma_ops(A, 9, "v5", "v16"))
        A.vm = []
        A.lab("L_F_now")
    srd(A, rX, sX, 131072, "s6")
    d0 = dma_ops(A, 0, "v5", "v16")
    emit(A, d0[:4])
    srd(A, rBRE, sBRE, 32768, "s13")
    srd(A, rBIM, sBIM, 32768, "s13")
    emit(A, d0[4:])
    A.fs(53)
    A.e("s_lshl_b32 s6, s5, 3")
    A.e("s_lshl_b32 s13, s7, 1")
    A.e("s_add_u32 s13, s13, s6")
    A.e("s_lshl_b32 s6, s13, 10")
    A.e("v_lshlrev_b32 v17, 4, v8")
    A.e("v_lshl_add_u32 v18, v9, 10, v17")
    A.e("v_add_u32 v18, s6, v18")
    A.vmi("g", "buffer_load_dwordx4 v[64:67], v18, %s, 0 offen" % s(rX, 4))
    A.vmi("g", "buffer_load_dwordx4 v[68:71], v18, %s, 0 offen offset:512" % s(rX, 4))
    A.vmi("g", "global_load_dwordx4 v[72:75], v17, %s" % s(sGW, 2))
    A.vmi("g", "global_load_dwordx4 v[76:79], v17, %s offset:512" % s(sGW, 2))
    A.e("s_and_b32 s6, s4, 8")
    A.e("s_lshl_b32 s6, s6, 4")
    A.e("s_add_u32 s6, s6, 0x%x" % EPR_OFF)
    srd(A, rFL, sWS, 4, "s6")
    A.e("v_mov_b32 v88, 0")
    A.vmi("g", "buffer_load_dword v87, v88, %s, 0 offen sc1" % s(rFL, 4))
    emit(A, dma_ops(A, 1, "v5", "v16"))
    A.fs(54)
    srd(A, rW1, sW1, 512 * 2752)
    srd(A, rW3, sW3, 512 * 2752)
    common_late(A)
    srd(A, rG, sWS, 16384, "0x%x" % G_OFF)
    A.e("v_add_u32 v7, s8, v7")
    A.e("s_add_u32 s82, s82, %d" % (65536 + 2048))
    A.e("s_add_u32 s87, s82, s93")
    A.e("s_add_u32 s82, s82, s92")
    A.e("s_branch L_Fmain")
    A.fmain = len(A.L)
    A.lab("L_Fmain")

    def g_ops():
        o = [lambda: A.vmw("g"), "v_readfirstlane_b32 s86, v87", "v_mov_b32 v84, 0", "s_add_u32 s86, s86, 1", "s_bitset1_b32 s86, 31"]
        for d in range(8):
            xx, ww = 64 + d, 72 + d
            o += ["v_lshlrev_b32 v80, 16, %s" % v(xx), "v_and_b32 v81, 0xffff0000, %s" % v(xx),
                  "v_lshlrev_b32 v82, 16, %s" % v(ww), "v_and_b32 v83, 0xffff0000, %s" % v(ww),
                  "v_mul_f32 v80, v80, v82", "v_mul_f32 v81, v81, v83", "v_cvt_pk_bf16_f32 v80, v80, v81",
                  "v_lshlrev_b32 v81, 16, v80", "v_and_b32 v80, 0xffff0000, v80",
                  "v_add_f32 v84, v84, v81", "v_add_f32 v84, v84, v80"]
        for sh in (1, 2, 4, 8):
            o += ["s_nop 1", "v_add_f32_dpp v84, v84, v84 row_shr:%d row_mask:0xf bank_mask:0xf bound_ctrl:0" % sh]
        o += ["s_nop 1", "v_add_f32_dpp v84, v84, v84 row_bcast:15 row_mask:0xa bank_mask:0xf",
              "v_cvt_pk_bf16_f32 v84, v84, v84", "v_and_b32 v84, 0xffff0000, v84", "v_mul_f32 v84, s80, v84",
              "v_exp_f32 v84, v84", "s_nop 0", "v_add_f32 v84, 1.0, v84", "v_rcp_f32 v84, v84", "s_nop 0",
              "v_cvt_pk_bf16_f32 v84, v84, v84", "v_and_b32 v84, 0xffff0000, v84",
              "v_sub_f32 v85, 1.0, v84", "v_cvt_pk_bf16_f32 v85, v85, v85", "v_and_b32 v85, 0xffff0000, v85"]
        return o

    def g_store():
        A.e("s_lshl_b32 s6, s4, 7")
        A.e("s_add_u32 s6, s6, s13")
        A.e("s_lshl_b32 s6, s6, 3")
        A.e("v_lshlrev_b32 v86, 3, v9")
        A.e("s_mov_b32 exec_lo, 0x80000000")
        A.e("s_mov_b32 exec_hi, 0x80000000")
        A.vmi("gst", "buffer_store_dwordx2 v[84:85], v86, %s, s6 offen%s" % (s(rG, 4), stmod()))
        A.e("s_mov_b64 exec, -1")

    gq = g_ops()
    rO = 68
    A.e("s_and_b32 s72, s7, 1")
    A.e("s_lshr_b32 s73, s7, 1")
    tile_of(A, "s6", "s74", "s75")
    A.e("s_lshl_b32 s75, s75, 1")
    A.e("s_add_u32 s75, s75, s6")
    A.e("s_lshl_b32 s75, s75, 1")
    A.e("s_add_u32 s75, s75, s72")
    A.e("s_lshl_b32 s75, s75, 16")
    A.e("s_lshl_b32 s74, s74, 1")
    A.e("s_add_u32 s74, s74, s73")
    A.e("s_lshl_b32 s74, s74, 7")
    A.e("s_add_u32 s75, s75, s74")
    A.e("v_lshlrev_b32 v20, 15, v9")
    A.e("v_lshl_add_u32 v20, v8, 2, v20")
    A.e("v_add_u32 v20, s75, v20")
    srd(A, rO, sOUT, 2048 * 2048)
    A.e("s_lshl_b32 s6, s72, 12")
    A.e("s_add_u32 s6, s6, %d" % AU(0))
    A.e("v_add_u32 v17, s6, v6")
    A.e("v_subrev_u32 v18, s8, v7")
    A.e("s_lshl_b32 s6, s73, 12")
    A.e("v_add_u32 v18, s6, v18")
    A.e("v_bfe_u32 v10, v1, 2, 2")
    A.e("v_lshlrev_b32 v19, 7, v10")
    A.e("v_lshl_add_u32 v19, v9, 9, v19")
    A.e("v_bfe_u32 v10, v1, 4, 1")
    A.e("v_lshl_add_u32 v19, v10, 5, v19")
    A.e("v_and_b32 v10, 3, v1")
    A.e("v_lshl_add_u32 v19, v10, 3, v19")
    A.e("v_bfe_u32 v10, v1, 3, 1")
    A.e("v_xor_b32 v10, s73, v10")
    A.e("v_lshl_add_u32 v19, v10, 6, v19")
    A.e("s_lshl_b32 s6, s73, 6")
    A.e("v_lshl_add_u32 v23, v8, 1, s6")
    A.e("s_lshl_b32 s6, s72, 1")
    A.e("v_add_u32 v10, s6, v9")
    A.e("v_lshl_add_u32 v21, v10, 11, v23")
    A.e("v_add_u32 v21, %d, v21" % AU(0))
    A.e("s_bfe_u32 s6, s5, 0x10002")
    A.e("s_lshl_b32 s6, s6, 9")
    A.e("s_add_u32 s6, s6, %d" % GU)
    A.e("v_lshl_add_u32 v22, v10, 7, s6")
    A.e("v_add_u32 v23, %d, v23" % (GU + 1024))
    A.e("s_lshl_b32 s100, s5, 2")
    A.e("s_add_u32 s100, s100, s7")
    A.e("s_lshl_b32 s100, s100, 12")
    A.e("s_xor_b32 s101, s100, 0x10000")
    A.e("v_bfe_u32 v10, v1, 4, 1")
    A.e("v_mul_u32_u24 v11, 1152, v10")
    A.e("v_lshl_add_u32 v11, v9, 8, v11")
    A.e("v_bfe_u32 v10, v1, 2, 2")
    A.e("v_lshl_add_u32 v11, v10, 5, v11")
    A.e("v_and_b32 v10, 1, v1")
    A.e("v_lshl_add_u32 v11, v10, 4, v11")
    A.e("v_bfe_u32 v10, v1, 1, 1")
    A.e("v_lshl_add_u32 v11, v10, 3, v11")
    A.e("s_lshl_b32 s6, s72, 12")
    A.e("s_add_u32 s6, s6, %d" % AU(0))
    A.e("v_add_u32 v11, s6, v11")
    A.e("v_xor_b32 v10, 0x80, v11")

    tiles = [2, 3, 4, 5]
    S = Stream(A, mk_items(ORD, 4, False), 8, PAR["fd"], PAR["ffill"])
    late = []
    dq = []
    if PAR["split"]:
        for n in range(LASTP + LA + 1, 16):
            dq += [(n, f) for f in dma_ops(A, n, "v5", "v16", (1,))]

    def pf_setup():
        srd(A, 44, sW2, 1376 * 1024)
        A.e("s_bitcmp1_b32 s5, 2")
        A.e("s_cselect_b64 s[48:49], %s, %s" % (s(sCIM, 2), s(sCRE, 2)))
        A.e("s_cselect_b32 s15, 704, 0")
        A.e("s_mov_b32 s50, 0x80000")
        A.e("s_mov_b32 s51, 0x20000")
        A.e("s_lshr_b32 s6, s2, 3")
        A.e("s_mul_i32 s14, s6, 22")
        A.e("s_add_u32 s15, s15, s14")
        A.e("s_mul_i32 s14, s7, 11")
        A.e("s_lshr_b32 s14, s14, 1")
        A.e("s_add_u32 s15, s15, s14")
        if PAR["p2map"]:
            A.e("s_lshl_b32 s15, s15, 10")
            A.e("s_lshl_b32 s9, s6, 2")
            A.e("s_add_u32 s9, s9, s7")
            A.e("s_lshl_b32 s9, s9, 12")
            A.e("v_lshlrev_b32 v2, 7, v1")
            A.e("v_mov_b32 v3, v2")
            return
        A.e("s_lshl_b32 s15, s15, 1")
        A.e("s_lshr_b32 s14, s5, 3")
        A.e("s_add_u32 s15, s15, s14")
        A.e("s_lshl_b32 s15, s15, 9")
        A.e("s_lshl_b32 s9, s14, 18")
        A.e("s_lshl_b32 s6, s6, 13")
        A.e("s_add_u32 s9, s9, s6")
        A.e("s_lshl_b32 s6, s7, 11")
        A.e("s_add_u32 s9, s9, s6")
        A.e("v_lshlrev_b32 v2, 7, v1")
        A.e("v_lshrrev_b32 v3, 2, v1")
        A.e("v_lshlrev_b32 v3, 3, v3")
        A.e("v_and_or_b32 v3, v1, 3, v3")
        A.e("v_lshlrev_b32 v3, 7, v3")

    def pf_c():
        A.e("s_mov_b32 exec_hi, 0" if PAR["p2map"] else "s_mov_b64 exec, 0xffff")
        A.vmi("pf", "buffer_load_dword v4, v2, s[48:51], s9 offen")
        A.e("s_mov_b64 exec, -1")

    def pf_w():
        A.e("s_mov_b32 exec_hi, 0xffff" if PAR["p2map"] else "s_mov_b64 exec, 0xffffff")
        A.vmi("pf", "buffer_load_dword v4, v3, s[44:47], s15 offen")
        A.e("s_mov_b64 exec, -1")

    if PAR["pf"] and PAR["fpf"]:
        dq += sorted([(PAR["pfc"] + PAR["laf"], pf_c), (PAR["pfw"] + PAR["laf"], pf_w)], key=lambda x: x[0])

    def dma_upto(m, maxops=999):
        while dq and dq[0][0] <= m and maxops > 0:
            dq.pop(0)[1]()
            maxops -= 1

    def waddr(n):
        return ((14, 15), (28, 29), (30, 31))[n % 3]

    def pre(b):
        kind, c = ORD[b]
        slot = slot_of(b)
        if b == LASTP + 1:
            emit(A, gq)
            g_store()
            if PAR["pf"] and PAR["fpf"]:
                pf_setup()
            A.e("s_lshl_b32 s6, s4, 18")
            A.e("s_add_u32 s6, s6, 0x%x" % XB_OFF)
            srd(A, rFL, sWS, 262144, "s6")
        dma_upto(min(b - 1 + LA, 15) if b != PAR["lastbar"] else 15)
        if b == 10:
            A.vmw("gst")
        if b == PAR["lastbar"]:
            A.vmw("ch15")
        if kind == "P":
            A.e("v_add_u32 v24, %d, v7" % slot)
            A.e("v_xor_b32 v25, 32, v24")
            A.e("v_xor_b32 v26, 64, v24")
            A.e("v_xor_b32 v27, 0x60, v24")
        else:
            A.e("v_add_u32 v%d, %d, v12" % (waddr(b)[0], slot))
            A.e("v_add_u32 v%d, %d, v13" % (waddr(b)[1], slot))
        A.fs2(20 + b)
        A.vmw("ch%d" % b)
        if PAR["gam"] and b == 7:
            A.e("s_cmp_lg_u32 s15, 0")
            A.e("s_cbranch_scc1 L_F_w7")
            A.e("s_waitcnt vmcnt(0)")
            A.lab("L_F_w7")
        A.fs2(36 + b)

    def post(b):
        kind, c = ORD[b]
        A.fs(b)
        if kind == "P":
            for ss in range(4):
                A.lgi("c%d_x" % b, "ds_read_b128 %s, %s" % (a(16 * c + 4 * ss, 4), v(24 + ss)))
            for n in range(2, 16):
                if (n == b + LA) or (b == 0 and n < LA):
                    if PAR["gam"] and n >= 8:
                        A.e("s_cmp_eq_u32 s15, 0")
                        A.e("s_cbranch_scc1 L_F_skip%d" % n)
                    emit(A, dma_ops(A, n, "v5", "v16"))
                    if PAR["gam"] and n >= 8:
                        A.lab("L_F_skip%d" % n)
            if b == 0:
                emit(A, gq[:PAR["g0"]])
                del gq[:PAR["g0"]]

    def read(it, sl, tag):
        n, ss, ti = it
        T = tiles[ti]
        for nn in range(2):
            A.lgi(tag, "ds_read_b64_tr_b16 %s, v%d offset:%d" % (v(FB + 4 * sl + 2 * nn, 2), waddr(n)[T & 1],
                                                                ss * 6144 + (T >> 1) * 1024 + nn * 256))

    def mfma(it, sl):
        n, ss, ti = it
        c = ORD[n][1]
        first = (c == 0 and ss == 0)
        A.e("v_mfma_f32_32x32x16_bf16 %s, %s, %s, %s" % (v(ACC + 16 * ti, 16), v(FB + 4 * sl, 4), a(16 * c + 4 * ss, 4),
                                                        "0" if first else v(ACC + 16 * ti, 16)))

    def after(it, mp):
        n, ss, ti = it
        if n == 15 and ss == 3:
            S.fill.append(("dist", S.ninstr()))
            S.fill += swiglu_ops(A, ACC + 16 * ti, 1024 * ti, PAR["pk"] and ti >= 2, late if ti >= 4 - PAR["defF"] else None)
        if mp % PAR["fgap"] == 0:
            dma_upto(S.nb - 1 + PAR["laf"], 1)

    S.pre, S.post, S.read, S.mfma, S.after = pre, post, read, mfma, after
    S.run()
    assert not dq
    A.fs(16)
    S.flush()
    A.fs(19)

    N = len(P2_SEQ)
    AS, AO, BS, BO, GV = 32, 48, 64, 80, 96
    XV, RV = AO, AS
    A.lg = []
    seen = {"Co"}

    def addr(n):
        k_, m_, h_, u_ = P2_SEQ[n]
        if n and P2_SEQ[n - 1][3] == u_:
            return
        if k_ == "W":
            A.e("v_add_u32 v24, %d, v19" % (u_ * 8192))
        elif k_ == "C":
            A.e("v_add_u32 v24, %d, v18" % (u_ * 8192))
            A.e("v_xor_b32 v25, 32, v24")
            A.e("v_xor_b32 v26, 64, v24")
            A.e("v_xor_b32 v27, 0x60, v24")

    def wfb(n):
        while n and P2_SEQ[n - 1][3] == P2_SEQ[n][3]:
            n -= 1
        return 32 + 16 * (n % 3)

    def g_reads(tg, other, qs):
        for q in qs:
            A.lgi(tg, "ds_read_b128 %s, %s offset:%d" % (v(GV + 4 * q, 4), "v28" if other else "v22", 16 * q))

    def reads2(n, ss):
        k_, m_, h_, u_ = P2_SEQ[n]
        fa = 16 * (n & 1)
        tg = "r%d_%d" % (n, ss)
        if k_ == "X":
            for r in range(4 * ss, 4 * ss + 4):
                A.lgi(tg, "ds_read_u16 %s, v21 offset:%d" % (v(XV + r), AU(n) - AU(0) + 128 * r))
            if ss == 3:
                A.lgi(tg, "ds_read_u16 v16, v23")
            return
        if k_ == "W":
            A.lgi(tg, "ds_read_b128 %s, v17 offset:%d" % (a(fa + 4 * ss, 4), AU(n) - AU(0) + 1024 * ss))
        else:
            for nn in range(2):
                A.lgi(tg, "ds_read_b64_tr_b16 %s, %s offset:%d" % (a(fa + 4 * ss + 2 * nn, 2), "v10" if nn else "v11",
                                                                  AU(n) - AU(0) + 2048 * (ss >> 1) + 512 * (ss & 1)))
        if n and P2_SEQ[n - 1][3] == u_:
            return
        if k_ == "W":
            for nn in range(2):
                A.lgi(tg, "ds_read_b64_tr_b16 %s, v24 offset:%d" % (a(wfb(n) + 4 * ss + 2 * nn, 2), 2048 * ss + 1024 * nn))
        else:
            A.lgi(tg, "ds_read_b128 %s, %s" % (a(wfb(n) + 4 * ss, 4), v(24 + ss)))

    def mfma2(n, ss):
        k_, m_, h_, u_ = P2_SEQ[n]
        A.lgw("r%d_%d" % (n, ss))
        if k_ == "X":
            return
        acc = v({"Cs": AS, "Co": AO, "Ws": BS, "Wo": BO}[k_ + h_], 16)
        first = (k_ + h_) not in seen
        seen.add(k_ + h_)
        A.e("v_mfma_f32_32x32x16_bf16 %s, %s, %s, %s" % (acc, a(16 * (n & 1) + 4 * ss, 4), a(wfb(n) + 4 * ss, 4), "0" if first else acc))

    def xd(q):
        if q == 0:
            A.e("v_lshlrev_b32 v16, 16, v16")
        r0, r1 = 2 * q, 2 * q + 1
        A.e("v_lshlrev_b32 %s, 16, %s" % (v(XV + r0), v(XV + r0)))
        A.e("v_lshlrev_b32 %s, 16, %s" % (v(XV + r1), v(XV + r1)))
        A.e("v_mul_f32 %s, %s, v16" % (v(XV + r0), v(XV + r0)))
        A.e("v_mul_f32 %s, %s, v16" % (v(XV + r1), v(XV + r1)))
        A.e("v_cvt_pk_bf16_f32 %s, %s, %s" % (v(XV + r0), v(XV + r0), v(XV + r1)))
        A.e("v_and_b32 %s, 0xffff0000, %s" % (v(XV + r1), v(XV + r0)))
        A.e("v_lshlrev_b32 %s, 16, %s" % (v(XV + r0), v(XV + r0)))

    def send(qs):
        if 0 in qs:
            A.e("s_nop 9")
        for q in qs:
            for r in range(4 * q, 4 * q + 4):
                A.e("v_fmac_f32 %s, %s, %s" % (v(AS + r), v(GV + 2 * r + 1), v(BS + r)))
            for r in (4 * q, 4 * q + 2):
                A.e("v_cvt_pk_bf16_f32 %s, %s, %s" % (v(BS + r), v(AS + r), v(AS + r + 1)))
                A.e("v_mov_b32 %s, s86" % v(BS + r + 1))
            A.e("buffer_store_dwordx4 %s, v6, %s, s101 offen offset:%d%s" % (v(BS + 4 * q, 4), s(rFL, 4), 1024 * q, stmod("x")))

    def recv_issue():
        for q in range(4):
            A.e("buffer_load_dwordx4 %s, v6, %s, s100 offen offset:%d sc1" % (v(RV + 4 * q, 4), s(rFL, 4), 1024 * q))

    def recv():
        A.e("s_mov_b32 s13, 0")
        A.lab("L_F_rpoll")
        A.e("s_waitcnt vmcnt(0)")
        T = [v(RV + 2 * q + 1) for q in range(8)]
        for op, d in (("v_min3_u32", "v28"), ("v_max3_u32", "v29")):
            A.e("%s %s, %s, %s, s86" % (op, d, T[0], T[1]))
            for q in range(2, 8, 2):
                A.e("%s %s, %s, %s, %s" % (op, d, T[q], T[q + 1], d))
        A.e("v_cmp_ne_u32 vcc, v28, v29")
        A.e("s_cbranch_vccz L_F_rok")
        A.e("s_sleep 2")
        recv_issue()
        A.e("s_add_u32 s13, s13, 1")
        A.e("s_cmp_lt_u32 s13, 0x20000")
        A.e("s_cbranch_scc1 L_F_rpoll")
        A.e("s_waitcnt vmcnt(0)")
        A.lab("L_F_rok")
        for q in range(8):
            A.e("v_and_b32 %s, 0xffff0000, %s" % (v(RV + 2 * q + 1), v(RV + 2 * q)))
            A.e("v_lshlrev_b32 %s, 16, %s" % (v(RV + 2 * q), v(RV + 2 * q)))
        for r in range(16):
            A.e("v_add_f32 %s, %s, %s" % (v(AO + r), v(AO + r), v(RV + r)))

    A.e("v_xor_b32 v28, 0x200, v22")
    assert PAR["fl2"] <= 8 and not PAR["stag"] and PAR["ssp"] in (1, 2, 4) and N - PAR["rc"] >= NSEND + 10
    for n in range(N):
        addr(n)
        if n == PAR["fl2"]:
            assert not late
            A.e("s_waitcnt vmcnt(0)")
        A.e("s_barrier")
        if "hold" in OPT:
            A.fs(100 + n)
        for ss in range(4):
            if n >= 1:
                mfma2(n - 1, ss)
            reads2(n, ss)
        if late:
            late.pop(0)()
        if 1 <= n <= 4:
            xd(2 * n - 2)
            xd(2 * n - 1)
        if n == 8:
            g_reads("g1", True, range(8))
        if NSSM + 1 <= n < NSSM + 9:
            A.lgw("g1")
            for r in (2 * (n - NSSM - 1), 2 * (n - NSSM - 1) + 1):
                A.e("v_mul_f32 %s, %s, %s" % (v(AS + r), v(GV + 2 * r), v(AS + r)))
        sp = PAR["ssp"]
        if 0 <= n - NSEND - 1 < sp:
            if n == NSEND + 1:
                A.fs(17)
            q0 = (n - NSEND - 1) * (4 // sp)
            send(range(q0, q0 + 4 // sp))
        if n == NSEND + 1 + sp:
            g_reads("g2", False, range(8))
        if NSEND + 6 <= n < NSEND + 10:
            A.lgw("g2")
            for r in range(4 * (n - NSEND - 6), 4 * (n - NSEND - 6) + 4):
                A.e("v_mul_f32 %s, %s, %s" % (v(AO + r), v(GV + 2 * r), v(AO + r)))
        if n == N - PAR["rl"]:
            recv_issue()
        if n == N - PAR["rc"]:
            A.fs(18)
            recv()
            A.fs(57)
    for ss in range(4):
        mfma2(N - 1, ss)
    A.fs(59)
    A.e("s_nop 7")
    A.e("s_nop 3")
    for r in range(16):
        A.e("v_fmac_f32 %s, %s, %s" % (v(AO + r), v(GV + 2 * r + 1), v(BO + r)))
        if r % 2 == 0:
            A.e("s_movk_i32 s6, %d" % (2048 * r))
        A.e("buffer_store_dword %s, v20, %s, s6 offen offset:%d%s" % (v(AO + r), s(rO, 4), 2048 * (r & 1), stmod("o")))
    A.fs(60)
    A.fs_end()
    A.dbg_end()
    A.e("s_endpgm")


def cpow(A, n_scale, dre, dim, t0, t1, va, vb):
    if n_scale == 1.0:
        A.e("v_exp_f32 %s, %s" % (t0, va))
        A.e("v_fract_f32 %s, %s" % (t1, vb))
    else:
        ns = n_scale if isinstance(n_scale, str) else "0x%x" % f2u(n_scale)
        A.e("v_mul_f32 %s, %s, %s" % (t0, ns, va))
        A.e("v_mul_f32 %s, %s, %s" % (t1, ns, vb))
        A.e("v_exp_f32 %s, %s" % (t0, t0))
        A.e("v_fract_f32 %s, %s" % (t1, t1))
    A.e("v_cos_f32 %s, %s" % (dre, t1))
    A.e("v_sin_f32 %s, %s" % (dim, t1))
    A.e("s_nop 0")
    A.e("v_mul_f32 %s, %s, %s" % (dre, dre, t0))
    A.e("v_mul_f32 %s, %s, %s" % (dim, dim, t0))


def cfma_ops(dr, di, mr, mi, xr, xi, ar, ai):
    return ["v_fma_f32 %s, %s, %s, %s" % (dr, mr, xr, ar),
            "v_fma_f32 %s, %s, %s, %s" % (di, mr, xi, ai),
            "v_fma_f32 %s, -%s, %s, %s" % (dr, mi, xi, dr),
            "v_fma_f32 %s, %s, %s, %s" % (di, mi, xr, di)]


def lane0_store(A, cond, val, srd_, soff, off, vt, vz, L):
    for x in cond:
        A.e(x)
    A.e("s_cbranch_scc1 " + L)
    A.cond = True
    A.e("v_mov_b32 %s, %s" % (vt, val))
    A.e("v_mov_b32 %s, 0" % vz)
    A.e("s_mov_b64 exec, 1")
    A.e("buffer_store_dword %s, %s, %s, %s offen offset:%d sc1" % (vt, vz, s(srd_, 4), soff, off))
    A.e("s_mov_b64 exec, -1")
    A.cond = False
    A.lab(L)


def role_S(A):
    A.vm, A.lg = [], []
    A.thr = 99
    A.lab("L_S")
    LR, LI, NLI = "v16", "v17", "v5"
    L16R, L16I, QR, QI, L256R, L256I = "v18", "v19", "v20", "v21", "v22", "v23"
    CR, CI, PR, PI = "v2", "v3", "v10", "v11"
    ER, EI, SR, SI = "v56", "v57", "v58", "v59"
    RE, IM, ACC, FB = 64, 80, 96, 32
    A.e("s_lshl_b32 s6, s5, 6")
    A.e("v_lshlrev_b32 v4, 1, v8")
    A.e("v_add_u32 v4, s6, v4")
    A.e("s_lshl_b32 s6, s5, 7")
    A.e("s_add_u32 s6, s6, 0x%x" % EP_OFF)
    A.e("v_mov_b32 v55, 0")
    if PAR["cpf"]:
        A.e("s_getpc_b64 s[44:45]")
        A.lab("L_pc")
        A.e("s_sub_u32 s44, s44, L_pc - %s_kernel" % NAME)
        A.e("s_subb_u32 s45, s45, 0")
        A.e("s_mov_b32 s46, L_code_end - %s_kernel" % NAME)
        A.e("s_mov_b32 s47, 0x20000")
        A.e("s_lshr_b32 s9, s2, 3")
        A.e("s_lshl_b32 s9, s9, 2")
        A.e("s_add_u32 s9, s9, s7")
        A.e("s_lshl_b32 s9, s9, 8")
        A.e("v_lshlrev_b32 v53, 7, v1")
        A.e("s_mov_b64 exec, 3")
        A.vmi("par", "buffer_load_dword v52, v53, s[44:47], s9 offen")
        A.e("s_mov_b64 exec, -1")
    A.e("s_waitcnt lgkmcnt(0)")
    A.vmi("par", "global_load_ushort v60, v4, %s" % s(sLRE, 2))
    A.vmi("par", "global_load_ushort v61, v4, %s" % s(sLIM, 2))
    A.vmi("par", "global_load_ushort v62, v4, %s" % s(sLDT, 2))
    srd(A, rEP, sWS, 4, "s6")
    A.vmi("par", "buffer_load_dword v54, v55, %s, 0 offen sc1" % s(rEP, 4))
    A.e("s_and_b32 s6, s4, 8")
    A.e("s_lshl_b32 s6, s6, 4")
    A.e("s_add_u32 s6, s6, 0x%x" % EPR_OFF)
    srd(A, rG, sWS, 4, "s6")
    A.vmi("par", "buffer_load_dword v56, v55, %s, 0 offen sc1" % s(rG, 4))
    if PAR["tlb"]:
        A.e("s_cmp_lg_u32 s7, 0")
        A.e("s_cbranch_scc1 L_S_notlb")
        A.e("v_lshlrev_b32 v53, 21, v1")
        A.e("s_mov_b64 exec, 1")
        for ptr in (sW1, sW3, sW2, sCRE, sCIM, sDS):
            A.e("global_load_dword v52, v55, %s" % s(ptr, 2))
        A.e("s_mov_b64 exec, 3")
        A.e("global_load_dword v52, v53, %s" % s(sOUT, 2))
        A.e("s_mov_b64 exec, 31")
        A.e("global_load_dword v52, v53, %s" % s(sWS, 2))
        A.e("s_mov_b64 exec, -1")
        A.lab("L_S_notlb")
    common_late(A)
    w_scalars(A)
    srd(A, rW1, sW1, 512 * 2752)
    srd(A, rW3, sW3, 512 * 2752)
    A.e("s_lshl_b32 s6, s5, 13")
    A.e("s_add_u32 s6, s6, 0x%x" % E_OFF)
    srd(A, rE, sWS, 8192, "s6")
    A.e("s_and_b32 s6, s4, 8")
    A.e("s_lshl_b32 s6, s6, 9")
    A.e("s_add_u32 s6, s6, 0x%x" % FL_OFF)
    srd(A, rFL, sWS, 4096, "s6")
    A.e("s_and_b32 s87, s4, 7")
    A.e("s_lshl_b32 s87, s87, 7")
    A.e("s_add_u32 s87, s87, s5")
    A.e("s_lshl_b32 s87, s87, 2")
    rCRE, rCIM, rW2 = 48, 52, 44
    srd(A, rCRE, sCRE, 524288)
    srd(A, rCIM, sCIM, 524288)
    A.e("s_add_u32 s82, s82, 65536")
    A.e("s_lshl_b32 s100, s5, 11")
    A.e("s_add_u32 s100, s100, s81")
    A.e("s_add_u32 s101, s100, 32768")
    A.e("v_lshlrev_b32 v4, 3, v0")
    A.e("v_add_u32 v4, %d, v4" % (MISC + 2048))
    A.e("v_mov_b32 v48, 0")
    A.e("v_mov_b32 v49, 0")
    A.e("ds_write_b64 v4, v[48:49]")
    A.e("ds_write_b32 v4, v48 offset:2048")
    A.e("s_lshl_b32 s6, s7, 1")
    A.e("v_add_u32 v63, s6, v9")
    A.e("v_sub_u32 v4, 7, v63")
    A.e("v_lshlrev_b32 v4, 8, v4")
    A.e("v_lshl_add_u32 v4, v8, 3, v4")
    A.e("v_add_u32 v4, %d, v4" % MISC)
    A.e("v_lshlrev_b32 v63, 4, v63")
    A.e("v_cvt_f32_u32 v63, v63")
    A.e("s_lshl_b32 s6, s7, 9")
    A.e("v_lshlrev_b32 v57, 7, v9")
    A.e("v_add_u32 v57, s6, v57")
    A.e("v_cvt_f32_u32 v57, v57")
    A.e("s_waitcnt lgkmcnt(0)")
    real, A.L = A.L, []
    ni0 = A.ni
    srd(A, rW2, sW2, 1376 * 1024)
    A.e("v_readfirstlane_b32 s14, v54")
    A.e("v_readfirstlane_b32 s86, v56")
    A.e("s_add_u32 s14, s14, 1")
    A.e("s_bitset1_b32 s14, 31")
    A.e("s_add_u32 s86, s86, 1")
    A.e("s_bitset1_b32 s86, 31")
    A.e("v_lshlrev_b32 v60, 16, v60")
    A.e("v_lshlrev_b32 v61, 16, v61")
    A.e("v_lshlrev_b32 v62, 16, v62")
    A.e("v_mul_f32 v62, 0x%x, v62" % f2u(LOG2E))
    A.e("v_exp_f32 v62, v62")
    A.e("s_nop 0")
    A.e("v_cvt_pk_bf16_f32 v62, v62, v62")
    A.e("v_and_b32 v62, 0xffff0000, v62")
    A.e("v_mul_f32 v50, v62, v60")
    A.e("v_mul_f32 v51, v62, v61")
    A.e("v_mul_f32 v50, 0x%x, v50" % f2u(LOG2E))
    A.e("v_mul_f32 v51, 0x%x, v51" % f2u(INV2PI))
    cpow(A, 1.0, LR, LI, "v52", "v53", "v50", "v51")
    cpow(A, 16.0, L16R, L16I, "v52", "v53", "v50", "v51")
    cpow(A, "v57", QR, QI, "v52", "v53", "v50", "v51")
    cpow(A, 256.0, L256R, L256I, "v52", "v53", "v50", "v51")
    cpow(A, "v63", PR, PI, "v52", "v53", "v50", "v51")
    A.e("v_sub_f32 %s, 0, %s" % (NLI, LI))
    A.e("v_mul_f32 v52, v60, v60")
    A.e("v_fmac_f32 v52, v61, v61")
    A.e("v_rcp_f32 v52, v52")
    A.e("v_add_f32 v53, -1.0, %s" % LR)
    A.e("v_mul_f32 %s, v53, v60" % CR)
    A.e("v_fmac_f32 %s, %s, v61" % (CR, LI))
    A.e("v_mul_f32 %s, %s, v60" % (CI, LI))
    A.e("v_fma_f32 %s, -v53, v61, %s" % (CI, CI))
    A.e("v_add_f32 v52, v52, v52")
    A.e("v_mul_f32 %s, %s, v52" % (CR, CR))
    A.e("v_mul_f32 %s, %s, v52" % (CI, CI))
    emit(A, ["v_lshlrev_b32 v54, 5, v8", "v_lshl_add_u32 v54, v9, 4, v54", "v_xor_b32 v55, 0x80, v54"])
    emit(A, ["s_lshl_b32 s6, s7, 2", "s_sub_u32 s6, s6, s4", "s_add_u32 s6, s6, 16",
             "v_add_u32 v62, s6, v9", "v_lshlrev_b32 v60, 9, v62", "v_lshl_add_u32 v60, v8, 4, v60",
             "v_sub_u32 v62, 17, v62", "v_and_b32 v62, -2, v62", "v_max_i32 v62, 0, v62", "v_min_i32 v62, 4, v62",
             "v_lshlrev_b32 v63, 3, v8", "v_add_u32 v63, %d, v63" % (MISC + 8192),
             "s_lshl_b32 s6, s7, 9", "v_lshl_add_u32 v61, v9, 8, v63", "v_add_u32 v61, s6, v61"])

    par_ops = [x.strip() for x in A.L]
    A.L, A.ni = real, ni0

    tiles = [0, 1]
    LA, LAF = PAR["la"], PAR["laf"]
    assert LA <= LAF <= 4
    assert LASTP + 1 <= PAR["estep"] <= PAR["cstep"] and PAR["cstep"] + 1 <= PAR["lastbar"] and PAR["cstep"] + 1 < PAR["hstep"] <= 15 and PAR["lastbar"] >= 13
    S = Stream(A, mk_items(ORD, 2, True), 4, PAR["sd"], PAR["sfill"])
    S.fence = LASTP + 1
    sw = []
    if PAR["dyn"]:
        S.dyn = True
        A.e("s_setprio 2")
    late = []
    dq = []
    for n in range(LASTP + LA + 1, 16):
        dq += [(n, f) for f in dma_ops(A, n, "v4", "v7", (0,) if PAR["split"] else (0, 1))]

    def dma_upto(m, maxops=999):
        while dq and dq[0][0] <= m and maxops > 0:
            dq.pop(0)[1]()
            maxops -= 1

    def ssm_publish():
        A.e("s_nop 7")
        A.e("s_nop 3")
        cur = (v(RE), v(IM))
        tmp = [("v48", "v49"), ("v50", "v51")]
        for r in range(1, 16):
            d = (ER, EI) if r == 15 else tmp[r & 1]
            emit(A, cfma_ops(d[0], d[1], LR, LI, cur[0], cur[1], v(RE + r), v(IM + r)))
            cur = d
        A.e("ds_write_b64 v4, v[56:57]")
        A.e("v_mov_b32 v48, %d" % (MISC + 4096))
        A.e("v_mov_b32 v49, 1")
        A.e("s_mov_b64 exec, 1")
        A.e("ds_add_u32 v48, v49")
        A.e("s_mov_b64 exec, -1")
        A.e("s_mov_b32 s13, 0")
        A.lab("L_S_sync")
        A.e("ds_read_b32 v49, v48")
        A.e("s_add_u32 s13, s13, 1")
        A.e("s_waitcnt lgkmcnt(0)")
        A.e("v_readfirstlane_b32 s6, v49")
        A.e("s_cmp_lt_u32 s13, 0x100000")
        A.e("s_cselect_b32 s6, s6, 4")
        A.e("s_cmp_lt_u32 s6, 4")
        A.e("s_cbranch_scc1 L_S_sync")
        A.lg = []
        er = lambda m: (24 + 2 * m if m < 4 else 32 + 2 * (m - 4))
        for m in range(6, -1, -1):
            A.lgi("er%d" % m, "ds_read_b64 %s, v4 offset:%d" % (v(er(m), 2), 256 * (m + 1)))
        cur = (v(er(6)), v(er(6) + 1))
        for m in range(5, -1, -1):
            d = (SR, SI) if m == 0 else tmp[m & 1]
            A.lgw("er%d" % m)
            emit(A, cfma_ops(d[0], d[1], L16R, L16I, cur[0], cur[1], v(er(m)), v(er(m) + 1)))
            cur = d
        A.e("s_cmp_lg_u32 s7, 3")
        A.e("s_cbranch_scc1 L_S_nopub")
        A.cond = True
        emit(A, cfma_ops("v24", "v26", L16R, L16I, SR, SI, ER, EI))
        A.e("v_mov_b32 v25, s14")
        A.e("v_mov_b32 v27, s14")
        A.e("s_sub_u32 s6, 15, s4")
        A.e("s_lshl_b32 s6, s6, 9")
        A.e("v_lshlrev_b32 v28, 4, v8")
        A.e("s_mov_b32 exec_lo, 0")
        A.e("buffer_store_dwordx4 v[24:27], v28, %s, s6 offen sc1" % s(rE, 4))
        A.e("s_mov_b64 exec, -1")
        A.cond = False
        A.lab("L_S_nopub")
        A.fs(56)
        emit(A, wdma_addr_ops("v4", "v7", "v48"))
        for r in range(16):
            t = "v%d" % (48 + (r & 3))
            S.fill += ["v_mul_f32 %s, %s, %s" % (t, CI, v(RE + r)), "v_mul_f32 %s, %s, %s" % (v(RE + r), CR, v(RE + r)),
                       "v_fma_f32 %s, -%s, %s, %s" % (v(RE + r), CI, v(IM + r), v(RE + r)), "v_fma_f32 %s, %s, %s, %s" % (v(IM + r), CR, v(IM + r), t)]
        if not PAR["coeff"]:
            S.flush()

    def e_issue(tag=None):
        for m in range(2):
            x = "buffer_load_dwordx4 %s, v60, %s, 0 offen offset:%d sc1" % (v(24 + 4 * m, 4), s(rE, 4), 1024 * m)
            if tag:
                A.vmi(tag, x)
            else:
                A.e(x)

    def e_check():
        A.fs(17)
        A.e("s_mov_b32 s13, 0")
        A.vmw("e")
        A.lab("L_S_poll")
        A.e("v_mov_b32 v48, 0")
        for q in range(4):
            A.e("v_cmp_eq_u32 s[%d:%d], s14, %s" % (18 + 2 * q, 19 + 2 * q, v(25 + 2 * q)))
        for q in range(4):
            A.e("v_addc_co_u32 v48, vcc, 0, v48, s[%d:%d]" % (18 + 2 * q, 19 + 2 * q))
        A.e("v_cmp_ne_u32 vcc, v62, v48")
        A.e("s_cbranch_vccz L_S_ready")
        A.cond = True
        A.e("s_sleep 2")
        e_issue()
        A.e("s_add_u32 s13, s13, 1")
        A.e("s_cmp_lt_u32 s13, 0x20000")
        A.e("s_waitcnt vmcnt(0)")
        A.e("s_cbranch_scc1 L_S_poll")
        A.cond = False
        A.lab("L_S_ready")
        emit(A, cfma_ops("v48", "v49", L256R, L256I, "v28", "v30", "v24", "v26"))
        A.e("v_mul_f32 v50, %s, v48" % QR)
        A.e("v_mul_f32 v51, %s, v49" % QR)
        A.e("v_fma_f32 v50, -%s, v49, v50" % QI)
        A.e("v_fmac_f32 v51, %s, v48" % QI)
        A.lgi("pw", "ds_write_b64 v61, v[50:51]")
        A.fs(18)

    def scan_ops():
        o = []
        pr = [24, 26, 28, 30, 48, 50, 52, 56]
        def prd():
            for q in range(8):
                A.lgi("pr", "ds_read_b64 %s, v63 offset:%d" % (v(pr[q], 2), 256 * q))
        bump = lambda: lane0_store(A, ["s_lshl_b32 s6, s7, 4", "s_add_u32 s6, s6, s4", "s_cmp_lg_u32 s6, 15"], "s14", rEP, "0", 0, "v60", "v61", "L_S_noep")
        o += [prd, bump, lambda: A.lgw("pr")]
        for (x, y) in ((0, 1), (2, 3), (4, 5), (6, 7), (0, 2), (4, 6), (4, 0)):
            o.append("v_add_f32 %s, %s, %s" % (v(pr[x]), v(pr[x]), v(pr[y])))
            o.append("v_add_f32 %s, %s, %s" % (v(pr[x] + 1), v(pr[x] + 1), v(pr[y] + 1)))
        o += cfma_ops("v50", "v51", PR, PI, "v48", "v49", SR, SI)
        o += ["v_mul_f32 v48, %s, v50" % CR, "v_mul_f32 v49, %s, v51" % CR, "v_fma_f32 v48, -%s, v51, v48" % CI, "v_fmac_f32 v49, %s, v50" % CI]
        cur = ("v48", "v49")
        for r in range(16):
            o.append("v_fmac_f32 %s, %s, %s" % (v(RE + r), LR, cur[0]))
            o.append("v_fmac_f32 %s, %s, %s" % (v(IM + r), LR, cur[1]))
            o.append("v_fmac_f32 %s, %s, %s" % (v(RE + r), NLI, cur[1]))
            o.append("v_fmac_f32 %s, %s, %s" % (v(IM + r), LI, cur[0]))
            cur = (v(RE + r), v(IM + r))
        for q in range(8):
            o.append("v_cvt_pk_bf16_f32 %s, %s, %s" % (v(RE + q), v(RE + 2 * q), v(RE + 2 * q + 1)))
        for q in range(8):
            o.append("v_cvt_pk_bf16_f32 %s, -%s, -%s" % (v(IM + q), v(IM + 2 * q), v(IM + 2 * q + 1)))
        def st(ks):
            A.vmi("hst", "buffer_store_dwordx4 %s, %s, %s, s%d offen offset:%d%s" % (v((RE, RE + 4, IM, IM + 4)[ks], 4), "v55" if ks & 1 else "v54", s(rAS, 4),
                                                                                   101 if ks >= 2 else 100, 1024 * (ks & 1), stmod()))
            if ks == 3:
                A.fs(19)
        for ks in range(4):
            o.append(lambda ks=ks: st(ks))
            o += [("gap",)] * PAR["stgap"]
        return o

    def prefetch_c():
        A.e("s_lshr_b32 s15, s5, 3")
        A.e("s_lshl_b32 s15, s15, 18")
        A.e("s_lshr_b32 s6, s2, 3")
        A.e("s_lshl_b32 s6, s6, 13")
        A.e("s_add_u32 s15, s15, s6")
        A.e("s_lshl_b32 s6, s7, 11")
        A.e("s_add_u32 s15, s15, s6")
        A.e("v_lshlrev_b32 v18, 7, v1")
        A.e("s_mov_b64 exec, 0xffff")
        A.vmi("pf", "buffer_load_dword v19, v18, %s, s15 offen" % s(rCRE, 4))
        A.vmi("pf", "buffer_load_dword v19, v18, %s, s15 offen" % s(rCIM, 4))
        A.e("s_mov_b64 exec, -1")

    def prefetch_w2():
        A.e("s_lshr_b32 s6, s2, 3")
        A.e("s_mul_i32 s15, s6, 43")
        A.e("s_mul_i32 s6, s7, 11")
        A.e("s_add_u32 s15, s15, s6")
        A.e("s_lshl_b32 s15, s15, 1")
        A.e("s_lshr_b32 s6, s5, 3")
        A.e("s_add_u32 s15, s15, s6")
        A.e("s_lshl_b32 s15, s15, 9")
        A.e("v_lshrrev_b32 v18, 2, v1")
        A.e("v_lshlrev_b32 v18, 3, v18")
        A.e("v_and_or_b32 v18, v1, 3, v18")
        A.e("v_lshlrev_b32 v18, 7, v18")
        A.e("s_mov_b32 exec_hi, 0xfff")
        A.vmi("pf", "buffer_load_dword v19, v18, %s, s15 offen" % s(rW2, 4))
        A.e("s_mov_b64 exec, -1")

    def spf_setup():
        n_ = PAR["spfn"]
        A.e("s_lshr_b32 s6, s2, 3")
        A.e("s_mul_i32 s30, s6, %d" % ((255 + n_) // n_))
        A.e("s_lshr_b32 s30, s30, 8")
        A.e("s_mul_i32 s30, s30, %d" % n_)
        A.e("s_sub_u32 s30, s6, s30")
        A.e("s_lshr_b32 s9, s5, 3")
        A.e("s_lshl_b32 s9, s9, 18")
        A.e("s_lshl_b32 s15, s6, 13")
        A.e("s_add_u32 s9, s9, s15")
        A.e("s_lshl_b32 s15, s7, 11")
        A.e("s_add_u32 s9, s9, s15")
        A.e("s_mul_i32 s15, s6, 43")
        A.e("s_mul_i32 s6, s7, 11")
        A.e("s_add_u32 s15, s15, s6")
        A.e("s_lshl_b32 s15, s15, 1")
        A.e("s_lshr_b32 s6, s5, 3")
        A.e("s_add_u32 s15, s15, s6")
        A.e("s_lshl_b32 s15, s15, 9")

    def spf_site(q, va='v18', vd='v19'):
        def f():
            A.e("s_cmp_lg_u32 s30, %d" % q)
            A.e("s_cbranch_scc1 L_spf%d" % q)
            A.cond = True
            A.e(("v_lshlrev_b32 v18, 7, v1").replace("v18", va).replace("v19", vd))
            A.e("s_mov_b64 exec, 0xffff")
            A.e(("buffer_load_dword v19, v18, %s, s9 offen" % s(rCRE, 4)).replace("v18", va).replace("v19", vd))
            A.e(("buffer_load_dword v19, v18, %s, s9 offen" % s(rCIM, 4)).replace("v18", va).replace("v19", vd))
            A.e("s_mov_b64 exec, -1")
            A.e(("v_lshrrev_b32 v18, 2, v1").replace("v18", va).replace("v19", vd))
            A.e(("v_lshlrev_b32 v18, 3, v18").replace("v18", va).replace("v19", vd))
            A.e(("v_and_or_b32 v18, v1, 3, v18").replace("v18", va).replace("v19", vd))
            A.e(("v_lshlrev_b32 v18, 7, v18").replace("v18", va).replace("v19", vd))
            A.e("s_mov_b32 exec_hi, 0xfff")
            A.e(("buffer_load_dword v19, v18, %s, s15 offen" % s(rW2, 4)).replace("v18", va).replace("v19", vd))
            A.e("s_mov_b64 exec, -1")
            A.cond = False
            A.lab("L_spf%d" % q)
        return f

    def warm_w():
        A.e("s_and_b32 s6, s83, 7")
        A.e("s_lshl_b32 s6, s6, 2")
        A.e("s_add_u32 s6, s6, s7")
        A.e("s_mul_i32 s6, s6, %d" % (16 * 2752))
        A.e("s_mul_i32 s13, s5, 192")
        A.e("s_add_u32 s6, s6, s13")
        A.e("s_add_u32 s6, s6, s92")
        A.e("v_lshrrev_b32 v52, 1, v8")
        A.e("v_mul_u32_u24 v52, 2752, v52")
        A.e("v_and_b32 v53, 1, v1")
        A.e("v_lshl_add_u32 v52, v53, 7, v52")
        A.e("s_mov_b32 exec_hi, 0")
        A.e("s_bitcmp1_b32 s4, 3")
        A.e("s_cbranch_scc1 L_ww3")
        A.e("buffer_load_dword v53, v52, %s, s6 offen" % s(rW1, 4))
        A.e("s_branch L_ww")
        A.lab("L_ww3")
        A.e("buffer_load_dword v53, v52, %s, s6 offen" % s(rW3, 4))
        A.lab("L_ww")
        A.e("s_mov_b64 exec, -1")

    if PAR["spf"] or PAR["mpf"] >= 0:
        spf_setup()
    if PAR["mpf"] >= 0:
        A.e("s_bfe_u32 s6, s2, 0x10002")
        A.e("s_lshl_b32 s6, s6, 1")
        A.e("s_and_b32 s30, s2, 1")
        A.e("s_add_u32 s30, s30, s6")
        A.e("s_sub_u32 s30, s30, s7")
    if PAR["pf"] and not PAR["spf"] and not PAR["fpf"]:
        dq.append((PAR["pfc"] + LAF, prefetch_c))
        if PAR["pfw"] <= 15:
            dq.append((PAR["pfw"] + LAF, prefetch_w2))

    N = len(P2_SEQ)
    LA2 = PAR["ala"]
    assert LA2 <= NA - 2

    rAs_, rAo_ = 56, 60

    def p2_setup1():
        tile_of(A, "s11", "s10", "s31")
        if PAR["p2map"]:
            A.e("s_and_b32 s6, s4, 3")
            A.e("s_lshl_b32 s13, s6, 1")
            A.e("s_add_u32 s13, s13, s10")
            A.e("s_mul_i32 s14, s6, 3")
            A.e("s_mul_i32 s6, s10, 11")
        else:
            A.e("s_and_b32 s6, s10, 3")
            A.e("s_lshl_b32 s13, s6, 1")
            A.e("s_add_u32 s13, s13, s4")
            A.e("s_mul_i32 s14, s6, 3")
            A.e("s_and_b32 s6, s4, 7")
            A.e("s_mul_i32 s6, s6, 11")
        A.e("s_lshr_b32 s6, s6, 3")
        A.e("s_add_u32 s14, s14, s6")
        A.e("s_sub_u32 s6, s14, 11")
        A.e("s_cmp_ge_u32 s14, 11")
        A.e("s_cselect_b32 s14, s6, s14")
        A.e("s_lshl_b32 s9, s7, 11")
        A.e("s_cmp_lg_u32 s11, 0")
        A.e("s_cselect_b64 %s, %s, %s" % (s(rCRE, 2), s(sCIM, 2), s(sCRE, 2)))
        A.e("v_and_b32 v11, 7, v1")
        A.e("v_lshrrev_b32 v22, 3, v1")
        A.e("v_lshrrev_b32 v10, 4, v1")
        A.e("v_xor_b32 v10, v10, v11")
        A.e("v_lshlrev_b32 v10, 4, v10")
        A.e("v_lshl_add_u32 v4, v22, 10, v10")
        A.e("s_lshl_b32 s6, s7, 14")
        A.e("s_lshl_b32 s12, s10, 16")
        A.e("s_add_u32 s12, s12, s6")
        A.e("v_add_u32 v4, s12, v4")
        A.e("v_xor_b32 v5, 64, v4")
        A.e("v_add_u32 v5, 8192, v5")

    def p2_setup2():
        A.e("s_and_b32 s12, s7, 1")
        A.e("s_lshr_b32 s15, s7, 1")
        A.e("s_lshl_b32 s15, s15, 11")
        A.e("s_lshl_b32 s8, s12, 12")
        A.e("s_add_u32 s8, s8, s15")
        A.e("s_lshl_b32 s6, s11, 15")
        A.e("s_add_u32 s6, s6, s15")
        A.e("v_add_u32 v2, s6, v6")
        A.e("s_mul_i32 s6, s11, 45056")
        A.e("s_add_u32 s6, s6, s15")
        A.e("s_add_u32 s6, s6, 65536")
        A.e("v_add_u32 v23, s6, v6")
        A.e("s_lshl_b32 s6, s31, 1")
        A.e("s_add_u32 s6, s6, s11")
        A.e("s_lshl_b32 s6, s6, 1")
        A.e("s_add_u32 s6, s6, s12")
        A.e("s_xor_b32 s15, s6, 2")
        A.e("s_mul_i32 s6, s6, %d" % (NKS * 1024))
        A.e("s_mul_i32 s15, s15, %d" % (NKS * 1024))
        srd(A, rAo_, sWS, NKS * 1024, "s6")
        srd(A, rAs_, sWS, NKS * 1024, "s15")
        A.e("v_bfe_u32 v10, v1, 4, 1")
        A.e("v_lshlrev_b32 v10, 2, v10")
        A.e("v_xor_b32 v10, v10, v11")
        A.e("v_lshlrev_b32 v10, 4, v10")
        A.e("v_lshl_add_u32 v3, v22, 10, v10")
        A.e("s_lshl_b32 s6, s7, 14")
        A.e("s_lshl_b32 s12, s10, 7")
        A.e("s_add_u32 s12, s12, s6")
        A.e("s_mul_i32 s6, s11, %d" % (704 * 1024))
        A.e("s_add_u32 s12, s12, s6")
        A.e("v_add_u32 v3, s12, v3")
        A.e("v_add_u32 v7, 8192, v3")
        A.e("v_and_b32 v17, 15, v1")
        A.e("s_and_b32 s6, s31, 7")
        A.e("s_lshl_b32 s6, s6, 9")
        A.e("v_lshl_add_u32 v17, v17, 2, s6")

    def idx(kind, m):
        if kind == "C":
            A.e("s_add_u32 s12, s13, %d" % m)
            A.e("s_and_b32 s12, s12, 7")
        else:
            A.e("s_add_u32 s12, s14, %d" % m)
            A.e("s_sub_u32 s6, s12, 11")
            A.e("s_cmp_ge_u32 s12, 11")
            A.e("s_cselect_b32 s12, s6, s12")

    def dma_w(q):
        kind, m, u, first, free = P2_W[q]
        idx(kind, m)
        A.e("s_lshl_b32 s12, s12, %d" % (16 if kind == "W" else 7))
        r_, va, vb = (rW2, "v3", "v7") if kind == "W" else (rCRE, "v4", "v5")
        A.e("s_add_u32 m0, s9, %d" % (u * 8192))
        A.e("s_nop 0")
        A.vmi("w%d" % first, "buffer_load_dwordx4 %s, %s, s12 offen lds" % (va, s(r_, 4)))
        A.e("s_add_u32 m0, s9, %d" % (u * 8192 + 1024))
        A.e("s_nop 0")
        A.vmi("w%d" % first, "buffer_load_dwordx4 %s, %s, s12 offen lds" % (vb, s(r_, 4)))

    def dma_a(n):
        kind, m, hf, u = P2_SEQ[n]
        if kind == "X":
            srd(A, rE, sX, 2048 * 1024)
            A.e("s_lshl_b32 s6, s31, 1")
            A.e("s_add_u32 s6, s6, s11")
            A.e("s_lshl_b32 s6, s6, 2")
            A.e("s_add_u32 s6, s6, s7")
            A.e("s_lshl_b32 s6, s6, 14")
            A.e("s_lshl_b32 s12, s10, 7")
            A.e("s_add_u32 s12, s12, s6")
            A.e("v_and_b32 v10, 7, v1")
            A.e("v_lshlrev_b32 v10, 4, v10")
            A.e("v_lshl_add_u32 v10, v22, 10, v10")
            A.e("s_add_u32 m0, s9, %d" % AU(n))
            A.e("s_add_u32 s6, s12, 8192")
            A.vmi("a%d" % n, "buffer_load_dwordx4 v10, %s, s12 offen lds" % s(rE, 4))
            A.e("s_add_u32 m0, s9, %d" % (AU(n) + 1024))
            A.e("s_nop 0")
            A.vmi("a%d" % n, "buffer_load_dwordx4 v10, %s, s6 offen lds" % s(rE, 4))
            srd(A, rEP, sWS, 16384, "0x%x" % G_OFF)
            A.e("s_lshl_b32 s12, s31, 2")
            A.e("s_add_u32 s12, s12, s7")
            A.e("s_lshl_b32 s12, s12, 8")
            A.e("s_lshl_b32 s6, s7, 8")
            A.e("s_add_u32 m0, s6, %d" % GU)
            A.e("s_mov_b64 exec, 0xffff")
            A.vmi("a%d" % n, "buffer_load_dwordx4 v6, %s, s12 offen sc1 lds" % s(rEP, 4))
            srd(A, rEP, sDS, 1024)
            A.e("s_lshl_b32 s12, s10, 7")
            A.e("s_mov_b32 m0, %d" % (GU + 1024))
            A.e("s_mov_b64 exec, 0xff")
            A.vmi("a%d" % n, "buffer_load_dwordx4 v6, %s, s12 offen lds" % s(rEP, 4))
            A.e("s_mov_b64 exec, -1")
            return
        idx(kind, m)
        A.e("s_lshl_b32 s12, s12, 12")
        A.e("s_add_u32 m0, s8, %d" % AU(n))
        A.e("s_nop 0")
        va, r_ = ("v23" if kind == "W" else "v2"), (rAs_ if hf == "s" else rAo_)
        A.vmi("a%d" % n, "buffer_load_dwordx4 %s, %s, s12 offen sc1 lds" % (va, s(r_, 4)))
        A.vmi("a%d" % n, "buffer_load_dwordx4 %s, %s, s12 offen offset:1024 sc1 lds" % (va, s(r_, 4)))

    def check(tag, off, L):
        A.e("s_mov_b32 s15, 0")
        A.vmw(tag)
        A.lab(L + "_poll")
        A.e("v_cmp_ne_u32 vcc, s86, v16")
        A.e("s_cbranch_vccz %s_go" % L)
        A.e("s_sleep %d" % PAR["slp"])
        A.e("buffer_load_dword v16, v17, %s, 0 offen offset:%d sc1" % (s(rFL, 4), off))
        A.e("s_add_u32 s15, s15, 1")
        A.e("s_cmp_lt_u32 s15, 0x20000")
        A.e("s_waitcnt vmcnt(0)")
        A.e("s_cbranch_scc1 %s_poll" % L)
        A.lab(L + "_go")

    def pre(b):
        kind, c = ORD[b]
        slot = slot_of(b)
        if b == 0 and PAR["wpf"] == 99:
            warm_w()
        if b == 0 and PAR["mpf"] == 99:
            spf_site(0, "v52", "v53")()
        if b == LASTP + 1:
            S.flush()
            S.K = PAR["sfill"]
            ssm_publish()
            A.thr = PAR["thr"]
        if b == PAR["cstep"] + 1:
            S.flush()
            A.lgw("pw")
        if b == PAR["cstep"] + 2:
            assert "pr" not in A.lg
        dma_upto(min(b - 1 + LA, 15) if b != PAR["lastbar"] else 15)
        if kind == "P":
            A.e("v_add_u32 v28, %d, v7" % slot)
            A.e("v_xor_b32 v29, 32, v28")
            A.e("v_xor_b32 v30, 64, v28")
            A.e("v_xor_b32 v31, 0x60, v28")
            for q in range(4):
                A.e("v_add_u32 %s, s8, %s" % (v(24 + q), v(28 + q)))
        else:
            A.e("v_add_u32 v14, %d, v12" % slot)
            A.e("v_add_u32 v15, %d, v13" % slot)
        A.fs2(20 + b)
        A.vmw("ch%d" % (b if b != PAR["lastbar"] else 15))
        A.fs2(36 + b)

    def hflag():
        assert "hst" in A.vm or True
        A.vmw("hst")
        A.e("v_mov_b32 v24, %d" % (LDS_CNT))
        A.e("v_mov_b32 v25, 1")
        A.e("s_mov_b64 exec, 1")
        A.lgi("hc", "ds_add_rtn_u32 v26, v24, v25")
        A.e("s_mov_b64 exec, -1")

    def hflag2():
        A.lgw("hc")
        A.e("v_readfirstlane_b32 s6, v26")
        lane0_store(A, ["s_cmp_lg_u32 s6, 3"], "s86", rFL, "s87", 0, "v24", "v25", "L_S_nofl")
        A.fs(57)

    def post(b):
        A.fs(b)
        if b == 1:
            S.fill += [lambda: A.vmw("par")] + par_ops
            S.K = PAR["pfill"]
        if b == PAR["wpf"]:
            warm_w()
        if b == PAR["mpf"]:
            spf_site(0, "v52", "v53")()
        if PAR["spf"] and 0 <= b - PAR["spf0"] < PAR["spfn"]:
            spf_site(b - PAR["spf0"])()
        if b == PAR["estep"]:
            e_issue("e")
        if b == PAR["cstep"]:
            S.fill += [("gap",)] * PAR["cdelay"] + [e_check]
        if b == PAR["cstep"] + 1:
            S.fill += scan_ops()
            S.K = PAR["sfill2"]
        if b == PAR["hstep"]:
            S.fill += [hflag, ("gap",), hflag2]
        if b == PAR["lastbar"]:
            assert PAR["lastbar"] == 14 and PAR["nt"] <= 2 and 2 <= PAR["ew"] <= 7
            S.fill += [p2_setup1, ("gap",)]
            for n in range(PAR["ew"]):
                S.fill += [lambda n=n: dma_w(n), ("gap",)]
            S.fill += [p2_setup2]

    def read(it, sl, tag):
        n, ss, ti = it
        kind, c = ORD[n]
        if kind == "P":
            if ti == 0:
                A.lgi(tag, "ds_read_b128 %s, %s" % (a(16 * c + 4 * ss, 4), v(24 + ss)))
            A.lgi(tag, "ds_read_b128 %s, %s offset:%d" % (v(FB + 4 * sl, 4), v(28 + ss), 16384 + 4096 * ti))
        else:
            T = tiles[ti]
            for nn in range(2):
                A.lgi(tag, "ds_read_b64_tr_b16 %s, v%d offset:%d" % (v(FB + 4 * sl + 2 * nn, 2), 14 + (T & 1),
                                                                    ss * 6144 + (T >> 1) * 1024 + nn * 256))

    def mfma(it, sl):
        n, ss, ti = it
        kind, c = ORD[n]
        first = (c == 0 and ss == 0)
        if kind == "P":
            d = (RE, IM)[ti]
            A.e("v_mfma_f32_32x32x16_bf16 %s, %s, %s, %s" % (v(d, 16), a(16 * c + 4 * ss, 4), v(FB + 4 * sl, 4), "0" if first else v(d, 16)))
        else:
            d = ACC + 16 * ti
            A.e("v_mfma_f32_32x32x16_bf16 %s, %s, %s, %s" % (v(d, 16), v(FB + 4 * sl, 4), a(16 * c + 4 * ss, 4), "0" if first else v(d, 16)))

    def after(it, mp):
        n, ss, ti = it
        if n == 15 and ss == 3:
            S.fill.append(("dist", S.ninstr()))
            sw.append(swiglu_ops(A, ACC + 16 * ti, 1024 * ti, False, late if ti >= 2 - PAR["defS"] else None))
        if n > LASTP and (not PAR["split"] or mp % 2 == 0):
            dma_upto(S.nb - 1 + LAF, 1)

    S.pre, S.post, S.read, S.mfma, S.after = pre, post, read, mfma, after
    S.run()
    assert not dq
    A.fs(16)
    A.vmi("poll", "buffer_load_dword v16, v17, %s, 0 offen sc1" % s(rFL, 4))
    S.flush()
    emit(A, sw[0])
    A.fs(58)
    A.thr = PAR["thr2"]
    check("poll", 0, "L_p2a")
    A.fs(55)
    for n in range(PAR["ea"]):
        dma_a(n)
    emit(A, sw[1])
    wn, an = PAR["ew"], PAR["ea"]
    for n in range(N):
        mark0 = len(A.L)
        A.vmw("w%d" % n)
        A.vmw("a%d" % n)
        if n == PAR["fl2"]:
            assert not late
            A.vmw("st")
        A.e("s_barrier")
        mark1 = len(A.L)
        A.fs(20 + n) if n < 35 else None
        if n == PAR["fl2"]:
            lane0_store(A, ["s_cmp_lg_u32 s3, 0"], "s86", rFL, "s87", 256, "v10", "v11", "L_p2_nofl")
        if n == PAR["chk2"]:
            check("poll2", 256, "L_p2b")
        if n == PAR["p2poll"]:
            A.vmi("poll2", "buffer_load_dword v16, v17, %s, 0 offen offset:256 sc1" % s(rFL, 4))
        if "burn" in OPT:
            for q in range(PAR["burn"]):
                A.e("ds_read_b128 v[%d:%d], v6 offset:%d" % (24 + 4 * (q & 7), 27 + 4 * (q & 7), 1024 * q + 8192 * (n % 6)))
        if "burnv" in OPT:
            for q in range(PAR["burn"]):
                A.e("v_fma_f32 v%d, v%d, v%d, v%d" % (24 + (q & 15), 64 + (q & 31), 96 + (q & 31), 24 + (q & 15)))
        budget = 3 if n == PAR["chk2"] else 2
        while budget > 0:
            a_ok = an < N and an <= n + LA2 and (an < NSSM or n >= PAR["chk2"])
            w_ok = wn < len(P2_W) and P2_W[wn][4] <= n
            if a_ok and not (w_ok and P2_W[wn][3] < an):
                dma_a(an); an += 1
            elif w_ok:
                dma_w(wn); wn += 1
            else:
                break
            budget -= 1
        if late and n >= 1 and n % 2 == 1:
            late.pop(0)()
        if PAR["pf"] and not PAR["spf"] and not PAR["fpf"] and PAR["pfw"] > 15 and n == PAR["pfw2"]:
            prefetch_w2()
        assert (an > n + 1 or an == N) and (wn == len(P2_W) or P2_W[wn][3] > n + 1)
        if PAR["hoist"]:
            k = mark1
            while k < len(A.L) and A.L[k].split()[0] in ("s_add_u32", "s_and_b32", "s_lshl_b32", "s_sub_u32", "s_cmp_ge_u32", "s_cselect_b32", "s_nop"):
                k += 1
            if k < len(A.L) and A.L[k].split()[0] == "buffer_load_dwordx4":
                lead = [x for x in A.L[mark1:k] if "s_nop" not in x]
                A.L[mark0:k] = lead + A.L[mark0:mark1]
    assert an == N and wn == len(P2_W)
    A.e("s_or_b32 s6, s87, s7")
    A.e("s_cmp_lg_u32 s6, 0")
    A.e("s_cbranch_scc1 L_p2_noep")
    A.e("v_lshrrev_b32 v10, 4, v1")
    A.e("v_and_b32 v17, 15, v1")
    A.e("v_lshlrev_b32 v17, 2, v17")
    A.e("v_lshl_add_u32 v17, v10, 9, v17")
    for off, L in ((256, "L_p2c"), (2048 + 256, "L_p2d")):
        A.vmi("pe", "buffer_load_dword v16, v17, %s, 0 offen offset:%d sc1" % (s(rFL, 4), off))
        check("pe", off, L)
    lane0_store(A, ["s_cmp_lg_u32 s7, 0"], "s86", rG, "0", 0, "v10", "v11", "L_p2_noep")
    A.fs_end()
    A.e("s_endpgm")


def gen_all(A):
    K = NAME + "_kernel"
    A.L.append(".globl %s\n.p2align 8\n.type %s,@function\n%s:" % (K, K, K))
    prologue(A)
    role_F(A)
    fm = A.L[A.fmain:]
    del A.L[A.fmain:]
    role_S(A)
    A.L += fm
    A.lab("L_end")
    A.e("s_endpgm")
    A.lab("L_code_end")


def kd(name, nv, acc, ns=102):
    return """.amdhsa_kernel %s
  .amdhsa_next_free_vgpr %d
  .amdhsa_next_free_sgpr %d
  .amdhsa_accum_offset %d
  .amdhsa_group_segment_fixed_size 0
  .amdhsa_kernarg_size 136
  .amdhsa_user_sgpr_count 2
  .amdhsa_user_sgpr_kernarg_segment_ptr 1
  .amdhsa_system_sgpr_workgroup_id_x 1
.end_amdhsa_kernel
""" % (name, nv, ns, acc)


def main(path):
    ref = open("cdna_kernels/%s.s.ref" % NAME).read().splitlines()
    head = [l for l in ref if l.startswith(";") and "@launch" not in l and "Override launch" not in l and "grid=ceil" not in l]
    head = head[:18]
    A = Asm()
    gen_all(A)
    out = head + [
        "; @launch grid=(256,1,1) block=(512,1,1) lds=%d" % K1_LDS,
        '.amdgcn_target "amdgcn-amd-amdhsa--gfx950"', ".text"] + A.L + [
        '.section .rodata,"a"', ".p2align 6", kd(NAME + "_kernel", 256, 128)]
    open(path, "w").write("\n".join(out))


if __name__ == "__main__":
    if "--stamp" in sys.argv:
        STAMP = True
        sys.argv.remove("--stamp")
    for x in list(sys.argv):
        if x.startswith("-O"):
            OPT.add(x[2:]); sys.argv.remove(x)
        elif x.startswith("-U"):
            OPT.discard(x[2:]); sys.argv.remove(x)
        elif x.startswith("-P"):
            kk, vv = x[2:].split("=")
            PAR[kk] = vv if kk.startswith("ord") else int(vv)
            sys.argv.remove(x)
    main(sys.argv[1] if len(sys.argv) > 1 else "cdna_kernels/%s.s" % NAME)
```

```python
import sys, struct

NAME = "gated_mix__ssm_conv_s5__glu_gated_swiglu__prompt"

def f2u(x):
    return struct.unpack("<I", struct.pack("<f", x))[0]

LOG2E = 1.4426950408889634
INV2PI = 0.15915494309189535

NKS = 150
A_BYTES = 64 * NKS * 1024
E_OFF = 0xA00000
G_OFF = 0xA20000
EP_OFF = 0xA30000


EPR_OFF = 0xA31000
FL_OFF = 0xA40000

XB_OFF = 0xC00000

STAMP = False
OPT = {"asc0", "asc1", "osc0", "osc1", "xsc1"}
ST_OFF = 0xB00000

class Asm:
    def __init__(self):
        self.L = []
        self.ni = 0
        self.cond = False
        self.thr = 99
        self.vm = []
        self.lg = []

    def e(self, s):
        if "nomfma" in OPT and s.startswith("v_mfma"):
            s = "s_nop 0"
        if "nolds" in OPT and s.startswith("ds_read"):
            s = "s_nop 0"
        if "nohst" in OPT and s.startswith("buffer_store_dwordx4") and ("s100" in s or "s101" in s):
            s = "s_nop 0"
        if "noHst" in OPT and s.startswith("buffer_store_dwordx4") and ("s82" in s or "s87" in s):
            s = "s_nop 0"
        if "noout" in OPT and s.startswith("buffer_store_dword ") and "v20," in s:
            s = "s_nop 0"
        if "notw" in OPT and s.startswith("ds_write_b128"):
            s = "s_nop 0"
        if "noscan" in OPT and s.startswith("v_fmac_f32"):
            return
        if "m16" in OPT and s.startswith("v_mfma_f32_32x32x16"):
            import re as _re
            m_ = _re.match(r"v_mfma_f32_32x32x16_bf16 v\[(\d+):\d+\], (\S+), (\S+), (\S+)", s)
            d_ = int(m_.group(1)); self.m16 = getattr(self, "m16", 0) + 1
            for q_ in range(2):
                dd = d_ + 4 * (2 * ((self.m16 >> 2) & 1) + q_)
                self.L.append("  v_mfma_f32_16x16x32_bf16 v[%d:%d], %s, %s, %s" % (dd, dd + 3, m_.group(2), m_.group(3), "0" if m_.group(4) == "0" else "v[%d:%d]" % (dd, dd + 3)))
                self.ni += 1
            return
        self.L.append("  " + s)
        if not self.cond:
            self.ni += 1

    def c(self, s):
        pass

    def lab(self, s):
        self.L.append(s + ":")

    def fs2(self, n):
        if "vw" in OPT:
            self.fs(n, True)

    def fs(self, n, vw=False):
        if "hold" in OPT and n == PAR["probe"]:
            self.e("s_memrealtime s[96:97]")
            return
        if "vw" in OPT and not vw and 20 <= n < 55:
            return
        if "so" in OPT and n != 61:
            return
        if STAMP and ("light" not in OPT or n in (0, 7, 9, 13, 15, 16, 19, 20, 36, 55, 58, 59, 61)):
            self.e("%s s[98:99]" % ("s_memrealtime" if "rt" in OPT else "s_memtime"))
            self.e("s_waitcnt lgkmcnt(0)")
            self.lg = []
            self.e("s_sub_u32 s98, s98, s96")
            self.e("v_writelane_b32 v0, s98, %d" % n)

    def dbg_end(self):
        if "hold2" in OPT:
            self.e("s_load_dwordx2 s[8:9], s[0:1], 120")
            self.e("s_waitcnt vmcnt(0) lgkmcnt(0)")
            self.e("s_mov_b32 s10, 256")
            self.e("s_mov_b32 s11, 0x20000")
            self.e("s_not_b32 s12, s94")
            self.e("v_mov_b32 v2, s12")
            self.e("v_mov_b32 v1, 0")
            self.e("s_mov_b64 exec, 1")
            self.e("s_cmp_lg_u32 s7, 0")
            self.e("s_cbranch_scc1 L_hold_a")
            self.e("buffer_atomic_umax v2, v1, s[8:11], 0 offen")
            self.lab("L_hold_a")
            self.e("s_sleep 4")
            self.e("s_memrealtime s[98:99]")
            self.e("s_waitcnt lgkmcnt(0)")
            self.e("s_sub_u32 s98, s98, s94")
            self.e("s_cmp_lt_u32 s98, 4000")
            self.e("s_cbranch_scc1 L_hold_a")
            self.e("buffer_load_dword v2, v1, s[8:11], 0 offen sc1")
            self.e("s_waitcnt vmcnt(0)")
            self.e("v_readfirstlane_b32 s94, v2")
            self.e("s_not_b32 s94, s94")
        if "hold" in OPT:
            self.lab("L_hold")
            self.e("s_sleep 4")
            self.e("s_memrealtime s[98:99]")
            self.e("s_waitcnt lgkmcnt(0)")
            self.e("s_sub_u32 s98, s98, s%d" % (96 if PAR["probe"] >= 0 else 94))
            self.e("s_cmp_lt_u32 s98, %d" % PAR["hold"])
            self.e("s_cbranch_scc1 L_hold")
        if "dbg" in OPT:
            self.e("s_waitcnt vmcnt(0)")
            self.e("s_memrealtime s[98:99]")
            self.e("s_memtime s[92:93]")
            self.e("s_load_dwordx2 s[8:9], s[0:1], 120")
            self.e("s_waitcnt lgkmcnt(0)")
            self.e("s_mov_b32 s10, 256")
            self.e("s_mov_b32 s11, 0x20000")
            self.e("s_not_b32 s94, s94")
            self.e("s_sub_u32 s92, s92, s96")
            self.e("v_mov_b32 v2, s94")
            self.e("v_mov_b32 v3, s98")
            self.e("v_mov_b32 v4, s92")
            self.e("v_mov_b32 v1, 0")
            self.e("s_cmp_lg_u32 s7, 0")
            self.e("s_cbranch_scc1 L_dbg_done")
            self.e("s_mov_b64 exec, 1")
            self.e("buffer_atomic_umax v2, v1, s[8:11], 0 offen")
            self.e("buffer_atomic_umax v3, v1, s[8:11], 0 offen offset:4")
            self.e("buffer_atomic_umax v4, v1, s[8:11], 0 offen offset:8")
            self.lab("L_dbg_done")

    def stamp_begin(self):
        if STAMP or "dbg" in OPT or "hold" in OPT:
            self.e("s_memrealtime s[94:95]")
            self.e("%s s[96:97]" % ("s_memrealtime" if "rt" in OPT else "s_memtime"))

    def fs_end(self):
        if STAMP:
            self.e("s_waitcnt vmcnt(0)")
            self.fs(61)
            self.e("s_memrealtime s[98:99]")
            self.e("s_waitcnt lgkmcnt(0)")
            self.e("v_writelane_b32 v0, s94, 62")
            self.e("v_writelane_b32 v0, s98, 63")
            self.e("s_add_u32 s8, s%d, 0x%x" % (sWS, ST_OFF))
            self.e("s_addc_u32 s9, s%d, 0" % (sWS + 1))
            self.e("s_mov_b32 s10, 0x80000")
            self.e("s_mov_b32 s11, 0x20000")
            self.e("s_lshl_b32 s6, s2, 11")
            self.e("s_lshl_b32 s12, s3, 8")
            self.e("s_add_u32 s6, s6, s12")
            self.e("v_lshlrev_b32 v1, 2, v1")
            self.e("buffer_store_dword v0, v1, s[8:11], s6 offen")

    def throttle(self, k):
        if len(self.vm) > k:
            self.e("s_waitcnt vmcnt(%d)" % k)
            self.vm = self.vm[len(self.vm) - k:] if k else []

    def vmi(self, tag, s, cold=False):
        self.throttle(self.thr)
        if cold and "nt" in OPT:
            s = s.replace(" lds", " nt lds") if s.endswith(" lds") else s + " nt"
        self.e(s)
        self.vm.append(tag)
        assert len(self.vm) <= 63, "too many vmem ops in flight"

    def vmw(self, tag, extra=""):
        idx = [i for i, t in enumerate(self.vm) if t == tag]
        if not idx:
            return None
        n = len(self.vm) - 1 - idx[-1]
        self.vm = self.vm[idx[-1] + 1:]
        self.e("s_waitcnt vmcnt(%d)%s" % (n, extra))
        return n

    def lgi(self, tag, s):
        self.e(s)
        self.lg.append(tag)

    def lgw(self, tag):
        idx = [i for i, t in enumerate(self.lg) if t == tag]
        if not idx:
            return
        n = len(self.lg) - 1 - idx[-1]
        self.lg = self.lg[idx[-1] + 1:]
        self.e("s_waitcnt lgkmcnt(%d)" % min(n, 15))

    def lgw0(self):
        if self.lg:
            self.e("s_waitcnt lgkmcnt(0)")
        self.lg = []


def stmod(pre="a"):
    return "".join(" " + m for m in ("sc0", "sc1", "nt") if pre + m in OPT)

def v(a, n=1):
    return "v%d" % a if n == 1 else "v[%d:%d]" % (a, a + n - 1)

def a(a_, n=1):
    return "a%d" % a_ if n == 1 else "a[%d:%d]" % (a_, a_ + n - 1)

def s(a_, n=1):
    return "s%d" % a_ if n == 1 else "s[%d:%d]" % (a_, a_ + n - 1)


def srd(A, d, base, nbytes, addlo=None):
    if addlo is None:
        A.e("s_mov_b32 s%d, s%d" % (d, base))
        A.e("s_mov_b32 s%d, s%d" % (d + 1, base + 1))
    else:
        A.e("s_add_u32 s%d, s%d, %s" % (d, base, addlo))
        A.e("s_addc_u32 s%d, s%d, 0" % (d + 1, base + 1))
    A.e("s_mov_b32 s%d, 0x%x" % (d + 2, nbytes))
    A.e("s_mov_b32 s%d, 0x20000" % (d + 3))


SLOT = 24576
NSLOT = 6
MISC = SLOT * NSLOT
K1_LDS = 163840
OOB = 0x40000000
LDS_CNT = MISC + 4096 + 8

ORD = [("P", c) for c in range(8)] + [("F", c) for c in range(8)]
LASTP = 7
def slot_of(n):
    return ((n % NSLOT) if n >= 8 else (4, 5, 0, 1)[n & 3]) * SLOT
PAR = dict(la=2, laf=4, nt=2, estep=9, cstep=10, hstep=14, cdelay=0, stgap=1, fd=5, sd=3, ffill=6, sfill=10, sfill2=14,
           rot=1, pf=1, cpf=1, pfc=11, pfw=11, ala=4, wla=8, urot=1, p2poll=11, chk2=13, fl2=5, slp=8, prio=0, hold=4000, pk=1, gam=0, lastbar=14, hsp=0, xstep=6, map=1, defF=2, defS=1, e0=3, pfw2=2, coeff=0, g0=46, spf=0, spf0=9, spfn=6, spfgap=2, mpf=-1, wpf=-1, tlb=0, thr=99, thr2=99, thrp=99, stag=0, sper=4, dyn=0, split=1, fgap=4, probe=-1, ew=7, ea=3, dph=0, pfill=3, fpf=1, burn=4, hoist=1, rl=4, rc=1, ssp=2, p2map=0, xe=1)

sX, sLRE, sLIM, sBRE, sBIM, sCRE, sCIM, sLDT = 16, 18, 20, 22, 24, 26, 28, 30
sW1, sW3, sW2, sGW, sDS, sWS, sOUT = 32, 34, 36, 38, 40, 42, 84
rX, rBRE, rBIM, rW1, rW3, rAS, rE, rEP, rG, rFL = 44, 48, 52, 56, 60, 64, 68, 72, 76, 88


def swiglu_ops(A, acc, off, pk, defer=None):
    o = []
    if pk:
        for r in range(0, 8, 2):
            o.append("v_pk_mul_f32 %s, %s, %s" % (v(acc + 8 + r, 2), v(acc + r, 2), v(acc + 8 + r, 2)))
        for r in range(0, 8, 2):
            o.append("v_pk_mul_f32 %s, %s, s[80:81] op_sel_hi:[1,0]" % (v(acc + r, 2), v(acc + r, 2)))
        for r in range(8):
            o.append("v_exp_f32 %s, %s" % (v(acc + r), v(acc + r)))
        for r in range(0, 8, 2):
            o.append("v_pk_add_f32 %s, %s, 1.0 op_sel_hi:[1,0]" % (v(acc + r, 2), v(acc + r, 2)))
        for r in range(8):
            o.append("v_rcp_f32 %s, %s" % (v(acc + r), v(acc + r)))
        for r in range(0, 8, 2):
            o.append("v_pk_mul_f32 %s, %s, %s" % (v(acc + 8 + r, 2), v(acc + 8 + r, 2), v(acc + r, 2)))
        for q in range(4):
            o.append("v_cvt_pk_bf16_f32 %s, %s, %s" % (v(acc + q), v(acc + 8 + 2 * q), v(acc + 9 + 2 * q)))
        (o if defer is None else defer).append(lambda: A.vmi("st", "buffer_store_dwordx4 %s, v6, %s, %s offen offset:%d%s" % (v(acc, 4), s(rAS, 4), "s87" if off >= 2048 else "s82", off, stmod())))
        return o
    for r in range(8):
        o.append("v_mul_f32 %s, %s, %s" % (v(acc + 8 + r), v(acc + r), v(acc + 8 + r)))
    for r in range(8):
        o.append("v_mul_f32 %s, s80, %s" % (v(acc + r), v(acc + r)))
    for r in range(8):
        o.append("v_exp_f32 %s, %s" % (v(acc + r), v(acc + r)))
    for r in range(8):
        o.append("v_add_f32 %s, 1.0, %s" % (v(acc + r), v(acc + r)))
    for r in range(8):
        o.append("v_rcp_f32 %s, %s" % (v(acc + r), v(acc + r)))
    for r in range(8):
        o.append("v_mul_f32 %s, %s, %s" % (v(acc + 8 + r), v(acc + 8 + r), v(acc + r)))
    for q in range(4):
        o.append("v_cvt_pk_bf16_f32 %s, %s, %s" % (v(acc + q), v(acc + 8 + 2 * q), v(acc + 9 + 2 * q)))
    (o if defer is None else defer).append(lambda: A.vmi("st", "buffer_store_dwordx4 %s, v6, %s, %s offen offset:%d%s" % (v(acc, 4), s(rAS, 4), "s87" if off >= 2048 else "s82", off, stmod())))
    return o


class Stream:
    def __init__(self, A, items, NB, D, K):
        self.A, self.items, self.NB, self.D, self.K = A, items, NB, D, K
        self.nb = 0
        self.rp = 0
        self.fill = []
        self.fence = -1
        self.dyn = False
        self.hold = 0

    def ninstr(self):
        return self.A.ni

    def pop(self, k):
        while k > 0 and self.fill:
            f = self.fill[0]
            if isinstance(f, tuple):
                if f[0] == "gap":
                    self.fill.pop(0)
                    return
                if f[0] == "bar" and self.nb <= f[1]:
                    return
                if f[0] == "dist" and self.ninstr() - f[1] < 12:
                    return
                self.fill.pop(0)
                continue
            self.fill.pop(0)
            if isinstance(f, str):
                self.A.e(f)
            else:
                f()
            k -= 1

    def flush(self):
        while self.fill:
            f = self.fill[0]
            if isinstance(f, tuple):
                if f[0] in ("bar", "gap"):
                    assert f[0] == "gap" or self.nb > f[1]
                    self.fill.pop(0)
                    continue
                d = 12 - (self.ninstr() - f[1])
                if d > 0:
                    self.A.e("s_nop %d" % (d - 1))
                self.fill.pop(0)
                continue
            self.pop(1)

    def barrier(self, n):
        while self.nb <= n:
            b = self.nb
            self.pre(b)
            lim = b - 1 if b == PAR["lastbar"] else b - 2
            old = [t for t in self.A.lg if t[0] == "c" and int(t[1:].split("_")[0]) <= lim]
            if b <= PAR["lastbar"]:
                if old:
                    self.A.lgw(old[-1])
                self.A.e("s_barrier")
            self.nb += 1
            self.post(b)

    def reads(self, upto, force):
        while self.rp < min(upto, len(self.items)):
            it = self.items[self.rp]
            if not force and (it[0] > self.nb or (it[0] == self.fence and self.nb <= it[0])):
                return
            self.barrier(it[0])
            self.read(it, self.rp % self.NB, "c%d_%d" % (it[0], self.rp))
            self.rp += 1

    def run(self):
        for mp, it in enumerate(self.items):
            if self.rp <= mp:
                self.reads(mp + 1, True)
                self.reads(mp + 1 + self.D, False)
            self.A.lgw("c%d_%d" % (it[0], mp))
            self.mfma(it, mp % self.NB)
            self.after(it, mp)
            self.reads(min(mp + 1 + self.D, self.rp + 2), False)
            if self.dyn and self.fill:
                n0 = len(self.A.L)
                self.A.e("s_setprio 0")
                self.pop(self.K)
                if len(self.A.L) == n0 + 1:
                    self.A.L.pop(); self.A.ni -= 1
                else:
                    self.A.e("s_setprio 2")
            else:
                self.pop(self.K)
        self.barrier(15)


def mk_items(ORD, ntile, withP):
    NT = PAR["nt"]
    items = []
    for n in range(16 - NT):
        if ORD[n][0] == "P" and not withP:
            continue
        for ss in range(4):
            for ti in range(ntile):
                items.append((n, ss, ti))
    for t0 in range(0, ntile, 2):
        for n in range(16 - NT, 16):
            assert ORD[n][0] == "F"
            for ss in range(4):
                for ti in (t0, t0 + 1):
                    items.append((n, ss, ti))
    return items


def emit(A, ops):
    for x in ops:
        if isinstance(x, str):
            A.e(x)
        else:
            x()


def prologue(A):
    A.e("s_cmp_ge_u32 s2, 256")
    A.e("s_cbranch_scc1 L_end")
    A.stamp_begin()
    A.e("s_load_dwordx16 s[16:31], s[0:1], 0")
    A.e("s_load_dwordx8 s[32:39], s[0:1], 80")
    A.e("s_load_dwordx2 s[42:43], s[0:1], 128")
    A.e("s_load_dwordx2 s[40:41], s[0:1], 64")
    A.e("s_load_dwordx2 s[84:85], s[0:1], 112")
    A.e("v_lshrrev_b32 v2, 6, v0")
    A.e("v_and_b32 v1, 63, v0")
    A.e("v_readfirstlane_b32 s3, v2")
    if PAR["map"] == 0:
        A.e("s_bfe_u32 s4, s2, 0x20001")
        A.e("s_lshl_b32 s4, s4, 2")
        A.e("s_bfe_u32 s6, s2, 0x20003")
        A.e("s_add_u32 s4, s4, s6")
        A.e("s_and_b32 s5, s2, 1")
        A.e("s_lshl_b32 s5, s5, 3")
        A.e("s_lshr_b32 s6, s2, 5")
        A.e("s_add_u32 s5, s5, s6")
    else:
        A.e("s_bfe_u32 s4, s2, 0x10002")
        A.e("s_lshl_b32 s4, s4, 3")
        A.e("s_bfe_u32 s6, s2, 0x30003")
        A.e("s_add_u32 s4, s4, s6")
        A.e("s_and_b32 s5, s2, 3")
        A.e("s_lshl_b32 s5, s5, 2")
        A.e("s_lshr_b32 s6, s2, 6")
        A.e("s_add_u32 s5, s5, s6")
    A.e("s_and_b32 s7, s3, 3")
    A.e("v_and_b32 v8, 31, v1")
    A.e("v_lshrrev_b32 v9, 5, v1")
    A.e("s_lshl_b32 s8, s7, 12")
    if PAR["rot"]:
        A.e("s_add_u32 s15, s4, s5")
        A.e("s_and_b32 s15, s15, 1")
        if PAR["map"]:
            A.e("s_add_u32 s83, s4, s5")
            if PAR["dph"]:
                A.e("s_and_b32 s6, s2, 1")
                A.e("s_add_u32 s83, s83, s6")
        elif PAR["gam"]:
            A.e("s_sub_u32 s83, s4, s15")
            A.e("s_lshl_b32 s83, s83, 1")
        else:
            A.e("s_lshl_b32 s83, s4, 1")
        A.e("s_add_u32 s83, s83, s5")
    else:
        A.e("s_mov_b32 s83, 0")
    A.e("s_cmp_lt_u32 s3, 4")
    A.e("s_cbranch_scc1 L_S")


def tile_of(A, half, ct, r2):
    if PAR["p2map"]:
        A.e("s_and_b32 %s, s4, 11" % r2)
        A.e("s_lshr_b32 %s, s5, 3" % half)
        A.e("s_lshl_b32 %s, %s, 2" % (half, half))
        A.e("s_add_u32 %s, %s, %s" % (r2, r2, half))
        A.e("s_and_b32 %s, s4, 4" % ct)
    else:
        A.e("s_mov_b32 %s, s4" % r2)
        A.e("s_lshr_b32 %s, s5, 3" % ct)
        A.e("s_lshl_b32 %s, %s, 2" % (ct, ct))
    A.e("s_and_b32 %s, s5, 3" % half)
    A.e("s_add_u32 %s, %s, %s" % (ct, ct, half))
    A.e("s_bfe_u32 %s, s5, 0x10002" % half)


def piece_base(d, tmp):
    return ["s_lshr_b32 %s, s5, 2" % tmp, "s_mul_i32 %s, s5, 3" % d, "s_sub_u32 %s, %s, %s" % (d, d, tmp)]


def common_late(A):
    A.e("s_mov_b32 s80, 0x%x" % f2u(-LOG2E))
    A.e("v_bfe_u32 v10, v1, 1, 3")
    A.e("v_xor_b32 v10, v10, v9")
    A.e("v_lshlrev_b32 v10, 4, v10")
    A.e("v_lshl_add_u32 v7, v8, 7, v10")
    A.e("v_bfe_u32 v10, v1, 4, 1")
    A.e("v_mul_u32_u24 v12, 3104, v10")
    A.e("v_lshlrev_b32 v11, 9, v9")
    A.e("v_add_u32 v12, v12, v11")
    A.e("v_bfe_u32 v11, v1, 2, 2")
    A.e("v_lshl_add_u32 v12, v11, 6, v12")
    A.e("v_and_b32 v11, 3, v1")
    A.e("v_lshl_add_u32 v12, v11, 3, v12")
    A.e("v_xor_b32 v13, 32, v12")
    A.e("v_lshlrev_b32 v6, 4, v1")
    A.e("s_lshl_b32 s6, s4, 2")
    A.e("s_add_u32 s6, s6, s7")
    A.e("s_mul_i32 s81, s6, %d" % (NKS * 1024))
    emit(A, piece_base("s6", "s82"))
    A.e("s_lshl_b32 s6, s6, 11")
    A.e("s_add_u32 s82, s81, s6")
    srd(A, rAS, sWS, A_BYTES)


def w_scalars(A):
    A.e("s_mul_i32 s10, s7, 6144")
    A.e("s_cmp_ge_u32 s5, 15")
    A.e("s_cselect_b32 s92, 0x%x, 0" % OOB)
    A.e("s_and_b32 s93, s5, 3")
    A.e("s_cmp_eq_u32 s93, 3")
    A.e("s_cselect_b32 s93, 0x%x, 0" % OOB)


def wdma_addr_ops(d1, d3, tmp):
    return ["v_lshrrev_b32 %s, 2, v1" % tmp, "s_lshl_b32 s6, s7, 4", "v_add_u32 %s, s6, %s" % (tmp, tmp),
            "v_mul_u32_u24 %s, 2752, %s" % (d1, tmp)] + piece_base("s6", "s11") + ["s_lshl_b32 s6, s6, 6", "v_add_u32 %s, s6, %s" % (d1, d1),
            "v_and_b32 %s, 3, v1" % tmp, "v_lshl_add_u32 %s, %s, 4, %s" % (d1, tmp, d1), "v_xor_b32 %s, 32, %s" % (d3, d1)]


def dma_ops(A, n, w1, w3, mats=(0, 1)):
    kind, c = ORD[n]
    slot = slot_of(n)
    tag = "ch%d" % n
    ops = []
    def mk(pre, m0, ins, gap="s_nop 0"):
        def f():
            for x in pre:
                A.e(x)
            A.e(m0)
            A.e(gap)
            A.vmi(tag, ins)
        return f
    if kind == "P":
        pre = ["s_add_u32 s11, s83, %d" % c, "s_and_b32 s11, s11, 7", "s_lshl_b32 s11, s11, 7", "s_add_u32 s12, s11, 8192"]
        for q in range(4):
            ops.append(mk(pre if q == 0 else [], "s_add_u32 m0, s8, %d" % (slot + 1024 * q),
                          "buffer_load_dwordx4 %s, %s, s%d offen lds" % ("v3" if q & 1 else "v2", s(rX, 4), 12 if q >= 2 else 11)))
        ops.append(mk([], "s_add_u32 m0, s9, %d" % (slot + 16384), "buffer_load_dwordx4 v4, %s, s11 offen lds" % s(rBRE, 4)))
        ops.append(mk([], "s_add_u32 m0, s9, %d" % (slot + 20480), "buffer_load_dwordx4 v4, %s, s11 offen lds" % s(rBIM, 4)))
    else:
        pre = ["s_add_u32 s11, s83, %d" % c, "s_and_b32 s11, s11, 7", "s_mul_i32 s11, s11, 176128"]
        for m in mats:
            for q in range(3):
                ops.append(mk(pre if m == mats[0] and q == 0 else [], "s_add_u32 m0, s10, %d" % (slot + m * 3072 + 1024 * q - 64 * q),
                              "buffer_load_dwordx4 %s, %s, s%d offen offset:%d lds" % (w3 if m else w1, s(rW3 if m else rW1, 4), 12 if q else 11, 64 * q),
                              "s_add_u32 s12, s11, s%d" % (91 + q) if q else "s_nop 0"))
    return ops


P2_SEQ = [("X", 0, "o", None), ("C", 0, "s", 19), ("C", 1, "s", 5)]
CU = [0, 1, 2, 3, 4, 6]
for m_ in range(6):
    P2_SEQ += [("C", 2 + m_, "s", CU[m_]), ("C", 2 + m_, "o", CU[m_])]
NSSM = len(P2_SEQ)
FU = [7, 8, 9, 10, 11] + CU
P2_SEQ += [("W", m_, "s", FU[m_]) for m_ in range(11)]
NSEND = len(P2_SEQ) - 1
P2_SEQ += [("C", 0, "o", 19), ("C", 1, "o", 5)] + [("W", m_, "o", FU[m_]) for m_ in range(11)]
P2_W = []
for n_, (k_, m_, h_, u_) in enumerate(P2_SEQ):
    if h_ == "s":
        prev = [q for q in range(n_) if P2_SEQ[q][3] == u_]
        P2_W.append((k_, m_, u_, n_, prev[0] + 2 if prev else (-1 if u_ in (0, 1, 2, 3, 4, 5, 19) else 0)))
NA = 6
GU = 18 * 8192
def AU(n): return (12 + n % NA) * 8192


def role_F(A):
    A.vm, A.lg = [], []
    A.thr = PAR["thrp"]
    ACC, FB = 64, 32
    LA = PAR["la"]
    if PAR["prio"] or PAR["dyn"]:
        A.e("s_setprio 1")
    A.e("v_lshrrev_b32 v10, 4, v1")
    A.e("v_and_b32 v11, 7, v1")
    A.e("v_xor_b32 v10, v10, v11")
    A.e("v_lshlrev_b32 v10, 4, v10")
    A.e("v_bfe_u32 v11, v1, 3, 2")
    A.e("v_lshl_add_u32 v2, v11, 10, v10")
    A.e("v_lshl_add_u32 v2, v9, 14, v2")
    A.e("s_lshl_b32 s6, s7, 15")
    A.e("v_add_u32 v2, s6, v2")
    A.e("v_xor_b32 v3, 64, v2")
    A.e("v_add_u32 v3, 4096, v3")
    A.e("s_lshl_b32 s9, s7, 10")
    A.e("s_and_b32 s6, s7, 1")
    A.e("s_lshl_b32 s6, s6, 6")
    A.e("v_xor_b32 v4, s6, v10")
    A.e("v_lshrrev_b32 v11, 3, v1")
    A.e("v_lshl_add_u32 v4, v11, 10, v4")
    A.e("s_lshl_b32 s6, s7, 13")
    A.e("v_add_u32 v4, s6, v4")
    emit(A, wdma_addr_ops("v5", "v16", "v10"))
    w_scalars(A)
    A.e("s_lshl_b32 s6, s4, 17")
    A.e("s_lshl_b32 s13, s5, 15")
    A.e("s_waitcnt lgkmcnt(0)")
    A.fs(52)
    if PAR["gam"]:
        srd(A, rW1, sW1, 512 * 2752)
        srd(A, rW3, sW3, 512 * 2752)
    if PAR["gam"]:
        assert LA == 2
        A.e("s_cmp_lg_u32 s15, 0")
        A.e("s_cbranch_scc1 L_F_now")
        emit(A, dma_ops(A, 8, "v5", "v16") + dma_ops(A, 9, "v5", "v16"))
        A.vm = []
        A.lab("L_F_now")
    srd(A, rX, sX, 131072, "s6")
    d0 = dma_ops(A, 0, "v5", "v16")
    emit(A, d0[:4])
    srd(A, rBRE, sBRE, 32768, "s13")
    srd(A, rBIM, sBIM, 32768, "s13")
    emit(A, d0[4:])
    A.fs(53)
    A.e("s_lshl_b32 s6, s5, 3")
    A.e("s_lshl_b32 s13, s7, 1")
    A.e("s_add_u32 s13, s13, s6")
    A.e("s_lshl_b32 s6, s13, 10")
    A.e("v_lshlrev_b32 v17, 4, v8")
    A.e("v_lshl_add_u32 v18, v9, 10, v17")
    A.e("v_add_u32 v18, s6, v18")
    A.vmi("g", "buffer_load_dwordx4 v[64:67], v18, %s, 0 offen" % s(rX, 4))
    A.vmi("g", "buffer_load_dwordx4 v[68:71], v18, %s, 0 offen offset:512" % s(rX, 4))
    A.vmi("g", "global_load_dwordx4 v[72:75], v17, %s" % s(sGW, 2))
    A.vmi("g", "global_load_dwordx4 v[76:79], v17, %s offset:512" % s(sGW, 2))
    A.e("s_and_b32 s6, s4, 8")
    A.e("s_lshl_b32 s6, s6, 4")
    A.e("s_add_u32 s6, s6, 0x%x" % EPR_OFF)
    srd(A, rFL, sWS, 4, "s6")
    A.e("v_mov_b32 v88, 0")
    A.vmi("g", "buffer_load_dword v87, v88, %s, 0 offen sc1" % s(rFL, 4))
    emit(A, dma_ops(A, 1, "v5", "v16"))
    A.fs(54)
    srd(A, rW1, sW1, 512 * 2752)
    srd(A, rW3, sW3, 512 * 2752)
    common_late(A)
    srd(A, rG, sWS, 16384, "0x%x" % G_OFF)
    A.e("v_add_u32 v7, s8, v7")
    A.e("s_add_u32 s82, s82, %d" % (65536 + 2048))
    A.e("s_add_u32 s87, s82, s93")
    A.e("s_add_u32 s82, s82, s92")
    A.e("s_branch L_Fmain")
    A.fmain = len(A.L)
    A.lab("L_Fmain")

    def g_ops():
        o = [lambda: A.vmw("g"), "v_readfirstlane_b32 s86, v87", "v_mov_b32 v84, 0", "s_add_u32 s86, s86, 1", "s_bitset1_b32 s86, 31"]
        for d in range(8):
            xx, ww = 64 + d, 72 + d
            o += ["v_lshlrev_b32 v80, 16, %s" % v(xx), "v_and_b32 v81, 0xffff0000, %s" % v(xx),
                  "v_lshlrev_b32 v82, 16, %s" % v(ww), "v_and_b32 v83, 0xffff0000, %s" % v(ww),
                  "v_mul_f32 v80, v80, v82", "v_mul_f32 v81, v81, v83", "v_cvt_pk_bf16_f32 v80, v80, v81",
                  "v_lshlrev_b32 v81, 16, v80", "v_and_b32 v80, 0xffff0000, v80",
                  "v_add_f32 v84, v84, v81", "v_add_f32 v84, v84, v80"]
        for sh in (1, 2, 4, 8):
            o += ["s_nop 1", "v_add_f32_dpp v84, v84, v84 row_shr:%d row_mask:0xf bank_mask:0xf bound_ctrl:0" % sh]
        o += ["s_nop 1", "v_add_f32_dpp v84, v84, v84 row_bcast:15 row_mask:0xa bank_mask:0xf",
              "v_cvt_pk_bf16_f32 v84, v84, v84", "v_and_b32 v84, 0xffff0000, v84", "v_mul_f32 v84, s80, v84",
              "v_exp_f32 v84, v84", "s_nop 0", "v_add_f32 v84, 1.0, v84", "v_rcp_f32 v84, v84", "s_nop 0",
              "v_cvt_pk_bf16_f32 v84, v84, v84", "v_and_b32 v84, 0xffff0000, v84",
              "v_sub_f32 v85, 1.0, v84", "v_cvt_pk_bf16_f32 v85, v85, v85", "v_and_b32 v85, 0xffff0000, v85"]
        return o

    def g_store():
        A.e("s_lshl_b32 s6, s4, 7")
        A.e("s_add_u32 s6, s6, s13")
        A.e("s_lshl_b32 s6, s6, 3")
        A.e("v_lshlrev_b32 v86, 3, v9")
        A.e("s_mov_b32 exec_lo, 0x80000000")
        A.e("s_mov_b32 exec_hi, 0x80000000")
        A.vmi("gst", "buffer_store_dwordx2 v[84:85], v86, %s, s6 offen%s" % (s(rG, 4), stmod()))
        A.e("s_mov_b64 exec, -1")

    gq = g_ops()
    rO = 68
    A.e("s_and_b32 s72, s7, 1")
    A.e("s_lshr_b32 s73, s7, 1")
    tile_of(A, "s6", "s74", "s75")
    A.e("s_lshl_b32 s75, s75, 1")
    A.e("s_add_u32 s75, s75, s6")
    A.e("s_lshl_b32 s75, s75, 1")
    A.e("s_add_u32 s75, s75, s72")
    A.e("s_lshl_b32 s75, s75, 16")
    A.e("s_lshl_b32 s74, s74, 1")
    A.e("s_add_u32 s74, s74, s73")
    A.e("s_lshl_b32 s74, s74, 7")
    A.e("s_add_u32 s75, s75, s74")
    A.e("v_lshlrev_b32 v20, 15, v9")
    A.e("v_lshl_add_u32 v20, v8, 2, v20")
    A.e("v_add_u32 v20, s75, v20")
    srd(A, rO, sOUT, 2048 * 2048)
    A.e("s_lshl_b32 s6, s72, 12")
    A.e("s_add_u32 s6, s6, %d" % AU(0))
    A.e("v_add_u32 v17, s6, v6")
    A.e("v_subrev_u32 v18, s8, v7")
    A.e("s_lshl_b32 s6, s73, 12")
    A.e("v_add_u32 v18, s6, v18")
    A.e("v_bfe_u32 v10, v1, 2, 2")
    A.e("v_lshlrev_b32 v19, 7, v10")
    A.e("v_lshl_add_u32 v19, v9, 9, v19")
    A.e("v_bfe_u32 v10, v1, 4, 1")
    A.e("v_lshl_add_u32 v19, v10, 5, v19")
    A.e("v_and_b32 v10, 3, v1")
    A.e("v_lshl_add_u32 v19, v10, 3, v19")
    A.e("v_bfe_u32 v10, v1, 3, 1")
    A.e("v_xor_b32 v10, s73, v10")
    A.e("v_lshl_add_u32 v19, v10, 6, v19")
    A.e("s_lshl_b32 s6, s73, 6")
    A.e("v_lshl_add_u32 v23, v8, 1, s6")
    A.e("s_lshl_b32 s6, s72, 1")
    A.e("v_add_u32 v10, s6, v9")
    A.e("v_lshl_add_u32 v21, v10, 11, v23")
    A.e("v_add_u32 v21, %d, v21" % AU(0))
    A.e("s_bfe_u32 s6, s5, 0x10002")
    A.e("s_lshl_b32 s6, s6, 9")
    A.e("s_add_u32 s6, s6, %d" % GU)
    A.e("v_lshl_add_u32 v22, v10, 7, s6")
    A.e("v_add_u32 v23, %d, v23" % (GU + 1024))
    A.e("s_lshl_b32 s100, s5, 2")
    A.e("s_add_u32 s100, s100, s7")
    A.e("s_lshl_b32 s100, s100, 12")
    A.e("s_xor_b32 s101, s100, 0x10000")
    A.e("v_bfe_u32 v10, v1, 4, 1")
    A.e("v_mul_u32_u24 v11, 1152, v10")
    A.e("v_lshl_add_u32 v11, v9, 8, v11")
    A.e("v_bfe_u32 v10, v1, 2, 2")
    A.e("v_lshl_add_u32 v11, v10, 5, v11")
    A.e("v_and_b32 v10, 1, v1")
    A.e("v_lshl_add_u32 v11, v10, 4, v11")
    A.e("v_bfe_u32 v10, v1, 1, 1")
    A.e("v_lshl_add_u32 v11, v10, 3, v11")
    A.e("s_lshl_b32 s6, s72, 12")
    A.e("s_add_u32 s6, s6, %d" % AU(0))
    A.e("v_add_u32 v11, s6, v11")
    A.e("v_xor_b32 v10, 0x80, v11")

    tiles = [2, 3, 4, 5]
    S = Stream(A, mk_items(ORD, 4, False), 8, PAR["fd"], PAR["ffill"])
    late = []
    dq = []
    if PAR["split"]:
        for n in range(LASTP + LA + 1, 16):
            dq += [(n, f) for f in dma_ops(A, n, "v5", "v16", (1,))]

    def pf_setup():
        srd(A, 44, sW2, 1376 * 1024)
        A.e("s_bitcmp1_b32 s5, 2")
        A.e("s_cselect_b64 s[48:49], %s, %s" % (s(sCIM, 2), s(sCRE, 2)))
        A.e("s_cselect_b32 s15, 704, 0")
        A.e("s_mov_b32 s50, 0x80000")
        A.e("s_mov_b32 s51, 0x20000")
        A.e("s_lshr_b32 s6, s2, 3")
        A.e("s_mul_i32 s14, s6, 22")
        A.e("s_add_u32 s15, s15, s14")
        A.e("s_mul_i32 s14, s7, 11")
        A.e("s_lshr_b32 s14, s14, 1")
        A.e("s_add_u32 s15, s15, s14")
        if PAR["p2map"]:
            A.e("s_lshl_b32 s15, s15, 10")
            A.e("s_lshl_b32 s9, s6, 2")
            A.e("s_add_u32 s9, s9, s7")
            A.e("s_lshl_b32 s9, s9, 12")
            A.e("v_lshlrev_b32 v2, 7, v1")
            A.e("v_mov_b32 v3, v2")
            return
        A.e("s_lshl_b32 s15, s15, 1")
        A.e("s_lshr_b32 s14, s5, 3")
        A.e("s_add_u32 s15, s15, s14")
        A.e("s_lshl_b32 s15, s15, 9")
        A.e("s_lshl_b32 s9, s14, 18")
        A.e("s_lshl_b32 s6, s6, 13")
        A.e("s_add_u32 s9, s9, s6")
        A.e("s_lshl_b32 s6, s7, 11")
        A.e("s_add_u32 s9, s9, s6")
        A.e("v_lshlrev_b32 v2, 7, v1")
        A.e("v_lshrrev_b32 v3, 2, v1")
        A.e("v_lshlrev_b32 v3, 3, v3")
        A.e("v_and_or_b32 v3, v1, 3, v3")
        A.e("v_lshlrev_b32 v3, 7, v3")

    def pf_c():
        A.e("s_mov_b32 exec_hi, 0" if PAR["p2map"] else "s_mov_b64 exec, 0xffff")
        A.vmi("pf", "buffer_load_dword v4, v2, s[48:51], s9 offen")
        A.e("s_mov_b64 exec, -1")

    def pf_w():
        A.e("s_mov_b32 exec_hi, 0xffff" if PAR["p2map"] else "s_mov_b64 exec, 0xffffff")
        A.vmi("pf", "buffer_load_dword v4, v3, s[44:47], s15 offen")
        A.e("s_mov_b64 exec, -1")

    if PAR["pf"] and PAR["fpf"]:
        dq += sorted([(PAR["pfc"] + PAR["laf"], pf_c), (PAR["pfw"] + PAR["laf"], pf_w)], key=lambda x: x[0])

    def dma_upto(m, maxops=999):
        while dq and dq[0][0] <= m and maxops > 0:
            dq.pop(0)[1]()
            maxops -= 1

    def waddr(n):
        return ((14, 15), (28, 29), (30, 31))[n % 3]

    def pre(b):
        kind, c = ORD[b]
        slot = slot_of(b)
        if b == LASTP + 1:
            emit(A, gq)
            g_store()
            if PAR["pf"] and PAR["fpf"]:
                pf_setup()
            A.e("s_lshl_b32 s6, s4, 18")
            A.e("s_add_u32 s6, s6, 0x%x" % XB_OFF)
            srd(A, rFL, sWS, 262144, "s6")
        dma_upto(min(b - 1 + LA, 15) if b != PAR["lastbar"] else 15)
        if b == 10:
            A.vmw("gst")
        if b == PAR["lastbar"]:
            A.vmw("ch15")
        if kind == "P":
            A.e("v_add_u32 v24, %d, v7" % slot)
            A.e("v_xor_b32 v25, 32, v24")
            A.e("v_xor_b32 v26, 64, v24")
            A.e("v_xor_b32 v27, 0x60, v24")
        else:
            A.e("v_add_u32 v%d, %d, v12" % (waddr(b)[0], slot))
            A.e("v_add_u32 v%d, %d, v13" % (waddr(b)[1], slot))
        A.fs2(20 + b)
        A.vmw("ch%d" % b)
        if PAR["gam"] and b == 7:
            A.e("s_cmp_lg_u32 s15, 0")
            A.e("s_cbranch_scc1 L_F_w7")
            A.e("s_waitcnt vmcnt(0)")
            A.lab("L_F_w7")
        A.fs2(36 + b)

    def post(b):
        kind, c = ORD[b]
        A.fs(b)
        if kind == "P":
            for ss in range(4):
                A.lgi("c%d_x" % b, "ds_read_b128 %s, %s" % (a(16 * c + 4 * ss, 4), v(24 + ss)))
            for n in range(2, 16):
                if (n == b + LA) or (b == 0 and n < LA):
                    if PAR["gam"] and n >= 8:
                        A.e("s_cmp_eq_u32 s15, 0")
                        A.e("s_cbranch_scc1 L_F_skip%d" % n)
                    emit(A, dma_ops(A, n, "v5", "v16"))
                    if PAR["gam"] and n >= 8:
                        A.lab("L_F_skip%d" % n)
            if b == 0:
                emit(A, gq[:PAR["g0"]])
                del gq[:PAR["g0"]]

    def read(it, sl, tag):
        n, ss, ti = it
        T = tiles[ti]
        for nn in range(2):
            A.lgi(tag, "ds_read_b64_tr_b16 %s, v%d offset:%d" % (v(FB + 4 * sl + 2 * nn, 2), waddr(n)[T & 1],
                                                                ss * 6144 + (T >> 1) * 1024 + nn * 256))

    def mfma(it, sl):
        n, ss, ti = it
        c = ORD[n][1]
        first = (c == 0 and ss == 0)
        A.e("v_mfma_f32_32x32x16_bf16 %s, %s, %s, %s" % (v(ACC + 16 * ti, 16), v(FB + 4 * sl, 4), a(16 * c + 4 * ss, 4),
                                                        "0" if first else v(ACC + 16 * ti, 16)))

    def after(it, mp):
        n, ss, ti = it
        if n == 15 and ss == 3:
            S.fill.append(("dist", S.ninstr()))
            S.fill += swiglu_ops(A, ACC + 16 * ti, 1024 * ti, PAR["pk"] and ti >= 2, late if ti >= 4 - PAR["defF"] else None)
        if mp % PAR["fgap"] == 0:
            dma_upto(S.nb - 1 + PAR["laf"], 1)

    S.pre, S.post, S.read, S.mfma, S.after = pre, post, read, mfma, after
    S.run()
    assert not dq
    A.fs(16)
    S.flush()
    A.fs(19)

    N = len(P2_SEQ)
    AS, AO, BS, BO, GV = 32, 48, 64, 80, 96
    XV, RV = AO, AS
    A.lg = []
    seen = {"Co"}

    def addr(n):
        k_, m_, h_, u_ = P2_SEQ[n]
        if n and P2_SEQ[n - 1][3] == u_:
            return
        if k_ == "W":
            A.e("v_add_u32 v24, %d, v19" % (u_ * 8192))
        elif k_ == "C":
            A.e("v_add_u32 v24, %d, v18" % (u_ * 8192))
            A.e("v_xor_b32 v25, 32, v24")
            A.e("v_xor_b32 v26, 64, v24")
            A.e("v_xor_b32 v27, 0x60, v24")

    def wfb(n):
        while n and P2_SEQ[n - 1][3] == P2_SEQ[n][3]:
            n -= 1
        return 32 + 16 * (n % 3)

    def g_reads(tg, other, qs):
        for q in qs:
            A.lgi(tg, "ds_read_b128 %s, %s offset:%d" % (v(GV + 4 * q, 4), "v28" if other else "v22", 16 * q))

    def reads2(n, ss):
        k_, m_, h_, u_ = P2_SEQ[n]
        fa = 16 * (n & 1)
        tg = "r%d_%d" % (n, ss)
        if k_ == "X":
            for r in range(4 * ss, 4 * ss + 4):
                A.lgi(tg, "ds_read_u16 %s, v21 offset:%d" % (v(XV + r), AU(n) - AU(0) + 128 * r))
            if ss == 3:
                A.lgi(tg, "ds_read_u16 v16, v23")
            return
        if k_ == "W":
            A.lgi(tg, "ds_read_b128 %s, v17 offset:%d" % (a(fa + 4 * ss, 4), AU(n) - AU(0) + 1024 * ss))
        else:
            for nn in range(2):
                A.lgi(tg, "ds_read_b64_tr_b16 %s, %s offset:%d" % (a(fa + 4 * ss + 2 * nn, 2), "v10" if nn else "v11",
                                                                  AU(n) - AU(0) + 2048 * (ss >> 1) + 512 * (ss & 1)))
        if n and P2_SEQ[n - 1][3] == u_:
            return
        if k_ == "W":
            for nn in range(2):
                A.lgi(tg, "ds_read_b64_tr_b16 %s, v24 offset:%d" % (a(wfb(n) + 4 * ss + 2 * nn, 2), 2048 * ss + 1024 * nn))
        else:
            A.lgi(tg, "ds_read_b128 %s, %s" % (a(wfb(n) + 4 * ss, 4), v(24 + ss)))

    def mfma2(n, ss):
        k_, m_, h_, u_ = P2_SEQ[n]
        A.lgw("r%d_%d" % (n, ss))
        if k_ == "X":
            return
        acc = v({"Cs": AS, "Co": AO, "Ws": BS, "Wo": BO}[k_ + h_], 16)
        first = (k_ + h_) not in seen
        seen.add(k_ + h_)
        A.e("v_mfma_f32_32x32x16_bf16 %s, %s, %s, %s" % (acc, a(16 * (n & 1) + 4 * ss, 4), a(wfb(n) + 4 * ss, 4), "0" if first else acc))

    def xd(q):
        if q == 0:
            A.e("v_lshlrev_b32 v16, 16, v16")
        r0, r1 = 2 * q, 2 * q + 1
        A.e("v_lshlrev_b32 %s, 16, %s" % (v(XV + r0), v(XV + r0)))
        A.e("v_lshlrev_b32 %s, 16, %s" % (v(XV + r1), v(XV + r1)))
        A.e("v_mul_f32 %s, %s, v16" % (v(XV + r0), v(XV + r0)))
        A.e("v_mul_f32 %s, %s, v16" % (v(XV + r1), v(XV + r1)))
        A.e("v_cvt_pk_bf16_f32 %s, %s, %s" % (v(XV + r0), v(XV + r0), v(XV + r1)))
        A.e("v_and_b32 %s, 0xffff0000, %s" % (v(XV + r1), v(XV + r0)))
        A.e("v_lshlrev_b32 %s, 16, %s" % (v(XV + r0), v(XV + r0)))

    def send(qs):
        if 0 in qs:
            A.e("s_nop 9")
        for q in qs:
            for r in range(4 * q, 4 * q + 4):
                A.e("v_fmac_f32 %s, %s, %s" % (v(AS + r), v(GV + 2 * r + 1), v(BS + r)))
            for r in (4 * q, 4 * q + 2):
                A.e("v_cvt_pk_bf16_f32 %s, %s, %s" % (v(BS + r), v(AS + r), v(AS + r + 1)))
                A.e("v_mov_b32 %s, s86" % v(BS + r + 1))
            A.e("buffer_store_dwordx4 %s, v6, %s, s101 offen offset:%d%s" % (v(BS + 4 * q, 4), s(rFL, 4), 1024 * q, stmod("x")))

    def recv_issue():
        for q in range(4):
            A.e("buffer_load_dwordx4 %s, v6, %s, s100 offen offset:%d sc1" % (v(RV + 4 * q, 4), s(rFL, 4), 1024 * q))

    def recv():
        A.e("s_mov_b32 s13, 0")
        A.lab("L_F_rpoll")
        A.e("s_waitcnt vmcnt(0)")
        T = [v(RV + 2 * q + 1) for q in range(8)]
        for op, d in (("v_min3_u32", "v28"), ("v_max3_u32", "v29")):
            A.e("%s %s, %s, %s, s86" % (op, d, T[0], T[1]))
            for q in range(2, 8, 2):
                A.e("%s %s, %s, %s, %s" % (op, d, T[q], T[q + 1], d))
        A.e("v_cmp_ne_u32 vcc, v28, v29")
        A.e("s_cbranch_vccz L_F_rok")
        A.e("s_sleep 2")
        recv_issue()
        A.e("s_add_u32 s13, s13, 1")
        A.e("s_cmp_lt_u32 s13, 0x20000")
        A.e("s_cbranch_scc1 L_F_rpoll")
        A.e("s_waitcnt vmcnt(0)")
        A.lab("L_F_rok")
        for q in range(8):
            A.e("v_and_b32 %s, 0xffff0000, %s" % (v(RV + 2 * q + 1), v(RV + 2 * q)))
            A.e("v_lshlrev_b32 %s, 16, %s" % (v(RV + 2 * q), v(RV + 2 * q)))
        for r in range(16):
            A.e("v_add_f32 %s, %s, %s" % (v(AO + r), v(AO + r), v(RV + r)))

    A.e("v_xor_b32 v28, 0x200, v22")
    assert PAR["fl2"] <= 8 and not PAR["stag"] and PAR["ssp"] in (1, 2, 4) and N - PAR["rc"] >= NSEND + 10
    for n in range(N):
        addr(n)
        if n == PAR["fl2"]:
            assert not late
            A.e("s_waitcnt vmcnt(0)")
        A.e("s_barrier")
        if "hold" in OPT:
            A.fs(100 + n)
        for ss in range(4):
            if n >= 1:
                mfma2(n - 1, ss)
            reads2(n, ss)
        if late:
            late.pop(0)()
        if 1 <= n <= 4:
            xd(2 * n - 2)
            xd(2 * n - 1)
        if n == 8:
            g_reads("g1", True, range(8))
        if NSSM + 1 <= n < NSSM + 9:
            A.lgw("g1")
            for r in (2 * (n - NSSM - 1), 2 * (n - NSSM - 1) + 1):
                A.e("v_mul_f32 %s, %s, %s" % (v(AS + r), v(GV + 2 * r), v(AS + r)))
        sp = PAR["ssp"]
        if 0 <= n - NSEND - 1 < sp:
            if n == NSEND + 1:
                A.fs(17)
            q0 = (n - NSEND - 1) * (4 // sp)
            send(range(q0, q0 + 4 // sp))
        if n == NSEND + 1 + sp:
            g_reads("g2", False, range(8))
        if NSEND + 6 <= n < NSEND + 10:
            A.lgw("g2")
            for r in range(4 * (n - NSEND - 6), 4 * (n - NSEND - 6) + 4):
                A.e("v_mul_f32 %s, %s, %s" % (v(AO + r), v(GV + 2 * r), v(AO + r)))
        if n == N - PAR["rl"]:
            recv_issue()
        if n == N - PAR["rc"]:
            A.fs(18)
            recv()
            A.fs(57)
    for ss in range(4):
        mfma2(N - 1, ss)
    A.fs(59)
    A.e("s_nop 7")
    A.e("s_nop 3")
    for r in range(16):
        A.e("v_fmac_f32 %s, %s, %s" % (v(AO + r), v(GV + 2 * r + 1), v(BO + r)))
        if r % 2 == 0:
            A.e("s_movk_i32 s6, %d" % (2048 * r))
        A.e("buffer_store_dword %s, v20, %s, s6 offen offset:%d%s" % (v(AO + r), s(rO, 4), 2048 * (r & 1), stmod("o")))
    A.fs(60)
    A.fs_end()
    A.dbg_end()
    A.e("s_endpgm")


def cpow(A, n_scale, dre, dim, t0, t1, va, vb):
    if n_scale == 1.0:
        A.e("v_exp_f32 %s, %s" % (t0, va))
        A.e("v_fract_f32 %s, %s" % (t1, vb))
    else:
        ns = n_scale if isinstance(n_scale, str) else "0x%x" % f2u(n_scale)
        A.e("v_mul_f32 %s, %s, %s" % (t0, ns, va))
        A.e("v_mul_f32 %s, %s, %s" % (t1, ns, vb))
        A.e("v_exp_f32 %s, %s" % (t0, t0))
        A.e("v_fract_f32 %s, %s" % (t1, t1))
    A.e("v_cos_f32 %s, %s" % (dre, t1))
    A.e("v_sin_f32 %s, %s" % (dim, t1))
    A.e("s_nop 0")
    A.e("v_mul_f32 %s, %s, %s" % (dre, dre, t0))
    A.e("v_mul_f32 %s, %s, %s" % (dim, dim, t0))


def cfma_ops(dr, di, mr, mi, xr, xi, ar, ai):
    return ["v_fma_f32 %s, %s, %s, %s" % (dr, mr, xr, ar),
            "v_fma_f32 %s, %s, %s, %s" % (di, mr, xi, ai),
            "v_fma_f32 %s, -%s, %s, %s" % (dr, mi, xi, dr),
            "v_fma_f32 %s, %s, %s, %s" % (di, mi, xr, di)]


def lane0_store(A, cond, val, srd_, soff, off, vt, vz, L):
    for x in cond:
        A.e(x)
    A.e("s_cbranch_scc1 " + L)
    A.cond = True
    A.e("v_mov_b32 %s, %s" % (vt, val))
    A.e("v_mov_b32 %s, 0" % vz)
    A.e("s_mov_b64 exec, 1")
    A.e("buffer_store_dword %s, %s, %s, %s offen offset:%d sc1" % (vt, vz, s(srd_, 4), soff, off))
    A.e("s_mov_b64 exec, -1")
    A.cond = False
    A.lab(L)


def role_S(A):
    A.vm, A.lg = [], []
    A.thr = 99
    A.lab("L_S")
    LR, LI, NLI = "v16", "v17", "v5"
    L16R, L16I, QR, QI, L256R, L256I = "v18", "v19", "v20", "v21", "v22", "v23"
    CR, CI, PR, PI = "v2", "v3", "v10", "v11"
    ER, EI, SR, SI = "v56", "v57", "v58", "v59"
    RE, IM, ACC, FB = 64, 80, 96, 32
    A.e("s_lshl_b32 s6, s5, 6")
    A.e("v_lshlrev_b32 v4, 1, v8")
    A.e("v_add_u32 v4, s6, v4")
    A.e("s_lshl_b32 s6, s5, 7")
    A.e("s_add_u32 s6, s6, 0x%x" % EP_OFF)
    A.e("v_mov_b32 v55, 0")
    if PAR["cpf"]:
        A.e("s_getpc_b64 s[44:45]")
        A.lab("L_pc")
        A.e("s_sub_u32 s44, s44, L_pc - %s_kernel" % NAME)
        A.e("s_subb_u32 s45, s45, 0")
        A.e("s_mov_b32 s46, L_code_end - %s_kernel" % NAME)
        A.e("s_mov_b32 s47, 0x20000")
        A.e("s_lshr_b32 s9, s2, 3")
        A.e("s_lshl_b32 s9, s9, 2")
        A.e("s_add_u32 s9, s9, s7")
        A.e("s_lshl_b32 s9, s9, 8")
        A.e("v_lshlrev_b32 v53, 7, v1")
        A.e("s_mov_b64 exec, 3")
        A.vmi("par", "buffer_load_dword v52, v53, s[44:47], s9 offen")
        A.e("s_mov_b64 exec, -1")
    A.e("s_waitcnt lgkmcnt(0)")
    A.vmi("par", "global_load_ushort v60, v4, %s" % s(sLRE, 2))
    A.vmi("par", "global_load_ushort v61, v4, %s" % s(sLIM, 2))
    A.vmi("par", "global_load_ushort v62, v4, %s" % s(sLDT, 2))
    srd(A, rEP, sWS, 4, "s6")
    A.vmi("par", "buffer_load_dword v54, v55, %s, 0 offen sc1" % s(rEP, 4))
    A.e("s_and_b32 s6, s4, 8")
    A.e("s_lshl_b32 s6, s6, 4")
    A.e("s_add_u32 s6, s6, 0x%x" % EPR_OFF)
    srd(A, rG, sWS, 4, "s6")
    A.vmi("par", "buffer_load_dword v56, v55, %s, 0 offen sc1" % s(rG, 4))
    if PAR["tlb"]:
        A.e("s_cmp_lg_u32 s7, 0")
        A.e("s_cbranch_scc1 L_S_notlb")
        A.e("v_lshlrev_b32 v53, 21, v1")
        A.e("s_mov_b64 exec, 1")
        for ptr in (sW1, sW3, sW2, sCRE, sCIM, sDS):
            A.e("global_load_dword v52, v55, %s" % s(ptr, 2))
        A.e("s_mov_b64 exec, 3")
        A.e("global_load_dword v52, v53, %s" % s(sOUT, 2))
        A.e("s_mov_b64 exec, 31")
        A.e("global_load_dword v52, v53, %s" % s(sWS, 2))
        A.e("s_mov_b64 exec, -1")
        A.lab("L_S_notlb")
    common_late(A)
    w_scalars(A)
    srd(A, rW1, sW1, 512 * 2752)
    srd(A, rW3, sW3, 512 * 2752)
    A.e("s_lshl_b32 s6, s5, 13")
    A.e("s_add_u32 s6, s6, 0x%x" % E_OFF)
    srd(A, rE, sWS, 8192, "s6")
    A.e("s_and_b32 s6, s4, 8")
    A.e("s_lshl_b32 s6, s6, 9")
    A.e("s_add_u32 s6, s6, 0x%x" % FL_OFF)
    srd(A, rFL, sWS, 4096, "s6")
    A.e("s_and_b32 s87, s4, 7")
    A.e("s_lshl_b32 s87, s87, 7")
    A.e("s_add_u32 s87, s87, s5")
    A.e("s_lshl_b32 s87, s87, 2")
    rCRE, rCIM, rW2 = 48, 52, 44
    srd(A, rCRE, sCRE, 524288)
    srd(A, rCIM, sCIM, 524288)
    A.e("s_add_u32 s82, s82, 65536")
    A.e("s_lshl_b32 s100, s5, 11")
    A.e("s_add_u32 s100, s100, s81")
    A.e("s_add_u32 s101, s100, 32768")
    A.e("v_lshlrev_b32 v4, 3, v0")
    A.e("v_add_u32 v4, %d, v4" % (MISC + 2048))
    A.e("v_mov_b32 v48, 0")
    A.e("v_mov_b32 v49, 0")
    A.e("ds_write_b64 v4, v[48:49]")
    A.e("ds_write_b32 v4, v48 offset:2048")
    A.e("s_lshl_b32 s6, s7, 1")
    A.e("v_add_u32 v63, s6, v9")
    A.e("v_sub_u32 v4, 7, v63")
    A.e("v_lshlrev_b32 v4, 8, v4")
    A.e("v_lshl_add_u32 v4, v8, 3, v4")
    A.e("v_add_u32 v4, %d, v4" % MISC)
    A.e("v_lshlrev_b32 v63, 4, v63")
    A.e("v_cvt_f32_u32 v63, v63")
    A.e("s_lshl_b32 s6, s7, 9")
    A.e("v_lshlrev_b32 v57, 7, v9")
    A.e("v_add_u32 v57, s6, v57")
    A.e("v_cvt_f32_u32 v57, v57")
    A.e("s_waitcnt lgkmcnt(0)")
    real, A.L = A.L, []
    ni0 = A.ni
    srd(A, rW2, sW2, 1376 * 1024)
    A.e("v_readfirstlane_b32 s14, v54")
    A.e("v_readfirstlane_b32 s86, v56")
    A.e("s_add_u32 s14, s14, 1")
    A.e("s_bitset1_b32 s14, 31")
    A.e("s_add_u32 s86, s86, 1")
    A.e("s_bitset1_b32 s86, 31")
    A.e("v_lshlrev_b32 v60, 16, v60")
    A.e("v_lshlrev_b32 v61, 16, v61")
    A.e("v_lshlrev_b32 v62, 16, v62")
    A.e("v_mul_f32 v62, 0x%x, v62" % f2u(LOG2E))
    A.e("v_exp_f32 v62, v62")
    A.e("s_nop 0")
    A.e("v_cvt_pk_bf16_f32 v62, v62, v62")
    A.e("v_and_b32 v62, 0xffff0000, v62")
    A.e("v_mul_f32 v50, v62, v60")
    A.e("v_mul_f32 v51, v62, v61")
    A.e("v_mul_f32 v50, 0x%x, v50" % f2u(LOG2E))
    A.e("v_mul_f32 v51, 0x%x, v51" % f2u(INV2PI))
    cpow(A, 1.0, LR, LI, "v52", "v53", "v50", "v51")
    cpow(A, 16.0, L16R, L16I, "v52", "v53", "v50", "v51")
    cpow(A, "v57", QR, QI, "v52", "v53", "v50", "v51")
    cpow(A, 256.0, L256R, L256I, "v52", "v53", "v50", "v51")
    cpow(A, "v63", PR, PI, "v52", "v53", "v50", "v51")
    A.e("v_sub_f32 %s, 0, %s" % (NLI, LI))
    A.e("v_mul_f32 v52, v60, v60")
    A.e("v_fmac_f32 v52, v61, v61")
    A.e("v_rcp_f32 v52, v52")
    A.e("v_add_f32 v53, -1.0, %s" % LR)
    A.e("v_mul_f32 %s, v53, v60" % CR)
    A.e("v_fmac_f32 %s, %s, v61" % (CR, LI))
    A.e("v_mul_f32 %s, %s, v60" % (CI, LI))
    A.e("v_fma_f32 %s, -v53, v61, %s" % (CI, CI))
    A.e("v_add_f32 v52, v52, v52")
    A.e("v_mul_f32 %s, %s, v52" % (CR, CR))
    A.e("v_mul_f32 %s, %s, v52" % (CI, CI))
    emit(A, ["v_lshlrev_b32 v54, 5, v8", "v_lshl_add_u32 v54, v9, 4, v54", "v_xor_b32 v55, 0x80, v54"])
    emit(A, ["s_lshl_b32 s6, s7, 2", "s_sub_u32 s6, s6, s4", "s_add_u32 s6, s6, 16",
             "v_add_u32 v62, s6, v9", "v_lshlrev_b32 v60, 9, v62", "v_lshl_add_u32 v60, v8, 4, v60",
             "v_sub_u32 v62, 17, v62", "v_and_b32 v62, -2, v62", "v_max_i32 v62, 0, v62", "v_min_i32 v62, 4, v62",
             "v_lshlrev_b32 v63, 3, v8", "v_add_u32 v63, %d, v63" % (MISC + 8192),
             "s_lshl_b32 s6, s7, 9", "v_lshl_add_u32 v61, v9, 8, v63", "v_add_u32 v61, s6, v61"])

    par_ops = [x.strip() for x in A.L]
    A.L, A.ni = real, ni0

    tiles = [0, 1]
    LA, LAF = PAR["la"], PAR["laf"]
    assert LA <= LAF <= 4
    assert LASTP + 1 <= PAR["estep"] <= PAR["cstep"] and PAR["cstep"] + 1 <= PAR["lastbar"] and PAR["cstep"] + 1 < PAR["hstep"] <= 15 and PAR["lastbar"] >= 13
    S = Stream(A, mk_items(ORD, 2, True), 4, PAR["sd"], PAR["sfill"])
    S.fence = LASTP + 1
    sw = []
    if PAR["dyn"]:
        S.dyn = True
        A.e("s_setprio 2")
    late = []
    dq = []
    for n in range(LASTP + LA + 1, 16):
        dq += [(n, f) for f in dma_ops(A, n, "v4", "v7", (0,) if PAR["split"] else (0, 1))]

    def dma_upto(m, maxops=999):
        while dq and dq[0][0] <= m and maxops > 0:
            dq.pop(0)[1]()
            maxops -= 1

    def ssm_publish():
        A.e("s_nop 7")
        A.e("s_nop 3")
        cur = (v(RE), v(IM))
        tmp = [("v48", "v49"), ("v50", "v51")]
        for r in range(1, 16):
            d = (ER, EI) if r == 15 else tmp[r & 1]
            emit(A, cfma_ops(d[0], d[1], LR, LI, cur[0], cur[1], v(RE + r), v(IM + r)))
            cur = d
        A.e("ds_write_b64 v4, v[56:57]")
        A.e("v_mov_b32 v48, %d" % (MISC + 4096))
        A.e("v_mov_b32 v49, 1")
        A.e("s_mov_b64 exec, 1")
        A.e("ds_add_u32 v48, v49")
        A.e("s_mov_b64 exec, -1")
        A.e("s_mov_b32 s13, 0")
        A.lab("L_S_sync")
        A.e("ds_read_b32 v49, v48")
        A.e("s_add_u32 s13, s13, 1")
        A.e("s_waitcnt lgkmcnt(0)")
        A.e("v_readfirstlane_b32 s6, v49")
        A.e("s_cmp_lt_u32 s13, 0x100000")
        A.e("s_cselect_b32 s6, s6, 4")
        A.e("s_cmp_lt_u32 s6, 4")
        A.e("s_cbranch_scc1 L_S_sync")
        A.lg = []
        er = lambda m: (24 + 2 * m if m < 4 else 32 + 2 * (m - 4))
        for m in range(6, -1, -1):
            A.lgi("er%d" % m, "ds_read_b64 %s, v4 offset:%d" % (v(er(m), 2), 256 * (m + 1)))
        cur = (v(er(6)), v(er(6) + 1))
        for m in range(5, -1, -1):
            d = (SR, SI) if m == 0 else tmp[m & 1]
            A.lgw("er%d" % m)
            emit(A, cfma_ops(d[0], d[1], L16R, L16I, cur[0], cur[1], v(er(m)), v(er(m) + 1)))
            cur = d
        A.e("s_cmp_lg_u32 s7, 3")
        A.e("s_cbranch_scc1 L_S_nopub")
        A.cond = True
        emit(A, cfma_ops("v24", "v26", L16R, L16I, SR, SI, ER, EI))
        A.e("v_mov_b32 v25, s14")
        A.e("v_mov_b32 v27, s14")
        A.e("s_sub_u32 s6, 15, s4")
        A.e("s_lshl_b32 s6, s6, 9")
        A.e("v_lshlrev_b32 v28, 4, v8")
        A.e("s_mov_b32 exec_lo, 0")
        A.e("buffer_store_dwordx4 v[24:27], v28, %s, s6 offen sc1" % s(rE, 4))
        A.e("s_mov_b64 exec, -1")
        A.cond = False
        A.lab("L_S_nopub")
        A.fs(56)
        emit(A, wdma_addr_ops("v4", "v7", "v48"))
        for r in range(16):
            t = "v%d" % (48 + (r & 3))
            S.fill += ["v_mul_f32 %s, %s, %s" % (t, CI, v(RE + r)), "v_mul_f32 %s, %s, %s" % (v(RE + r), CR, v(RE + r)),
                       "v_fma_f32 %s, -%s, %s, %s" % (v(RE + r), CI, v(IM + r), v(RE + r)), "v_fma_f32 %s, %s, %s, %s" % (v(IM + r), CR, v(IM + r), t)]
        if not PAR["coeff"]:
            S.flush()

    def e_issue(tag=None):
        for m in range(2):
            x = "buffer_load_dwordx4 %s, v60, %s, 0 offen offset:%d sc1" % (v(24 + 4 * m, 4), s(rE, 4), 1024 * m)
            if tag:
                A.vmi(tag, x)
            else:
                A.e(x)

    def e_check():
        A.fs(17)
        A.e("s_mov_b32 s13, 0")
        A.vmw("e")
        A.lab("L_S_poll")
        A.e("v_mov_b32 v48, 0")
        for q in range(4):
            A.e("v_cmp_eq_u32 s[%d:%d], s14, %s" % (18 + 2 * q, 19 + 2 * q, v(25 + 2 * q)))
        for q in range(4):
            A.e("v_addc_co_u32 v48, vcc, 0, v48, s[%d:%d]" % (18 + 2 * q, 19 + 2 * q))
        A.e("v_cmp_ne_u32 vcc, v62, v48")
        A.e("s_cbranch_vccz L_S_ready")
        A.cond = True
        A.e("s_sleep 2")
        e_issue()
        A.e("s_add_u32 s13, s13, 1")
        A.e("s_cmp_lt_u32 s13, 0x20000")
        A.e("s_waitcnt vmcnt(0)")
        A.e("s_cbranch_scc1 L_S_poll")
        A.cond = False
        A.lab("L_S_ready")
        emit(A, cfma_ops("v48", "v49", L256R, L256I, "v28", "v30", "v24", "v26"))
        A.e("v_mul_f32 v50, %s, v48" % QR)
        A.e("v_mul_f32 v51, %s, v49" % QR)
        A.e("v_fma_f32 v50, -%s, v49, v50" % QI)
        A.e("v_fmac_f32 v51, %s, v48" % QI)
        A.lgi("pw", "ds_write_b64 v61, v[50:51]")
        A.fs(18)

    def scan_ops():
        o = []
        pr = [24, 26, 28, 30, 48, 50, 52, 56]
        def prd():
            for q in range(8):
                A.lgi("pr", "ds_read_b64 %s, v63 offset:%d" % (v(pr[q], 2), 256 * q))
        bump = lambda: lane0_store(A, ["s_lshl_b32 s6, s7, 4", "s_add_u32 s6, s6, s4", "s_cmp_lg_u32 s6, 15"], "s14", rEP, "0", 0, "v60", "v61", "L_S_noep")
        o += [prd, bump, lambda: A.lgw("pr")]
        for (x, y) in ((0, 1), (2, 3), (4, 5), (6, 7), (0, 2), (4, 6), (4, 0)):
            o.append("v_add_f32 %s, %s, %s" % (v(pr[x]), v(pr[x]), v(pr[y])))
            o.append("v_add_f32 %s, %s, %s" % (v(pr[x] + 1), v(pr[x] + 1), v(pr[y] + 1)))
        o += cfma_ops("v50", "v51", PR, PI, "v48", "v49", SR, SI)
        o += ["v_mul_f32 v48, %s, v50" % CR, "v_mul_f32 v49, %s, v51" % CR, "v_fma_f32 v48, -%s, v51, v48" % CI, "v_fmac_f32 v49, %s, v50" % CI]
        cur = ("v48", "v49")
        for r in range(16):
            o.append("v_fmac_f32 %s, %s, %s" % (v(RE + r), LR, cur[0]))
            o.append("v_fmac_f32 %s, %s, %s" % (v(IM + r), LR, cur[1]))
            o.append("v_fmac_f32 %s, %s, %s" % (v(RE + r), NLI, cur[1]))
            o.append("v_fmac_f32 %s, %s, %s" % (v(IM + r), LI, cur[0]))
            cur = (v(RE + r), v(IM + r))
        for q in range(8):
            o.append("v_cvt_pk_bf16_f32 %s, %s, %s" % (v(RE + q), v(RE + 2 * q), v(RE + 2 * q + 1)))
        for q in range(8):
            o.append("v_cvt_pk_bf16_f32 %s, -%s, -%s" % (v(IM + q), v(IM + 2 * q), v(IM + 2 * q + 1)))
        def st(ks):
            A.vmi("hst", "buffer_store_dwordx4 %s, %s, %s, s%d offen offset:%d%s" % (v((RE, RE + 4, IM, IM + 4)[ks], 4), "v55" if ks & 1 else "v54", s(rAS, 4),
                                                                                   101 if ks >= 2 else 100, 1024 * (ks & 1), stmod()))
            if ks == 3:
                A.fs(19)
        for ks in range(4):
            o.append(lambda ks=ks: st(ks))
            o += [("gap",)] * PAR["stgap"]
        return o

    def prefetch_c():
        A.e("s_lshr_b32 s15, s5, 3")
        A.e("s_lshl_b32 s15, s15, 18")
        A.e("s_lshr_b32 s6, s2, 3")
        A.e("s_lshl_b32 s6, s6, 13")
        A.e("s_add_u32 s15, s15, s6")
        A.e("s_lshl_b32 s6, s7, 11")
        A.e("s_add_u32 s15, s15, s6")
        A.e("v_lshlrev_b32 v18, 7, v1")
        A.e("s_mov_b64 exec, 0xffff")
        A.vmi("pf", "buffer_load_dword v19, v18, %s, s15 offen" % s(rCRE, 4))
        A.vmi("pf", "buffer_load_dword v19, v18, %s, s15 offen" % s(rCIM, 4))
        A.e("s_mov_b64 exec, -1")

    def prefetch_w2():
        A.e("s_lshr_b32 s6, s2, 3")
        A.e("s_mul_i32 s15, s6, 43")
        A.e("s_mul_i32 s6, s7, 11")
        A.e("s_add_u32 s15, s15, s6")
        A.e("s_lshl_b32 s15, s15, 1")
        A.e("s_lshr_b32 s6, s5, 3")
        A.e("s_add_u32 s15, s15, s6")
        A.e("s_lshl_b32 s15, s15, 9")
        A.e("v_lshrrev_b32 v18, 2, v1")
        A.e("v_lshlrev_b32 v18, 3, v18")
        A.e("v_and_or_b32 v18, v1, 3, v18")
        A.e("v_lshlrev_b32 v18, 7, v18")
        A.e("s_mov_b32 exec_hi, 0xfff")
        A.vmi("pf", "buffer_load_dword v19, v18, %s, s15 offen" % s(rW2, 4))
        A.e("s_mov_b64 exec, -1")

    def spf_setup():
        n_ = PAR["spfn"]
        A.e("s_lshr_b32 s6, s2, 3")
        A.e("s_mul_i32 s30, s6, %d" % ((255 + n_) // n_))
        A.e("s_lshr_b32 s30, s30, 8")
        A.e("s_mul_i32 s30, s30, %d" % n_)
        A.e("s_sub_u32 s30, s6, s30")
        A.e("s_lshr_b32 s9, s5, 3")
        A.e("s_lshl_b32 s9, s9, 18")
        A.e("s_lshl_b32 s15, s6, 13")
        A.e("s_add_u32 s9, s9, s15")
        A.e("s_lshl_b32 s15, s7, 11")
        A.e("s_add_u32 s9, s9, s15")
        A.e("s_mul_i32 s15, s6, 43")
        A.e("s_mul_i32 s6, s7, 11")
        A.e("s_add_u32 s15, s15, s6")
        A.e("s_lshl_b32 s15, s15, 1")
        A.e("s_lshr_b32 s6, s5, 3")
        A.e("s_add_u32 s15, s15, s6")
        A.e("s_lshl_b32 s15, s15, 9")

    def spf_site(q, va='v18', vd='v19'):
        def f():
            A.e("s_cmp_lg_u32 s30, %d" % q)
            A.e("s_cbranch_scc1 L_spf%d" % q)
            A.cond = True
            A.e(("v_lshlrev_b32 v18, 7, v1").replace("v18", va).replace("v19", vd))
            A.e("s_mov_b64 exec, 0xffff")
            A.e(("buffer_load_dword v19, v18, %s, s9 offen" % s(rCRE, 4)).replace("v18", va).replace("v19", vd))
            A.e(("buffer_load_dword v19, v18, %s, s9 offen" % s(rCIM, 4)).replace("v18", va).replace("v19", vd))
            A.e("s_mov_b64 exec, -1")
            A.e(("v_lshrrev_b32 v18, 2, v1").replace("v18", va).replace("v19", vd))
            A.e(("v_lshlrev_b32 v18, 3, v18").replace("v18", va).replace("v19", vd))
            A.e(("v_and_or_b32 v18, v1, 3, v18").replace("v18", va).replace("v19", vd))
            A.e(("v_lshlrev_b32 v18, 7, v18").replace("v18", va).replace("v19", vd))
            A.e("s_mov_b32 exec_hi, 0xfff")
            A.e(("buffer_load_dword v19, v18, %s, s15 offen" % s(rW2, 4)).replace("v18", va).replace("v19", vd))
            A.e("s_mov_b64 exec, -1")
            A.cond = False
            A.lab("L_spf%d" % q)
        return f

    def warm_w():
        A.e("s_and_b32 s6, s83, 7")
        A.e("s_lshl_b32 s6, s6, 2")
        A.e("s_add_u32 s6, s6, s7")
        A.e("s_mul_i32 s6, s6, %d" % (16 * 2752))
        A.e("s_mul_i32 s13, s5, 192")
        A.e("s_add_u32 s6, s6, s13")
        A.e("s_add_u32 s6, s6, s92")
        A.e("v_lshrrev_b32 v52, 1, v8")
        A.e("v_mul_u32_u24 v52, 2752, v52")
        A.e("v_and_b32 v53, 1, v1")
        A.e("v_lshl_add_u32 v52, v53, 7, v52")
        A.e("s_mov_b32 exec_hi, 0")
        A.e("s_bitcmp1_b32 s4, 3")
        A.e("s_cbranch_scc1 L_ww3")
        A.e("buffer_load_dword v53, v52, %s, s6 offen" % s(rW1, 4))
        A.e("s_branch L_ww")
        A.lab("L_ww3")
        A.e("buffer_load_dword v53, v52, %s, s6 offen" % s(rW3, 4))
        A.lab("L_ww")
        A.e("s_mov_b64 exec, -1")

    if PAR["spf"] or PAR["mpf"] >= 0:
        spf_setup()
    if PAR["mpf"] >= 0:
        A.e("s_bfe_u32 s6, s2, 0x10002")
        A.e("s_lshl_b32 s6, s6, 1")
        A.e("s_and_b32 s30, s2, 1")
        A.e("s_add_u32 s30, s30, s6")
        A.e("s_sub_u32 s30, s30, s7")
    if PAR["pf"] and not PAR["spf"] and not PAR["fpf"]:
        dq.append((PAR["pfc"] + LAF, prefetch_c))
        if PAR["pfw"] <= 15:
            dq.append((PAR["pfw"] + LAF, prefetch_w2))

    N = len(P2_SEQ)
    LA2 = PAR["ala"]
    assert LA2 <= NA - 2

    rAs_, rAo_ = 56, 60

    def p2_setup1():
        tile_of(A, "s11", "s10", "s31")
        if PAR["p2map"]:
            A.e("s_and_b32 s6, s4, 3")
            A.e("s_lshl_b32 s13, s6, 1")
            A.e("s_add_u32 s13, s13, s10")
            A.e("s_mul_i32 s14, s6, 3")
            A.e("s_mul_i32 s6, s10, 11")
        else:
            A.e("s_and_b32 s6, s10, 3")
            A.e("s_lshl_b32 s13, s6, 1")
            A.e("s_add_u32 s13, s13, s4")
            A.e("s_mul_i32 s14, s6, 3")
            A.e("s_and_b32 s6, s4, 7")
            A.e("s_mul_i32 s6, s6, 11")
        A.e("s_lshr_b32 s6, s6, 3")
        A.e("s_add_u32 s14, s14, s6")
        A.e("s_sub_u32 s6, s14, 11")
        A.e("s_cmp_ge_u32 s14, 11")
        A.e("s_cselect_b32 s14, s6, s14")
        A.e("s_lshl_b32 s9, s7, 11")
        A.e("s_cmp_lg_u32 s11, 0")
        A.e("s_cselect_b64 %s, %s, %s" % (s(rCRE, 2), s(sCIM, 2), s(sCRE, 2)))
        A.e("v_and_b32 v11, 7, v1")
        A.e("v_lshrrev_b32 v22, 3, v1")
        A.e("v_lshrrev_b32 v10, 4, v1")
        A.e("v_xor_b32 v10, v10, v11")
        A.e("v_lshlrev_b32 v10, 4, v10")
        A.e("v_lshl_add_u32 v4, v22, 10, v10")
        A.e("s_lshl_b32 s6, s7, 14")
        A.e("s_lshl_b32 s12, s10, 16")
        A.e("s_add_u32 s12, s12, s6")
        A.e("v_add_u32 v4, s12, v4")
        A.e("v_xor_b32 v5, 64, v4")
        A.e("v_add_u32 v5, 8192, v5")

    def p2_setup2():
        A.e("s_and_b32 s12, s7, 1")
        A.e("s_lshr_b32 s15, s7, 1")
        A.e("s_lshl_b32 s15, s15, 11")
        A.e("s_lshl_b32 s8, s12, 12")
        A.e("s_add_u32 s8, s8, s15")
        A.e("s_lshl_b32 s6, s11, 15")
        A.e("s_add_u32 s6, s6, s15")
        A.e("v_add_u32 v2, s6, v6")
        A.e("s_mul_i32 s6, s11, 45056")
        A.e("s_add_u32 s6, s6, s15")
        A.e("s_add_u32 s6, s6, 65536")
        A.e("v_add_u32 v23, s6, v6")
        A.e("s_lshl_b32 s6, s31, 1")
        A.e("s_add_u32 s6, s6, s11")
        A.e("s_lshl_b32 s6, s6, 1")
        A.e("s_add_u32 s6, s6, s12")
        A.e("s_xor_b32 s15, s6, 2")
        A.e("s_mul_i32 s6, s6, %d" % (NKS * 1024))
        A.e("s_mul_i32 s15, s15, %d" % (NKS * 1024))
        srd(A, rAo_, sWS, NKS * 1024, "s6")
        srd(A, rAs_, sWS, NKS * 1024, "s15")
        A.e("v_bfe_u32 v10, v1, 4, 1")
        A.e("v_lshlrev_b32 v10, 2, v10")
        A.e("v_xor_b32 v10, v10, v11")
        A.e("v_lshlrev_b32 v10, 4, v10")
        A.e("v_lshl_add_u32 v3, v22, 10, v10")
        A.e("s_lshl_b32 s6, s7, 14")
        A.e("s_lshl_b32 s12, s10, 7")
        A.e("s_add_u32 s12, s12, s6")
        A.e("s_mul_i32 s6, s11, %d" % (704 * 1024))
        A.e("s_add_u32 s12, s12, s6")
        A.e("v_add_u32 v3, s12, v3")
        A.e("v_add_u32 v7, 8192, v3")
        A.e("v_and_b32 v17, 15, v1")
        A.e("s_and_b32 s6, s31, 7")
        A.e("s_lshl_b32 s6, s6, 9")
        A.e("v_lshl_add_u32 v17, v17, 2, s6")

    def idx(kind, m):
        if kind == "C":
            A.e("s_add_u32 s12, s13, %d" % m)
            A.e("s_and_b32 s12, s12, 7")
        else:
            A.e("s_add_u32 s12, s14, %d" % m)
            A.e("s_sub_u32 s6, s12, 11")
            A.e("s_cmp_ge_u32 s12, 11")
            A.e("s_cselect_b32 s12, s6, s12")

    def dma_w(q):
        kind, m, u, first, free = P2_W[q]
        idx(kind, m)
        A.e("s_lshl_b32 s12, s12, %d" % (16 if kind == "W" else 7))
        r_, va, vb = (rW2, "v3", "v7") if kind == "W" else (rCRE, "v4", "v5")
        A.e("s_add_u32 m0, s9, %d" % (u * 8192))
        A.e("s_nop 0")
        A.vmi("w%d" % first, "buffer_load_dwordx4 %s, %s, s12 offen lds" % (va, s(r_, 4)))
        A.e("s_add_u32 m0, s9, %d" % (u * 8192 + 1024))
        A.e("s_nop 0")
        A.vmi("w%d" % first, "buffer_load_dwordx4 %s, %s, s12 offen lds" % (vb, s(r_, 4)))

    def dma_g(tag):
        srd(A, rEP, sWS, 16384, "0x%x" % G_OFF)
        A.e("s_lshl_b32 s12, s31, 2")
        A.e("s_add_u32 s12, s12, s7")
        A.e("s_lshl_b32 s12, s12, 8")
        A.e("s_lshl_b32 s6, s7, 8")
        A.e("s_add_u32 m0, s6, %d" % GU)
        A.e("s_mov_b64 exec, 0xffff")
        A.vmi(tag, "buffer_load_dwordx4 v6, %s, s12 offen sc1 lds" % s(rEP, 4))
        A.e("s_mov_b64 exec, -1")

    def dma_a(n):
        kind, m, hf, u = P2_SEQ[n]
        if kind == "X":
            srd(A, rE, sX, 2048 * 1024)
            A.e("s_lshl_b32 s6, s31, 1")
            A.e("s_add_u32 s6, s6, s11")
            A.e("s_lshl_b32 s6, s6, 2")
            A.e("s_add_u32 s6, s6, s7")
            A.e("s_lshl_b32 s6, s6, 14")
            A.e("s_lshl_b32 s12, s10, 7")
            A.e("s_add_u32 s12, s12, s6")
            A.e("v_and_b32 v10, 7, v1")
            A.e("v_lshlrev_b32 v10, 4, v10")
            A.e("v_lshl_add_u32 v10, v22, 10, v10")
            A.e("s_add_u32 m0, s9, %d" % AU(n))
            A.e("s_add_u32 s6, s12, 8192")
            A.vmi("a%d" % n, "buffer_load_dwordx4 v10, %s, s12 offen lds" % s(rE, 4))
            A.e("s_add_u32 m0, s9, %d" % (AU(n) + 1024))
            A.e("s_nop 0")
            A.vmi("a%d" % n, "buffer_load_dwordx4 v10, %s, s6 offen lds" % s(rE, 4))
            srd(A, rEP, sDS, 1024)
            A.e("s_lshl_b32 s12, s10, 7")
            A.e("s_mov_b32 m0, %d" % (GU + 1024))
            A.e("s_mov_b64 exec, 0xff")
            A.vmi("a%d" % n, "buffer_load_dwordx4 v6, %s, s12 offen lds" % s(rEP, 4))
            A.e("s_mov_b64 exec, -1")
            return
        idx(kind, m)
        A.e("s_lshl_b32 s12, s12, 12")
        A.e("s_add_u32 m0, s8, %d" % AU(n))
        A.e("s_nop 0")
        va, r_ = ("v23" if kind == "W" else "v2"), (rAs_ if hf == "s" else rAo_)
        A.vmi("a%d" % n, "buffer_load_dwordx4 %s, %s, s12 offen sc1 lds" % (va, s(r_, 4)))
        A.vmi("a%d" % n, "buffer_load_dwordx4 %s, %s, s12 offen offset:1024 sc1 lds" % (va, s(r_, 4)))

    def check(tag, off, L):
        A.e("s_mov_b32 s15, 0")
        A.vmw(tag)
        A.lab(L + "_poll")
        A.e("v_cmp_ne_u32 vcc, s86, v16")
        A.e("s_cbranch_vccz %s_go" % L)
        A.e("s_sleep %d" % PAR["slp"])
        A.e("buffer_load_dword v16, v17, %s, 0 offen offset:%d sc1" % (s(rFL, 4), off))
        A.e("s_add_u32 s15, s15, 1")
        A.e("s_cmp_lt_u32 s15, 0x20000")
        A.e("s_waitcnt vmcnt(0)")
        A.e("s_cbranch_scc1 %s_poll" % L)
        A.lab(L + "_go")

    def pre(b):
        kind, c = ORD[b]
        slot = slot_of(b)
        if b == 0 and PAR["wpf"] == 99:
            warm_w()
        if b == 0 and PAR["mpf"] == 99:
            spf_site(0, "v52", "v53")()
        if b == LASTP + 1:
            S.flush()
            S.K = PAR["sfill"]
            ssm_publish()
            A.thr = PAR["thr"]
        if b == PAR["cstep"] + 1:
            S.flush()
            A.lgw("pw")
        if b == PAR["cstep"] + 2:
            assert "pr" not in A.lg
        dma_upto(min(b - 1 + LA, 15) if b != PAR["lastbar"] else 15)
        if kind == "P":
            A.e("v_add_u32 v28, %d, v7" % slot)
            A.e("v_xor_b32 v29, 32, v28")
            A.e("v_xor_b32 v30, 64, v28")
            A.e("v_xor_b32 v31, 0x60, v28")
            for q in range(4):
                A.e("v_add_u32 %s, s8, %s" % (v(24 + q), v(28 + q)))
        else:
            A.e("v_add_u32 v14, %d, v12" % slot)
            A.e("v_add_u32 v15, %d, v13" % slot)
        A.fs2(20 + b)
        A.vmw("ch%d" % (b if b != PAR["lastbar"] else 15))
        A.fs2(36 + b)

    def hflag():
        assert "hst" in A.vm or True
        A.vmw("hst")
        A.e("v_mov_b32 v24, %d" % (LDS_CNT))
        A.e("v_mov_b32 v25, 1")
        A.e("s_mov_b64 exec, 1")
        A.lgi("hc", "ds_add_rtn_u32 v26, v24, v25")
        A.e("s_mov_b64 exec, -1")

    def hflag2():
        A.lgw("hc")
        A.e("v_readfirstlane_b32 s6, v26")
        lane0_store(A, ["s_cmp_lg_u32 s6, 3"], "s86", rFL, "s87", 0, "v24", "v25", "L_S_nofl")
        A.fs(57)

    def post(b):
        A.fs(b)
        if b == 1:
            S.fill += [lambda: A.vmw("par")] + par_ops
            S.K = PAR["pfill"]
        if b == PAR["wpf"]:
            warm_w()
        if b == PAR["mpf"]:
            spf_site(0, "v52", "v53")()
        if PAR["spf"] and 0 <= b - PAR["spf0"] < PAR["spfn"]:
            spf_site(b - PAR["spf0"])()
        if b == PAR["estep"]:
            e_issue("e")
        if b == PAR["cstep"]:
            S.fill += [("gap",)] * PAR["cdelay"] + [e_check]
        if b == PAR["cstep"] + 1:
            S.fill += scan_ops()
            S.K = PAR["sfill2"]
        if b == PAR["hstep"]:
            S.fill += [hflag, ("gap",), hflag2]
        if b == PAR["lastbar"]:
            assert PAR["lastbar"] == 14 and PAR["nt"] <= 2 and 2 <= PAR["ew"] <= 7
            S.fill += [p2_setup1, ("gap",)]
            if PAR["xe"]:
                S.fill += [lambda: dma_a(0), ("gap",)]
            for n in range(PAR["ew"]):
                S.fill += [lambda n=n: dma_w(n), ("gap",)]
            S.fill += [p2_setup2]

    def read(it, sl, tag):
        n, ss, ti = it
        kind, c = ORD[n]
        if kind == "P":
            if ti == 0:
                A.lgi(tag, "ds_read_b128 %s, %s" % (a(16 * c + 4 * ss, 4), v(24 + ss)))
            A.lgi(tag, "ds_read_b128 %s, %s offset:%d" % (v(FB + 4 * sl, 4), v(28 + ss), 16384 + 4096 * ti))
        else:
            T = tiles[ti]
            for nn in range(2):
                A.lgi(tag, "ds_read_b64_tr_b16 %s, v%d offset:%d" % (v(FB + 4 * sl + 2 * nn, 2), 14 + (T & 1),
                                                                    ss * 6144 + (T >> 1) * 1024 + nn * 256))

    def mfma(it, sl):
        n, ss, ti = it
        kind, c = ORD[n]
        first = (c == 0 and ss == 0)
        if kind == "P":
            d = (RE, IM)[ti]
            A.e("v_mfma_f32_32x32x16_bf16 %s, %s, %s, %s" % (v(d, 16), a(16 * c + 4 * ss, 4), v(FB + 4 * sl, 4), "0" if first else v(d, 16)))
        else:
            d = ACC + 16 * ti
            A.e("v_mfma_f32_32x32x16_bf16 %s, %s, %s, %s" % (v(d, 16), v(FB + 4 * sl, 4), a(16 * c + 4 * ss, 4), "0" if first else v(d, 16)))

    def after(it, mp):
        n, ss, ti = it
        if n == 15 and ss == 3:
            S.fill.append(("dist", S.ninstr()))
            sw.append(swiglu_ops(A, ACC + 16 * ti, 1024 * ti, False, late if ti >= 2 - PAR["defS"] else None))
        if n > LASTP and (not PAR["split"] or mp % 2 == 0):
            dma_upto(S.nb - 1 + LAF, 1)

    S.pre, S.post, S.read, S.mfma, S.after = pre, post, read, mfma, after
    S.run()
    assert not dq
    A.fs(16)
    A.vmi("poll", "buffer_load_dword v16, v17, %s, 0 offen sc1" % s(rFL, 4))
    S.flush()
    emit(A, sw[0])
    A.fs(58)
    A.thr = PAR["thr2"]
    check("poll", 0, "L_p2a")
    A.fs(55)
    for n in range(PAR["xe"], PAR["ea"]):
        dma_a(n)
    dma_g("g")
    emit(A, sw[1])
    wn, an = PAR["ew"], PAR["ea"]
    for n in range(N):
        mark0 = len(A.L)
        A.vmw("w%d" % n)
        A.vmw("a%d" % n)
        if n == 8:
            A.vmw("g")
        if n == PAR["fl2"]:
            assert not late
            A.vmw("st")
        A.e("s_barrier")
        mark1 = len(A.L)
        A.fs(20 + n) if n < 35 else None
        if n == PAR["fl2"]:
            lane0_store(A, ["s_cmp_lg_u32 s3, 0"], "s86", rFL, "s87", 256, "v10", "v11", "L_p2_nofl")
        if n == PAR["chk2"]:
            check("poll2", 256, "L_p2b")
        if n == PAR["p2poll"]:
            A.vmi("poll2", "buffer_load_dword v16, v17, %s, 0 offen offset:256 sc1" % s(rFL, 4))
        if "burn" in OPT:
            for q in range(PAR["burn"]):
                A.e("ds_read_b128 v[%d:%d], v6 offset:%d" % (24 + 4 * (q & 7), 27 + 4 * (q & 7), 1024 * q + 8192 * (n % 6)))
        if "burnv" in OPT:
            for q in range(PAR["burn"]):
                A.e("v_fma_f32 v%d, v%d, v%d, v%d" % (24 + (q & 15), 64 + (q & 31), 96 + (q & 31), 24 + (q & 15)))
        budget = 3 if n == PAR["chk2"] else 2
        while budget > 0:
            a_ok = an < N and an <= n + LA2 and (an < NSSM or n >= PAR["chk2"])
            w_ok = wn < len(P2_W) and P2_W[wn][4] <= n
            if a_ok and not (w_ok and P2_W[wn][3] < an):
                dma_a(an); an += 1
            elif w_ok:
                dma_w(wn); wn += 1
            else:
                break
            budget -= 1
        if late and n >= 1 and n % 2 == 1:
            late.pop(0)()
        if PAR["pf"] and not PAR["spf"] and not PAR["fpf"] and PAR["pfw"] > 15 and n == PAR["pfw2"]:
            prefetch_w2()
        assert (an > n + 1 or an == N) and (wn == len(P2_W) or P2_W[wn][3] > n + 1)
        if PAR["hoist"]:
            k = mark1
            while k < len(A.L) and A.L[k].split()[0] in ("s_add_u32", "s_and_b32", "s_lshl_b32", "s_sub_u32", "s_cmp_ge_u32", "s_cselect_b32", "s_nop"):
                k += 1
            if k < len(A.L) and A.L[k].split()[0] == "buffer_load_dwordx4":
                lead = [x for x in A.L[mark1:k] if "s_nop" not in x]
                A.L[mark0:k] = lead + A.L[mark0:mark1]
    assert an == N and wn == len(P2_W)
    A.e("s_or_b32 s6, s87, s7")
    A.e("s_cmp_lg_u32 s6, 0")
    A.e("s_cbranch_scc1 L_p2_noep")
    A.e("v_lshrrev_b32 v10, 4, v1")
    A.e("v_and_b32 v17, 15, v1")
    A.e("v_lshlrev_b32 v17, 2, v17")
    A.e("v_lshl_add_u32 v17, v10, 9, v17")
    for off, L in ((256, "L_p2c"), (2048 + 256, "L_p2d")):
        A.vmi("pe", "buffer_load_dword v16, v17, %s, 0 offen offset:%d sc1" % (s(rFL, 4), off))
        check("pe", off, L)
    lane0_store(A, ["s_cmp_lg_u32 s7, 0"], "s86", rG, "0", 0, "v10", "v11", "L_p2_noep")
    A.fs_end()
    A.e("s_endpgm")


def gen_all(A):
    K = NAME + "_kernel"
    A.L.append(".globl %s\n.p2align 8\n.type %s,@function\n%s:" % (K, K, K))
    prologue(A)
    role_F(A)
    fm = A.L[A.fmain:]
    del A.L[A.fmain:]
    role_S(A)
    A.L += fm
    A.lab("L_end")
    A.e("s_endpgm")
    A.lab("L_code_end")


def kd(name, nv, acc, ns=102):
    return """.amdhsa_kernel %s
  .amdhsa_next_free_vgpr %d
  .amdhsa_next_free_sgpr %d
  .amdhsa_accum_offset %d
  .amdhsa_group_segment_fixed_size 0
  .amdhsa_kernarg_size 136
  .amdhsa_user_sgpr_count 2
  .amdhsa_user_sgpr_kernarg_segment_ptr 1
  .amdhsa_system_sgpr_workgroup_id_x 1
.end_amdhsa_kernel
""" % (name, nv, ns, acc)


def main(path):
    ref = open("cdna_kernels/%s.s.ref" % NAME).read().splitlines()
    head = [l for l in ref if l.startswith(";") and "@launch" not in l and "Override launch" not in l and "grid=ceil" not in l]
    head = head[:18]
    A = Asm()
    gen_all(A)
    out = head + [
        "; @launch grid=(256,1,1) block=(512,1,1) lds=%d" % K1_LDS,
        '.amdgcn_target "amdgcn-amd-amdhsa--gfx950"', ".text"] + A.L + [
        '.section .rodata,"a"', ".p2align 6", kd(NAME + "_kernel", 256, 128)]
    open(path, "w").write("\n".join(out))


if __name__ == "__main__":
    if "--stamp" in sys.argv:
        STAMP = True
        sys.argv.remove("--stamp")
    for x in list(sys.argv):
        if x.startswith("-O"):
            OPT.add(x[2:]); sys.argv.remove(x)
        elif x.startswith("-U"):
            OPT.discard(x[2:]); sys.argv.remove(x)
        elif x.startswith("-P"):
            kk, vv = x[2:].split("=")
            PAR[kk] = vv if kk.startswith("ord") else int(vv)
            sys.argv.remove(x)
    main(sys.argv[1] if len(sys.argv) > 1 else "cdna_kernels/%s.s" % NAME)
```

```python
import sys, struct

NAME = "gated_mix__ssm_conv_s5__glu_gated_swiglu__prompt"

def f2u(x):
    return struct.unpack("<I", struct.pack("<f", x))[0]

LOG2E = 1.4426950408889634
INV2PI = 0.15915494309189535

NKS = 150
A_BYTES = 64 * NKS * 1024
E_OFF = 0xA00000
G_OFF = 0xA20000
EP_OFF = 0xA30000


EPR_OFF = 0xA31000
FL_OFF = 0xA40000

XB_OFF = 0xC00000

STAMP = False
OPT = {"asc0", "asc1", "osc0", "osc1", "xsc1"}
ST_OFF = 0xB00000

class Asm:
    def __init__(self):
        self.L = []
        self.ni = 0
        self.cond = False
        self.thr = 99
        self.vm = []
        self.lg = []

    def e(self, s):
        if "nomfma" in OPT and s.startswith("v_mfma"):
            s = "s_nop 0"
        if "nolds" in OPT and s.startswith("ds_read"):
            s = "s_nop 0"
        if "nohst" in OPT and s.startswith("buffer_store_dwordx4") and ("s100" in s or "s101" in s):
            s = "s_nop 0"
        if "noHst" in OPT and s.startswith("buffer_store_dwordx4") and ("s82" in s or "s87" in s):
            s = "s_nop 0"
        if "noout" in OPT and s.startswith("buffer_store_dword ") and "v20," in s:
            s = "s_nop 0"
        if "notw" in OPT and s.startswith("ds_write_b128"):
            s = "s_nop 0"
        if "noscan" in OPT and s.startswith("v_fmac_f32"):
            return
        if "m16" in OPT and s.startswith("v_mfma_f32_32x32x16"):
            import re as _re
            m_ = _re.match(r"v_mfma_f32_32x32x16_bf16 v\[(\d+):\d+\], (\S+), (\S+), (\S+)", s)
            d_ = int(m_.group(1)); self.m16 = getattr(self, "m16", 0) + 1
            for q_ in range(2):
                dd = d_ + 4 * (2 * ((self.m16 >> 2) & 1) + q_)
                self.L.append("  v_mfma_f32_16x16x32_bf16 v[%d:%d], %s, %s, %s" % (dd, dd + 3, m_.group(2), m_.group(3), "0" if m_.group(4) == "0" else "v[%d:%d]" % (dd, dd + 3)))
                self.ni += 1
            return
        self.L.append("  " + s)
        if not self.cond:
            self.ni += 1

    def c(self, s):
        pass

    def lab(self, s):
        self.L.append(s + ":")

    def fs2(self, n):
        if "vw" in OPT:
            self.fs(n, True)

    def fs(self, n, vw=False):
        if "hold" in OPT and n == PAR["probe"]:
            self.e("s_memrealtime s[96:97]")
            return
        if "vw" in OPT and not vw and 20 <= n < 55:
            return
        if "so" in OPT and n != 61:
            return
        if STAMP and ("light" not in OPT or n in (0, 7, 9, 13, 15, 16, 19, 20, 36, 55, 58, 59, 61)):
            self.e("%s s[98:99]" % ("s_memrealtime" if "rt" in OPT else "s_memtime"))
            self.e("s_waitcnt lgkmcnt(0)")
            self.lg = []
            self.e("s_sub_u32 s98, s98, s96")
            self.e("v_writelane_b32 v0, s98, %d" % n)

    def dbg_end(self):
        if "hold2" in OPT:
            self.e("s_load_dwordx2 s[8:9], s[0:1], 120")
            self.e("s_waitcnt vmcnt(0) lgkmcnt(0)")
            self.e("s_mov_b32 s10, 256")
            self.e("s_mov_b32 s11, 0x20000")
            self.e("s_not_b32 s12, s94")
            self.e("v_mov_b32 v2, s12")
            self.e("v_mov_b32 v1, 0")
            self.e("s_mov_b64 exec, 1")
            self.e("s_cmp_lg_u32 s7, 0")
            self.e("s_cbranch_scc1 L_hold_a")
            self.e("buffer_atomic_umax v2, v1, s[8:11], 0 offen")
            self.lab("L_hold_a")
            self.e("s_sleep 4")
            self.e("s_memrealtime s[98:99]")
            self.e("s_waitcnt lgkmcnt(0)")
            self.e("s_sub_u32 s98, s98, s94")
            self.e("s_cmp_lt_u32 s98, 4000")
            self.e("s_cbranch_scc1 L_hold_a")
            self.e("buffer_load_dword v2, v1, s[8:11], 0 offen sc1")
            self.e("s_waitcnt vmcnt(0)")
            self.e("v_readfirstlane_b32 s94, v2")
            self.e("s_not_b32 s94, s94")
        if "hold" in OPT:
            self.lab("L_hold")
            self.e("s_sleep 4")
            self.e("s_memrealtime s[98:99]")
            self.e("s_waitcnt lgkmcnt(0)")
            self.e("s_sub_u32 s98, s98, s%d" % (96 if PAR["probe"] >= 0 else 94))
            self.e("s_cmp_lt_u32 s98, %d" % PAR["hold"])
            self.e("s_cbranch_scc1 L_hold")
        if "dbg" in OPT:
            self.e("s_waitcnt vmcnt(0)")
            self.e("s_memrealtime s[98:99]")
            self.e("s_memtime s[92:93]")
            self.e("s_load_dwordx2 s[8:9], s[0:1], 120")
            self.e("s_waitcnt lgkmcnt(0)")
            self.e("s_mov_b32 s10, 256")
            self.e("s_mov_b32 s11, 0x20000")
            self.e("s_not_b32 s94, s94")
            self.e("s_sub_u32 s92, s92, s96")
            self.e("v_mov_b32 v2, s94")
            self.e("v_mov_b32 v3, s98")
            self.e("v_mov_b32 v4, s92")
            self.e("v_mov_b32 v1, 0")
            self.e("s_cmp_lg_u32 s7, 0")
            self.e("s_cbranch_scc1 L_dbg_done")
            self.e("s_mov_b64 exec, 1")
            self.e("buffer_atomic_umax v2, v1, s[8:11], 0 offen")
            self.e("buffer_atomic_umax v3, v1, s[8:11], 0 offen offset:4")
            self.e("buffer_atomic_umax v4, v1, s[8:11], 0 offen offset:8")
            self.lab("L_dbg_done")

    def stamp_begin(self):
        if STAMP or "dbg" in OPT or "hold" in OPT:
            self.e("s_memrealtime s[94:95]")
            self.e("%s s[96:97]" % ("s_memrealtime" if "rt" in OPT else "s_memtime"))

    def fs_end(self):
        if STAMP:
            self.e("s_waitcnt vmcnt(0)")
            self.fs(61)
            self.e("s_memrealtime s[98:99]")
            self.e("s_waitcnt lgkmcnt(0)")
            self.e("v_writelane_b32 v0, s94, 62")
            self.e("v_writelane_b32 v0, s98, 63")
            self.e("s_add_u32 s8, s%d, 0x%x" % (sWS, ST_OFF))
            self.e("s_addc_u32 s9, s%d, 0" % (sWS + 1))
            self.e("s_mov_b32 s10, 0x80000")
            self.e("s_mov_b32 s11, 0x20000")
            self.e("s_lshl_b32 s6, s2, 11")
            self.e("s_lshl_b32 s12, s3, 8")
            self.e("s_add_u32 s6, s6, s12")
            self.e("v_lshlrev_b32 v1, 2, v1")
            self.e("buffer_store_dword v0, v1, s[8:11], s6 offen")

    def throttle(self, k):
        if len(self.vm) > k:
            self.e("s_waitcnt vmcnt(%d)" % k)
            self.vm = self.vm[len(self.vm) - k:] if k else []

    def vmi(self, tag, s, cold=False):
        self.throttle(self.thr)
        if cold and "nt" in OPT:
            s = s.replace(" lds", " nt lds") if s.endswith(" lds") else s + " nt"
        self.e(s)
        self.vm.append(tag)
        assert len(self.vm) <= 63, "too many vmem ops in flight"

    def vmw(self, tag, extra=""):
        idx = [i for i, t in enumerate(self.vm) if t == tag]
        if not idx:
            return None
        n = len(self.vm) - 1 - idx[-1]
        self.vm = self.vm[idx[-1] + 1:]
        self.e("s_waitcnt vmcnt(%d)%s" % (n, extra))
        return n

    def lgi(self, tag, s):
        self.e(s)
        self.lg.append(tag)

    def lgw(self, tag):
        idx = [i for i, t in enumerate(self.lg) if t == tag]
        if not idx:
            return
        n = len(self.lg) - 1 - idx[-1]
        self.lg = self.lg[idx[-1] + 1:]
        self.e("s_waitcnt lgkmcnt(%d)" % min(n, 15))

    def lgw0(self):
        if self.lg:
            self.e("s_waitcnt lgkmcnt(0)")
        self.lg = []


def stmod(pre="a"):
    return "".join(" " + m for m in ("sc0", "sc1", "nt") if pre + m in OPT)

def v(a, n=1):
    return "v%d" % a if n == 1 else "v[%d:%d]" % (a, a + n - 1)

def a(a_, n=1):
    return "a%d" % a_ if n == 1 else "a[%d:%d]" % (a_, a_ + n - 1)

def s(a_, n=1):
    return "s%d" % a_ if n == 1 else "s[%d:%d]" % (a_, a_ + n - 1)


def srd(A, d, base, nbytes, addlo=None):
    if addlo is None:
        A.e("s_mov_b32 s%d, s%d" % (d, base))
        A.e("s_mov_b32 s%d, s%d" % (d + 1, base + 1))
    else:
        A.e("s_add_u32 s%d, s%d, %s" % (d, base, addlo))
        A.e("s_addc_u32 s%d, s%d, 0" % (d + 1, base + 1))
    A.e("s_mov_b32 s%d, 0x%x" % (d + 2, nbytes))
    A.e("s_mov_b32 s%d, 0x20000" % (d + 3))


SLOT = 24576
NSLOT = 6
MISC = SLOT * NSLOT
K1_LDS = 163840
OOB = 0x40000000
LDS_CNT = MISC + 4096 + 8

ORD = [("P", c) for c in range(8)] + [("F", c) for c in range(8)]
LASTP = 7
def slot_of(n):
    return ((n % NSLOT) if n >= 8 else (4, 5, 0, 1)[n & 3]) * SLOT
PAR = dict(la=2, laf=4, nt=2, estep=9, cstep=10, hstep=14, cdelay=0, stgap=1, fd=5, sd=3, ffill=6, sfill=10, sfill2=14,
           rot=1, pf=1, cpf=1, pfc=11, pfw=11, ala=5, wla=8, urot=1, p2poll=10, chk2=12, fl2=5, slp=8, prio=0, hold=4000, pk=1, gam=0, lastbar=14, hsp=0, xstep=6, map=1, defF=2, defS=1, e0=3, pfw2=2, coeff=0, g0=46, spf=0, spf0=9, spfn=6, spfgap=2, mpf=-1, wpf=-1, tlb=0, thr=99, thr2=99, thrp=99, stag=0, sper=4, dyn=0, split=1, fgap=4, probe=-1, ew=6, ea=3, dph=0, pfill=3, fpf=1, burn=4, hoist=1, rl=4, rc=1, ssp=2, p2map=0, xe=1)

sX, sLRE, sLIM, sBRE, sBIM, sCRE, sCIM, sLDT = 16, 18, 20, 22, 24, 26, 28, 30
sW1, sW3, sW2, sGW, sDS, sWS, sOUT = 32, 34, 36, 38, 40, 42, 84
rX, rBRE, rBIM, rW1, rW3, rAS, rE, rEP, rG, rFL = 44, 48, 52, 56, 60, 64, 68, 72, 76, 88


def swiglu_ops(A, acc, off, pk, defer=None):
    o = []
    if pk:
        for r in range(0, 8, 2):
            o.append("v_pk_mul_f32 %s, %s, %s" % (v(acc + 8 + r, 2), v(acc + r, 2), v(acc + 8 + r, 2)))
        for r in range(0, 8, 2):
            o.append("v_pk_mul_f32 %s, %s, s[80:81] op_sel_hi:[1,0]" % (v(acc + r, 2), v(acc + r, 2)))
        for r in range(8):
            o.append("v_exp_f32 %s, %s" % (v(acc + r), v(acc + r)))
        for r in range(0, 8, 2):
            o.append("v_pk_add_f32 %s, %s, 1.0 op_sel_hi:[1,0]" % (v(acc + r, 2), v(acc + r, 2)))
        for r in range(8):
            o.append("v_rcp_f32 %s, %s" % (v(acc + r), v(acc + r)))
        for r in range(0, 8, 2):
            o.append("v_pk_mul_f32 %s, %s, %s" % (v(acc + 8 + r, 2), v(acc + 8 + r, 2), v(acc + r, 2)))
        for q in range(4):
            o.append("v_cvt_pk_bf16_f32 %s, %s, %s" % (v(acc + q), v(acc + 8 + 2 * q), v(acc + 9 + 2 * q)))
        (o if defer is None else defer).append(lambda: A.vmi("st", "buffer_store_dwordx4 %s, v6, %s, %s offen offset:%d%s" % (v(acc, 4), s(rAS, 4), "s87" if off >= 2048 else "s82", off, stmod())))
        return o
    for r in range(8):
        o.append("v_mul_f32 %s, %s, %s" % (v(acc + 8 + r), v(acc + r), v(acc + 8 + r)))
    for r in range(8):
        o.append("v_mul_f32 %s, s80, %s" % (v(acc + r), v(acc + r)))
    for r in range(8):
        o.append("v_exp_f32 %s, %s" % (v(acc + r), v(acc + r)))
    for r in range(8):
        o.append("v_add_f32 %s, 1.0, %s" % (v(acc + r), v(acc + r)))
    for r in range(8):
        o.append("v_rcp_f32 %s, %s" % (v(acc + r), v(acc + r)))
    for r in range(8):
        o.append("v_mul_f32 %s, %s, %s" % (v(acc + 8 + r), v(acc + 8 + r), v(acc + r)))
    for q in range(4):
        o.append("v_cvt_pk_bf16_f32 %s, %s, %s" % (v(acc + q), v(acc + 8 + 2 * q), v(acc + 9 + 2 * q)))
    (o if defer is None else defer).append(lambda: A.vmi("st", "buffer_store_dwordx4 %s, v6, %s, %s offen offset:%d%s" % (v(acc, 4), s(rAS, 4), "s87" if off >= 2048 else "s82", off, stmod())))
    return o


class Stream:
    def __init__(self, A, items, NB, D, K):
        self.A, self.items, self.NB, self.D, self.K = A, items, NB, D, K
        self.nb = 0
        self.rp = 0
        self.fill = []
        self.fence = -1
        self.dyn = False
        self.hold = 0

    def ninstr(self):
        return self.A.ni

    def pop(self, k):
        while k > 0 and self.fill:
            f = self.fill[0]
            if isinstance(f, tuple):
                if f[0] == "gap":
                    self.fill.pop(0)
                    return
                if f[0] == "bar" and self.nb <= f[1]:
                    return
                if f[0] == "dist" and self.ninstr() - f[1] < 12:
                    return
                self.fill.pop(0)
                continue
            self.fill.pop(0)
            if isinstance(f, str):
                self.A.e(f)
            else:
                f()
            k -= 1

    def flush(self):
        while self.fill:
            f = self.fill[0]
            if isinstance(f, tuple):
                if f[0] in ("bar", "gap"):
                    assert f[0] == "gap" or self.nb > f[1]
                    self.fill.pop(0)
                    continue
                d = 12 - (self.ninstr() - f[1])
                if d > 0:
                    self.A.e("s_nop %d" % (d - 1))
                self.fill.pop(0)
                continue
            self.pop(1)

    def barrier(self, n):
        while self.nb <= n:
            b = self.nb
            self.pre(b)
            lim = b - 1 if b == PAR["lastbar"] else b - 2
            old = [t for t in self.A.lg if t[0] == "c" and int(t[1:].split("_")[0]) <= lim]
            if b <= PAR["lastbar"]:
                if old:
                    self.A.lgw(old[-1])
                self.A.e("s_barrier")
            self.nb += 1
            self.post(b)

    def reads(self, upto, force):
        while self.rp < min(upto, len(self.items)):
            it = self.items[self.rp]
            if not force and (it[0] > self.nb or (it[0] == self.fence and self.nb <= it[0])):
                return
            self.barrier(it[0])
            self.read(it, self.rp % self.NB, "c%d_%d" % (it[0], self.rp))
            self.rp += 1

    def run(self):
        for mp, it in enumerate(self.items):
            if self.rp <= mp:
                self.reads(mp + 1, True)
                self.reads(mp + 1 + self.D, False)
            self.A.lgw("c%d_%d" % (it[0], mp))
            self.mfma(it, mp % self.NB)
            self.after(it, mp)
            self.reads(min(mp + 1 + self.D, self.rp + 2), False)
            if self.dyn and self.fill:
                n0 = len(self.A.L)
                self.A.e("s_setprio 0")
                self.pop(self.K)
                if len(self.A.L) == n0 + 1:
                    self.A.L.pop(); self.A.ni -= 1
                else:
                    self.A.e("s_setprio 2")
            else:
                self.pop(self.K)
        self.barrier(15)


def mk_items(ORD, ntile, withP):
    NT = PAR["nt"]
    items = []
    for n in range(16 - NT):
        if ORD[n][0] == "P" and not withP:
            continue
        for ss in range(4):
            for ti in range(ntile):
                items.append((n, ss, ti))
    for t0 in range(0, ntile, 2):
        for n in range(16 - NT, 16):
            assert ORD[n][0] == "F"
            for ss in range(4):
                for ti in (t0, t0 + 1):
                    items.append((n, ss, ti))
    return items


def emit(A, ops):
    for x in ops:
        if isinstance(x, str):
            A.e(x)
        else:
            x()


def prologue(A):
    A.e("s_cmp_ge_u32 s2, 256")
    A.e("s_cbranch_scc1 L_end")
    A.stamp_begin()
    A.e("s_load_dwordx16 s[16:31], s[0:1], 0")
    A.e("s_load_dwordx8 s[32:39], s[0:1], 80")
    A.e("s_load_dwordx2 s[42:43], s[0:1], 128")
    A.e("s_load_dwordx2 s[40:41], s[0:1], 64")
    A.e("s_load_dwordx2 s[84:85], s[0:1], 112")
    A.e("v_lshrrev_b32 v2, 6, v0")
    A.e("v_and_b32 v1, 63, v0")
    A.e("v_readfirstlane_b32 s3, v2")
    if PAR["map"] == 0:
        A.e("s_bfe_u32 s4, s2, 0x20001")
        A.e("s_lshl_b32 s4, s4, 2")
        A.e("s_bfe_u32 s6, s2, 0x20003")
        A.e("s_add_u32 s4, s4, s6")
        A.e("s_and_b32 s5, s2, 1")
        A.e("s_lshl_b32 s5, s5, 3")
        A.e("s_lshr_b32 s6, s2, 5")
        A.e("s_add_u32 s5, s5, s6")
    else:
        A.e("s_bfe_u32 s4, s2, 0x10002")
        A.e("s_lshl_b32 s4, s4, 3")
        A.e("s_bfe_u32 s6, s2, 0x30003")
        A.e("s_add_u32 s4, s4, s6")
        A.e("s_and_b32 s5, s2, 3")
        A.e("s_lshl_b32 s5, s5, 2")
        A.e("s_lshr_b32 s6, s2, 6")
        A.e("s_add_u32 s5, s5, s6")
    A.e("s_and_b32 s7, s3, 3")
    A.e("v_and_b32 v8, 31, v1")
    A.e("v_lshrrev_b32 v9, 5, v1")
    A.e("s_lshl_b32 s8, s7, 12")
    if PAR["rot"]:
        A.e("s_add_u32 s15, s4, s5")
        A.e("s_and_b32 s15, s15, 1")
        if PAR["map"]:
            A.e("s_add_u32 s83, s4, s5")
            if PAR["dph"]:
                A.e("s_and_b32 s6, s2, 1")
                A.e("s_add_u32 s83, s83, s6")
        elif PAR["gam"]:
            A.e("s_sub_u32 s83, s4, s15")
            A.e("s_lshl_b32 s83, s83, 1")
        else:
            A.e("s_lshl_b32 s83, s4, 1")
        A.e("s_add_u32 s83, s83, s5")
    else:
        A.e("s_mov_b32 s83, 0")
    A.e("s_cmp_lt_u32 s3, 4")
    A.e("s_cbranch_scc1 L_S")


def tile_of(A, half, ct, r2):
    if PAR["p2map"]:
        A.e("s_and_b32 %s, s4, 11" % r2)
        A.e("s_lshr_b32 %s, s5, 3" % half)
        A.e("s_lshl_b32 %s, %s, 2" % (half, half))
        A.e("s_add_u32 %s, %s, %s" % (r2, r2, half))
        A.e("s_and_b32 %s, s4, 4" % ct)
    else:
        A.e("s_mov_b32 %s, s4" % r2)
        A.e("s_lshr_b32 %s, s5, 3" % ct)
        A.e("s_lshl_b32 %s, %s, 2" % (ct, ct))
    A.e("s_and_b32 %s, s5, 3" % half)
    A.e("s_add_u32 %s, %s, %s" % (ct, ct, half))
    A.e("s_bfe_u32 %s, s5, 0x10002" % half)


def piece_base(d, tmp):
    return ["s_lshr_b32 %s, s5, 2" % tmp, "s_mul_i32 %s, s5, 3" % d, "s_sub_u32 %s, %s, %s" % (d, d, tmp)]


def common_late(A):
    A.e("s_mov_b32 s80, 0x%x" % f2u(-LOG2E))
    A.e("v_bfe_u32 v10, v1, 1, 3")
    A.e("v_xor_b32 v10, v10, v9")
    A.e("v_lshlrev_b32 v10, 4, v10")
    A.e("v_lshl_add_u32 v7, v8, 7, v10")
    A.e("v_bfe_u32 v10, v1, 4, 1")
    A.e("v_mul_u32_u24 v12, 3104, v10")
    A.e("v_lshlrev_b32 v11, 9, v9")
    A.e("v_add_u32 v12, v12, v11")
    A.e("v_bfe_u32 v11, v1, 2, 2")
    A.e("v_lshl_add_u32 v12, v11, 6, v12")
    A.e("v_and_b32 v11, 3, v1")
    A.e("v_lshl_add_u32 v12, v11, 3, v12")
    A.e("v_xor_b32 v13, 32, v12")
    A.e("v_lshlrev_b32 v6, 4, v1")
    A.e("s_lshl_b32 s6, s4, 2")
    A.e("s_add_u32 s6, s6, s7")
    A.e("s_mul_i32 s81, s6, %d" % (NKS * 1024))
    emit(A, piece_base("s6", "s82"))
    A.e("s_lshl_b32 s6, s6, 11")
    A.e("s_add_u32 s82, s81, s6")
    srd(A, rAS, sWS, A_BYTES)


def w_scalars(A):
    A.e("s_mul_i32 s10, s7, 6144")
    A.e("s_cmp_ge_u32 s5, 15")
    A.e("s_cselect_b32 s92, 0x%x, 0" % OOB)
    A.e("s_and_b32 s93, s5, 3")
    A.e("s_cmp_eq_u32 s93, 3")
    A.e("s_cselect_b32 s93, 0x%x, 0" % OOB)


def wdma_addr_ops(d1, d3, tmp):
    return ["v_lshrrev_b32 %s, 2, v1" % tmp, "s_lshl_b32 s6, s7, 4", "v_add_u32 %s, s6, %s" % (tmp, tmp),
            "v_mul_u32_u24 %s, 2752, %s" % (d1, tmp)] + piece_base("s6", "s11") + ["s_lshl_b32 s6, s6, 6", "v_add_u32 %s, s6, %s" % (d1, d1),
            "v_and_b32 %s, 3, v1" % tmp, "v_lshl_add_u32 %s, %s, 4, %s" % (d1, tmp, d1), "v_xor_b32 %s, 32, %s" % (d3, d1)]


def dma_ops(A, n, w1, w3, mats=(0, 1)):
    kind, c = ORD[n]
    slot = slot_of(n)
    tag = "ch%d" % n
    ops = []
    def mk(pre, m0, ins, gap="s_nop 0"):
        def f():
            for x in pre:
                A.e(x)
            A.e(m0)
            A.e(gap)
            A.vmi(tag, ins)
        return f
    if kind == "P":
        pre = ["s_add_u32 s11, s83, %d" % c, "s_and_b32 s11, s11, 7", "s_lshl_b32 s11, s11, 7", "s_add_u32 s12, s11, 8192"]
        for q in range(4):
            ops.append(mk(pre if q == 0 else [], "s_add_u32 m0, s8, %d" % (slot + 1024 * q),
                          "buffer_load_dwordx4 %s, %s, s%d offen lds" % ("v3" if q & 1 else "v2", s(rX, 4), 12 if q >= 2 else 11)))
        ops.append(mk([], "s_add_u32 m0, s9, %d" % (slot + 16384), "buffer_load_dwordx4 v4, %s, s11 offen lds" % s(rBRE, 4)))
        ops.append(mk([], "s_add_u32 m0, s9, %d" % (slot + 20480), "buffer_load_dwordx4 v4, %s, s11 offen lds" % s(rBIM, 4)))
    else:
        pre = ["s_add_u32 s11, s83, %d" % c, "s_and_b32 s11, s11, 7", "s_mul_i32 s11, s11, 176128"]
        for m in mats:
            for q in range(3):
                ops.append(mk(pre if m == mats[0] and q == 0 else [], "s_add_u32 m0, s10, %d" % (slot + m * 3072 + 1024 * q - 64 * q),
                              "buffer_load_dwordx4 %s, %s, s%d offen offset:%d lds" % (w3 if m else w1, s(rW3 if m else rW1, 4), 12 if q else 11, 64 * q),
                              "s_add_u32 s12, s11, s%d" % (91 + q) if q else "s_nop 0"))
    return ops


P2_SEQ = [("X", 0, "o", None), ("C", 0, "s", 0), ("C", 1, "s", 1)]
for m_ in range(2, 8):
    P2_SEQ += [("C", m_, "s", m_), ("C", m_, "o", m_)]
NSSM = len(P2_SEQ)
FU = [8, 9, 10, 11, 0, 1, 2, 3, 4, 5, 6]
P2_SEQ += [("W", m_, "s", FU[m_]) for m_ in range(11)]
NSEND = len(P2_SEQ) - 1
P2_SEQ += [("C", 0, "o", -1), ("C", 1, "o", -2)] + [("W", m_, "o", FU[m_]) for m_ in range(11)]
P2_W = []
for n_, (k_, m_, h_, u_) in enumerate(P2_SEQ):
    if h_ == "s":
        prev = [q for q in range(n_) if P2_SEQ[q][3] == u_]
        P2_W.append((k_, m_, u_, n_, prev[0] + 2 if prev else (-1 if u_ < 6 else 0)))
NA = 7
GU = 19 * 8192
def AU(n): return (12 + n % NA) * 8192


def role_F(A):
    A.vm, A.lg = [], []
    A.thr = PAR["thrp"]
    ACC, FB = 64, 32
    LA = PAR["la"]
    if PAR["prio"] or PAR["dyn"]:
        A.e("s_setprio 1")
    A.e("v_lshrrev_b32 v10, 4, v1")
    A.e("v_and_b32 v11, 7, v1")
    A.e("v_xor_b32 v10, v10, v11")
    A.e("v_lshlrev_b32 v10, 4, v10")
    A.e("v_bfe_u32 v11, v1, 3, 2")
    A.e("v_lshl_add_u32 v2, v11, 10, v10")
    A.e("v_lshl_add_u32 v2, v9, 14, v2")
    A.e("s_lshl_b32 s6, s7, 15")
    A.e("v_add_u32 v2, s6, v2")
    A.e("v_xor_b32 v3, 64, v2")
    A.e("v_add_u32 v3, 4096, v3")
    A.e("s_lshl_b32 s9, s7, 10")
    A.e("s_and_b32 s6, s7, 1")
    A.e("s_lshl_b32 s6, s6, 6")
    A.e("v_xor_b32 v4, s6, v10")
    A.e("v_lshrrev_b32 v11, 3, v1")
    A.e("v_lshl_add_u32 v4, v11, 10, v4")
    A.e("s_lshl_b32 s6, s7, 13")
    A.e("v_add_u32 v4, s6, v4")
    emit(A, wdma_addr_ops("v5", "v16", "v10"))
    w_scalars(A)
    A.e("s_lshl_b32 s6, s4, 17")
    A.e("s_lshl_b32 s13, s5, 15")
    A.e("s_waitcnt lgkmcnt(0)")
    A.fs(52)
    if PAR["gam"]:
        srd(A, rW1, sW1, 512 * 2752)
        srd(A, rW3, sW3, 512 * 2752)
    if PAR["gam"]:
        assert LA == 2
        A.e("s_cmp_lg_u32 s15, 0")
        A.e("s_cbranch_scc1 L_F_now")
        emit(A, dma_ops(A, 8, "v5", "v16") + dma_ops(A, 9, "v5", "v16"))
        A.vm = []
        A.lab("L_F_now")
    srd(A, rX, sX, 131072, "s6")
    d0 = dma_ops(A, 0, "v5", "v16")
    emit(A, d0[:4])
    srd(A, rBRE, sBRE, 32768, "s13")
    srd(A, rBIM, sBIM, 32768, "s13")
    emit(A, d0[4:])
    A.fs(53)
    A.e("s_lshl_b32 s6, s5, 3")
    A.e("s_lshl_b32 s13, s7, 1")
    A.e("s_add_u32 s13, s13, s6")
    A.e("s_lshl_b32 s6, s13, 10")
    A.e("v_lshlrev_b32 v17, 4, v8")
    A.e("v_lshl_add_u32 v18, v9, 10, v17")
    A.e("v_add_u32 v18, s6, v18")
    A.vmi("g", "buffer_load_dwordx4 v[64:67], v18, %s, 0 offen" % s(rX, 4))
    A.vmi("g", "buffer_load_dwordx4 v[68:71], v18, %s, 0 offen offset:512" % s(rX, 4))
    A.vmi("g", "global_load_dwordx4 v[72:75], v17, %s" % s(sGW, 2))
    A.vmi("g", "global_load_dwordx4 v[76:79], v17, %s offset:512" % s(sGW, 2))
    A.e("s_and_b32 s6, s4, 8")
    A.e("s_lshl_b32 s6, s6, 4")
    A.e("s_add_u32 s6, s6, 0x%x" % EPR_OFF)
    srd(A, rFL, sWS, 4, "s6")
    A.e("v_mov_b32 v88, 0")
    A.vmi("g", "buffer_load_dword v87, v88, %s, 0 offen sc1" % s(rFL, 4))
    emit(A, dma_ops(A, 1, "v5", "v16"))
    A.fs(54)
    srd(A, rW1, sW1, 512 * 2752)
    srd(A, rW3, sW3, 512 * 2752)
    common_late(A)
    srd(A, rG, sWS, 16384, "0x%x" % G_OFF)
    A.e("v_add_u32 v7, s8, v7")
    A.e("s_add_u32 s82, s82, %d" % (65536 + 2048))
    A.e("s_add_u32 s87, s82, s93")
    A.e("s_add_u32 s82, s82, s92")
    A.e("s_branch L_Fmain")
    A.fmain = len(A.L)
    A.lab("L_Fmain")

    def g_ops():
        o = [lambda: A.vmw("g"), "v_readfirstlane_b32 s86, v87", "v_mov_b32 v84, 0", "s_add_u32 s86, s86, 1", "s_bitset1_b32 s86, 31"]
        for d in range(8):
            xx, ww = 64 + d, 72 + d
            o += ["v_lshlrev_b32 v80, 16, %s" % v(xx), "v_and_b32 v81, 0xffff0000, %s" % v(xx),
                  "v_lshlrev_b32 v82, 16, %s" % v(ww), "v_and_b32 v83, 0xffff0000, %s" % v(ww),
                  "v_mul_f32 v80, v80, v82", "v_mul_f32 v81, v81, v83", "v_cvt_pk_bf16_f32 v80, v80, v81",
                  "v_lshlrev_b32 v81, 16, v80", "v_and_b32 v80, 0xffff0000, v80",
                  "v_add_f32 v84, v84, v81", "v_add_f32 v84, v84, v80"]
        for sh in (1, 2, 4, 8):
            o += ["s_nop 1", "v_add_f32_dpp v84, v84, v84 row_shr:%d row_mask:0xf bank_mask:0xf bound_ctrl:0" % sh]
        o += ["s_nop 1", "v_add_f32_dpp v84, v84, v84 row_bcast:15 row_mask:0xa bank_mask:0xf",
              "v_cvt_pk_bf16_f32 v84, v84, v84", "v_and_b32 v84, 0xffff0000, v84", "v_mul_f32 v84, s80, v84",
              "v_exp_f32 v84, v84", "s_nop 0", "v_add_f32 v84, 1.0, v84", "v_rcp_f32 v84, v84", "s_nop 0",
              "v_cvt_pk_bf16_f32 v84, v84, v84", "v_and_b32 v84, 0xffff0000, v84",
              "v_sub_f32 v85, 1.0, v84", "v_cvt_pk_bf16_f32 v85, v85, v85", "v_and_b32 v85, 0xffff0000, v85"]
        return o

    def g_store():
        A.e("s_lshl_b32 s6, s4, 7")
        A.e("s_add_u32 s6, s6, s13")
        A.e("s_lshl_b32 s6, s6, 3")
        A.e("v_lshlrev_b32 v86, 3, v9")
        A.e("s_mov_b32 exec_lo, 0x80000000")
        A.e("s_mov_b32 exec_hi, 0x80000000")
        A.vmi("gst", "buffer_store_dwordx2 v[84:85], v86, %s, s6 offen%s" % (s(rG, 4), stmod()))
        A.e("s_mov_b64 exec, -1")

    gq = g_ops()
    rO = 68
    A.e("s_and_b32 s72, s7, 1")
    A.e("s_lshr_b32 s73, s7, 1")
    tile_of(A, "s6", "s74", "s75")
    A.e("s_lshl_b32 s75, s75, 1")
    A.e("s_add_u32 s75, s75, s6")
    A.e("s_lshl_b32 s75, s75, 1")
    A.e("s_add_u32 s75, s75, s72")
    A.e("s_lshl_b32 s75, s75, 16")
    A.e("s_lshl_b32 s74, s74, 1")
    A.e("s_add_u32 s74, s74, s73")
    A.e("s_lshl_b32 s74, s74, 7")
    A.e("s_add_u32 s75, s75, s74")
    A.e("v_lshlrev_b32 v20, 15, v9")
    A.e("v_lshl_add_u32 v20, v8, 2, v20")
    A.e("v_add_u32 v20, s75, v20")
    srd(A, rO, sOUT, 2048 * 2048)
    A.e("s_lshl_b32 s6, s72, 12")
    A.e("s_add_u32 s6, s6, %d" % AU(0))
    A.e("v_add_u32 v17, s6, v6")
    A.e("v_subrev_u32 v18, s8, v7")
    A.e("s_lshl_b32 s6, s73, 12")
    A.e("v_add_u32 v18, s6, v18")
    A.e("v_bfe_u32 v10, v1, 2, 2")
    A.e("v_lshlrev_b32 v19, 7, v10")
    A.e("v_lshl_add_u32 v19, v9, 9, v19")
    A.e("v_bfe_u32 v10, v1, 4, 1")
    A.e("v_lshl_add_u32 v19, v10, 5, v19")
    A.e("v_and_b32 v10, 3, v1")
    A.e("v_lshl_add_u32 v19, v10, 3, v19")
    A.e("v_bfe_u32 v10, v1, 3, 1")
    A.e("v_xor_b32 v10, s73, v10")
    A.e("v_lshl_add_u32 v19, v10, 6, v19")
    A.e("s_lshl_b32 s6, s73, 6")
    A.e("v_lshl_add_u32 v23, v8, 1, s6")
    A.e("s_lshl_b32 s6, s72, 1")
    A.e("v_add_u32 v10, s6, v9")
    A.e("v_lshl_add_u32 v21, v10, 11, v23")
    A.e("v_add_u32 v21, %d, v21" % AU(0))
    A.e("s_bfe_u32 s6, s5, 0x10002")
    A.e("s_lshl_b32 s6, s6, 9")
    A.e("s_add_u32 s6, s6, %d" % GU)
    A.e("v_lshl_add_u32 v22, v10, 7, s6")
    A.e("v_add_u32 v23, %d, v23" % (GU + 1024))
    A.e("s_lshl_b32 s100, s5, 2")
    A.e("s_add_u32 s100, s100, s7")
    A.e("s_lshl_b32 s100, s100, 12")
    A.e("s_xor_b32 s101, s100, 0x10000")
    A.e("v_bfe_u32 v10, v1, 4, 1")
    A.e("v_mul_u32_u24 v11, 1152, v10")
    A.e("v_lshl_add_u32 v11, v9, 8, v11")
    A.e("v_bfe_u32 v10, v1, 2, 2")
    A.e("v_lshl_add_u32 v11, v10, 5, v11")
    A.e("v_and_b32 v10, 1, v1")
    A.e("v_lshl_add_u32 v11, v10, 4, v11")
    A.e("v_bfe_u32 v10, v1, 1, 1")
    A.e("v_lshl_add_u32 v11, v10, 3, v11")
    A.e("s_lshl_b32 s6, s72, 12")
    A.e("s_add_u32 s6, s6, %d" % AU(0))
    A.e("v_add_u32 v11, s6, v11")
    A.e("v_xor_b32 v10, 0x80, v11")

    tiles = [2, 3, 4, 5]
    S = Stream(A, mk_items(ORD, 4, False), 8, PAR["fd"], PAR["ffill"])
    late = []
    dq = []
    if PAR["split"]:
        for n in range(LASTP + LA + 1, 16):
            dq += [(n, f) for f in dma_ops(A, n, "v5", "v16", (1,))]

    def pf_setup():
        srd(A, 44, sW2, 1376 * 1024)
        A.e("s_bitcmp1_b32 s5, 2")
        A.e("s_cselect_b64 s[48:49], %s, %s" % (s(sCIM, 2), s(sCRE, 2)))
        A.e("s_cselect_b32 s15, 704, 0")
        A.e("s_mov_b32 s50, 0x80000")
        A.e("s_mov_b32 s51, 0x20000")
        A.e("s_lshr_b32 s6, s2, 3")
        A.e("s_mul_i32 s14, s6, 22")
        A.e("s_add_u32 s15, s15, s14")
        A.e("s_mul_i32 s14, s7, 11")
        A.e("s_lshr_b32 s14, s14, 1")
        A.e("s_add_u32 s15, s15, s14")
        if PAR["p2map"]:
            A.e("s_lshl_b32 s15, s15, 10")
            A.e("s_lshl_b32 s9, s6, 2")
            A.e("s_add_u32 s9, s9, s7")
            A.e("s_lshl_b32 s9, s9, 12")
            A.e("v_lshlrev_b32 v2, 7, v1")
            A.e("v_mov_b32 v3, v2")
            return
        A.e("s_lshl_b32 s15, s15, 1")
        A.e("s_lshr_b32 s14, s5, 3")
        A.e("s_add_u32 s15, s15, s14")
        A.e("s_lshl_b32 s15, s15, 9")
        A.e("s_lshl_b32 s9, s14, 18")
        A.e("s_lshl_b32 s6, s6, 13")
        A.e("s_add_u32 s9, s9, s6")
        A.e("s_lshl_b32 s6, s7, 11")
        A.e("s_add_u32 s9, s9, s6")
        A.e("v_lshlrev_b32 v2, 7, v1")
        A.e("v_lshrrev_b32 v3, 2, v1")
        A.e("v_lshlrev_b32 v3, 3, v3")
        A.e("v_and_or_b32 v3, v1, 3, v3")
        A.e("v_lshlrev_b32 v3, 7, v3")

    def pf_c():
        A.e("s_mov_b32 exec_hi, 0" if PAR["p2map"] else "s_mov_b64 exec, 0xffff")
        A.vmi("pf", "buffer_load_dword v4, v2, s[48:51], s9 offen")
        A.e("s_mov_b64 exec, -1")

    def pf_w():
        A.e("s_mov_b32 exec_hi, 0xffff" if PAR["p2map"] else "s_mov_b64 exec, 0xffffff")
        A.vmi("pf", "buffer_load_dword v4, v3, s[44:47], s15 offen")
        A.e("s_mov_b64 exec, -1")

    if PAR["pf"] and PAR["fpf"]:
        dq += sorted([(PAR["pfc"] + PAR["laf"], pf_c), (PAR["pfw"] + PAR["laf"], pf_w)], key=lambda x: x[0])

    def dma_upto(m, maxops=999):
        while dq and dq[0][0] <= m and maxops > 0:
            dq.pop(0)[1]()
            maxops -= 1

    def waddr(n):
        return ((14, 15), (28, 29), (30, 31))[n % 3]

    def pre(b):
        kind, c = ORD[b]
        slot = slot_of(b)
        if b == LASTP + 1:
            emit(A, gq)
            g_store()
            if PAR["pf"] and PAR["fpf"]:
                pf_setup()
            A.e("s_lshl_b32 s6, s4, 18")
            A.e("s_add_u32 s6, s6, 0x%x" % XB_OFF)
            srd(A, rFL, sWS, 262144, "s6")
        dma_upto(min(b - 1 + LA, 15) if b != PAR["lastbar"] else 15)
        if b == 10:
            A.vmw("gst")
        if b == PAR["lastbar"]:
            A.vmw("ch15")
        if kind == "P":
            A.e("v_add_u32 v24, %d, v7" % slot)
            A.e("v_xor_b32 v25, 32, v24")
            A.e("v_xor_b32 v26, 64, v24")
            A.e("v_xor_b32 v27, 0x60, v24")
        else:
            A.e("v_add_u32 v%d, %d, v12" % (waddr(b)[0], slot))
            A.e("v_add_u32 v%d, %d, v13" % (waddr(b)[1], slot))
        A.fs2(20 + b)
        A.vmw("ch%d" % b)
        if PAR["gam"] and b == 7:
            A.e("s_cmp_lg_u32 s15, 0")
            A.e("s_cbranch_scc1 L_F_w7")
            A.e("s_waitcnt vmcnt(0)")
            A.lab("L_F_w7")
        A.fs2(36 + b)

    def post(b):
        kind, c = ORD[b]
        A.fs(b)
        if kind == "P":
            for ss in range(4):
                A.lgi("c%d_x" % b, "ds_read_b128 %s, %s" % (a(16 * c + 4 * ss, 4), v(24 + ss)))
            for n in range(2, 16):
                if (n == b + LA) or (b == 0 and n < LA):
                    if PAR["gam"] and n >= 8:
                        A.e("s_cmp_eq_u32 s15, 0")
                        A.e("s_cbranch_scc1 L_F_skip%d" % n)
                    emit(A, dma_ops(A, n, "v5", "v16"))
                    if PAR["gam"] and n >= 8:
                        A.lab("L_F_skip%d" % n)
            if b == 0:
                emit(A, gq[:PAR["g0"]])
                del gq[:PAR["g0"]]

    def read(it, sl, tag):
        n, ss, ti = it
        T = tiles[ti]
        for nn in range(2):
            A.lgi(tag, "ds_read_b64_tr_b16 %s, v%d offset:%d" % (v(FB + 4 * sl + 2 * nn, 2), waddr(n)[T & 1],
                                                                ss * 6144 + (T >> 1) * 1024 + nn * 256))

    def mfma(it, sl):
        n, ss, ti = it
        c = ORD[n][1]
        first = (c == 0 and ss == 0)
        A.e("v_mfma_f32_32x32x16_bf16 %s, %s, %s, %s" % (v(ACC + 16 * ti, 16), v(FB + 4 * sl, 4), a(16 * c + 4 * ss, 4),
                                                        "0" if first else v(ACC + 16 * ti, 16)))

    def after(it, mp):
        n, ss, ti = it
        if n == 15 and ss == 3:
            S.fill.append(("dist", S.ninstr()))
            S.fill += swiglu_ops(A, ACC + 16 * ti, 1024 * ti, PAR["pk"] and ti >= 2, late if ti >= 4 - PAR["defF"] else None)
        if mp % PAR["fgap"] == 0:
            dma_upto(S.nb - 1 + PAR["laf"], 1)

    S.pre, S.post, S.read, S.mfma, S.after = pre, post, read, mfma, after
    S.run()
    assert not dq
    A.fs(16)
    S.flush()
    A.fs(19)

    N = len(P2_SEQ)
    AS, AO, BS, BO, GV = 32, 48, 64, 80, 96
    XV, RV = AO, AS
    A.lg = []
    seen = {"Co"}

    def addr(n):
        k_, m_, h_, u_ = P2_SEQ[n]
        if n and (P2_SEQ[n - 1][3] == u_ or u_ < 0):
            return
        if k_ == "W":
            A.e("v_add_u32 v24, %d, v19" % (u_ * 8192))
        elif k_ == "C":
            A.e("v_add_u32 v24, %d, v18" % (u_ * 8192))
            A.e("v_xor_b32 v25, 32, v24")
            A.e("v_xor_b32 v26, 64, v24")
            A.e("v_xor_b32 v27, 0x60, v24")

    def wfb(n):
        if P2_SEQ[n][0] == "C" and P2_SEQ[n][1] < 2:
            return 80 + 16 * P2_SEQ[n][1]
        while n and P2_SEQ[n - 1][3] == P2_SEQ[n][3]:
            n -= 1
        return 32 + 16 * (n % 3)

    def g_reads(tg, other, qs):
        for q in qs:
            A.lgi(tg, "ds_read_b128 %s, %s offset:%d" % (v(GV + 4 * q, 4), "v28" if other else "v22", 16 * q))

    def reads2(n, ss):
        k_, m_, h_, u_ = P2_SEQ[n]
        fa = 16 * (n & 1)
        tg = "r%d_%d" % (n, ss)
        if k_ == "X":
            for r in range(4 * ss, 4 * ss + 4):
                A.lgi(tg, "ds_read_u16 %s, v21 offset:%d" % (v(XV + r), AU(n) - AU(0) + 128 * r))
            if ss == 3:
                A.lgi(tg, "ds_read_u16 v16, v23")
            return
        if k_ == "W":
            A.lgi(tg, "ds_read_b128 %s, v17 offset:%d" % (a(fa + 4 * ss, 4), AU(n) - AU(0) + 1024 * ss))
        else:
            for nn in range(2):
                A.lgi(tg, "ds_read_b64_tr_b16 %s, %s offset:%d" % (a(fa + 4 * ss + 2 * nn, 2), "v10" if nn else "v11",
                                                                  AU(n) - AU(0) + 2048 * (ss >> 1) + 512 * (ss & 1)))
        if n and (P2_SEQ[n - 1][3] == u_ or u_ < 0):
            return
        if k_ == "W":
            for nn in range(2):
                A.lgi(tg, "ds_read_b64_tr_b16 %s, v24 offset:%d" % (a(wfb(n) + 4 * ss + 2 * nn, 2), 2048 * ss + 1024 * nn))
        else:
            A.lgi(tg, "ds_read_b128 %s, %s" % (a(wfb(n) + 4 * ss, 4), v(24 + ss)))

    def mfma2(n, ss):
        k_, m_, h_, u_ = P2_SEQ[n]
        A.lgw("r%d_%d" % (n, ss))
        if k_ == "X":
            return
        acc = v({"Cs": AS, "Co": AO, "Ws": BS, "Wo": BO}[k_ + h_], 16)
        first = (k_ + h_) not in seen
        seen.add(k_ + h_)
        A.e("v_mfma_f32_32x32x16_bf16 %s, %s, %s, %s" % (acc, a(16 * (n & 1) + 4 * ss, 4), a(wfb(n) + 4 * ss, 4), "0" if first else acc))

    def xd(q):
        if q == 0:
            A.e("v_lshlrev_b32 v16, 16, v16")
        r0, r1 = 2 * q, 2 * q + 1
        A.e("v_lshlrev_b32 %s, 16, %s" % (v(XV + r0), v(XV + r0)))
        A.e("v_lshlrev_b32 %s, 16, %s" % (v(XV + r1), v(XV + r1)))
        A.e("v_mul_f32 %s, %s, v16" % (v(XV + r0), v(XV + r0)))
        A.e("v_mul_f32 %s, %s, v16" % (v(XV + r1), v(XV + r1)))
        A.e("v_cvt_pk_bf16_f32 %s, %s, %s" % (v(XV + r0), v(XV + r0), v(XV + r1)))
        A.e("v_and_b32 %s, 0xffff0000, %s" % (v(XV + r1), v(XV + r0)))
        A.e("v_lshlrev_b32 %s, 16, %s" % (v(XV + r0), v(XV + r0)))

    def send(qs):
        if 0 in qs:
            A.e("s_nop 10")
        for q in qs:
            for r in range(4 * q, 4 * q + 4):
                A.e("v_fmac_f32 %s, %s, %s" % (v(AS + r), v(GV + 2 * r + 1), v(BS + r)))
            for r in (4 * q, 4 * q + 2):
                A.e("v_cvt_pk_bf16_f32 %s, %s, %s" % (v(BO + r), v(AS + r), v(AS + r + 1)))
            A.e("buffer_store_dwordx4 %s, v6, %s, s101 offen offset:%d%s" % (v(BO + 4 * q, 4), s(rFL, 4), 1024 * q, stmod("x")))

    def recv_issue():
        for q in range(4):
            A.e("buffer_load_dwordx4 %s, v6, %s, s100 offen offset:%d sc1" % (v(RV + 4 * q, 4), s(rFL, 4), 1024 * q))

    def recv():
        A.e("s_mov_b32 s13, 0")
        A.lab("L_F_rpoll")
        A.e("s_waitcnt vmcnt(0)")
        T = [v(RV + 2 * q + 1) for q in range(8)]
        for op, d in (("v_min3_u32", "v28"), ("v_max3_u32", "v29")):
            A.e("%s %s, %s, %s, s86" % (op, d, T[0], T[1]))
            for q in range(2, 8, 2):
                A.e("%s %s, %s, %s, %s" % (op, d, T[q], T[q + 1], d))
        A.e("v_cmp_ne_u32 vcc, v28, v29")
        A.e("s_cbranch_vccz L_F_rok")
        A.e("s_sleep 2")
        recv_issue()
        A.e("s_add_u32 s13, s13, 1")
        A.e("s_cmp_lt_u32 s13, 0x20000")
        A.e("s_cbranch_scc1 L_F_rpoll")
        A.e("s_waitcnt vmcnt(0)")
        A.lab("L_F_rok")

    A.e("v_xor_b32 v28, 0x200, v22")
    assert PAR["fl2"] <= 8 and not PAR["stag"] and PAR["ssp"] in (1, 2) and N - PAR["rc"] >= NSEND + 10
    for n in range(N):
        addr(n)
        if n == PAR["fl2"]:
            assert not late
            A.e("s_waitcnt vmcnt(0)")
        A.e("s_barrier")
        if "hold" in OPT:
            A.fs(100 + n)
        for ss in range(4):
            if n >= 1:
                mfma2(n - 1, ss)
            reads2(n, ss)
        if late:
            late.pop(0)()
        if 1 <= n <= 4:
            xd(2 * n - 2)
            xd(2 * n - 1)
        if n == 8:
            g_reads("g1", True, range(8))
        if n == 9:
            for q in range(8):
                A.e("v_mov_b32 %s, s86" % v(BO + 2 * q + 1))
        if NSSM + 1 <= n < NSSM + 9:
            A.lgw("g1")
            for r in (2 * (n - NSSM - 1), 2 * (n - NSSM - 1) + 1):
                A.e("v_mul_f32 %s, %s, %s" % (v(AS + r), v(GV + 2 * r), v(AS + r)))
        sp = PAR["ssp"]
        if 0 <= n - NSEND - 1 < sp:
            if n == NSEND + 1:
                A.fs(17)
            q0 = (n - NSEND - 1) * (4 // sp)
            send(range(q0, q0 + 4 // sp))
        if n == NSEND + 1 + sp:
            g_reads("g2", False, range(8))
        if NSEND + 6 <= n < NSEND + 10:
            A.lgw("g2")
            for r in range(4 * (n - NSEND - 6), 4 * (n - NSEND - 6) + 4):
                A.e("v_mul_f32 %s, %s, %s" % (v(AO + r), v(GV + 2 * r), v(AO + r)))
        if n == N - PAR["rl"]:
            recv_issue()
        if n == N - PAR["rc"]:
            A.fs(18)
            recv()
            A.fs(57)
    for ss in range(4):
        mfma2(N - 1, ss)
    A.fs(59)
    def unpack(q):
        A.e("v_and_b32 %s, 0xffff0000, %s" % (v(RV + 2 * q + 1), v(RV + 2 * q)))
        A.e("v_lshlrev_b32 %s, 16, %s" % (v(RV + 2 * q), v(RV + 2 * q)))
        A.e("v_add_f32 %s, %s, %s" % (v(AO + 2 * q + 1), v(AO + 2 * q + 1), v(RV + 2 * q + 1)))
        A.e("v_add_f32 %s, %s, %s" % (v(AO + 2 * q), v(AO + 2 * q), v(RV + 2 * q)))
    for q in range(3):
        unpack(q)
    for r in range(16):
        if r % 2 == 1 and r // 2 + 3 < 8:
            unpack(r // 2 + 3)
        A.e("v_fmac_f32 %s, %s, %s" % (v(AO + r), v(GV + 2 * r + 1), v(BO + r)))
        if r % 2 == 0:
            A.e("s_movk_i32 s6, %d" % (2048 * r))
        A.e("buffer_store_dword %s, v20, %s, s6 offen offset:%d%s" % (v(AO + r), s(rO, 4), 2048 * (r & 1), stmod("o")))
    A.fs(60)
    A.fs_end()
    A.dbg_end()
    A.e("s_endpgm")


def cpow(A, n_scale, dre, dim, t0, t1, va, vb):
    if n_scale == 1.0:
        A.e("v_exp_f32 %s, %s" % (t0, va))
        A.e("v_fract_f32 %s, %s" % (t1, vb))
    else:
        ns = n_scale if isinstance(n_scale, str) else "0x%x" % f2u(n_scale)
        A.e("v_mul_f32 %s, %s, %s" % (t0, ns, va))
        A.e("v_mul_f32 %s, %s, %s" % (t1, ns, vb))
        A.e("v_exp_f32 %s, %s" % (t0, t0))
        A.e("v_fract_f32 %s, %s" % (t1, t1))
    A.e("v_cos_f32 %s, %s" % (dre, t1))
    A.e("v_sin_f32 %s, %s" % (dim, t1))
    A.e("s_nop 0")
    A.e("v_mul_f32 %s, %s, %s" % (dre, dre, t0))
    A.e("v_mul_f32 %s, %s, %s" % (dim, dim, t0))


def cfma_ops(dr, di, mr, mi, xr, xi, ar, ai):
    return ["v_fma_f32 %s, %s, %s, %s" % (dr, mr, xr, ar),
            "v_fma_f32 %s, %s, %s, %s" % (di, mr, xi, ai),
            "v_fma_f32 %s, -%s, %s, %s" % (dr, mi, xi, dr),
            "v_fma_f32 %s, %s, %s, %s" % (di, mi, xr, di)]


def lane0_store(A, cond, val, srd_, soff, off, vt, vz, L):
    for x in cond:
        A.e(x)
    A.e("s_cbranch_scc1 " + L)
    A.cond = True
    A.e("v_mov_b32 %s, %s" % (vt, val))
    A.e("v_mov_b32 %s, 0" % vz)
    A.e("s_mov_b64 exec, 1")
    A.e("buffer_store_dword %s, %s, %s, %s offen offset:%d sc1" % (vt, vz, s(srd_, 4), soff, off))
    A.e("s_mov_b64 exec, -1")
    A.cond = False
    A.lab(L)


def role_S(A):
    A.vm, A.lg = [], []
    A.thr = 99
    A.lab("L_S")
    LR, LI, NLI = "v16", "v17", "v5"
    L16R, L16I, QR, QI, L256R, L256I = "v18", "v19", "v20", "v21", "v22", "v23"
    CR, CI, PR, PI = "v2", "v3", "v10", "v11"
    ER, EI, SR, SI = "v56", "v57", "v58", "v59"
    RE, IM, ACC, FB = 64, 80, 96, 32
    A.e("s_lshl_b32 s6, s5, 6")
    A.e("v_lshlrev_b32 v4, 1, v8")
    A.e("v_add_u32 v4, s6, v4")
    A.e("s_lshl_b32 s6, s5, 7")
    A.e("s_add_u32 s6, s6, 0x%x" % EP_OFF)
    A.e("v_mov_b32 v55, 0")
    if PAR["cpf"]:
        A.e("s_getpc_b64 s[44:45]")
        A.lab("L_pc")
        A.e("s_sub_u32 s44, s44, L_pc - %s_kernel" % NAME)
        A.e("s_subb_u32 s45, s45, 0")
        A.e("s_mov_b32 s46, L_code_end - %s_kernel" % NAME)
        A.e("s_mov_b32 s47, 0x20000")
        A.e("s_lshr_b32 s9, s2, 3")
        A.e("s_lshl_b32 s9, s9, 2")
        A.e("s_add_u32 s9, s9, s7")
        A.e("s_lshl_b32 s9, s9, 8")
        A.e("v_lshlrev_b32 v53, 7, v1")
        A.e("s_mov_b64 exec, 3")
        A.vmi("par", "buffer_load_dword v52, v53, s[44:47], s9 offen")
        A.e("s_mov_b64 exec, -1")
    A.e("s_waitcnt lgkmcnt(0)")
    A.vmi("par", "global_load_ushort v60, v4, %s" % s(sLRE, 2))
    A.vmi("par", "global_load_ushort v61, v4, %s" % s(sLIM, 2))
    A.vmi("par", "global_load_ushort v62, v4, %s" % s(sLDT, 2))
    srd(A, rEP, sWS, 4, "s6")
    A.vmi("par", "buffer_load_dword v54, v55, %s, 0 offen sc1" % s(rEP, 4))
    A.e("s_and_b32 s6, s4, 8")
    A.e("s_lshl_b32 s6, s6, 4")
    A.e("s_add_u32 s6, s6, 0x%x" % EPR_OFF)
    srd(A, rG, sWS, 4, "s6")
    A.vmi("par", "buffer_load_dword v56, v55, %s, 0 offen sc1" % s(rG, 4))
    if PAR["tlb"]:
        A.e("s_cmp_lg_u32 s7, 0")
        A.e("s_cbranch_scc1 L_S_notlb")
        A.e("v_lshlrev_b32 v53, 21, v1")
        A.e("s_mov_b64 exec, 1")
        for ptr in (sW1, sW3, sW2, sCRE, sCIM, sDS):
            A.e("global_load_dword v52, v55, %s" % s(ptr, 2))
        A.e("s_mov_b64 exec, 3")
        A.e("global_load_dword v52, v53, %s" % s(sOUT, 2))
        A.e("s_mov_b64 exec, 31")
        A.e("global_load_dword v52, v53, %s" % s(sWS, 2))
        A.e("s_mov_b64 exec, -1")
        A.lab("L_S_notlb")
    common_late(A)
    w_scalars(A)
    srd(A, rW1, sW1, 512 * 2752)
    srd(A, rW3, sW3, 512 * 2752)
    A.e("s_lshl_b32 s6, s5, 13")
    A.e("s_add_u32 s6, s6, 0x%x" % E_OFF)
    srd(A, rE, sWS, 8192, "s6")
    A.e("s_and_b32 s6, s4, 8")
    A.e("s_lshl_b32 s6, s6, 9")
    A.e("s_add_u32 s6, s6, 0x%x" % FL_OFF)
    srd(A, rFL, sWS, 4096, "s6")
    A.e("s_and_b32 s87, s4, 7")
    A.e("s_lshl_b32 s87, s87, 7")
    A.e("s_add_u32 s87, s87, s5")
    A.e("s_lshl_b32 s87, s87, 2")
    rCRE, rCIM, rW2 = 48, 52, 44
    srd(A, rCRE, sCRE, 524288)
    srd(A, rCIM, sCIM, 524288)
    A.e("s_add_u32 s82, s82, 65536")
    A.e("s_lshl_b32 s100, s5, 11")
    A.e("s_add_u32 s100, s100, s81")
    A.e("s_add_u32 s101, s100, 32768")
    A.e("v_lshlrev_b32 v4, 3, v0")
    A.e("v_add_u32 v4, %d, v4" % (MISC + 2048))
    A.e("v_mov_b32 v48, 0")
    A.e("v_mov_b32 v49, 0")
    A.e("ds_write_b64 v4, v[48:49]")
    A.e("ds_write_b32 v4, v48 offset:2048")
    A.e("s_lshl_b32 s6, s7, 1")
    A.e("v_add_u32 v63, s6, v9")
    A.e("v_sub_u32 v4, 7, v63")
    A.e("v_lshlrev_b32 v4, 8, v4")
    A.e("v_lshl_add_u32 v4, v8, 3, v4")
    A.e("v_add_u32 v4, %d, v4" % MISC)
    A.e("v_lshlrev_b32 v63, 4, v63")
    A.e("v_cvt_f32_u32 v63, v63")
    A.e("s_lshl_b32 s6, s7, 9")
    A.e("v_lshlrev_b32 v57, 7, v9")
    A.e("v_add_u32 v57, s6, v57")
    A.e("v_cvt_f32_u32 v57, v57")
    A.e("s_waitcnt lgkmcnt(0)")
    real, A.L = A.L, []
    ni0 = A.ni
    srd(A, rW2, sW2, 1376 * 1024)
    A.e("v_readfirstlane_b32 s14, v54")
    A.e("v_readfirstlane_b32 s86, v56")
    A.e("s_add_u32 s14, s14, 1")
    A.e("s_bitset1_b32 s14, 31")
    A.e("s_add_u32 s86, s86, 1")
    A.e("s_bitset1_b32 s86, 31")
    A.e("v_lshlrev_b32 v60, 16, v60")
    A.e("v_lshlrev_b32 v61, 16, v61")
    A.e("v_lshlrev_b32 v62, 16, v62")
    A.e("v_mul_f32 v62, 0x%x, v62" % f2u(LOG2E))
    A.e("v_exp_f32 v62, v62")
    A.e("s_nop 0")
    A.e("v_cvt_pk_bf16_f32 v62, v62, v62")
    A.e("v_and_b32 v62, 0xffff0000, v62")
    A.e("v_mul_f32 v50, v62, v60")
    A.e("v_mul_f32 v51, v62, v61")
    A.e("v_mul_f32 v50, 0x%x, v50" % f2u(LOG2E))
    A.e("v_mul_f32 v51, 0x%x, v51" % f2u(INV2PI))
    cpow(A, 1.0, LR, LI, "v52", "v53", "v50", "v51")
    cpow(A, 16.0, L16R, L16I, "v52", "v53", "v50", "v51")
    cpow(A, "v57", QR, QI, "v52", "v53", "v50", "v51")
    cpow(A, 256.0, L256R, L256I, "v52", "v53", "v50", "v51")
    cpow(A, "v63", PR, PI, "v52", "v53", "v50", "v51")
    A.e("v_sub_f32 %s, 0, %s" % (NLI, LI))
    A.e("v_mul_f32 v52, v60, v60")
    A.e("v_fmac_f32 v52, v61, v61")
    A.e("v_rcp_f32 v52, v52")
    A.e("v_add_f32 v53, -1.0, %s" % LR)
    A.e("v_mul_f32 %s, v53, v60" % CR)
    A.e("v_fmac_f32 %s, %s, v61" % (CR, LI))
    A.e("v_mul_f32 %s, %s, v60" % (CI, LI))
    A.e("v_fma_f32 %s, -v53, v61, %s" % (CI, CI))
    A.e("v_add_f32 v52, v52, v52")
    A.e("v_mul_f32 %s, %s, v52" % (CR, CR))
    A.e("v_mul_f32 %s, %s, v52" % (CI, CI))
    emit(A, ["v_lshlrev_b32 v54, 5, v8", "v_lshl_add_u32 v54, v9, 4, v54", "v_xor_b32 v55, 0x80, v54"])
    emit(A, ["s_lshl_b32 s6, s7, 2", "s_sub_u32 s6, s6, s4", "s_add_u32 s6, s6, 16",
             "v_add_u32 v62, s6, v9", "v_lshlrev_b32 v60, 9, v62", "v_lshl_add_u32 v60, v8, 4, v60",
             "v_sub_u32 v62, 17, v62", "v_and_b32 v62, -2, v62", "v_max_i32 v62, 0, v62", "v_min_i32 v62, 4, v62",
             "v_lshlrev_b32 v63, 3, v8", "v_add_u32 v63, %d, v63" % (MISC + 8192),
             "s_lshl_b32 s6, s7, 9", "v_lshl_add_u32 v61, v9, 8, v63", "v_add_u32 v61, s6, v61"])

    par_ops = [x.strip() for x in A.L]
    A.L, A.ni = real, ni0

    tiles = [0, 1]
    LA, LAF = PAR["la"], PAR["laf"]
    assert LA <= LAF <= 4
    assert LASTP + 1 <= PAR["estep"] <= PAR["cstep"] and PAR["cstep"] + 1 <= PAR["lastbar"] and PAR["cstep"] + 1 < PAR["hstep"] <= 15 and PAR["lastbar"] >= 13
    S = Stream(A, mk_items(ORD, 2, True), 4, PAR["sd"], PAR["sfill"])
    S.fence = LASTP + 1
    sw = []
    if PAR["dyn"]:
        S.dyn = True
        A.e("s_setprio 2")
    late = []
    dq = []
    for n in range(LASTP + LA + 1, 16):
        dq += [(n, f) for f in dma_ops(A, n, "v4", "v7", (0,) if PAR["split"] else (0, 1))]

    def dma_upto(m, maxops=999):
        while dq and dq[0][0] <= m and maxops > 0:
            dq.pop(0)[1]()
            maxops -= 1

    def ssm_publish():
        A.e("s_nop 7")
        A.e("s_nop 3")
        cur = (v(RE), v(IM))
        tmp = [("v48", "v49"), ("v50", "v51")]
        for r in range(1, 16):
            d = (ER, EI) if r == 15 else tmp[r & 1]
            emit(A, cfma_ops(d[0], d[1], LR, LI, cur[0], cur[1], v(RE + r), v(IM + r)))
            cur = d
        A.e("ds_write_b64 v4, v[56:57]")
        A.e("v_mov_b32 v48, %d" % (MISC + 4096))
        A.e("v_mov_b32 v49, 1")
        A.e("s_mov_b64 exec, 1")
        A.e("ds_add_u32 v48, v49")
        A.e("s_mov_b64 exec, -1")
        A.e("s_mov_b32 s13, 0")
        A.lab("L_S_sync")
        A.e("ds_read_b32 v49, v48")
        A.e("s_add_u32 s13, s13, 1")
        A.e("s_waitcnt lgkmcnt(0)")
        A.e("v_readfirstlane_b32 s6, v49")
        A.e("s_cmp_lt_u32 s13, 0x100000")
        A.e("s_cselect_b32 s6, s6, 4")
        A.e("s_cmp_lt_u32 s6, 4")
        A.e("s_cbranch_scc1 L_S_sync")
        A.lg = []
        er = lambda m: (24 + 2 * m if m < 4 else 32 + 2 * (m - 4))
        for m in range(6, -1, -1):
            A.lgi("er%d" % m, "ds_read_b64 %s, v4 offset:%d" % (v(er(m), 2), 256 * (m + 1)))
        cur = (v(er(6)), v(er(6) + 1))
        for m in range(5, -1, -1):
            d = (SR, SI) if m == 0 else tmp[m & 1]
            A.lgw("er%d" % m)
            emit(A, cfma_ops(d[0], d[1], L16R, L16I, cur[0], cur[1], v(er(m)), v(er(m) + 1)))
            cur = d
        A.e("s_cmp_lg_u32 s7, 3")
        A.e("s_cbranch_scc1 L_S_nopub")
        A.cond = True
        emit(A, cfma_ops("v24", "v26", L16R, L16I, SR, SI, ER, EI))
        A.e("v_mov_b32 v25, s14")
        A.e("v_mov_b32 v27, s14")
        A.e("s_sub_u32 s6, 15, s4")
        A.e("s_lshl_b32 s6, s6, 9")
        A.e("v_lshlrev_b32 v28, 4, v8")
        A.e("s_mov_b32 exec_lo, 0")
        A.e("buffer_store_dwordx4 v[24:27], v28, %s, s6 offen sc1" % s(rE, 4))
        A.e("s_mov_b64 exec, -1")
        A.cond = False
        A.lab("L_S_nopub")
        A.fs(56)
        emit(A, wdma_addr_ops("v4", "v7", "v48"))
        for r in range(16):
            t = "v%d" % (48 + (r & 3))
            S.fill += ["v_mul_f32 %s, %s, %s" % (t, CI, v(RE + r)), "v_mul_f32 %s, %s, %s" % (v(RE + r), CR, v(RE + r)),
                       "v_fma_f32 %s, -%s, %s, %s" % (v(RE + r), CI, v(IM + r), v(RE + r)), "v_fma_f32 %s, %s, %s, %s" % (v(IM + r), CR, v(IM + r), t)]
        if not PAR["coeff"]:
            S.flush()

    def e_issue(tag=None):
        for m in range(2):
            x = "buffer_load_dwordx4 %s, v60, %s, 0 offen offset:%d sc1" % (v(24 + 4 * m, 4), s(rE, 4), 1024 * m)
            if tag:
                A.vmi(tag, x)
            else:
                A.e(x)

    def e_check():
        A.fs(17)
        A.e("s_mov_b32 s13, 0")
        A.vmw("e")
        A.lab("L_S_poll")
        A.e("v_mov_b32 v48, 0")
        for q in range(4):
            A.e("v_cmp_eq_u32 s[%d:%d], s14, %s" % (18 + 2 * q, 19 + 2 * q, v(25 + 2 * q)))
        for q in range(4):
            A.e("v_addc_co_u32 v48, vcc, 0, v48, s[%d:%d]" % (18 + 2 * q, 19 + 2 * q))
        A.e("v_cmp_ne_u32 vcc, v62, v48")
        A.e("s_cbranch_vccz L_S_ready")
        A.cond = True
        A.e("s_sleep 2")
        e_issue()
        A.e("s_add_u32 s13, s13, 1")
        A.e("s_cmp_lt_u32 s13, 0x20000")
        A.e("s_waitcnt vmcnt(0)")
        A.e("s_cbranch_scc1 L_S_poll")
        A.cond = False
        A.lab("L_S_ready")
        emit(A, cfma_ops("v48", "v49", L256R, L256I, "v28", "v30", "v24", "v26"))
        A.e("v_mul_f32 v50, %s, v48" % QR)
        A.e("v_mul_f32 v51, %s, v49" % QR)
        A.e("v_fma_f32 v50, -%s, v49, v50" % QI)
        A.e("v_fmac_f32 v51, %s, v48" % QI)
        A.lgi("pw", "ds_write_b64 v61, v[50:51]")
        A.fs(18)

    def scan_ops():
        o = []
        pr = [24, 26, 28, 30, 48, 50, 52, 56]
        def prd():
            for q in range(8):
                A.lgi("pr", "ds_read_b64 %s, v63 offset:%d" % (v(pr[q], 2), 256 * q))
        bump = lambda: lane0_store(A, ["s_lshl_b32 s6, s7, 4", "s_add_u32 s6, s6, s4", "s_cmp_lg_u32 s6, 15"], "s14", rEP, "0", 0, "v60", "v61", "L_S_noep")
        o += [prd, bump, lambda: A.lgw("pr")]
        for (x, y) in ((0, 1), (2, 3), (4, 5), (6, 7), (0, 2), (4, 6), (4, 0)):
            o.append("v_add_f32 %s, %s, %s" % (v(pr[x]), v(pr[x]), v(pr[y])))
            o.append("v_add_f32 %s, %s, %s" % (v(pr[x] + 1), v(pr[x] + 1), v(pr[y] + 1)))
        o += cfma_ops("v50", "v51", PR, PI, "v48", "v49", SR, SI)
        o += ["v_mul_f32 v48, %s, v50" % CR, "v_mul_f32 v49, %s, v51" % CR, "v_fma_f32 v48, -%s, v51, v48" % CI, "v_fmac_f32 v49, %s, v50" % CI]
        cur = ("v48", "v49")
        for r in range(16):
            o.append("v_fmac_f32 %s, %s, %s" % (v(RE + r), LR, cur[0]))
            o.append("v_fmac_f32 %s, %s, %s" % (v(IM + r), LR, cur[1]))
            o.append("v_fmac_f32 %s, %s, %s" % (v(RE + r), NLI, cur[1]))
            o.append("v_fmac_f32 %s, %s, %s" % (v(IM + r), LI, cur[0]))
            cur = (v(RE + r), v(IM + r))
        for q in range(8):
            o.append("v_cvt_pk_bf16_f32 %s, %s, %s" % (v(RE + q), v(RE + 2 * q), v(RE + 2 * q + 1)))
        for q in range(8):
            o.append("v_cvt_pk_bf16_f32 %s, -%s, -%s" % (v(IM + q), v(IM + 2 * q), v(IM + 2 * q + 1)))
        def st(ks):
            A.vmi("hst", "buffer_store_dwordx4 %s, %s, %s, s%d offen offset:%d%s" % (v((RE, RE + 4, IM, IM + 4)[ks], 4), "v55" if ks & 1 else "v54", s(rAS, 4),
                                                                                   101 if ks >= 2 else 100, 1024 * (ks & 1), stmod()))
            if ks == 3:
                A.fs(19)
        for ks in range(4):
            o.append(lambda ks=ks: st(ks))
            o += [("gap",)] * PAR["stgap"]
        return o

    def prefetch_c():
        A.e("s_lshr_b32 s15, s5, 3")
        A.e("s_lshl_b32 s15, s15, 18")
        A.e("s_lshr_b32 s6, s2, 3")
        A.e("s_lshl_b32 s6, s6, 13")
        A.e("s_add_u32 s15, s15, s6")
        A.e("s_lshl_b32 s6, s7, 11")
        A.e("s_add_u32 s15, s15, s6")
        A.e("v_lshlrev_b32 v18, 7, v1")
        A.e("s_mov_b64 exec, 0xffff")
        A.vmi("pf", "buffer_load_dword v19, v18, %s, s15 offen" % s(rCRE, 4))
        A.vmi("pf", "buffer_load_dword v19, v18, %s, s15 offen" % s(rCIM, 4))
        A.e("s_mov_b64 exec, -1")

    def prefetch_w2():
        A.e("s_lshr_b32 s6, s2, 3")
        A.e("s_mul_i32 s15, s6, 43")
        A.e("s_mul_i32 s6, s7, 11")
        A.e("s_add_u32 s15, s15, s6")
        A.e("s_lshl_b32 s15, s15, 1")
        A.e("s_lshr_b32 s6, s5, 3")
        A.e("s_add_u32 s15, s15, s6")
        A.e("s_lshl_b32 s15, s15, 9")
        A.e("v_lshrrev_b32 v18, 2, v1")
        A.e("v_lshlrev_b32 v18, 3, v18")
        A.e("v_and_or_b32 v18, v1, 3, v18")
        A.e("v_lshlrev_b32 v18, 7, v18")
        A.e("s_mov_b32 exec_hi, 0xfff")
        A.vmi("pf", "buffer_load_dword v19, v18, %s, s15 offen" % s(rW2, 4))
        A.e("s_mov_b64 exec, -1")

    def spf_setup():
        n_ = PAR["spfn"]
        A.e("s_lshr_b32 s6, s2, 3")
        A.e("s_mul_i32 s30, s6, %d" % ((255 + n_) // n_))
        A.e("s_lshr_b32 s30, s30, 8")
        A.e("s_mul_i32 s30, s30, %d" % n_)
        A.e("s_sub_u32 s30, s6, s30")
        A.e("s_lshr_b32 s9, s5, 3")
        A.e("s_lshl_b32 s9, s9, 18")
        A.e("s_lshl_b32 s15, s6, 13")
        A.e("s_add_u32 s9, s9, s15")
        A.e("s_lshl_b32 s15, s7, 11")
        A.e("s_add_u32 s9, s9, s15")
        A.e("s_mul_i32 s15, s6, 43")
        A.e("s_mul_i32 s6, s7, 11")
        A.e("s_add_u32 s15, s15, s6")
        A.e("s_lshl_b32 s15, s15, 1")
        A.e("s_lshr_b32 s6, s5, 3")
        A.e("s_add_u32 s15, s15, s6")
        A.e("s_lshl_b32 s15, s15, 9")

    def spf_site(q, va='v18', vd='v19'):
        def f():
            A.e("s_cmp_lg_u32 s30, %d" % q)
            A.e("s_cbranch_scc1 L_spf%d" % q)
            A.cond = True
            A.e(("v_lshlrev_b32 v18, 7, v1").replace("v18", va).replace("v19", vd))
            A.e("s_mov_b64 exec, 0xffff")
            A.e(("buffer_load_dword v19, v18, %s, s9 offen" % s(rCRE, 4)).replace("v18", va).replace("v19", vd))
            A.e(("buffer_load_dword v19, v18, %s, s9 offen" % s(rCIM, 4)).replace("v18", va).replace("v19", vd))
            A.e("s_mov_b64 exec, -1")
            A.e(("v_lshrrev_b32 v18, 2, v1").replace("v18", va).replace("v19", vd))
            A.e(("v_lshlrev_b32 v18, 3, v18").replace("v18", va).replace("v19", vd))
            A.e(("v_and_or_b32 v18, v1, 3, v18").replace("v18", va).replace("v19", vd))
            A.e(("v_lshlrev_b32 v18, 7, v18").replace("v18", va).replace("v19", vd))
            A.e("s_mov_b32 exec_hi, 0xfff")
            A.e(("buffer_load_dword v19, v18, %s, s15 offen" % s(rW2, 4)).replace("v18", va).replace("v19", vd))
            A.e("s_mov_b64 exec, -1")
            A.cond = False
            A.lab("L_spf%d" % q)
        return f

    def warm_w():
        A.e("s_and_b32 s6, s83, 7")
        A.e("s_lshl_b32 s6, s6, 2")
        A.e("s_add_u32 s6, s6, s7")
        A.e("s_mul_i32 s6, s6, %d" % (16 * 2752))
        A.e("s_mul_i32 s13, s5, 192")
        A.e("s_add_u32 s6, s6, s13")
        A.e("s_add_u32 s6, s6, s92")
        A.e("v_lshrrev_b32 v52, 1, v8")
        A.e("v_mul_u32_u24 v52, 2752, v52")
        A.e("v_and_b32 v53, 1, v1")
        A.e("v_lshl_add_u32 v52, v53, 7, v52")
        A.e("s_mov_b32 exec_hi, 0")
        A.e("s_bitcmp1_b32 s4, 3")
        A.e("s_cbranch_scc1 L_ww3")
        A.e("buffer_load_dword v53, v52, %s, s6 offen" % s(rW1, 4))
        A.e("s_branch L_ww")
        A.lab("L_ww3")
        A.e("buffer_load_dword v53, v52, %s, s6 offen" % s(rW3, 4))
        A.lab("L_ww")
        A.e("s_mov_b64 exec, -1")

    if PAR["spf"] or PAR["mpf"] >= 0:
        spf_setup()
    if PAR["mpf"] >= 0:
        A.e("s_bfe_u32 s6, s2, 0x10002")
        A.e("s_lshl_b32 s6, s6, 1")
        A.e("s_and_b32 s30, s2, 1")
        A.e("s_add_u32 s30, s30, s6")
        A.e("s_sub_u32 s30, s30, s7")
    if PAR["pf"] and not PAR["spf"] and not PAR["fpf"]:
        dq.append((PAR["pfc"] + LAF, prefetch_c))
        if PAR["pfw"] <= 15:
            dq.append((PAR["pfw"] + LAF, prefetch_w2))

    N = len(P2_SEQ)
    LA2 = PAR["ala"]
    assert LA2 <= NA - 2

    rAs_, rAo_ = 56, 60

    def p2_setup1():
        tile_of(A, "s11", "s10", "s31")
        if PAR["p2map"]:
            A.e("s_and_b32 s6, s4, 3")
            A.e("s_lshl_b32 s13, s6, 1")
            A.e("s_add_u32 s13, s13, s10")
            A.e("s_mul_i32 s14, s6, 3")
            A.e("s_mul_i32 s6, s10, 11")
        else:
            A.e("s_and_b32 s6, s10, 3")
            A.e("s_lshl_b32 s13, s6, 1")
            A.e("s_add_u32 s13, s13, s4")
            A.e("s_mul_i32 s14, s6, 3")
            A.e("s_and_b32 s6, s4, 7")
            A.e("s_mul_i32 s6, s6, 11")
        A.e("s_lshr_b32 s6, s6, 3")
        A.e("s_add_u32 s14, s14, s6")
        A.e("s_sub_u32 s6, s14, 11")
        A.e("s_cmp_ge_u32 s14, 11")
        A.e("s_cselect_b32 s14, s6, s14")
        A.e("s_lshl_b32 s9, s7, 11")
        A.e("s_cmp_lg_u32 s11, 0")
        A.e("s_cselect_b64 %s, %s, %s" % (s(rCRE, 2), s(sCIM, 2), s(sCRE, 2)))
        A.e("v_and_b32 v11, 7, v1")
        A.e("v_lshrrev_b32 v22, 3, v1")
        A.e("v_lshrrev_b32 v10, 4, v1")
        A.e("v_xor_b32 v10, v10, v11")
        A.e("v_lshlrev_b32 v10, 4, v10")
        A.e("v_lshl_add_u32 v4, v22, 10, v10")
        A.e("s_lshl_b32 s6, s7, 14")
        A.e("s_lshl_b32 s12, s10, 16")
        A.e("s_add_u32 s12, s12, s6")
        A.e("v_add_u32 v4, s12, v4")
        A.e("v_xor_b32 v5, 64, v4")
        A.e("v_add_u32 v5, 8192, v5")

    def p2_setup2():
        A.e("s_and_b32 s12, s7, 1")
        A.e("s_lshr_b32 s15, s7, 1")
        A.e("s_lshl_b32 s15, s15, 11")
        A.e("s_lshl_b32 s8, s12, 12")
        A.e("s_add_u32 s8, s8, s15")
        A.e("s_lshl_b32 s6, s11, 15")
        A.e("s_add_u32 s6, s6, s15")
        A.e("v_add_u32 v2, s6, v6")
        A.e("s_mul_i32 s6, s11, 45056")
        A.e("s_add_u32 s6, s6, s15")
        A.e("s_add_u32 s6, s6, 65536")
        A.e("v_add_u32 v23, s6, v6")
        A.e("s_lshl_b32 s6, s31, 1")
        A.e("s_add_u32 s6, s6, s11")
        A.e("s_lshl_b32 s6, s6, 1")
        A.e("s_add_u32 s6, s6, s12")
        A.e("s_xor_b32 s15, s6, 2")
        A.e("s_mul_i32 s6, s6, %d" % (NKS * 1024))
        A.e("s_mul_i32 s15, s15, %d" % (NKS * 1024))
        srd(A, rAo_, sWS, NKS * 1024, "s6")
        srd(A, rAs_, sWS, NKS * 1024, "s15")
        A.e("v_bfe_u32 v10, v1, 4, 1")
        A.e("v_lshlrev_b32 v10, 2, v10")
        A.e("v_xor_b32 v10, v10, v11")
        A.e("v_lshlrev_b32 v10, 4, v10")
        A.e("v_lshl_add_u32 v3, v22, 10, v10")
        A.e("s_lshl_b32 s6, s7, 14")
        A.e("s_lshl_b32 s12, s10, 7")
        A.e("s_add_u32 s12, s12, s6")
        A.e("s_mul_i32 s6, s11, %d" % (704 * 1024))
        A.e("s_add_u32 s12, s12, s6")
        A.e("v_add_u32 v3, s12, v3")
        A.e("v_add_u32 v7, 8192, v3")
        A.e("v_and_b32 v17, 15, v1")
        A.e("s_and_b32 s6, s31, 7")
        A.e("s_lshl_b32 s6, s6, 9")
        A.e("v_lshl_add_u32 v17, v17, 2, s6")

    def idx(kind, m):
        if kind == "C":
            A.e("s_add_u32 s12, s13, %d" % m)
            A.e("s_and_b32 s12, s12, 7")
        else:
            A.e("s_add_u32 s12, s14, %d" % m)
            A.e("s_sub_u32 s6, s12, 11")
            A.e("s_cmp_ge_u32 s12, 11")
            A.e("s_cselect_b32 s12, s6, s12")

    def dma_w(q):
        kind, m, u, first, free = P2_W[q]
        idx(kind, m)
        A.e("s_lshl_b32 s12, s12, %d" % (16 if kind == "W" else 7))
        r_, va, vb = (rW2, "v3", "v7") if kind == "W" else (rCRE, "v4", "v5")
        A.e("s_add_u32 m0, s9, %d" % (u * 8192))
        A.e("s_nop 0")
        A.vmi("w%d" % first, "buffer_load_dwordx4 %s, %s, s12 offen lds" % (va, s(r_, 4)))
        A.e("s_add_u32 m0, s9, %d" % (u * 8192 + 1024))
        A.e("s_nop 0")
        A.vmi("w%d" % first, "buffer_load_dwordx4 %s, %s, s12 offen lds" % (vb, s(r_, 4)))

    def dma_g(tag):
        srd(A, rEP, sWS, 16384, "0x%x" % G_OFF)
        A.e("s_lshl_b32 s12, s31, 2")
        A.e("s_add_u32 s12, s12, s7")
        A.e("s_lshl_b32 s12, s12, 8")
        A.e("s_lshl_b32 s6, s7, 8")
        A.e("s_add_u32 m0, s6, %d" % GU)
        A.e("s_mov_b64 exec, 0xffff")
        A.vmi(tag, "buffer_load_dwordx4 v6, %s, s12 offen sc1 lds" % s(rEP, 4))
        A.e("s_mov_b64 exec, -1")

    def dma_a(n):
        kind, m, hf, u = P2_SEQ[n]
        if kind == "X":
            srd(A, rE, sX, 2048 * 1024)
            A.e("s_lshl_b32 s6, s31, 1")
            A.e("s_add_u32 s6, s6, s11")
            A.e("s_lshl_b32 s6, s6, 2")
            A.e("s_add_u32 s6, s6, s7")
            A.e("s_lshl_b32 s6, s6, 14")
            A.e("s_lshl_b32 s12, s10, 7")
            A.e("s_add_u32 s12, s12, s6")
            A.e("v_and_b32 v10, 7, v1")
            A.e("v_lshlrev_b32 v10, 4, v10")
            A.e("v_lshl_add_u32 v10, v22, 10, v10")
            A.e("s_add_u32 m0, s9, %d" % AU(n))
            A.e("s_add_u32 s6, s12, 8192")
            A.vmi("a%d" % n, "buffer_load_dwordx4 v10, %s, s12 offen lds" % s(rE, 4))
            A.e("s_add_u32 m0, s9, %d" % (AU(n) + 1024))
            A.e("s_nop 0")
            A.vmi("a%d" % n, "buffer_load_dwordx4 v10, %s, s6 offen lds" % s(rE, 4))
            srd(A, rEP, sDS, 1024)
            A.e("s_lshl_b32 s12, s10, 7")
            A.e("s_mov_b32 m0, %d" % (GU + 1024))
            A.e("s_mov_b64 exec, 0xff")
            A.vmi("a%d" % n, "buffer_load_dwordx4 v6, %s, s12 offen lds" % s(rEP, 4))
            A.e("s_mov_b64 exec, -1")
            return
        idx(kind, m)
        A.e("s_lshl_b32 s12, s12, 12")
        A.e("s_add_u32 m0, s8, %d" % AU(n))
        A.e("s_nop 0")
        va, r_ = ("v23" if kind == "W" else "v2"), (rAs_ if hf == "s" else rAo_)
        A.vmi("a%d" % n, "buffer_load_dwordx4 %s, %s, s12 offen sc1 lds" % (va, s(r_, 4)))
        A.vmi("a%d" % n, "buffer_load_dwordx4 %s, %s, s12 offen offset:1024 sc1 lds" % (va, s(r_, 4)))

    def check(tag, off, L):
        A.e("s_mov_b32 s15, 0")
        A.vmw(tag)
        A.lab(L + "_poll")
        A.e("v_cmp_ne_u32 vcc, s86, v16")
        A.e("s_cbranch_vccz %s_go" % L)
        A.e("s_sleep %d" % PAR["slp"])
        A.e("buffer_load_dword v16, v17, %s, 0 offen offset:%d sc1" % (s(rFL, 4), off))
        A.e("s_add_u32 s15, s15, 1")
        A.e("s_cmp_lt_u32 s15, 0x20000")
        A.e("s_waitcnt vmcnt(0)")
        A.e("s_cbranch_scc1 %s_poll" % L)
        A.lab(L + "_go")

    def pre(b):
        kind, c = ORD[b]
        slot = slot_of(b)
        if b == 0 and PAR["wpf"] == 99:
            warm_w()
        if b == 0 and PAR["mpf"] == 99:
            spf_site(0, "v52", "v53")()
        if b == LASTP + 1:
            S.flush()
            S.K = PAR["sfill"]
            ssm_publish()
            A.thr = PAR["thr"]
        if b == PAR["cstep"] + 1:
            S.flush()
            A.lgw("pw")
        if b == PAR["cstep"] + 2:
            assert "pr" not in A.lg
        dma_upto(min(b - 1 + LA, 15) if b != PAR["lastbar"] else 15)
        if kind == "P":
            A.e("v_add_u32 v28, %d, v7" % slot)
            A.e("v_xor_b32 v29, 32, v28")
            A.e("v_xor_b32 v30, 64, v28")
            A.e("v_xor_b32 v31, 0x60, v28")
            for q in range(4):
                A.e("v_add_u32 %s, s8, %s" % (v(24 + q), v(28 + q)))
        else:
            A.e("v_add_u32 v14, %d, v12" % slot)
            A.e("v_add_u32 v15, %d, v13" % slot)
        A.fs2(20 + b)
        A.vmw("ch%d" % (b if b != PAR["lastbar"] else 15))
        A.fs2(36 + b)

    def hflag():
        assert "hst" in A.vm or True
        A.vmw("hst")
        A.e("v_mov_b32 v24, %d" % (LDS_CNT))
        A.e("v_mov_b32 v25, 1")
        A.e("s_mov_b64 exec, 1")
        A.lgi("hc", "ds_add_rtn_u32 v26, v24, v25")
        A.e("s_mov_b64 exec, -1")

    def hflag2():
        A.lgw("hc")
        A.e("v_readfirstlane_b32 s6, v26")
        lane0_store(A, ["s_cmp_lg_u32 s6, 3"], "s86", rFL, "s87", 0, "v24", "v25", "L_S_nofl")
        A.fs(57)

    def post(b):
        A.fs(b)
        if b == 1:
            S.fill += [lambda: A.vmw("par")] + par_ops
            S.K = PAR["pfill"]
        if b == PAR["wpf"]:
            warm_w()
        if b == PAR["mpf"]:
            spf_site(0, "v52", "v53")()
        if PAR["spf"] and 0 <= b - PAR["spf0"] < PAR["spfn"]:
            spf_site(b - PAR["spf0"])()
        if b == PAR["estep"]:
            e_issue("e")
        if b == PAR["cstep"]:
            S.fill += [("gap",)] * PAR["cdelay"] + [e_check]
        if b == PAR["cstep"] + 1:
            S.fill += scan_ops()
            S.K = PAR["sfill2"]
        if b == PAR["hstep"]:
            S.fill += [hflag, ("gap",), hflag2]
        if b == PAR["lastbar"]:
            assert PAR["lastbar"] == 14 and PAR["nt"] <= 2 and 2 <= PAR["ew"] <= 6
            S.fill += [p2_setup1, ("gap",)]
            if PAR["xe"]:
                S.fill += [lambda: dma_a(0), ("gap",)]
            for n in range(PAR["ew"]):
                S.fill += [lambda n=n: dma_w(n), ("gap",)]
            S.fill += [p2_setup2]

    def read(it, sl, tag):
        n, ss, ti = it
        kind, c = ORD[n]
        if kind == "P":
            if ti == 0:
                A.lgi(tag, "ds_read_b128 %s, %s" % (a(16 * c + 4 * ss, 4), v(24 + ss)))
            A.lgi(tag, "ds_read_b128 %s, %s offset:%d" % (v(FB + 4 * sl, 4), v(28 + ss), 16384 + 4096 * ti))
        else:
            T = tiles[ti]
            for nn in range(2):
                A.lgi(tag, "ds_read_b64_tr_b16 %s, v%d offset:%d" % (v(FB + 4 * sl + 2 * nn, 2), 14 + (T & 1),
                                                                    ss * 6144 + (T >> 1) * 1024 + nn * 256))

    def mfma(it, sl):
        n, ss, ti = it
        kind, c = ORD[n]
        first = (c == 0 and ss == 0)
        if kind == "P":
            d = (RE, IM)[ti]
            A.e("v_mfma_f32_32x32x16_bf16 %s, %s, %s, %s" % (v(d, 16), a(16 * c + 4 * ss, 4), v(FB + 4 * sl, 4), "0" if first else v(d, 16)))
        else:
            d = ACC + 16 * ti
            A.e("v_mfma_f32_32x32x16_bf16 %s, %s, %s, %s" % (v(d, 16), v(FB + 4 * sl, 4), a(16 * c + 4 * ss, 4), "0" if first else v(d, 16)))

    def after(it, mp):
        n, ss, ti = it
        if n == 15 and ss == 3:
            S.fill.append(("dist", S.ninstr()))
            sw.append(swiglu_ops(A, ACC + 16 * ti, 1024 * ti, False, late if ti >= 2 - PAR["defS"] else None))
        if n > LASTP and (not PAR["split"] or mp % 2 == 0):
            dma_upto(S.nb - 1 + LAF, 1)

    S.pre, S.post, S.read, S.mfma, S.after = pre, post, read, mfma, after
    S.run()
    assert not dq
    A.fs(16)
    A.vmi("poll", "buffer_load_dword v16, v17, %s, 0 offen sc1" % s(rFL, 4))
    S.flush()
    emit(A, sw[0])
    A.fs(58)
    A.thr = PAR["thr2"]
    check("poll", 0, "L_p2a")
    A.fs(55)
    for n in range(PAR["xe"], PAR["ea"]):
        dma_a(n)
    dma_g("g")
    emit(A, sw[1])
    wn, an = PAR["ew"], PAR["ea"]
    for n in range(N):
        mark0 = len(A.L)
        A.vmw("w%d" % n)
        A.vmw("a%d" % n)
        if n == 8:
            A.vmw("g")
        if n == PAR["fl2"]:
            assert not late
            A.vmw("st")
        A.e("s_barrier")
        mark1 = len(A.L)
        A.fs(20 + n) if n < 35 else None
        if n == PAR["fl2"]:
            lane0_store(A, ["s_cmp_lg_u32 s3, 0"], "s86", rFL, "s87", 256, "v10", "v11", "L_p2_nofl")
        if n == PAR["chk2"]:
            check("poll2", 256, "L_p2b")
        if n == PAR["p2poll"]:
            A.vmi("poll2", "buffer_load_dword v16, v17, %s, 0 offen offset:256 sc1" % s(rFL, 4))
        if "burn" in OPT:
            for q in range(PAR["burn"]):
                A.e("ds_read_b128 v[%d:%d], v6 offset:%d" % (24 + 4 * (q & 7), 27 + 4 * (q & 7), 1024 * q + 8192 * (n % 6)))
        if "burnv" in OPT:
            for q in range(PAR["burn"]):
                A.e("v_fma_f32 v%d, v%d, v%d, v%d" % (24 + (q & 15), 64 + (q & 31), 96 + (q & 31), 24 + (q & 15)))
        budget = 3 if n == PAR["chk2"] else 2
        while budget > 0:
            a_ok = an < N and an <= n + LA2 and (an < NSSM or n >= PAR["chk2"])
            w_ok = wn < len(P2_W) and P2_W[wn][4] <= n
            if a_ok and not (w_ok and P2_W[wn][3] < an):
                dma_a(an); an += 1
            elif w_ok:
                dma_w(wn); wn += 1
            else:
                break
            budget -= 1
        if late and n >= 1 and n % 2 == 1:
            late.pop(0)()
        if PAR["pf"] and not PAR["spf"] and not PAR["fpf"] and PAR["pfw"] > 15 and n == PAR["pfw2"]:
            prefetch_w2()
        assert (an > n + 1 or an == N) and (wn == len(P2_W) or P2_W[wn][3] > n + 1)
        if PAR["hoist"]:
            k = mark1
            while k < len(A.L) and A.L[k].split()[0] in ("s_add_u32", "s_and_b32", "s_lshl_b32", "s_sub_u32", "s_cmp_ge_u32", "s_cselect_b32", "s_nop"):
                k += 1
            if k < len(A.L) and A.L[k].split()[0] == "buffer_load_dwordx4":
                lead = [x for x in A.L[mark1:k] if "s_nop" not in x]
                A.L[mark0:k] = lead + A.L[mark0:mark1]
    assert an == N and wn == len(P2_W)
    A.e("s_or_b32 s6, s87, s7")
    A.e("s_cmp_lg_u32 s6, 0")
    A.e("s_cbranch_scc1 L_p2_noep")
    A.e("v_lshrrev_b32 v10, 4, v1")
    A.e("v_and_b32 v17, 15, v1")
    A.e("v_lshlrev_b32 v17, 2, v17")
    A.e("v_lshl_add_u32 v17, v10, 9, v17")
    for off, L in ((256, "L_p2c"), (2048 + 256, "L_p2d")):
        A.vmi("pe", "buffer_load_dword v16, v17, %s, 0 offen offset:%d sc1" % (s(rFL, 4), off))
        check("pe", off, L)
    lane0_store(A, ["s_cmp_lg_u32 s7, 0"], "s86", rG, "0", 0, "v10", "v11", "L_p2_noep")
    A.fs_end()
    A.e("s_endpgm")


def gen_all(A):
    K = NAME + "_kernel"
    A.L.append(".globl %s\n.p2align 8\n.type %s,@function\n%s:" % (K, K, K))
    prologue(A)
    role_F(A)
    fm = A.L[A.fmain:]
    del A.L[A.fmain:]
    role_S(A)
    A.L += fm
    A.lab("L_end")
    A.e("s_endpgm")
    A.lab("L_code_end")


def kd(name, nv, acc, ns=102):
    return """.amdhsa_kernel %s
  .amdhsa_next_free_vgpr %d
  .amdhsa_next_free_sgpr %d
  .amdhsa_accum_offset %d
  .amdhsa_group_segment_fixed_size 0
  .amdhsa_kernarg_size 136
  .amdhsa_user_sgpr_count 2
  .amdhsa_user_sgpr_kernarg_segment_ptr 1
  .amdhsa_system_sgpr_workgroup_id_x 1
.end_amdhsa_kernel
""" % (name, nv, ns, acc)


def main(path):
    ref = open("cdna_kernels/%s.s.ref" % NAME).read().splitlines()
    head = [l for l in ref if l.startswith(";") and "@launch" not in l and "Override launch" not in l and "grid=ceil" not in l]
    head = head[:18]
    A = Asm()
    gen_all(A)
    out = head + [
        "; @launch grid=(256,1,1) block=(512,1,1) lds=%d" % K1_LDS,
        '.amdgcn_target "amdgcn-amd-amdhsa--gfx950"', ".text"] + A.L + [
        '.section .rodata,"a"', ".p2align 6", kd(NAME + "_kernel", 256, 128)]
    open(path, "w").write("\n".join(out))


if __name__ == "__main__":
    if "--stamp" in sys.argv:
        STAMP = True
        sys.argv.remove("--stamp")
    for x in list(sys.argv):
        if x.startswith("-O"):
            OPT.add(x[2:]); sys.argv.remove(x)
        elif x.startswith("-U"):
            OPT.discard(x[2:]); sys.argv.remove(x)
        elif x.startswith("-P"):
            kk, vv = x[2:].split("=")
            PAR[kk] = vv if kk.startswith("ord") else int(vv)
            sys.argv.remove(x)
    main(sys.argv[1] if len(sys.argv) > 1 else "cdna_kernels/%s.s" % NAME)
```

```python
import sys, struct

NAME = "gated_mix__ssm_conv_s5__glu_gated_swiglu__prompt"

def f2u(x):
    return struct.unpack("<I", struct.pack("<f", x))[0]

LOG2E = 1.4426950408889634
INV2PI = 0.15915494309189535

NKS = 150
A_BYTES = 64 * NKS * 1024
E_OFF = 0xA00000
G_OFF = 0xA20000
EP_OFF = 0xA30000


EPR_OFF = 0xA31000
FL_OFF = 0xA40000

XB_OFF = 0xC00000

STAMP = False
OPT = {"asc0", "asc1", "osc0", "osc1", "xsc1"}
ST_OFF = 0xB00000

class Asm:
    def __init__(self):
        self.L = []
        self.ni = 0
        self.cond = False
        self.thr = 99
        self.vm = []
        self.lg = []

    def e(self, s):
        if "nomfma" in OPT and s.startswith("v_mfma"):
            s = "s_nop 0"
        if "nolds" in OPT and s.startswith("ds_read"):
            s = "s_nop 0"
        if "nohst" in OPT and s.startswith("buffer_store_dwordx4") and ("s100" in s or "s101" in s):
            s = "s_nop 0"
        if "noHst" in OPT and s.startswith("buffer_store_dwordx4") and ("s82" in s or "s87" in s):
            s = "s_nop 0"
        if "noout" in OPT and s.startswith("buffer_store_dword ") and "v20," in s:
            s = "s_nop 0"
        if "notw" in OPT and s.startswith("ds_write_b128"):
            s = "s_nop 0"
        if "noscan" in OPT and s.startswith("v_fmac_f32"):
            return
        if "m16" in OPT and s.startswith("v_mfma_f32_32x32x16"):
            import re as _re
            m_ = _re.match(r"v_mfma_f32_32x32x16_bf16 v\[(\d+):\d+\], (\S+), (\S+), (\S+)", s)
            d_ = int(m_.group(1)); self.m16 = getattr(self, "m16", 0) + 1
            for q_ in range(2):
                dd = d_ + 4 * (2 * ((self.m16 >> 2) & 1) + q_)
                self.L.append("  v_mfma_f32_16x16x32_bf16 v[%d:%d], %s, %s, %s" % (dd, dd + 3, m_.group(2), m_.group(3), "0" if m_.group(4) == "0" else "v[%d:%d]" % (dd, dd + 3)))
                self.ni += 1
            return
        self.L.append("  " + s)
        if not self.cond:
            self.ni += 1

    def c(self, s):
        pass

    def lab(self, s):
        self.L.append(s + ":")

    def fs2(self, n):
        if "vw" in OPT:
            self.fs(n, True)

    def fs(self, n, vw=False):
        if "hold" in OPT and n == PAR["probe"]:
            self.e("s_memrealtime s[96:97]")
            return
        if "vw" in OPT and not vw and 20 <= n < 55:
            return
        if "so" in OPT and n != 61:
            return
        if STAMP and ("light" not in OPT or n in (0, 7, 9, 13, 15, 16, 19, 20, 36, 55, 58, 59, 61)):
            self.e("%s s[98:99]" % ("s_memrealtime" if "rt" in OPT else "s_memtime"))
            self.e("s_waitcnt lgkmcnt(0)")
            self.lg = []
            self.e("s_sub_u32 s98, s98, s96")
            self.e("v_writelane_b32 v0, s98, %d" % n)

    def dbg_end(self):
        if "hold2" in OPT:
            self.e("s_load_dwordx2 s[8:9], s[0:1], 120")
            self.e("s_waitcnt vmcnt(0) lgkmcnt(0)")
            self.e("s_mov_b32 s10, 256")
            self.e("s_mov_b32 s11, 0x20000")
            self.e("s_not_b32 s12, s94")
            self.e("v_mov_b32 v2, s12")
            self.e("v_mov_b32 v1, 0")
            self.e("s_mov_b64 exec, 1")
            self.e("s_cmp_lg_u32 s7, 0")
            self.e("s_cbranch_scc1 L_hold_a")
            self.e("buffer_atomic_umax v2, v1, s[8:11], 0 offen")
            self.lab("L_hold_a")
            self.e("s_sleep 4")
            self.e("s_memrealtime s[98:99]")
            self.e("s_waitcnt lgkmcnt(0)")
            self.e("s_sub_u32 s98, s98, s94")
            self.e("s_cmp_lt_u32 s98, 4000")
            self.e("s_cbranch_scc1 L_hold_a")
            self.e("buffer_load_dword v2, v1, s[8:11], 0 offen sc1")
            self.e("s_waitcnt vmcnt(0)")
            self.e("v_readfirstlane_b32 s94, v2")
            self.e("s_not_b32 s94, s94")
        if "hold" in OPT:
            self.lab("L_hold")
            self.e("s_sleep 4")
            self.e("s_memrealtime s[98:99]")
            self.e("s_waitcnt lgkmcnt(0)")
            self.e("s_sub_u32 s98, s98, s%d" % (96 if PAR["probe"] >= 0 else 94))
            self.e("s_cmp_lt_u32 s98, %d" % PAR["hold"])
            self.e("s_cbranch_scc1 L_hold")
        if "dbg" in OPT:
            self.e("s_waitcnt vmcnt(0)")
            self.e("s_memrealtime s[98:99]")
            self.e("s_memtime s[92:93]")
            self.e("s_load_dwordx2 s[8:9], s[0:1], 120")
            self.e("s_waitcnt lgkmcnt(0)")
            self.e("s_mov_b32 s10, 256")
            self.e("s_mov_b32 s11, 0x20000")
            self.e("s_not_b32 s94, s94")
            self.e("s_sub_u32 s92, s92, s96")
            self.e("v_mov_b32 v2, s94")
            self.e("v_mov_b32 v3, s98")
            self.e("v_mov_b32 v4, s92")
            self.e("v_mov_b32 v1, 0")
            self.e("s_cmp_lg_u32 s7, 0")
            self.e("s_cbranch_scc1 L_dbg_done")
            self.e("s_mov_b64 exec, 1")
            self.e("buffer_atomic_umax v2, v1, s[8:11], 0 offen")
            self.e("buffer_atomic_umax v3, v1, s[8:11], 0 offen offset:4")
            self.e("buffer_atomic_umax v4, v1, s[8:11], 0 offen offset:8")
            self.lab("L_dbg_done")

    def stamp_begin(self):
        if STAMP or "dbg" in OPT or "hold" in OPT:
            self.e("s_memrealtime s[94:95]")
            self.e("%s s[96:97]" % ("s_memrealtime" if "rt" in OPT else "s_memtime"))

    def fs_end(self):
        if STAMP:
            self.e("s_waitcnt vmcnt(0)")
            self.fs(61)
            self.e("s_memrealtime s[98:99]")
            self.e("s_waitcnt lgkmcnt(0)")
            self.e("v_writelane_b32 v0, s94, 62")
            self.e("v_writelane_b32 v0, s98, 63")
            self.e("s_add_u32 s8, s%d, 0x%x" % (sWS, ST_OFF))
            self.e("s_addc_u32 s9, s%d, 0" % (sWS + 1))
            self.e("s_mov_b32 s10, 0x80000")
            self.e("s_mov_b32 s11, 0x20000")
            self.e("s_lshl_b32 s6, s2, 11")
            self.e("s_lshl_b32 s12, s3, 8")
            self.e("s_add_u32 s6, s6, s12")
            self.e("v_lshlrev_b32 v1, 2, v1")
            self.e("buffer_store_dword v0, v1, s[8:11], s6 offen")

    def throttle(self, k):
        if len(self.vm) > k:
            self.e("s_waitcnt vmcnt(%d)" % k)
            self.vm = self.vm[len(self.vm) - k:] if k else []

    def vmi(self, tag, s, cold=False):
        self.throttle(self.thr)
        if cold and "nt" in OPT:
            s = s.replace(" lds", " nt lds") if s.endswith(" lds") else s + " nt"
        self.e(s)
        self.vm.append(tag)
        assert len(self.vm) <= 63, "too many vmem ops in flight"

    def vmw(self, tag, extra=""):
        idx = [i for i, t in enumerate(self.vm) if t == tag]
        if not idx:
            return None
        n = len(self.vm) - 1 - idx[-1]
        self.vm = self.vm[idx[-1] + 1:]
        self.e("s_waitcnt vmcnt(%d)%s" % (n, extra))
        return n

    def lgi(self, tag, s):
        self.e(s)
        self.lg.append(tag)

    def lgw(self, tag):
        idx = [i for i, t in enumerate(self.lg) if t == tag]
        if not idx:
            return
        n = len(self.lg) - 1 - idx[-1]
        self.lg = self.lg[idx[-1] + 1:]
        self.e("s_waitcnt lgkmcnt(%d)" % min(n, 15))

    def lgw0(self):
        if self.lg:
            self.e("s_waitcnt lgkmcnt(0)")
        self.lg = []


def stmod(pre="a"):
    return "".join(" " + m for m in ("sc0", "sc1", "nt") if pre + m in OPT)

def v(a, n=1):
    return "v%d" % a if n == 1 else "v[%d:%d]" % (a, a + n - 1)

def a(a_, n=1):
    return "a%d" % a_ if n == 1 else "a[%d:%d]" % (a_, a_ + n - 1)

def s(a_, n=1):
    return "s%d" % a_ if n == 1 else "s[%d:%d]" % (a_, a_ + n - 1)


def srd(A, d, base, nbytes, addlo=None):
    if addlo is None:
        A.e("s_mov_b32 s%d, s%d" % (d, base))
        A.e("s_mov_b32 s%d, s%d" % (d + 1, base + 1))
    else:
        A.e("s_add_u32 s%d, s%d, %s" % (d, base, addlo))
        A.e("s_addc_u32 s%d, s%d, 0" % (d + 1, base + 1))
    A.e("s_mov_b32 s%d, 0x%x" % (d + 2, nbytes))
    A.e("s_mov_b32 s%d, 0x20000" % (d + 3))


SLOT = 24576
NSLOT = 6
MISC = SLOT * NSLOT
K1_LDS = 163840
OOB = 0x40000000
LDS_CNT = MISC + 4096 + 8

ORD = [("P", c) for c in range(8)] + [("F", c) for c in range(8)]
LASTP = 7
def slot_of(n):
    return ((n % NSLOT) if n >= 8 else (4, 5, 0, 1)[n & 3]) * SLOT
PAR = dict(la=2, laf=4, nt=2, estep=9, cstep=10, hstep=14, cdelay=0, stgap=1, fd=5, sd=3, ffill=6, sfill=10, sfill2=14,
           rot=1, pf=1, cpf=1, pfc=11, pfw=11, ala=5, wla=8, urot=1, p2poll=10, chk2=12, fl2=5, slp=8, prio=0, hold=4000, pk=1, gam=0, lastbar=14, hsp=0, xstep=6, map=1, defF=2, defS=1, e0=3, pfw2=2, coeff=0, g0=46, spf=0, spf0=9, spfn=6, spfgap=2, mpf=-1, wpf=-1, tlb=0, thr=99, thr2=99, thrp=99, stag=0, sper=4, dyn=0, split=1, fgap=4, probe=-1, ew=6, ea=3, dph=0, pfill=3, fpf=1, burn=4, hoist=1, rl=4, rc=1, ssp=2, p2map=1, xe=1, ct1=0, ct2=0, ct3=0, b2=99)

sX, sLRE, sLIM, sBRE, sBIM, sCRE, sCIM, sLDT = 16, 18, 20, 22, 24, 26, 28, 30
sW1, sW3, sW2, sGW, sDS, sWS, sOUT = 32, 34, 36, 38, 40, 42, 84
rX, rBRE, rBIM, rW1, rW3, rAS, rE, rEP, rG, rFL = 44, 48, 52, 56, 60, 64, 68, 72, 76, 88


def swiglu_ops(A, acc, off, pk, defer=None):
    o = []
    if pk:
        for r in range(0, 8, 2):
            o.append("v_pk_mul_f32 %s, %s, %s" % (v(acc + 8 + r, 2), v(acc + r, 2), v(acc + 8 + r, 2)))
        for r in range(0, 8, 2):
            o.append("v_pk_mul_f32 %s, %s, s[80:81] op_sel_hi:[1,0]" % (v(acc + r, 2), v(acc + r, 2)))
        for r in range(8):
            o.append("v_exp_f32 %s, %s" % (v(acc + r), v(acc + r)))
        for r in range(0, 8, 2):
            o.append("v_pk_add_f32 %s, %s, 1.0 op_sel_hi:[1,0]" % (v(acc + r, 2), v(acc + r, 2)))
        for r in range(8):
            o.append("v_rcp_f32 %s, %s" % (v(acc + r), v(acc + r)))
        for r in range(0, 8, 2):
            o.append("v_pk_mul_f32 %s, %s, %s" % (v(acc + 8 + r, 2), v(acc + 8 + r, 2), v(acc + r, 2)))
        for q in range(4):
            o.append("v_cvt_pk_bf16_f32 %s, %s, %s" % (v(acc + q), v(acc + 8 + 2 * q), v(acc + 9 + 2 * q)))
        (o if defer is None else defer).append(lambda: A.vmi("st", "buffer_store_dwordx4 %s, v6, %s, %s offen offset:%d%s" % (v(acc, 4), s(rAS, 4), "s87" if off >= 2048 else "s82", off, stmod())))
        return o
    for r in range(8):
        o.append("v_mul_f32 %s, %s, %s" % (v(acc + 8 + r), v(acc + r), v(acc + 8 + r)))
    for r in range(8):
        o.append("v_mul_f32 %s, s80, %s" % (v(acc + r), v(acc + r)))
    for r in range(8):
        o.append("v_exp_f32 %s, %s" % (v(acc + r), v(acc + r)))
    for r in range(8):
        o.append("v_add_f32 %s, 1.0, %s" % (v(acc + r), v(acc + r)))
    for r in range(8):
        o.append("v_rcp_f32 %s, %s" % (v(acc + r), v(acc + r)))
    for r in range(8):
        o.append("v_mul_f32 %s, %s, %s" % (v(acc + 8 + r), v(acc + 8 + r), v(acc + r)))
    for q in range(4):
        o.append("v_cvt_pk_bf16_f32 %s, %s, %s" % (v(acc + q), v(acc + 8 + 2 * q), v(acc + 9 + 2 * q)))
    (o if defer is None else defer).append(lambda: A.vmi("st", "buffer_store_dwordx4 %s, v6, %s, %s offen offset:%d%s" % (v(acc, 4), s(rAS, 4), "s87" if off >= 2048 else "s82", off, stmod())))
    return o


class Stream:
    def __init__(self, A, items, NB, D, K):
        self.A, self.items, self.NB, self.D, self.K = A, items, NB, D, K
        self.nb = 0
        self.rp = 0
        self.fill = []
        self.fence = -1
        self.dyn = False
        self.hold = 0

    def ninstr(self):
        return self.A.ni

    def pop(self, k):
        while k > 0 and self.fill:
            f = self.fill[0]
            if isinstance(f, tuple):
                if f[0] == "gap":
                    self.fill.pop(0)
                    return
                if f[0] == "bar" and self.nb <= f[1]:
                    return
                if f[0] == "dist" and self.ninstr() - f[1] < 12:
                    return
                self.fill.pop(0)
                continue
            self.fill.pop(0)
            if isinstance(f, str):
                self.A.e(f)
            else:
                f()
            k -= 1

    def flush(self):
        while self.fill:
            f = self.fill[0]
            if isinstance(f, tuple):
                if f[0] in ("bar", "gap"):
                    assert f[0] == "gap" or self.nb > f[1]
                    self.fill.pop(0)
                    continue
                d = 12 - (self.ninstr() - f[1])
                if d > 0:
                    self.A.e("s_nop %d" % (d - 1))
                self.fill.pop(0)
                continue
            self.pop(1)

    def barrier(self, n):
        while self.nb <= n:
            b = self.nb
            self.pre(b)
            lim = b - 1 if b == PAR["lastbar"] else b - 2
            old = [t for t in self.A.lg if t[0] == "c" and int(t[1:].split("_")[0]) <= lim]
            if b <= PAR["lastbar"]:
                if old:
                    self.A.lgw(old[-1])
                self.A.e("s_barrier")
            self.nb += 1
            self.post(b)

    def reads(self, upto, force):
        while self.rp < min(upto, len(self.items)):
            it = self.items[self.rp]
            if not force and (it[0] > self.nb or (it[0] == self.fence and self.nb <= it[0])):
                return
            self.barrier(it[0])
            self.read(it, self.rp % self.NB, "c%d_%d" % (it[0], self.rp))
            self.rp += 1

    def run(self):
        for mp, it in enumerate(self.items):
            if self.rp <= mp:
                self.reads(mp + 1, True)
                self.reads(mp + 1 + self.D, False)
            self.A.lgw("c%d_%d" % (it[0], mp))
            self.mfma(it, mp % self.NB)
            self.after(it, mp)
            self.reads(min(mp + 1 + self.D, self.rp + 2), False)
            if self.dyn and self.fill:
                n0 = len(self.A.L)
                self.A.e("s_setprio 0")
                self.pop(self.K)
                if len(self.A.L) == n0 + 1:
                    self.A.L.pop(); self.A.ni -= 1
                else:
                    self.A.e("s_setprio 2")
            else:
                self.pop(self.K)
        self.barrier(15)


def mk_items(ORD, ntile, withP):
    NT = PAR["nt"]
    items = []
    for n in range(16 - NT):
        if ORD[n][0] == "P" and not withP:
            continue
        for ss in range(4):
            for ti in range(ntile):
                items.append((n, ss, ti))
    for t0 in range(0, ntile, 2):
        for n in range(16 - NT, 16):
            assert ORD[n][0] == "F"
            for ss in range(4):
                for ti in (t0, t0 + 1):
                    items.append((n, ss, ti))
    return items


def emit(A, ops):
    for x in ops:
        if isinstance(x, str):
            A.e(x)
        else:
            x()


def code_srd(A, r, L):
    A.e("s_lshr_b32 s6, s2, 3")
    A.e("s_lshl_b32 s6, s6, 2")
    A.e("s_add_u32 s6, s6, s7")
    A.e("s_lshl_b32 s6, s6, 9")
    A.e("s_getpc_b64 s[%d:%d]" % (r, r + 1))
    A.lab(L)
    A.e("s_sub_u32 s%d, s%d, %s - %s_kernel" % (r, r, L, NAME))
    A.e("s_subb_u32 s%d, s%d, 0" % (r + 1, r + 1))
    A.e("s_add_u32 s%d, s%d, s6" % (r, r))
    A.e("s_addc_u32 s%d, s%d, 0" % (r + 1, r + 1))
    A.e("s_sub_i32 s%d, L_code_end - %s_kernel, s6" % (r + 2, NAME))
    A.e("s_max_i32 s%d, s%d, 0" % (r + 2, r + 2))
    A.e("s_mov_b32 s%d, 0x20000" % (r + 3))


def code_touch(A, r, va, vd, tag):
    A.e("s_mov_b64 exec, 15")
    A.vmi(tag, "buffer_load_dword %s, %s, %s, 0 offen sc1" % (vd, va, s(r, 4)))
    A.e("s_mov_b64 exec, -1")


def prologue(A):
    A.e("s_cmp_ge_u32 s2, 256")
    A.e("s_cbranch_scc1 L_end")
    A.stamp_begin()
    A.e("s_load_dwordx16 s[16:31], s[0:1], 0")
    A.e("s_load_dwordx8 s[32:39], s[0:1], 80")
    A.e("s_load_dwordx2 s[42:43], s[0:1], 128")
    A.e("s_load_dwordx2 s[40:41], s[0:1], 64")
    A.e("s_load_dwordx2 s[84:85], s[0:1], 112")
    A.e("v_lshrrev_b32 v2, 6, v0")
    A.e("v_and_b32 v1, 63, v0")
    A.e("v_readfirstlane_b32 s3, v2")
    if PAR["map"] == 0:
        A.e("s_bfe_u32 s4, s2, 0x20001")
        A.e("s_lshl_b32 s4, s4, 2")
        A.e("s_bfe_u32 s6, s2, 0x20003")
        A.e("s_add_u32 s4, s4, s6")
        A.e("s_and_b32 s5, s2, 1")
        A.e("s_lshl_b32 s5, s5, 3")
        A.e("s_lshr_b32 s6, s2, 5")
        A.e("s_add_u32 s5, s5, s6")
    else:
        A.e("s_bfe_u32 s4, s2, 0x10002")
        A.e("s_lshl_b32 s4, s4, 3")
        A.e("s_bfe_u32 s6, s2, 0x30003")
        A.e("s_add_u32 s4, s4, s6")
        A.e("s_and_b32 s5, s2, 3")
        A.e("s_lshl_b32 s5, s5, 2")
        A.e("s_lshr_b32 s6, s2, 6")
        A.e("s_add_u32 s5, s5, s6")
    A.e("s_and_b32 s7, s3, 3")
    A.e("v_and_b32 v8, 31, v1")
    A.e("v_lshrrev_b32 v9, 5, v1")
    A.e("s_lshl_b32 s8, s7, 12")
    if PAR["rot"]:
        A.e("s_add_u32 s15, s4, s5")
        A.e("s_and_b32 s15, s15, 1")
        if PAR["map"]:
            A.e("s_add_u32 s83, s4, s5")
            if PAR["dph"]:
                A.e("s_and_b32 s6, s2, 1")
                A.e("s_add_u32 s83, s83, s6")
        elif PAR["gam"]:
            A.e("s_sub_u32 s83, s4, s15")
            A.e("s_lshl_b32 s83, s83, 1")
        else:
            A.e("s_lshl_b32 s83, s4, 1")
        A.e("s_add_u32 s83, s83, s5")
    else:
        A.e("s_mov_b32 s83, 0")
    A.e("s_cmp_lt_u32 s3, 4")
    A.e("s_cbranch_scc1 L_S")


def tile_of(A, half, ct, r2):
    if PAR["p2map"]:
        A.e("s_and_b32 %s, s4, 11" % r2)
        A.e("s_lshr_b32 %s, s5, 3" % half)
        A.e("s_lshl_b32 %s, %s, 2" % (half, half))
        A.e("s_add_u32 %s, %s, %s" % (r2, r2, half))
        A.e("s_and_b32 %s, s4, 4" % ct)
    else:
        A.e("s_mov_b32 %s, s4" % r2)
        A.e("s_lshr_b32 %s, s5, 3" % ct)
        A.e("s_lshl_b32 %s, %s, 2" % (ct, ct))
    A.e("s_and_b32 %s, s5, 3" % half)
    A.e("s_add_u32 %s, %s, %s" % (ct, ct, half))
    A.e("s_bfe_u32 %s, s5, 0x10002" % half)


def piece_base(d, tmp):
    return ["s_lshr_b32 %s, s5, 2" % tmp, "s_mul_i32 %s, s5, 3" % d, "s_sub_u32 %s, %s, %s" % (d, d, tmp)]


def common_late(A):
    A.e("s_mov_b32 s80, 0x%x" % f2u(-LOG2E))
    A.e("v_bfe_u32 v10, v1, 1, 3")
    A.e("v_xor_b32 v10, v10, v9")
    A.e("v_lshlrev_b32 v10, 4, v10")
    A.e("v_lshl_add_u32 v7, v8, 7, v10")
    A.e("v_bfe_u32 v10, v1, 4, 1")
    A.e("v_mul_u32_u24 v12, 3104, v10")
    A.e("v_lshlrev_b32 v11, 9, v9")
    A.e("v_add_u32 v12, v12, v11")
    A.e("v_bfe_u32 v11, v1, 2, 2")
    A.e("v_lshl_add_u32 v12, v11, 6, v12")
    A.e("v_and_b32 v11, 3, v1")
    A.e("v_lshl_add_u32 v12, v11, 3, v12")
    A.e("v_xor_b32 v13, 32, v12")
    A.e("v_lshlrev_b32 v6, 4, v1")
    A.e("s_lshl_b32 s6, s4, 2")
    A.e("s_add_u32 s6, s6, s7")
    A.e("s_mul_i32 s81, s6, %d" % (NKS * 1024))
    emit(A, piece_base("s6", "s82"))
    A.e("s_lshl_b32 s6, s6, 11")
    A.e("s_add_u32 s82, s81, s6")
    srd(A, rAS, sWS, A_BYTES)


def w_scalars(A):
    A.e("s_mul_i32 s10, s7, 6144")
    A.e("s_cmp_ge_u32 s5, 15")
    A.e("s_cselect_b32 s92, 0x%x, 0" % OOB)
    A.e("s_and_b32 s93, s5, 3")
    A.e("s_cmp_eq_u32 s93, 3")
    A.e("s_cselect_b32 s93, 0x%x, 0" % OOB)


def wdma_addr_ops(d1, d3, tmp):
    return ["v_lshrrev_b32 %s, 2, v1" % tmp, "s_lshl_b32 s6, s7, 4", "v_add_u32 %s, s6, %s" % (tmp, tmp),
            "v_mul_u32_u24 %s, 2752, %s" % (d1, tmp)] + piece_base("s6", "s11") + ["s_lshl_b32 s6, s6, 6", "v_add_u32 %s, s6, %s" % (d1, d1),
            "v_and_b32 %s, 3, v1" % tmp, "v_lshl_add_u32 %s, %s, 4, %s" % (d1, tmp, d1), "v_xor_b32 %s, 32, %s" % (d3, d1)]


def dma_ops(A, n, w1, w3, mats=(0, 1)):
    kind, c = ORD[n]
    slot = slot_of(n)
    tag = "ch%d" % n
    ops = []
    def mk(pre, m0, ins, gap="s_nop 0"):
        def f():
            for x in pre:
                A.e(x)
            A.e(m0)
            A.e(gap)
            A.vmi(tag, ins)
        return f
    if kind == "P":
        pre = ["s_add_u32 s11, s83, %d" % c, "s_and_b32 s11, s11, 7", "s_lshl_b32 s11, s11, 7", "s_add_u32 s12, s11, 8192"]
        for q in range(4):
            ops.append(mk(pre if q == 0 else [], "s_add_u32 m0, s8, %d" % (slot + 1024 * q),
                          "buffer_load_dwordx4 %s, %s, s%d offen lds" % ("v3" if q & 1 else "v2", s(rX, 4), 12 if q >= 2 else 11)))
        ops.append(mk([], "s_add_u32 m0, s9, %d" % (slot + 16384), "buffer_load_dwordx4 v4, %s, s11 offen lds" % s(rBRE, 4)))
        ops.append(mk([], "s_add_u32 m0, s9, %d" % (slot + 20480), "buffer_load_dwordx4 v4, %s, s11 offen lds" % s(rBIM, 4)))
    else:
        pre = ["s_add_u32 s11, s83, %d" % c, "s_and_b32 s11, s11, 7", "s_mul_i32 s11, s11, 176128"]
        for m in mats:
            for q in range(3):
                ops.append(mk(pre if m == mats[0] and q == 0 else [], "s_add_u32 m0, s10, %d" % (slot + m * 3072 + 1024 * q - 64 * q),
                              "buffer_load_dwordx4 %s, %s, s%d offen offset:%d lds" % (w3 if m else w1, s(rW3 if m else rW1, 4), 12 if q else 11, 64 * q),
                              "s_add_u32 s12, s11, s%d" % (91 + q) if q else "s_nop 0"))
    return ops


P2_SEQ = [("X", 0, "o", None), ("C", 0, "s", 0), ("C", 1, "s", 1)]
for m_ in range(2, 8):
    P2_SEQ += [("C", m_, "s", m_), ("C", m_, "o", m_)]
NSSM = len(P2_SEQ)
FU = [8, 9, 10, 11, 0, 1, 2, 3, 4, 5, 6]
P2_SEQ += [("W", m_, "s", FU[m_]) for m_ in range(11)]
NSEND = len(P2_SEQ) - 1
P2_SEQ += [("C", 0, "o", -1), ("C", 1, "o", -2)] + [("W", m_, "o", FU[m_]) for m_ in range(11)]
P2_W = []
for n_, (k_, m_, h_, u_) in enumerate(P2_SEQ):
    if h_ == "s":
        prev = [q for q in range(n_) if P2_SEQ[q][3] == u_]
        P2_W.append((k_, m_, u_, n_, prev[0] + 2 if prev else (-1 if u_ < 6 else 0)))
NA = 7
GU = 19 * 8192
def p2_real(n):
    return n < PAR["b2"] or (n - PAR["b2"]) % 2 == 0
def AU(n): return (12 + n % NA) * 8192


def role_F(A):
    A.vm, A.lg = [], []
    A.thr = PAR["thrp"]
    ACC, FB = 64, 32
    LA = PAR["la"]
    if PAR["prio"] or PAR["dyn"]:
        A.e("s_setprio 1")
    A.e("v_lshrrev_b32 v10, 4, v1")
    A.e("v_and_b32 v11, 7, v1")
    A.e("v_xor_b32 v10, v10, v11")
    A.e("v_lshlrev_b32 v10, 4, v10")
    A.e("v_bfe_u32 v11, v1, 3, 2")
    A.e("v_lshl_add_u32 v2, v11, 10, v10")
    A.e("v_lshl_add_u32 v2, v9, 14, v2")
    A.e("s_lshl_b32 s6, s7, 15")
    A.e("v_add_u32 v2, s6, v2")
    A.e("v_xor_b32 v3, 64, v2")
    A.e("v_add_u32 v3, 4096, v3")
    A.e("s_lshl_b32 s9, s7, 10")
    A.e("s_and_b32 s6, s7, 1")
    A.e("s_lshl_b32 s6, s6, 6")
    A.e("v_xor_b32 v4, s6, v10")
    A.e("v_lshrrev_b32 v11, 3, v1")
    A.e("v_lshl_add_u32 v4, v11, 10, v4")
    A.e("s_lshl_b32 s6, s7, 13")
    A.e("v_add_u32 v4, s6, v4")
    emit(A, wdma_addr_ops("v5", "v16", "v10"))
    w_scalars(A)
    A.e("s_lshl_b32 s6, s4, 17")
    A.e("s_lshl_b32 s13, s5, 15")
    A.e("s_waitcnt lgkmcnt(0)")
    A.fs(52)
    if PAR["gam"]:
        srd(A, rW1, sW1, 512 * 2752)
        srd(A, rW3, sW3, 512 * 2752)
    if PAR["gam"]:
        assert LA == 2
        A.e("s_cmp_lg_u32 s15, 0")
        A.e("s_cbranch_scc1 L_F_now")
        emit(A, dma_ops(A, 8, "v5", "v16") + dma_ops(A, 9, "v5", "v16"))
        A.vm = []
        A.lab("L_F_now")
    srd(A, rX, sX, 131072, "s6")
    d0 = dma_ops(A, 0, "v5", "v16")
    emit(A, d0[:4])
    srd(A, rBRE, sBRE, 32768, "s13")
    srd(A, rBIM, sBIM, 32768, "s13")
    emit(A, d0[4:])
    A.fs(53)
    A.e("s_lshl_b32 s6, s5, 3")
    A.e("s_lshl_b32 s13, s7, 1")
    A.e("s_add_u32 s13, s13, s6")
    A.e("s_lshl_b32 s6, s13, 10")
    A.e("v_lshlrev_b32 v17, 4, v8")
    A.e("v_lshl_add_u32 v18, v9, 10, v17")
    A.e("v_add_u32 v18, s6, v18")
    A.vmi("g", "buffer_load_dwordx4 v[64:67], v18, %s, 0 offen" % s(rX, 4))
    A.vmi("g", "buffer_load_dwordx4 v[68:71], v18, %s, 0 offen offset:512" % s(rX, 4))
    A.vmi("g", "global_load_dwordx4 v[72:75], v17, %s" % s(sGW, 2))
    A.vmi("g", "global_load_dwordx4 v[76:79], v17, %s offset:512" % s(sGW, 2))
    A.e("s_and_b32 s6, s4, 8")
    A.e("s_lshl_b32 s6, s6, 4")
    A.e("s_add_u32 s6, s6, 0x%x" % EPR_OFF)
    srd(A, rFL, sWS, 4, "s6")
    A.e("v_mov_b32 v88, 0")
    A.vmi("g", "buffer_load_dword v87, v88, %s, 0 offen sc1" % s(rFL, 4))
    emit(A, dma_ops(A, 1, "v5", "v16"))
    A.fs(54)
    srd(A, rW1, sW1, 512 * 2752)
    srd(A, rW3, sW3, 512 * 2752)
    common_late(A)
    srd(A, rG, sWS, 16384, "0x%x" % G_OFF)
    A.e("v_add_u32 v7, s8, v7")
    A.e("s_add_u32 s82, s82, %d" % (65536 + 2048))
    A.e("s_add_u32 s87, s82, s93")
    A.e("s_add_u32 s82, s82, s92")
    A.e("s_branch L_Fmain")
    A.fmain = len(A.L)
    A.lab("L_Fmain")

    def g_ops():
        o = [lambda: A.vmw("g"), "v_readfirstlane_b32 s86, v87", "v_mov_b32 v84, 0", "s_add_u32 s86, s86, 1", "s_bitset1_b32 s86, 31"]
        for d in range(8):
            xx, ww = 64 + d, 72 + d
            o += ["v_lshlrev_b32 v80, 16, %s" % v(xx), "v_and_b32 v81, 0xffff0000, %s" % v(xx),
                  "v_lshlrev_b32 v82, 16, %s" % v(ww), "v_and_b32 v83, 0xffff0000, %s" % v(ww),
                  "v_mul_f32 v80, v80, v82", "v_mul_f32 v81, v81, v83", "v_cvt_pk_bf16_f32 v80, v80, v81",
                  "v_lshlrev_b32 v81, 16, v80", "v_and_b32 v80, 0xffff0000, v80",
                  "v_add_f32 v84, v84, v81", "v_add_f32 v84, v84, v80"]
        for sh in (1, 2, 4, 8):
            o += ["s_nop 1", "v_add_f32_dpp v84, v84, v84 row_shr:%d row_mask:0xf bank_mask:0xf bound_ctrl:0" % sh]
        o += ["s_nop 1", "v_add_f32_dpp v84, v84, v84 row_bcast:15 row_mask:0xa bank_mask:0xf",
              "v_cvt_pk_bf16_f32 v84, v84, v84", "v_and_b32 v84, 0xffff0000, v84", "v_mul_f32 v84, s80, v84",
              "v_exp_f32 v84, v84", "s_nop 0", "v_add_f32 v84, 1.0, v84", "v_rcp_f32 v84, v84", "s_nop 0",
              "v_cvt_pk_bf16_f32 v84, v84, v84", "v_and_b32 v84, 0xffff0000, v84",
              "v_sub_f32 v85, 1.0, v84", "v_cvt_pk_bf16_f32 v85, v85, v85", "v_and_b32 v85, 0xffff0000, v85"]
        return o

    def g_store():
        A.e("s_lshl_b32 s6, s4, 7")
        A.e("s_add_u32 s6, s6, s13")
        A.e("s_lshl_b32 s6, s6, 3")
        A.e("v_lshlrev_b32 v86, 3, v9")
        A.e("s_mov_b32 exec_lo, 0x80000000")
        A.e("s_mov_b32 exec_hi, 0x80000000")
        A.vmi("gst", "buffer_store_dwordx2 v[84:85], v86, %s, s6 offen%s" % (s(rG, 4), stmod()))
        A.e("s_mov_b64 exec, -1")

    gq = g_ops()
    rO = 68
    A.e("s_and_b32 s72, s7, 1")
    A.e("s_lshr_b32 s73, s7, 1")
    tile_of(A, "s6", "s74", "s75")
    A.e("s_lshl_b32 s75, s75, 1")
    A.e("s_add_u32 s75, s75, s6")
    A.e("s_lshl_b32 s75, s75, 1")
    A.e("s_add_u32 s75, s75, s72")
    A.e("s_lshl_b32 s75, s75, 16")
    A.e("s_lshl_b32 s74, s74, 1")
    A.e("s_add_u32 s74, s74, s73")
    A.e("s_lshl_b32 s74, s74, 7")
    A.e("s_add_u32 s75, s75, s74")
    A.e("v_lshlrev_b32 v20, 15, v9")
    A.e("v_lshl_add_u32 v20, v8, 2, v20")
    A.e("v_add_u32 v20, s75, v20")
    srd(A, rO, sOUT, 2048 * 2048)
    A.e("s_lshl_b32 s6, s72, 12")
    A.e("s_add_u32 s6, s6, %d" % AU(0))
    A.e("v_add_u32 v17, s6, v6")
    A.e("v_subrev_u32 v18, s8, v7")
    A.e("s_lshl_b32 s6, s73, 12")
    A.e("v_add_u32 v18, s6, v18")
    A.e("v_bfe_u32 v10, v1, 2, 2")
    A.e("v_lshlrev_b32 v19, 7, v10")
    A.e("v_lshl_add_u32 v19, v9, 9, v19")
    A.e("v_bfe_u32 v10, v1, 4, 1")
    A.e("v_lshl_add_u32 v19, v10, 5, v19")
    A.e("v_and_b32 v10, 3, v1")
    A.e("v_lshl_add_u32 v19, v10, 3, v19")
    A.e("v_bfe_u32 v10, v1, 3, 1")
    A.e("v_xor_b32 v10, s73, v10")
    A.e("v_lshl_add_u32 v19, v10, 6, v19")
    A.e("s_lshl_b32 s6, s73, 6")
    A.e("v_lshl_add_u32 v23, v8, 1, s6")
    A.e("s_lshl_b32 s6, s72, 1")
    A.e("v_add_u32 v10, s6, v9")
    A.e("v_lshl_add_u32 v21, v10, 11, v23")
    A.e("v_add_u32 v21, %d, v21" % AU(0))
    A.e("s_bfe_u32 s6, s5, 0x10002")
    A.e("s_lshl_b32 s6, s6, 9")
    A.e("s_add_u32 s6, s6, %d" % GU)
    A.e("v_lshl_add_u32 v22, v10, 7, s6")
    A.e("v_add_u32 v23, %d, v23" % (GU + 1024))
    A.e("s_lshl_b32 s100, s5, 2")
    A.e("s_add_u32 s100, s100, s7")
    A.e("s_lshl_b32 s100, s100, 12")
    A.e("s_xor_b32 s101, s100, 0x10000")
    A.e("v_bfe_u32 v10, v1, 4, 1")
    A.e("v_mul_u32_u24 v11, 1152, v10")
    A.e("v_lshl_add_u32 v11, v9, 8, v11")
    A.e("v_bfe_u32 v10, v1, 2, 2")
    A.e("v_lshl_add_u32 v11, v10, 5, v11")
    A.e("v_and_b32 v10, 1, v1")
    A.e("v_lshl_add_u32 v11, v10, 4, v11")
    A.e("v_bfe_u32 v10, v1, 1, 1")
    A.e("v_lshl_add_u32 v11, v10, 3, v11")
    A.e("s_lshl_b32 s6, s72, 12")
    A.e("s_add_u32 s6, s6, %d" % AU(0))
    A.e("v_add_u32 v11, s6, v11")
    A.e("v_xor_b32 v10, 0x80, v11")

    tiles = [2, 3, 4, 5]
    S = Stream(A, mk_items(ORD, 4, False), 8, PAR["fd"], PAR["ffill"])
    late = []
    dq = []
    if PAR["split"]:
        for n in range(LASTP + LA + 1, 16):
            dq += [(n, f) for f in dma_ops(A, n, "v5", "v16", (1,))]

    def pf_setup():
        code_srd(A, 52, "L_pc2")
        srd(A, 44, sW2, 1376 * 1024)
        A.e("s_bitcmp1_b32 s5, 2")
        A.e("s_cselect_b64 s[48:49], %s, %s" % (s(sCIM, 2), s(sCRE, 2)))
        A.e("s_cselect_b32 s15, 704, 0")
        A.e("s_mov_b32 s50, 0x80000")
        A.e("s_mov_b32 s51, 0x20000")
        A.e("s_lshr_b32 s6, s2, 3")
        A.e("s_mul_i32 s14, s6, 22")
        A.e("s_add_u32 s15, s15, s14")
        A.e("s_mul_i32 s14, s7, 11")
        A.e("s_lshr_b32 s14, s14, 1")
        A.e("s_add_u32 s15, s15, s14")
        if PAR["p2map"]:
            A.e("s_lshl_b32 s15, s15, 10")
            A.e("s_lshl_b32 s9, s6, 2")
            A.e("s_add_u32 s9, s9, s7")
            A.e("s_lshl_b32 s9, s9, 12")
            A.e("v_lshlrev_b32 v2, 7, v1")
            A.e("v_mov_b32 v3, v2")
            return
        A.e("s_lshl_b32 s15, s15, 1")
        A.e("s_lshr_b32 s14, s5, 3")
        A.e("s_add_u32 s15, s15, s14")
        A.e("s_lshl_b32 s15, s15, 9")
        A.e("s_lshl_b32 s9, s14, 18")
        A.e("s_lshl_b32 s6, s6, 13")
        A.e("s_add_u32 s9, s9, s6")
        A.e("s_lshl_b32 s6, s7, 11")
        A.e("s_add_u32 s9, s9, s6")
        A.e("v_lshlrev_b32 v2, 7, v1")
        A.e("v_lshrrev_b32 v3, 2, v1")
        A.e("v_lshlrev_b32 v3, 3, v3")
        A.e("v_and_or_b32 v3, v1, 3, v3")
        A.e("v_lshlrev_b32 v3, 7, v3")

    def pf_c():
        A.e("s_mov_b32 exec_hi, 0" if PAR["p2map"] else "s_mov_b64 exec, 0xffff")
        A.vmi("pf", "buffer_load_dword v4, v2, s[48:51], s9 offen")
        A.e("s_mov_b64 exec, -1")
        if PAR["ct1"]:
            code_touch(A, 52, "v2", "v4", "pf")

    def pf_w():
        A.e("s_mov_b32 exec_hi, 0xffff" if PAR["p2map"] else "s_mov_b64 exec, 0xffffff")
        A.vmi("pf", "buffer_load_dword v4, v3, s[44:47], s15 offen")
        A.e("s_mov_b64 exec, -1")

    if PAR["pf"] and PAR["fpf"]:
        dq += sorted([(PAR["pfc"] + PAR["laf"], pf_c), (PAR["pfw"] + PAR["laf"], pf_w)], key=lambda x: x[0])

    def dma_upto(m, maxops=999):
        while dq and dq[0][0] <= m and maxops > 0:
            dq.pop(0)[1]()
            maxops -= 1

    def waddr(n):
        return ((14, 15), (28, 29), (30, 31))[n % 3]

    def pre(b):
        kind, c = ORD[b]
        slot = slot_of(b)
        if b == LASTP + 1:
            emit(A, gq)
            g_store()
            if PAR["pf"] and PAR["fpf"]:
                pf_setup()
            A.e("s_lshl_b32 s6, s4, 18")
            A.e("s_add_u32 s6, s6, 0x%x" % XB_OFF)
            srd(A, rFL, sWS, 262144, "s6")
        dma_upto(min(b - 1 + LA, 15) if b != PAR["lastbar"] else 15)
        if b == 10:
            A.vmw("gst")
        if b == PAR["lastbar"]:
            A.vmw("ch15")
        if kind == "P":
            A.e("v_add_u32 v24, %d, v7" % slot)
            A.e("v_xor_b32 v25, 32, v24")
            A.e("v_xor_b32 v26, 64, v24")
            A.e("v_xor_b32 v27, 0x60, v24")
        else:
            A.e("v_add_u32 v%d, %d, v12" % (waddr(b)[0], slot))
            A.e("v_add_u32 v%d, %d, v13" % (waddr(b)[1], slot))
        A.fs2(20 + b)
        A.vmw("ch%d" % b)
        if PAR["gam"] and b == 7:
            A.e("s_cmp_lg_u32 s15, 0")
            A.e("s_cbranch_scc1 L_F_w7")
            A.e("s_waitcnt vmcnt(0)")
            A.lab("L_F_w7")
        A.fs2(36 + b)

    def post(b):
        kind, c = ORD[b]
        A.fs(b)
        if kind == "P":
            for ss in range(4):
                A.lgi("c%d_x" % b, "ds_read_b128 %s, %s" % (a(16 * c + 4 * ss, 4), v(24 + ss)))
            for n in range(2, 16):
                if (n == b + LA) or (b == 0 and n < LA):
                    if PAR["gam"] and n >= 8:
                        A.e("s_cmp_eq_u32 s15, 0")
                        A.e("s_cbranch_scc1 L_F_skip%d" % n)
                    emit(A, dma_ops(A, n, "v5", "v16"))
                    if PAR["gam"] and n >= 8:
                        A.lab("L_F_skip%d" % n)
            if b == 0:
                emit(A, gq[:PAR["g0"]])
                del gq[:PAR["g0"]]

    def read(it, sl, tag):
        n, ss, ti = it
        T = tiles[ti]
        for nn in range(2):
            A.lgi(tag, "ds_read_b64_tr_b16 %s, v%d offset:%d" % (v(FB + 4 * sl + 2 * nn, 2), waddr(n)[T & 1],
                                                                ss * 6144 + (T >> 1) * 1024 + nn * 256))

    def mfma(it, sl):
        n, ss, ti = it
        c = ORD[n][1]
        first = (c == 0 and ss == 0)
        A.e("v_mfma_f32_32x32x16_bf16 %s, %s, %s, %s" % (v(ACC + 16 * ti, 16), v(FB + 4 * sl, 4), a(16 * c + 4 * ss, 4),
                                                        "0" if first else v(ACC + 16 * ti, 16)))

    def after(it, mp):
        n, ss, ti = it
        if n == 15 and ss == 3:
            S.fill.append(("dist", S.ninstr()))
            S.fill += swiglu_ops(A, ACC + 16 * ti, 1024 * ti, PAR["pk"] and ti >= 2, late if ti >= 4 - PAR["defF"] else None)
        if mp % PAR["fgap"] == 0:
            dma_upto(S.nb - 1 + PAR["laf"], 1)

    S.pre, S.post, S.read, S.mfma, S.after = pre, post, read, mfma, after
    S.run()
    assert not dq
    A.fs(16)
    S.flush()
    A.fs(19)

    N = len(P2_SEQ)
    AS, AO, BS, BO, GV = 32, 48, 64, 80, 96
    XV, RV = AO, AS
    A.lg = []
    seen = {"Co"}

    def addr(n):
        k_, m_, h_, u_ = P2_SEQ[n]
        if n and (P2_SEQ[n - 1][3] == u_ or u_ < 0):
            return
        if k_ == "W":
            A.e("v_add_u32 v24, %d, v19" % (u_ * 8192))
        elif k_ == "C":
            A.e("v_add_u32 v24, %d, v18" % (u_ * 8192))
            A.e("v_xor_b32 v25, 32, v24")
            A.e("v_xor_b32 v26, 64, v24")
            A.e("v_xor_b32 v27, 0x60, v24")

    def wfb(n):
        if P2_SEQ[n][0] == "C" and P2_SEQ[n][1] < 2:
            return 80 + 16 * P2_SEQ[n][1]
        while n and P2_SEQ[n - 1][3] == P2_SEQ[n][3]:
            n -= 1
        return 32 + 16 * (n % 3)

    def g_reads(tg, other, qs):
        for q in qs:
            A.lgi(tg, "ds_read_b128 %s, %s offset:%d" % (v(GV + 4 * q, 4), "v28" if other else "v22", 16 * q))

    def reads2(n, ss):
        k_, m_, h_, u_ = P2_SEQ[n]
        fa = 16 * (n & 1)
        tg = "r%d_%d" % (n, ss)
        if k_ == "X":
            for r in range(4 * ss, 4 * ss + 4):
                A.lgi(tg, "ds_read_u16 %s, v21 offset:%d" % (v(XV + r), AU(n) - AU(0) + 128 * r))
            if ss == 3:
                A.lgi(tg, "ds_read_u16 v16, v23")
            return
        if k_ == "W":
            A.lgi(tg, "ds_read_b128 %s, v17 offset:%d" % (a(fa + 4 * ss, 4), AU(n) - AU(0) + 1024 * ss))
        else:
            for nn in range(2):
                A.lgi(tg, "ds_read_b64_tr_b16 %s, %s offset:%d" % (a(fa + 4 * ss + 2 * nn, 2), "v10" if nn else "v11",
                                                                  AU(n) - AU(0) + 2048 * (ss >> 1) + 512 * (ss & 1)))
        if n and (P2_SEQ[n - 1][3] == u_ or u_ < 0):
            return
        if k_ == "W":
            for nn in range(2):
                A.lgi(tg, "ds_read_b64_tr_b16 %s, v24 offset:%d" % (a(wfb(n) + 4 * ss + 2 * nn, 2), 2048 * ss + 1024 * nn))
        else:
            A.lgi(tg, "ds_read_b128 %s, %s" % (a(wfb(n) + 4 * ss, 4), v(24 + ss)))

    def mfma2(n, ss):
        k_, m_, h_, u_ = P2_SEQ[n]
        A.lgw("r%d_%d" % (n, ss))
        if k_ == "X":
            return
        acc = v({"Cs": AS, "Co": AO, "Ws": BS, "Wo": BO}[k_ + h_], 16)
        first = (k_ + h_) not in seen
        seen.add(k_ + h_)
        A.e("v_mfma_f32_32x32x16_bf16 %s, %s, %s, %s" % (acc, a(16 * (n & 1) + 4 * ss, 4), a(wfb(n) + 4 * ss, 4), "0" if first else acc))

    def xd(q):
        if q == 0:
            A.e("v_lshlrev_b32 v16, 16, v16")
        r0, r1 = 2 * q, 2 * q + 1
        A.e("v_lshlrev_b32 %s, 16, %s" % (v(XV + r0), v(XV + r0)))
        A.e("v_lshlrev_b32 %s, 16, %s" % (v(XV + r1), v(XV + r1)))
        A.e("v_mul_f32 %s, %s, v16" % (v(XV + r0), v(XV + r0)))
        A.e("v_mul_f32 %s, %s, v16" % (v(XV + r1), v(XV + r1)))
        A.e("v_cvt_pk_bf16_f32 %s, %s, %s" % (v(XV + r0), v(XV + r0), v(XV + r1)))
        A.e("v_and_b32 %s, 0xffff0000, %s" % (v(XV + r1), v(XV + r0)))
        A.e("v_lshlrev_b32 %s, 16, %s" % (v(XV + r0), v(XV + r0)))

    def send(qs):
        if 0 in qs:
            A.e("s_nop 10")
        for q in qs:
            for r in range(4 * q, 4 * q + 4):
                A.e("v_fmac_f32 %s, %s, %s" % (v(AS + r), v(GV + 2 * r + 1), v(BS + r)))
            for r in (4 * q, 4 * q + 2):
                A.e("v_cvt_pk_bf16_f32 %s, %s, %s" % (v(BO + r), v(AS + r), v(AS + r + 1)))
            A.e("buffer_store_dwordx4 %s, v6, %s, s101 offen offset:%d%s" % (v(BO + 4 * q, 4), s(rFL, 4), 1024 * q, stmod("x")))

    def recv_issue():
        for q in range(4):
            A.e("buffer_load_dwordx4 %s, v6, %s, s100 offen offset:%d sc1" % (v(RV + 4 * q, 4), s(rFL, 4), 1024 * q))

    def recv():
        A.e("s_mov_b32 s13, 0")
        A.lab("L_F_rpoll")
        A.e("s_waitcnt vmcnt(0)")
        T = [v(RV + 2 * q + 1) for q in range(8)]
        for op, d in (("v_min3_u32", "v28"), ("v_max3_u32", "v29")):
            A.e("%s %s, %s, %s, s86" % (op, d, T[0], T[1]))
            for q in range(2, 8, 2):
                A.e("%s %s, %s, %s, %s" % (op, d, T[q], T[q + 1], d))
        A.e("v_cmp_ne_u32 vcc, v28, v29")
        A.e("s_cbranch_vccz L_F_rok")
        A.e("s_sleep 2")
        recv_issue()
        A.e("s_add_u32 s13, s13, 1")
        A.e("s_cmp_lt_u32 s13, 0x20000")
        A.e("s_cbranch_scc1 L_F_rpoll")
        A.e("s_waitcnt vmcnt(0)")
        A.lab("L_F_rok")

    A.e("v_xor_b32 v28, 0x200, v22")
    assert PAR["fl2"] <= 8 and not PAR["stag"] and PAR["ssp"] in (1, 2) and N - PAR["rc"] >= NSEND + 10
    for n in range(N):
        addr(n)
        if n == PAR["fl2"]:
            assert not late
            A.e("s_waitcnt vmcnt(0)")
        if p2_real(n):
            A.e("s_barrier")
        if "hold" in OPT:
            A.fs(100 + n)
        for ss in range(4):
            if n >= 1:
                mfma2(n - 1, ss)
            reads2(n, ss)
        if late:
            late.pop(0)()
        if 1 <= n <= 4:
            xd(2 * n - 2)
            xd(2 * n - 1)
        if n == 8:
            g_reads("g1", True, range(8))
        if n == 9:
            for q in range(8):
                A.e("v_mov_b32 %s, s86" % v(BO + 2 * q + 1))
        if NSSM + 1 <= n < NSSM + 9:
            A.lgw("g1")
            for r in (2 * (n - NSSM - 1), 2 * (n - NSSM - 1) + 1):
                A.e("v_mul_f32 %s, %s, %s" % (v(AS + r), v(GV + 2 * r), v(AS + r)))
        sp = PAR["ssp"]
        if 0 <= n - NSEND - 1 < sp:
            if n == NSEND + 1:
                A.fs(17)
            q0 = (n - NSEND - 1) * (4 // sp)
            send(range(q0, q0 + 4 // sp))
        if n == NSEND + 1 + sp:
            g_reads("g2", False, range(8))
        if NSEND + 6 <= n < NSEND + 10:
            A.lgw("g2")
            for r in range(4 * (n - NSEND - 6), 4 * (n - NSEND - 6) + 4):
                A.e("v_mul_f32 %s, %s, %s" % (v(AO + r), v(GV + 2 * r), v(AO + r)))
        if n == N - PAR["rl"]:
            recv_issue()
        if n == N - PAR["rc"]:
            A.fs(18)
            recv()
            A.fs(57)
    for ss in range(4):
        mfma2(N - 1, ss)
    A.fs(59)
    def unpack(q):
        A.e("v_and_b32 %s, 0xffff0000, %s" % (v(RV + 2 * q + 1), v(RV + 2 * q)))
        A.e("v_lshlrev_b32 %s, 16, %s" % (v(RV + 2 * q), v(RV + 2 * q)))
        A.e("v_add_f32 %s, %s, %s" % (v(AO + 2 * q + 1), v(AO + 2 * q + 1), v(RV + 2 * q + 1)))
        A.e("v_add_f32 %s, %s, %s" % (v(AO + 2 * q), v(AO + 2 * q), v(RV + 2 * q)))
    for q in range(3):
        unpack(q)
    for r in range(16):
        if r % 2 == 1 and r // 2 + 3 < 8:
            unpack(r // 2 + 3)
        A.e("v_fmac_f32 %s, %s, %s" % (v(AO + r), v(GV + 2 * r + 1), v(BO + r)))
        if r % 2 == 0:
            A.e("s_movk_i32 s6, %d" % (2048 * r))
        A.e("buffer_store_dword %s, v20, %s, s6 offen offset:%d%s" % (v(AO + r), s(rO, 4), 2048 * (r & 1), stmod("o")))
    A.fs(60)
    A.fs_end()
    A.dbg_end()
    A.e("s_endpgm")


def cpow(A, n_scale, dre, dim, t0, t1, va, vb):
    if n_scale == 1.0:
        A.e("v_exp_f32 %s, %s" % (t0, va))
        A.e("v_fract_f32 %s, %s" % (t1, vb))
    else:
        ns = n_scale if isinstance(n_scale, str) else "0x%x" % f2u(n_scale)
        A.e("v_mul_f32 %s, %s, %s" % (t0, ns, va))
        A.e("v_mul_f32 %s, %s, %s" % (t1, ns, vb))
        A.e("v_exp_f32 %s, %s" % (t0, t0))
        A.e("v_fract_f32 %s, %s" % (t1, t1))
    A.e("v_cos_f32 %s, %s" % (dre, t1))
    A.e("v_sin_f32 %s, %s" % (dim, t1))
    A.e("s_nop 0")
    A.e("v_mul_f32 %s, %s, %s" % (dre, dre, t0))
    A.e("v_mul_f32 %s, %s, %s" % (dim, dim, t0))


def cfma_ops(dr, di, mr, mi, xr, xi, ar, ai):
    return ["v_fma_f32 %s, %s, %s, %s" % (dr, mr, xr, ar),
            "v_fma_f32 %s, %s, %s, %s" % (di, mr, xi, ai),
            "v_fma_f32 %s, -%s, %s, %s" % (dr, mi, xi, dr),
            "v_fma_f32 %s, %s, %s, %s" % (di, mi, xr, di)]


def lane0_store(A, cond, val, srd_, soff, off, vt, vz, L):
    for x in cond:
        A.e(x)
    A.e("s_cbranch_scc1 " + L)
    A.cond = True
    A.e("v_mov_b32 %s, %s" % (vt, val))
    A.e("v_mov_b32 %s, 0" % vz)
    A.e("s_mov_b64 exec, 1")
    A.e("buffer_store_dword %s, %s, %s, %s offen offset:%d sc1" % (vt, vz, s(srd_, 4), soff, off))
    A.e("s_mov_b64 exec, -1")
    A.cond = False
    A.lab(L)


def role_S(A):
    A.vm, A.lg = [], []
    A.thr = 99
    A.lab("L_S")
    LR, LI, NLI = "v16", "v17", "v5"
    L16R, L16I, QR, QI, L256R, L256I = "v18", "v19", "v20", "v21", "v22", "v23"
    CR, CI, PR, PI = "v2", "v3", "v10", "v11"
    ER, EI, SR, SI = "v56", "v57", "v58", "v59"
    RE, IM, ACC, FB = 64, 80, 96, 32
    A.e("s_lshl_b32 s6, s5, 6")
    A.e("v_lshlrev_b32 v4, 1, v8")
    A.e("v_add_u32 v4, s6, v4")
    A.e("v_mov_b32 v55, 0")
    if PAR["cpf"]:
        code_srd(A, 44, "L_pc")
        A.e("v_lshlrev_b32 v53, 7, v1")
        code_touch(A, 44, "v53", "v52", "par")
    A.e("s_lshl_b32 s6, s5, 7")
    A.e("s_add_u32 s6, s6, 0x%x" % EP_OFF)
    A.e("s_waitcnt lgkmcnt(0)")
    A.vmi("par", "global_load_ushort v60, v4, %s" % s(sLRE, 2))
    A.vmi("par", "global_load_ushort v61, v4, %s" % s(sLIM, 2))
    A.vmi("par", "global_load_ushort v62, v4, %s" % s(sLDT, 2))
    srd(A, rEP, sWS, 4, "s6")
    A.vmi("par", "buffer_load_dword v54, v55, %s, 0 offen sc1" % s(rEP, 4))
    A.e("s_and_b32 s6, s4, 8")
    A.e("s_lshl_b32 s6, s6, 4")
    A.e("s_add_u32 s6, s6, 0x%x" % EPR_OFF)
    srd(A, rG, sWS, 4, "s6")
    A.vmi("par", "buffer_load_dword v56, v55, %s, 0 offen sc1" % s(rG, 4))
    if PAR["tlb"]:
        A.e("s_cmp_lg_u32 s7, 0")
        A.e("s_cbranch_scc1 L_S_notlb")
        A.e("v_lshlrev_b32 v53, 21, v1")
        A.e("s_mov_b64 exec, 1")
        for ptr in (sW1, sW3, sW2, sCRE, sCIM, sDS):
            A.e("global_load_dword v52, v55, %s" % s(ptr, 2))
        A.e("s_mov_b64 exec, 3")
        A.e("global_load_dword v52, v53, %s" % s(sOUT, 2))
        A.e("s_mov_b64 exec, 31")
        A.e("global_load_dword v52, v53, %s" % s(sWS, 2))
        A.e("s_mov_b64 exec, -1")
        A.lab("L_S_notlb")
    common_late(A)
    w_scalars(A)
    srd(A, rW1, sW1, 512 * 2752)
    srd(A, rW3, sW3, 512 * 2752)
    A.e("s_lshl_b32 s6, s5, 13")
    A.e("s_add_u32 s6, s6, 0x%x" % E_OFF)
    srd(A, rE, sWS, 8192, "s6")
    A.e("s_and_b32 s6, s4, 8")
    A.e("s_lshl_b32 s6, s6, 9")
    A.e("s_add_u32 s6, s6, 0x%x" % FL_OFF)
    srd(A, rFL, sWS, 4096, "s6")
    A.e("s_and_b32 s87, s4, 7")
    A.e("s_lshl_b32 s87, s87, 7")
    A.e("s_add_u32 s87, s87, s5")
    A.e("s_lshl_b32 s87, s87, 2")
    rCRE, rCIM, rW2 = 48, 52, 44
    srd(A, rCRE, sCRE, 524288)
    srd(A, rCIM, sCIM, 524288)
    A.e("s_add_u32 s82, s82, 65536")
    A.e("s_lshl_b32 s100, s5, 11")
    A.e("s_add_u32 s100, s100, s81")
    A.e("s_add_u32 s101, s100, 32768")
    A.e("v_lshlrev_b32 v4, 3, v0")
    A.e("v_add_u32 v4, %d, v4" % (MISC + 2048))
    A.e("v_mov_b32 v48, 0")
    A.e("v_mov_b32 v49, 0")
    A.e("ds_write_b64 v4, v[48:49]")
    A.e("ds_write_b32 v4, v48 offset:2048")
    A.e("s_lshl_b32 s6, s7, 1")
    A.e("v_add_u32 v63, s6, v9")
    A.e("v_sub_u32 v4, 7, v63")
    A.e("v_lshlrev_b32 v4, 8, v4")
    A.e("v_lshl_add_u32 v4, v8, 3, v4")
    A.e("v_add_u32 v4, %d, v4" % MISC)
    A.e("v_lshlrev_b32 v63, 4, v63")
    A.e("v_cvt_f32_u32 v63, v63")
    A.e("s_lshl_b32 s6, s7, 9")
    A.e("v_lshlrev_b32 v57, 7, v9")
    A.e("v_add_u32 v57, s6, v57")
    A.e("v_cvt_f32_u32 v57, v57")
    A.e("s_waitcnt lgkmcnt(0)")
    real, A.L = A.L, []
    ni0 = A.ni
    srd(A, rW2, sW2, 1376 * 1024)
    A.e("v_readfirstlane_b32 s14, v54")
    A.e("v_readfirstlane_b32 s86, v56")
    A.e("s_add_u32 s14, s14, 1")
    A.e("s_bitset1_b32 s14, 31")
    A.e("s_add_u32 s86, s86, 1")
    A.e("s_bitset1_b32 s86, 31")
    A.e("v_lshlrev_b32 v60, 16, v60")
    A.e("v_lshlrev_b32 v61, 16, v61")
    A.e("v_lshlrev_b32 v62, 16, v62")
    A.e("v_mul_f32 v62, 0x%x, v62" % f2u(LOG2E))
    A.e("v_exp_f32 v62, v62")
    A.e("s_nop 0")
    A.e("v_cvt_pk_bf16_f32 v62, v62, v62")
    A.e("v_and_b32 v62, 0xffff0000, v62")
    A.e("v_mul_f32 v50, v62, v60")
    A.e("v_mul_f32 v51, v62, v61")
    A.e("v_mul_f32 v50, 0x%x, v50" % f2u(LOG2E))
    A.e("v_mul_f32 v51, 0x%x, v51" % f2u(INV2PI))
    cpow(A, 1.0, LR, LI, "v52", "v53", "v50", "v51")
    cpow(A, 16.0, L16R, L16I, "v52", "v53", "v50", "v51")
    cpow(A, "v57", QR, QI, "v52", "v53", "v50", "v51")
    cpow(A, 256.0, L256R, L256I, "v52", "v53", "v50", "v51")
    cpow(A, "v63", PR, PI, "v52", "v53", "v50", "v51")
    A.e("v_sub_f32 %s, 0, %s" % (NLI, LI))
    A.e("v_mul_f32 v52, v60, v60")
    A.e("v_fmac_f32 v52, v61, v61")
    A.e("v_rcp_f32 v52, v52")
    A.e("v_add_f32 v53, -1.0, %s" % LR)
    A.e("v_mul_f32 %s, v53, v60" % CR)
    A.e("v_fmac_f32 %s, %s, v61" % (CR, LI))
    A.e("v_mul_f32 %s, %s, v60" % (CI, LI))
    A.e("v_fma_f32 %s, -v53, v61, %s" % (CI, CI))
    A.e("v_add_f32 v52, v52, v52")
    A.e("v_mul_f32 %s, %s, v52" % (CR, CR))
    A.e("v_mul_f32 %s, %s, v52" % (CI, CI))
    emit(A, ["v_lshlrev_b32 v54, 5, v8", "v_lshl_add_u32 v54, v9, 4, v54", "v_xor_b32 v55, 0x80, v54"])
    emit(A, ["s_lshl_b32 s6, s7, 2", "s_sub_u32 s6, s6, s4", "s_add_u32 s6, s6, 16",
             "v_add_u32 v62, s6, v9", "v_lshlrev_b32 v60, 9, v62", "v_lshl_add_u32 v60, v8, 4, v60",
             "v_sub_u32 v62, 17, v62", "v_and_b32 v62, -2, v62", "v_max_i32 v62, 0, v62", "v_min_i32 v62, 4, v62",
             "v_lshlrev_b32 v63, 3, v8", "v_add_u32 v63, %d, v63" % (MISC + 8192),
             "s_lshl_b32 s6, s7, 9", "v_lshl_add_u32 v61, v9, 8, v63", "v_add_u32 v61, s6, v61"])

    par_ops = [x.strip() for x in A.L]
    A.L, A.ni = real, ni0

    tiles = [0, 1]
    LA, LAF = PAR["la"], PAR["laf"]
    assert LA <= LAF <= 4
    assert LASTP + 1 <= PAR["estep"] <= PAR["cstep"] and PAR["cstep"] + 1 <= PAR["lastbar"] and PAR["cstep"] + 1 < PAR["hstep"] <= 15 and PAR["lastbar"] >= 13
    S = Stream(A, mk_items(ORD, 2, True), 4, PAR["sd"], PAR["sfill"])
    S.fence = LASTP + 1
    sw = []
    if PAR["dyn"]:
        S.dyn = True
        A.e("s_setprio 2")
    late = []
    dq = []
    for n in range(LASTP + LA + 1, 16):
        dq += [(n, f) for f in dma_ops(A, n, "v4", "v7", (0,) if PAR["split"] else (0, 1))]

    def dma_upto(m, maxops=999):
        while dq and dq[0][0] <= m and maxops > 0:
            dq.pop(0)[1]()
            maxops -= 1

    def ssm_publish():
        A.e("s_nop 7")
        A.e("s_nop 3")
        cur = (v(RE), v(IM))
        tmp = [("v48", "v49"), ("v50", "v51")]
        for r in range(1, 16):
            d = (ER, EI) if r == 15 else tmp[r & 1]
            emit(A, cfma_ops(d[0], d[1], LR, LI, cur[0], cur[1], v(RE + r), v(IM + r)))
            cur = d
        A.e("ds_write_b64 v4, v[56:57]")
        A.e("v_mov_b32 v48, %d" % (MISC + 4096))
        A.e("v_mov_b32 v49, 1")
        A.e("s_mov_b64 exec, 1")
        A.e("ds_add_u32 v48, v49")
        A.e("s_mov_b64 exec, -1")
        A.e("s_mov_b32 s13, 0")
        A.lab("L_S_sync")
        A.e("ds_read_b32 v49, v48")
        A.e("s_add_u32 s13, s13, 1")
        A.e("s_waitcnt lgkmcnt(0)")
        A.e("v_readfirstlane_b32 s6, v49")
        A.e("s_cmp_lt_u32 s13, 0x100000")
        A.e("s_cselect_b32 s6, s6, 4")
        A.e("s_cmp_lt_u32 s6, 4")
        A.e("s_cbranch_scc1 L_S_sync")
        A.lg = []
        er = lambda m: (24 + 2 * m if m < 4 else 32 + 2 * (m - 4))
        for m in range(6, -1, -1):
            A.lgi("er%d" % m, "ds_read_b64 %s, v4 offset:%d" % (v(er(m), 2), 256 * (m + 1)))
        cur = (v(er(6)), v(er(6) + 1))
        for m in range(5, -1, -1):
            d = (SR, SI) if m == 0 else tmp[m & 1]
            A.lgw("er%d" % m)
            emit(A, cfma_ops(d[0], d[1], L16R, L16I, cur[0], cur[1], v(er(m)), v(er(m) + 1)))
            cur = d
        A.e("s_cmp_lg_u32 s7, 3")
        A.e("s_cbranch_scc1 L_S_nopub")
        A.cond = True
        emit(A, cfma_ops("v24", "v26", L16R, L16I, SR, SI, ER, EI))
        A.e("v_mov_b32 v25, s14")
        A.e("v_mov_b32 v27, s14")
        A.e("s_sub_u32 s6, 15, s4")
        A.e("s_lshl_b32 s6, s6, 9")
        A.e("v_lshlrev_b32 v28, 4, v8")
        A.e("s_mov_b32 exec_lo, 0")
        A.e("buffer_store_dwordx4 v[24:27], v28, %s, s6 offen sc1" % s(rE, 4))
        A.e("s_mov_b64 exec, -1")
        A.cond = False
        A.lab("L_S_nopub")
        A.fs(56)
        emit(A, wdma_addr_ops("v4", "v7", "v48"))
        for r in range(16):
            t = "v%d" % (48 + (r & 3))
            S.fill += ["v_mul_f32 %s, %s, %s" % (t, CI, v(RE + r)), "v_mul_f32 %s, %s, %s" % (v(RE + r), CR, v(RE + r)),
                       "v_fma_f32 %s, -%s, %s, %s" % (v(RE + r), CI, v(IM + r), v(RE + r)), "v_fma_f32 %s, %s, %s, %s" % (v(IM + r), CR, v(IM + r), t)]
        if not PAR["coeff"]:
            S.flush()

    def e_issue(tag=None):
        for m in range(2):
            x = "buffer_load_dwordx4 %s, v60, %s, 0 offen offset:%d sc1" % (v(24 + 4 * m, 4), s(rE, 4), 1024 * m)
            if tag:
                A.vmi(tag, x)
            else:
                A.e(x)

    def e_check():
        A.fs(17)
        A.e("s_mov_b32 s13, 0")
        A.vmw("e")
        A.lab("L_S_poll")
        A.e("v_mov_b32 v48, 0")
        for q in range(4):
            A.e("v_cmp_eq_u32 s[%d:%d], s14, %s" % (18 + 2 * q, 19 + 2 * q, v(25 + 2 * q)))
        for q in range(4):
            A.e("v_addc_co_u32 v48, vcc, 0, v48, s[%d:%d]" % (18 + 2 * q, 19 + 2 * q))
        A.e("v_cmp_ne_u32 vcc, v62, v48")
        A.e("s_cbranch_vccz L_S_ready")
        A.cond = True
        A.e("s_sleep 2")
        e_issue()
        A.e("s_add_u32 s13, s13, 1")
        A.e("s_cmp_lt_u32 s13, 0x20000")
        A.e("s_waitcnt vmcnt(0)")
        A.e("s_cbranch_scc1 L_S_poll")
        A.cond = False
        A.lab("L_S_ready")
        emit(A, cfma_ops("v48", "v49", L256R, L256I, "v28", "v30", "v24", "v26"))
        A.e("v_mul_f32 v50, %s, v48" % QR)
        A.e("v_mul_f32 v51, %s, v49" % QR)
        A.e("v_fma_f32 v50, -%s, v49, v50" % QI)
        A.e("v_fmac_f32 v51, %s, v48" % QI)
        A.lgi("pw", "ds_write_b64 v61, v[50:51]")
        A.fs(18)

    def scan_ops():
        o = []
        pr = [24, 26, 28, 30, 48, 50, 52, 56]
        def prd():
            for q in range(8):
                A.lgi("pr", "ds_read_b64 %s, v63 offset:%d" % (v(pr[q], 2), 256 * q))
        bump = lambda: lane0_store(A, ["s_lshl_b32 s6, s7, 4", "s_add_u32 s6, s6, s4", "s_cmp_lg_u32 s6, 15"], "s14", rEP, "0", 0, "v60", "v61", "L_S_noep")
        o += [prd, bump, lambda: A.lgw("pr")]
        for (x, y) in ((0, 1), (2, 3), (4, 5), (6, 7), (0, 2), (4, 6), (4, 0)):
            o.append("v_add_f32 %s, %s, %s" % (v(pr[x]), v(pr[x]), v(pr[y])))
            o.append("v_add_f32 %s, %s, %s" % (v(pr[x] + 1), v(pr[x] + 1), v(pr[y] + 1)))
        o += cfma_ops("v50", "v51", PR, PI, "v48", "v49", SR, SI)
        o += ["v_mul_f32 v48, %s, v50" % CR, "v_mul_f32 v49, %s, v51" % CR, "v_fma_f32 v48, -%s, v51, v48" % CI, "v_fmac_f32 v49, %s, v50" % CI]
        cur = ("v48", "v49")
        for r in range(16):
            o.append("v_fmac_f32 %s, %s, %s" % (v(RE + r), LR, cur[0]))
            o.append("v_fmac_f32 %s, %s, %s" % (v(IM + r), LR, cur[1]))
            o.append("v_fmac_f32 %s, %s, %s" % (v(RE + r), NLI, cur[1]))
            o.append("v_fmac_f32 %s, %s, %s" % (v(IM + r), LI, cur[0]))
            cur = (v(RE + r), v(IM + r))
        for q in range(8):
            o.append("v_cvt_pk_bf16_f32 %s, %s, %s" % (v(RE + q), v(RE + 2 * q), v(RE + 2 * q + 1)))
        for q in range(8):
            o.append("v_cvt_pk_bf16_f32 %s, -%s, -%s" % (v(IM + q), v(IM + 2 * q), v(IM + 2 * q + 1)))
        def st(ks):
            A.vmi("hst", "buffer_store_dwordx4 %s, %s, %s, s%d offen offset:%d%s" % (v((RE, RE + 4, IM, IM + 4)[ks], 4), "v55" if ks & 1 else "v54", s(rAS, 4),
                                                                                   101 if ks >= 2 else 100, 1024 * (ks & 1), stmod()))
            if ks == 3:
                A.fs(19)
        for ks in range(4):
            o.append(lambda ks=ks: st(ks))
            o += [("gap",)] * PAR["stgap"]
        return o

    def prefetch_c():
        A.e("s_lshr_b32 s15, s5, 3")
        A.e("s_lshl_b32 s15, s15, 18")
        A.e("s_lshr_b32 s6, s2, 3")
        A.e("s_lshl_b32 s6, s6, 13")
        A.e("s_add_u32 s15, s15, s6")
        A.e("s_lshl_b32 s6, s7, 11")
        A.e("s_add_u32 s15, s15, s6")
        A.e("v_lshlrev_b32 v18, 7, v1")
        A.e("s_mov_b64 exec, 0xffff")
        A.vmi("pf", "buffer_load_dword v19, v18, %s, s15 offen" % s(rCRE, 4))
        A.vmi("pf", "buffer_load_dword v19, v18, %s, s15 offen" % s(rCIM, 4))
        A.e("s_mov_b64 exec, -1")

    def prefetch_w2():
        A.e("s_lshr_b32 s6, s2, 3")
        A.e("s_mul_i32 s15, s6, 43")
        A.e("s_mul_i32 s6, s7, 11")
        A.e("s_add_u32 s15, s15, s6")
        A.e("s_lshl_b32 s15, s15, 1")
        A.e("s_lshr_b32 s6, s5, 3")
        A.e("s_add_u32 s15, s15, s6")
        A.e("s_lshl_b32 s15, s15, 9")
        A.e("v_lshrrev_b32 v18, 2, v1")
        A.e("v_lshlrev_b32 v18, 3, v18")
        A.e("v_and_or_b32 v18, v1, 3, v18")
        A.e("v_lshlrev_b32 v18, 7, v18")
        A.e("s_mov_b32 exec_hi, 0xfff")
        A.vmi("pf", "buffer_load_dword v19, v18, %s, s15 offen" % s(rW2, 4))
        A.e("s_mov_b64 exec, -1")

    def spf_setup():
        n_ = PAR["spfn"]
        A.e("s_lshr_b32 s6, s2, 3")
        A.e("s_mul_i32 s30, s6, %d" % ((255 + n_) // n_))
        A.e("s_lshr_b32 s30, s30, 8")
        A.e("s_mul_i32 s30, s30, %d" % n_)
        A.e("s_sub_u32 s30, s6, s30")
        A.e("s_lshr_b32 s9, s5, 3")
        A.e("s_lshl_b32 s9, s9, 18")
        A.e("s_lshl_b32 s15, s6, 13")
        A.e("s_add_u32 s9, s9, s15")
        A.e("s_lshl_b32 s15, s7, 11")
        A.e("s_add_u32 s9, s9, s15")
        A.e("s_mul_i32 s15, s6, 43")
        A.e("s_mul_i32 s6, s7, 11")
        A.e("s_add_u32 s15, s15, s6")
        A.e("s_lshl_b32 s15, s15, 1")
        A.e("s_lshr_b32 s6, s5, 3")
        A.e("s_add_u32 s15, s15, s6")
        A.e("s_lshl_b32 s15, s15, 9")

    def spf_site(q, va='v18', vd='v19'):
        def f():
            A.e("s_cmp_lg_u32 s30, %d" % q)
            A.e("s_cbranch_scc1 L_spf%d" % q)
            A.cond = True
            A.e(("v_lshlrev_b32 v18, 7, v1").replace("v18", va).replace("v19", vd))
            A.e("s_mov_b64 exec, 0xffff")
            A.e(("buffer_load_dword v19, v18, %s, s9 offen" % s(rCRE, 4)).replace("v18", va).replace("v19", vd))
            A.e(("buffer_load_dword v19, v18, %s, s9 offen" % s(rCIM, 4)).replace("v18", va).replace("v19", vd))
            A.e("s_mov_b64 exec, -1")
            A.e(("v_lshrrev_b32 v18, 2, v1").replace("v18", va).replace("v19", vd))
            A.e(("v_lshlrev_b32 v18, 3, v18").replace("v18", va).replace("v19", vd))
            A.e(("v_and_or_b32 v18, v1, 3, v18").replace("v18", va).replace("v19", vd))
            A.e(("v_lshlrev_b32 v18, 7, v18").replace("v18", va).replace("v19", vd))
            A.e("s_mov_b32 exec_hi, 0xfff")
            A.e(("buffer_load_dword v19, v18, %s, s15 offen" % s(rW2, 4)).replace("v18", va).replace("v19", vd))
            A.e("s_mov_b64 exec, -1")
            A.cond = False
            A.lab("L_spf%d" % q)
        return f

    def warm_w():
        A.e("s_and_b32 s6, s83, 7")
        A.e("s_lshl_b32 s6, s6, 2")
        A.e("s_add_u32 s6, s6, s7")
        A.e("s_mul_i32 s6, s6, %d" % (16 * 2752))
        A.e("s_mul_i32 s13, s5, 192")
        A.e("s_add_u32 s6, s6, s13")
        A.e("s_add_u32 s6, s6, s92")
        A.e("v_lshrrev_b32 v52, 1, v8")
        A.e("v_mul_u32_u24 v52, 2752, v52")
        A.e("v_and_b32 v53, 1, v1")
        A.e("v_lshl_add_u32 v52, v53, 7, v52")
        A.e("s_mov_b32 exec_hi, 0")
        A.e("s_bitcmp1_b32 s4, 3")
        A.e("s_cbranch_scc1 L_ww3")
        A.e("buffer_load_dword v53, v52, %s, s6 offen" % s(rW1, 4))
        A.e("s_branch L_ww")
        A.lab("L_ww3")
        A.e("buffer_load_dword v53, v52, %s, s6 offen" % s(rW3, 4))
        A.lab("L_ww")
        A.e("s_mov_b64 exec, -1")

    if PAR["spf"] or PAR["mpf"] >= 0:
        spf_setup()
    if PAR["mpf"] >= 0:
        A.e("s_bfe_u32 s6, s2, 0x10002")
        A.e("s_lshl_b32 s6, s6, 1")
        A.e("s_and_b32 s30, s2, 1")
        A.e("s_add_u32 s30, s30, s6")
        A.e("s_sub_u32 s30, s30, s7")
    if PAR["pf"] and not PAR["spf"] and not PAR["fpf"]:
        dq.append((PAR["pfc"] + LAF, prefetch_c))
        if PAR["pfw"] <= 15:
            dq.append((PAR["pfw"] + LAF, prefetch_w2))

    N = len(P2_SEQ)
    LA2 = PAR["ala"]
    assert LA2 <= NA - 2

    rAs_, rAo_ = 56, 60

    def p2_setup1():
        tile_of(A, "s11", "s10", "s31")
        if PAR["p2map"]:
            A.e("s_and_b32 s6, s4, 3")
            A.e("s_lshl_b32 s13, s6, 1")
            A.e("s_add_u32 s13, s13, s10")
            A.e("s_mul_i32 s14, s6, 3")
            A.e("s_mul_i32 s6, s10, 11")
        else:
            A.e("s_and_b32 s6, s10, 3")
            A.e("s_lshl_b32 s13, s6, 1")
            A.e("s_add_u32 s13, s13, s4")
            A.e("s_mul_i32 s14, s6, 3")
            A.e("s_and_b32 s6, s4, 7")
            A.e("s_mul_i32 s6, s6, 11")
        A.e("s_lshr_b32 s6, s6, 3")
        A.e("s_add_u32 s14, s14, s6")
        A.e("s_sub_u32 s6, s14, 11")
        A.e("s_cmp_ge_u32 s14, 11")
        A.e("s_cselect_b32 s14, s6, s14")
        A.e("s_lshl_b32 s9, s7, 11")
        A.e("s_cmp_lg_u32 s11, 0")
        A.e("s_cselect_b64 %s, %s, %s" % (s(rCRE, 2), s(sCIM, 2), s(sCRE, 2)))
        A.e("v_and_b32 v11, 7, v1")
        A.e("v_lshrrev_b32 v22, 3, v1")
        A.e("v_lshrrev_b32 v10, 4, v1")
        A.e("v_xor_b32 v10, v10, v11")
        A.e("v_lshlrev_b32 v10, 4, v10")
        A.e("v_lshl_add_u32 v4, v22, 10, v10")
        A.e("s_lshl_b32 s6, s7, 14")
        A.e("s_lshl_b32 s12, s10, 16")
        A.e("s_add_u32 s12, s12, s6")
        A.e("v_add_u32 v4, s12, v4")
        A.e("v_xor_b32 v5, 64, v4")
        A.e("v_add_u32 v5, 8192, v5")

    def p2_setup2():
        A.e("s_and_b32 s12, s7, 1")
        A.e("s_lshr_b32 s15, s7, 1")
        A.e("s_lshl_b32 s15, s15, 11")
        A.e("s_lshl_b32 s8, s12, 12")
        A.e("s_add_u32 s8, s8, s15")
        A.e("s_lshl_b32 s6, s11, 15")
        A.e("s_add_u32 s6, s6, s15")
        A.e("v_add_u32 v2, s6, v6")
        A.e("s_mul_i32 s6, s11, 45056")
        A.e("s_add_u32 s6, s6, s15")
        A.e("s_add_u32 s6, s6, 65536")
        A.e("v_add_u32 v23, s6, v6")
        A.e("s_lshl_b32 s6, s31, 1")
        A.e("s_add_u32 s6, s6, s11")
        A.e("s_lshl_b32 s6, s6, 1")
        A.e("s_add_u32 s6, s6, s12")
        A.e("s_xor_b32 s15, s6, 2")
        A.e("s_mul_i32 s6, s6, %d" % (NKS * 1024))
        A.e("s_mul_i32 s15, s15, %d" % (NKS * 1024))
        srd(A, rAo_, sWS, NKS * 1024, "s6")
        srd(A, rAs_, sWS, NKS * 1024, "s15")
        A.e("v_bfe_u32 v10, v1, 4, 1")
        A.e("v_lshlrev_b32 v10, 2, v10")
        A.e("v_xor_b32 v10, v10, v11")
        A.e("v_lshlrev_b32 v10, 4, v10")
        A.e("v_lshl_add_u32 v3, v22, 10, v10")
        A.e("s_lshl_b32 s6, s7, 14")
        A.e("s_lshl_b32 s12, s10, 7")
        A.e("s_add_u32 s12, s12, s6")
        A.e("s_mul_i32 s6, s11, %d" % (704 * 1024))
        A.e("s_add_u32 s12, s12, s6")
        A.e("v_add_u32 v3, s12, v3")
        A.e("v_add_u32 v7, 8192, v3")
        A.e("v_and_b32 v17, 15, v1")
        A.e("s_and_b32 s6, s31, 7")
        A.e("s_lshl_b32 s6, s6, 9")
        A.e("v_lshl_add_u32 v17, v17, 2, s6")
        code_srd(A, 52, "L_pc3")
        A.e("v_lshlrev_b32 v18, 7, v1")

    def idx(kind, m):
        if kind == "C":
            A.e("s_add_u32 s12, s13, %d" % m)
            A.e("s_and_b32 s12, s12, 7")
        else:
            A.e("s_add_u32 s12, s14, %d" % m)
            A.e("s_sub_u32 s6, s12, 11")
            A.e("s_cmp_ge_u32 s12, 11")
            A.e("s_cselect_b32 s12, s6, s12")

    def dma_w(q):
        kind, m, u, first, free = P2_W[q]
        idx(kind, m)
        A.e("s_lshl_b32 s12, s12, %d" % (16 if kind == "W" else 7))
        r_, va, vb = (rW2, "v3", "v7") if kind == "W" else (rCRE, "v4", "v5")
        A.e("s_add_u32 m0, s9, %d" % (u * 8192))
        A.e("s_nop 0")
        A.vmi("w%d" % first, "buffer_load_dwordx4 %s, %s, s12 offen lds" % (va, s(r_, 4)))
        A.e("s_add_u32 m0, s9, %d" % (u * 8192 + 1024))
        A.e("s_nop 0")
        A.vmi("w%d" % first, "buffer_load_dwordx4 %s, %s, s12 offen lds" % (vb, s(r_, 4)))

    def dma_g(tag):
        srd(A, rEP, sWS, 16384, "0x%x" % G_OFF)
        A.e("s_lshl_b32 s12, s31, 2")
        A.e("s_add_u32 s12, s12, s7")
        A.e("s_lshl_b32 s12, s12, 8")
        A.e("s_lshl_b32 s6, s7, 8")
        A.e("s_add_u32 m0, s6, %d" % GU)
        A.e("s_mov_b64 exec, 0xffff")
        A.vmi(tag, "buffer_load_dwordx4 v6, %s, s12 offen sc1 lds" % s(rEP, 4))
        A.e("s_mov_b64 exec, -1")

    def dma_a(n):
        kind, m, hf, u = P2_SEQ[n]
        if kind == "X":
            srd(A, rE, sX, 2048 * 1024)
            A.e("s_lshl_b32 s6, s31, 1")
            A.e("s_add_u32 s6, s6, s11")
            A.e("s_lshl_b32 s6, s6, 2")
            A.e("s_add_u32 s6, s6, s7")
            A.e("s_lshl_b32 s6, s6, 14")
            A.e("s_lshl_b32 s12, s10, 7")
            A.e("s_add_u32 s12, s12, s6")
            A.e("v_and_b32 v10, 7, v1")
            A.e("v_lshlrev_b32 v10, 4, v10")
            A.e("v_lshl_add_u32 v10, v22, 10, v10")
            A.e("s_add_u32 m0, s9, %d" % AU(n))
            A.e("s_add_u32 s6, s12, 8192")
            A.vmi("a%d" % n, "buffer_load_dwordx4 v10, %s, s12 offen lds" % s(rE, 4))
            A.e("s_add_u32 m0, s9, %d" % (AU(n) + 1024))
            A.e("s_nop 0")
            A.vmi("a%d" % n, "buffer_load_dwordx4 v10, %s, s6 offen lds" % s(rE, 4))
            srd(A, rEP, sDS, 1024)
            A.e("s_lshl_b32 s12, s10, 7")
            A.e("s_mov_b32 m0, %d" % (GU + 1024))
            A.e("s_mov_b64 exec, 0xff")
            A.vmi("a%d" % n, "buffer_load_dwordx4 v6, %s, s12 offen lds" % s(rEP, 4))
            A.e("s_mov_b64 exec, -1")
            return
        idx(kind, m)
        A.e("s_lshl_b32 s12, s12, 12")
        A.e("s_add_u32 m0, s8, %d" % AU(n))
        A.e("s_nop 0")
        va, r_ = ("v23" if kind == "W" else "v2"), (rAs_ if hf == "s" else rAo_)
        A.vmi("a%d" % n, "buffer_load_dwordx4 %s, %s, s12 offen sc1 lds" % (va, s(r_, 4)))
        A.vmi("a%d" % n, "buffer_load_dwordx4 %s, %s, s12 offen offset:1024 sc1 lds" % (va, s(r_, 4)))

    def check(tag, off, L):
        A.e("s_mov_b32 s15, 0")
        A.vmw(tag)
        A.lab(L + "_poll")
        A.e("v_cmp_ne_u32 vcc, s86, v16")
        A.e("s_cbranch_vccz %s_go" % L)
        A.e("s_sleep %d" % PAR["slp"])
        A.e("buffer_load_dword v16, v17, %s, 0 offen offset:%d sc1" % (s(rFL, 4), off))
        A.e("s_add_u32 s15, s15, 1")
        A.e("s_cmp_lt_u32 s15, 0x20000")
        A.e("s_waitcnt vmcnt(0)")
        A.e("s_cbranch_scc1 %s_poll" % L)
        A.lab(L + "_go")

    def pre(b):
        kind, c = ORD[b]
        slot = slot_of(b)
        if b == 0 and PAR["wpf"] == 99:
            warm_w()
        if b == 0 and PAR["mpf"] == 99:
            spf_site(0, "v52", "v53")()
        if b == LASTP + 1:
            S.flush()
            S.K = PAR["sfill"]
            ssm_publish()
            A.thr = PAR["thr"]
        if b == PAR["cstep"] + 1:
            S.flush()
            A.lgw("pw")
        if b == PAR["cstep"] + 2:
            assert "pr" not in A.lg
        dma_upto(min(b - 1 + LA, 15) if b != PAR["lastbar"] else 15)
        if kind == "P":
            A.e("v_add_u32 v28, %d, v7" % slot)
            A.e("v_xor_b32 v29, 32, v28")
            A.e("v_xor_b32 v30, 64, v28")
            A.e("v_xor_b32 v31, 0x60, v28")
            for q in range(4):
                A.e("v_add_u32 %s, s8, %s" % (v(24 + q), v(28 + q)))
        else:
            A.e("v_add_u32 v14, %d, v12" % slot)
            A.e("v_add_u32 v15, %d, v13" % slot)
        A.fs2(20 + b)
        A.vmw("ch%d" % (b if b != PAR["lastbar"] else 15))
        A.fs2(36 + b)

    def hflag():
        assert "hst" in A.vm or True
        A.vmw("hst")
        A.e("v_mov_b32 v24, %d" % (LDS_CNT))
        A.e("v_mov_b32 v25, 1")
        A.e("s_mov_b64 exec, 1")
        A.lgi("hc", "ds_add_rtn_u32 v26, v24, v25")
        A.e("s_mov_b64 exec, -1")

    def hflag2():
        A.lgw("hc")
        A.e("v_readfirstlane_b32 s6, v26")
        lane0_store(A, ["s_cmp_lg_u32 s6, 3"], "s86", rFL, "s87", 0, "v24", "v25", "L_S_nofl")
        A.fs(57)

    def post(b):
        A.fs(b)
        if b == 1:
            S.fill += [lambda: A.vmw("par")] + par_ops
            S.K = PAR["pfill"]
        if b == PAR["wpf"]:
            warm_w()
        if b == PAR["mpf"]:
            spf_site(0, "v52", "v53")()
        if PAR["spf"] and 0 <= b - PAR["spf0"] < PAR["spfn"]:
            spf_site(b - PAR["spf0"])()
        if b == PAR["estep"]:
            e_issue("e")
        if b == PAR["cstep"]:
            S.fill += [("gap",)] * PAR["cdelay"] + [e_check]
        if b == PAR["cstep"] + 1:
            S.fill += scan_ops()
            S.K = PAR["sfill2"]
        if b == PAR["hstep"]:
            S.fill += [hflag, ("gap",), hflag2]
        if b == PAR["lastbar"]:
            assert PAR["lastbar"] == 14 and PAR["nt"] <= 2 and 2 <= PAR["ew"] <= 6
            S.fill += [p2_setup1, ("gap",)]
            if PAR["xe"]:
                S.fill += [lambda: dma_a(0), ("gap",)]
            for n in range(PAR["ew"]):
                S.fill += [lambda n=n: dma_w(n), ("gap",)]
            S.fill += [p2_setup2]

    def read(it, sl, tag):
        n, ss, ti = it
        kind, c = ORD[n]
        if kind == "P":
            if ti == 0:
                A.lgi(tag, "ds_read_b128 %s, %s" % (a(16 * c + 4 * ss, 4), v(24 + ss)))
            A.lgi(tag, "ds_read_b128 %s, %s offset:%d" % (v(FB + 4 * sl, 4), v(28 + ss), 16384 + 4096 * ti))
        else:
            T = tiles[ti]
            for nn in range(2):
                A.lgi(tag, "ds_read_b64_tr_b16 %s, v%d offset:%d" % (v(FB + 4 * sl + 2 * nn, 2), 14 + (T & 1),
                                                                    ss * 6144 + (T >> 1) * 1024 + nn * 256))

    def mfma(it, sl):
        n, ss, ti = it
        kind, c = ORD[n]
        first = (c == 0 and ss == 0)
        if kind == "P":
            d = (RE, IM)[ti]
            A.e("v_mfma_f32_32x32x16_bf16 %s, %s, %s, %s" % (v(d, 16), a(16 * c + 4 * ss, 4), v(FB + 4 * sl, 4), "0" if first else v(d, 16)))
        else:
            d = ACC + 16 * ti
            A.e("v_mfma_f32_32x32x16_bf16 %s, %s, %s, %s" % (v(d, 16), v(FB + 4 * sl, 4), a(16 * c + 4 * ss, 4), "0" if first else v(d, 16)))

    def after(it, mp):
        n, ss, ti = it
        if n == 15 and ss == 3:
            S.fill.append(("dist", S.ninstr()))
            sw.append(swiglu_ops(A, ACC + 16 * ti, 1024 * ti, False, late if ti >= 2 - PAR["defS"] else None))
        if n > LASTP and (not PAR["split"] or mp % 2 == 0):
            dma_upto(S.nb - 1 + LAF, 1)

    S.pre, S.post, S.read, S.mfma, S.after = pre, post, read, mfma, after
    S.run()
    assert not dq
    A.fs(16)
    A.vmi("poll", "buffer_load_dword v16, v17, %s, 0 offen sc1" % s(rFL, 4))
    S.flush()
    emit(A, sw[0])
    A.fs(58)
    A.thr = PAR["thr2"]
    check("poll", 0, "L_p2a")
    A.fs(55)
    for n in range(PAR["xe"], PAR["ea"]):
        dma_a(n)
    dma_g("g")
    if PAR["ct2"]:
        code_touch(A, 52, "v18", "v19", "ct")
    emit(A, sw[1])
    wn, an = PAR["ew"], PAR["ea"]
    for n in range(N):
        if not p2_real(n):
            assert wn == len(P2_W)
            continue
        mark0 = len(A.L)
        A.vmw("w%d" % n)
        A.vmw("a%d" % n)
        if not p2_real(n + 1):
            A.vmw("w%d" % (n + 1))
            A.vmw("a%d" % (n + 1))
        if n == 8:
            A.vmw("g")
        if n == PAR["fl2"]:
            assert not late
            A.vmw("st")
        A.e("s_barrier")
        mark1 = len(A.L)
        A.fs(20 + n) if n < 35 else None
        if n == PAR["fl2"]:
            lane0_store(A, ["s_cmp_lg_u32 s3, 0"], "s86", rFL, "s87", 256, "v10", "v11", "L_p2_nofl")
        if n == PAR["chk2"]:
            check("poll2", 256, "L_p2b")
            if PAR["ct3"]:
                code_touch(A, 52, "v18", "v19", "ct")
        if n == PAR["p2poll"]:
            A.vmi("poll2", "buffer_load_dword v16, v17, %s, 0 offen offset:256 sc1" % s(rFL, 4))
        if "burn" in OPT:
            for q in range(PAR["burn"]):
                A.e("ds_read_b128 v[%d:%d], v6 offset:%d" % (24 + 4 * (q & 7), 27 + 4 * (q & 7), 1024 * q + 8192 * (n % 6)))
        if "burnv" in OPT:
            for q in range(PAR["burn"]):
                A.e("v_fma_f32 v%d, v%d, v%d, v%d" % (24 + (q & 15), 64 + (q & 31), 96 + (q & 31), 24 + (q & 15)))
        budget = 3 if n == PAR["chk2"] else 2
        while budget > 0:
            a_ok = an < N and an <= n + LA2 and (an < NSSM or n >= PAR["chk2"])
            w_ok = wn < len(P2_W) and P2_W[wn][4] <= n
            if a_ok and not (w_ok and P2_W[wn][3] < an):
                dma_a(an); an += 1
            elif w_ok:
                dma_w(wn); wn += 1
            else:
                break
            budget -= 1
        if late and n >= 1 and n % 2 == 1:
            late.pop(0)()
        if PAR["pf"] and not PAR["spf"] and not PAR["fpf"] and PAR["pfw"] > 15 and n == PAR["pfw2"]:
            prefetch_w2()
        assert (an > n + (1 if p2_real(n + 2) and p2_real(n + 1) else 3) or an == N) and (wn == len(P2_W) or P2_W[wn][3] > n + 1)
        if PAR["hoist"]:
            k = mark1
            while k < len(A.L) and A.L[k].split()[0] in ("s_add_u32", "s_and_b32", "s_lshl_b32", "s_sub_u32", "s_cmp_ge_u32", "s_cselect_b32", "s_nop"):
                k += 1
            if k < len(A.L) and A.L[k].split()[0] == "buffer_load_dwordx4":
                lead = [x for x in A.L[mark1:k] if "s_nop" not in x]
                A.L[mark0:k] = lead + A.L[mark0:mark1]
    assert an == N and wn == len(P2_W)
    A.e("s_or_b32 s6, s87, s7")
    A.e("s_cmp_lg_u32 s6, 0")
    A.e("s_cbranch_scc1 L_p2_noep")
    A.e("v_lshrrev_b32 v10, 4, v1")
    A.e("v_and_b32 v17, 15, v1")
    A.e("v_lshlrev_b32 v17, 2, v17")
    A.e("v_lshl_add_u32 v17, v10, 9, v17")
    for off, L in ((256, "L_p2c"), (2048 + 256, "L_p2d")):
        A.vmi("pe", "buffer_load_dword v16, v17, %s, 0 offen offset:%d sc1" % (s(rFL, 4), off))
        check("pe", off, L)
    lane0_store(A, ["s_cmp_lg_u32 s7, 0"], "s86", rG, "0", 0, "v10", "v11", "L_p2_noep")
    A.fs_end()
    A.e("s_endpgm")


def gen_all(A):
    K = NAME + "_kernel"
    A.L.append(".globl %s\n.p2align 8\n.type %s,@function\n%s:" % (K, K, K))
    prologue(A)
    role_F(A)
    fm = A.L[A.fmain:]
    del A.L[A.fmain:]
    role_S(A)
    A.L += fm
    A.lab("L_end")
    A.e("s_endpgm")
    A.lab("L_code_end")


def kd(name, nv, acc, ns=102):
    return """.amdhsa_kernel %s
  .amdhsa_next_free_vgpr %d
  .amdhsa_next_free_sgpr %d
  .amdhsa_accum_offset %d
  .amdhsa_group_segment_fixed_size 0
  .amdhsa_kernarg_size 136
  .amdhsa_user_sgpr_count 2
  .amdhsa_user_sgpr_kernarg_segment_ptr 1
  .amdhsa_system_sgpr_workgroup_id_x 1
.end_amdhsa_kernel
""" % (name, nv, ns, acc)


def main(path):
    ref = open("cdna_kernels/%s.s.ref" % NAME).read().splitlines()
    head = [l for l in ref if l.startswith(";") and "@launch" not in l and "Override launch" not in l and "grid=ceil" not in l]
    head = head[:18]
    A = Asm()
    gen_all(A)
    out = head + [
        "; @launch grid=(256,1,1) block=(512,1,1) lds=%d" % K1_LDS,
        '.amdgcn_target "amdgcn-amd-amdhsa--gfx950"', ".text"] + A.L + [
        '.section .rodata,"a"', ".p2align 6", kd(NAME + "_kernel", 256, 128)]
    open(path, "w").write("\n".join(out))


if __name__ == "__main__":
    if "--stamp" in sys.argv:
        STAMP = True
        sys.argv.remove("--stamp")
    for x in list(sys.argv):
        if x.startswith("-O"):
            OPT.add(x[2:]); sys.argv.remove(x)
        elif x.startswith("-U"):
            OPT.discard(x[2:]); sys.argv.remove(x)
        elif x.startswith("-P"):
            kk, vv = x[2:].split("=")
            PAR[kk] = vv if kk.startswith("ord") else int(vv)
            sys.argv.remove(x)
    main(sys.argv[1] if len(sys.argv) > 1 else "cdna_kernels/%s.s" % NAME)
```

```python
import sys, struct

NAME = "gated_mix__ssm_conv_s5__glu_gated_swiglu__prompt"

def f2u(x):
    return struct.unpack("<I", struct.pack("<f", x))[0]

LOG2E = 1.4426950408889634
INV2PI = 0.15915494309189535

NKS = 150
A_BYTES = 64 * NKS * 1024
E_OFF = 0xA00000
G_OFF = 0xA20000
EP_OFF = 0xA30000


EPR_OFF = 0xA31000
FL_OFF = 0xA40000

XB_OFF = 0xC00000

STAMP = False
OPT = {"asc0", "asc1", "osc0", "osc1", "xsc1"}
ST_OFF = 0xB00000

class Asm:
    def __init__(self):
        self.L = []
        self.ni = 0
        self.cond = False
        self.thr = 99
        self.vm = []
        self.lg = []

    def e(self, s):
        if "nomfma" in OPT and s.startswith("v_mfma"):
            s = "s_nop 0"
        if "nolds" in OPT and s.startswith("ds_read"):
            s = "s_nop 0"
        if "nohst" in OPT and s.startswith("buffer_store_dwordx4") and ("s100" in s or "s101" in s):
            s = "s_nop 0"
        if "noHst" in OPT and s.startswith("buffer_store_dwordx4") and ("s82" in s or "s87" in s):
            s = "s_nop 0"
        if "noout" in OPT and s.startswith("buffer_store_dword ") and "v20," in s:
            s = "s_nop 0"
        if "notw" in OPT and s.startswith("ds_write_b128"):
            s = "s_nop 0"
        if "noscan" in OPT and s.startswith("v_fmac_f32"):
            return
        if "m16" in OPT and s.startswith("v_mfma_f32_32x32x16"):
            import re as _re
            m_ = _re.match(r"v_mfma_f32_32x32x16_bf16 v\[(\d+):\d+\], (\S+), (\S+), (\S+)", s)
            d_ = int(m_.group(1)); self.m16 = getattr(self, "m16", 0) + 1
            for q_ in range(2):
                dd = d_ + 4 * (2 * ((self.m16 >> 2) & 1) + q_)
                self.L.append("  v_mfma_f32_16x16x32_bf16 v[%d:%d], %s, %s, %s" % (dd, dd + 3, m_.group(2), m_.group(3), "0" if m_.group(4) == "0" else "v[%d:%d]" % (dd, dd + 3)))
                self.ni += 1
            return
        self.L.append("  " + s)
        if not self.cond:
            self.ni += 1

    def c(self, s):
        pass

    def lab(self, s):
        self.L.append(s + ":")

    def fs2(self, n):
        if "vw" in OPT:
            self.fs(n, True)

    def fs(self, n, vw=False):
        if "hold" in OPT and n == PAR["probe"]:
            self.e("s_memrealtime s[96:97]")
            return
        if "vw" in OPT and not vw and 20 <= n < 55:
            return
        if "so" in OPT and n != 61:
            return
        if STAMP and ("light" not in OPT or n in (0, 7, 9, 13, 15, 16, 19, 20, 36, 55, 58, 59, 61)):
            self.e("%s s[98:99]" % ("s_memrealtime" if "rt" in OPT else "s_memtime"))
            self.e("s_waitcnt lgkmcnt(0)")
            self.lg = []
            self.e("s_sub_u32 s98, s98, s96")
            self.e("v_writelane_b32 v0, s98, %d" % n)

    def dbg_end(self):
        if "hold2" in OPT:
            self.e("s_load_dwordx2 s[8:9], s[0:1], 120")
            self.e("s_waitcnt vmcnt(0) lgkmcnt(0)")
            self.e("s_mov_b32 s10, 256")
            self.e("s_mov_b32 s11, 0x20000")
            self.e("s_not_b32 s12, s94")
            self.e("v_mov_b32 v2, s12")
            self.e("v_mov_b32 v1, 0")
            self.e("s_mov_b64 exec, 1")
            self.e("s_cmp_lg_u32 s7, 0")
            self.e("s_cbranch_scc1 L_hold_a")
            self.e("buffer_atomic_umax v2, v1, s[8:11], 0 offen")
            self.lab("L_hold_a")
            self.e("s_sleep 4")
            self.e("s_memrealtime s[98:99]")
            self.e("s_waitcnt lgkmcnt(0)")
            self.e("s_sub_u32 s98, s98, s94")
            self.e("s_cmp_lt_u32 s98, 4000")
            self.e("s_cbranch_scc1 L_hold_a")
            self.e("buffer_load_dword v2, v1, s[8:11], 0 offen sc1")
            self.e("s_waitcnt vmcnt(0)")
            self.e("v_readfirstlane_b32 s94, v2")
            self.e("s_not_b32 s94, s94")
        if "hold" in OPT:
            self.lab("L_hold")
            self.e("s_sleep 4")
            self.e("s_memrealtime s[98:99]")
            self.e("s_waitcnt lgkmcnt(0)")
            self.e("s_sub_u32 s98, s98, s%d" % (96 if PAR["probe"] >= 0 else 94))
            self.e("s_cmp_lt_u32 s98, %d" % PAR["hold"])
            self.e("s_cbranch_scc1 L_hold")
        if "dbg" in OPT:
            self.e("s_waitcnt vmcnt(0)")
            self.e("s_memrealtime s[98:99]")
            self.e("s_memtime s[92:93]")
            self.e("s_load_dwordx2 s[8:9], s[0:1], 120")
            self.e("s_waitcnt lgkmcnt(0)")
            self.e("s_mov_b32 s10, 256")
            self.e("s_mov_b32 s11, 0x20000")
            self.e("s_not_b32 s94, s94")
            self.e("s_sub_u32 s92, s92, s96")
            self.e("v_mov_b32 v2, s94")
            self.e("v_mov_b32 v3, s98")
            self.e("v_mov_b32 v4, s92")
            self.e("v_mov_b32 v1, 0")
            self.e("s_cmp_lg_u32 s7, 0")
            self.e("s_cbranch_scc1 L_dbg_done")
            self.e("s_mov_b64 exec, 1")
            self.e("buffer_atomic_umax v2, v1, s[8:11], 0 offen")
            self.e("buffer_atomic_umax v3, v1, s[8:11], 0 offen offset:4")
            self.e("buffer_atomic_umax v4, v1, s[8:11], 0 offen offset:8")
            self.lab("L_dbg_done")

    def stamp_begin(self):
        if STAMP or "dbg" in OPT or "hold" in OPT:
            self.e("s_memrealtime s[94:95]")
            self.e("%s s[96:97]" % ("s_memrealtime" if "rt" in OPT else "s_memtime"))

    def fs_end(self):
        if STAMP:
            self.e("s_waitcnt vmcnt(0)")
            self.fs(61)
            self.e("s_memrealtime s[98:99]")
            self.e("s_waitcnt lgkmcnt(0)")
            self.e("v_writelane_b32 v0, s94, 62")
            self.e("v_writelane_b32 v0, s98, 63")
            self.e("s_add_u32 s8, s%d, 0x%x" % (sWS, ST_OFF))
            self.e("s_addc_u32 s9, s%d, 0" % (sWS + 1))
            self.e("s_mov_b32 s10, 0x80000")
            self.e("s_mov_b32 s11, 0x20000")
            self.e("s_lshl_b32 s6, s2, 11")
            self.e("s_lshl_b32 s12, s3, 8")
            self.e("s_add_u32 s6, s6, s12")
            self.e("v_lshlrev_b32 v1, 2, v1")
            self.e("buffer_store_dword v0, v1, s[8:11], s6 offen")

    def throttle(self, k):
        if len(self.vm) > k:
            self.e("s_waitcnt vmcnt(%d)" % k)
            self.vm = self.vm[len(self.vm) - k:] if k else []

    def vmi(self, tag, s, cold=False):
        self.throttle(self.thr)
        if cold and "nt" in OPT:
            s = s.replace(" lds", " nt lds") if s.endswith(" lds") else s + " nt"
        self.e(s)
        self.vm.append(tag)
        assert len(self.vm) <= 63, "too many vmem ops in flight"

    def vmw(self, tag, extra=""):
        idx = [i for i, t in enumerate(self.vm) if t == tag]
        if not idx:
            return None
        n = len(self.vm) - 1 - idx[-1]
        self.vm = self.vm[idx[-1] + 1:]
        self.e("s_waitcnt vmcnt(%d)%s" % (n, extra))
        return n

    def lgi(self, tag, s):
        self.e(s)
        self.lg.append(tag)

    def lgw(self, tag):
        idx = [i for i, t in enumerate(self.lg) if t == tag]
        if not idx:
            return
        n = len(self.lg) - 1 - idx[-1]
        self.lg = self.lg[idx[-1] + 1:]
        self.e("s_waitcnt lgkmcnt(%d)" % min(n, 15))

    def lgw0(self):
        if self.lg:
            self.e("s_waitcnt lgkmcnt(0)")
        self.lg = []


def stmod(pre="a"):
    return "".join(" " + m for m in ("sc0", "sc1", "nt") if pre + m in OPT)

def v(a, n=1):
    return "v%d" % a if n == 1 else "v[%d:%d]" % (a, a + n - 1)

def a(a_, n=1):
    return "a%d" % a_ if n == 1 else "a[%d:%d]" % (a_, a_ + n - 1)

def s(a_, n=1):
    return "s%d" % a_ if n == 1 else "s[%d:%d]" % (a_, a_ + n - 1)


def srd(A, d, base, nbytes, addlo=None):
    if addlo is None:
        A.e("s_mov_b32 s%d, s%d" % (d, base))
        A.e("s_mov_b32 s%d, s%d" % (d + 1, base + 1))
    else:
        A.e("s_add_u32 s%d, s%d, %s" % (d, base, addlo))
        A.e("s_addc_u32 s%d, s%d, 0" % (d + 1, base + 1))
    A.e("s_mov_b32 s%d, 0x%x" % (d + 2, nbytes))
    A.e("s_mov_b32 s%d, 0x20000" % (d + 3))


SLOT = 24576
NSLOT = 6
MISC = SLOT * NSLOT
K1_LDS = 163840
OOB = 0x40000000
LDS_CNT = MISC + 4096 + 8

ORD = [("P", c) for c in range(8)] + [("F", c) for c in range(8)]
LASTP = 7
def slot_of(n):
    return ((n % NSLOT) if n >= 8 else (4, 5, 0, 1)[n & 3]) * SLOT
PAR = dict(la=2, laf=4, nt=2, estep=9, cstep=10, hstep=14, cdelay=0, stgap=1, fd=5, sd=3, ffill=6, sfill=10, sfill2=14,
           rot=1, pf=1, cpf=1, pfc=11, pfw=11, ala=5, wla=8, urot=1, p2poll=10, chk2=12, fl2=5, slp=8, prio=0, hold=4000, pk=1, gam=0, lastbar=14, hsp=0, xstep=6, map=1, defF=2, defS=1, e0=3, pfw2=2, coeff=0, g0=46, spf=0, spf0=9, spfn=6, spfgap=2, mpf=-1, wpf=-1, tlb=0, thr=99, thr2=99, thrp=99, stag=0, sper=4, dyn=0, split=1, fgap=4, probe=-1, ew=6, ea=3, dph=0, pfill=3, fpf=1, burn=4, hoist=1, rl=4, rc=1, ssp=2, p2map=1, xe=1, ct1=0, ct2=0, ct3=0, b2=99)

sX, sLRE, sLIM, sBRE, sBIM, sCRE, sCIM, sLDT = 16, 18, 20, 22, 24, 26, 28, 30
sW1, sW3, sW2, sGW, sDS, sWS, sOUT = 32, 34, 36, 38, 40, 42, 84
rX, rBRE, rBIM, rW1, rW3, rAS, rE, rEP, rG, rFL = 44, 48, 52, 56, 60, 64, 68, 72, 76, 88


def swiglu_ops(A, acc, off, pk, defer=None):
    o = []
    if pk:
        for r in range(0, 8, 2):
            o.append("v_pk_mul_f32 %s, %s, %s" % (v(acc + 8 + r, 2), v(acc + r, 2), v(acc + 8 + r, 2)))
        for r in range(0, 8, 2):
            o.append("v_pk_mul_f32 %s, %s, s[80:81] op_sel_hi:[1,0]" % (v(acc + r, 2), v(acc + r, 2)))
        for r in range(8):
            o.append("v_exp_f32 %s, %s" % (v(acc + r), v(acc + r)))
        for r in range(0, 8, 2):
            o.append("v_pk_add_f32 %s, %s, 1.0 op_sel_hi:[1,0]" % (v(acc + r, 2), v(acc + r, 2)))
        for r in range(8):
            o.append("v_rcp_f32 %s, %s" % (v(acc + r), v(acc + r)))
        for r in range(0, 8, 2):
            o.append("v_pk_mul_f32 %s, %s, %s" % (v(acc + 8 + r, 2), v(acc + 8 + r, 2), v(acc + r, 2)))
        for q in range(4):
            o.append("v_cvt_pk_bf16_f32 %s, %s, %s" % (v(acc + q), v(acc + 8 + 2 * q), v(acc + 9 + 2 * q)))
        (o if defer is None else defer).append(lambda: A.vmi("st", "buffer_store_dwordx4 %s, v6, %s, %s offen offset:%d%s" % (v(acc, 4), s(rAS, 4), "s87" if off >= 2048 else "s82", off, stmod())))
        return o
    for r in range(8):
        o.append("v_mul_f32 %s, %s, %s" % (v(acc + 8 + r), v(acc + r), v(acc + 8 + r)))
    for r in range(8):
        o.append("v_mul_f32 %s, s80, %s" % (v(acc + r), v(acc + r)))
    for r in range(8):
        o.append("v_exp_f32 %s, %s" % (v(acc + r), v(acc + r)))
    for r in range(8):
        o.append("v_add_f32 %s, 1.0, %s" % (v(acc + r), v(acc + r)))
    for r in range(8):
        o.append("v_rcp_f32 %s, %s" % (v(acc + r), v(acc + r)))
    for r in range(8):
        o.append("v_mul_f32 %s, %s, %s" % (v(acc + 8 + r), v(acc + 8 + r), v(acc + r)))
    for q in range(4):
        o.append("v_cvt_pk_bf16_f32 %s, %s, %s" % (v(acc + q), v(acc + 8 + 2 * q), v(acc + 9 + 2 * q)))
    (o if defer is None else defer).append(lambda: A.vmi("st", "buffer_store_dwordx4 %s, v6, %s, %s offen offset:%d%s" % (v(acc, 4), s(rAS, 4), "s87" if off >= 2048 else "s82", off, stmod())))
    return o


class Stream:
    def __init__(self, A, items, NB, D, K):
        self.A, self.items, self.NB, self.D, self.K = A, items, NB, D, K
        self.nb = 0
        self.rp = 0
        self.fill = []
        self.fence = -1
        self.dyn = False
        self.hold = 0

    def ninstr(self):
        return self.A.ni

    def pop(self, k):
        while k > 0 and self.fill:
            f = self.fill[0]
            if isinstance(f, tuple):
                if f[0] == "gap":
                    self.fill.pop(0)
                    return
                if f[0] == "bar" and self.nb <= f[1]:
                    return
                if f[0] == "dist" and self.ninstr() - f[1] < 12:
                    return
                self.fill.pop(0)
                continue
            self.fill.pop(0)
            if isinstance(f, str):
                self.A.e(f)
            else:
                f()
            k -= 1

    def flush(self):
        while self.fill:
            f = self.fill[0]
            if isinstance(f, tuple):
                if f[0] in ("bar", "gap"):
                    assert f[0] == "gap" or self.nb > f[1]
                    self.fill.pop(0)
                    continue
                d = 12 - (self.ninstr() - f[1])
                if d > 0:
                    self.A.e("s_nop %d" % (d - 1))
                self.fill.pop(0)
                continue
            self.pop(1)

    def barrier(self, n):
        while self.nb <= n:
            b = self.nb
            self.pre(b)
            lim = b - 1 if b == PAR["lastbar"] else b - 2
            old = [t for t in self.A.lg if t[0] == "c" and int(t[1:].split("_")[0]) <= lim]
            if b <= PAR["lastbar"]:
                if old:
                    self.A.lgw(old[-1])
                self.A.e("s_barrier")
            self.nb += 1
            self.post(b)

    def reads(self, upto, force):
        while self.rp < min(upto, len(self.items)):
            it = self.items[self.rp]
            if not force and (it[0] > self.nb or (it[0] == self.fence and self.nb <= it[0])):
                return
            self.barrier(it[0])
            self.read(it, self.rp % self.NB, "c%d_%d" % (it[0], self.rp))
            self.rp += 1

    def run(self):
        for mp, it in enumerate(self.items):
            if self.rp <= mp:
                self.reads(mp + 1, True)
                self.reads(mp + 1 + self.D, False)
            self.A.lgw("c%d_%d" % (it[0], mp))
            self.mfma(it, mp % self.NB)
            self.after(it, mp)
            self.reads(min(mp + 1 + self.D, self.rp + 2), False)
            if self.dyn and self.fill:
                n0 = len(self.A.L)
                self.A.e("s_setprio 0")
                self.pop(self.K)
                if len(self.A.L) == n0 + 1:
                    self.A.L.pop(); self.A.ni -= 1
                else:
                    self.A.e("s_setprio 2")
            else:
                self.pop(self.K)
        self.barrier(15)


def mk_items(ORD, ntile, withP):
    NT = PAR["nt"]
    items = []
    for n in range(16 - NT):
        if ORD[n][0] == "P" and not withP:
            continue
        for ss in range(4):
            for ti in range(ntile):
                items.append((n, ss, ti))
    for t0 in range(0, ntile, 2):
        for n in range(16 - NT, 16):
            assert ORD[n][0] == "F"
            for ss in range(4):
                for ti in (t0, t0 + 1):
                    items.append((n, ss, ti))
    return items


def emit(A, ops):
    for x in ops:
        if isinstance(x, str):
            A.e(x)
        else:
            x()


def code_srd(A, r, L):
    A.e("s_lshr_b32 s6, s2, 3")
    A.e("s_lshl_b32 s6, s6, 2")
    A.e("s_add_u32 s6, s6, s7")
    A.e("s_lshl_b32 s6, s6, 9")
    A.e("s_getpc_b64 s[%d:%d]" % (r, r + 1))
    A.lab(L)
    A.e("s_sub_u32 s%d, s%d, %s - %s_kernel" % (r, r, L, NAME))
    A.e("s_subb_u32 s%d, s%d, 0" % (r + 1, r + 1))
    A.e("s_add_u32 s%d, s%d, s6" % (r, r))
    A.e("s_addc_u32 s%d, s%d, 0" % (r + 1, r + 1))
    A.e("s_sub_i32 s%d, L_code_end - %s_kernel, s6" % (r + 2, NAME))
    A.e("s_max_i32 s%d, s%d, 0" % (r + 2, r + 2))
    A.e("s_mov_b32 s%d, 0x20000" % (r + 3))


def code_touch(A, r, va, vd, tag):
    A.e("s_mov_b64 exec, 15")
    A.vmi(tag, "buffer_load_dword %s, %s, %s, 0 offen sc1" % (vd, va, s(r, 4)))
    A.e("s_mov_b64 exec, -1")


def prologue(A):
    A.e("s_cmp_ge_u32 s2, 256")
    A.e("s_cbranch_scc1 L_end")
    A.stamp_begin()
    A.e("s_load_dwordx16 s[16:31], s[0:1], 0")
    A.e("s_load_dwordx8 s[32:39], s[0:1], 80")
    A.e("s_load_dwordx2 s[42:43], s[0:1], 128")
    A.e("s_load_dwordx2 s[40:41], s[0:1], 64")
    A.e("s_load_dwordx2 s[84:85], s[0:1], 112")
    A.e("v_lshrrev_b32 v2, 6, v0")
    A.e("v_and_b32 v1, 63, v0")
    A.e("v_readfirstlane_b32 s3, v2")
    if PAR["map"] == 0:
        A.e("s_bfe_u32 s4, s2, 0x20001")
        A.e("s_lshl_b32 s4, s4, 2")
        A.e("s_bfe_u32 s6, s2, 0x20003")
        A.e("s_add_u32 s4, s4, s6")
        A.e("s_and_b32 s5, s2, 1")
        A.e("s_lshl_b32 s5, s5, 3")
        A.e("s_lshr_b32 s6, s2, 5")
        A.e("s_add_u32 s5, s5, s6")
    else:
        A.e("s_bfe_u32 s4, s2, 0x10002")
        A.e("s_lshl_b32 s4, s4, 3")
        A.e("s_bfe_u32 s6, s2, 0x30003")
        A.e("s_add_u32 s4, s4, s6")
        A.e("s_and_b32 s5, s2, 3")
        A.e("s_lshl_b32 s5, s5, 2")
        A.e("s_lshr_b32 s6, s2, 6")
        A.e("s_add_u32 s5, s5, s6")
    A.e("s_and_b32 s7, s3, 3")
    A.e("v_and_b32 v8, 31, v1")
    A.e("v_lshrrev_b32 v9, 5, v1")
    A.e("s_lshl_b32 s8, s7, 12")
    if PAR["rot"]:
        A.e("s_add_u32 s15, s4, s5")
        A.e("s_and_b32 s15, s15, 1")
        if PAR["map"]:
            A.e("s_add_u32 s83, s4, s5")
            if PAR["dph"]:
                A.e("s_and_b32 s6, s2, 1")
                A.e("s_add_u32 s83, s83, s6")
        elif PAR["gam"]:
            A.e("s_sub_u32 s83, s4, s15")
            A.e("s_lshl_b32 s83, s83, 1")
        else:
            A.e("s_lshl_b32 s83, s4, 1")
        A.e("s_add_u32 s83, s83, s5")
    else:
        A.e("s_mov_b32 s83, 0")
    A.e("s_cmp_lt_u32 s3, 4")
    A.e("s_cbranch_scc1 L_S")


def tile_of(A, half, ct, r2):
    if PAR["p2map"]:
        A.e("s_and_b32 %s, s4, 11" % r2)
        A.e("s_lshr_b32 %s, s5, 3" % half)
        A.e("s_lshl_b32 %s, %s, 2" % (half, half))
        A.e("s_add_u32 %s, %s, %s" % (r2, r2, half))
        A.e("s_and_b32 %s, s4, 4" % ct)
    else:
        A.e("s_mov_b32 %s, s4" % r2)
        A.e("s_lshr_b32 %s, s5, 3" % ct)
        A.e("s_lshl_b32 %s, %s, 2" % (ct, ct))
    A.e("s_and_b32 %s, s5, 3" % half)
    A.e("s_add_u32 %s, %s, %s" % (ct, ct, half))
    A.e("s_bfe_u32 %s, s5, 0x10002" % half)


def piece_base(d, tmp):
    return ["s_lshr_b32 %s, s5, 2" % tmp, "s_mul_i32 %s, s5, 3" % d, "s_sub_u32 %s, %s, %s" % (d, d, tmp)]


def common_late(A):
    A.e("s_mov_b32 s80, 0x%x" % f2u(-LOG2E))
    A.e("v_bfe_u32 v10, v1, 1, 3")
    A.e("v_xor_b32 v10, v10, v9")
    A.e("v_lshlrev_b32 v10, 4, v10")
    A.e("v_lshl_add_u32 v7, v8, 7, v10")
    A.e("v_bfe_u32 v10, v1, 4, 1")
    A.e("v_mul_u32_u24 v12, 3104, v10")
    A.e("v_lshlrev_b32 v11, 9, v9")
    A.e("v_add_u32 v12, v12, v11")
    A.e("v_bfe_u32 v11, v1, 2, 2")
    A.e("v_lshl_add_u32 v12, v11, 6, v12")
    A.e("v_and_b32 v11, 3, v1")
    A.e("v_lshl_add_u32 v12, v11, 3, v12")
    A.e("v_xor_b32 v13, 32, v12")
    A.e("v_lshlrev_b32 v6, 4, v1")
    A.e("s_lshl_b32 s6, s4, 2")
    A.e("s_add_u32 s6, s6, s7")
    A.e("s_mul_i32 s81, s6, %d" % (NKS * 1024))
    emit(A, piece_base("s6", "s82"))
    A.e("s_lshl_b32 s6, s6, 11")
    A.e("s_add_u32 s82, s81, s6")
    srd(A, rAS, sWS, A_BYTES)


def w_scalars(A):
    A.e("s_mul_i32 s10, s7, 6144")
    A.e("s_cmp_ge_u32 s5, 15")
    A.e("s_cselect_b32 s92, 0x%x, 0" % OOB)
    A.e("s_and_b32 s93, s5, 3")
    A.e("s_cmp_eq_u32 s93, 3")
    A.e("s_cselect_b32 s93, 0x%x, 0" % OOB)


def wdma_addr_ops(d1, d3, tmp):
    return ["v_lshrrev_b32 %s, 2, v1" % tmp, "s_lshl_b32 s6, s7, 4", "v_add_u32 %s, s6, %s" % (tmp, tmp),
            "v_mul_u32_u24 %s, 2752, %s" % (d1, tmp)] + piece_base("s6", "s11") + ["s_lshl_b32 s6, s6, 6", "v_add_u32 %s, s6, %s" % (d1, d1),
            "v_and_b32 %s, 3, v1" % tmp, "v_lshl_add_u32 %s, %s, 4, %s" % (d1, tmp, d1), "v_xor_b32 %s, 32, %s" % (d3, d1)]


def dma_ops(A, n, w1, w3, mats=(0, 1)):
    kind, c = ORD[n]
    slot = slot_of(n)
    tag = "ch%d" % n
    ops = []
    def mk(pre, m0, ins, gap="s_nop 0"):
        def f():
            for x in pre:
                A.e(x)
            A.e(m0)
            A.e(gap)
            A.vmi(tag, ins)
        return f
    if kind == "P":
        pre = ["s_add_u32 s11, s83, %d" % c, "s_and_b32 s11, s11, 7", "s_lshl_b32 s11, s11, 7", "s_add_u32 s12, s11, 8192"]
        for q in range(4):
            ops.append(mk(pre if q == 0 else [], "s_add_u32 m0, s8, %d" % (slot + 1024 * q),
                          "buffer_load_dwordx4 %s, %s, s%d offen lds" % ("v3" if q & 1 else "v2", s(rX, 4), 12 if q >= 2 else 11)))
        ops.append(mk([], "s_add_u32 m0, s9, %d" % (slot + 16384), "buffer_load_dwordx4 v4, %s, s11 offen lds" % s(rBRE, 4)))
        ops.append(mk([], "s_add_u32 m0, s9, %d" % (slot + 20480), "buffer_load_dwordx4 v4, %s, s11 offen lds" % s(rBIM, 4)))
    else:
        pre = ["s_add_u32 s11, s83, %d" % c, "s_and_b32 s11, s11, 7", "s_mul_i32 s11, s11, 176128"]
        for m in mats:
            for q in range(3):
                ops.append(mk(pre if m == mats[0] and q == 0 else [], "s_add_u32 m0, s10, %d" % (slot + m * 3072 + 1024 * q - 64 * q),
                              "buffer_load_dwordx4 %s, %s, s%d offen offset:%d lds" % (w3 if m else w1, s(rW3 if m else rW1, 4), 12 if q else 11, 64 * q),
                              "s_add_u32 s12, s11, s%d" % (91 + q) if q else "s_nop 0"))
    return ops


P2_SEQ = [("X", 0, "o", None), ("C", 0, "s", 0), ("C", 1, "s", 1)]
for m_ in range(2, 8):
    P2_SEQ += [("C", m_, "s", m_), ("C", m_, "o", m_)]
NSSM = len(P2_SEQ)
FU = [8, 9, 10, 11, 0, 1, 2, 3, 4, 5, 6]
P2_SEQ += [("W", m_, "s", FU[m_]) for m_ in range(11)]
NSEND = len(P2_SEQ) - 1
P2_SEQ += [("C", 0, "o", -1), ("C", 1, "o", -2)] + [("W", m_, "o", FU[m_]) for m_ in range(11)]
P2_W = []
for n_, (k_, m_, h_, u_) in enumerate(P2_SEQ):
    if h_ == "s":
        prev = [q for q in range(n_) if P2_SEQ[q][3] == u_]
        P2_W.append((k_, m_, u_, n_, prev[0] + 2 if prev else (-1 if u_ < 6 else 0)))
NA = 7
GU = 19 * 8192
def p2_real(n):
    return n < PAR["b2"] or (n - PAR["b2"]) % 2 == 0
def AU(n): return (12 + n % NA) * 8192


def role_F(A):
    A.vm, A.lg = [], []
    A.thr = PAR["thrp"]
    ACC, FB = 64, 32
    LA = PAR["la"]
    if PAR["prio"] or PAR["dyn"]:
        A.e("s_setprio 1")
    A.e("v_lshrrev_b32 v10, 4, v1")
    A.e("v_and_b32 v11, 7, v1")
    A.e("v_xor_b32 v10, v10, v11")
    A.e("v_lshlrev_b32 v10, 4, v10")
    A.e("v_bfe_u32 v11, v1, 3, 2")
    A.e("v_lshl_add_u32 v2, v11, 10, v10")
    A.e("v_lshl_add_u32 v2, v9, 14, v2")
    A.e("s_lshl_b32 s6, s7, 15")
    A.e("v_add_u32 v2, s6, v2")
    A.e("v_xor_b32 v3, 64, v2")
    A.e("v_add_u32 v3, 4096, v3")
    A.e("s_lshl_b32 s9, s7, 10")
    A.e("s_and_b32 s6, s7, 1")
    A.e("s_lshl_b32 s6, s6, 6")
    A.e("v_xor_b32 v4, s6, v10")
    A.e("v_lshrrev_b32 v11, 3, v1")
    A.e("v_lshl_add_u32 v4, v11, 10, v4")
    A.e("s_lshl_b32 s6, s7, 13")
    A.e("v_add_u32 v4, s6, v4")
    emit(A, wdma_addr_ops("v5", "v16", "v10"))
    w_scalars(A)
    A.e("s_lshl_b32 s6, s4, 17")
    A.e("s_lshl_b32 s13, s5, 15")
    A.e("s_waitcnt lgkmcnt(0)")
    A.fs(52)
    if PAR["gam"]:
        srd(A, rW1, sW1, 512 * 2752)
        srd(A, rW3, sW3, 512 * 2752)
    if PAR["gam"]:
        assert LA == 2
        A.e("s_cmp_lg_u32 s15, 0")
        A.e("s_cbranch_scc1 L_F_now")
        emit(A, dma_ops(A, 8, "v5", "v16") + dma_ops(A, 9, "v5", "v16"))
        A.vm = []
        A.lab("L_F_now")
    srd(A, rX, sX, 131072, "s6")
    d0 = dma_ops(A, 0, "v5", "v16")
    emit(A, d0[:4])
    srd(A, rBRE, sBRE, 32768, "s13")
    srd(A, rBIM, sBIM, 32768, "s13")
    emit(A, d0[4:])
    A.fs(53)
    A.e("s_lshl_b32 s6, s5, 3")
    A.e("s_lshl_b32 s13, s7, 1")
    A.e("s_add_u32 s13, s13, s6")
    A.e("s_lshl_b32 s6, s13, 10")
    A.e("v_lshlrev_b32 v17, 4, v8")
    A.e("v_lshl_add_u32 v18, v9, 10, v17")
    A.e("v_add_u32 v18, s6, v18")
    A.vmi("g", "buffer_load_dwordx4 v[64:67], v18, %s, 0 offen" % s(rX, 4))
    A.vmi("g", "buffer_load_dwordx4 v[68:71], v18, %s, 0 offen offset:512" % s(rX, 4))
    A.vmi("g", "global_load_dwordx4 v[72:75], v17, %s" % s(sGW, 2))
    A.vmi("g", "global_load_dwordx4 v[76:79], v17, %s offset:512" % s(sGW, 2))
    A.e("s_and_b32 s6, s4, 8")
    A.e("s_lshl_b32 s6, s6, 4")
    A.e("s_add_u32 s6, s6, 0x%x" % EPR_OFF)
    srd(A, rFL, sWS, 4, "s6")
    A.e("v_mov_b32 v88, 0")
    A.vmi("g", "buffer_load_dword v87, v88, %s, 0 offen sc1" % s(rFL, 4))
    emit(A, dma_ops(A, 1, "v5", "v16"))
    A.fs(54)
    srd(A, rW1, sW1, 512 * 2752)
    srd(A, rW3, sW3, 512 * 2752)
    common_late(A)
    srd(A, rG, sWS, 16384, "0x%x" % G_OFF)
    A.e("v_add_u32 v7, s8, v7")
    A.e("s_add_u32 s82, s82, %d" % (65536 + 2048))
    A.e("s_add_u32 s87, s82, s93")
    A.e("s_add_u32 s82, s82, s92")
    A.e("s_branch L_Fmain")
    A.fmain = len(A.L)
    A.lab("L_Fmain")

    def g_ops():
        o = [lambda: A.vmw("g"), "v_readfirstlane_b32 s86, v87", "v_mov_b32 v84, 0", "s_add_u32 s86, s86, 1", "s_bitset1_b32 s86, 31"]
        for d in range(8):
            xx, ww = 64 + d, 72 + d
            o += ["v_lshlrev_b32 v80, 16, %s" % v(xx), "v_and_b32 v81, 0xffff0000, %s" % v(xx),
                  "v_lshlrev_b32 v82, 16, %s" % v(ww), "v_and_b32 v83, 0xffff0000, %s" % v(ww),
                  "v_mul_f32 v80, v80, v82", "v_mul_f32 v81, v81, v83", "v_cvt_pk_bf16_f32 v80, v80, v81",
                  "v_lshlrev_b32 v81, 16, v80", "v_and_b32 v80, 0xffff0000, v80",
                  "v_add_f32 v84, v84, v81", "v_add_f32 v84, v84, v80"]
        for sh in (1, 2, 4, 8):
            o += ["s_nop 1", "v_add_f32_dpp v84, v84, v84 row_shr:%d row_mask:0xf bank_mask:0xf bound_ctrl:0" % sh]
        o += ["s_nop 1", "v_add_f32_dpp v84, v84, v84 row_bcast:15 row_mask:0xa bank_mask:0xf",
              "v_cvt_pk_bf16_f32 v84, v84, v84", "v_and_b32 v84, 0xffff0000, v84", "v_mul_f32 v84, s80, v84",
              "v_exp_f32 v84, v84", "s_nop 0", "v_add_f32 v84, 1.0, v84", "v_rcp_f32 v84, v84", "s_nop 0",
              "v_cvt_pk_bf16_f32 v84, v84, v84", "v_and_b32 v84, 0xffff0000, v84",
              "v_sub_f32 v85, 1.0, v84", "v_cvt_pk_bf16_f32 v85, v85, v85", "v_and_b32 v85, 0xffff0000, v85"]
        return o

    def g_store():
        A.e("s_lshl_b32 s6, s4, 7")
        A.e("s_add_u32 s6, s6, s13")
        A.e("s_lshl_b32 s6, s6, 3")
        A.e("v_lshlrev_b32 v86, 3, v9")
        A.e("s_mov_b32 exec_lo, 0x80000000")
        A.e("s_mov_b32 exec_hi, 0x80000000")
        A.vmi("gst", "buffer_store_dwordx2 v[84:85], v86, %s, s6 offen%s" % (s(rG, 4), stmod()))
        A.e("s_mov_b64 exec, -1")

    gq = g_ops()
    rO = 68
    A.e("s_and_b32 s72, s7, 1")
    A.e("s_lshr_b32 s73, s7, 1")
    tile_of(A, "s6", "s74", "s75")
    A.e("s_lshl_b32 s75, s75, 1")
    A.e("s_add_u32 s75, s75, s6")
    A.e("s_lshl_b32 s75, s75, 1")
    A.e("s_add_u32 s75, s75, s72")
    A.e("s_lshl_b32 s75, s75, 16")
    A.e("s_lshl_b32 s74, s74, 1")
    A.e("s_add_u32 s74, s74, s73")
    A.e("s_lshl_b32 s74, s74, 7")
    A.e("s_add_u32 s75, s75, s74")
    A.e("v_lshlrev_b32 v20, 15, v9")
    A.e("v_lshl_add_u32 v20, v8, 2, v20")
    A.e("v_add_u32 v20, s75, v20")
    srd(A, rO, sOUT, 2048 * 2048)
    A.e("s_lshl_b32 s6, s72, 12")
    A.e("s_add_u32 s6, s6, %d" % AU(0))
    A.e("v_add_u32 v17, s6, v6")
    A.e("v_subrev_u32 v18, s8, v7")
    A.e("s_lshl_b32 s6, s73, 12")
    A.e("v_add_u32 v18, s6, v18")
    A.e("v_bfe_u32 v10, v1, 2, 2")
    A.e("v_lshlrev_b32 v19, 7, v10")
    A.e("v_lshl_add_u32 v19, v9, 9, v19")
    A.e("v_bfe_u32 v10, v1, 4, 1")
    A.e("v_lshl_add_u32 v19, v10, 5, v19")
    A.e("v_and_b32 v10, 3, v1")
    A.e("v_lshl_add_u32 v19, v10, 3, v19")
    A.e("v_bfe_u32 v10, v1, 3, 1")
    A.e("v_xor_b32 v10, s73, v10")
    A.e("v_lshl_add_u32 v19, v10, 6, v19")
    A.e("s_lshl_b32 s6, s73, 6")
    A.e("v_lshl_add_u32 v23, v8, 1, s6")
    A.e("s_lshl_b32 s6, s72, 1")
    A.e("v_add_u32 v10, s6, v9")
    A.e("v_lshl_add_u32 v21, v10, 11, v23")
    A.e("v_add_u32 v21, %d, v21" % AU(0))
    A.e("s_bfe_u32 s6, s5, 0x10002")
    A.e("s_lshl_b32 s6, s6, 9")
    A.e("s_add_u32 s6, s6, %d" % GU)
    A.e("v_lshl_add_u32 v22, v10, 7, s6")
    A.e("v_add_u32 v23, %d, v23" % (GU + 1024))
    A.e("s_lshl_b32 s100, s5, 2")
    A.e("s_add_u32 s100, s100, s7")
    A.e("s_lshl_b32 s100, s100, 12")
    A.e("s_xor_b32 s101, s100, 0x10000")
    A.e("v_bfe_u32 v10, v1, 4, 1")
    A.e("v_mul_u32_u24 v11, 1152, v10")
    A.e("v_lshl_add_u32 v11, v9, 8, v11")
    A.e("v_bfe_u32 v10, v1, 2, 2")
    A.e("v_lshl_add_u32 v11, v10, 5, v11")
    A.e("v_and_b32 v10, 1, v1")
    A.e("v_lshl_add_u32 v11, v10, 4, v11")
    A.e("v_bfe_u32 v10, v1, 1, 1")
    A.e("v_lshl_add_u32 v11, v10, 3, v11")
    A.e("s_lshl_b32 s6, s72, 12")
    A.e("s_add_u32 s6, s6, %d" % AU(0))
    A.e("v_add_u32 v11, s6, v11")
    A.e("v_xor_b32 v10, 0x80, v11")

    tiles = [2, 3, 4, 5]
    S = Stream(A, mk_items(ORD, 4, False), 8, PAR["fd"], PAR["ffill"])
    late = []
    dq = []
    if PAR["split"]:
        for n in range(LASTP + LA + 1, 16):
            dq += [(n, f) for f in dma_ops(A, n, "v5", "v16", (1,))]

    def pf_setup():
        srd(A, 44, sW2, 1376 * 1024)
        A.e("s_bitcmp1_b32 s5, 2")
        A.e("s_cselect_b64 s[48:49], %s, %s" % (s(sCIM, 2), s(sCRE, 2)))
        A.e("s_cselect_b32 s15, 704, 0")
        A.e("s_mov_b32 s50, 0x80000")
        A.e("s_mov_b32 s51, 0x20000")
        A.e("s_lshr_b32 s6, s2, 3")
        A.e("s_mul_i32 s14, s6, 22")
        A.e("s_add_u32 s15, s15, s14")
        A.e("s_mul_i32 s14, s7, 11")
        A.e("s_lshr_b32 s14, s14, 1")
        A.e("s_add_u32 s15, s15, s14")
        if PAR["p2map"]:
            A.e("s_lshl_b32 s15, s15, 10")
            A.e("s_lshl_b32 s9, s6, 2")
            A.e("s_add_u32 s9, s9, s7")
            A.e("s_lshl_b32 s9, s9, 12")
            A.e("v_lshlrev_b32 v2, 7, v1")
            A.e("v_mov_b32 v3, v2")
            return
        A.e("s_lshl_b32 s15, s15, 1")
        A.e("s_lshr_b32 s14, s5, 3")
        A.e("s_add_u32 s15, s15, s14")
        A.e("s_lshl_b32 s15, s15, 9")
        A.e("s_lshl_b32 s9, s14, 18")
        A.e("s_lshl_b32 s6, s6, 13")
        A.e("s_add_u32 s9, s9, s6")
        A.e("s_lshl_b32 s6, s7, 11")
        A.e("s_add_u32 s9, s9, s6")
        A.e("v_lshlrev_b32 v2, 7, v1")
        A.e("v_lshrrev_b32 v3, 2, v1")
        A.e("v_lshlrev_b32 v3, 3, v3")
        A.e("v_and_or_b32 v3, v1, 3, v3")
        A.e("v_lshlrev_b32 v3, 7, v3")

    def pf_c():
        A.e("s_mov_b32 exec_hi, 0" if PAR["p2map"] else "s_mov_b64 exec, 0xffff")
        A.vmi("pf", "buffer_load_dword v4, v2, s[48:51], s9 offen")
        A.e("s_mov_b64 exec, -1")

    def pf_w():
        A.e("s_mov_b32 exec_hi, 0xffff" if PAR["p2map"] else "s_mov_b64 exec, 0xffffff")
        A.vmi("pf", "buffer_load_dword v4, v3, s[44:47], s15 offen")
        A.e("s_mov_b64 exec, -1")

    if PAR["pf"] and PAR["fpf"]:
        dq += sorted([(PAR["pfc"] + PAR["laf"], pf_c), (PAR["pfw"] + PAR["laf"], pf_w)], key=lambda x: x[0])

    def dma_upto(m, maxops=999):
        while dq and dq[0][0] <= m and maxops > 0:
            dq.pop(0)[1]()
            maxops -= 1

    def waddr(n):
        return ((14, 15), (28, 29), (30, 31))[n % 3]

    def pre(b):
        kind, c = ORD[b]
        slot = slot_of(b)
        if b == LASTP + 1:
            emit(A, gq)
            g_store()
            if PAR["pf"] and PAR["fpf"]:
                pf_setup()
            A.e("s_lshl_b32 s6, s4, 18")
            A.e("s_add_u32 s6, s6, 0x%x" % XB_OFF)
            srd(A, rFL, sWS, 262144, "s6")
        dma_upto(min(b - 1 + LA, 15) if b != PAR["lastbar"] else 15)
        if b == 10:
            A.vmw("gst")
        if b == PAR["lastbar"]:
            A.vmw("ch15")
        if kind == "P":
            A.e("v_add_u32 v24, %d, v7" % slot)
            A.e("v_xor_b32 v25, 32, v24")
            A.e("v_xor_b32 v26, 64, v24")
            A.e("v_xor_b32 v27, 0x60, v24")
        else:
            A.e("v_add_u32 v%d, %d, v12" % (waddr(b)[0], slot))
            A.e("v_add_u32 v%d, %d, v13" % (waddr(b)[1], slot))
        A.fs2(20 + b)
        A.vmw("ch%d" % b)
        if PAR["gam"] and b == 7:
            A.e("s_cmp_lg_u32 s15, 0")
            A.e("s_cbranch_scc1 L_F_w7")
            A.e("s_waitcnt vmcnt(0)")
            A.lab("L_F_w7")
        A.fs2(36 + b)

    def post(b):
        kind, c = ORD[b]
        A.fs(b)
        if kind == "P":
            for ss in range(4):
                A.lgi("c%d_x" % b, "ds_read_b128 %s, %s" % (a(16 * c + 4 * ss, 4), v(24 + ss)))
            for n in range(2, 16):
                if (n == b + LA) or (b == 0 and n < LA):
                    if PAR["gam"] and n >= 8:
                        A.e("s_cmp_eq_u32 s15, 0")
                        A.e("s_cbranch_scc1 L_F_skip%d" % n)
                    emit(A, dma_ops(A, n, "v5", "v16"))
                    if PAR["gam"] and n >= 8:
                        A.lab("L_F_skip%d" % n)
            if b == 0:
                emit(A, gq[:PAR["g0"]])
                del gq[:PAR["g0"]]

    def read(it, sl, tag):
        n, ss, ti = it
        T = tiles[ti]
        for nn in range(2):
            A.lgi(tag, "ds_read_b64_tr_b16 %s, v%d offset:%d" % (v(FB + 4 * sl + 2 * nn, 2), waddr(n)[T & 1],
                                                                ss * 6144 + (T >> 1) * 1024 + nn * 256))

    def mfma(it, sl):
        n, ss, ti = it
        c = ORD[n][1]
        first = (c == 0 and ss == 0)
        A.e("v_mfma_f32_32x32x16_bf16 %s, %s, %s, %s" % (v(ACC + 16 * ti, 16), v(FB + 4 * sl, 4), a(16 * c + 4 * ss, 4),
                                                        "0" if first else v(ACC + 16 * ti, 16)))

    def after(it, mp):
        n, ss, ti = it
        if n == 15 and ss == 3:
            S.fill.append(("dist", S.ninstr()))
            S.fill += swiglu_ops(A, ACC + 16 * ti, 1024 * ti, PAR["pk"] and ti >= 2, late if ti >= 4 - PAR["defF"] else None)
        if mp % PAR["fgap"] == 0:
            dma_upto(S.nb - 1 + PAR["laf"], 1)

    S.pre, S.post, S.read, S.mfma, S.after = pre, post, read, mfma, after
    S.run()
    assert not dq
    A.fs(16)
    S.flush()
    A.fs(19)

    N = len(P2_SEQ)
    AS, AO, BS, BO, GV = 32, 48, 64, 80, 96
    XV, RV = AO, AS
    A.lg = []
    seen = {"Co"}

    def addr(n):
        k_, m_, h_, u_ = P2_SEQ[n]
        if n and (P2_SEQ[n - 1][3] == u_ or u_ < 0):
            return
        if k_ == "W":
            A.e("v_add_u32 v24, %d, v19" % (u_ * 8192))
        elif k_ == "C":
            A.e("v_add_u32 v24, %d, v18" % (u_ * 8192))
            A.e("v_xor_b32 v25, 32, v24")
            A.e("v_xor_b32 v26, 64, v24")
            A.e("v_xor_b32 v27, 0x60, v24")

    def wfb(n):
        if P2_SEQ[n][0] == "C" and P2_SEQ[n][1] < 2:
            return 80 + 16 * P2_SEQ[n][1]
        while n and P2_SEQ[n - 1][3] == P2_SEQ[n][3]:
            n -= 1
        return 32 + 16 * (n % 3)

    def g_reads(tg, other, qs):
        for q in qs:
            A.lgi(tg, "ds_read_b128 %s, %s offset:%d" % (v(GV + 4 * q, 4), "v28" if other else "v22", 16 * q))

    def reads2(n, ss):
        k_, m_, h_, u_ = P2_SEQ[n]
        fa = 16 * (n & 1)
        tg = "r%d_%d" % (n, ss)
        if k_ == "X":
            for r in range(4 * ss, 4 * ss + 4):
                A.lgi(tg, "ds_read_u16 %s, v21 offset:%d" % (v(XV + r), AU(n) - AU(0) + 128 * r))
            if ss == 3:
                A.lgi(tg, "ds_read_u16 v16, v23")
            return
        if k_ == "W":
            A.lgi(tg, "ds_read_b128 %s, v17 offset:%d" % (a(fa + 4 * ss, 4), AU(n) - AU(0) + 1024 * ss))
        else:
            for nn in range(2):
                A.lgi(tg, "ds_read_b64_tr_b16 %s, %s offset:%d" % (a(fa + 4 * ss + 2 * nn, 2), "v10" if nn else "v11",
                                                                  AU(n) - AU(0) + 2048 * (ss >> 1) + 512 * (ss & 1)))
        if n and (P2_SEQ[n - 1][3] == u_ or u_ < 0):
            return
        if k_ == "W":
            for nn in range(2):
                A.lgi(tg, "ds_read_b64_tr_b16 %s, v24 offset:%d" % (a(wfb(n) + 4 * ss + 2 * nn, 2), 2048 * ss + 1024 * nn))
        else:
            A.lgi(tg, "ds_read_b128 %s, %s" % (a(wfb(n) + 4 * ss, 4), v(24 + ss)))

    def mfma2(n, ss):
        k_, m_, h_, u_ = P2_SEQ[n]
        A.lgw("r%d_%d" % (n, ss))
        if k_ == "X":
            return
        acc = v({"Cs": AS, "Co": AO, "Ws": BS, "Wo": BO}[k_ + h_], 16)
        first = (k_ + h_) not in seen
        seen.add(k_ + h_)
        A.e("v_mfma_f32_32x32x16_bf16 %s, %s, %s, %s" % (acc, a(16 * (n & 1) + 4 * ss, 4), a(wfb(n) + 4 * ss, 4), "0" if first else acc))

    def xd(q):
        if q == 0:
            A.e("v_lshlrev_b32 v16, 16, v16")
        r0, r1 = 2 * q, 2 * q + 1
        A.e("v_lshlrev_b32 %s, 16, %s" % (v(XV + r0), v(XV + r0)))
        A.e("v_lshlrev_b32 %s, 16, %s" % (v(XV + r1), v(XV + r1)))
        A.e("v_mul_f32 %s, %s, v16" % (v(XV + r0), v(XV + r0)))
        A.e("v_mul_f32 %s, %s, v16" % (v(XV + r1), v(XV + r1)))
        A.e("v_cvt_pk_bf16_f32 %s, %s, %s" % (v(XV + r0), v(XV + r0), v(XV + r1)))
        A.e("v_and_b32 %s, 0xffff0000, %s" % (v(XV + r1), v(XV + r0)))
        A.e("v_lshlrev_b32 %s, 16, %s" % (v(XV + r0), v(XV + r0)))

    def send(qs):
        if 0 in qs:
            A.e("s_nop 10")
        for q in qs:
            for r in range(4 * q, 4 * q + 4):
                A.e("v_fmac_f32 %s, %s, %s" % (v(AS + r), v(GV + 2 * r + 1), v(BS + r)))
            for r in (4 * q, 4 * q + 2):
                A.e("v_cvt_pk_bf16_f32 %s, %s, %s" % (v(BO + r), v(AS + r), v(AS + r + 1)))
            A.e("buffer_store_dwordx4 %s, v6, %s, s101 offen offset:%d%s" % (v(BO + 4 * q, 4), s(rFL, 4), 1024 * q, stmod("x")))

    def recv_issue():
        for q in range(4):
            A.e("buffer_load_dwordx4 %s, v6, %s, s100 offen offset:%d sc1" % (v(RV + 4 * q, 4), s(rFL, 4), 1024 * q))

    def recv():
        A.e("s_mov_b32 s13, 0")
        A.lab("L_F_rpoll")
        A.e("s_waitcnt vmcnt(0)")
        T = [v(RV + 2 * q + 1) for q in range(8)]
        for op, d in (("v_min3_u32", "v28"), ("v_max3_u32", "v29")):
            A.e("%s %s, %s, %s, s86" % (op, d, T[0], T[1]))
            for q in range(2, 8, 2):
                A.e("%s %s, %s, %s, %s" % (op, d, T[q], T[q + 1], d))
        A.e("v_cmp_ne_u32 vcc, v28, v29")
        A.e("s_cbranch_vccz L_F_rok")
        A.e("s_sleep 2")
        recv_issue()
        A.e("s_add_u32 s13, s13, 1")
        A.e("s_cmp_lt_u32 s13, 0x20000")
        A.e("s_cbranch_scc1 L_F_rpoll")
        A.e("s_waitcnt vmcnt(0)")
        A.lab("L_F_rok")

    A.e("v_xor_b32 v28, 0x200, v22")
    assert PAR["fl2"] <= 8 and not PAR["stag"] and PAR["ssp"] in (1, 2) and N - PAR["rc"] >= NSEND + 10
    for n in range(N):
        addr(n)
        if n == PAR["fl2"]:
            assert not late
            A.e("s_waitcnt vmcnt(0)")
        if p2_real(n):
            A.e("s_barrier")
        if "hold" in OPT:
            A.fs(100 + n)
        for ss in range(4):
            if n >= 1:
                mfma2(n - 1, ss)
            reads2(n, ss)
        if late:
            late.pop(0)()
        if 1 <= n <= 4:
            xd(2 * n - 2)
            xd(2 * n - 1)
        if n == 8:
            g_reads("g1", True, range(8))
        if n == 9:
            for q in range(8):
                A.e("v_mov_b32 %s, s86" % v(BO + 2 * q + 1))
        if NSSM + 1 <= n < NSSM + 9:
            A.lgw("g1")
            for r in (2 * (n - NSSM - 1), 2 * (n - NSSM - 1) + 1):
                A.e("v_mul_f32 %s, %s, %s" % (v(AS + r), v(GV + 2 * r), v(AS + r)))
        sp = PAR["ssp"]
        if 0 <= n - NSEND - 1 < sp:
            if n == NSEND + 1:
                A.fs(17)
            q0 = (n - NSEND - 1) * (4 // sp)
            send(range(q0, q0 + 4 // sp))
        if n == NSEND + 1 + sp:
            g_reads("g2", False, range(8))
        if NSEND + 6 <= n < NSEND + 10:
            A.lgw("g2")
            for r in range(4 * (n - NSEND - 6), 4 * (n - NSEND - 6) + 4):
                A.e("v_mul_f32 %s, %s, %s" % (v(AO + r), v(GV + 2 * r), v(AO + r)))
        if n == N - PAR["rl"]:
            recv_issue()
        if n == N - PAR["rc"]:
            A.fs(18)
            recv()
            A.fs(57)
    for ss in range(4):
        mfma2(N - 1, ss)
    A.fs(59)
    def unpack(q):
        A.e("v_and_b32 %s, 0xffff0000, %s" % (v(RV + 2 * q + 1), v(RV + 2 * q)))
        A.e("v_lshlrev_b32 %s, 16, %s" % (v(RV + 2 * q), v(RV + 2 * q)))
        A.e("v_add_f32 %s, %s, %s" % (v(AO + 2 * q + 1), v(AO + 2 * q + 1), v(RV + 2 * q + 1)))
        A.e("v_add_f32 %s, %s, %s" % (v(AO + 2 * q), v(AO + 2 * q), v(RV + 2 * q)))
    for q in range(3):
        unpack(q)
    for r in range(16):
        if r % 2 == 1 and r // 2 + 3 < 8:
            unpack(r // 2 + 3)
        A.e("v_fmac_f32 %s, %s, %s" % (v(AO + r), v(GV + 2 * r + 1), v(BO + r)))
        if r % 2 == 0:
            A.e("s_movk_i32 s6, %d" % (2048 * r))
        A.e("buffer_store_dword %s, v20, %s, s6 offen offset:%d%s" % (v(AO + r), s(rO, 4), 2048 * (r & 1), stmod("o")))
    A.fs(60)
    A.fs_end()
    A.dbg_end()
    A.e("s_endpgm")


def cpow(A, n_scale, dre, dim, t0, t1, va, vb):
    if n_scale == 1.0:
        A.e("v_exp_f32 %s, %s" % (t0, va))
        A.e("v_fract_f32 %s, %s" % (t1, vb))
    else:
        ns = n_scale if isinstance(n_scale, str) else "0x%x" % f2u(n_scale)
        A.e("v_mul_f32 %s, %s, %s" % (t0, ns, va))
        A.e("v_mul_f32 %s, %s, %s" % (t1, ns, vb))
        A.e("v_exp_f32 %s, %s" % (t0, t0))
        A.e("v_fract_f32 %s, %s" % (t1, t1))
    A.e("v_cos_f32 %s, %s" % (dre, t1))
    A.e("v_sin_f32 %s, %s" % (dim, t1))
    A.e("s_nop 0")
    A.e("v_mul_f32 %s, %s, %s" % (dre, dre, t0))
    A.e("v_mul_f32 %s, %s, %s" % (dim, dim, t0))


def cfma_ops(dr, di, mr, mi, xr, xi, ar, ai):
    return ["v_fma_f32 %s, %s, %s, %s" % (dr, mr, xr, ar),
            "v_fma_f32 %s, %s, %s, %s" % (di, mr, xi, ai),
            "v_fma_f32 %s, -%s, %s, %s" % (dr, mi, xi, dr),
            "v_fma_f32 %s, %s, %s, %s" % (di, mi, xr, di)]


def lane0_store(A, cond, val, srd_, soff, off, vt, vz, L):
    for x in cond:
        A.e(x)
    A.e("s_cbranch_scc1 " + L)
    A.cond = True
    A.e("v_mov_b32 %s, %s" % (vt, val))
    A.e("v_mov_b32 %s, 0" % vz)
    A.e("s_mov_b64 exec, 1")
    A.e("buffer_store_dword %s, %s, %s, %s offen offset:%d sc1" % (vt, vz, s(srd_, 4), soff, off))
    A.e("s_mov_b64 exec, -1")
    A.cond = False
    A.lab(L)


def role_S(A):
    A.vm, A.lg = [], []
    A.thr = 99
    A.lab("L_S")
    LR, LI, NLI = "v16", "v17", "v5"
    L16R, L16I, QR, QI, L256R, L256I = "v18", "v19", "v20", "v21", "v22", "v23"
    CR, CI, PR, PI = "v2", "v3", "v10", "v11"
    ER, EI, SR, SI = "v56", "v57", "v58", "v59"
    RE, IM, ACC, FB = 64, 80, 96, 32
    A.e("s_lshl_b32 s6, s5, 6")
    A.e("v_lshlrev_b32 v4, 1, v8")
    A.e("v_add_u32 v4, s6, v4")
    A.e("v_mov_b32 v55, 0")
    if PAR["cpf"]:
        A.e("s_lshr_b32 s6, s2, 3")
        A.e("s_lshl_b32 s6, s6, 2")
        A.e("s_add_u32 s6, s6, s7")
        A.e("s_lshl_b32 s6, s6, 9")
        A.e("v_and_b32 v53, 3, v1")
        A.e("v_lshl_add_u32 v53, v53, 7, s6")
        A.e("v_min_u32 v53, L_code_end - %s_kernel - 4, v53" % NAME)
        A.e("s_getpc_b64 s[44:45]")
        A.lab("L_pc")
        A.e("s_sub_u32 s44, s44, L_pc - %s_kernel" % NAME)
        A.e("s_subb_u32 s45, s45, 0")
        A.e("v_mov_b32 v51, s45")
        A.e("v_add_co_u32 v50, vcc, s44, v53")
        A.e("s_nop 1")
        A.e("v_addc_co_u32 v51, vcc, 0, v51, vcc")
        A.e("s_mov_b64 exec, 15")
        A.vmi("par", "global_load_dword v52, v[50:51], off")
        A.e("s_mov_b64 exec, -1")
    A.e("s_lshl_b32 s6, s5, 7")
    A.e("s_add_u32 s6, s6, 0x%x" % EP_OFF)
    A.e("s_waitcnt lgkmcnt(0)")
    A.vmi("par", "global_load_ushort v60, v4, %s" % s(sLRE, 2))
    A.vmi("par", "global_load_ushort v61, v4, %s" % s(sLIM, 2))
    A.vmi("par", "global_load_ushort v62, v4, %s" % s(sLDT, 2))
    srd(A, rEP, sWS, 4, "s6")
    A.vmi("par", "buffer_load_dword v54, v55, %s, 0 offen sc1" % s(rEP, 4))
    A.e("s_and_b32 s6, s4, 8")
    A.e("s_lshl_b32 s6, s6, 4")
    A.e("s_add_u32 s6, s6, 0x%x" % EPR_OFF)
    srd(A, rG, sWS, 4, "s6")
    A.vmi("par", "buffer_load_dword v56, v55, %s, 0 offen sc1" % s(rG, 4))
    if PAR["tlb"]:
        A.e("s_cmp_lg_u32 s7, 0")
        A.e("s_cbranch_scc1 L_S_notlb")
        A.e("v_lshlrev_b32 v53, 21, v1")
        A.e("s_mov_b64 exec, 1")
        for ptr in (sW1, sW3, sW2, sCRE, sCIM, sDS):
            A.e("global_load_dword v52, v55, %s" % s(ptr, 2))
        A.e("s_mov_b64 exec, 3")
        A.e("global_load_dword v52, v53, %s" % s(sOUT, 2))
        A.e("s_mov_b64 exec, 31")
        A.e("global_load_dword v52, v53, %s" % s(sWS, 2))
        A.e("s_mov_b64 exec, -1")
        A.lab("L_S_notlb")
    common_late(A)
    w_scalars(A)
    srd(A, rW1, sW1, 512 * 2752)
    srd(A, rW3, sW3, 512 * 2752)
    A.e("s_lshl_b32 s6, s5, 13")
    A.e("s_add_u32 s6, s6, 0x%x" % E_OFF)
    srd(A, rE, sWS, 8192, "s6")
    A.e("s_and_b32 s6, s4, 8")
    A.e("s_lshl_b32 s6, s6, 9")
    A.e("s_add_u32 s6, s6, 0x%x" % FL_OFF)
    srd(A, rFL, sWS, 4096, "s6")
    A.e("s_and_b32 s87, s4, 7")
    A.e("s_lshl_b32 s87, s87, 7")
    A.e("s_add_u32 s87, s87, s5")
    A.e("s_lshl_b32 s87, s87, 2")
    rCRE, rCIM, rW2 = 48, 52, 44
    srd(A, rCRE, sCRE, 524288)
    srd(A, rCIM, sCIM, 524288)
    A.e("s_add_u32 s82, s82, 65536")
    A.e("s_lshl_b32 s100, s5, 11")
    A.e("s_add_u32 s100, s100, s81")
    A.e("s_add_u32 s101, s100, 32768")
    A.e("v_lshlrev_b32 v4, 3, v0")
    A.e("v_add_u32 v4, %d, v4" % (MISC + 2048))
    A.e("v_mov_b32 v48, 0")
    A.e("v_mov_b32 v49, 0")
    A.e("ds_write_b64 v4, v[48:49]")
    A.e("ds_write_b32 v4, v48 offset:2048")
    A.e("s_lshl_b32 s6, s7, 1")
    A.e("v_add_u32 v63, s6, v9")
    A.e("v_sub_u32 v4, 7, v63")
    A.e("v_lshlrev_b32 v4, 8, v4")
    A.e("v_lshl_add_u32 v4, v8, 3, v4")
    A.e("v_add_u32 v4, %d, v4" % MISC)
    A.e("v_lshlrev_b32 v63, 4, v63")
    A.e("v_cvt_f32_u32 v63, v63")
    A.e("s_lshl_b32 s6, s7, 9")
    A.e("v_lshlrev_b32 v57, 7, v9")
    A.e("v_add_u32 v57, s6, v57")
    A.e("v_cvt_f32_u32 v57, v57")
    A.e("s_waitcnt lgkmcnt(0)")
    real, A.L = A.L, []
    ni0 = A.ni
    srd(A, rW2, sW2, 1376 * 1024)
    A.e("v_readfirstlane_b32 s14, v54")
    A.e("v_readfirstlane_b32 s86, v56")
    A.e("s_add_u32 s14, s14, 1")
    A.e("s_bitset1_b32 s14, 31")
    A.e("s_add_u32 s86, s86, 1")
    A.e("s_bitset1_b32 s86, 31")
    A.e("v_lshlrev_b32 v60, 16, v60")
    A.e("v_lshlrev_b32 v61, 16, v61")
    A.e("v_lshlrev_b32 v62, 16, v62")
    A.e("v_mul_f32 v62, 0x%x, v62" % f2u(LOG2E))
    A.e("v_exp_f32 v62, v62")
    A.e("s_nop 0")
    A.e("v_cvt_pk_bf16_f32 v62, v62, v62")
    A.e("v_and_b32 v62, 0xffff0000, v62")
    A.e("v_mul_f32 v50, v62, v60")
    A.e("v_mul_f32 v51, v62, v61")
    A.e("v_mul_f32 v50, 0x%x, v50" % f2u(LOG2E))
    A.e("v_mul_f32 v51, 0x%x, v51" % f2u(INV2PI))
    cpow(A, 1.0, LR, LI, "v52", "v53", "v50", "v51")
    cpow(A, 16.0, L16R, L16I, "v52", "v53", "v50", "v51")
    cpow(A, "v57", QR, QI, "v52", "v53", "v50", "v51")
    cpow(A, 256.0, L256R, L256I, "v52", "v53", "v50", "v51")
    cpow(A, "v63", PR, PI, "v52", "v53", "v50", "v51")
    A.e("v_sub_f32 %s, 0, %s" % (NLI, LI))
    A.e("v_mul_f32 v52, v60, v60")
    A.e("v_fmac_f32 v52, v61, v61")
    A.e("v_rcp_f32 v52, v52")
    A.e("v_add_f32 v53, -1.0, %s" % LR)
    A.e("v_mul_f32 %s, v53, v60" % CR)
    A.e("v_fmac_f32 %s, %s, v61" % (CR, LI))
    A.e("v_mul_f32 %s, %s, v60" % (CI, LI))
    A.e("v_fma_f32 %s, -v53, v61, %s" % (CI, CI))
    A.e("v_add_f32 v52, v52, v52")
    A.e("v_mul_f32 %s, %s, v52" % (CR, CR))
    A.e("v_mul_f32 %s, %s, v52" % (CI, CI))
    emit(A, ["v_lshlrev_b32 v54, 5, v8", "v_lshl_add_u32 v54, v9, 4, v54", "v_xor_b32 v55, 0x80, v54"])
    emit(A, ["s_lshl_b32 s6, s7, 2", "s_sub_u32 s6, s6, s4", "s_add_u32 s6, s6, 16",
             "v_add_u32 v62, s6, v9", "v_lshlrev_b32 v60, 9, v62", "v_lshl_add_u32 v60, v8, 4, v60",
             "v_sub_u32 v62, 17, v62", "v_and_b32 v62, -2, v62", "v_max_i32 v62, 0, v62", "v_min_i32 v62, 4, v62",
             "v_lshlrev_b32 v63, 3, v8", "v_add_u32 v63, %d, v63" % (MISC + 8192),
             "s_lshl_b32 s6, s7, 9", "v_lshl_add_u32 v61, v9, 8, v63", "v_add_u32 v61, s6, v61"])

    par_ops = [x.strip() for x in A.L]
    A.L, A.ni = real, ni0

    tiles = [0, 1]
    LA, LAF = PAR["la"], PAR["laf"]
    assert LA <= LAF <= 4
    assert LASTP + 1 <= PAR["estep"] <= PAR["cstep"] and PAR["cstep"] + 1 <= PAR["lastbar"] and PAR["cstep"] + 1 < PAR["hstep"] <= 15 and PAR["lastbar"] >= 13
    S = Stream(A, mk_items(ORD, 2, True), 4, PAR["sd"], PAR["sfill"])
    S.fence = LASTP + 1
    sw = []
    if PAR["dyn"]:
        S.dyn = True
        A.e("s_setprio 2")
    late = []
    dq = []
    for n in range(LASTP + LA + 1, 16):
        dq += [(n, f) for f in dma_ops(A, n, "v4", "v7", (0,) if PAR["split"] else (0, 1))]

    def dma_upto(m, maxops=999):
        while dq and dq[0][0] <= m and maxops > 0:
            dq.pop(0)[1]()
            maxops -= 1

    def ssm_publish():
        A.e("s_nop 7")
        A.e("s_nop 3")
        cur = (v(RE), v(IM))
        tmp = [("v48", "v49"), ("v50", "v51")]
        for r in range(1, 16):
            d = (ER, EI) if r == 15 else tmp[r & 1]
            emit(A, cfma_ops(d[0], d[1], LR, LI, cur[0], cur[1], v(RE + r), v(IM + r)))
            cur = d
        A.e("ds_write_b64 v4, v[56:57]")
        A.e("v_mov_b32 v48, %d" % (MISC + 4096))
        A.e("v_mov_b32 v49, 1")
        A.e("s_mov_b64 exec, 1")
        A.e("ds_add_u32 v48, v49")
        A.e("s_mov_b64 exec, -1")
        A.e("s_mov_b32 s13, 0")
        A.lab("L_S_sync")
        A.e("ds_read_b32 v49, v48")
        A.e("s_add_u32 s13, s13, 1")
        A.e("s_waitcnt lgkmcnt(0)")
        A.e("v_readfirstlane_b32 s6, v49")
        A.e("s_cmp_lt_u32 s13, 0x100000")
        A.e("s_cselect_b32 s6, s6, 4")
        A.e("s_cmp_lt_u32 s6, 4")
        A.e("s_cbranch_scc1 L_S_sync")
        A.lg = []
        er = lambda m: (24 + 2 * m if m < 4 else 32 + 2 * (m - 4))
        for m in range(6, -1, -1):
            A.lgi("er%d" % m, "ds_read_b64 %s, v4 offset:%d" % (v(er(m), 2), 256 * (m + 1)))
        cur = (v(er(6)), v(er(6) + 1))
        for m in range(5, -1, -1):
            d = (SR, SI) if m == 0 else tmp[m & 1]
            A.lgw("er%d" % m)
            emit(A, cfma_ops(d[0], d[1], L16R, L16I, cur[0], cur[1], v(er(m)), v(er(m) + 1)))
            cur = d
        A.e("s_cmp_lg_u32 s7, 3")
        A.e("s_cbranch_scc1 L_S_nopub")
        A.cond = True
        emit(A, cfma_ops("v24", "v26", L16R, L16I, SR, SI, ER, EI))
        A.e("v_mov_b32 v25, s14")
        A.e("v_mov_b32 v27, s14")
        A.e("s_sub_u32 s6, 15, s4")
        A.e("s_lshl_b32 s6, s6, 9")
        A.e("v_lshlrev_b32 v28, 4, v8")
        A.e("s_mov_b32 exec_lo, 0")
        A.e("buffer_store_dwordx4 v[24:27], v28, %s, s6 offen sc1" % s(rE, 4))
        A.e("s_mov_b64 exec, -1")
        A.cond = False
        A.lab("L_S_nopub")
        A.fs(56)
        emit(A, wdma_addr_ops("v4", "v7", "v48"))
        for r in range(16):
            t = "v%d" % (48 + (r & 3))
            S.fill += ["v_mul_f32 %s, %s, %s" % (t, CI, v(RE + r)), "v_mul_f32 %s, %s, %s" % (v(RE + r), CR, v(RE + r)),
                       "v_fma_f32 %s, -%s, %s, %s" % (v(RE + r), CI, v(IM + r), v(RE + r)), "v_fma_f32 %s, %s, %s, %s" % (v(IM + r), CR, v(IM + r), t)]
        if not PAR["coeff"]:
            S.flush()

    def e_issue(tag=None):
        for m in range(2):
            x = "buffer_load_dwordx4 %s, v60, %s, 0 offen offset:%d sc1" % (v(24 + 4 * m, 4), s(rE, 4), 1024 * m)
            if tag:
                A.vmi(tag, x)
            else:
                A.e(x)

    def e_check():
        A.fs(17)
        A.e("s_mov_b32 s13, 0")
        A.vmw("e")
        A.lab("L_S_poll")
        A.e("v_mov_b32 v48, 0")
        for q in range(4):
            A.e("v_cmp_eq_u32 s[%d:%d], s14, %s" % (18 + 2 * q, 19 + 2 * q, v(25 + 2 * q)))
        for q in range(4):
            A.e("v_addc_co_u32 v48, vcc, 0, v48, s[%d:%d]" % (18 + 2 * q, 19 + 2 * q))
        A.e("v_cmp_ne_u32 vcc, v62, v48")
        A.e("s_cbranch_vccz L_S_ready")
        A.cond = True
        A.e("s_sleep 2")
        e_issue()
        A.e("s_add_u32 s13, s13, 1")
        A.e("s_cmp_lt_u32 s13, 0x20000")
        A.e("s_waitcnt vmcnt(0)")
        A.e("s_cbranch_scc1 L_S_poll")
        A.cond = False
        A.lab("L_S_ready")
        emit(A, cfma_ops("v48", "v49", L256R, L256I, "v28", "v30", "v24", "v26"))
        A.e("v_mul_f32 v50, %s, v48" % QR)
        A.e("v_mul_f32 v51, %s, v49" % QR)
        A.e("v_fma_f32 v50, -%s, v49, v50" % QI)
        A.e("v_fmac_f32 v51, %s, v48" % QI)
        A.lgi("pw", "ds_write_b64 v61, v[50:51]")
        A.fs(18)

    def scan_ops():
        o = []
        pr = [24, 26, 28, 30, 48, 50, 52, 56]
        def prd():
            for q in range(8):
                A.lgi("pr", "ds_read_b64 %s, v63 offset:%d" % (v(pr[q], 2), 256 * q))
        bump = lambda: lane0_store(A, ["s_lshl_b32 s6, s7, 4", "s_add_u32 s6, s6, s4", "s_cmp_lg_u32 s6, 15"], "s14", rEP, "0", 0, "v60", "v61", "L_S_noep")
        o += [prd, bump, lambda: A.lgw("pr")]
        for (x, y) in ((0, 1), (2, 3), (4, 5), (6, 7), (0, 2), (4, 6), (4, 0)):
            o.append("v_add_f32 %s, %s, %s" % (v(pr[x]), v(pr[x]), v(pr[y])))
            o.append("v_add_f32 %s, %s, %s" % (v(pr[x] + 1), v(pr[x] + 1), v(pr[y] + 1)))
        o += cfma_ops("v50", "v51", PR, PI, "v48", "v49", SR, SI)
        o += ["v_mul_f32 v48, %s, v50" % CR, "v_mul_f32 v49, %s, v51" % CR, "v_fma_f32 v48, -%s, v51, v48" % CI, "v_fmac_f32 v49, %s, v50" % CI]
        cur = ("v48", "v49")
        for r in range(16):
            o.append("v_fmac_f32 %s, %s, %s" % (v(RE + r), LR, cur[0]))
            o.append("v_fmac_f32 %s, %s, %s" % (v(IM + r), LR, cur[1]))
            o.append("v_fmac_f32 %s, %s, %s" % (v(RE + r), NLI, cur[1]))
            o.append("v_fmac_f32 %s, %s, %s" % (v(IM + r), LI, cur[0]))
            cur = (v(RE + r), v(IM + r))
        for q in range(8):
            o.append("v_cvt_pk_bf16_f32 %s, %s, %s" % (v(RE + q), v(RE + 2 * q), v(RE + 2 * q + 1)))
        for q in range(8):
            o.append("v_cvt_pk_bf16_f32 %s, -%s, -%s" % (v(IM + q), v(IM + 2 * q), v(IM + 2 * q + 1)))
        def st(ks):
            A.vmi("hst", "buffer_store_dwordx4 %s, %s, %s, s%d offen offset:%d%s" % (v((RE, RE + 4, IM, IM + 4)[ks], 4), "v55" if ks & 1 else "v54", s(rAS, 4),
                                                                                   101 if ks >= 2 else 100, 1024 * (ks & 1), stmod()))
            if ks == 3:
                A.fs(19)
        for ks in range(4):
            o.append(lambda ks=ks: st(ks))
            o += [("gap",)] * PAR["stgap"]
        return o

    def prefetch_c():
        A.e("s_lshr_b32 s15, s5, 3")
        A.e("s_lshl_b32 s15, s15, 18")
        A.e("s_lshr_b32 s6, s2, 3")
        A.e("s_lshl_b32 s6, s6, 13")
        A.e("s_add_u32 s15, s15, s6")
        A.e("s_lshl_b32 s6, s7, 11")
        A.e("s_add_u32 s15, s15, s6")
        A.e("v_lshlrev_b32 v18, 7, v1")
        A.e("s_mov_b64 exec, 0xffff")
        A.vmi("pf", "buffer_load_dword v19, v18, %s, s15 offen" % s(rCRE, 4))
        A.vmi("pf", "buffer_load_dword v19, v18, %s, s15 offen" % s(rCIM, 4))
        A.e("s_mov_b64 exec, -1")

    def prefetch_w2():
        A.e("s_lshr_b32 s6, s2, 3")
        A.e("s_mul_i32 s15, s6, 43")
        A.e("s_mul_i32 s6, s7, 11")
        A.e("s_add_u32 s15, s15, s6")
        A.e("s_lshl_b32 s15, s15, 1")
        A.e("s_lshr_b32 s6, s5, 3")
        A.e("s_add_u32 s15, s15, s6")
        A.e("s_lshl_b32 s15, s15, 9")
        A.e("v_lshrrev_b32 v18, 2, v1")
        A.e("v_lshlrev_b32 v18, 3, v18")
        A.e("v_and_or_b32 v18, v1, 3, v18")
        A.e("v_lshlrev_b32 v18, 7, v18")
        A.e("s_mov_b32 exec_hi, 0xfff")
        A.vmi("pf", "buffer_load_dword v19, v18, %s, s15 offen" % s(rW2, 4))
        A.e("s_mov_b64 exec, -1")

    def spf_setup():
        n_ = PAR["spfn"]
        A.e("s_lshr_b32 s6, s2, 3")
        A.e("s_mul_i32 s30, s6, %d" % ((255 + n_) // n_))
        A.e("s_lshr_b32 s30, s30, 8")
        A.e("s_mul_i32 s30, s30, %d" % n_)
        A.e("s_sub_u32 s30, s6, s30")
        A.e("s_lshr_b32 s9, s5, 3")
        A.e("s_lshl_b32 s9, s9, 18")
        A.e("s_lshl_b32 s15, s6, 13")
        A.e("s_add_u32 s9, s9, s15")
        A.e("s_lshl_b32 s15, s7, 11")
        A.e("s_add_u32 s9, s9, s15")
        A.e("s_mul_i32 s15, s6, 43")
        A.e("s_mul_i32 s6, s7, 11")
        A.e("s_add_u32 s15, s15, s6")
        A.e("s_lshl_b32 s15, s15, 1")
        A.e("s_lshr_b32 s6, s5, 3")
        A.e("s_add_u32 s15, s15, s6")
        A.e("s_lshl_b32 s15, s15, 9")

    def spf_site(q, va='v18', vd='v19'):
        def f():
            A.e("s_cmp_lg_u32 s30, %d" % q)
            A.e("s_cbranch_scc1 L_spf%d" % q)
            A.cond = True
            A.e(("v_lshlrev_b32 v18, 7, v1").replace("v18", va).replace("v19", vd))
            A.e("s_mov_b64 exec, 0xffff")
            A.e(("buffer_load_dword v19, v18, %s, s9 offen" % s(rCRE, 4)).replace("v18", va).replace("v19", vd))
            A.e(("buffer_load_dword v19, v18, %s, s9 offen" % s(rCIM, 4)).replace("v18", va).replace("v19", vd))
            A.e("s_mov_b64 exec, -1")
            A.e(("v_lshrrev_b32 v18, 2, v1").replace("v18", va).replace("v19", vd))
            A.e(("v_lshlrev_b32 v18, 3, v18").replace("v18", va).replace("v19", vd))
            A.e(("v_and_or_b32 v18, v1, 3, v18").replace("v18", va).replace("v19", vd))
            A.e(("v_lshlrev_b32 v18, 7, v18").replace("v18", va).replace("v19", vd))
            A.e("s_mov_b32 exec_hi, 0xfff")
            A.e(("buffer_load_dword v19, v18, %s, s15 offen" % s(rW2, 4)).replace("v18", va).replace("v19", vd))
            A.e("s_mov_b64 exec, -1")
            A.cond = False
            A.lab("L_spf%d" % q)
        return f

    def warm_w():
        A.e("s_and_b32 s6, s83, 7")
        A.e("s_lshl_b32 s6, s6, 2")
        A.e("s_add_u32 s6, s6, s7")
        A.e("s_mul_i32 s6, s6, %d" % (16 * 2752))
        A.e("s_mul_i32 s13, s5, 192")
        A.e("s_add_u32 s6, s6, s13")
        A.e("s_add_u32 s6, s6, s92")
        A.e("v_lshrrev_b32 v52, 1, v8")
        A.e("v_mul_u32_u24 v52, 2752, v52")
        A.e("v_and_b32 v53, 1, v1")
        A.e("v_lshl_add_u32 v52, v53, 7, v52")
        A.e("s_mov_b32 exec_hi, 0")
        A.e("s_bitcmp1_b32 s4, 3")
        A.e("s_cbranch_scc1 L_ww3")
        A.e("buffer_load_dword v53, v52, %s, s6 offen" % s(rW1, 4))
        A.e("s_branch L_ww")
        A.lab("L_ww3")
        A.e("buffer_load_dword v53, v52, %s, s6 offen" % s(rW3, 4))
        A.lab("L_ww")
        A.e("s_mov_b64 exec, -1")

    if PAR["spf"] or PAR["mpf"] >= 0:
        spf_setup()
    if PAR["mpf"] >= 0:
        A.e("s_bfe_u32 s6, s2, 0x10002")
        A.e("s_lshl_b32 s6, s6, 1")
        A.e("s_and_b32 s30, s2, 1")
        A.e("s_add_u32 s30, s30, s6")
        A.e("s_sub_u32 s30, s30, s7")
    if PAR["pf"] and not PAR["spf"] and not PAR["fpf"]:
        dq.append((PAR["pfc"] + LAF, prefetch_c))
        if PAR["pfw"] <= 15:
            dq.append((PAR["pfw"] + LAF, prefetch_w2))

    N = len(P2_SEQ)
    LA2 = PAR["ala"]
    assert LA2 <= NA - 2

    rAs_, rAo_ = 56, 60

    def p2_setup1():
        tile_of(A, "s11", "s10", "s31")
        if PAR["p2map"]:
            A.e("s_and_b32 s6, s4, 3")
            A.e("s_lshl_b32 s13, s6, 1")
            A.e("s_add_u32 s13, s13, s10")
            A.e("s_mul_i32 s14, s6, 3")
            A.e("s_mul_i32 s6, s10, 11")
        else:
            A.e("s_and_b32 s6, s10, 3")
            A.e("s_lshl_b32 s13, s6, 1")
            A.e("s_add_u32 s13, s13, s4")
            A.e("s_mul_i32 s14, s6, 3")
            A.e("s_and_b32 s6, s4, 7")
            A.e("s_mul_i32 s6, s6, 11")
        A.e("s_lshr_b32 s6, s6, 3")
        A.e("s_add_u32 s14, s14, s6")
        A.e("s_sub_u32 s6, s14, 11")
        A.e("s_cmp_ge_u32 s14, 11")
        A.e("s_cselect_b32 s14, s6, s14")
        A.e("s_lshl_b32 s9, s7, 11")
        A.e("s_cmp_lg_u32 s11, 0")
        A.e("s_cselect_b64 %s, %s, %s" % (s(rCRE, 2), s(sCIM, 2), s(sCRE, 2)))
        A.e("v_and_b32 v11, 7, v1")
        A.e("v_lshrrev_b32 v22, 3, v1")
        A.e("v_lshrrev_b32 v10, 4, v1")
        A.e("v_xor_b32 v10, v10, v11")
        A.e("v_lshlrev_b32 v10, 4, v10")
        A.e("v_lshl_add_u32 v4, v22, 10, v10")
        A.e("s_lshl_b32 s6, s7, 14")
        A.e("s_lshl_b32 s12, s10, 16")
        A.e("s_add_u32 s12, s12, s6")
        A.e("v_add_u32 v4, s12, v4")
        A.e("v_xor_b32 v5, 64, v4")
        A.e("v_add_u32 v5, 8192, v5")

    def p2_setup2():
        A.e("s_and_b32 s12, s7, 1")
        A.e("s_lshr_b32 s15, s7, 1")
        A.e("s_lshl_b32 s15, s15, 11")
        A.e("s_lshl_b32 s8, s12, 12")
        A.e("s_add_u32 s8, s8, s15")
        A.e("s_lshl_b32 s6, s11, 15")
        A.e("s_add_u32 s6, s6, s15")
        A.e("v_add_u32 v2, s6, v6")
        A.e("s_mul_i32 s6, s11, 45056")
        A.e("s_add_u32 s6, s6, s15")
        A.e("s_add_u32 s6, s6, 65536")
        A.e("v_add_u32 v23, s6, v6")
        A.e("s_lshl_b32 s6, s31, 1")
        A.e("s_add_u32 s6, s6, s11")
        A.e("s_lshl_b32 s6, s6, 1")
        A.e("s_add_u32 s6, s6, s12")
        A.e("s_xor_b32 s15, s6, 2")
        A.e("s_mul_i32 s6, s6, %d" % (NKS * 1024))
        A.e("s_mul_i32 s15, s15, %d" % (NKS * 1024))
        srd(A, rAo_, sWS, NKS * 1024, "s6")
        srd(A, rAs_, sWS, NKS * 1024, "s15")
        A.e("v_bfe_u32 v10, v1, 4, 1")
        A.e("v_lshlrev_b32 v10, 2, v10")
        A.e("v_xor_b32 v10, v10, v11")
        A.e("v_lshlrev_b32 v10, 4, v10")
        A.e("v_lshl_add_u32 v3, v22, 10, v10")
        A.e("s_lshl_b32 s6, s7, 14")
        A.e("s_lshl_b32 s12, s10, 7")
        A.e("s_add_u32 s12, s12, s6")
        A.e("s_mul_i32 s6, s11, %d" % (704 * 1024))
        A.e("s_add_u32 s12, s12, s6")
        A.e("v_add_u32 v3, s12, v3")
        A.e("v_add_u32 v7, 8192, v3")
        A.e("v_and_b32 v17, 15, v1")
        A.e("s_and_b32 s6, s31, 7")
        A.e("s_lshl_b32 s6, s6, 9")
        A.e("v_lshl_add_u32 v17, v17, 2, s6")

    def idx(kind, m):
        if kind == "C":
            A.e("s_add_u32 s12, s13, %d" % m)
            A.e("s_and_b32 s12, s12, 7")
        else:
            A.e("s_add_u32 s12, s14, %d" % m)
            A.e("s_sub_u32 s6, s12, 11")
            A.e("s_cmp_ge_u32 s12, 11")
            A.e("s_cselect_b32 s12, s6, s12")

    def dma_w(q):
        kind, m, u, first, free = P2_W[q]
        idx(kind, m)
        A.e("s_lshl_b32 s12, s12, %d" % (16 if kind == "W" else 7))
        r_, va, vb = (rW2, "v3", "v7") if kind == "W" else (rCRE, "v4", "v5")
        A.e("s_add_u32 m0, s9, %d" % (u * 8192))
        A.e("s_nop 0")
        A.vmi("w%d" % first, "buffer_load_dwordx4 %s, %s, s12 offen lds" % (va, s(r_, 4)))
        A.e("s_add_u32 m0, s9, %d" % (u * 8192 + 1024))
        A.e("s_nop 0")
        A.vmi("w%d" % first, "buffer_load_dwordx4 %s, %s, s12 offen lds" % (vb, s(r_, 4)))

    def dma_g(tag):
        srd(A, rEP, sWS, 16384, "0x%x" % G_OFF)
        A.e("s_lshl_b32 s12, s31, 2")
        A.e("s_add_u32 s12, s12, s7")
        A.e("s_lshl_b32 s12, s12, 8")
        A.e("s_lshl_b32 s6, s7, 8")
        A.e("s_add_u32 m0, s6, %d" % GU)
        A.e("s_mov_b64 exec, 0xffff")
        A.vmi(tag, "buffer_load_dwordx4 v6, %s, s12 offen sc1 lds" % s(rEP, 4))
        A.e("s_mov_b64 exec, -1")

    def dma_a(n):
        kind, m, hf, u = P2_SEQ[n]
        if kind == "X":
            srd(A, rE, sX, 2048 * 1024)
            A.e("s_lshl_b32 s6, s31, 1")
            A.e("s_add_u32 s6, s6, s11")
            A.e("s_lshl_b32 s6, s6, 2")
            A.e("s_add_u32 s6, s6, s7")
            A.e("s_lshl_b32 s6, s6, 14")
            A.e("s_lshl_b32 s12, s10, 7")
            A.e("s_add_u32 s12, s12, s6")
            A.e("v_and_b32 v10, 7, v1")
            A.e("v_lshlrev_b32 v10, 4, v10")
            A.e("v_lshl_add_u32 v10, v22, 10, v10")
            A.e("s_add_u32 m0, s9, %d" % AU(n))
            A.e("s_add_u32 s6, s12, 8192")
            A.vmi("a%d" % n, "buffer_load_dwordx4 v10, %s, s12 offen lds" % s(rE, 4))
            A.e("s_add_u32 m0, s9, %d" % (AU(n) + 1024))
            A.e("s_nop 0")
            A.vmi("a%d" % n, "buffer_load_dwordx4 v10, %s, s6 offen lds" % s(rE, 4))
            srd(A, rEP, sDS, 1024)
            A.e("s_lshl_b32 s12, s10, 7")
            A.e("s_mov_b32 m0, %d" % (GU + 1024))
            A.e("s_mov_b64 exec, 0xff")
            A.vmi("a%d" % n, "buffer_load_dwordx4 v6, %s, s12 offen lds" % s(rEP, 4))
            A.e("s_mov_b64 exec, -1")
            return
        idx(kind, m)
        A.e("s_lshl_b32 s12, s12, 12")
        A.e("s_add_u32 m0, s8, %d" % AU(n))
        A.e("s_nop 0")
        va, r_ = ("v23" if kind == "W" else "v2"), (rAs_ if hf == "s" else rAo_)
        A.vmi("a%d" % n, "buffer_load_dwordx4 %s, %s, s12 offen sc1 lds" % (va, s(r_, 4)))
        A.vmi("a%d" % n, "buffer_load_dwordx4 %s, %s, s12 offen offset:1024 sc1 lds" % (va, s(r_, 4)))

    def check(tag, off, L):
        A.e("s_mov_b32 s15, 0")
        A.vmw(tag)
        A.lab(L + "_poll")
        A.e("v_cmp_ne_u32 vcc, s86, v16")
        A.e("s_cbranch_vccz %s_go" % L)
        A.e("s_sleep %d" % PAR["slp"])
        A.e("buffer_load_dword v16, v17, %s, 0 offen offset:%d sc1" % (s(rFL, 4), off))
        A.e("s_add_u32 s15, s15, 1")
        A.e("s_cmp_lt_u32 s15, 0x20000")
        A.e("s_waitcnt vmcnt(0)")
        A.e("s_cbranch_scc1 %s_poll" % L)
        A.lab(L + "_go")

    def pre(b):
        kind, c = ORD[b]
        slot = slot_of(b)
        if b == 0 and PAR["wpf"] == 99:
            warm_w()
        if b == 0 and PAR["mpf"] == 99:
            spf_site(0, "v52", "v53")()
        if b == LASTP + 1:
            S.flush()
            S.K = PAR["sfill"]
            ssm_publish()
            A.thr = PAR["thr"]
        if b == PAR["cstep"] + 1:
            S.flush()
            A.lgw("pw")
        if b == PAR["cstep"] + 2:
            assert "pr" not in A.lg
        dma_upto(min(b - 1 + LA, 15) if b != PAR["lastbar"] else 15)
        if kind == "P":
            A.e("v_add_u32 v28, %d, v7" % slot)
            A.e("v_xor_b32 v29, 32, v28")
            A.e("v_xor_b32 v30, 64, v28")
            A.e("v_xor_b32 v31, 0x60, v28")
            for q in range(4):
                A.e("v_add_u32 %s, s8, %s" % (v(24 + q), v(28 + q)))
        else:
            A.e("v_add_u32 v14, %d, v12" % slot)
            A.e("v_add_u32 v15, %d, v13" % slot)
        A.fs2(20 + b)
        A.vmw("ch%d" % (b if b != PAR["lastbar"] else 15))
        A.fs2(36 + b)

    def hflag():
        assert "hst" in A.vm or True
        A.vmw("hst")
        A.e("v_mov_b32 v24, %d" % (LDS_CNT))
        A.e("v_mov_b32 v25, 1")
        A.e("s_mov_b64 exec, 1")
        A.lgi("hc", "ds_add_rtn_u32 v26, v24, v25")
        A.e("s_mov_b64 exec, -1")

    def hflag2():
        A.lgw("hc")
        A.e("v_readfirstlane_b32 s6, v26")
        lane0_store(A, ["s_cmp_lg_u32 s6, 3"], "s86", rFL, "s87", 0, "v24", "v25", "L_S_nofl")
        A.fs(57)

    def post(b):
        A.fs(b)
        if b == 1:
            S.fill += [lambda: A.vmw("par")] + par_ops
            S.K = PAR["pfill"]
        if b == PAR["wpf"]:
            warm_w()
        if b == PAR["mpf"]:
            spf_site(0, "v52", "v53")()
        if PAR["spf"] and 0 <= b - PAR["spf0"] < PAR["spfn"]:
            spf_site(b - PAR["spf0"])()
        if b == PAR["estep"]:
            e_issue("e")
        if b == PAR["cstep"]:
            S.fill += [("gap",)] * PAR["cdelay"] + [e_check]
        if b == PAR["cstep"] + 1:
            S.fill += scan_ops()
            S.K = PAR["sfill2"]
        if b == PAR["hstep"]:
            S.fill += [hflag, ("gap",), hflag2]
        if b == PAR["lastbar"]:
            assert PAR["lastbar"] == 14 and PAR["nt"] <= 2 and 2 <= PAR["ew"] <= 6
            S.fill += [p2_setup1, ("gap",)]
            if PAR["xe"]:
                S.fill += [lambda: dma_a(0), ("gap",)]
            for n in range(PAR["ew"]):
                S.fill += [lambda n=n: dma_w(n), ("gap",)]
            S.fill += [p2_setup2]

    def read(it, sl, tag):
        n, ss, ti = it
        kind, c = ORD[n]
        if kind == "P":
            if ti == 0:
                A.lgi(tag, "ds_read_b128 %s, %s" % (a(16 * c + 4 * ss, 4), v(24 + ss)))
            A.lgi(tag, "ds_read_b128 %s, %s offset:%d" % (v(FB + 4 * sl, 4), v(28 + ss), 16384 + 4096 * ti))
        else:
            T = tiles[ti]
            for nn in range(2):
                A.lgi(tag, "ds_read_b64_tr_b16 %s, v%d offset:%d" % (v(FB + 4 * sl + 2 * nn, 2), 14 + (T & 1),
                                                                    ss * 6144 + (T >> 1) * 1024 + nn * 256))

    def mfma(it, sl):
        n, ss, ti = it
        kind, c = ORD[n]
        first = (c == 0 and ss == 0)
        if kind == "P":
            d = (RE, IM)[ti]
            A.e("v_mfma_f32_32x32x16_bf16 %s, %s, %s, %s" % (v(d, 16), a(16 * c + 4 * ss, 4), v(FB + 4 * sl, 4), "0" if first else v(d, 16)))
        else:
            d = ACC + 16 * ti
            A.e("v_mfma_f32_32x32x16_bf16 %s, %s, %s, %s" % (v(d, 16), v(FB + 4 * sl, 4), a(16 * c + 4 * ss, 4), "0" if first else v(d, 16)))

    def after(it, mp):
        n, ss, ti = it
        if n == 15 and ss == 3:
            S.fill.append(("dist", S.ninstr()))
            sw.append(swiglu_ops(A, ACC + 16 * ti, 1024 * ti, False, late if ti >= 2 - PAR["defS"] else None))
        if n > LASTP and (not PAR["split"] or mp % 2 == 0):
            dma_upto(S.nb - 1 + LAF, 1)

    S.pre, S.post, S.read, S.mfma, S.after = pre, post, read, mfma, after
    S.run()
    assert not dq
    A.fs(16)
    A.vmi("poll", "buffer_load_dword v16, v17, %s, 0 offen sc1" % s(rFL, 4))
    S.flush()
    emit(A, sw[0])
    A.fs(58)
    A.thr = PAR["thr2"]
    check("poll", 0, "L_p2a")
    A.fs(55)
    for n in range(PAR["xe"], PAR["ea"]):
        dma_a(n)
    dma_g("g")
    emit(A, sw[1])
    wn, an = PAR["ew"], PAR["ea"]
    for n in range(N):
        if not p2_real(n):
            assert wn == len(P2_W)
            continue
        mark0 = len(A.L)
        A.vmw("w%d" % n)
        A.vmw("a%d" % n)
        if not p2_real(n + 1):
            A.vmw("w%d" % (n + 1))
            A.vmw("a%d" % (n + 1))
        if n == 8:
            A.vmw("g")
        if n == PAR["fl2"]:
            assert not late
            A.vmw("st")
        A.e("s_barrier")
        mark1 = len(A.L)
        A.fs(20 + n) if n < 35 else None
        if n == PAR["fl2"]:
            lane0_store(A, ["s_cmp_lg_u32 s3, 0"], "s86", rFL, "s87", 256, "v10", "v11", "L_p2_nofl")
        if n == PAR["chk2"]:
            check("poll2", 256, "L_p2b")
        if n == PAR["p2poll"]:
            A.vmi("poll2", "buffer_load_dword v16, v17, %s, 0 offen offset:256 sc1" % s(rFL, 4))
        if "burn" in OPT:
            for q in range(PAR["burn"]):
                A.e("ds_read_b128 v[%d:%d], v6 offset:%d" % (24 + 4 * (q & 7), 27 + 4 * (q & 7), 1024 * q + 8192 * (n % 6)))
        if "burnv" in OPT:
            for q in range(PAR["burn"]):
                A.e("v_fma_f32 v%d, v%d, v%d, v%d" % (24 + (q & 15), 64 + (q & 31), 96 + (q & 31), 24 + (q & 15)))
        budget = 3 if n == PAR["chk2"] else 2
        while budget > 0:
            a_ok = an < N and an <= n + LA2 and (an < NSSM or n >= PAR["chk2"])
            w_ok = wn < len(P2_W) and P2_W[wn][4] <= n
            if a_ok and not (w_ok and P2_W[wn][3] < an):
                dma_a(an); an += 1
            elif w_ok:
                dma_w(wn); wn += 1
            else:
                break
            budget -= 1
        if late and n >= 1 and n % 2 == 1:
            late.pop(0)()
        if PAR["pf"] and not PAR["spf"] and not PAR["fpf"] and PAR["pfw"] > 15 and n == PAR["pfw2"]:
            prefetch_w2()
        assert (an > n + (1 if p2_real(n + 2) and p2_real(n + 1) else 3) or an == N) and (wn == len(P2_W) or P2_W[wn][3] > n + 1)
        if PAR["hoist"]:
            k = mark1
            while k < len(A.L) and A.L[k].split()[0] in ("s_add_u32", "s_and_b32", "s_lshl_b32", "s_sub_u32", "s_cmp_ge_u32", "s_cselect_b32", "s_nop"):
                k += 1
            if k < len(A.L) and A.L[k].split()[0] == "buffer_load_dwordx4":
                lead = [x for x in A.L[mark1:k] if "s_nop" not in x]
                A.L[mark0:k] = lead + A.L[mark0:mark1]
    assert an == N and wn == len(P2_W)
    A.e("s_or_b32 s6, s87, s7")
    A.e("s_cmp_lg_u32 s6, 0")
    A.e("s_cbranch_scc1 L_p2_noep")
    A.e("v_lshrrev_b32 v10, 4, v1")
    A.e("v_and_b32 v17, 15, v1")
    A.e("v_lshlrev_b32 v17, 2, v17")
    A.e("v_lshl_add_u32 v17, v10, 9, v17")
    for off, L in ((256, "L_p2c"), (2048 + 256, "L_p2d")):
        A.vmi("pe", "buffer_load_dword v16, v17, %s, 0 offen offset:%d sc1" % (s(rFL, 4), off))
        check("pe", off, L)
    lane0_store(A, ["s_cmp_lg_u32 s7, 0"], "s86", rG, "0", 0, "v10", "v11", "L_p2_noep")
    A.fs_end()
    A.e("s_endpgm")


def gen_all(A):
    K = NAME + "_kernel"
    A.L.append(".globl %s\n.p2align 8\n.type %s,@function\n%s:" % (K, K, K))
    prologue(A)
    role_F(A)
    fm = A.L[A.fmain:]
    del A.L[A.fmain:]
    role_S(A)
    A.L += fm
    A.lab("L_end")
    A.e("s_endpgm")
    A.lab("L_code_end")


def kd(name, nv, acc, ns=102):
    return """.amdhsa_kernel %s
  .amdhsa_next_free_vgpr %d
  .amdhsa_next_free_sgpr %d
  .amdhsa_accum_offset %d
  .amdhsa_group_segment_fixed_size 0
  .amdhsa_kernarg_size 136
  .amdhsa_user_sgpr_count 2
  .amdhsa_user_sgpr_kernarg_segment_ptr 1
  .amdhsa_system_sgpr_workgroup_id_x 1
.end_amdhsa_kernel
""" % (name, nv, ns, acc)


DOC = """
; One launch, 256 workgroups (one per CU) of 8 waves; generated by a script of the author (unrolled, statically scheduled).
; Phase 1, workgroup (r, j): 128 rows of x stay in AGPRs as MFMA fragments; weights stream through a 6-slot LDS ring (LDS-DMA).
;   waves 0-3: Bu for 32 states, exact chunked scan (block end states are exchanged through d_ws as tagged words), 2 FFN tiles
;   waves 4-7: 4 FFN tiles (gate/up + SwiGLU) and the gate g.   h, H (bf16) and g go to d_ws with write-through stores + flags.
; Phase 2: pairs of workgroups share a 128x64 output tile, each takes half of K of [h | H] @ [C | w2]; waves 0-3 load,
;   waves 4-7 multiply; the partial sum of the partner's rows is handed over as tagged words.
; Tags/flags are derived from epoch words in d_ws that each launch advances once every reader has seen them.
""".strip().splitlines()


def main(path):
    ref = open("cdna_kernels/%s.s.ref" % NAME).read().splitlines()
    head = [l for l in ref if l.startswith(";") and "@launch" not in l and "Override launch" not in l and "grid=ceil" not in l]
    head = head[:18]
    A = Asm()
    gen_all(A)
    out = head + [
        "; @launch grid=(256,1,1) block=(512,1,1) lds=%d" % K1_LDS,
        '.amdgcn_target "amdgcn-amd-amdhsa--gfx950"'] + DOC + [".text"] + A.L + [
        '.section .rodata,"a"', ".p2align 6", kd(NAME + "_kernel", 256, 128)]
    open(path, "w").write("\n".join(out))


if __name__ == "__main__":
    if "--stamp" in sys.argv:
        STAMP = True
        sys.argv.remove("--stamp")
    for x in list(sys.argv):
        if x.startswith("-O"):
            OPT.add(x[2:]); sys.argv.remove(x)
        elif x.startswith("-U"):
            OPT.discard(x[2:]); sys.argv.remove(x)
        elif x.startswith("-P"):
            kk, vv = x[2:].split("=")
            PAR[kk] = vv if kk.startswith("ord") else int(vv)
            sys.argv.remove(x)
    main(sys.argv[1] if len(sys.argv) > 1 else "cdna_kernels/%s.s" % NAME)
```

```python
import sys, struct

NAME = "gated_mix__ssm_conv_s5__glu_gated_swiglu__prompt"

def f2u(x):
    return struct.unpack("<I", struct.pack("<f", x))[0]

LOG2E = 1.4426950408889634
INV2PI = 0.15915494309189535

NKS = 150
A_BYTES = 64 * NKS * 1024
E_OFF = 0xA00000
G_OFF = 0xA20000
EP_OFF = 0xA30000


EPR_OFF = 0xA31000
FL_OFF = 0xA40000

XB_OFF = 0xC00000

STAMP = False
OPT = {"asc0", "asc1", "osc0", "osc1", "xsc1"}
ST_OFF = 0xB00000

class Asm:
    def __init__(self):
        self.L = []
        self.ni = 0
        self.cond = False
        self.thr = 99
        self.vm = []
        self.lg = []

    def e(self, s):
        if "nomfma" in OPT and s.startswith("v_mfma"):
            s = "s_nop 0"
        if "nolds" in OPT and s.startswith("ds_read"):
            s = "s_nop 0"
        if "nohst" in OPT and s.startswith("buffer_store_dwordx4") and ("s100" in s or "s101" in s):
            s = "s_nop 0"
        if "noHst" in OPT and s.startswith("buffer_store_dwordx4") and ("s82" in s or "s87" in s):
            s = "s_nop 0"
        if "noout" in OPT and s.startswith("buffer_store_dword ") and "v20," in s:
            s = "s_nop 0"
        if "notw" in OPT and s.startswith("ds_write_b128"):
            s = "s_nop 0"
        if "noscan" in OPT and s.startswith("v_fmac_f32"):
            return
        if "m16" in OPT and s.startswith("v_mfma_f32_32x32x16"):
            import re as _re
            m_ = _re.match(r"v_mfma_f32_32x32x16_bf16 v\[(\d+):\d+\], (\S+), (\S+), (\S+)", s)
            d_ = int(m_.group(1)); self.m16 = getattr(self, "m16", 0) + 1
            for q_ in range(2):
                dd = d_ + 4 * (2 * ((self.m16 >> 2) & 1) + q_)
                self.L.append("  v_mfma_f32_16x16x32_bf16 v[%d:%d], %s, %s, %s" % (dd, dd + 3, m_.group(2), m_.group(3), "0" if m_.group(4) == "0" else "v[%d:%d]" % (dd, dd + 3)))
                self.ni += 1
            return
        self.L.append("  " + s)
        if not self.cond:
            self.ni += 1

    def c(self, s):
        pass

    def lab(self, s):
        self.L.append(s + ":")

    def cnt(self, n, sreg):
        if STAMP:
            self.e("v_writelane_b32 v0, %s, %d" % (sreg, n))

    def fs2(self, n):
        if "vw" in OPT:
            self.fs(n, True)

    def fs(self, n, vw=False):
        if "hold" in OPT and n == PAR["probe"]:
            self.e("s_memrealtime s[96:97]")
            return
        if "vw" in OPT and not vw and 20 <= n < 55:
            return
        if "so" in OPT and n != 61:
            return
        if STAMP and ("light" not in OPT or n in (0, 7, 9, 13, 15, 16, 19, 20, 36, 55, 58, 59, 61)):
            self.e("%s s[98:99]" % ("s_memrealtime" if "rt" in OPT else "s_memtime"))
            self.e("s_waitcnt lgkmcnt(0)")
            self.lg = []
            self.e("s_sub_u32 s98, s98, s96")
            self.e("v_writelane_b32 v0, s98, %d" % n)

    def dbg_end(self):
        if "hold2" in OPT:
            self.e("s_load_dwordx2 s[8:9], s[0:1], 120")
            self.e("s_waitcnt vmcnt(0) lgkmcnt(0)")
            self.e("s_mov_b32 s10, 256")
            self.e("s_mov_b32 s11, 0x20000")
            self.e("s_not_b32 s12, s94")
            self.e("v_mov_b32 v2, s12")
            self.e("v_mov_b32 v1, 0")
            self.e("s_mov_b64 exec, 1")
            self.e("s_cmp_lg_u32 s7, 0")
            self.e("s_cbranch_scc1 L_hold_a")
            self.e("buffer_atomic_umax v2, v1, s[8:11], 0 offen")
            self.lab("L_hold_a")
            self.e("s_sleep 4")
            self.e("s_memrealtime s[98:99]")
            self.e("s_waitcnt lgkmcnt(0)")
            self.e("s_sub_u32 s98, s98, s94")
            self.e("s_cmp_lt_u32 s98, 4000")
            self.e("s_cbranch_scc1 L_hold_a")
            self.e("buffer_load_dword v2, v1, s[8:11], 0 offen sc1")
            self.e("s_waitcnt vmcnt(0)")
            self.e("v_readfirstlane_b32 s94, v2")
            self.e("s_not_b32 s94, s94")
        if "hold" in OPT:
            self.lab("L_hold")
            self.e("s_sleep 4")
            self.e("s_memrealtime s[98:99]")
            self.e("s_waitcnt lgkmcnt(0)")
            self.e("s_sub_u32 s98, s98, s%d" % (96 if PAR["probe"] >= 0 else 94))
            self.e("s_cmp_lt_u32 s98, %d" % PAR["hold"])
            self.e("s_cbranch_scc1 L_hold")
        if "dbg" in OPT:
            self.e("s_waitcnt vmcnt(0)")
            self.e("s_memrealtime s[98:99]")
            self.e("s_memtime s[92:93]")
            self.e("s_load_dwordx2 s[8:9], s[0:1], 120")
            self.e("s_waitcnt lgkmcnt(0)")
            self.e("s_mov_b32 s10, 256")
            self.e("s_mov_b32 s11, 0x20000")
            self.e("s_not_b32 s94, s94")
            self.e("s_sub_u32 s92, s92, s96")
            self.e("v_mov_b32 v2, s94")
            self.e("v_mov_b32 v3, s98")
            self.e("v_mov_b32 v4, s92")
            self.e("v_mov_b32 v1, 0")
            self.e("s_cmp_lg_u32 s7, 0")
            self.e("s_cbranch_scc1 L_dbg_done")
            self.e("s_mov_b64 exec, 1")
            self.e("buffer_atomic_umax v2, v1, s[8:11], 0 offen")
            self.e("buffer_atomic_umax v3, v1, s[8:11], 0 offen offset:4")
            self.e("buffer_atomic_umax v4, v1, s[8:11], 0 offen offset:8")
            self.lab("L_dbg_done")

    def stamp_begin(self):
        if STAMP or "dbg" in OPT or "hold" in OPT:
            self.e("s_memrealtime s[94:95]")
            self.e("%s s[96:97]" % ("s_memrealtime" if "rt" in OPT else "s_memtime"))

    def fs_end(self):
        if STAMP:
            self.e("s_waitcnt vmcnt(0)")
            self.fs(61)
            self.e("s_memrealtime s[98:99]")
            self.e("s_waitcnt lgkmcnt(0)")
            self.e("v_writelane_b32 v0, s94, 62")
            self.e("v_writelane_b32 v0, s98, 63")
            self.e("s_add_u32 s8, s%d, 0x%x" % (sWS, ST_OFF))
            self.e("s_addc_u32 s9, s%d, 0" % (sWS + 1))
            self.e("s_mov_b32 s10, 0x80000")
            self.e("s_mov_b32 s11, 0x20000")
            self.e("s_lshl_b32 s6, s2, 11")
            self.e("s_lshl_b32 s12, s3, 8")
            self.e("s_add_u32 s6, s6, s12")
            self.e("v_lshlrev_b32 v1, 2, v1")
            self.e("buffer_store_dword v0, v1, s[8:11], s6 offen")

    def throttle(self, k):
        if len(self.vm) > k:
            self.e("s_waitcnt vmcnt(%d)" % k)
            self.vm = self.vm[len(self.vm) - k:] if k else []

    def vmi(self, tag, s, cold=False):
        self.throttle(self.thr)
        if cold and "nt" in OPT:
            s = s.replace(" lds", " nt lds") if s.endswith(" lds") else s + " nt"
        self.e(s)
        self.vm.append(tag)
        assert len(self.vm) <= 63, "too many vmem ops in flight"

    def vmw(self, tag, extra=""):
        idx = [i for i, t in enumerate(self.vm) if t == tag]
        if not idx:
            return None
        n = len(self.vm) - 1 - idx[-1]
        self.vm = self.vm[idx[-1] + 1:]
        self.e("s_waitcnt vmcnt(%d)%s" % (n, extra))
        return n

    def lgi(self, tag, s):
        self.e(s)
        self.lg.append(tag)

    def lgw(self, tag):
        idx = [i for i, t in enumerate(self.lg) if t == tag]
        if not idx:
            return
        n = len(self.lg) - 1 - idx[-1]
        self.lg = self.lg[idx[-1] + 1:]
        self.e("s_waitcnt lgkmcnt(%d)" % min(n, 15))

    def lgw0(self):
        if self.lg:
            self.e("s_waitcnt lgkmcnt(0)")
        self.lg = []


def stmod(pre="a"):
    return "".join(" " + m for m in ("sc0", "sc1", "nt") if pre + m in OPT)

def v(a, n=1):
    return "v%d" % a if n == 1 else "v[%d:%d]" % (a, a + n - 1)

def a(a_, n=1):
    return "a%d" % a_ if n == 1 else "a[%d:%d]" % (a_, a_ + n - 1)

def s(a_, n=1):
    return "s%d" % a_ if n == 1 else "s[%d:%d]" % (a_, a_ + n - 1)


def srd(A, d, base, nbytes, addlo=None):
    if addlo is None:
        A.e("s_mov_b32 s%d, s%d" % (d, base))
        A.e("s_mov_b32 s%d, s%d" % (d + 1, base + 1))
    else:
        A.e("s_add_u32 s%d, s%d, %s" % (d, base, addlo))
        A.e("s_addc_u32 s%d, s%d, 0" % (d + 1, base + 1))
    A.e("s_mov_b32 s%d, 0x%x" % (d + 2, nbytes))
    A.e("s_mov_b32 s%d, 0x20000" % (d + 3))


SLOT = 24576
NSLOT = 6
MISC = SLOT * NSLOT
K1_LDS = 163840
OOB = 0x40000000
LDS_CNT = MISC + 4096 + 8

ORD = [("P", c) for c in range(8)] + [("F", c) for c in range(8)]
LASTP = 7
def slot_of(n):
    return ((5, 1, 2, 3, 4, 0)[n % NSLOT] if n >= 8 else (4, 0, 5, 1)[n & 3]) * SLOT
PAR = dict(la=2, laf=4, nt=2, estep=9, cstep=10, hstep=14, cdelay=0, stgap=1, fd=5, sd=3, ffill=6, sfill=10, sfill2=14,
           rot=1, pf=1, cpf=1, pfc=11, pfw=11, ala=5, wla=8, urot=1, p2poll=10, chk2=12, fl2=5, slp=8, prio=0, hold=4000, pk=1, gam=0, lastbar=14, hsp=0, xstep=6, map=1, defF=2, defS=1, e0=3, pfw2=2, coeff=0, g0=46, spf=0, spf0=9, spfn=6, spfgap=2, mpf=-1, wpf=-1, tlb=0, thr=99, thr2=99, thrp=99, stag=0, sper=4, dyn=0, split=1, fgap=4, probe=-1, ew=6, ea=3, dph=0, pfill=3, fpf=1, burn=4, hoist=1, rl=4, rc=1, ssp=2, p2map=1, xe=1, ct1=0, ct2=0, ct3=0, b2=99, estart=14, sgap=2, slead=0, sl0=1, sln=6, sfrom=12)

sX, sLRE, sLIM, sBRE, sBIM, sCRE, sCIM, sLDT = 16, 18, 20, 22, 24, 26, 28, 30
sW1, sW3, sW2, sGW, sDS, sWS, sOUT = 32, 34, 36, 38, 40, 42, 84
rX, rBRE, rBIM, rW1, rW3, rAS, rE, rEP, rG, rFL = 44, 48, 52, 56, 60, 64, 68, 72, 76, 88


def swiglu_ops(A, acc, off, pk, defer=None):
    o = []
    if pk:
        for r in range(0, 8, 2):
            o.append("v_pk_mul_f32 %s, %s, %s" % (v(acc + 8 + r, 2), v(acc + r, 2), v(acc + 8 + r, 2)))
        for r in range(0, 8, 2):
            o.append("v_pk_mul_f32 %s, %s, s[80:81] op_sel_hi:[1,0]" % (v(acc + r, 2), v(acc + r, 2)))
        for r in range(8):
            o.append("v_exp_f32 %s, %s" % (v(acc + r), v(acc + r)))
        for r in range(0, 8, 2):
            o.append("v_pk_add_f32 %s, %s, 1.0 op_sel_hi:[1,0]" % (v(acc + r, 2), v(acc + r, 2)))
        for r in range(8):
            o.append("v_rcp_f32 %s, %s" % (v(acc + r), v(acc + r)))
        for r in range(0, 8, 2):
            o.append("v_pk_mul_f32 %s, %s, %s" % (v(acc + 8 + r, 2), v(acc + 8 + r, 2), v(acc + r, 2)))
        for q in range(4):
            o.append("v_cvt_pk_bf16_f32 %s, %s, %s" % (v(acc + q), v(acc + 8 + 2 * q), v(acc + 9 + 2 * q)))
        (o if defer is None else defer).append(lambda: A.vmi("st", "buffer_store_dwordx4 %s, v6, %s, %s offen offset:%d%s" % (v(acc, 4), s(rAS, 4), "s87" if off >= 2048 else "s82", off, stmod())))
        return o
    for r in range(8):
        o.append("v_mul_f32 %s, %s, %s" % (v(acc + 8 + r), v(acc + r), v(acc + 8 + r)))
    for r in range(8):
        o.append("v_mul_f32 %s, s80, %s" % (v(acc + r), v(acc + r)))
    for r in range(8):
        o.append("v_exp_f32 %s, %s" % (v(acc + r), v(acc + r)))
    for r in range(8):
        o.append("v_add_f32 %s, 1.0, %s" % (v(acc + r), v(acc + r)))
    for r in range(8):
        o.append("v_rcp_f32 %s, %s" % (v(acc + r), v(acc + r)))
    for r in range(8):
        o.append("v_mul_f32 %s, %s, %s" % (v(acc + 8 + r), v(acc + 8 + r), v(acc + r)))
    for q in range(4):
        o.append("v_cvt_pk_bf16_f32 %s, %s, %s" % (v(acc + q), v(acc + 8 + 2 * q), v(acc + 9 + 2 * q)))
    (o if defer is None else defer).append(lambda: A.vmi("st", "buffer_store_dwordx4 %s, v6, %s, %s offen offset:%d%s" % (v(acc, 4), s(rAS, 4), "s87" if off >= 2048 else "s82", off, stmod())))
    return o


class Stream:
    def __init__(self, A, items, NB, D, K):
        self.A, self.items, self.NB, self.D, self.K = A, items, NB, D, K
        self.nb = 0
        self.rp = 0
        self.fill = []
        self.fence = -1
        self.dyn = False
        self.hold = 0

    def ninstr(self):
        return self.A.ni

    def pop(self, k):
        while k > 0 and self.fill:
            f = self.fill[0]
            if isinstance(f, tuple):
                if f[0] == "gap":
                    self.fill.pop(0)
                    return
                if f[0] == "bar" and self.nb <= f[1]:
                    return
                if f[0] == "dist" and self.ninstr() - f[1] < 12:
                    return
                self.fill.pop(0)
                continue
            self.fill.pop(0)
            if isinstance(f, str):
                self.A.e(f)
            else:
                f()
            k -= 1

    def flush(self):
        while self.fill:
            f = self.fill[0]
            if isinstance(f, tuple):
                if f[0] in ("bar", "gap"):
                    assert f[0] == "gap" or self.nb > f[1]
                    self.fill.pop(0)
                    continue
                d = 12 - (self.ninstr() - f[1])
                if d > 0:
                    self.A.e("s_nop %d" % (d - 1))
                self.fill.pop(0)
                continue
            self.pop(1)

    def barrier(self, n):
        while self.nb <= n:
            b = self.nb
            self.pre(b)
            lim = b - 1 if b == PAR["lastbar"] else b - 2
            old = [t for t in self.A.lg if t[0] == "c" and int(t[1:].split("_")[0]) <= lim]
            if b <= PAR["lastbar"]:
                if old:
                    self.A.lgw(old[-1])
                self.A.e("s_barrier")
            self.nb += 1
            self.post(b)

    def reads(self, upto, force):
        while self.rp < min(upto, len(self.items)):
            it = self.items[self.rp]
            if not force and (it[0] > self.nb or (it[0] == self.fence and self.nb <= it[0])):
                return
            self.barrier(it[0])
            self.read(it, self.rp % self.NB, "c%d_%d" % (it[0], self.rp))
            self.rp += 1

    def run(self):
        for mp, it in enumerate(self.items):
            if self.rp <= mp:
                self.reads(mp + 1, True)
                self.reads(mp + 1 + self.D, False)
            self.A.lgw("c%d_%d" % (it[0], mp))
            self.mfma(it, mp % self.NB)
            self.after(it, mp)
            self.reads(min(mp + 1 + self.D, self.rp + 2), False)
            if self.dyn and self.fill:
                n0 = len(self.A.L)
                self.A.e("s_setprio 0")
                self.pop(self.K)
                if len(self.A.L) == n0 + 1:
                    self.A.L.pop(); self.A.ni -= 1
                else:
                    self.A.e("s_setprio 2")
            else:
                self.pop(self.K)
        self.barrier(15)


def mk_items(ORD, ntile, withP):
    NT = PAR["nt"]
    items = []
    for n in range(16 - NT):
        if ORD[n][0] == "P" and not withP:
            continue
        for ss in range(4):
            for ti in range(ntile):
                items.append((n, ss, ti))
    for t0 in range(0, ntile, 2):
        for n in range(16 - NT, 16):
            assert ORD[n][0] == "F"
            for ss in range(4):
                for ti in (t0, t0 + 1):
                    items.append((n, ss, ti))
    return items


def emit(A, ops):
    for x in ops:
        if isinstance(x, str):
            A.e(x)
        else:
            x()


def code_srd(A, r, L):
    A.e("s_lshr_b32 s6, s2, 3")
    A.e("s_lshl_b32 s6, s6, 2")
    A.e("s_add_u32 s6, s6, s7")
    A.e("s_lshl_b32 s6, s6, 9")
    A.e("s_getpc_b64 s[%d:%d]" % (r, r + 1))
    A.lab(L)
    A.e("s_sub_u32 s%d, s%d, %s - %s_kernel" % (r, r, L, NAME))
    A.e("s_subb_u32 s%d, s%d, 0" % (r + 1, r + 1))
    A.e("s_add_u32 s%d, s%d, s6" % (r, r))
    A.e("s_addc_u32 s%d, s%d, 0" % (r + 1, r + 1))
    A.e("s_sub_i32 s%d, L_code_end - %s_kernel, s6" % (r + 2, NAME))
    A.e("s_max_i32 s%d, s%d, 0" % (r + 2, r + 2))
    A.e("s_mov_b32 s%d, 0x20000" % (r + 3))


def code_touch(A, r, va, vd, tag):
    A.e("s_mov_b64 exec, 15")
    A.vmi(tag, "buffer_load_dword %s, %s, %s, 0 offen sc1" % (vd, va, s(r, 4)))
    A.e("s_mov_b64 exec, -1")


def prologue(A):
    A.e("s_cmp_ge_u32 s2, 256")
    A.e("s_cbranch_scc1 L_end")
    A.stamp_begin()
    A.e("s_load_dwordx16 s[16:31], s[0:1], 0")
    A.e("s_load_dwordx8 s[32:39], s[0:1], 80")
    A.e("s_load_dwordx2 s[42:43], s[0:1], 128")
    A.e("s_load_dwordx2 s[40:41], s[0:1], 64")
    A.e("s_load_dwordx2 s[84:85], s[0:1], 112")
    A.e("v_lshrrev_b32 v2, 6, v0")
    A.e("v_and_b32 v1, 63, v0")
    A.e("v_readfirstlane_b32 s3, v2")
    if PAR["map"] == 0:
        A.e("s_bfe_u32 s4, s2, 0x20001")
        A.e("s_lshl_b32 s4, s4, 2")
        A.e("s_bfe_u32 s6, s2, 0x20003")
        A.e("s_add_u32 s4, s4, s6")
        A.e("s_and_b32 s5, s2, 1")
        A.e("s_lshl_b32 s5, s5, 3")
        A.e("s_lshr_b32 s6, s2, 5")
        A.e("s_add_u32 s5, s5, s6")
    else:
        A.e("s_bfe_u32 s4, s2, 0x10002")
        A.e("s_lshl_b32 s4, s4, 3")
        A.e("s_bfe_u32 s6, s2, 0x30003")
        A.e("s_add_u32 s4, s4, s6")
        A.e("s_and_b32 s5, s2, 3")
        A.e("s_lshl_b32 s5, s5, 2")
        A.e("s_lshr_b32 s6, s2, 6")
        A.e("s_add_u32 s5, s5, s6")
    A.e("s_and_b32 s7, s3, 3")
    A.e("v_and_b32 v8, 31, v1")
    A.e("v_lshrrev_b32 v9, 5, v1")
    A.e("s_lshl_b32 s8, s7, 12")
    if PAR["rot"]:
        A.e("s_add_u32 s15, s4, s5")
        A.e("s_and_b32 s15, s15, 1")
        if PAR["map"]:
            A.e("s_add_u32 s83, s4, s5")
            if PAR["dph"]:
                A.e("s_and_b32 s6, s2, 1")
                A.e("s_add_u32 s83, s83, s6")
        elif PAR["gam"]:
            A.e("s_sub_u32 s83, s4, s15")
            A.e("s_lshl_b32 s83, s83, 1")
        else:
            A.e("s_lshl_b32 s83, s4, 1")
        A.e("s_add_u32 s83, s83, s5")
    else:
        A.e("s_mov_b32 s83, 0")
    A.e("s_cmp_lt_u32 s3, 4")
    A.e("s_cbranch_scc1 L_S")


def tile_of(A, half, ct, r2):
    if PAR["p2map"]:
        A.e("s_and_b32 %s, s4, 11" % r2)
        A.e("s_lshr_b32 %s, s5, 3" % half)
        A.e("s_lshl_b32 %s, %s, 2" % (half, half))
        A.e("s_add_u32 %s, %s, %s" % (r2, r2, half))
        A.e("s_and_b32 %s, s4, 4" % ct)
    else:
        A.e("s_mov_b32 %s, s4" % r2)
        A.e("s_lshr_b32 %s, s5, 3" % ct)
        A.e("s_lshl_b32 %s, %s, 2" % (ct, ct))
    A.e("s_and_b32 %s, s5, 3" % half)
    A.e("s_add_u32 %s, %s, %s" % (ct, ct, half))
    A.e("s_bfe_u32 %s, s5, 0x10002" % half)


def piece_base(d, tmp):
    return ["s_lshr_b32 %s, s5, 2" % tmp, "s_mul_i32 %s, s5, 3" % d, "s_sub_u32 %s, %s, %s" % (d, d, tmp)]


def common_late(A):
    A.e("s_mov_b32 s80, 0x%x" % f2u(-LOG2E))
    A.e("v_bfe_u32 v10, v1, 1, 3")
    A.e("v_xor_b32 v10, v10, v9")
    A.e("v_lshlrev_b32 v10, 4, v10")
    A.e("v_lshl_add_u32 v7, v8, 7, v10")
    A.e("v_bfe_u32 v10, v1, 4, 1")
    A.e("v_mul_u32_u24 v12, 3104, v10")
    A.e("v_lshlrev_b32 v11, 9, v9")
    A.e("v_add_u32 v12, v12, v11")
    A.e("v_bfe_u32 v11, v1, 2, 2")
    A.e("v_lshl_add_u32 v12, v11, 6, v12")
    A.e("v_and_b32 v11, 3, v1")
    A.e("v_lshl_add_u32 v12, v11, 3, v12")
    A.e("v_xor_b32 v13, 32, v12")
    A.e("v_lshlrev_b32 v6, 4, v1")
    A.e("s_lshl_b32 s6, s4, 2")
    A.e("s_add_u32 s6, s6, s7")
    A.e("s_mul_i32 s81, s6, %d" % (NKS * 1024))
    emit(A, piece_base("s6", "s82"))
    A.e("s_lshl_b32 s6, s6, 11")
    A.e("s_add_u32 s82, s81, s6")
    srd(A, rAS, sWS, A_BYTES)


def w_scalars(A):
    A.e("s_mul_i32 s10, s7, 6144")
    A.e("s_cmp_ge_u32 s5, 15")
    A.e("s_cselect_b32 s92, 0x%x, 0" % OOB)
    A.e("s_and_b32 s93, s5, 3")
    A.e("s_cmp_eq_u32 s93, 3")
    A.e("s_cselect_b32 s93, 0x%x, 0" % OOB)


def wdma_addr_ops(d1, d3, tmp):
    return ["v_lshrrev_b32 %s, 2, v1" % tmp, "s_lshl_b32 s6, s7, 4", "v_add_u32 %s, s6, %s" % (tmp, tmp),
            "v_mul_u32_u24 %s, 2752, %s" % (d1, tmp)] + piece_base("s6", "s11") + ["s_lshl_b32 s6, s6, 6", "v_add_u32 %s, s6, %s" % (d1, d1),
            "v_and_b32 %s, 3, v1" % tmp, "v_lshl_add_u32 %s, %s, 4, %s" % (d1, tmp, d1), "v_xor_b32 %s, 32, %s" % (d3, d1)]


def dma_ops(A, n, w1, w3, mats=(0, 1)):
    kind, c = ORD[n]
    slot = slot_of(n)
    tag = "ch%d" % n
    ops = []
    def mk(pre, m0, ins, gap="s_nop 0"):
        def f():
            for x in pre:
                A.e(x)
            A.e(m0)
            A.e(gap)
            A.vmi(tag, ins)
        return f
    if kind == "P":
        pre = ["s_add_u32 s11, s83, %d" % c, "s_and_b32 s11, s11, 7", "s_lshl_b32 s11, s11, 7", "s_add_u32 s12, s11, 8192"]
        for q in range(4):
            ops.append(mk(pre if q == 0 else [], "s_add_u32 m0, s8, %d" % (slot + 1024 * q),
                          "buffer_load_dwordx4 %s, %s, s%d offen lds" % ("v3" if q & 1 else "v2", s(rX, 4), 12 if q >= 2 else 11)))
        ops.append(mk([], "s_add_u32 m0, s9, %d" % (slot + 16384), "buffer_load_dwordx4 v4, %s, s11 offen lds" % s(rBRE, 4)))
        ops.append(mk([], "s_add_u32 m0, s9, %d" % (slot + 20480), "buffer_load_dwordx4 v4, %s, s11 offen lds" % s(rBIM, 4)))
    else:
        pre = ["s_add_u32 s11, s83, %d" % c, "s_and_b32 s11, s11, 7", "s_mul_i32 s11, s11, 176128"]
        for m in mats:
            for q in range(3):
                ops.append(mk(pre if m == mats[0] and q == 0 else [], "s_add_u32 m0, s10, %d" % (slot + m * 3072 + 1024 * q - 64 * q),
                              "buffer_load_dwordx4 %s, %s, s%d offen offset:%d lds" % (w3 if m else w1, s(rW3 if m else rW1, 4), 12 if q else 11, 64 * q),
                              "s_add_u32 s12, s11, s%d" % (91 + q) if q else "s_nop 0"))
    return ops


P2_SEQ = [("X", 0, "o", None), ("C", 0, "s", 0), ("C", 1, "s", 1)]
for m_ in range(2, 8):
    P2_SEQ += [("C", m_, "s", m_), ("C", m_, "o", m_)]
NSSM = len(P2_SEQ)
FU = [8, 9, 10, 11, 0, 1, 2, 3, 4, 5, 6]
P2_SEQ += [("W", m_, "s", FU[m_]) for m_ in range(11)]
NSEND = len(P2_SEQ) - 1
P2_SEQ += [("C", 0, "o", -1), ("C", 1, "o", -2)] + [("W", m_, "o", FU[m_]) for m_ in range(11)]
P2_W = []
for n_, (k_, m_, h_, u_) in enumerate(P2_SEQ):
    if h_ == "s":
        prev = [q for q in range(n_) if P2_SEQ[q][3] == u_]
        P2_W.append((k_, m_, u_, n_, prev[0] + 2 if prev else 0))
NA = 7
GU = 19 * 8192
def p2_real(n):
    return n < PAR["b2"] or (n - PAR["b2"]) % 2 == 0
def AU(n): return (12 + n % NA) * 8192


def role_F(A):
    A.vm, A.lg = [], []
    A.thr = PAR["thrp"]
    ACC, FB = 64, 32
    LA = PAR["la"]
    if PAR["prio"] or PAR["dyn"]:
        A.e("s_setprio 1")
    A.e("v_lshrrev_b32 v10, 4, v1")
    A.e("v_and_b32 v11, 7, v1")
    A.e("v_xor_b32 v10, v10, v11")
    A.e("v_lshlrev_b32 v10, 4, v10")
    A.e("v_bfe_u32 v11, v1, 3, 2")
    A.e("v_lshl_add_u32 v2, v11, 10, v10")
    A.e("v_lshl_add_u32 v2, v9, 14, v2")
    A.e("s_lshl_b32 s6, s7, 15")
    A.e("v_add_u32 v2, s6, v2")
    A.e("v_xor_b32 v3, 64, v2")
    A.e("v_add_u32 v3, 4096, v3")
    A.e("s_lshl_b32 s9, s7, 10")
    A.e("s_and_b32 s6, s7, 1")
    A.e("s_lshl_b32 s6, s6, 6")
    A.e("v_xor_b32 v4, s6, v10")
    A.e("v_lshrrev_b32 v11, 3, v1")
    A.e("v_lshl_add_u32 v4, v11, 10, v4")
    A.e("s_lshl_b32 s6, s7, 13")
    A.e("v_add_u32 v4, s6, v4")
    emit(A, wdma_addr_ops("v5", "v16", "v10"))
    w_scalars(A)
    A.e("s_lshl_b32 s6, s4, 17")
    A.e("s_lshl_b32 s13, s5, 15")
    A.e("s_waitcnt lgkmcnt(0)")
    A.fs(52)
    if PAR["gam"]:
        srd(A, rW1, sW1, 512 * 2752)
        srd(A, rW3, sW3, 512 * 2752)
    if PAR["gam"]:
        assert LA == 2
        A.e("s_cmp_lg_u32 s15, 0")
        A.e("s_cbranch_scc1 L_F_now")
        emit(A, dma_ops(A, 8, "v5", "v16") + dma_ops(A, 9, "v5", "v16"))
        A.vm = []
        A.lab("L_F_now")
    srd(A, rX, sX, 131072, "s6")
    d0 = dma_ops(A, 0, "v5", "v16")
    emit(A, d0[:4])
    srd(A, rBRE, sBRE, 32768, "s13")
    srd(A, rBIM, sBIM, 32768, "s13")
    emit(A, d0[4:])
    A.fs(53)
    A.e("s_lshl_b32 s6, s5, 3")
    A.e("s_lshl_b32 s13, s7, 1")
    A.e("s_add_u32 s13, s13, s6")
    A.e("s_lshl_b32 s6, s13, 10")
    A.e("v_lshlrev_b32 v17, 4, v8")
    A.e("v_lshl_add_u32 v18, v9, 10, v17")
    A.e("v_add_u32 v18, s6, v18")
    A.vmi("g", "buffer_load_dwordx4 v[64:67], v18, %s, 0 offen" % s(rX, 4))
    A.vmi("g", "buffer_load_dwordx4 v[68:71], v18, %s, 0 offen offset:512" % s(rX, 4))
    A.vmi("g", "global_load_dwordx4 v[72:75], v17, %s" % s(sGW, 2))
    A.vmi("g", "global_load_dwordx4 v[76:79], v17, %s offset:512" % s(sGW, 2))
    A.e("s_and_b32 s6, s4, 8")
    A.e("s_lshl_b32 s6, s6, 4")
    A.e("s_add_u32 s6, s6, 0x%x" % EPR_OFF)
    srd(A, rFL, sWS, 4, "s6")
    A.e("v_mov_b32 v88, 0")
    A.vmi("g", "buffer_load_dword v87, v88, %s, 0 offen sc1" % s(rFL, 4))
    emit(A, dma_ops(A, 1, "v5", "v16"))
    A.fs(54)
    srd(A, rW1, sW1, 512 * 2752)
    srd(A, rW3, sW3, 512 * 2752)
    common_late(A)
    srd(A, rG, sWS, 16384, "0x%x" % G_OFF)
    A.e("v_add_u32 v7, s8, v7")
    A.e("s_add_u32 s82, s82, %d" % (65536 + 2048))
    A.e("s_add_u32 s87, s82, s93")
    A.e("s_add_u32 s82, s82, s92")
    A.e("s_branch L_Fmain")
    A.fmain = len(A.L)
    A.lab("L_Fmain")

    def g_ops():
        o = [lambda: A.vmw("g"), "v_readfirstlane_b32 s86, v87", "v_mov_b32 v84, 0", "s_add_u32 s86, s86, 1", "s_bitset1_b32 s86, 31"]
        for d in range(8):
            xx, ww = 64 + d, 72 + d
            o += ["v_lshlrev_b32 v80, 16, %s" % v(xx), "v_and_b32 v81, 0xffff0000, %s" % v(xx),
                  "v_lshlrev_b32 v82, 16, %s" % v(ww), "v_and_b32 v83, 0xffff0000, %s" % v(ww),
                  "v_mul_f32 v80, v80, v82", "v_mul_f32 v81, v81, v83", "v_cvt_pk_bf16_f32 v80, v80, v81",
                  "v_lshlrev_b32 v81, 16, v80", "v_and_b32 v80, 0xffff0000, v80",
                  "v_add_f32 v84, v84, v81", "v_add_f32 v84, v84, v80"]
        for sh in (1, 2, 4, 8):
            o += ["s_nop 1", "v_add_f32_dpp v84, v84, v84 row_shr:%d row_mask:0xf bank_mask:0xf bound_ctrl:0" % sh]
        o += ["s_nop 1", "v_add_f32_dpp v84, v84, v84 row_bcast:15 row_mask:0xa bank_mask:0xf",
              "v_cvt_pk_bf16_f32 v84, v84, v84", "v_and_b32 v84, 0xffff0000, v84", "v_mul_f32 v84, s80, v84",
              "v_exp_f32 v84, v84", "s_nop 0", "v_add_f32 v84, 1.0, v84", "v_rcp_f32 v84, v84", "s_nop 0",
              "v_cvt_pk_bf16_f32 v84, v84, v84", "v_and_b32 v84, 0xffff0000, v84",
              "v_sub_f32 v85, 1.0, v84", "v_cvt_pk_bf16_f32 v85, v85, v85", "v_and_b32 v85, 0xffff0000, v85"]
        return o

    def g_store():
        A.e("s_lshl_b32 s6, s4, 7")
        A.e("s_add_u32 s6, s6, s13")
        A.e("s_lshl_b32 s6, s6, 3")
        A.e("v_lshlrev_b32 v86, 3, v9")
        A.e("s_mov_b32 exec_lo, 0x80000000")
        A.e("s_mov_b32 exec_hi, 0x80000000")
        A.vmi("gst", "buffer_store_dwordx2 v[84:85], v86, %s, s6 offen%s" % (s(rG, 4), stmod()))
        A.e("s_mov_b64 exec, -1")

    gq = g_ops()
    if PAR["slead"]:
        assert PAR["sl0"] + PAR["sln"] <= 7
        A.e("s_lshr_b32 s6, s2, 3")
        A.e("s_mul_i32 s14, s6, %d" % ((255 + PAR["sln"]) // PAR["sln"]))
        A.e("s_lshr_b32 s14, s14, 8")
        A.e("s_mul_i32 s14, s14, %d" % PAR["sln"])
        A.e("s_sub_u32 s14, s6, s14")
    rO = 68
    A.e("s_and_b32 s72, s7, 1")
    A.e("s_lshr_b32 s73, s7, 1")
    tile_of(A, "s6", "s74", "s75")
    A.e("s_lshl_b32 s75, s75, 1")
    A.e("s_add_u32 s75, s75, s6")
    A.e("s_lshl_b32 s75, s75, 1")
    A.e("s_add_u32 s75, s75, s72")
    A.e("s_lshl_b32 s75, s75, 16")
    A.e("s_lshl_b32 s74, s74, 1")
    A.e("s_add_u32 s74, s74, s73")
    A.e("s_lshl_b32 s74, s74, 7")
    A.e("s_add_u32 s75, s75, s74")
    A.e("v_lshlrev_b32 v20, 15, v9")
    A.e("v_lshl_add_u32 v20, v8, 2, v20")
    A.e("v_add_u32 v20, s75, v20")
    srd(A, rO, sOUT, 2048 * 2048)
    A.e("s_lshl_b32 s6, s72, 12")
    A.e("s_add_u32 s6, s6, %d" % AU(0))
    A.e("v_add_u32 v17, s6, v6")
    A.e("v_subrev_u32 v18, s8, v7")
    A.e("s_lshl_b32 s6, s73, 12")
    A.e("v_add_u32 v18, s6, v18")
    A.e("v_bfe_u32 v10, v1, 2, 2")
    A.e("v_lshlrev_b32 v19, 7, v10")
    A.e("v_lshl_add_u32 v19, v9, 9, v19")
    A.e("v_bfe_u32 v10, v1, 4, 1")
    A.e("v_lshl_add_u32 v19, v10, 5, v19")
    A.e("v_and_b32 v10, 3, v1")
    A.e("v_lshl_add_u32 v19, v10, 3, v19")
    A.e("v_bfe_u32 v10, v1, 3, 1")
    A.e("v_xor_b32 v10, s73, v10")
    A.e("v_lshl_add_u32 v19, v10, 6, v19")
    A.e("s_lshl_b32 s6, s73, 6")
    A.e("v_lshl_add_u32 v23, v8, 1, s6")
    A.e("s_lshl_b32 s6, s72, 1")
    A.e("v_add_u32 v10, s6, v9")
    A.e("v_lshl_add_u32 v21, v10, 11, v23")
    A.e("v_add_u32 v21, %d, v21" % AU(0))
    A.e("s_bfe_u32 s6, s5, 0x10002")
    A.e("s_lshl_b32 s6, s6, 9")
    A.e("s_add_u32 s6, s6, %d" % GU)
    A.e("v_lshl_add_u32 v22, v10, 7, s6")
    A.e("v_add_u32 v23, %d, v23" % (GU + 1024))
    A.e("s_lshl_b32 s100, s5, 2")
    A.e("s_add_u32 s100, s100, s7")
    A.e("s_lshl_b32 s100, s100, 12")
    A.e("s_xor_b32 s101, s100, 0x10000")
    A.e("v_bfe_u32 v10, v1, 4, 1")
    A.e("v_mul_u32_u24 v11, 1152, v10")
    A.e("v_lshl_add_u32 v11, v9, 8, v11")
    A.e("v_bfe_u32 v10, v1, 2, 2")
    A.e("v_lshl_add_u32 v11, v10, 5, v11")
    A.e("v_and_b32 v10, 1, v1")
    A.e("v_lshl_add_u32 v11, v10, 4, v11")
    A.e("v_bfe_u32 v10, v1, 1, 1")
    A.e("v_lshl_add_u32 v11, v10, 3, v11")
    A.e("s_lshl_b32 s6, s72, 12")
    A.e("s_add_u32 s6, s6, %d" % AU(0))
    A.e("v_add_u32 v11, s6, v11")
    A.e("v_xor_b32 v10, 0x80, v11")

    tiles = [2, 3, 4, 5]
    S = Stream(A, mk_items(ORD, 4, False), 8, PAR["fd"], PAR["ffill"])
    late = []
    dq = []
    if PAR["split"]:
        for n in range(LASTP + LA + 1, 16):
            dq += [(n, f) for f in dma_ops(A, n, "v5", "v16", (0, 1) if PAR["slead"] and n < PAR["sfrom"] else (1,))]

    def pf_setup():
        srd(A, 44, sW2, 1376 * 1024)
        A.e("s_bitcmp1_b32 s5, 2")
        A.e("s_cselect_b64 s[48:49], %s, %s" % (s(sCIM, 2), s(sCRE, 2)))
        A.e("s_cselect_b32 s15, 704, 0")
        A.e("s_mov_b32 s50, 0x80000")
        A.e("s_mov_b32 s51, 0x20000")
        A.e("s_lshr_b32 s6, s2, 3")
        A.e("s_mul_i32 s14, s6, 22")
        A.e("s_add_u32 s15, s15, s14")
        A.e("s_mul_i32 s14, s7, 11")
        A.e("s_lshr_b32 s14, s14, 1")
        A.e("s_add_u32 s15, s15, s14")
        if PAR["p2map"]:
            A.e("s_lshl_b32 s15, s15, 10")
            A.e("s_lshl_b32 s9, s6, 2")
            A.e("s_add_u32 s9, s9, s7")
            A.e("s_lshl_b32 s9, s9, 12")
            A.e("v_lshlrev_b32 v2, 7, v1")
            A.e("v_mov_b32 v3, v2")
            return
        A.e("s_lshl_b32 s15, s15, 1")
        A.e("s_lshr_b32 s14, s5, 3")
        A.e("s_add_u32 s15, s15, s14")
        A.e("s_lshl_b32 s15, s15, 9")
        A.e("s_lshl_b32 s9, s14, 18")
        A.e("s_lshl_b32 s6, s6, 13")
        A.e("s_add_u32 s9, s9, s6")
        A.e("s_lshl_b32 s6, s7, 11")
        A.e("s_add_u32 s9, s9, s6")
        A.e("v_lshlrev_b32 v2, 7, v1")
        A.e("v_lshrrev_b32 v3, 2, v1")
        A.e("v_lshlrev_b32 v3, 3, v3")
        A.e("v_and_or_b32 v3, v1, 3, v3")
        A.e("v_lshlrev_b32 v3, 7, v3")

    def pf_c():
        A.e("s_mov_b32 exec_hi, 0" if PAR["p2map"] else "s_mov_b64 exec, 0xffff")
        A.vmi("pf", "buffer_load_dword v4, v2, s[48:51], s9 offen")
        A.e("s_mov_b64 exec, -1")

    def pf_w():
        A.e("s_mov_b32 exec_hi, 0xffff" if PAR["p2map"] else "s_mov_b64 exec, 0xffffff")
        A.vmi("pf", "buffer_load_dword v4, v3, s[44:47], s15 offen")
        A.e("s_mov_b64 exec, -1")

    if PAR["pf"] and PAR["fpf"]:
        dq += sorted([(PAR["pfc"] + PAR["laf"], pf_c), (PAR["pfw"] + PAR["laf"], pf_w)], key=lambda x: x[0])

    def dma_upto(m, maxops=999):
        while dq and dq[0][0] <= m and maxops > 0:
            dq.pop(0)[1]()
            maxops -= 1

    def waddr(n):
        return ((14, 15), (28, 29), (30, 31))[n % 3]

    def pre(b):
        kind, c = ORD[b]
        slot = slot_of(b)
        if PAR["slead"] and b == 2:
            emit(A, gq)
            del gq[:]
        if b == LASTP + 1:
            emit(A, gq)
            g_store()
            if PAR["pf"] and PAR["fpf"]:
                pf_setup()
            A.e("s_lshl_b32 s6, s4, 18")
            A.e("s_add_u32 s6, s6, 0x%x" % XB_OFF)
            srd(A, rFL, sWS, 262144, "s6")
        dma_upto(min(b - 1 + LA, 15) if b != PAR["lastbar"] else 15)
        if b == 10:
            A.vmw("gst")
        if b == PAR["lastbar"]:
            A.vmw("ch15")
        if kind == "P":
            A.e("v_add_u32 v24, %d, v7" % slot)
            A.e("v_xor_b32 v25, 32, v24")
            A.e("v_xor_b32 v26, 64, v24")
            A.e("v_xor_b32 v27, 0x60, v24")
        else:
            A.e("v_add_u32 v%d, %d, v12" % (waddr(b)[0], slot))
            A.e("v_add_u32 v%d, %d, v13" % (waddr(b)[1], slot))
        A.fs2(20 + b)
        A.vmw("ch%d" % b)
        if PAR["slead"] and b == 8:
            k = A.vm.index("ch9")
            A.e("s_waitcnt vmcnt(%d)" % (len(A.vm) - k))
            A.vm = A.vm[k:]
        if PAR["gam"] and b == 7:
            A.e("s_cmp_lg_u32 s15, 0")
            A.e("s_cbranch_scc1 L_F_w7")
            A.e("s_waitcnt vmcnt(0)")
            A.lab("L_F_w7")
        A.fs2(36 + b)

    def post(b):
        kind, c = ORD[b]
        A.fs(b)
        if kind == "P":
            for ss in range(4):
                A.lgi("c%d_x" % b, "ds_read_b128 %s, %s" % (a(16 * c + 4 * ss, 4), v(24 + ss)))
            for n in range(2, 16):
                if PAR["slead"] and n == 8:
                    continue
                if (n == b + LA) or (b == 0 and n < LA):
                    if PAR["gam"] and n >= 8:
                        A.e("s_cmp_eq_u32 s15, 0")
                        A.e("s_cbranch_scc1 L_F_skip%d" % n)
                    emit(A, dma_ops(A, n, "v5", "v16"))
                    if PAR["gam"] and n >= 8:
                        A.lab("L_F_skip%d" % n)
            if PAR["slead"] and 0 <= b - PAR["sl0"] < PAR["sln"]:
                A.e("s_cmp_lg_u32 s14, %d" % (b - PAR["sl0"]))
                A.e("s_cbranch_scc1 L_F_sl%d" % b)
                keep = list(A.vm)
                emit(A, dma_ops(A, 8, "v5", "v16"))
                A.vm = keep
                A.lab("L_F_sl%d" % b)
            if b == 0:
                emit(A, gq[:PAR["g0"]])
                del gq[:PAR["g0"]]

    def read(it, sl, tag):
        n, ss, ti = it
        T = tiles[ti]
        for nn in range(2):
            A.lgi(tag, "ds_read_b64_tr_b16 %s, v%d offset:%d" % (v(FB + 4 * sl + 2 * nn, 2), waddr(n)[T & 1],
                                                                ss * 6144 + (T >> 1) * 1024 + nn * 256))

    def mfma(it, sl):
        n, ss, ti = it
        c = ORD[n][1]
        first = (c == 0 and ss == 0)
        A.e("v_mfma_f32_32x32x16_bf16 %s, %s, %s, %s" % (v(ACC + 16 * ti, 16), v(FB + 4 * sl, 4), a(16 * c + 4 * ss, 4),
                                                        "0" if first else v(ACC + 16 * ti, 16)))

    def after(it, mp):
        n, ss, ti = it
        if n == 15 and ss == 3:
            S.fill.append(("dist", S.ninstr()))
            S.fill += swiglu_ops(A, ACC + 16 * ti, 1024 * ti, PAR["pk"] and ti >= 2, late if ti >= 4 - PAR["defF"] else None)
        if mp % (2 if PAR["slead"] and dq and dq[0][0] < PAR["sfrom"] else PAR["fgap"]) == 0:
            dma_upto(S.nb - 1 + PAR["laf"], 1)

    S.pre, S.post, S.read, S.mfma, S.after = pre, post, read, mfma, after
    S.run()
    assert not dq
    A.fs(16)
    S.flush()
    A.fs(19)

    N = len(P2_SEQ)
    AS, AO, BS, BO, GV = 32, 48, 64, 80, 96
    XV, RV = AO, AS
    A.lg = []
    seen = {"Co"}

    def addr(n):
        k_, m_, h_, u_ = P2_SEQ[n]
        if n and (P2_SEQ[n - 1][3] == u_ or u_ < 0):
            return
        if k_ == "W":
            A.e("v_add_u32 v24, %d, v19" % (u_ * 8192))
        elif k_ == "C":
            A.e("v_add_u32 v24, %d, v18" % (u_ * 8192))
            A.e("v_xor_b32 v25, 32, v24")
            A.e("v_xor_b32 v26, 64, v24")
            A.e("v_xor_b32 v27, 0x60, v24")

    def wfb(n):
        if P2_SEQ[n][0] == "C" and P2_SEQ[n][1] < 2:
            return 80 + 16 * P2_SEQ[n][1]
        while n and P2_SEQ[n - 1][3] == P2_SEQ[n][3]:
            n -= 1
        return 32 + 16 * (n % 3)

    def g_reads(tg, other, qs):
        for q in qs:
            A.lgi(tg, "ds_read_b128 %s, %s offset:%d" % (v(GV + 4 * q, 4), "v28" if other else "v22", 16 * q))

    def reads2(n, ss):
        k_, m_, h_, u_ = P2_SEQ[n]
        fa = 16 * (n & 1)
        tg = "r%d_%d" % (n, ss)
        if k_ == "X":
            for r in range(4 * ss, 4 * ss + 4):
                A.lgi(tg, "ds_read_u16 %s, v21 offset:%d" % (v(XV + r), AU(n) - AU(0) + 128 * r))
            if ss == 3:
                A.lgi(tg, "ds_read_u16 v16, v23")
            return
        if k_ == "W":
            A.lgi(tg, "ds_read_b128 %s, v17 offset:%d" % (a(fa + 4 * ss, 4), AU(n) - AU(0) + 1024 * ss))
        else:
            for nn in range(2):
                A.lgi(tg, "ds_read_b64_tr_b16 %s, %s offset:%d" % (a(fa + 4 * ss + 2 * nn, 2), "v10" if nn else "v11",
                                                                  AU(n) - AU(0) + 2048 * (ss >> 1) + 512 * (ss & 1)))
        if n and (P2_SEQ[n - 1][3] == u_ or u_ < 0):
            return
        if k_ == "W":
            for nn in range(2):
                A.lgi(tg, "ds_read_b64_tr_b16 %s, v24 offset:%d" % (a(wfb(n) + 4 * ss + 2 * nn, 2), 2048 * ss + 1024 * nn))
        else:
            A.lgi(tg, "ds_read_b128 %s, %s" % (a(wfb(n) + 4 * ss, 4), v(24 + ss)))

    def mfma2(n, ss):
        k_, m_, h_, u_ = P2_SEQ[n]
        A.lgw("r%d_%d" % (n, ss))
        if k_ == "X":
            return
        acc = v({"Cs": AS, "Co": AO, "Ws": BS, "Wo": BO}[k_ + h_], 16)
        first = (k_ + h_) not in seen
        seen.add(k_ + h_)
        A.e("v_mfma_f32_32x32x16_bf16 %s, %s, %s, %s" % (acc, a(16 * (n & 1) + 4 * ss, 4), a(wfb(n) + 4 * ss, 4), "0" if first else acc))

    def xd(q):
        if q == 0:
            A.e("v_lshlrev_b32 v16, 16, v16")
        r0, r1 = 2 * q, 2 * q + 1
        A.e("v_lshlrev_b32 %s, 16, %s" % (v(XV + r0), v(XV + r0)))
        A.e("v_lshlrev_b32 %s, 16, %s" % (v(XV + r1), v(XV + r1)))
        A.e("v_mul_f32 %s, %s, v16" % (v(XV + r0), v(XV + r0)))
        A.e("v_mul_f32 %s, %s, v16" % (v(XV + r1), v(XV + r1)))
        A.e("v_cvt_pk_bf16_f32 %s, %s, %s" % (v(XV + r0), v(XV + r0), v(XV + r1)))
        A.e("v_and_b32 %s, 0xffff0000, %s" % (v(XV + r1), v(XV + r0)))
        A.e("v_lshlrev_b32 %s, 16, %s" % (v(XV + r0), v(XV + r0)))

    def send(qs):
        if 0 in qs:
            A.e("s_nop 10")
        for q in qs:
            for r in range(4 * q, 4 * q + 4):
                A.e("v_fmac_f32 %s, %s, %s" % (v(AS + r), v(GV + 2 * r + 1), v(BS + r)))
            for r in (4 * q, 4 * q + 2):
                A.e("v_cvt_pk_bf16_f32 %s, %s, %s" % (v(BO + r), v(AS + r), v(AS + r + 1)))
            A.e("buffer_store_dwordx4 %s, v6, %s, s101 offen offset:%d%s" % (v(BO + 4 * q, 4), s(rFL, 4), 1024 * q, stmod("x")))

    def recv_issue():
        for q in range(4):
            A.e("buffer_load_dwordx4 %s, v6, %s, s100 offen offset:%d sc1" % (v(RV + 4 * q, 4), s(rFL, 4), 1024 * q))

    def recv():
        A.e("s_mov_b32 s13, 0")
        A.lab("L_F_rpoll")
        A.e("s_waitcnt vmcnt(0)")
        T = [v(RV + 2 * q + 1) for q in range(8)]
        for op, d in (("v_min3_u32", "v28"), ("v_max3_u32", "v29")):
            A.e("%s %s, %s, %s, s86" % (op, d, T[0], T[1]))
            for q in range(2, 8, 2):
                A.e("%s %s, %s, %s, %s" % (op, d, T[q], T[q + 1], d))
        A.e("v_cmp_ne_u32 vcc, v28, v29")
        A.e("s_cbranch_vccz L_F_rok")
        A.e("s_sleep 2")
        recv_issue()
        A.e("s_add_u32 s13, s13, 1")
        A.e("s_cmp_lt_u32 s13, 0x20000")
        A.e("s_cbranch_scc1 L_F_rpoll")
        A.e("s_waitcnt vmcnt(0)")
        A.lab("L_F_rok")
        A.cnt(58, "s13")

    A.e("v_xor_b32 v28, 0x200, v22")
    assert PAR["fl2"] <= 8 and not PAR["stag"] and PAR["ssp"] in (1, 2) and N - PAR["rc"] >= NSEND + 10
    for n in range(N):
        addr(n)
        if n == PAR["fl2"]:
            assert not late
            A.e("s_waitcnt vmcnt(0)")
        if p2_real(n):
            A.e("s_barrier")
        if "hold" in OPT:
            A.fs(100 + n)
        for ss in range(4):
            if n >= 1:
                mfma2(n - 1, ss)
            reads2(n, ss)
        if late:
            late.pop(0)()
        if 1 <= n <= 4:
            xd(2 * n - 2)
            xd(2 * n - 1)
        if n == 8:
            g_reads("g1", True, range(8))
        if n == 9:
            for q in range(8):
                A.e("v_mov_b32 %s, s86" % v(BO + 2 * q + 1))
        if NSSM + 1 <= n < NSSM + 9:
            A.lgw("g1")
            for r in (2 * (n - NSSM - 1), 2 * (n - NSSM - 1) + 1):
                A.e("v_mul_f32 %s, %s, %s" % (v(AS + r), v(GV + 2 * r), v(AS + r)))
        sp = PAR["ssp"]
        if 0 <= n - NSEND - 1 < sp:
            if n == NSEND + 1:
                A.fs(17)
            q0 = (n - NSEND - 1) * (4 // sp)
            send(range(q0, q0 + 4 // sp))
        if n == NSEND + 1 + sp:
            g_reads("g2", False, range(8))
        if NSEND + 6 <= n < NSEND + 10:
            A.lgw("g2")
            for r in range(4 * (n - NSEND - 6), 4 * (n - NSEND - 6) + 4):
                A.e("v_mul_f32 %s, %s, %s" % (v(AO + r), v(GV + 2 * r), v(AO + r)))
        if n == N - PAR["rl"]:
            recv_issue()
        if n == N - PAR["rc"]:
            A.fs(18)
            recv()
            A.fs(57)
    for ss in range(4):
        mfma2(N - 1, ss)
    A.fs(59)
    def unpack(q):
        A.e("v_and_b32 %s, 0xffff0000, %s" % (v(RV + 2 * q + 1), v(RV + 2 * q)))
        A.e("v_lshlrev_b32 %s, 16, %s" % (v(RV + 2 * q), v(RV + 2 * q)))
        A.e("v_add_f32 %s, %s, %s" % (v(AO + 2 * q + 1), v(AO + 2 * q + 1), v(RV + 2 * q + 1)))
        A.e("v_add_f32 %s, %s, %s" % (v(AO + 2 * q), v(AO + 2 * q), v(RV + 2 * q)))
    for q in range(3):
        unpack(q)
    for r in range(16):
        if r % 2 == 1 and r // 2 + 3 < 8:
            unpack(r // 2 + 3)
        A.e("v_fmac_f32 %s, %s, %s" % (v(AO + r), v(GV + 2 * r + 1), v(BO + r)))
        if r % 2 == 0:
            A.e("s_movk_i32 s6, %d" % (2048 * r))
        A.e("buffer_store_dword %s, v20, %s, s6 offen offset:%d%s" % (v(AO + r), s(rO, 4), 2048 * (r & 1), stmod("o")))
    A.fs(60)
    A.fs_end()
    A.dbg_end()
    A.e("s_endpgm")


def cpow(A, n_scale, dre, dim, t0, t1, va, vb):
    if n_scale == 1.0:
        A.e("v_exp_f32 %s, %s" % (t0, va))
        A.e("v_fract_f32 %s, %s" % (t1, vb))
    else:
        ns = n_scale if isinstance(n_scale, str) else "0x%x" % f2u(n_scale)
        A.e("v_mul_f32 %s, %s, %s" % (t0, ns, va))
        A.e("v_mul_f32 %s, %s, %s" % (t1, ns, vb))
        A.e("v_exp_f32 %s, %s" % (t0, t0))
        A.e("v_fract_f32 %s, %s" % (t1, t1))
    A.e("v_cos_f32 %s, %s" % (dre, t1))
    A.e("v_sin_f32 %s, %s" % (dim, t1))
    A.e("s_nop 0")
    A.e("v_mul_f32 %s, %s, %s" % (dre, dre, t0))
    A.e("v_mul_f32 %s, %s, %s" % (dim, dim, t0))


def cfma_ops(dr, di, mr, mi, xr, xi, ar, ai):
    return ["v_fma_f32 %s, %s, %s, %s" % (dr, mr, xr, ar),
            "v_fma_f32 %s, %s, %s, %s" % (di, mr, xi, ai),
            "v_fma_f32 %s, -%s, %s, %s" % (dr, mi, xi, dr),
            "v_fma_f32 %s, %s, %s, %s" % (di, mi, xr, di)]


def lane0_store(A, cond, val, srd_, soff, off, vt, vz, L):
    for x in cond:
        A.e(x)
    A.e("s_cbranch_scc1 " + L)
    A.cond = True
    A.e("v_mov_b32 %s, %s" % (vt, val))
    A.e("v_mov_b32 %s, 0" % vz)
    A.e("s_mov_b64 exec, 1")
    A.e("buffer_store_dword %s, %s, %s, %s offen offset:%d sc1" % (vt, vz, s(srd_, 4), soff, off))
    A.e("s_mov_b64 exec, -1")
    A.cond = False
    A.lab(L)


def role_S(A):
    A.vm, A.lg = [], []
    A.thr = 99
    A.lab("L_S")
    LR, LI, NLI = "v16", "v17", "v5"
    L16R, L16I, QR, QI, L256R, L256I = "v18", "v19", "v20", "v21", "v22", "v23"
    CR, CI, PR, PI = "v2", "v3", "v10", "v11"
    ER, EI, SR, SI = "v56", "v57", "v58", "v59"
    RE, IM, ACC, FB = 64, 80, 96, 32
    A.e("s_lshl_b32 s6, s5, 6")
    A.e("v_lshlrev_b32 v4, 1, v8")
    A.e("v_add_u32 v4, s6, v4")
    A.e("v_mov_b32 v55, 0")
    if PAR["cpf"]:
        A.e("s_lshr_b32 s6, s2, 3")
        A.e("s_lshl_b32 s6, s6, 2")
        A.e("s_add_u32 s6, s6, s7")
        A.e("s_lshl_b32 s6, s6, 9")
        A.e("v_and_b32 v53, 3, v1")
        A.e("v_lshl_add_u32 v53, v53, 7, s6")
        A.e("v_min_u32 v53, L_code_end - %s_kernel - 4, v53" % NAME)
        A.e("s_getpc_b64 s[44:45]")
        A.lab("L_pc")
        A.e("s_sub_u32 s44, s44, L_pc - %s_kernel" % NAME)
        A.e("s_subb_u32 s45, s45, 0")
        A.e("v_mov_b32 v51, s45")
        A.e("v_add_co_u32 v50, vcc, s44, v53")
        A.e("s_nop 1")
        A.e("v_addc_co_u32 v51, vcc, 0, v51, vcc")
        A.e("s_mov_b64 exec, 15")
        A.vmi("par", "global_load_dword v52, v[50:51], off")
        A.e("s_mov_b64 exec, -1")
    A.e("s_lshl_b32 s6, s5, 7")
    A.e("s_add_u32 s6, s6, 0x%x" % EP_OFF)
    A.e("s_waitcnt lgkmcnt(0)")
    A.vmi("par", "global_load_ushort v60, v4, %s" % s(sLRE, 2))
    A.vmi("par", "global_load_ushort v61, v4, %s" % s(sLIM, 2))
    A.vmi("par", "global_load_ushort v62, v4, %s" % s(sLDT, 2))
    srd(A, rEP, sWS, 4, "s6")
    A.vmi("par", "buffer_load_dword v54, v55, %s, 0 offen sc1" % s(rEP, 4))
    A.e("s_and_b32 s6, s4, 8")
    A.e("s_lshl_b32 s6, s6, 4")
    A.e("s_add_u32 s6, s6, 0x%x" % EPR_OFF)
    srd(A, rG, sWS, 4, "s6")
    A.vmi("par", "buffer_load_dword v56, v55, %s, 0 offen sc1" % s(rG, 4))
    if PAR["tlb"]:
        A.e("s_cmp_lg_u32 s7, 0")
        A.e("s_cbranch_scc1 L_S_notlb")
        A.e("v_lshlrev_b32 v53, 21, v1")
        A.e("s_mov_b64 exec, 1")
        for ptr in (sW1, sW3, sW2, sCRE, sCIM, sDS):
            A.e("global_load_dword v52, v55, %s" % s(ptr, 2))
        A.e("s_mov_b64 exec, 3")
        A.e("global_load_dword v52, v53, %s" % s(sOUT, 2))
        A.e("s_mov_b64 exec, 31")
        A.e("global_load_dword v52, v53, %s" % s(sWS, 2))
        A.e("s_mov_b64 exec, -1")
        A.lab("L_S_notlb")
    common_late(A)
    w_scalars(A)
    srd(A, rW1, sW1, 512 * 2752)
    srd(A, rW3, sW3, 512 * 2752)
    A.e("s_lshl_b32 s6, s5, 13")
    A.e("s_add_u32 s6, s6, 0x%x" % E_OFF)
    srd(A, rE, sWS, 8192, "s6")
    A.e("s_and_b32 s6, s4, 8")
    A.e("s_lshl_b32 s6, s6, 9")
    A.e("s_add_u32 s6, s6, 0x%x" % FL_OFF)
    srd(A, rFL, sWS, 4096, "s6")
    A.e("s_and_b32 s87, s4, 7")
    A.e("s_lshl_b32 s87, s87, 7")
    A.e("s_add_u32 s87, s87, s5")
    A.e("s_lshl_b32 s87, s87, 2")
    rCRE, rCIM, rW2 = 48, 52, 44
    srd(A, rCRE, sCRE, 524288)
    srd(A, rCIM, sCIM, 524288)
    A.e("s_add_u32 s82, s82, 65536")
    A.e("s_lshl_b32 s100, s5, 11")
    A.e("s_add_u32 s100, s100, s81")
    A.e("s_add_u32 s101, s100, 32768")
    A.e("v_lshlrev_b32 v4, 3, v0")
    A.e("v_add_u32 v4, %d, v4" % (MISC + 2048))
    A.e("v_mov_b32 v48, 0")
    A.e("v_mov_b32 v49, 0")
    A.e("ds_write_b64 v4, v[48:49]")
    A.e("ds_write_b32 v4, v48 offset:2048")
    A.e("s_lshl_b32 s6, s7, 1")
    A.e("v_add_u32 v63, s6, v9")
    A.e("v_sub_u32 v4, 7, v63")
    A.e("v_lshlrev_b32 v4, 8, v4")
    A.e("v_lshl_add_u32 v4, v8, 3, v4")
    A.e("v_add_u32 v4, %d, v4" % MISC)
    A.e("v_lshlrev_b32 v63, 4, v63")
    A.e("v_cvt_f32_u32 v63, v63")
    A.e("s_lshl_b32 s6, s7, 9")
    A.e("v_lshlrev_b32 v57, 7, v9")
    A.e("v_add_u32 v57, s6, v57")
    A.e("v_cvt_f32_u32 v57, v57")
    A.e("s_waitcnt lgkmcnt(0)")
    real, A.L = A.L, []
    ni0 = A.ni
    srd(A, rW2, sW2, 1376 * 1024)
    A.e("v_readfirstlane_b32 s14, v54")
    A.e("v_readfirstlane_b32 s86, v56")
    A.e("s_add_u32 s14, s14, 1")
    A.e("s_bitset1_b32 s14, 31")
    A.e("s_add_u32 s86, s86, 1")
    A.e("s_bitset1_b32 s86, 31")
    A.e("v_lshlrev_b32 v60, 16, v60")
    A.e("v_lshlrev_b32 v61, 16, v61")
    A.e("v_lshlrev_b32 v62, 16, v62")
    A.e("v_mul_f32 v62, 0x%x, v62" % f2u(LOG2E))
    A.e("v_exp_f32 v62, v62")
    A.e("s_nop 0")
    A.e("v_cvt_pk_bf16_f32 v62, v62, v62")
    A.e("v_and_b32 v62, 0xffff0000, v62")
    A.e("v_mul_f32 v50, v62, v60")
    A.e("v_mul_f32 v51, v62, v61")
    A.e("v_mul_f32 v50, 0x%x, v50" % f2u(LOG2E))
    A.e("v_mul_f32 v51, 0x%x, v51" % f2u(INV2PI))
    cpow(A, 1.0, LR, LI, "v52", "v53", "v50", "v51")
    cpow(A, 16.0, L16R, L16I, "v52", "v53", "v50", "v51")
    cpow(A, "v57", QR, QI, "v52", "v53", "v50", "v51")
    cpow(A, 256.0, L256R, L256I, "v52", "v53", "v50", "v51")
    cpow(A, "v63", PR, PI, "v52", "v53", "v50", "v51")
    A.e("v_sub_f32 %s, 0, %s" % (NLI, LI))
    A.e("v_mul_f32 v52, v60, v60")
    A.e("v_fmac_f32 v52, v61, v61")
    A.e("v_rcp_f32 v52, v52")
    A.e("v_add_f32 v53, -1.0, %s" % LR)
    A.e("v_mul_f32 %s, v53, v60" % CR)
    A.e("v_fmac_f32 %s, %s, v61" % (CR, LI))
    A.e("v_mul_f32 %s, %s, v60" % (CI, LI))
    A.e("v_fma_f32 %s, -v53, v61, %s" % (CI, CI))
    A.e("v_add_f32 v52, v52, v52")
    A.e("v_mul_f32 %s, %s, v52" % (CR, CR))
    A.e("v_mul_f32 %s, %s, v52" % (CI, CI))
    emit(A, ["v_lshlrev_b32 v54, 5, v8", "v_lshl_add_u32 v54, v9, 4, v54", "v_xor_b32 v55, 0x80, v54"])
    emit(A, ["s_lshl_b32 s6, s7, 2", "s_sub_u32 s6, s6, s4", "s_add_u32 s6, s6, 16",
             "v_add_u32 v62, s6, v9", "v_lshlrev_b32 v60, 9, v62", "v_lshl_add_u32 v60, v8, 4, v60",
             "v_sub_u32 v62, 17, v62", "v_and_b32 v62, -2, v62", "v_max_i32 v62, 0, v62", "v_min_i32 v62, 4, v62",
             "v_lshlrev_b32 v63, 3, v8", "v_add_u32 v63, %d, v63" % (MISC + 8192),
             "s_lshl_b32 s6, s7, 9", "v_lshl_add_u32 v61, v9, 8, v63", "v_add_u32 v61, s6, v61"])

    par_ops = [x.strip() for x in A.L]
    A.L, A.ni = real, ni0

    tiles = [0, 1]
    LA, LAF = PAR["la"], PAR["laf"]
    assert LA <= LAF <= 4
    assert LASTP + 1 <= PAR["estep"] <= PAR["cstep"] and PAR["cstep"] + 1 <= PAR["lastbar"] and PAR["cstep"] + 1 < PAR["hstep"] <= 15 and PAR["lastbar"] >= 12
    S = Stream(A, mk_items(ORD, 2, True), 4, PAR["sd"], PAR["sfill"])
    S.fence = LASTP + 1
    sw = []
    if PAR["dyn"]:
        S.dyn = True
        A.e("s_setprio 2")
    late = []
    dq = []
    for n in range(PAR["sfrom"] if PAR["slead"] else LASTP + LA + 1, 16):
        dq += [(n, f) for f in dma_ops(A, n, "v4", "v7", (0,) if PAR["split"] else (0, 1))]

    def dma_upto(m, maxops=999):
        while dq and dq[0][0] <= m and maxops > 0:
            dq.pop(0)[1]()
            maxops -= 1

    def ssm_publish():
        A.e("s_nop 7")
        A.e("s_nop 3")
        cur = (v(RE), v(IM))
        tmp = [("v48", "v49"), ("v50", "v51")]
        for r in range(1, 16):
            d = (ER, EI) if r == 15 else tmp[r & 1]
            emit(A, cfma_ops(d[0], d[1], LR, LI, cur[0], cur[1], v(RE + r), v(IM + r)))
            cur = d
        A.e("ds_write_b64 v4, v[56:57]")
        A.e("v_mov_b32 v48, %d" % (MISC + 4096))
        A.e("v_mov_b32 v49, 1")
        A.e("s_mov_b64 exec, 1")
        A.e("ds_add_u32 v48, v49")
        A.e("s_mov_b64 exec, -1")
        A.e("s_mov_b32 s13, 0")
        A.lab("L_S_sync")
        A.e("ds_read_b32 v49, v48")
        A.e("s_add_u32 s13, s13, 1")
        A.e("s_waitcnt lgkmcnt(0)")
        A.e("v_readfirstlane_b32 s6, v49")
        A.e("s_cmp_lt_u32 s13, 0x100000")
        A.e("s_cselect_b32 s6, s6, 4")
        A.e("s_cmp_lt_u32 s6, 4")
        A.e("s_cbranch_scc1 L_S_sync")
        A.lg = []
        if PAR["slead"]:
            S.barrier(9)
        er = lambda m: (24 + 2 * m if m < 4 else 32 + 2 * (m - 4))
        for m in range(6, -1, -1):
            A.lgi("er%d" % m, "ds_read_b64 %s, v4 offset:%d" % (v(er(m), 2), 256 * (m + 1)))
        cur = (v(er(6)), v(er(6) + 1))
        for m in range(5, -1, -1):
            d = (SR, SI) if m == 0 else tmp[m & 1]
            A.lgw("er%d" % m)
            emit(A, cfma_ops(d[0], d[1], L16R, L16I, cur[0], cur[1], v(er(m)), v(er(m) + 1)))
            cur = d
        A.e("s_cmp_lg_u32 s7, 3")
        A.e("s_cbranch_scc1 L_S_nopub")
        A.cond = True
        emit(A, cfma_ops("v24", "v26", L16R, L16I, SR, SI, ER, EI))
        A.e("v_mov_b32 v25, s14")
        A.e("v_mov_b32 v27, s14")
        A.e("s_sub_u32 s6, 15, s4")
        A.e("s_lshl_b32 s6, s6, 9")
        A.e("v_lshlrev_b32 v28, 4, v8")
        A.e("s_mov_b32 exec_lo, 0")
        A.e("buffer_store_dwordx4 v[24:27], v28, %s, s6 offen sc1" % s(rE, 4))
        A.e("s_mov_b64 exec, -1")
        A.cond = False
        A.lab("L_S_nopub")
        A.fs(56)
        emit(A, wdma_addr_ops("v4", "v7", "v48"))
        for r in range(16):
            t = "v%d" % (48 + (r & 3))
            S.fill += ["v_mul_f32 %s, %s, %s" % (t, CI, v(RE + r)), "v_mul_f32 %s, %s, %s" % (v(RE + r), CR, v(RE + r)),
                       "v_fma_f32 %s, -%s, %s, %s" % (v(RE + r), CI, v(IM + r), v(RE + r)), "v_fma_f32 %s, %s, %s, %s" % (v(IM + r), CR, v(IM + r), t)]
        if not PAR["coeff"]:
            S.flush()

    def e_issue(tag=None):
        for m in range(2):
            x = "buffer_load_dwordx4 %s, v60, %s, 0 offen offset:%d sc1" % (v(24 + 4 * m, 4), s(rE, 4), 1024 * m)
            if tag:
                A.vmi(tag, x)
            else:
                A.e(x)

    def e_check():
        A.fs(17)
        A.e("s_mov_b32 s13, 0")
        A.vmw("e")
        A.lab("L_S_poll")
        A.e("v_mov_b32 v48, 0")
        for q in range(4):
            A.e("v_cmp_eq_u32 s[%d:%d], s14, %s" % (18 + 2 * q, 19 + 2 * q, v(25 + 2 * q)))
        for q in range(4):
            A.e("v_addc_co_u32 v48, vcc, 0, v48, s[%d:%d]" % (18 + 2 * q, 19 + 2 * q))
        A.e("v_cmp_ne_u32 vcc, v62, v48")
        A.e("s_cbranch_vccz L_S_ready")
        A.cond = True
        A.e("s_sleep 2")
        e_issue()
        A.e("s_add_u32 s13, s13, 1")
        A.e("s_cmp_lt_u32 s13, 0x20000")
        A.e("s_waitcnt vmcnt(0)")
        A.e("s_cbranch_scc1 L_S_poll")
        A.cond = False
        A.lab("L_S_ready")
        A.cnt(15, "s13") if "so" in OPT else None
        emit(A, cfma_ops("v48", "v49", L256R, L256I, "v28", "v30", "v24", "v26"))
        A.e("v_mul_f32 v50, %s, v48" % QR)
        A.e("v_mul_f32 v51, %s, v49" % QR)
        A.e("v_fma_f32 v50, -%s, v49, v50" % QI)
        A.e("v_fmac_f32 v51, %s, v48" % QI)
        A.lgi("pw", "ds_write_b64 v61, v[50:51]")
        A.fs(18)

    def scan_ops():
        o = []
        pr = [24, 26, 28, 30, 48, 50, 52, 56]
        def prd():
            for q in range(8):
                A.lgi("pr", "ds_read_b64 %s, v63 offset:%d" % (v(pr[q], 2), 256 * q))
        bump = lambda: lane0_store(A, ["s_lshl_b32 s6, s7, 4", "s_add_u32 s6, s6, s4", "s_cmp_lg_u32 s6, 15"], "s14", rEP, "0", 0, "v60", "v61", "L_S_noep")
        o += [prd, bump, lambda: A.lgw("pr")]
        for (x, y) in ((0, 1), (2, 3), (4, 5), (6, 7), (0, 2), (4, 6), (4, 0)):
            o.append("v_add_f32 %s, %s, %s" % (v(pr[x]), v(pr[x]), v(pr[y])))
            o.append("v_add_f32 %s, %s, %s" % (v(pr[x] + 1), v(pr[x] + 1), v(pr[y] + 1)))
        o += cfma_ops("v50", "v51", PR, PI, "v48", "v49", SR, SI)
        o += ["v_mul_f32 v48, %s, v50" % CR, "v_mul_f32 v49, %s, v51" % CR, "v_fma_f32 v48, -%s, v51, v48" % CI, "v_fmac_f32 v49, %s, v50" % CI]
        cur = ("v48", "v49")
        for r in range(16):
            o.append("v_fmac_f32 %s, %s, %s" % (v(RE + r), LR, cur[0]))
            o.append("v_fmac_f32 %s, %s, %s" % (v(IM + r), LR, cur[1]))
            o.append("v_fmac_f32 %s, %s, %s" % (v(RE + r), NLI, cur[1]))
            o.append("v_fmac_f32 %s, %s, %s" % (v(IM + r), LI, cur[0]))
            cur = (v(RE + r), v(IM + r))
        for q in range(8):
            o.append("v_cvt_pk_bf16_f32 %s, %s, %s" % (v(RE + q), v(RE + 2 * q), v(RE + 2 * q + 1)))
        for q in range(8):
            o.append("v_cvt_pk_bf16_f32 %s, -%s, -%s" % (v(IM + q), v(IM + 2 * q), v(IM + 2 * q + 1)))
        def st(ks):
            A.vmi("hst", "buffer_store_dwordx4 %s, %s, %s, s%d offen offset:%d%s" % (v((RE, RE + 4, IM, IM + 4)[ks], 4), "v55" if ks & 1 else "v54", s(rAS, 4),
                                                                                   101 if ks >= 2 else 100, 1024 * (ks & 1), stmod()))
            if ks == 3:
                A.fs(19)
        for ks in range(4):
            o.append(lambda ks=ks: st(ks))
            o += [("gap",)] * PAR["stgap"]
        return o

    def prefetch_c():
        A.e("s_lshr_b32 s15, s5, 3")
        A.e("s_lshl_b32 s15, s15, 18")
        A.e("s_lshr_b32 s6, s2, 3")
        A.e("s_lshl_b32 s6, s6, 13")
        A.e("s_add_u32 s15, s15, s6")
        A.e("s_lshl_b32 s6, s7, 11")
        A.e("s_add_u32 s15, s15, s6")
        A.e("v_lshlrev_b32 v18, 7, v1")
        A.e("s_mov_b64 exec, 0xffff")
        A.vmi("pf", "buffer_load_dword v19, v18, %s, s15 offen" % s(rCRE, 4))
        A.vmi("pf", "buffer_load_dword v19, v18, %s, s15 offen" % s(rCIM, 4))
        A.e("s_mov_b64 exec, -1")

    def prefetch_w2():
        A.e("s_lshr_b32 s6, s2, 3")
        A.e("s_mul_i32 s15, s6, 43")
        A.e("s_mul_i32 s6, s7, 11")
        A.e("s_add_u32 s15, s15, s6")
        A.e("s_lshl_b32 s15, s15, 1")
        A.e("s_lshr_b32 s6, s5, 3")
        A.e("s_add_u32 s15, s15, s6")
        A.e("s_lshl_b32 s15, s15, 9")
        A.e("v_lshrrev_b32 v18, 2, v1")
        A.e("v_lshlrev_b32 v18, 3, v18")
        A.e("v_and_or_b32 v18, v1, 3, v18")
        A.e("v_lshlrev_b32 v18, 7, v18")
        A.e("s_mov_b32 exec_hi, 0xfff")
        A.vmi("pf", "buffer_load_dword v19, v18, %s, s15 offen" % s(rW2, 4))
        A.e("s_mov_b64 exec, -1")

    def spf_setup():
        n_ = PAR["spfn"]
        A.e("s_lshr_b32 s6, s2, 3")
        A.e("s_mul_i32 s30, s6, %d" % ((255 + n_) // n_))
        A.e("s_lshr_b32 s30, s30, 8")
        A.e("s_mul_i32 s30, s30, %d" % n_)
        A.e("s_sub_u32 s30, s6, s30")
        A.e("s_lshr_b32 s9, s5, 3")
        A.e("s_lshl_b32 s9, s9, 18")
        A.e("s_lshl_b32 s15, s6, 13")
        A.e("s_add_u32 s9, s9, s15")
        A.e("s_lshl_b32 s15, s7, 11")
        A.e("s_add_u32 s9, s9, s15")
        A.e("s_mul_i32 s15, s6, 43")
        A.e("s_mul_i32 s6, s7, 11")
        A.e("s_add_u32 s15, s15, s6")
        A.e("s_lshl_b32 s15, s15, 1")
        A.e("s_lshr_b32 s6, s5, 3")
        A.e("s_add_u32 s15, s15, s6")
        A.e("s_lshl_b32 s15, s15, 9")

    def spf_site(q, va='v18', vd='v19'):
        def f():
            A.e("s_cmp_lg_u32 s30, %d" % q)
            A.e("s_cbranch_scc1 L_spf%d" % q)
            A.cond = True
            A.e(("v_lshlrev_b32 v18, 7, v1").replace("v18", va).replace("v19", vd))
            A.e("s_mov_b64 exec, 0xffff")
            A.e(("buffer_load_dword v19, v18, %s, s9 offen" % s(rCRE, 4)).replace("v18", va).replace("v19", vd))
            A.e(("buffer_load_dword v19, v18, %s, s9 offen" % s(rCIM, 4)).replace("v18", va).replace("v19", vd))
            A.e("s_mov_b64 exec, -1")
            A.e(("v_lshrrev_b32 v18, 2, v1").replace("v18", va).replace("v19", vd))
            A.e(("v_lshlrev_b32 v18, 3, v18").replace("v18", va).replace("v19", vd))
            A.e(("v_and_or_b32 v18, v1, 3, v18").replace("v18", va).replace("v19", vd))
            A.e(("v_lshlrev_b32 v18, 7, v18").replace("v18", va).replace("v19", vd))
            A.e("s_mov_b32 exec_hi, 0xfff")
            A.e(("buffer_load_dword v19, v18, %s, s15 offen" % s(rW2, 4)).replace("v18", va).replace("v19", vd))
            A.e("s_mov_b64 exec, -1")
            A.cond = False
            A.lab("L_spf%d" % q)
        return f

    def warm_w():
        A.e("s_and_b32 s6, s83, 7")
        A.e("s_lshl_b32 s6, s6, 2")
        A.e("s_add_u32 s6, s6, s7")
        A.e("s_mul_i32 s6, s6, %d" % (16 * 2752))
        A.e("s_mul_i32 s13, s5, 192")
        A.e("s_add_u32 s6, s6, s13")
        A.e("s_add_u32 s6, s6, s92")
        A.e("v_lshrrev_b32 v52, 1, v8")
        A.e("v_mul_u32_u24 v52, 2752, v52")
        A.e("v_and_b32 v53, 1, v1")
        A.e("v_lshl_add_u32 v52, v53, 7, v52")
        A.e("s_mov_b32 exec_hi, 0")
        A.e("s_bitcmp1_b32 s4, 3")
        A.e("s_cbranch_scc1 L_ww3")
        A.e("buffer_load_dword v53, v52, %s, s6 offen" % s(rW1, 4))
        A.e("s_branch L_ww")
        A.lab("L_ww3")
        A.e("buffer_load_dword v53, v52, %s, s6 offen" % s(rW3, 4))
        A.lab("L_ww")
        A.e("s_mov_b64 exec, -1")

    if PAR["spf"] or PAR["mpf"] >= 0:
        spf_setup()
    if PAR["mpf"] >= 0:
        A.e("s_bfe_u32 s6, s2, 0x10002")
        A.e("s_lshl_b32 s6, s6, 1")
        A.e("s_and_b32 s30, s2, 1")
        A.e("s_add_u32 s30, s30, s6")
        A.e("s_sub_u32 s30, s30, s7")
    if PAR["pf"] and not PAR["spf"] and not PAR["fpf"]:
        dq.append((PAR["pfc"] + LAF, prefetch_c))
        if PAR["pfw"] <= 15:
            dq.append((PAR["pfw"] + LAF, prefetch_w2))

    N = len(P2_SEQ)
    LA2 = PAR["ala"]
    assert LA2 <= NA - 2

    rAs_, rAo_ = 56, 60

    def p2_setup1():
        tile_of(A, "s11", "s10", "s31")
        if PAR["p2map"]:
            A.e("s_and_b32 s6, s4, 3")
            A.e("s_lshl_b32 s13, s6, 1")
            A.e("s_add_u32 s13, s13, s10")
            A.e("s_mul_i32 s14, s6, 3")
            A.e("s_mul_i32 s6, s10, 11")
        else:
            A.e("s_and_b32 s6, s10, 3")
            A.e("s_lshl_b32 s13, s6, 1")
            A.e("s_add_u32 s13, s13, s4")
            A.e("s_mul_i32 s14, s6, 3")
            A.e("s_and_b32 s6, s4, 7")
            A.e("s_mul_i32 s6, s6, 11")
        A.e("s_lshr_b32 s6, s6, 3")
        A.e("s_add_u32 s14, s14, s6")
        A.e("s_sub_u32 s6, s14, 11")
        A.e("s_cmp_ge_u32 s14, 11")
        A.e("s_cselect_b32 s14, s6, s14")
        A.e("s_lshl_b32 s9, s7, 11")
        A.e("s_cmp_lg_u32 s11, 0")
        A.e("s_cselect_b64 %s, %s, %s" % (s(rCRE, 2), s(sCIM, 2), s(sCRE, 2)))
        A.e("v_and_b32 v11, 7, v1")
        A.e("v_lshrrev_b32 v22, 3, v1")
        A.e("v_lshrrev_b32 v10, 4, v1")
        A.e("v_xor_b32 v10, v10, v11")
        A.e("v_lshlrev_b32 v10, 4, v10")
        A.e("v_lshl_add_u32 v4, v22, 10, v10")
        A.e("s_lshl_b32 s6, s7, 14")
        A.e("s_lshl_b32 s12, s10, 16")
        A.e("s_add_u32 s12, s12, s6")
        A.e("v_add_u32 v4, s12, v4")
        A.e("v_xor_b32 v5, 64, v4")
        A.e("v_add_u32 v5, 8192, v5")

    def p2_setup2():
        A.e("s_and_b32 s12, s7, 1")
        A.e("s_lshr_b32 s15, s7, 1")
        A.e("s_lshl_b32 s15, s15, 11")
        A.e("s_lshl_b32 s8, s12, 12")
        A.e("s_add_u32 s8, s8, s15")
        A.e("s_lshl_b32 s6, s11, 15")
        A.e("s_add_u32 s6, s6, s15")
        A.e("v_add_u32 v2, s6, v6")
        A.e("s_mul_i32 s6, s11, 45056")
        A.e("s_add_u32 s6, s6, s15")
        A.e("s_add_u32 s6, s6, 65536")
        A.e("v_add_u32 v23, s6, v6")
        A.e("s_lshl_b32 s6, s31, 1")
        A.e("s_add_u32 s6, s6, s11")
        A.e("s_lshl_b32 s6, s6, 1")
        A.e("s_add_u32 s6, s6, s12")
        A.e("s_xor_b32 s15, s6, 2")
        A.e("s_mul_i32 s6, s6, %d" % (NKS * 1024))
        A.e("s_mul_i32 s15, s15, %d" % (NKS * 1024))
        srd(A, rAo_, sWS, NKS * 1024, "s6")
        srd(A, rAs_, sWS, NKS * 1024, "s15")
        A.e("v_bfe_u32 v10, v1, 4, 1")
        A.e("v_lshlrev_b32 v10, 2, v10")
        A.e("v_xor_b32 v10, v10, v11")
        A.e("v_lshlrev_b32 v10, 4, v10")
        A.e("v_lshl_add_u32 v3, v22, 10, v10")
        A.e("s_lshl_b32 s6, s7, 14")
        A.e("s_lshl_b32 s12, s10, 7")
        A.e("s_add_u32 s12, s12, s6")
        A.e("s_mul_i32 s6, s11, %d" % (704 * 1024))
        A.e("s_add_u32 s12, s12, s6")
        A.e("v_add_u32 v3, s12, v3")
        A.e("v_add_u32 v7, 8192, v3")
        A.e("v_and_b32 v17, 15, v1")
        A.e("s_and_b32 s6, s31, 7")
        A.e("s_lshl_b32 s6, s6, 9")
        A.e("v_lshl_add_u32 v17, v17, 2, s6")

    def idx(kind, m):
        if kind == "C":
            A.e("s_add_u32 s12, s13, %d" % m)
            A.e("s_and_b32 s12, s12, 7")
        else:
            A.e("s_add_u32 s12, s14, %d" % m)
            A.e("s_sub_u32 s6, s12, 11")
            A.e("s_cmp_ge_u32 s12, 11")
            A.e("s_cselect_b32 s12, s6, s12")

    def dma_w(q):
        kind, m, u, first, free = P2_W[q]
        idx(kind, m)
        A.e("s_lshl_b32 s12, s12, %d" % (16 if kind == "W" else 7))
        r_, va, vb = (rW2, "v3", "v7") if kind == "W" else (rCRE, "v4", "v5")
        A.e("s_add_u32 m0, s9, %d" % (u * 8192))
        A.e("s_nop 0")
        A.vmi("w%d" % first, "buffer_load_dwordx4 %s, %s, s12 offen lds" % (va, s(r_, 4)))
        A.e("s_add_u32 m0, s9, %d" % (u * 8192 + 1024))
        A.e("s_nop 0")
        A.vmi("w%d" % first, "buffer_load_dwordx4 %s, %s, s12 offen lds" % (vb, s(r_, 4)))

    def dma_g(tag):
        srd(A, rEP, sWS, 16384, "0x%x" % G_OFF)
        A.e("s_lshl_b32 s12, s31, 2")
        A.e("s_add_u32 s12, s12, s7")
        A.e("s_lshl_b32 s12, s12, 8")
        A.e("s_lshl_b32 s6, s7, 8")
        A.e("s_add_u32 m0, s6, %d" % GU)
        A.e("s_mov_b64 exec, 0xffff")
        A.vmi(tag, "buffer_load_dwordx4 v6, %s, s12 offen sc1 lds" % s(rEP, 4))
        A.e("s_mov_b64 exec, -1")

    def dma_a(n):
        kind, m, hf, u = P2_SEQ[n]
        if kind == "X":
            srd(A, rE, sX, 2048 * 1024)
            A.e("s_lshl_b32 s6, s31, 1")
            A.e("s_add_u32 s6, s6, s11")
            A.e("s_lshl_b32 s6, s6, 2")
            A.e("s_add_u32 s6, s6, s7")
            A.e("s_lshl_b32 s6, s6, 14")
            A.e("s_lshl_b32 s12, s10, 7")
            A.e("s_add_u32 s12, s12, s6")
            A.e("v_and_b32 v10, 7, v1")
            A.e("v_lshlrev_b32 v10, 4, v10")
            A.e("v_lshl_add_u32 v10, v22, 10, v10")
            A.e("s_add_u32 m0, s9, %d" % AU(n))
            A.e("s_add_u32 s6, s12, 8192")
            A.vmi("a%d" % n, "buffer_load_dwordx4 v10, %s, s12 offen lds" % s(rE, 4))
            A.e("s_add_u32 m0, s9, %d" % (AU(n) + 1024))
            A.e("s_nop 0")
            A.vmi("a%d" % n, "buffer_load_dwordx4 v10, %s, s6 offen lds" % s(rE, 4))
            srd(A, rEP, sDS, 1024)
            A.e("s_lshl_b32 s12, s10, 7")
            A.e("s_mov_b32 m0, %d" % (GU + 1024))
            A.e("s_mov_b64 exec, 0xff")
            A.vmi("a%d" % n, "buffer_load_dwordx4 v6, %s, s12 offen lds" % s(rEP, 4))
            A.e("s_mov_b64 exec, -1")
            return
        idx(kind, m)
        A.e("s_lshl_b32 s12, s12, 12")
        A.e("s_add_u32 m0, s8, %d" % AU(n))
        A.e("s_nop 0")
        va, r_ = ("v23" if kind == "W" else "v2"), (rAs_ if hf == "s" else rAo_)
        A.vmi("a%d" % n, "buffer_load_dwordx4 %s, %s, s12 offen sc1 lds" % (va, s(r_, 4)))
        A.vmi("a%d" % n, "buffer_load_dwordx4 %s, %s, s12 offen offset:1024 sc1 lds" % (va, s(r_, 4)))

    def check(tag, off, L):
        A.e("s_mov_b32 s15, 0")
        A.vmw(tag)
        A.lab(L + "_poll")
        A.e("v_cmp_ne_u32 vcc, s86, v16")
        A.e("s_cbranch_vccz %s_go" % L)
        A.e("s_sleep %d" % PAR["slp"])
        A.e("buffer_load_dword v16, v17, %s, 0 offen offset:%d sc1" % (s(rFL, 4), off))
        A.e("s_add_u32 s15, s15, 1")
        A.e("s_cmp_lt_u32 s15, 0x20000")
        A.e("s_waitcnt vmcnt(0)")
        A.e("s_cbranch_scc1 %s_poll" % L)
        A.lab(L + "_go")
        if L in ("L_p2a", "L_p2b"):
            A.cnt(59 if L == "L_p2a" else 60, "s15")

    def pre(b):
        kind, c = ORD[b]
        slot = slot_of(b)
        if b == 0 and PAR["wpf"] == 99:
            warm_w()
        if b == 0 and PAR["mpf"] == 99:
            spf_site(0, "v52", "v53")()
        if b == LASTP + 1 and not PAR["slead"]:
            S.flush()
            S.K = PAR["sfill"]
            ssm_publish()
            A.thr = PAR["thr"]
        if b == PAR["cstep"] + 1:
            S.flush()
            A.lgw("pw")
        if b == PAR["cstep"] + 2:
            assert "pr" not in A.lg
        dma_upto(min(b - 1 + LA, 15) if b != PAR["lastbar"] else 15)
        if kind == "P":
            A.e("v_add_u32 v28, %d, v7" % slot)
            A.e("v_xor_b32 v29, 32, v28")
            A.e("v_xor_b32 v30, 64, v28")
            A.e("v_xor_b32 v31, 0x60, v28")
            for q in range(4):
                A.e("v_add_u32 %s, s8, %s" % (v(24 + q), v(28 + q)))
        A.fs2(20 + b)
        A.vmw("ch%d" % (b if b != PAR["lastbar"] else 15))
        A.fs2(36 + b)

    def hflag():
        assert "hst" in A.vm or True
        A.vmw("hst")
        A.e("v_mov_b32 v24, %d" % (LDS_CNT))
        A.e("v_mov_b32 v25, 1")
        A.e("s_mov_b64 exec, 1")
        A.lgi("hc", "ds_add_rtn_u32 v26, v24, v25")
        A.e("s_mov_b64 exec, -1")

    def hflag2():
        A.lgw("hc")
        A.e("v_readfirstlane_b32 s6, v26")
        lane0_store(A, ["s_cmp_lg_u32 s6, 3"], "s86", rFL, "s87", 0, "v24", "v25", "L_S_nofl")
        A.fs(57)

    def post(b):
        A.fs(b)
        if b == 1:
            S.fill += [lambda: A.vmw("par")] + par_ops
            S.K = PAR["pfill"]
        if b == PAR["wpf"]:
            warm_w()
        if b == PAR["mpf"]:
            spf_site(0, "v52", "v53")()
        if PAR["spf"] and 0 <= b - PAR["spf0"] < PAR["spfn"]:
            spf_site(b - PAR["spf0"])()
        if b == PAR["estep"]:
            e_issue("e")
        if b == PAR["cstep"]:
            S.fill += [("gap",)] * PAR["cdelay"] + [e_check]
        if b == PAR["cstep"] + 1:
            S.fill += scan_ops()
            S.K = PAR["sfill2"]
        if b == PAR["hstep"]:
            S.fill += [hflag, ("gap",), hflag2]
        if b == PAR["estart"]:
            assert PAR["lastbar"] <= b and PAR["nt"] <= 2 and 2 <= PAR["ew"] <= (6 if PAR["lastbar"] >= 14 else 3) and PAR["ea"] <= (6 if PAR["lastbar"] >= 13 else 3)
            S.fill += [p2_setup1, ("gap",)]
            if PAR["xe"]:
                S.fill += [lambda: dma_a(0), ("gap",)]
            for n in range(PAR["ew"]):
                S.fill += [lambda n=n: dma_w(n), ("gap",)]
            S.fill += [p2_setup2]

    def read(it, sl, tag):
        n, ss, ti = it
        kind, c = ORD[n]
        if kind == "P":
            if ti == 0:
                A.lgi(tag, "ds_read_b128 %s, %s" % (a(16 * c + 4 * ss, 4), v(24 + ss)))
            A.lgi(tag, "ds_read_b128 %s, %s offset:%d" % (v(FB + 4 * sl, 4), v(28 + ss), 16384 + 4096 * ti))
        else:
            T = tiles[ti]
            if ss == 0 and ti == 0:
                A.e("v_add_u32 v14, %d, v12" % slot_of(n))
                A.e("v_add_u32 v15, %d, v13" % slot_of(n))
            for nn in range(2):
                A.lgi(tag, "ds_read_b64_tr_b16 %s, v%d offset:%d" % (v(FB + 4 * sl + 2 * nn, 2), 14 + (T & 1),
                                                                    ss * 6144 + (T >> 1) * 1024 + nn * 256))

    def mfma(it, sl):
        n, ss, ti = it
        kind, c = ORD[n]
        first = (c == 0 and ss == 0)
        if kind == "P":
            d = (RE, IM)[ti]
            A.e("v_mfma_f32_32x32x16_bf16 %s, %s, %s, %s" % (v(d, 16), a(16 * c + 4 * ss, 4), v(FB + 4 * sl, 4), "0" if first else v(d, 16)))
        else:
            d = ACC + 16 * ti
            A.e("v_mfma_f32_32x32x16_bf16 %s, %s, %s, %s" % (v(d, 16), v(FB + 4 * sl, 4), a(16 * c + 4 * ss, 4), "0" if first else v(d, 16)))

    def after(it, mp):
        n, ss, ti = it
        if n == 15 and ss == 3:
            S.fill.append(("dist", S.ninstr()))
            sw.append(swiglu_ops(A, ACC + 16 * ti, 1024 * ti, False, late if ti >= 2 - PAR["defS"] else None))
        if PAR["slead"] and n == LASTP and ss == 3 and ti == 1:
            S.flush()
            S.K = PAR["sfill"]
            S.barrier(8)
            ssm_publish()
        if n > LASTP and (not PAR["split"] or mp % PAR["sgap"] == 0):
            dma_upto(S.nb - 1 + LAF, 1)

    S.pre, S.post, S.read, S.mfma, S.after = pre, post, read, mfma, after
    S.run()
    assert not dq
    A.fs(16)
    A.vmi("poll", "buffer_load_dword v16, v17, %s, 0 offen sc1" % s(rFL, 4))
    S.flush()
    emit(A, sw[0])
    A.fs(58)
    A.thr = PAR["thr2"]
    check("poll", 0, "L_p2a")
    A.fs(55)
    for n in range(PAR["xe"], PAR["ea"]):
        dma_a(n)
    dma_g("g")
    emit(A, sw[1])
    wn, an = PAR["ew"], PAR["ea"]
    for n in range(N):
        if not p2_real(n):
            assert wn == len(P2_W)
            continue
        mark0 = len(A.L)
        A.vmw("w%d" % n)
        A.vmw("a%d" % n)
        if not p2_real(n + 1):
            A.vmw("w%d" % (n + 1))
            A.vmw("a%d" % (n + 1))
        if n == 8:
            A.vmw("g")
        if n == PAR["fl2"]:
            assert not late
            A.vmw("st")
        A.e("s_barrier")
        mark1 = len(A.L)
        A.fs(20 + n) if n < 35 else None
        if n == PAR["fl2"]:
            lane0_store(A, ["s_cmp_lg_u32 s3, 0"], "s86", rFL, "s87", 256, "v10", "v11", "L_p2_nofl")
        if n == PAR["chk2"]:
            check("poll2", 256, "L_p2b")
        if n == PAR["p2poll"]:
            A.vmi("poll2", "buffer_load_dword v16, v17, %s, 0 offen offset:256 sc1" % s(rFL, 4))
        if "burn" in OPT:
            for q in range(PAR["burn"]):
                A.e("ds_read_b128 v[%d:%d], v6 offset:%d" % (24 + 4 * (q & 7), 27 + 4 * (q & 7), 1024 * q + 8192 * (n % 6)))
        if "burnv" in OPT:
            for q in range(PAR["burn"]):
                A.e("v_fma_f32 v%d, v%d, v%d, v%d" % (24 + (q & 15), 64 + (q & 31), 96 + (q & 31), 24 + (q & 15)))
        budget = 3 if n == PAR["chk2"] else 2
        while budget > 0:
            a_ok = an < N and an <= n + LA2 and (an < NSSM or n >= PAR["chk2"])
            w_ok = wn < len(P2_W) and P2_W[wn][4] <= n
            if a_ok and not (w_ok and P2_W[wn][3] < an):
                dma_a(an); an += 1
            elif w_ok:
                dma_w(wn); wn += 1
            else:
                break
            budget -= 1
        if late and n >= 1 and n % 2 == 1:
            late.pop(0)()
        if PAR["pf"] and not PAR["spf"] and not PAR["fpf"] and PAR["pfw"] > 15 and n == PAR["pfw2"]:
            prefetch_w2()
        assert (an > n + (1 if p2_real(n + 2) and p2_real(n + 1) else 3) or an == N) and (wn == len(P2_W) or P2_W[wn][3] > n + 1)
        if PAR["hoist"]:
            k = mark1
            while k < len(A.L) and A.L[k].split()[0] in ("s_add_u32", "s_and_b32", "s_lshl_b32", "s_sub_u32", "s_cmp_ge_u32", "s_cselect_b32", "s_nop"):
                k += 1
            if k < len(A.L) and A.L[k].split()[0] == "buffer_load_dwordx4":
                lead = [x for x in A.L[mark1:k] if "s_nop" not in x]
                A.L[mark0:k] = lead + A.L[mark0:mark1]
    assert an == N and wn == len(P2_W)
    A.e("s_or_b32 s6, s87, s7")
    A.e("s_cmp_lg_u32 s6, 0")
    A.e("s_cbranch_scc1 L_p2_noep")
    A.e("v_lshrrev_b32 v10, 4, v1")
    A.e("v_and_b32 v17, 15, v1")
    A.e("v_lshlrev_b32 v17, 2, v17")
    A.e("v_lshl_add_u32 v17, v10, 9, v17")
    for off, L in ((256, "L_p2c"), (2048 + 256, "L_p2d")):
        A.vmi("pe", "buffer_load_dword v16, v17, %s, 0 offen offset:%d sc1" % (s(rFL, 4), off))
        check("pe", off, L)
    lane0_store(A, ["s_cmp_lg_u32 s7, 0"], "s86", rG, "0", 0, "v10", "v11", "L_p2_noep")
    A.fs_end()
    A.e("s_endpgm")


def gen_all(A):
    K = NAME + "_kernel"
    A.L.append(".globl %s\n.p2align 8\n.type %s,@function\n%s:" % (K, K, K))
    prologue(A)
    role_F(A)
    fm = A.L[A.fmain:]
    del A.L[A.fmain:]
    role_S(A)
    A.L += fm
    A.lab("L_end")
    A.e("s_endpgm")
    A.lab("L_code_end")


def kd(name, nv, acc, ns=102):
    return """.amdhsa_kernel %s
  .amdhsa_next_free_vgpr %d
  .amdhsa_next_free_sgpr %d
  .amdhsa_accum_offset %d
  .amdhsa_group_segment_fixed_size 0
  .amdhsa_kernarg_size 136
  .amdhsa_user_sgpr_count 2
  .amdhsa_user_sgpr_kernarg_segment_ptr 1
  .amdhsa_system_sgpr_workgroup_id_x 1
.end_amdhsa_kernel
""" % (name, nv, ns, acc)


DOC = """
; One launch, 256 workgroups (one per CU) of 8 waves; generated by a script of the author (unrolled, statically scheduled).
; Phase 1, workgroup (r, j): 128 rows of x stay in AGPRs as MFMA fragments; weights stream through a 6-slot LDS ring (LDS-DMA).
;   waves 0-3: Bu for 32 states, exact chunked scan (block end states are exchanged through d_ws as tagged words), 2 FFN tiles
;   waves 4-7: 4 FFN tiles (gate/up + SwiGLU) and the gate g.   h, H (bf16) and g go to d_ws with write-through stores + flags.
; Phase 2: pairs of workgroups share a 128x64 output tile, each takes half of K of [h | H] @ [C | w2]; waves 0-3 load,
;   waves 4-7 multiply; the partial sum of the partner's rows is handed over as tagged words.
; Tags/flags are derived from epoch words in d_ws that each launch advances once every reader has seen them.
""".strip().splitlines()


def main(path):
    ref = open("cdna_kernels/%s.s.ref" % NAME).read().splitlines()
    head = [l for l in ref if l.startswith(";") and "@launch" not in l and "Override launch" not in l and "grid=ceil" not in l]
    head = head[:18]
    A = Asm()
    gen_all(A)
    out = head + [
        "; @launch grid=(256,1,1) block=(512,1,1) lds=%d" % K1_LDS,
        '.amdgcn_target "amdgcn-amd-amdhsa--gfx950"'] + DOC + [".text"] + A.L + [
        '.section .rodata,"a"', ".p2align 6", kd(NAME + "_kernel", 256, 128)]
    open(path, "w").write("\n".join(out))


if __name__ == "__main__":
    if "--stamp" in sys.argv:
        STAMP = True
        sys.argv.remove("--stamp")
    for x in list(sys.argv):
        if x.startswith("-O"):
            OPT.add(x[2:]); sys.argv.remove(x)
        elif x.startswith("-U"):
            OPT.discard(x[2:]); sys.argv.remove(x)
        elif x.startswith("-P"):
            kk, vv = x[2:].split("=")
            PAR[kk] = vv if kk.startswith("ord") else int(vv)
            sys.argv.remove(x)
    main(sys.argv[1] if len(sys.argv) > 1 else "cdna_kernels/%s.s" % NAME)
```

```python
import sys, struct

NAME = "gated_mix__ssm_conv_s5__glu_gated_swiglu__prompt"

def f2u(x):
    return struct.unpack("<I", struct.pack("<f", x))[0]

LOG2E = 1.4426950408889634
INV2PI = 0.15915494309189535

NKS = 150
A_BYTES = 64 * NKS * 1024
E_OFF = 0xA00000
G_OFF = 0xA20000
EP_OFF = 0xA30000


EPR_OFF = 0xA31000
FL_OFF = 0xA40000

XB_OFF = 0xC00000

STAMP = False
OPT = {"asc0", "asc1", "osc0", "osc1", "xsc1"}
ST_OFF = 0xB00000

class Asm:
    def __init__(self):
        self.L = []
        self.ni = 0
        self.cond = False
        self.thr = 99
        self.vm = []
        self.lg = []

    def e(self, s):
        if "nomfma" in OPT and s.startswith("v_mfma"):
            s = "s_nop 0"
        if "nolds" in OPT and s.startswith("ds_read"):
            s = "s_nop 0"
        if "nohst" in OPT and s.startswith("buffer_store_dwordx4") and ("s100" in s or "s101" in s):
            s = "s_nop 0"
        if "noHst" in OPT and s.startswith("buffer_store_dwordx4") and ("s82" in s or "s87" in s):
            s = "s_nop 0"
        if "noout" in OPT and s.startswith("buffer_store_dword ") and "v20," in s:
            s = "s_nop 0"
        if "notw" in OPT and s.startswith("ds_write_b128"):
            s = "s_nop 0"
        if "noscan" in OPT and s.startswith("v_fmac_f32"):
            return
        if "m16" in OPT and s.startswith("v_mfma_f32_32x32x16"):
            import re as _re
            m_ = _re.match(r"v_mfma_f32_32x32x16_bf16 v\[(\d+):\d+\], (\S+), (\S+), (\S+)", s)
            d_ = int(m_.group(1)); self.m16 = getattr(self, "m16", 0) + 1
            for q_ in range(2):
                dd = d_ + 4 * (2 * ((self.m16 >> 2) & 1) + q_)
                self.L.append("  v_mfma_f32_16x16x32_bf16 v[%d:%d], %s, %s, %s" % (dd, dd + 3, m_.group(2), m_.group(3), "0" if m_.group(4) == "0" else "v[%d:%d]" % (dd, dd + 3)))
                self.ni += 1
            return
        self.L.append("  " + s)
        if not self.cond:
            self.ni += 1

    def c(self, s):
        pass

    def lab(self, s):
        self.L.append(s + ":")

    def cnt(self, n, sreg):
        if STAMP:
            self.e("v_writelane_b32 v0, %s, %d" % (sreg, n))

    def fs2(self, n):
        if "vw" in OPT:
            self.fs(n, True)

    def fs(self, n, vw=False):
        if "hold" in OPT and n == PAR["probe"]:
            self.e("s_memrealtime s[96:97]")
            return
        if "vw" in OPT and not vw and 20 <= n < 55:
            return
        if "so" in OPT and n != 61:
            return
        if STAMP and ("light" not in OPT or n in (0, 7, 9, 13, 15, 16, 19, 20, 36, 55, 58, 59, 61)):
            self.e("%s s[98:99]" % ("s_memrealtime" if "rt" in OPT else "s_memtime"))
            self.e("s_waitcnt lgkmcnt(0)")
            self.lg = []
            self.e("s_sub_u32 s98, s98, s96")
            self.e("v_writelane_b32 v0, s98, %d" % n)

    def dbg_end(self):
        if "hold2" in OPT:
            self.e("s_load_dwordx2 s[8:9], s[0:1], 120")
            self.e("s_waitcnt vmcnt(0) lgkmcnt(0)")
            self.e("s_mov_b32 s10, 256")
            self.e("s_mov_b32 s11, 0x20000")
            self.e("s_not_b32 s12, s94")
            self.e("v_mov_b32 v2, s12")
            self.e("v_mov_b32 v1, 0")
            self.e("s_mov_b64 exec, 1")
            self.e("s_cmp_lg_u32 s7, 0")
            self.e("s_cbranch_scc1 L_hold_a")
            self.e("buffer_atomic_umax v2, v1, s[8:11], 0 offen")
            self.lab("L_hold_a")
            self.e("s_sleep 4")
            self.e("s_memrealtime s[98:99]")
            self.e("s_waitcnt lgkmcnt(0)")
            self.e("s_sub_u32 s98, s98, s94")
            self.e("s_cmp_lt_u32 s98, 4000")
            self.e("s_cbranch_scc1 L_hold_a")
            self.e("buffer_load_dword v2, v1, s[8:11], 0 offen sc1")
            self.e("s_waitcnt vmcnt(0)")
            self.e("v_readfirstlane_b32 s94, v2")
            self.e("s_not_b32 s94, s94")
        if "hold" in OPT:
            self.lab("L_hold")
            self.e("s_sleep 4")
            self.e("s_memrealtime s[98:99]")
            self.e("s_waitcnt lgkmcnt(0)")
            self.e("s_sub_u32 s98, s98, s%d" % (96 if PAR["probe"] >= 0 else 94))
            self.e("s_cmp_lt_u32 s98, %d" % PAR["hold"])
            self.e("s_cbranch_scc1 L_hold")
        if "dbg" in OPT:
            self.e("s_waitcnt vmcnt(0)")
            self.e("s_memrealtime s[98:99]")
            self.e("s_memtime s[92:93]")
            self.e("s_load_dwordx2 s[8:9], s[0:1], 120")
            self.e("s_waitcnt lgkmcnt(0)")
            self.e("s_mov_b32 s10, 256")
            self.e("s_mov_b32 s11, 0x20000")
            self.e("s_not_b32 s94, s94")
            self.e("s_sub_u32 s92, s92, s96")
            self.e("v_mov_b32 v2, s94")
            self.e("v_mov_b32 v3, s98")
            self.e("v_mov_b32 v4, s92")
            self.e("v_mov_b32 v1, 0")
            self.e("s_cmp_lg_u32 s7, 0")
            self.e("s_cbranch_scc1 L_dbg_done")
            self.e("s_mov_b64 exec, 1")
            self.e("buffer_atomic_umax v2, v1, s[8:11], 0 offen")
            self.e("buffer_atomic_umax v3, v1, s[8:11], 0 offen offset:4")
            self.e("buffer_atomic_umax v4, v1, s[8:11], 0 offen offset:8")
            self.lab("L_dbg_done")

    def stamp_begin(self):
        if STAMP or "dbg" in OPT or "hold" in OPT:
            self.e("s_memrealtime s[94:95]")
            self.e("%s s[96:97]" % ("s_memrealtime" if "rt" in OPT else "s_memtime"))

    def fs_end(self):
        if STAMP:
            self.e("s_waitcnt vmcnt(0)")
            self.fs(61)
            self.e("s_memrealtime s[98:99]")
            self.e("s_waitcnt lgkmcnt(0)")
            self.e("v_writelane_b32 v0, s94, 62")
            self.e("v_writelane_b32 v0, s98, 63")
            self.e("s_add_u32 s8, s%d, 0x%x" % (sWS, ST_OFF))
            self.e("s_addc_u32 s9, s%d, 0" % (sWS + 1))
            self.e("s_mov_b32 s10, 0x80000")
            self.e("s_mov_b32 s11, 0x20000")
            self.e("s_lshl_b32 s6, s2, 11")
            self.e("s_lshl_b32 s12, s3, 8")
            self.e("s_add_u32 s6, s6, s12")
            self.e("v_lshlrev_b32 v1, 2, v1")
            self.e("buffer_store_dword v0, v1, s[8:11], s6 offen")

    def throttle(self, k):
        if len(self.vm) > k:
            self.e("s_waitcnt vmcnt(%d)" % k)
            self.vm = self.vm[len(self.vm) - k:] if k else []

    def vmi(self, tag, s, cold=False):
        self.throttle(self.thr)
        if cold and "nt" in OPT:
            s = s.replace(" lds", " nt lds") if s.endswith(" lds") else s + " nt"
        self.e(s)
        self.vm.append(tag)
        assert len(self.vm) <= 63, "too many vmem ops in flight"

    def vmw(self, tag, extra=""):
        idx = [i for i, t in enumerate(self.vm) if t == tag]
        if not idx:
            return None
        n = len(self.vm) - 1 - idx[-1]
        self.vm = self.vm[idx[-1] + 1:]
        self.e("s_waitcnt vmcnt(%d)%s" % (n, extra))
        return n

    def lgi(self, tag, s):
        self.e(s)
        self.lg.append(tag)

    def lgw(self, tag):
        idx = [i for i, t in enumerate(self.lg) if t == tag]
        if not idx:
            return
        n = len(self.lg) - 1 - idx[-1]
        self.lg = self.lg[idx[-1] + 1:]
        self.e("s_waitcnt lgkmcnt(%d)" % min(n, 15))

    def lgw0(self):
        if self.lg:
            self.e("s_waitcnt lgkmcnt(0)")
        self.lg = []


def stmod(pre="a"):
    return "".join(" " + m for m in ("sc0", "sc1", "nt") if pre + m in OPT)

def v(a, n=1):
    return "v%d" % a if n == 1 else "v[%d:%d]" % (a, a + n - 1)

def a(a_, n=1):
    return "a%d" % a_ if n == 1 else "a[%d:%d]" % (a_, a_ + n - 1)

def s(a_, n=1):
    return "s%d" % a_ if n == 1 else "s[%d:%d]" % (a_, a_ + n - 1)


def srd(A, d, base, nbytes, addlo=None):
    if addlo is None:
        A.e("s_mov_b32 s%d, s%d" % (d, base))
        A.e("s_mov_b32 s%d, s%d" % (d + 1, base + 1))
    else:
        A.e("s_add_u32 s%d, s%d, %s" % (d, base, addlo))
        A.e("s_addc_u32 s%d, s%d, 0" % (d + 1, base + 1))
    A.e("s_mov_b32 s%d, 0x%x" % (d + 2, nbytes))
    A.e("s_mov_b32 s%d, 0x20000" % (d + 3))


SLOT = 24576
NSLOT = 6
MISC = SLOT * NSLOT
K1_LDS = 163840
OOB = 0x40000000
LDS_CNT = MISC + 4096 + 8

ORD = [("P", c) for c in range(8)] + [("F", c) for c in range(8)]
LASTP = 7
def slot_of(n):
    return ((5, 1, 2, 3, 4, 0)[n % NSLOT] if n >= 8 else (4, 0, 5, 1)[n & 3]) * SLOT
PAR = dict(la=2, laf=4, nt=2, estep=9, cstep=10, hstep=14, cdelay=0, stgap=1, fd=5, sd=3, ffill=6, sfill=10, sfill2=14,
           rot=1, pf=0, cpf=1, pfc=11, pfw=11, ala=5, wla=8, urot=1, p2poll=10, chk2=12, fl2=5, slp=8, prio=0, hold=4000, pk=1, gam=0, lastbar=14, hsp=0, xstep=6, map=1, defF=2, defS=1, e0=3, pfw2=2, coeff=0, g0=46, spf=0, spf0=9, spfn=6, spfgap=2, mpf=2, wpf=-1, tlb=0, thr=99, thr2=99, thrp=99, stag=0, sper=4, dyn=0, split=1, fgap=4, probe=-1, ew=6, ea=3, dph=0, pfill=16, fpf=1, burn=4, hoist=1, rl=4, rc=1, ssp=2, p2map=1, xe=1, ct1=0, ct2=0, ct3=0, b2=99, estart=14, sgap=2, slead=0, sl0=1, sln=6, sfrom=12, prd=1, pstep=0, mv=0, ft=0)

sX, sLRE, sLIM, sBRE, sBIM, sCRE, sCIM, sLDT = 16, 18, 20, 22, 24, 26, 28, 30
sW1, sW3, sW2, sGW, sDS, sWS, sOUT = 32, 34, 36, 38, 40, 42, 84
rX, rBRE, rBIM, rW1, rW3, rAS, rE, rEP, rG, rFL = 44, 48, 52, 56, 60, 64, 68, 72, 76, 88


def swiglu_ops(A, acc, off, pk, defer=None):
    o = []
    if pk:
        for r in range(0, 8, 2):
            o.append("v_pk_mul_f32 %s, %s, %s" % (v(acc + 8 + r, 2), v(acc + r, 2), v(acc + 8 + r, 2)))
        for r in range(0, 8, 2):
            o.append("v_pk_mul_f32 %s, %s, s[80:81] op_sel_hi:[1,0]" % (v(acc + r, 2), v(acc + r, 2)))
        for r in range(8):
            o.append("v_exp_f32 %s, %s" % (v(acc + r), v(acc + r)))
        for r in range(0, 8, 2):
            o.append("v_pk_add_f32 %s, %s, 1.0 op_sel_hi:[1,0]" % (v(acc + r, 2), v(acc + r, 2)))
        for r in range(8):
            o.append("v_rcp_f32 %s, %s" % (v(acc + r), v(acc + r)))
        for r in range(0, 8, 2):
            o.append("v_pk_mul_f32 %s, %s, %s" % (v(acc + 8 + r, 2), v(acc + 8 + r, 2), v(acc + r, 2)))
        for q in range(4):
            o.append("v_cvt_pk_bf16_f32 %s, %s, %s" % (v(acc + q), v(acc + 8 + 2 * q), v(acc + 9 + 2 * q)))
        (o if defer is None else defer).append(lambda: A.vmi("st", "buffer_store_dwordx4 %s, v6, %s, %s offen offset:%d%s" % (v(acc, 4), s(rAS, 4), "s87" if off >= 2048 else "s82", off, stmod())))
        return o
    for r in range(8):
        o.append("v_mul_f32 %s, %s, %s" % (v(acc + 8 + r), v(acc + r), v(acc + 8 + r)))
    for r in range(8):
        o.append("v_mul_f32 %s, s80, %s" % (v(acc + r), v(acc + r)))
    for r in range(8):
        o.append("v_exp_f32 %s, %s" % (v(acc + r), v(acc + r)))
    for r in range(8):
        o.append("v_add_f32 %s, 1.0, %s" % (v(acc + r), v(acc + r)))
    for r in range(8):
        o.append("v_rcp_f32 %s, %s" % (v(acc + r), v(acc + r)))
    for r in range(8):
        o.append("v_mul_f32 %s, %s, %s" % (v(acc + 8 + r), v(acc + 8 + r), v(acc + r)))
    for q in range(4):
        o.append("v_cvt_pk_bf16_f32 %s, %s, %s" % (v(acc + q), v(acc + 8 + 2 * q), v(acc + 9 + 2 * q)))
    (o if defer is None else defer).append(lambda: A.vmi("st", "buffer_store_dwordx4 %s, v6, %s, %s offen offset:%d%s" % (v(acc, 4), s(rAS, 4), "s87" if off >= 2048 else "s82", off, stmod())))
    return o


class Stream:
    def __init__(self, A, items, NB, D, K):
        self.A, self.items, self.NB, self.D, self.K = A, items, NB, D, K
        self.nb = 0
        self.rp = 0
        self.fill = []
        self.fence = -1
        self.dyn = False
        self.hold = 0

    def ninstr(self):
        return self.A.ni

    def pop(self, k):
        while k > 0 and self.fill:
            f = self.fill[0]
            if isinstance(f, tuple):
                if f[0] == "gap":
                    self.fill.pop(0)
                    return
                if f[0] == "bar" and self.nb <= f[1]:
                    return
                if f[0] == "dist" and self.ninstr() - f[1] < 12:
                    return
                self.fill.pop(0)
                continue
            self.fill.pop(0)
            if isinstance(f, str):
                self.A.e(f)
            else:
                f()
            k -= 1

    def flush(self):
        while self.fill:
            f = self.fill[0]
            if isinstance(f, tuple):
                if f[0] in ("bar", "gap"):
                    assert f[0] == "gap" or self.nb > f[1]
                    self.fill.pop(0)
                    continue
                d = 12 - (self.ninstr() - f[1])
                if d > 0:
                    self.A.e("s_nop %d" % (d - 1))
                self.fill.pop(0)
                continue
            self.pop(1)

    def barrier(self, n):
        while self.nb <= n:
            b = self.nb
            self.pre(b)
            lim = b - 1 if b == PAR["lastbar"] else b - 2
            old = [t for t in self.A.lg if t[0] == "c" and int(t[1:].split("_")[0]) <= lim]
            if b <= PAR["lastbar"]:
                if old:
                    self.A.lgw(old[-1])
                self.A.e("s_barrier")
            self.nb += 1
            self.post(b)

    def reads(self, upto, force):
        while self.rp < min(upto, len(self.items)):
            it = self.items[self.rp]
            if not force and (it[0] > self.nb or (it[0] == self.fence and self.nb <= it[0])):
                return
            self.barrier(it[0])
            self.read(it, self.rp % self.NB, "c%d_%d" % (it[0], self.rp))
            self.rp += 1

    def run(self):
        for mp, it in enumerate(self.items):
            if self.rp <= mp:
                self.reads(mp + 1, True)
                self.reads(mp + 1 + self.D, False)
            self.A.lgw("c%d_%d" % (it[0], mp))
            self.mfma(it, mp % self.NB)
            self.after(it, mp)
            self.reads(min(mp + 1 + self.D, self.rp + 2), False)
            if self.dyn and self.fill:
                n0 = len(self.A.L)
                self.A.e("s_setprio 0")
                self.pop(self.K)
                if len(self.A.L) == n0 + 1:
                    self.A.L.pop(); self.A.ni -= 1
                else:
                    self.A.e("s_setprio 2")
            else:
                self.pop(self.K)
        self.barrier(15)


def mk_items(ORD, ntile, withP):
    NT = PAR["nt"]
    items = []
    for n in range(16 - NT):
        if ORD[n][0] == "P" and not withP:
            continue
        for ss in range(4):
            for ti in range(ntile):
                items.append((n, ss, ti))
    for t0 in range(0, ntile, 2):
        for n in range(16 - NT, 16):
            assert ORD[n][0] == "F"
            for ss in range(4):
                for ti in (t0, t0 + 1):
                    items.append((n, ss, ti))
    return items


def emit(A, ops):
    for x in ops:
        if isinstance(x, str):
            A.e(x)
        else:
            x()


def code_srd(A, r, L):
    A.e("s_lshr_b32 s6, s2, 3")
    A.e("s_lshl_b32 s6, s6, 2")
    A.e("s_add_u32 s6, s6, s7")
    A.e("s_lshl_b32 s6, s6, 9")
    A.e("s_getpc_b64 s[%d:%d]" % (r, r + 1))
    A.lab(L)
    A.e("s_sub_u32 s%d, s%d, %s - %s_kernel" % (r, r, L, NAME))
    A.e("s_subb_u32 s%d, s%d, 0" % (r + 1, r + 1))
    A.e("s_add_u32 s%d, s%d, s6" % (r, r))
    A.e("s_addc_u32 s%d, s%d, 0" % (r + 1, r + 1))
    A.e("s_sub_i32 s%d, L_code_end - %s_kernel, s6" % (r + 2, NAME))
    A.e("s_max_i32 s%d, s%d, 0" % (r + 2, r + 2))
    A.e("s_mov_b32 s%d, 0x20000" % (r + 3))


def code_touch(A, r, va, vd, tag):
    A.e("s_mov_b64 exec, 15")
    A.vmi(tag, "buffer_load_dword %s, %s, %s, 0 offen sc1" % (vd, va, s(r, 4)))
    A.e("s_mov_b64 exec, -1")


def prologue(A):
    A.e("s_cmp_ge_u32 s2, 256")
    A.e("s_cbranch_scc1 L_end")
    A.stamp_begin()
    A.e("s_load_dwordx16 s[16:31], s[0:1], 0")
    A.e("s_load_dwordx8 s[32:39], s[0:1], 80")
    A.e("s_load_dwordx2 s[42:43], s[0:1], 128")
    A.e("s_load_dwordx2 s[40:41], s[0:1], 64")
    A.e("s_load_dwordx2 s[84:85], s[0:1], 112")
    A.e("v_lshrrev_b32 v2, 6, v0")
    A.e("v_and_b32 v1, 63, v0")
    A.e("v_readfirstlane_b32 s3, v2")
    if PAR["map"] == 0:
        A.e("s_bfe_u32 s4, s2, 0x20001")
        A.e("s_lshl_b32 s4, s4, 2")
        A.e("s_bfe_u32 s6, s2, 0x20003")
        A.e("s_add_u32 s4, s4, s6")
        A.e("s_and_b32 s5, s2, 1")
        A.e("s_lshl_b32 s5, s5, 3")
        A.e("s_lshr_b32 s6, s2, 5")
        A.e("s_add_u32 s5, s5, s6")
    else:
        A.e("s_bfe_u32 s4, s2, 0x10002")
        A.e("s_lshl_b32 s4, s4, 3")
        A.e("s_bfe_u32 s6, s2, 0x30003")
        A.e("s_add_u32 s4, s4, s6")
        A.e("s_and_b32 s5, s2, 3")
        A.e("s_lshl_b32 s5, s5, 2")
        A.e("s_lshr_b32 s6, s2, 6")
        A.e("s_add_u32 s5, s5, s6")
    A.e("s_and_b32 s7, s3, 3")
    A.e("v_and_b32 v8, 31, v1")
    A.e("v_lshrrev_b32 v9, 5, v1")
    A.e("s_lshl_b32 s8, s7, 12")
    if PAR["rot"]:
        A.e("s_add_u32 s15, s4, s5")
        A.e("s_and_b32 s15, s15, 1")
        if PAR["map"]:
            A.e("s_add_u32 s83, s4, s5")
            if PAR["dph"]:
                A.e("s_and_b32 s6, s2, 1")
                A.e("s_add_u32 s83, s83, s6")
        elif PAR["gam"]:
            A.e("s_sub_u32 s83, s4, s15")
            A.e("s_lshl_b32 s83, s83, 1")
        else:
            A.e("s_lshl_b32 s83, s4, 1")
        A.e("s_add_u32 s83, s83, s5")
    else:
        A.e("s_mov_b32 s83, 0")
    A.e("s_cmp_lt_u32 s3, 4")
    A.e("s_cbranch_scc1 L_S")


def tile_of(A, half, ct, r2):
    if PAR["p2map"]:
        A.e("s_and_b32 %s, s4, 11" % r2)
        A.e("s_lshr_b32 %s, s5, 3" % half)
        A.e("s_lshl_b32 %s, %s, 2" % (half, half))
        A.e("s_add_u32 %s, %s, %s" % (r2, r2, half))
        A.e("s_and_b32 %s, s4, 4" % ct)
    else:
        A.e("s_mov_b32 %s, s4" % r2)
        A.e("s_lshr_b32 %s, s5, 3" % ct)
        A.e("s_lshl_b32 %s, %s, 2" % (ct, ct))
    A.e("s_and_b32 %s, s5, 3" % half)
    A.e("s_add_u32 %s, %s, %s" % (ct, ct, half))
    A.e("s_bfe_u32 %s, s5, 0x10002" % half)


def piece_base(d, tmp):
    return ["s_lshr_b32 %s, s5, 2" % tmp, "s_mul_i32 %s, s5, 3" % d, "s_sub_u32 %s, %s, %s" % (d, d, tmp)]


def common_late(A):
    A.e("s_mov_b32 s80, 0x%x" % f2u(-LOG2E))
    A.e("v_bfe_u32 v10, v1, 1, 3")
    A.e("v_xor_b32 v10, v10, v9")
    A.e("v_lshlrev_b32 v10, 4, v10")
    A.e("v_lshl_add_u32 v7, v8, 7, v10")
    A.e("v_bfe_u32 v10, v1, 4, 1")
    A.e("v_mul_u32_u24 v12, 3104, v10")
    A.e("v_lshlrev_b32 v11, 9, v9")
    A.e("v_add_u32 v12, v12, v11")
    A.e("v_bfe_u32 v11, v1, 2, 2")
    A.e("v_lshl_add_u32 v12, v11, 6, v12")
    A.e("v_and_b32 v11, 3, v1")
    A.e("v_lshl_add_u32 v12, v11, 3, v12")
    A.e("v_xor_b32 v13, 32, v12")
    A.e("v_lshlrev_b32 v6, 4, v1")
    A.e("s_lshl_b32 s6, s4, 2")
    A.e("s_add_u32 s6, s6, s7")
    A.e("s_mul_i32 s81, s6, %d" % (NKS * 1024))
    emit(A, piece_base("s6", "s82"))
    A.e("s_lshl_b32 s6, s6, 11")
    A.e("s_add_u32 s82, s81, s6")
    srd(A, rAS, sWS, A_BYTES)


def w_scalars(A):
    A.e("s_mul_i32 s10, s7, 6144")
    A.e("s_cmp_ge_u32 s5, 15")
    A.e("s_cselect_b32 s92, 0x%x, 0" % OOB)
    A.e("s_and_b32 s93, s5, 3")
    A.e("s_cmp_eq_u32 s93, 3")
    A.e("s_cselect_b32 s93, 0x%x, 0" % OOB)


def wdma_addr_ops(d1, d3, tmp):
    return ["v_lshrrev_b32 %s, 2, v1" % tmp, "s_lshl_b32 s6, s7, 4", "v_add_u32 %s, s6, %s" % (tmp, tmp),
            "v_mul_u32_u24 %s, 2752, %s" % (d1, tmp)] + piece_base("s6", "s11") + ["s_lshl_b32 s6, s6, 6", "v_add_u32 %s, s6, %s" % (d1, d1),
            "v_and_b32 %s, 3, v1" % tmp, "v_lshl_add_u32 %s, %s, 4, %s" % (d1, tmp, d1), "v_xor_b32 %s, 32, %s" % (d3, d1)]


def dma_ops(A, n, w1, w3, mats=(0, 1)):
    kind, c = ORD[n]
    slot = slot_of(n)
    tag = "ch%d" % n
    ops = []
    def mk(pre, m0, ins, gap="s_nop 0"):
        def f():
            for x in pre:
                A.e(x)
            A.e(m0)
            A.e(gap)
            A.vmi(tag, ins.replace(" lds", " nt lds") if ("nt%d" % n) in OPT else ins)
        return f
    if kind == "P":
        pre = ["s_add_u32 s11, s83, %d" % c, "s_and_b32 s11, s11, 7", "s_lshl_b32 s11, s11, 7", "s_add_u32 s12, s11, 8192"]
        for q in range(4):
            ops.append(mk(pre if q == 0 else [], "s_add_u32 m0, s8, %d" % (slot + 1024 * q),
                          "buffer_load_dwordx4 %s, %s, s%d offen lds" % ("v3" if q & 1 else "v2", s(rX, 4), 12 if q >= 2 else 11)))
        ops.append(mk([], "s_add_u32 m0, s9, %d" % (slot + 16384), "buffer_load_dwordx4 v4, %s, s11 offen lds" % s(rBRE, 4)))
        ops.append(mk([], "s_add_u32 m0, s9, %d" % (slot + 20480), "buffer_load_dwordx4 v4, %s, s11 offen lds" % s(rBIM, 4)))
    else:
        pre = ["s_add_u32 s11, s83, %d" % c, "s_and_b32 s11, s11, 7", "s_mul_i32 s11, s11, 176128"]
        for m in mats:
            for q in range(3):
                ops.append(mk(pre if m == mats[0] and q == 0 else [], "s_add_u32 m0, s10, %d" % (slot + m * 3072 + 1024 * q - 64 * q),
                              "buffer_load_dwordx4 %s, %s, s%d offen offset:%d lds" % (w3 if m else w1, s(rW3 if m else rW1, 4), 12 if q else 11, 64 * q),
                              "s_add_u32 s12, s11, s%d" % (91 + q) if q else "s_nop 0"))
    return ops


P2_SEQ = [("X", 0, "o", None), ("C", 0, "s", 0), ("C", 1, "s", 1)]
for m_ in range(2, 8):
    P2_SEQ += [("C", m_, "s", m_), ("C", m_, "o", m_)]
NSSM = len(P2_SEQ)
FU = [8, 9, 10, 11, 0, 1, 2, 3, 4, 5, 6]
P2_SEQ += [("W", m_, "s", FU[m_]) for m_ in range(11)]
NSEND = len(P2_SEQ) - 1
P2_SEQ += [("C", 0, "o", -1), ("C", 1, "o", -2)] + [("W", m_, "o", FU[m_]) for m_ in range(11)]
P2_W = []
for n_, (k_, m_, h_, u_) in enumerate(P2_SEQ):
    if h_ == "s":
        prev = [q for q in range(n_) if P2_SEQ[q][3] == u_]
        P2_W.append((k_, m_, u_, n_, prev[0] + 2 if prev else 0))
NA = 7
GU = 19 * 8192
def p2_real(n):
    return n < PAR["b2"] or (n - PAR["b2"]) % 2 == 0
def AU(n): return (12 + n % NA) * 8192


def role_F(A):
    A.vm, A.lg = [], []
    A.thr = PAR["thrp"]
    ACC, FB = 64, 32
    LA = PAR["la"]
    if PAR["prio"] or PAR["dyn"]:
        A.e("s_setprio 1")
    A.e("v_lshrrev_b32 v10, 4, v1")
    A.e("v_and_b32 v11, 7, v1")
    A.e("v_xor_b32 v10, v10, v11")
    A.e("v_lshlrev_b32 v10, 4, v10")
    A.e("v_bfe_u32 v11, v1, 3, 2")
    A.e("v_lshl_add_u32 v2, v11, 10, v10")
    A.e("v_lshl_add_u32 v2, v9, 14, v2")
    A.e("s_lshl_b32 s6, s7, 15")
    A.e("v_add_u32 v2, s6, v2")
    A.e("v_xor_b32 v3, 64, v2")
    A.e("v_add_u32 v3, 4096, v3")
    A.e("s_lshl_b32 s9, s7, 10")
    A.e("s_and_b32 s6, s7, 1")
    A.e("s_lshl_b32 s6, s6, 6")
    A.e("v_xor_b32 v4, s6, v10")
    A.e("v_lshrrev_b32 v11, 3, v1")
    A.e("v_lshl_add_u32 v4, v11, 10, v4")
    A.e("s_lshl_b32 s6, s7, 13")
    A.e("v_add_u32 v4, s6, v4")
    emit(A, wdma_addr_ops("v5", "v16", "v10"))
    w_scalars(A)
    A.e("s_lshl_b32 s6, s4, 17")
    A.e("s_lshl_b32 s13, s5, 15")
    A.e("s_waitcnt lgkmcnt(0)")
    A.fs(52)
    if PAR["gam"]:
        srd(A, rW1, sW1, 512 * 2752)
        srd(A, rW3, sW3, 512 * 2752)
    if PAR["gam"]:
        assert LA == 2
        A.e("s_cmp_lg_u32 s15, 0")
        A.e("s_cbranch_scc1 L_F_now")
        emit(A, dma_ops(A, 8, "v5", "v16") + dma_ops(A, 9, "v5", "v16"))
        A.vm = []
        A.lab("L_F_now")
    srd(A, rX, sX, 131072, "s6")
    d0 = dma_ops(A, 0, "v5", "v16")
    emit(A, d0[:4])
    srd(A, rBRE, sBRE, 32768, "s13")
    srd(A, rBIM, sBIM, 32768, "s13")
    emit(A, d0[4:])
    A.fs(53)
    A.e("s_lshl_b32 s6, s5, 3")
    A.e("s_lshl_b32 s13, s7, 1")
    A.e("s_add_u32 s13, s13, s6")
    A.e("s_lshl_b32 s6, s13, 10")
    A.e("v_lshlrev_b32 v17, 4, v8")
    A.e("v_lshl_add_u32 v18, v9, 10, v17")
    A.e("v_add_u32 v18, s6, v18")
    A.vmi("g", "buffer_load_dwordx4 v[64:67], v18, %s, 0 offen" % s(rX, 4))
    A.vmi("g", "buffer_load_dwordx4 v[68:71], v18, %s, 0 offen offset:512" % s(rX, 4))
    A.vmi("g", "global_load_dwordx4 v[72:75], v17, %s" % s(sGW, 2))
    A.vmi("g", "global_load_dwordx4 v[76:79], v17, %s offset:512" % s(sGW, 2))
    A.e("s_and_b32 s6, s4, 8")
    A.e("s_lshl_b32 s6, s6, 4")
    A.e("s_add_u32 s6, s6, 0x%x" % EPR_OFF)
    srd(A, rFL, sWS, 4, "s6")
    A.e("v_mov_b32 v88, 0")
    A.vmi("g", "buffer_load_dword v87, v88, %s, 0 offen sc1" % s(rFL, 4))
    emit(A, dma_ops(A, 1, "v5", "v16"))
    A.fs(54)
    srd(A, rW1, sW1, 512 * 2752)
    srd(A, rW3, sW3, 512 * 2752)
    common_late(A)
    srd(A, rG, sWS, 16384, "0x%x" % G_OFF)
    A.e("v_add_u32 v7, s8, v7")
    A.e("s_add_u32 s82, s82, %d" % (65536 + 2048))
    A.e("s_add_u32 s87, s82, s93")
    A.e("s_add_u32 s82, s82, s92")
    A.e("s_branch L_Fmain")
    A.fmain = len(A.L)
    A.lab("L_Fmain")

    def g_ops():
        o = [lambda: A.vmw("g"), "v_readfirstlane_b32 s86, v87", "v_mov_b32 v84, 0", "s_add_u32 s86, s86, 1", "s_bitset1_b32 s86, 31"]
        for d in range(8):
            xx, ww = 64 + d, 72 + d
            o += ["v_lshlrev_b32 v80, 16, %s" % v(xx), "v_and_b32 v81, 0xffff0000, %s" % v(xx),
                  "v_lshlrev_b32 v82, 16, %s" % v(ww), "v_and_b32 v83, 0xffff0000, %s" % v(ww),
                  "v_mul_f32 v80, v80, v82", "v_mul_f32 v81, v81, v83", "v_cvt_pk_bf16_f32 v80, v80, v81",
                  "v_lshlrev_b32 v81, 16, v80", "v_and_b32 v80, 0xffff0000, v80",
                  "v_add_f32 v84, v84, v81", "v_add_f32 v84, v84, v80"]
        for sh in (1, 2, 4, 8):
            o += ["s_nop 1", "v_add_f32_dpp v84, v84, v84 row_shr:%d row_mask:0xf bank_mask:0xf bound_ctrl:0" % sh]
        o += ["s_nop 1", "v_add_f32_dpp v84, v84, v84 row_bcast:15 row_mask:0xa bank_mask:0xf",
              "v_cvt_pk_bf16_f32 v84, v84, v84", "v_and_b32 v84, 0xffff0000, v84", "v_mul_f32 v84, s80, v84",
              "v_exp_f32 v84, v84", "s_nop 0", "v_add_f32 v84, 1.0, v84", "v_rcp_f32 v84, v84", "s_nop 0",
              "v_cvt_pk_bf16_f32 v84, v84, v84", "v_and_b32 v84, 0xffff0000, v84",
              "v_sub_f32 v85, 1.0, v84", "v_cvt_pk_bf16_f32 v85, v85, v85", "v_and_b32 v85, 0xffff0000, v85"]
        return o

    def g_store():
        A.e("s_lshl_b32 s6, s4, 7")
        A.e("s_add_u32 s6, s6, s13")
        A.e("s_lshl_b32 s6, s6, 3")
        A.e("v_lshlrev_b32 v86, 3, v9")
        A.e("s_mov_b32 exec_lo, 0x80000000")
        A.e("s_mov_b32 exec_hi, 0x80000000")
        A.vmi("gst", "buffer_store_dwordx2 v[84:85], v86, %s, s6 offen%s" % (s(rG, 4), stmod()))
        A.e("s_mov_b64 exec, -1")

    gq = g_ops()
    if PAR["slead"]:
        assert PAR["sl0"] + PAR["sln"] <= 7
        A.e("s_lshr_b32 s6, s2, 3")
        A.e("s_mul_i32 s14, s6, %d" % ((255 + PAR["sln"]) // PAR["sln"]))
        A.e("s_lshr_b32 s14, s14, 8")
        A.e("s_mul_i32 s14, s14, %d" % PAR["sln"])
        A.e("s_sub_u32 s14, s6, s14")
    rO = 68
    A.e("s_and_b32 s72, s7, 1")
    A.e("s_lshr_b32 s73, s7, 1")
    tile_of(A, "s6", "s74", "s75")
    A.e("s_lshl_b32 s75, s75, 1")
    A.e("s_add_u32 s75, s75, s6")
    A.e("s_lshl_b32 s75, s75, 1")
    A.e("s_add_u32 s75, s75, s72")
    A.e("s_lshl_b32 s75, s75, 16")
    A.e("s_lshl_b32 s74, s74, 1")
    A.e("s_add_u32 s74, s74, s73")
    A.e("s_lshl_b32 s74, s74, 7")
    A.e("s_add_u32 s75, s75, s74")
    A.e("v_lshlrev_b32 v20, 15, v9")
    A.e("v_lshl_add_u32 v20, v8, 2, v20")
    A.e("v_add_u32 v20, s75, v20")
    srd(A, rO, sOUT, 2048 * 2048)
    A.e("s_lshl_b32 s6, s72, 12")
    A.e("s_add_u32 s6, s6, %d" % AU(0))
    A.e("v_add_u32 v17, s6, v6")
    A.e("v_subrev_u32 v18, s8, v7")
    A.e("s_lshl_b32 s6, s73, 12")
    A.e("v_add_u32 v18, s6, v18")
    A.e("v_bfe_u32 v10, v1, 2, 2")
    A.e("v_lshlrev_b32 v19, 7, v10")
    A.e("v_lshl_add_u32 v19, v9, 9, v19")
    A.e("v_bfe_u32 v10, v1, 4, 1")
    A.e("v_lshl_add_u32 v19, v10, 5, v19")
    A.e("v_and_b32 v10, 3, v1")
    A.e("v_lshl_add_u32 v19, v10, 3, v19")
    A.e("v_bfe_u32 v10, v1, 3, 1")
    A.e("v_xor_b32 v10, s73, v10")
    A.e("v_lshl_add_u32 v19, v10, 6, v19")
    A.e("s_lshl_b32 s6, s73, 6")
    A.e("v_lshl_add_u32 v23, v8, 1, s6")
    A.e("s_lshl_b32 s6, s72, 1")
    A.e("v_add_u32 v10, s6, v9")
    A.e("v_lshl_add_u32 v21, v10, 11, v23")
    A.e("v_add_u32 v21, %d, v21" % AU(0))
    A.e("s_bfe_u32 s6, s5, 0x10002")
    A.e("s_lshl_b32 s6, s6, 9")
    A.e("s_add_u32 s6, s6, %d" % GU)
    A.e("v_lshl_add_u32 v22, v10, 7, s6")
    A.e("v_add_u32 v23, %d, v23" % (GU + 1024))
    A.e("s_lshl_b32 s100, s5, 2")
    A.e("s_add_u32 s100, s100, s7")
    A.e("s_lshl_b32 s100, s100, 12")
    A.e("s_xor_b32 s101, s100, 0x10000")
    A.e("v_bfe_u32 v10, v1, 4, 1")
    A.e("v_mul_u32_u24 v11, 1152, v10")
    A.e("v_lshl_add_u32 v11, v9, 8, v11")
    A.e("v_bfe_u32 v10, v1, 2, 2")
    A.e("v_lshl_add_u32 v11, v10, 5, v11")
    A.e("v_and_b32 v10, 1, v1")
    A.e("v_lshl_add_u32 v11, v10, 4, v11")
    A.e("v_bfe_u32 v10, v1, 1, 1")
    A.e("v_lshl_add_u32 v11, v10, 3, v11")
    A.e("s_lshl_b32 s6, s72, 12")
    A.e("s_add_u32 s6, s6, %d" % AU(0))
    A.e("v_add_u32 v11, s6, v11")
    A.e("v_xor_b32 v10, 0x80, v11")

    tiles = [2, 3, 4, 5]
    S = Stream(A, mk_items(ORD, 4, False), 8, PAR["fd"], PAR["ffill"])
    late = []
    dq = []
    if PAR["split"]:
        for n in range(LASTP + LA + 1, 16):
            dq += [(n, f) for f in dma_ops(A, n, "v5", "v16", (0, 1) if PAR["slead"] and n < PAR["sfrom"] else (1,))]

    def pf_setup():
        srd(A, 44, sW2, 1376 * 1024)
        A.e("s_bitcmp1_b32 s5, 2")
        A.e("s_cselect_b64 s[48:49], %s, %s" % (s(sCIM, 2), s(sCRE, 2)))
        A.e("s_cselect_b32 s15, 704, 0")
        A.e("s_mov_b32 s50, 0x80000")
        A.e("s_mov_b32 s51, 0x20000")
        A.e("s_lshr_b32 s6, s2, 3")
        A.e("s_mul_i32 s14, s6, 22")
        A.e("s_add_u32 s15, s15, s14")
        A.e("s_mul_i32 s14, s7, 11")
        A.e("s_lshr_b32 s14, s14, 1")
        A.e("s_add_u32 s15, s15, s14")
        if PAR["p2map"]:
            A.e("s_lshl_b32 s15, s15, 10")
            A.e("s_lshl_b32 s9, s6, 2")
            A.e("s_add_u32 s9, s9, s7")
            A.e("s_lshl_b32 s9, s9, 12")
            A.e("v_lshlrev_b32 v2, 7, v1")
            A.e("v_mov_b32 v3, v2")
            return
        A.e("s_lshl_b32 s15, s15, 1")
        A.e("s_lshr_b32 s14, s5, 3")
        A.e("s_add_u32 s15, s15, s14")
        A.e("s_lshl_b32 s15, s15, 9")
        A.e("s_lshl_b32 s9, s14, 18")
        A.e("s_lshl_b32 s6, s6, 13")
        A.e("s_add_u32 s9, s9, s6")
        A.e("s_lshl_b32 s6, s7, 11")
        A.e("s_add_u32 s9, s9, s6")
        A.e("v_lshlrev_b32 v2, 7, v1")
        A.e("v_lshrrev_b32 v3, 2, v1")
        A.e("v_lshlrev_b32 v3, 3, v3")
        A.e("v_and_or_b32 v3, v1, 3, v3")
        A.e("v_lshlrev_b32 v3, 7, v3")

    def pf_c():
        A.e("s_mov_b32 exec_hi, 0" if PAR["p2map"] else "s_mov_b64 exec, 0xffff")
        A.vmi("pf", "buffer_load_dword v4, v2, s[48:51], s9 offen")
        A.e("s_mov_b64 exec, -1")

    def pf_w():
        A.e("s_mov_b32 exec_hi, 0xffff" if PAR["p2map"] else "s_mov_b64 exec, 0xffffff")
        A.vmi("pf", "buffer_load_dword v4, v3, s[44:47], s15 offen")
        A.e("s_mov_b64 exec, -1")

    if PAR["pf"] and PAR["fpf"]:
        dq += sorted([(PAR["pfc"] + PAR["laf"], pf_c), (PAR["pfw"] + PAR["laf"], pf_w)], key=lambda x: x[0])

    def dma_upto(m, maxops=999):
        while dq and dq[0][0] <= m and maxops > 0:
            dq.pop(0)[1]()
            maxops -= 1

    def waddr(n):
        return ((14, 15), (28, 29), (30, 31))[n % 3]

    def pre(b):
        kind, c = ORD[b]
        slot = slot_of(b)
        if PAR["slead"] and b == 2:
            emit(A, gq)
            del gq[:]
        if b == LASTP + 1:
            emit(A, gq)
            g_store()
            if PAR["pf"] and PAR["fpf"]:
                pf_setup()
            A.e("s_lshl_b32 s6, s4, 18")
            A.e("s_add_u32 s6, s6, 0x%x" % XB_OFF)
            srd(A, rFL, sWS, 262144, "s6")
        dma_upto(min(b - 1 + LA, 15) if b != PAR["lastbar"] else 15)
        if b == 10:
            A.vmw("gst")
        if b == PAR["lastbar"]:
            A.vmw("ch15")
        if kind == "P":
            A.e("v_add_u32 v24, %d, v7" % slot)
            A.e("v_xor_b32 v25, 32, v24")
            A.e("v_xor_b32 v26, 64, v24")
            A.e("v_xor_b32 v27, 0x60, v24")
        else:
            A.e("v_add_u32 v%d, %d, v12" % (waddr(b)[0], slot))
            A.e("v_add_u32 v%d, %d, v13" % (waddr(b)[1], slot))
        A.fs2(20 + b)
        A.vmw("ch%d" % b)
        if PAR["slead"] and b == 8:
            k = A.vm.index("ch9")
            A.e("s_waitcnt vmcnt(%d)" % (len(A.vm) - k))
            A.vm = A.vm[k:]
        if PAR["gam"] and b == 7:
            A.e("s_cmp_lg_u32 s15, 0")
            A.e("s_cbranch_scc1 L_F_w7")
            A.e("s_waitcnt vmcnt(0)")
            A.lab("L_F_w7")
        A.fs2(36 + b)

    def post(b):
        kind, c = ORD[b]
        A.fs(b)
        if kind == "P" and PAR["prd"]:
            ops = dma_ops(A, b + LA, "v5", "v16")
            m1 = len(A.L)
            ops[0]()
            lead = A.L[m1:-2]
            k = max(i for i in range(m1) if A.L[i].strip() == "s_barrier")
            while A.L[k - 1].strip().startswith("s_waitcnt"):
                k -= 1
            A.L[m1:-1] = []
            A.L[k:k] = lead
            for ss in range(4):
                ops[1 + ss]()
                A.lgi("c%d_x" % b, "ds_read_b128 %s, %s" % (a(16 * c + 4 * ss, 4), v(24 + ss)))
            ops[5]()
            if b == 0:
                emit(A, gq[:PAR["g0"]])
                del gq[:PAR["g0"]]
        elif kind == "P":
            for ss in range(4):
                A.lgi("c%d_x" % b, "ds_read_b128 %s, %s" % (a(16 * c + 4 * ss, 4), v(24 + ss)))
            for n in range(2, 16):
                if PAR["slead"] and n == 8:
                    continue
                if (n == b + LA) or (b == 0 and n < LA):
                    if PAR["gam"] and n >= 8:
                        A.e("s_cmp_eq_u32 s15, 0")
                        A.e("s_cbranch_scc1 L_F_skip%d" % n)
                    emit(A, dma_ops(A, n, "v5", "v16"))
                    if PAR["gam"] and n >= 8:
                        A.lab("L_F_skip%d" % n)
            if PAR["slead"] and 0 <= b - PAR["sl0"] < PAR["sln"]:
                A.e("s_cmp_lg_u32 s14, %d" % (b - PAR["sl0"]))
                A.e("s_cbranch_scc1 L_F_sl%d" % b)
                keep = list(A.vm)
                emit(A, dma_ops(A, 8, "v5", "v16"))
                A.vm = keep
                A.lab("L_F_sl%d" % b)
            if b == 0:
                emit(A, gq[:PAR["g0"]])
                del gq[:PAR["g0"]]

    def read(it, sl, tag):
        n, ss, ti = it
        T = tiles[ti]
        for nn in range(2):
            A.lgi(tag, "ds_read_b64_tr_b16 %s, v%d offset:%d" % (v(FB + 4 * sl + 2 * nn, 2), waddr(n)[T & 1],
                                                                ss * 6144 + (T >> 1) * 1024 + nn * 256))

    def mfma(it, sl):
        n, ss, ti = it
        c = ORD[n][1]
        first = (c == 0 and ss == 0)
        A.e("v_mfma_f32_32x32x16_bf16 %s, %s, %s, %s" % (v(ACC + 16 * ti, 16), v(FB + 4 * sl, 4), a(16 * c + 4 * ss, 4),
                                                        "0" if first else v(ACC + 16 * ti, 16)))

    def after(it, mp):
        n, ss, ti = it
        if n == 15 and ss == 3:
            S.fill.append(("dist", S.ninstr()))
            S.fill += swiglu_ops(A, ACC + 16 * ti, 1024 * ti, PAR["pk"] and ti >= 2, late if ti >= 4 - PAR["defF"] else None)
        if mp % (2 if PAR["slead"] and dq and dq[0][0] < PAR["sfrom"] else PAR["fgap"]) == 0:
            dma_upto(S.nb - 1 + PAR["laf"], 1)

    S.pre, S.post, S.read, S.mfma, S.after = pre, post, read, mfma, after
    S.run()
    assert not dq
    A.fs(16)
    S.flush()
    A.fs(19)

    N = len(P2_SEQ)
    AS, AO, BS, BO, GV = 32, 48, 64, 80, 96
    XV, RV = AO, AS
    A.lg = []
    seen = {"Co"}

    def addr(n):
        k_, m_, h_, u_ = P2_SEQ[n]
        if n and (P2_SEQ[n - 1][3] == u_ or u_ < 0):
            return
        if k_ == "W":
            A.e("v_add_u32 v24, %d, v19" % (u_ * 8192))
        elif k_ == "C":
            A.e("v_add_u32 v24, %d, v18" % (u_ * 8192))
            A.e("v_xor_b32 v25, 32, v24")
            A.e("v_xor_b32 v26, 64, v24")
            A.e("v_xor_b32 v27, 0x60, v24")

    def wfb(n):
        if P2_SEQ[n][0] == "C" and P2_SEQ[n][1] < 2:
            return 80 + 16 * P2_SEQ[n][1]
        while n and P2_SEQ[n - 1][3] == P2_SEQ[n][3]:
            n -= 1
        return 32 + 16 * (n % 3)

    def g_reads(tg, other, qs):
        for q in qs:
            A.lgi(tg, "ds_read_b128 %s, %s offset:%d" % (v(GV + 4 * q, 4), "v28" if other else "v22", 16 * q))

    def reads2(n, ss):
        k_, m_, h_, u_ = P2_SEQ[n]
        fa = 16 * (n & 1)
        tg = "r%d_%d" % (n, ss)
        if k_ == "X":
            for r in range(4 * ss, 4 * ss + 4):
                A.lgi(tg, "ds_read_u16 %s, v21 offset:%d" % (v(XV + r), AU(n) - AU(0) + 128 * r))
            if ss == 3:
                A.lgi(tg, "ds_read_u16 v16, v23")
            return
        if k_ == "W":
            A.lgi(tg, "ds_read_b128 %s, v17 offset:%d" % (a(fa + 4 * ss, 4), AU(n) - AU(0) + 1024 * ss))
        else:
            for nn in range(2):
                A.lgi(tg, "ds_read_b64_tr_b16 %s, %s offset:%d" % (a(fa + 4 * ss + 2 * nn, 2), "v10" if nn else "v11",
                                                                  AU(n) - AU(0) + 2048 * (ss >> 1) + 512 * (ss & 1)))
        if n and (P2_SEQ[n - 1][3] == u_ or u_ < 0):
            return
        if k_ == "W":
            for nn in range(2):
                A.lgi(tg, "ds_read_b64_tr_b16 %s, v24 offset:%d" % (a(wfb(n) + 4 * ss + 2 * nn, 2), 2048 * ss + 1024 * nn))
        else:
            A.lgi(tg, "ds_read_b128 %s, %s" % (a(wfb(n) + 4 * ss, 4), v(24 + ss)))

    def mfma2(n, ss):
        k_, m_, h_, u_ = P2_SEQ[n]
        A.lgw("r%d_%d" % (n, ss))
        if k_ == "X":
            return
        acc = v({"Cs": AS, "Co": AO, "Ws": BS, "Wo": BO}[k_ + h_], 16)
        first = (k_ + h_) not in seen
        seen.add(k_ + h_)
        A.e("v_mfma_f32_32x32x16_bf16 %s, %s, %s, %s" % (acc, a(16 * (n & 1) + 4 * ss, 4), a(wfb(n) + 4 * ss, 4), "0" if first else acc))

    def xd(q):
        if q == 0:
            A.e("v_lshlrev_b32 v16, 16, v16")
        r0, r1 = 2 * q, 2 * q + 1
        A.e("v_lshlrev_b32 %s, 16, %s" % (v(XV + r0), v(XV + r0)))
        A.e("v_lshlrev_b32 %s, 16, %s" % (v(XV + r1), v(XV + r1)))
        A.e("v_mul_f32 %s, %s, v16" % (v(XV + r0), v(XV + r0)))
        A.e("v_mul_f32 %s, %s, v16" % (v(XV + r1), v(XV + r1)))
        A.e("v_cvt_pk_bf16_f32 %s, %s, %s" % (v(XV + r0), v(XV + r0), v(XV + r1)))
        A.e("v_and_b32 %s, 0xffff0000, %s" % (v(XV + r1), v(XV + r0)))
        A.e("v_lshlrev_b32 %s, 16, %s" % (v(XV + r0), v(XV + r0)))

    def send(qs):
        if 0 in qs:
            A.e("s_nop 10")
        for q in qs:
            for r in range(4 * q, 4 * q + 4):
                A.e("v_fmac_f32 %s, %s, %s" % (v(AS + r), v(GV + 2 * r + 1), v(BS + r)))
            for r in (4 * q, 4 * q + 2):
                A.e("v_cvt_pk_bf16_f32 %s, %s, %s" % (v(BO + r), v(AS + r), v(AS + r + 1)))
            A.e("buffer_store_dwordx4 %s, v6, %s, s101 offen offset:%d%s" % (v(BO + 4 * q, 4), s(rFL, 4), 1024 * q, stmod("x")))

    def recv_issue():
        for q in range(4):
            A.e("buffer_load_dwordx4 %s, v6, %s, s100 offen offset:%d sc1" % (v(RV + 4 * q, 4), s(rFL, 4), 1024 * q))

    def recv():
        A.e("s_mov_b32 s13, 0")
        A.lab("L_F_rpoll")
        A.e("s_waitcnt vmcnt(0)")
        T = [v(RV + 2 * q + 1) for q in range(8)]
        for op, d in (("v_min3_u32", "v28"), ("v_max3_u32", "v29")):
            A.e("%s %s, %s, %s, s86" % (op, d, T[0], T[1]))
            for q in range(2, 8, 2):
                A.e("%s %s, %s, %s, %s" % (op, d, T[q], T[q + 1], d))
        A.e("v_cmp_ne_u32 vcc, v28, v29")
        A.e("s_cbranch_vccz L_F_rok")
        A.e("s_sleep 2")
        recv_issue()
        A.e("s_add_u32 s13, s13, 1")
        A.e("s_cmp_lt_u32 s13, 0x20000")
        A.e("s_cbranch_scc1 L_F_rpoll")
        A.e("s_waitcnt vmcnt(0)")
        A.lab("L_F_rok")
        A.cnt(58, "s13")

    A.e("v_xor_b32 v28, 0x200, v22")
    assert PAR["fl2"] <= 8 and not PAR["stag"] and PAR["ssp"] in (1, 2) and N - PAR["rc"] >= NSEND + 10
    for n in range(N):
        addr(n)
        if n == PAR["fl2"]:
            assert not late
            A.e("s_waitcnt vmcnt(0)")
        if p2_real(n):
            A.e("s_barrier")
        if "hold" in OPT:
            A.fs(100 + n)
        for ss in range(4):
            if n >= 1:
                mfma2(n - 1, ss)
            reads2(n, ss)
        if late:
            late.pop(0)()
        if 1 <= n <= 4:
            xd(2 * n - 2)
            xd(2 * n - 1)
        if n == 8:
            g_reads("g1", True, range(8))
        if n == 9:
            for q in range(8):
                A.e("v_mov_b32 %s, s86" % v(BO + 2 * q + 1))
        if NSSM + 1 <= n < NSSM + 9:
            A.lgw("g1")
            for r in (2 * (n - NSSM - 1), 2 * (n - NSSM - 1) + 1):
                A.e("v_mul_f32 %s, %s, %s" % (v(AS + r), v(GV + 2 * r), v(AS + r)))
        sp = PAR["ssp"]
        if 0 <= n - NSEND - 1 < sp:
            if n == NSEND + 1:
                A.fs(17)
            q0 = (n - NSEND - 1) * (4 // sp)
            send(range(q0, q0 + 4 // sp))
        if n == NSEND + 1 + sp:
            g_reads("g2", False, range(8))
        if NSEND + 6 <= n < NSEND + 10:
            A.lgw("g2")
            for r in range(4 * (n - NSEND - 6), 4 * (n - NSEND - 6) + 4):
                A.e("v_mul_f32 %s, %s, %s" % (v(AO + r), v(GV + 2 * r), v(AO + r)))
        if n == N - PAR["rl"]:
            recv_issue()
        if n == N - PAR["rc"]:
            A.fs(18)
            recv()
            A.fs(57)
    for ss in range(4):
        mfma2(N - 1, ss)
    A.fs(59)
    def unpack(q):
        A.e("v_and_b32 %s, 0xffff0000, %s" % (v(RV + 2 * q + 1), v(RV + 2 * q)))
        A.e("v_lshlrev_b32 %s, 16, %s" % (v(RV + 2 * q), v(RV + 2 * q)))
        A.e("v_add_f32 %s, %s, %s" % (v(AO + 2 * q + 1), v(AO + 2 * q + 1), v(RV + 2 * q + 1)))
        A.e("v_add_f32 %s, %s, %s" % (v(AO + 2 * q), v(AO + 2 * q), v(RV + 2 * q)))
    for q in range(3):
        unpack(q)
    for r in range(16):
        if r % 2 == 1 and r // 2 + 3 < 8:
            unpack(r // 2 + 3)
        A.e("v_fmac_f32 %s, %s, %s" % (v(AO + r), v(GV + 2 * r + 1), v(BO + r)))
        if r % 2 == 0:
            A.e("s_movk_i32 s6, %d" % (2048 * r))
        A.e("buffer_store_dword %s, v20, %s, s6 offen offset:%d%s" % (v(AO + r), s(rO, 4), 2048 * (r & 1), stmod("o")))
    A.fs(60)
    A.fs_end()
    A.dbg_end()
    A.e("s_endpgm")


def cpow(A, n_scale, dre, dim, t0, t1, va, vb):
    if n_scale == 1.0:
        A.e("v_exp_f32 %s, %s" % (t0, va))
        A.e("v_fract_f32 %s, %s" % (t1, vb))
    else:
        ns = n_scale if isinstance(n_scale, str) else "0x%x" % f2u(n_scale)
        A.e("v_mul_f32 %s, %s, %s" % (t0, ns, va))
        A.e("v_mul_f32 %s, %s, %s" % (t1, ns, vb))
        A.e("v_exp_f32 %s, %s" % (t0, t0))
        A.e("v_fract_f32 %s, %s" % (t1, t1))
    A.e("v_cos_f32 %s, %s" % (dre, t1))
    A.e("v_sin_f32 %s, %s" % (dim, t1))
    A.e("s_nop 0")
    A.e("v_mul_f32 %s, %s, %s" % (dre, dre, t0))
    A.e("v_mul_f32 %s, %s, %s" % (dim, dim, t0))


def cfma_ops(dr, di, mr, mi, xr, xi, ar, ai):
    return ["v_fma_f32 %s, %s, %s, %s" % (dr, mr, xr, ar),
            "v_fma_f32 %s, %s, %s, %s" % (di, mr, xi, ai),
            "v_fma_f32 %s, -%s, %s, %s" % (dr, mi, xi, dr),
            "v_fma_f32 %s, %s, %s, %s" % (di, mi, xr, di)]


def lane0_store(A, cond, val, srd_, soff, off, vt, vz, L):
    for x in cond:
        A.e(x)
    A.e("s_cbranch_scc1 " + L)
    A.cond = True
    A.e("v_mov_b32 %s, %s" % (vt, val))
    A.e("v_mov_b32 %s, 0" % vz)
    A.e("s_mov_b64 exec, 1")
    A.e("buffer_store_dword %s, %s, %s, %s offen offset:%d sc1" % (vt, vz, s(srd_, 4), soff, off))
    A.e("s_mov_b64 exec, -1")
    A.cond = False
    A.lab(L)


def role_S(A):
    A.vm, A.lg = [], []
    A.thr = 99
    A.lab("L_S")
    LR, LI, NLI = "v16", "v17", "v5"
    L16R, L16I, QR, QI, L256R, L256I = "v18", "v19", "v20", "v21", "v22", "v23"
    CR, CI, PR, PI = "v2", "v3", "v10", "v11"
    ER, EI, SR, SI = "v56", "v57", "v58", "v59"
    RE, IM, ACC, FB = 64, 80, 96, 32
    A.e("s_lshl_b32 s6, s5, 6")
    A.e("v_lshlrev_b32 v4, 1, v8")
    A.e("v_add_u32 v4, s6, v4")
    A.e("v_mov_b32 v55, 0")
    if PAR["cpf"]:
        A.e("s_lshr_b32 s6, s2, 3")
        A.e("s_lshl_b32 s6, s6, 2")
        A.e("s_add_u32 s6, s6, s7")
        A.e("s_lshl_b32 s6, s6, 9")
        A.e("v_and_b32 v53, 3, v1")
        A.e("v_lshl_add_u32 v53, v53, 7, s6")
        A.e("v_min_u32 v53, L_code_end - %s_kernel - 4, v53" % NAME)
        A.e("s_getpc_b64 s[44:45]")
        A.lab("L_pc")
        A.e("s_sub_u32 s44, s44, L_pc - %s_kernel" % NAME)
        A.e("s_subb_u32 s45, s45, 0")
        A.e("v_mov_b32 v51, s45")
        A.e("v_add_co_u32 v50, vcc, s44, v53")
        A.e("s_nop 1")
        A.e("v_addc_co_u32 v51, vcc, 0, v51, vcc")
        A.e("s_mov_b64 exec, 15")
        A.vmi("par", "global_load_dword v52, v[50:51], off")
        A.e("s_mov_b64 exec, -1")
    A.e("s_lshl_b32 s6, s5, 7")
    A.e("s_add_u32 s6, s6, 0x%x" % EP_OFF)
    A.e("s_waitcnt lgkmcnt(0)")
    A.vmi("par", "global_load_ushort v60, v4, %s" % s(sLRE, 2))
    A.vmi("par", "global_load_ushort v61, v4, %s" % s(sLIM, 2))
    A.vmi("par", "global_load_ushort v62, v4, %s" % s(sLDT, 2))
    srd(A, rEP, sWS, 4, "s6")
    A.vmi("par", "buffer_load_dword v54, v55, %s, 0 offen sc1" % s(rEP, 4))
    A.e("s_and_b32 s6, s4, 8")
    A.e("s_lshl_b32 s6, s6, 4")
    A.e("s_add_u32 s6, s6, 0x%x" % EPR_OFF)
    srd(A, rG, sWS, 4, "s6")
    A.vmi("par", "buffer_load_dword v56, v55, %s, 0 offen sc1" % s(rG, 4))
    if PAR["tlb"]:
        A.e("s_cmp_lg_u32 s7, 0")
        A.e("s_cbranch_scc1 L_S_notlb")
        A.e("v_lshlrev_b32 v53, 21, v1")
        A.e("s_mov_b64 exec, 1")
        for ptr in (sW1, sW3, sW2, sCRE, sCIM, sDS):
            A.e("global_load_dword v52, v55, %s" % s(ptr, 2))
        A.e("s_mov_b64 exec, 3")
        A.e("global_load_dword v52, v53, %s" % s(sOUT, 2))
        A.e("s_mov_b64 exec, 31")
        A.e("global_load_dword v52, v53, %s" % s(sWS, 2))
        A.e("s_mov_b64 exec, -1")
        A.lab("L_S_notlb")
    common_late(A)
    w_scalars(A)
    srd(A, rW1, sW1, 512 * 2752)
    srd(A, rW3, sW3, 512 * 2752)
    A.e("s_lshl_b32 s6, s5, 13")
    A.e("s_add_u32 s6, s6, 0x%x" % E_OFF)
    srd(A, rE, sWS, 8192, "s6")
    A.e("s_and_b32 s6, s4, 8")
    A.e("s_lshl_b32 s6, s6, 9")
    A.e("s_add_u32 s6, s6, 0x%x" % FL_OFF)
    srd(A, rFL, sWS, 4096, "s6")
    A.e("s_and_b32 s87, s4, 7")
    A.e("s_lshl_b32 s87, s87, 7")
    A.e("s_add_u32 s87, s87, s5")
    A.e("s_lshl_b32 s87, s87, 2")
    rCRE, rCIM, rW2 = 48, 52, 44
    srd(A, rCRE, sCRE, 524288)
    srd(A, rCIM, sCIM, 524288)
    srd(A, rW2, sW2, 1376 * 1024)
    A.e("s_add_u32 s82, s82, 65536")
    A.e("s_lshl_b32 s100, s5, 11")
    A.e("s_add_u32 s100, s100, s81")
    A.e("s_add_u32 s101, s100, 32768")
    A.e("v_lshlrev_b32 v4, 3, v0")
    A.e("v_add_u32 v4, %d, v4" % (MISC + 2048))
    A.e("v_mov_b32 v48, 0")
    A.e("v_mov_b32 v49, 0")
    A.e("ds_write_b64 v4, v[48:49]")
    A.e("ds_write_b32 v4, v48 offset:2048")
    A.e("s_lshl_b32 s6, s7, 1")
    A.e("v_add_u32 v63, s6, v9")
    A.e("v_sub_u32 v4, 7, v63")
    A.e("v_lshlrev_b32 v4, 8, v4")
    A.e("v_lshl_add_u32 v4, v8, 3, v4")
    A.e("v_add_u32 v4, %d, v4" % MISC)
    A.e("v_lshlrev_b32 v63, 4, v63")
    A.e("v_cvt_f32_u32 v63, v63")
    A.e("s_lshl_b32 s6, s7, 9")
    A.e("v_lshlrev_b32 v57, 7, v9")
    A.e("v_add_u32 v57, s6, v57")
    A.e("v_cvt_f32_u32 v57, v57")
    A.e("s_waitcnt lgkmcnt(0)")
    real, A.L = A.L, []
    ni0 = A.ni
    A.e("v_readfirstlane_b32 s14, v54")
    A.e("v_readfirstlane_b32 s86, v56")
    A.e("s_add_u32 s14, s14, 1")
    A.e("s_bitset1_b32 s14, 31")
    A.e("s_add_u32 s86, s86, 1")
    A.e("s_bitset1_b32 s86, 31")
    A.e("v_lshlrev_b32 v60, 16, v60")
    A.e("v_lshlrev_b32 v61, 16, v61")
    A.e("v_lshlrev_b32 v62, 16, v62")
    A.e("v_mul_f32 v62, 0x%x, v62" % f2u(LOG2E))
    A.e("v_exp_f32 v62, v62")
    A.e("s_nop 0")
    A.e("v_cvt_pk_bf16_f32 v62, v62, v62")
    A.e("v_and_b32 v62, 0xffff0000, v62")
    A.e("v_mul_f32 v50, v62, v60")
    A.e("v_mul_f32 v51, v62, v61")
    A.e("v_mul_f32 v50, 0x%x, v50" % f2u(LOG2E))
    A.e("v_mul_f32 v51, 0x%x, v51" % f2u(INV2PI))
    cpow(A, 1.0, LR, LI, "v52", "v53", "v50", "v51")
    cpow(A, 16.0, L16R, L16I, "v52", "v53", "v50", "v51")
    cpow(A, "v57", QR, QI, "v52", "v53", "v50", "v51")
    cpow(A, 256.0, L256R, L256I, "v52", "v53", "v50", "v51")
    cpow(A, "v63", PR, PI, "v52", "v53", "v50", "v51")
    A.e("v_sub_f32 %s, 0, %s" % (NLI, LI))
    A.e("v_mul_f32 v52, v60, v60")
    A.e("v_fmac_f32 v52, v61, v61")
    A.e("v_rcp_f32 v52, v52")
    A.e("v_add_f32 v53, -1.0, %s" % LR)
    A.e("v_mul_f32 %s, v53, v60" % CR)
    A.e("v_fmac_f32 %s, %s, v61" % (CR, LI))
    A.e("v_mul_f32 %s, %s, v60" % (CI, LI))
    A.e("v_fma_f32 %s, -v53, v61, %s" % (CI, CI))
    A.e("v_add_f32 v52, v52, v52")
    A.e("v_mul_f32 %s, %s, v52" % (CR, CR))
    A.e("v_mul_f32 %s, %s, v52" % (CI, CI))
    emit(A, ["v_lshlrev_b32 v54, 5, v8", "v_lshl_add_u32 v54, v9, 4, v54", "v_xor_b32 v55, 0x80, v54"])
    emit(A, ["s_lshl_b32 s6, s7, 2", "s_sub_u32 s6, s6, s4", "s_add_u32 s6, s6, 16",
             "v_add_u32 v62, s6, v9", "v_lshlrev_b32 v60, 9, v62", "v_lshl_add_u32 v60, v8, 4, v60",
             "v_sub_u32 v62, 17, v62", "v_and_b32 v62, -2, v62", "v_max_i32 v62, 0, v62", "v_min_i32 v62, 4, v62",
             "v_lshlrev_b32 v63, 3, v8", "v_add_u32 v63, %d, v63" % (MISC + 8192),
             "s_lshl_b32 s6, s7, 9", "v_lshl_add_u32 v61, v9, 8, v63", "v_add_u32 v61, s6, v61"])

    par_ops = [x.strip() for x in A.L]
    A.L, A.ni = real, ni0

    tiles = [0, 1]
    LA, LAF = PAR["la"], PAR["laf"]
    assert LA <= LAF <= 4
    assert LASTP + 1 <= PAR["estep"] <= PAR["cstep"] and PAR["cstep"] + 1 <= PAR["lastbar"] and PAR["cstep"] + 1 < PAR["hstep"] <= 15 and PAR["lastbar"] >= 12
    S = Stream(A, mk_items(ORD, 2, True), 4, PAR["sd"], PAR["sfill"])
    S.fence = LASTP + 1
    sw = []
    if PAR["dyn"]:
        S.dyn = True
        A.e("s_setprio 2")
    late = []
    dq = []
    for n in range(PAR["sfrom"] if PAR["slead"] else LASTP + LA + 1, 16):
        dq += [(n, f) for f in dma_ops(A, n, "v4", "v7", (0,) if PAR["split"] else (0, 1))]

    def dma_upto(m, maxops=999):
        while dq and dq[0][0] <= m and maxops > 0:
            dq.pop(0)[1]()
            maxops -= 1

    def ssm_publish():
        A.e("s_waitcnt vmcnt(0)")
        A.vm = []
        A.e("s_nop 7")
        A.e("s_nop 3")
        cur = (v(RE), v(IM))
        tmp = [("v48", "v49"), ("v50", "v51")]
        for r in range(1, 16):
            d = (ER, EI) if r == 15 else tmp[r & 1]
            emit(A, cfma_ops(d[0], d[1], LR, LI, cur[0], cur[1], v(RE + r), v(IM + r)))
            cur = d
        A.e("ds_write_b64 v4, v[56:57]")
        A.e("v_mov_b32 v48, %d" % (MISC + 4096))
        A.e("v_mov_b32 v49, 1")
        A.e("s_mov_b64 exec, 1")
        A.e("ds_add_u32 v48, v49")
        A.e("s_mov_b64 exec, -1")
        A.e("s_mov_b32 s13, 0")
        A.lab("L_S_sync")
        A.e("ds_read_b32 v49, v48")
        A.e("s_add_u32 s13, s13, 1")
        A.e("s_waitcnt lgkmcnt(0)")
        A.e("v_readfirstlane_b32 s6, v49")
        A.e("s_cmp_lt_u32 s13, 0x100000")
        A.e("s_cselect_b32 s6, s6, 4")
        A.e("s_cmp_lt_u32 s6, 4")
        A.e("s_cbranch_scc1 L_S_sync")
        A.lg = []
        if PAR["slead"]:
            S.barrier(9)
        er = lambda m: (24 + 2 * m if m < 4 else 32 + 2 * (m - 4))
        for m in range(6, -1, -1):
            A.lgi("er%d" % m, "ds_read_b64 %s, v4 offset:%d" % (v(er(m), 2), 256 * (m + 1)))
        cur = (v(er(6)), v(er(6) + 1))
        for m in range(5, -1, -1):
            d = (SR, SI) if m == 0 else tmp[m & 1]
            A.lgw("er%d" % m)
            emit(A, cfma_ops(d[0], d[1], L16R, L16I, cur[0], cur[1], v(er(m)), v(er(m) + 1)))
            cur = d
        A.e("s_cmp_lg_u32 s7, 3")
        A.e("s_cbranch_scc1 L_S_nopub")
        A.cond = True
        emit(A, cfma_ops("v24", "v26", L16R, L16I, SR, SI, ER, EI))
        A.e("v_mov_b32 v25, s14")
        A.e("v_mov_b32 v27, s14")
        A.e("s_sub_u32 s6, 15, s4")
        A.e("s_lshl_b32 s6, s6, 9")
        A.e("v_lshlrev_b32 v28, 4, v8")
        A.e("s_mov_b32 exec_lo, 0")
        A.e("buffer_store_dwordx4 v[24:27], v28, %s, s6 offen sc1" % s(rE, 4))
        A.e("s_mov_b64 exec, -1")
        A.cond = False
        A.lab("L_S_nopub")
        A.fs(56)
        emit(A, wdma_addr_ops("v4", "v7", "v48"))
        for r in range(16):
            t = "v%d" % (48 + (r & 3))
            S.fill += ["v_mul_f32 %s, %s, %s" % (t, CI, v(RE + r)), "v_mul_f32 %s, %s, %s" % (v(RE + r), CR, v(RE + r)),
                       "v_fma_f32 %s, -%s, %s, %s" % (v(RE + r), CI, v(IM + r), v(RE + r)), "v_fma_f32 %s, %s, %s, %s" % (v(IM + r), CR, v(IM + r), t)]
        if not PAR["coeff"]:
            S.flush()

    def e_issue(tag=None):
        for m in range(2):
            x = "buffer_load_dwordx4 %s, v60, %s, 0 offen offset:%d sc1" % (v(24 + 4 * m, 4), s(rE, 4), 1024 * m)
            if tag:
                A.vmi(tag, x)
            else:
                A.e(x)

    def e_check():
        A.fs(17)
        A.e("s_mov_b32 s13, 0")
        A.vmw("e")
        A.lab("L_S_poll")
        A.e("v_mov_b32 v48, 0")
        for q in range(4):
            A.e("v_cmp_eq_u32 s[%d:%d], s14, %s" % (18 + 2 * q, 19 + 2 * q, v(25 + 2 * q)))
        for q in range(4):
            A.e("v_addc_co_u32 v48, vcc, 0, v48, s[%d:%d]" % (18 + 2 * q, 19 + 2 * q))
        A.e("v_cmp_ne_u32 vcc, v62, v48")
        A.e("s_cbranch_vccz L_S_ready")
        A.cond = True
        A.e("s_sleep 2")
        e_issue()
        A.e("s_add_u32 s13, s13, 1")
        A.e("s_cmp_lt_u32 s13, 0x20000")
        A.e("s_waitcnt vmcnt(0)")
        A.e("s_cbranch_scc1 L_S_poll")
        A.cond = False
        A.lab("L_S_ready")
        A.cnt(15, "s13") if "so" in OPT else None
        emit(A, cfma_ops("v48", "v49", L256R, L256I, "v28", "v30", "v24", "v26"))
        A.e("v_mul_f32 v50, %s, v48" % QR)
        A.e("v_mul_f32 v51, %s, v49" % QR)
        A.e("v_fma_f32 v50, -%s, v49, v50" % QI)
        A.e("v_fmac_f32 v51, %s, v48" % QI)
        A.lgi("pw", "ds_write_b64 v61, v[50:51]")
        A.fs(18)

    def scan_ops():
        o = []
        pr = [24, 26, 28, 30, 48, 50, 52, 56]
        def prd():
            for q in range(8):
                A.lgi("pr", "ds_read_b64 %s, v63 offset:%d" % (v(pr[q], 2), 256 * q))
        bump = lambda: lane0_store(A, ["s_lshl_b32 s6, s7, 4", "s_add_u32 s6, s6, s4", "s_cmp_lg_u32 s6, 15"], "s14", rEP, "0", 0, "v60", "v61", "L_S_noep")
        o += [prd, bump, lambda: A.lgw("pr")]
        for (x, y) in ((0, 1), (2, 3), (4, 5), (6, 7), (0, 2), (4, 6), (4, 0)):
            o.append("v_add_f32 %s, %s, %s" % (v(pr[x]), v(pr[x]), v(pr[y])))
            o.append("v_add_f32 %s, %s, %s" % (v(pr[x] + 1), v(pr[x] + 1), v(pr[y] + 1)))
        o += cfma_ops("v50", "v51", PR, PI, "v48", "v49", SR, SI)
        o += ["v_mul_f32 v48, %s, v50" % CR, "v_mul_f32 v49, %s, v51" % CR, "v_fma_f32 v48, -%s, v51, v48" % CI, "v_fmac_f32 v49, %s, v50" % CI]
        cur = ("v48", "v49")
        for r in range(16):
            o.append("v_fmac_f32 %s, %s, %s" % (v(RE + r), LR, cur[0]))
            o.append("v_fmac_f32 %s, %s, %s" % (v(IM + r), LR, cur[1]))
            o.append("v_fmac_f32 %s, %s, %s" % (v(RE + r), NLI, cur[1]))
            o.append("v_fmac_f32 %s, %s, %s" % (v(IM + r), LI, cur[0]))
            cur = (v(RE + r), v(IM + r))
        for q in range(8):
            o.append("v_cvt_pk_bf16_f32 %s, %s, %s" % (v(RE + q), v(RE + 2 * q), v(RE + 2 * q + 1)))
        for q in range(8):
            o.append("v_cvt_pk_bf16_f32 %s, -%s, -%s" % (v(IM + q), v(IM + 2 * q), v(IM + 2 * q + 1)))
        def st(ks):
            A.vmi("hst", "buffer_store_dwordx4 %s, %s, %s, s%d offen offset:%d%s" % (v((RE, RE + 4, IM, IM + 4)[ks], 4), "v55" if ks & 1 else "v54", s(rAS, 4),
                                                                                   101 if ks >= 2 else 100, 1024 * (ks & 1), stmod()))
            if ks == 3:
                A.fs(19)
        for ks in range(4):
            o.append(lambda ks=ks: st(ks))
            o += [("gap",)] * PAR["stgap"]
        return o

    def prefetch_c():
        A.e("s_lshr_b32 s15, s5, 3")
        A.e("s_lshl_b32 s15, s15, 18")
        A.e("s_lshr_b32 s6, s2, 3")
        A.e("s_lshl_b32 s6, s6, 13")
        A.e("s_add_u32 s15, s15, s6")
        A.e("s_lshl_b32 s6, s7, 11")
        A.e("s_add_u32 s15, s15, s6")
        A.e("v_lshlrev_b32 v18, 7, v1")
        A.e("s_mov_b64 exec, 0xffff")
        A.vmi("pf", "buffer_load_dword v19, v18, %s, s15 offen" % s(rCRE, 4))
        A.vmi("pf", "buffer_load_dword v19, v18, %s, s15 offen" % s(rCIM, 4))
        A.e("s_mov_b64 exec, -1")

    def prefetch_w2():
        A.e("s_lshr_b32 s6, s2, 3")
        A.e("s_mul_i32 s15, s6, 43")
        A.e("s_mul_i32 s6, s7, 11")
        A.e("s_add_u32 s15, s15, s6")
        A.e("s_lshl_b32 s15, s15, 1")
        A.e("s_lshr_b32 s6, s5, 3")
        A.e("s_add_u32 s15, s15, s6")
        A.e("s_lshl_b32 s15, s15, 9")
        A.e("v_lshrrev_b32 v18, 2, v1")
        A.e("v_lshlrev_b32 v18, 3, v18")
        A.e("v_and_or_b32 v18, v1, 3, v18")
        A.e("v_lshlrev_b32 v18, 7, v18")
        A.e("s_mov_b32 exec_hi, 0xfff")
        A.vmi("pf", "buffer_load_dword v19, v18, %s, s15 offen" % s(rW2, 4))
        A.e("s_mov_b64 exec, -1")

    def spf_setup():
        n_ = PAR["spfn"]
        A.e("s_lshr_b32 s6, s2, 3")
        A.e("s_mul_i32 s30, s6, %d" % ((255 + n_) // n_))
        A.e("s_lshr_b32 s30, s30, 8")
        A.e("s_mul_i32 s30, s30, %d" % n_)
        A.e("s_sub_u32 s30, s6, s30")
        A.e("s_lshr_b32 s9, s5, 3")
        A.e("s_lshl_b32 s9, s9, 18")
        A.e("s_lshl_b32 s15, s6, 13")
        A.e("s_add_u32 s9, s9, s15")
        A.e("s_lshl_b32 s15, s7, 11")
        A.e("s_add_u32 s9, s9, s15")
        A.e("s_mul_i32 s15, s6, 43")
        A.e("s_mul_i32 s6, s7, 11")
        A.e("s_add_u32 s15, s15, s6")
        A.e("s_lshl_b32 s15, s15, 1")
        A.e("s_lshr_b32 s6, s5, 3")
        A.e("s_add_u32 s15, s15, s6")
        A.e("s_lshl_b32 s15, s15, 9")

    def spf_site(q, va='v18', vd='v19'):
        def f():
            A.e("s_cmp_lg_u32 s30, %d" % q)
            A.e("s_cbranch_scc1 L_spf%d" % q)
            A.cond = True
            A.e(("v_lshlrev_b32 v18, 7, v1").replace("v18", va).replace("v19", vd))
            A.e("s_mov_b64 exec, 0xffff")
            A.e(("buffer_load_dword v19, v18, %s, s9 offen" % s(rCRE, 4)).replace("v18", va).replace("v19", vd))
            A.e(("buffer_load_dword v19, v18, %s, s9 offen" % s(rCIM, 4)).replace("v18", va).replace("v19", vd))
            A.e("s_mov_b64 exec, -1")
            A.e(("v_lshrrev_b32 v18, 2, v1").replace("v18", va).replace("v19", vd))
            A.e(("v_lshlrev_b32 v18, 3, v18").replace("v18", va).replace("v19", vd))
            A.e(("v_and_or_b32 v18, v1, 3, v18").replace("v18", va).replace("v19", vd))
            A.e(("v_lshlrev_b32 v18, 7, v18").replace("v18", va).replace("v19", vd))
            A.e("s_mov_b32 exec_hi, 0xfff")
            A.e(("buffer_load_dword v19, v18, %s, s15 offen" % s(rW2, 4)).replace("v18", va).replace("v19", vd))
            A.e("s_mov_b64 exec, -1")
            A.cond = False
            A.lab("L_spf%d" % q)
        return f

    def warm_w():
        A.e("s_and_b32 s6, s83, 7")
        A.e("s_lshl_b32 s6, s6, 2")
        A.e("s_add_u32 s6, s6, s7")
        A.e("s_mul_i32 s6, s6, %d" % (16 * 2752))
        A.e("s_mul_i32 s13, s5, 192")
        A.e("s_add_u32 s6, s6, s13")
        A.e("s_add_u32 s6, s6, s92")
        A.e("v_lshrrev_b32 v52, 1, v8")
        A.e("v_mul_u32_u24 v52, 2752, v52")
        A.e("v_and_b32 v53, 1, v1")
        A.e("v_lshl_add_u32 v52, v53, 7, v52")
        A.e("s_mov_b32 exec_hi, 0")
        A.e("s_bitcmp1_b32 s4, 3")
        A.e("s_cbranch_scc1 L_ww3")
        A.e("buffer_load_dword v53, v52, %s, s6 offen" % s(rW1, 4))
        A.e("s_branch L_ww")
        A.lab("L_ww3")
        A.e("buffer_load_dword v53, v52, %s, s6 offen" % s(rW3, 4))
        A.lab("L_ww")
        A.e("s_mov_b64 exec, -1")

    def warm2():
        A.e("s_bfe_u32 s6, s2, 0x20001")
        A.e("s_lshr_b32 s9, s2, 3")
        A.e("s_lshl_b32 s9, s9, 2")
        A.e("s_add_u32 s9, s9, s6")
        A.e("s_lshl_b32 s9, s9, 2")
        A.e("s_add_u32 s9, s9, s7")
        A.e("s_mul_i32 s15, s9, 1408")
        A.e("s_lshl_b32 s9, s9, 10")
        A.e("s_bitcmp1_b32 s5, 2")
        A.e("s_cselect_b64 %s, %s, %s" % (s(rCRE, 2), s(sCIM, 2), s(sCRE, 2)))
        A.e("s_cselect_b32 s6, %d, 0" % (704 * 1024))
        A.e("s_add_u32 s15, s15, s6")
        A.e("v_lshlrev_b32 v58, 7, v1")
        A.e("s_mov_b64 exec, 0xff")
        A.vmi("wm", "buffer_load_dword v59, v58, %s, s9 offen" % s(rCRE, 4))
        A.e("s_mov_b64 exec, 0x7ff")
        A.vmi("wm", "buffer_load_dword v59, v58, %s, s15 offen" % s(rW2, 4))
        if PAR["ft"]:
            A.e("s_mov_b64 exec, 5")
            A.vmi("wm", "buffer_load_dword v59, v58, %s, s87 offen" % s(rFL, 4))
            A.e("s_mov_b64 exec, 0xff")
            A.vmi("wm", "global_load_dword v59, v58, %s" % s(sDS, 2))
        A.e("s_mov_b64 exec, -1")

    if PAR["spf"] or (PAR["mpf"] >= 0 and not PAR["mv"]):
        spf_setup()
    if PAR["mpf"] >= 0 and not PAR["mv"]:
        A.e("s_bfe_u32 s6, s2, 0x10002")
        A.e("s_lshl_b32 s6, s6, 1")
        A.e("s_and_b32 s30, s2, 1")
        A.e("s_add_u32 s30, s30, s6")
        A.e("s_sub_u32 s30, s30, s7")
    if PAR["pf"] and not PAR["spf"] and not PAR["fpf"]:
        dq.append((PAR["pfc"] + LAF, prefetch_c))
        if PAR["pfw"] <= 15:
            dq.append((PAR["pfw"] + LAF, prefetch_w2))

    N = len(P2_SEQ)
    LA2 = PAR["ala"]
    assert LA2 <= NA - 2

    rAs_, rAo_ = 56, 60

    def p2_setup1():
        tile_of(A, "s11", "s10", "s31")
        if PAR["p2map"]:
            A.e("s_and_b32 s6, s4, 3")
            A.e("s_lshl_b32 s13, s6, 1")
            A.e("s_add_u32 s13, s13, s10")
            A.e("s_mul_i32 s14, s6, 3")
            A.e("s_mul_i32 s6, s10, 11")
        else:
            A.e("s_and_b32 s6, s10, 3")
            A.e("s_lshl_b32 s13, s6, 1")
            A.e("s_add_u32 s13, s13, s4")
            A.e("s_mul_i32 s14, s6, 3")
            A.e("s_and_b32 s6, s4, 7")
            A.e("s_mul_i32 s6, s6, 11")
        A.e("s_lshr_b32 s6, s6, 3")
        A.e("s_add_u32 s14, s14, s6")
        A.e("s_sub_u32 s6, s14, 11")
        A.e("s_cmp_ge_u32 s14, 11")
        A.e("s_cselect_b32 s14, s6, s14")
        A.e("s_lshl_b32 s9, s7, 11")
        A.e("s_cmp_lg_u32 s11, 0")
        A.e("s_cselect_b64 %s, %s, %s" % (s(rCRE, 2), s(sCIM, 2), s(sCRE, 2)))
        A.e("v_and_b32 v11, 7, v1")
        A.e("v_lshrrev_b32 v22, 3, v1")
        A.e("v_lshrrev_b32 v10, 4, v1")
        A.e("v_xor_b32 v10, v10, v11")
        A.e("v_lshlrev_b32 v10, 4, v10")
        A.e("v_lshl_add_u32 v4, v22, 10, v10")
        A.e("s_lshl_b32 s6, s7, 14")
        A.e("s_lshl_b32 s12, s10, 16")
        A.e("s_add_u32 s12, s12, s6")
        A.e("v_add_u32 v4, s12, v4")
        A.e("v_xor_b32 v5, 64, v4")
        A.e("v_add_u32 v5, 8192, v5")

    def p2_setup2():
        A.e("s_and_b32 s12, s7, 1")
        A.e("s_lshr_b32 s15, s7, 1")
        A.e("s_lshl_b32 s15, s15, 11")
        A.e("s_lshl_b32 s8, s12, 12")
        A.e("s_add_u32 s8, s8, s15")
        A.e("s_lshl_b32 s6, s11, 15")
        A.e("s_add_u32 s6, s6, s15")
        A.e("v_add_u32 v2, s6, v6")
        A.e("s_mul_i32 s6, s11, 45056")
        A.e("s_add_u32 s6, s6, s15")
        A.e("s_add_u32 s6, s6, 65536")
        A.e("v_add_u32 v23, s6, v6")
        A.e("s_lshl_b32 s6, s31, 1")
        A.e("s_add_u32 s6, s6, s11")
        A.e("s_lshl_b32 s6, s6, 1")
        A.e("s_add_u32 s6, s6, s12")
        A.e("s_xor_b32 s15, s6, 2")
        A.e("s_mul_i32 s6, s6, %d" % (NKS * 1024))
        A.e("s_mul_i32 s15, s15, %d" % (NKS * 1024))
        srd(A, rAo_, sWS, NKS * 1024, "s6")
        srd(A, rAs_, sWS, NKS * 1024, "s15")
        A.e("v_bfe_u32 v10, v1, 4, 1")
        A.e("v_lshlrev_b32 v10, 2, v10")
        A.e("v_xor_b32 v10, v10, v11")
        A.e("v_lshlrev_b32 v10, 4, v10")
        A.e("v_lshl_add_u32 v3, v22, 10, v10")
        A.e("s_lshl_b32 s6, s7, 14")
        A.e("s_lshl_b32 s12, s10, 7")
        A.e("s_add_u32 s12, s12, s6")
        A.e("s_mul_i32 s6, s11, %d" % (704 * 1024))
        A.e("s_add_u32 s12, s12, s6")
        A.e("v_add_u32 v3, s12, v3")
        A.e("v_add_u32 v7, 8192, v3")
        A.e("v_and_b32 v17, 15, v1")
        A.e("s_and_b32 s6, s31, 7")
        A.e("s_lshl_b32 s6, s6, 9")
        A.e("v_lshl_add_u32 v17, v17, 2, s6")

    def idx(kind, m):
        if kind == "C":
            A.e("s_add_u32 s12, s13, %d" % m)
            A.e("s_and_b32 s12, s12, 7")
        else:
            A.e("s_add_u32 s12, s14, %d" % m)
            A.e("s_sub_u32 s6, s12, 11")
            A.e("s_cmp_ge_u32 s12, 11")
            A.e("s_cselect_b32 s12, s6, s12")

    def dma_w(q):
        kind, m, u, first, free = P2_W[q]
        idx(kind, m)
        A.e("s_lshl_b32 s12, s12, %d" % (16 if kind == "W" else 7))
        r_, va, vb = (rW2, "v3", "v7") if kind == "W" else (rCRE, "v4", "v5")
        A.e("s_add_u32 m0, s9, %d" % (u * 8192))
        A.e("s_nop 0")
        A.vmi("w%d" % first, "buffer_load_dwordx4 %s, %s, s12 offen lds" % (va, s(r_, 4)))
        A.e("s_add_u32 m0, s9, %d" % (u * 8192 + 1024))
        A.e("s_nop 0")
        A.vmi("w%d" % first, "buffer_load_dwordx4 %s, %s, s12 offen lds" % (vb, s(r_, 4)))

    def dma_g(tag):
        srd(A, rEP, sWS, 16384, "0x%x" % G_OFF)
        A.e("s_lshl_b32 s12, s31, 2")
        A.e("s_add_u32 s12, s12, s7")
        A.e("s_lshl_b32 s12, s12, 8")
        A.e("s_lshl_b32 s6, s7, 8")
        A.e("s_add_u32 m0, s6, %d" % GU)
        A.e("s_mov_b64 exec, 0xffff")
        A.vmi(tag, "buffer_load_dwordx4 v6, %s, s12 offen sc1 lds" % s(rEP, 4))
        A.e("s_mov_b64 exec, -1")

    def dma_a(n):
        kind, m, hf, u = P2_SEQ[n]
        if kind == "X":
            srd(A, rE, sX, 2048 * 1024)
            A.e("s_lshl_b32 s6, s31, 1")
            A.e("s_add_u32 s6, s6, s11")
            A.e("s_lshl_b32 s6, s6, 2")
            A.e("s_add_u32 s6, s6, s7")
            A.e("s_lshl_b32 s6, s6, 14")
            A.e("s_lshl_b32 s12, s10, 7")
            A.e("s_add_u32 s12, s12, s6")
            A.e("v_and_b32 v10, 7, v1")
            A.e("v_lshlrev_b32 v10, 4, v10")
            A.e("v_lshl_add_u32 v10, v22, 10, v10")
            A.e("s_add_u32 m0, s9, %d" % AU(n))
            A.e("s_add_u32 s6, s12, 8192")
            A.vmi("a%d" % n, "buffer_load_dwordx4 v10, %s, s12 offen lds" % s(rE, 4))
            A.e("s_add_u32 m0, s9, %d" % (AU(n) + 1024))
            A.e("s_nop 0")
            A.vmi("a%d" % n, "buffer_load_dwordx4 v10, %s, s6 offen lds" % s(rE, 4))
            srd(A, rEP, sDS, 1024)
            A.e("s_lshl_b32 s12, s10, 7")
            A.e("s_mov_b32 m0, %d" % (GU + 1024))
            A.e("s_mov_b64 exec, 0xff")
            A.vmi("a%d" % n, "buffer_load_dwordx4 v6, %s, s12 offen lds" % s(rEP, 4))
            A.e("s_mov_b64 exec, -1")
            return
        idx(kind, m)
        A.e("s_lshl_b32 s12, s12, 12")
        A.e("s_add_u32 m0, s8, %d" % AU(n))
        A.e("s_nop 0")
        va, r_ = ("v23" if kind == "W" else "v2"), (rAs_ if hf == "s" else rAo_)
        A.vmi("a%d" % n, "buffer_load_dwordx4 %s, %s, s12 offen sc1 lds" % (va, s(r_, 4)))
        A.vmi("a%d" % n, "buffer_load_dwordx4 %s, %s, s12 offen offset:1024 sc1 lds" % (va, s(r_, 4)))

    def check(tag, off, L):
        A.e("s_mov_b32 s15, 0")
        A.vmw(tag)
        A.lab(L + "_poll")
        A.e("v_cmp_ne_u32 vcc, s86, v16")
        A.e("s_cbranch_vccz %s_go" % L)
        A.e("s_sleep %d" % PAR["slp"])
        A.e("buffer_load_dword v16, v17, %s, 0 offen offset:%d sc1" % (s(rFL, 4), off))
        A.e("s_add_u32 s15, s15, 1")
        A.e("s_cmp_lt_u32 s15, 0x20000")
        A.e("s_waitcnt vmcnt(0)")
        A.e("s_cbranch_scc1 %s_poll" % L)
        A.lab(L + "_go")
        if L in ("L_p2a", "L_p2b"):
            A.cnt(59 if L == "L_p2a" else 60, "s15")

    def pre(b):
        kind, c = ORD[b]
        slot = slot_of(b)
        if b == 0 and PAR["wpf"] == 99:
            warm_w()
        if b == 0 and PAR["mpf"] == 99:
            spf_site(0, "v58", "v59")()
        if b == LASTP + 1 and not PAR["slead"]:
            S.flush()
            S.K = PAR["sfill"]
            ssm_publish()
            A.thr = PAR["thr"]
        if b == PAR["cstep"] + 1:
            S.flush()
            A.lgw("pw")
        if b == PAR["cstep"] + 2:
            assert "pr" not in A.lg
        dma_upto(min(b - 1 + LA, 15) if b != PAR["lastbar"] else 15)
        if kind == "P":
            A.e("v_add_u32 v28, %d, v7" % slot)
            A.e("v_xor_b32 v29, 32, v28")
            A.e("v_xor_b32 v30, 64, v28")
            A.e("v_xor_b32 v31, 0x60, v28")
            for q in range(4):
                A.e("v_add_u32 %s, s8, %s" % (v(24 + q), v(28 + q)))
        A.fs2(20 + b)
        A.vmw("ch%d" % (b if b != PAR["lastbar"] else 15))
        A.fs2(36 + b)

    def hflag():
        assert "hst" in A.vm or True
        A.vmw("hst")
        A.e("v_mov_b32 v24, %d" % (LDS_CNT))
        A.e("v_mov_b32 v25, 1")
        A.e("s_mov_b64 exec, 1")
        A.lgi("hc", "ds_add_rtn_u32 v26, v24, v25")
        A.e("s_mov_b64 exec, -1")

    def hflag2():
        A.lgw("hc")
        A.e("v_readfirstlane_b32 s6, v26")
        lane0_store(A, ["s_cmp_lg_u32 s6, 3"], "s86", rFL, "s87", 0, "v24", "v25", "L_S_nofl")
        A.fs(57)

    def post(b):
        A.fs(b)
        if b == PAR["pstep"]:
            S.fill += [lambda: A.vmw("par")] + par_ops
            S.K = PAR["pfill"]
        if b == PAR["wpf"]:
            warm_w()
        if b == PAR["mpf"] and PAR["mv"]:
            S.fill.append(warm2)
        elif b == PAR["mpf"]:
            spf_site(0, "v58", "v59")()
        if PAR["spf"] and 0 <= b - PAR["spf0"] < PAR["spfn"]:
            spf_site(b - PAR["spf0"])()
        if b == PAR["estep"]:
            e_issue("e")
        if b == PAR["cstep"]:
            S.fill += [("gap",)] * PAR["cdelay"] + [e_check]
        if b == PAR["cstep"] + 1:
            S.fill += scan_ops()
            S.K = PAR["sfill2"]
        if b == PAR["hstep"]:
            S.fill += [hflag, ("gap",), hflag2]
        if b == PAR["estart"]:
            assert PAR["lastbar"] <= b and PAR["nt"] <= 2 and 2 <= PAR["ew"] <= (6 if PAR["lastbar"] >= 14 else 3) and PAR["ea"] <= (6 if PAR["lastbar"] >= 13 else 3)
            S.fill += [p2_setup1, ("gap",)]
            if PAR["xe"]:
                S.fill += [lambda: dma_a(0), ("gap",)]
            for n in range(PAR["ew"]):
                S.fill += [lambda n=n: dma_w(n), ("gap",)]
            S.fill += [p2_setup2]

    def read(it, sl, tag):
        n, ss, ti = it
        kind, c = ORD[n]
        if kind == "P":
            if ti == 0:
                A.lgi(tag, "ds_read_b128 %s, %s" % (a(16 * c + 4 * ss, 4), v(24 + ss)))
            A.lgi(tag, "ds_read_b128 %s, %s offset:%d" % (v(FB + 4 * sl, 4), v(28 + ss), 16384 + 4096 * ti))
        else:
            T = tiles[ti]
            if ss == 0 and ti == 0:
                A.e("v_add_u32 v14, %d, v12" % slot_of(n))
                A.e("v_add_u32 v15, %d, v13" % slot_of(n))
            for nn in range(2):
                A.lgi(tag, "ds_read_b64_tr_b16 %s, v%d offset:%d" % (v(FB + 4 * sl + 2 * nn, 2), 14 + (T & 1),
                                                                    ss * 6144 + (T >> 1) * 1024 + nn * 256))

    def mfma(it, sl):
        n, ss, ti = it
        kind, c = ORD[n]
        first = (c == 0 and ss == 0)
        if kind == "P":
            d = (RE, IM)[ti]
            A.e("v_mfma_f32_32x32x16_bf16 %s, %s, %s, %s" % (v(d, 16), a(16 * c + 4 * ss, 4), v(FB + 4 * sl, 4), "0" if first else v(d, 16)))
        else:
            d = ACC + 16 * ti
            A.e("v_mfma_f32_32x32x16_bf16 %s, %s, %s, %s" % (v(d, 16), v(FB + 4 * sl, 4), a(16 * c + 4 * ss, 4), "0" if first else v(d, 16)))

    def after(it, mp):
        n, ss, ti = it
        if n == 15 and ss == 3:
            S.fill.append(("dist", S.ninstr()))
            sw.append(swiglu_ops(A, ACC + 16 * ti, 1024 * ti, False, late if ti >= 2 - PAR["defS"] else None))
        if PAR["slead"] and n == LASTP and ss == 3 and ti == 1:
            S.flush()
            S.K = PAR["sfill"]
            S.barrier(8)
            ssm_publish()
        if n > LASTP and (not PAR["split"] or mp % PAR["sgap"] == 0):
            dma_upto(S.nb - 1 + LAF, 1)

    S.pre, S.post, S.read, S.mfma, S.after = pre, post, read, mfma, after
    S.run()
    assert not dq
    A.fs(16)
    A.vmi("poll", "buffer_load_dword v16, v17, %s, 0 offen sc1" % s(rFL, 4))
    S.flush()
    emit(A, sw[0])
    A.fs(58)
    A.thr = PAR["thr2"]
    check("poll", 0, "L_p2a")
    A.fs(55)
    for n in range(PAR["xe"], PAR["ea"]):
        dma_a(n)
    dma_g("g")
    emit(A, sw[1])
    wn, an = PAR["ew"], PAR["ea"]
    for n in range(N):
        if not p2_real(n):
            assert wn == len(P2_W)
            continue
        mark0 = len(A.L)
        A.vmw("w%d" % n)
        A.vmw("a%d" % n)
        if not p2_real(n + 1):
            A.vmw("w%d" % (n + 1))
            A.vmw("a%d" % (n + 1))
        if n == 8:
            A.vmw("g")
        if n == PAR["fl2"]:
            assert not late
            A.vmw("st")
        A.e("s_barrier")
        mark1 = len(A.L)
        A.fs(20 + n) if n < 35 else None
        if n == PAR["fl2"]:
            lane0_store(A, ["s_cmp_lg_u32 s3, 0"], "s86", rFL, "s87", 256, "v10", "v11", "L_p2_nofl")
        if n == PAR["chk2"]:
            check("poll2", 256, "L_p2b")
        if n == PAR["p2poll"]:
            A.vmi("poll2", "buffer_load_dword v16, v17, %s, 0 offen offset:256 sc1" % s(rFL, 4))
        if "burn" in OPT:
            for q in range(PAR["burn"]):
                A.e("ds_read_b128 v[%d:%d], v6 offset:%d" % (24 + 4 * (q & 7), 27 + 4 * (q & 7), 1024 * q + 8192 * (n % 6)))
        if "burnv" in OPT:
            for q in range(PAR["burn"]):
                A.e("v_fma_f32 v%d, v%d, v%d, v%d" % (24 + (q & 15), 64 + (q & 31), 96 + (q & 31), 24 + (q & 15)))
        budget = 3 if n == PAR["chk2"] else 2
        while budget > 0:
            a_ok = an < N and an <= n + LA2 and (an < NSSM or n >= PAR["chk2"])
            w_ok = wn < len(P2_W) and P2_W[wn][4] <= n
            if a_ok and not (w_ok and P2_W[wn][3] < an):
                dma_a(an); an += 1
            elif w_ok:
                dma_w(wn); wn += 1
            else:
                break
            budget -= 1
        if late and n >= 1 and n % 2 == 1:
            late.pop(0)()
        if PAR["pf"] and not PAR["spf"] and not PAR["fpf"] and PAR["pfw"] > 15 and n == PAR["pfw2"]:
            prefetch_w2()
        assert (an > n + (1 if p2_real(n + 2) and p2_real(n + 1) else 3) or an == N) and (wn == len(P2_W) or P2_W[wn][3] > n + 1)
        if PAR["hoist"]:
            k = mark1
            while k < len(A.L) and A.L[k].split()[0] in ("s_add_u32", "s_and_b32", "s_lshl_b32", "s_sub_u32", "s_cmp_ge_u32", "s_cselect_b32", "s_nop"):
                k += 1
            if k < len(A.L) and A.L[k].split()[0] == "buffer_load_dwordx4":
                lead = [x for x in A.L[mark1:k] if "s_nop" not in x]
                A.L[mark0:k] = lead + A.L[mark0:mark1]
    assert an == N and wn == len(P2_W)
    A.e("s_or_b32 s6, s87, s7")
    A.e("s_cmp_lg_u32 s6, 0")
    A.e("s_cbranch_scc1 L_p2_noep")
    A.e("v_lshrrev_b32 v10, 4, v1")
    A.e("v_and_b32 v17, 15, v1")
    A.e("v_lshlrev_b32 v17, 2, v17")
    A.e("v_lshl_add_u32 v17, v10, 9, v17")
    for off, L in ((256, "L_p2c"), (2048 + 256, "L_p2d")):
        A.vmi("pe", "buffer_load_dword v16, v17, %s, 0 offen offset:%d sc1" % (s(rFL, 4), off))
        check("pe", off, L)
    lane0_store(A, ["s_cmp_lg_u32 s7, 0"], "s86", rG, "0", 0, "v10", "v11", "L_p2_noep")
    A.fs_end()
    A.e("s_endpgm")


def gen_all(A):
    K = NAME + "_kernel"
    A.L.append(".globl %s\n.p2align 8\n.type %s,@function\n%s:" % (K, K, K))
    prologue(A)
    role_F(A)
    fm = A.L[A.fmain:]
    del A.L[A.fmain:]
    role_S(A)
    A.L += fm
    A.lab("L_end")
    A.e("s_endpgm")
    A.lab("L_code_end")


def kd(name, nv, acc, ns=102):
    return """.amdhsa_kernel %s
  .amdhsa_next_free_vgpr %d
  .amdhsa_next_free_sgpr %d
  .amdhsa_accum_offset %d
  .amdhsa_group_segment_fixed_size 0
  .amdhsa_kernarg_size 136
  .amdhsa_user_sgpr_count 2
  .amdhsa_user_sgpr_kernarg_segment_ptr 1
  .amdhsa_system_sgpr_workgroup_id_x 1
.end_amdhsa_kernel
""" % (name, nv, ns, acc)


DOC = """
; One launch, 256 workgroups (one per CU) of 8 waves; generated by a script of the author (unrolled, statically scheduled).
; Phase 1, workgroup (r, j): 128 rows of x stay in AGPRs as MFMA fragments; weights stream through a 6-slot LDS ring (LDS-DMA).
;   waves 0-3: Bu for 32 states, exact chunked scan (block end states are exchanged through d_ws as tagged words), 2 FFN tiles
;   waves 4-7: 4 FFN tiles (gate/up + SwiGLU) and the gate g.   h, H (bf16) and g go to d_ws with write-through stores + flags.
; Phase 2: pairs of workgroups share a 128x64 output tile, each takes half of K of [h | H] @ [C | w2]; waves 0-3 load,
;   waves 4-7 multiply; the partial sum of the partner's rows is handed over as tagged words.
; Tags/flags are derived from epoch words in d_ws that each launch advances once every reader has seen them.
""".strip().splitlines()


def main(path):
    ref = open("cdna_kernels/%s.s.ref" % NAME).read().splitlines()
    head = [l for l in ref if l.startswith(";") and "@launch" not in l and "Override launch" not in l and "grid=ceil" not in l]
    head = head[:18]
    A = Asm()
    gen_all(A)
    out = head + [
        "; @launch grid=(256,1,1) block=(512,1,1) lds=%d" % K1_LDS,
        '.amdgcn_target "amdgcn-amd-amdhsa--gfx950"'] + DOC + [".text"] + A.L + [
        '.section .rodata,"a"', ".p2align 6", kd(NAME + "_kernel", 256, 128)]
    open(path, "w").write("\n".join(out))


if __name__ == "__main__":
    if "--stamp" in sys.argv:
        STAMP = True
        sys.argv.remove("--stamp")
    for x in list(sys.argv):
        if x.startswith("-O"):
            OPT.add(x[2:]); sys.argv.remove(x)
        elif x.startswith("-U"):
            OPT.discard(x[2:]); sys.argv.remove(x)
        elif x.startswith("-P"):
            kk, vv = x[2:].split("=")
            PAR[kk] = vv if kk.startswith("ord") else int(vv)
            sys.argv.remove(x)
    main(sys.argv[1] if len(sys.argv) > 1 else "cdna_kernels/%s.s" % NAME)
```

```python
import sys, struct

NAME = "gated_mix__ssm_conv_s5__glu_gated_swiglu__prompt"

def f2u(x):
    return struct.unpack("<I", struct.pack("<f", x))[0]

LOG2E = 1.4426950408889634
INV2PI = 0.15915494309189535

NKS = 150
A_BYTES = 64 * NKS * 1024
E_OFF = 0xA00000
G_OFF = 0xA20000
EP_OFF = 0xA30000


EPR_OFF = 0xA31000
FL_OFF = 0xA40000

XB_OFF = 0xC00000

STAMP = False
OPT = {"asc0", "asc1", "osc0", "osc1", "xsc1"}
ST_OFF = 0xB00000

class Asm:
    def __init__(self):
        self.L = []
        self.ni = 0
        self.cond = False
        self.thr = 99
        self.vm = []
        self.lg = []

    def e(self, s):
        if "nomfma" in OPT and s.startswith("v_mfma"):
            s = "s_nop 0"
        if "nolds" in OPT and s.startswith("ds_read"):
            s = "s_nop 0"
        if "nohst" in OPT and s.startswith("buffer_store_dwordx4") and ("s100" in s or "s101" in s):
            s = "s_nop 0"
        if "noHst" in OPT and s.startswith("buffer_store_dwordx4") and ("s82" in s or "s87" in s):
            s = "s_nop 0"
        if "noout" in OPT and s.startswith("buffer_store_dword ") and "v20," in s:
            s = "s_nop 0"
        if "notw" in OPT and s.startswith("ds_write_b128"):
            s = "s_nop 0"
        if "noscan" in OPT and s.startswith("v_fmac_f32"):
            return
        if "m16" in OPT and s.startswith("v_mfma_f32_32x32x16"):
            import re as _re
            m_ = _re.match(r"v_mfma_f32_32x32x16_bf16 v\[(\d+):\d+\], (\S+), (\S+), (\S+)", s)
            d_ = int(m_.group(1)); self.m16 = getattr(self, "m16", 0) + 1
            for q_ in range(2):
                dd = d_ + 4 * (2 * ((self.m16 >> 2) & 1) + q_)
                self.L.append("  v_mfma_f32_16x16x32_bf16 v[%d:%d], %s, %s, %s" % (dd, dd + 3, m_.group(2), m_.group(3), "0" if m_.group(4) == "0" else "v[%d:%d]" % (dd, dd + 3)))
                self.ni += 1
            return
        self.L.append("  " + s)
        if not self.cond:
            self.ni += 1

    def c(self, s):
        pass

    def lab(self, s):
        self.L.append(s + ":")

    def cnt(self, n, sreg):
        if STAMP:
            self.e("v_writelane_b32 v0, %s, %d" % (sreg, n))

    def fs2(self, n):
        if "vw" in OPT:
            self.fs(n, True)

    def fs(self, n, vw=False):
        if "hold" in OPT and n == PAR["probe"]:
            self.e("s_memrealtime s[96:97]")
            return
        if "vw" in OPT and not vw and 20 <= n < 55:
            return
        if "so" in OPT and n != 61:
            return
        if STAMP and ("light" not in OPT or n in (0, 7, 9, 13, 15, 16, 19, 20, 36, 55, 58, 59, 61)):
            self.e("%s s[98:99]" % ("s_memrealtime" if "rt" in OPT else "s_memtime"))
            self.e("s_waitcnt lgkmcnt(0)")
            self.lg = []
            self.e("s_sub_u32 s98, s98, s96")
            self.e("v_writelane_b32 v0, s98, %d" % n)

    def dbg_end(self):
        if "hold2" in OPT:
            self.e("s_load_dwordx2 s[8:9], s[0:1], 120")
            self.e("s_waitcnt vmcnt(0) lgkmcnt(0)")
            self.e("s_mov_b32 s10, 256")
            self.e("s_mov_b32 s11, 0x20000")
            self.e("s_not_b32 s12, s94")
            self.e("v_mov_b32 v2, s12")
            self.e("v_mov_b32 v1, 0")
            self.e("s_mov_b64 exec, 1")
            self.e("s_cmp_lg_u32 s7, 0")
            self.e("s_cbranch_scc1 L_hold_a")
            self.e("buffer_atomic_umax v2, v1, s[8:11], 0 offen")
            self.lab("L_hold_a")
            self.e("s_sleep 4")
            self.e("s_memrealtime s[98:99]")
            self.e("s_waitcnt lgkmcnt(0)")
            self.e("s_sub_u32 s98, s98, s94")
            self.e("s_cmp_lt_u32 s98, 4000")
            self.e("s_cbranch_scc1 L_hold_a")
            self.e("buffer_load_dword v2, v1, s[8:11], 0 offen sc1")
            self.e("s_waitcnt vmcnt(0)")
            self.e("v_readfirstlane_b32 s94, v2")
            self.e("s_not_b32 s94, s94")
        if "hold" in OPT:
            self.lab("L_hold")
            self.e("s_sleep 4")
            self.e("s_memrealtime s[98:99]")
            self.e("s_waitcnt lgkmcnt(0)")
            self.e("s_sub_u32 s98, s98, s%d" % (96 if PAR["probe"] >= 0 else 94))
            self.e("s_cmp_lt_u32 s98, %d" % PAR["hold"])
            self.e("s_cbranch_scc1 L_hold")
        if "dbg" in OPT:
            self.e("s_waitcnt vmcnt(0)")
            self.e("s_memrealtime s[98:99]")
            self.e("s_memtime s[92:93]")
            self.e("s_load_dwordx2 s[8:9], s[0:1], 120")
            self.e("s_waitcnt lgkmcnt(0)")
            self.e("s_mov_b32 s10, 256")
            self.e("s_mov_b32 s11, 0x20000")
            self.e("s_not_b32 s94, s94")
            self.e("s_sub_u32 s92, s92, s96")
            self.e("v_mov_b32 v2, s94")
            self.e("v_mov_b32 v3, s98")
            self.e("v_mov_b32 v4, s92")
            self.e("v_mov_b32 v1, 0")
            self.e("s_cmp_lg_u32 s7, 0")
            self.e("s_cbranch_scc1 L_dbg_done")
            self.e("s_mov_b64 exec, 1")
            self.e("buffer_atomic_umax v2, v1, s[8:11], 0 offen")
            self.e("buffer_atomic_umax v3, v1, s[8:11], 0 offen offset:4")
            self.e("buffer_atomic_umax v4, v1, s[8:11], 0 offen offset:8")
            self.lab("L_dbg_done")

    def stamp_begin(self):
        if STAMP or "dbg" in OPT or "hold" in OPT:
            self.e("s_memrealtime s[94:95]")
            self.e("%s s[96:97]" % ("s_memrealtime" if "rt" in OPT else "s_memtime"))

    def fs_end(self):
        if STAMP:
            self.e("s_waitcnt vmcnt(0)")
            self.fs(61)
            self.e("s_memrealtime s[98:99]")
            self.e("s_waitcnt lgkmcnt(0)")
            self.e("v_writelane_b32 v0, s94, 62")
            self.e("v_writelane_b32 v0, s98, 63")
            self.e("s_add_u32 s8, s%d, 0x%x" % (sWS, ST_OFF))
            self.e("s_addc_u32 s9, s%d, 0" % (sWS + 1))
            self.e("s_mov_b32 s10, 0x80000")
            self.e("s_mov_b32 s11, 0x20000")
            self.e("s_lshl_b32 s6, s2, 11")
            self.e("s_lshl_b32 s12, s3, 8")
            self.e("s_add_u32 s6, s6, s12")
            self.e("v_lshlrev_b32 v1, 2, v1")
            self.e("buffer_store_dword v0, v1, s[8:11], s6 offen")

    def throttle(self, k):
        if len(self.vm) > k:
            self.e("s_waitcnt vmcnt(%d)" % k)
            self.vm = self.vm[len(self.vm) - k:] if k else []

    def vmi(self, tag, s, cold=False):
        self.throttle(self.thr)
        if cold and "nt" in OPT:
            s = s.replace(" lds", " nt lds") if s.endswith(" lds") else s + " nt"
        self.e(s)
        self.vm.append(tag)
        assert len(self.vm) <= 63, "too many vmem ops in flight"

    def vmw(self, tag, extra=""):
        idx = [i for i, t in enumerate(self.vm) if t == tag]
        if not idx:
            return None
        n = len(self.vm) - 1 - idx[-1]
        self.vm = self.vm[idx[-1] + 1:]
        self.e("s_waitcnt vmcnt(%d)%s" % (n, extra))
        return n

    def lgi(self, tag, s):
        self.e(s)
        self.lg.append(tag)

    def lgw(self, tag):
        idx = [i for i, t in enumerate(self.lg) if t == tag]
        if not idx:
            return
        n = len(self.lg) - 1 - idx[-1]
        self.lg = self.lg[idx[-1] + 1:]
        self.e("s_waitcnt lgkmcnt(%d)" % min(n, 15))

    def lgw0(self):
        if self.lg:
            self.e("s_waitcnt lgkmcnt(0)")
        self.lg = []


def stmod(pre="a"):
    return "".join(" " + m for m in ("sc0", "sc1", "nt") if pre + m in OPT)

def v(a, n=1):
    return "v%d" % a if n == 1 else "v[%d:%d]" % (a, a + n - 1)

def a(a_, n=1):
    return "a%d" % a_ if n == 1 else "a[%d:%d]" % (a_, a_ + n - 1)

def s(a_, n=1):
    return "s%d" % a_ if n == 1 else "s[%d:%d]" % (a_, a_ + n - 1)


def srd(A, d, base, nbytes, addlo=None):
    if addlo is None:
        A.e("s_mov_b32 s%d, s%d" % (d, base))
        A.e("s_mov_b32 s%d, s%d" % (d + 1, base + 1))
    else:
        A.e("s_add_u32 s%d, s%d, %s" % (d, base, addlo))
        A.e("s_addc_u32 s%d, s%d, 0" % (d + 1, base + 1))
    A.e("s_mov_b32 s%d, 0x%x" % (d + 2, nbytes))
    A.e("s_mov_b32 s%d, 0x20000" % (d + 3))


SLOT = 24576
NSLOT = 6
MISC = SLOT * NSLOT
K1_LDS = 163840
OOB = 0x40000000
LDS_CNT = MISC + 4096 + 8

ORD = [("P", c) for c in range(8)] + [("F", c) for c in range(8)]
LASTP = 7
def slot_of(n):
    return ((5, 1, 2, 3, 4, 0)[n % NSLOT] if n >= 8 else (4, 0, 5, 1)[n & 3]) * SLOT
PAR = dict(la=2, laf=4, nt=2, estep=9, cstep=10, hstep=14, cdelay=0, stgap=1, fd=5, sd=3, ffill=6, sfill=10, sfill2=14,
           rot=1, pf=0, cpf=1, pfc=11, pfw=11, ala=5, wla=8, urot=1, p2poll=10, chk2=12, fl2=5, slp=8, prio=0, hold=4000, pk=1, gam=0, lastbar=14, hsp=0, xstep=6, map=1, defF=2, defS=1, e0=3, pfw2=2, coeff=0, g0=46, spf=0, spf0=9, spfn=6, spfgap=2, mpf=2, wpf=-1, tlb=0, thr=99, thr2=99, thrp=99, stag=0, sper=4, dyn=0, split=1, fgap=4, probe=-1, ew=6, ea=3, dph=0, pfill=16, fpf=1, burn=4, hoist=1, rl=4, rc=1, ssp=2, p2map=1, xe=1, ct1=0, ct2=0, ct3=0, b2=99, estart=14, sgap=2, slead=0, sl0=1, sln=6, sfrom=12, prd=1, pstep=0, mv=0, ft=0, slast=15)

sX, sLRE, sLIM, sBRE, sBIM, sCRE, sCIM, sLDT = 16, 18, 20, 22, 24, 26, 28, 30
sW1, sW3, sW2, sGW, sDS, sWS, sOUT = 32, 34, 36, 38, 40, 42, 84
rX, rBRE, rBIM, rW1, rW3, rAS, rE, rEP, rG, rFL = 44, 48, 52, 56, 60, 64, 68, 72, 76, 88


def swiglu_ops(A, acc, off, pk, defer=None):
    o = []
    if pk:
        for r in range(0, 8, 2):
            o.append("v_pk_mul_f32 %s, %s, %s" % (v(acc + 8 + r, 2), v(acc + r, 2), v(acc + 8 + r, 2)))
        for r in range(0, 8, 2):
            o.append("v_pk_mul_f32 %s, %s, s[80:81] op_sel_hi:[1,0]" % (v(acc + r, 2), v(acc + r, 2)))
        for r in range(8):
            o.append("v_exp_f32 %s, %s" % (v(acc + r), v(acc + r)))
        for r in range(0, 8, 2):
            o.append("v_pk_add_f32 %s, %s, 1.0 op_sel_hi:[1,0]" % (v(acc + r, 2), v(acc + r, 2)))
        for r in range(8):
            o.append("v_rcp_f32 %s, %s" % (v(acc + r), v(acc + r)))
        for r in range(0, 8, 2):
            o.append("v_pk_mul_f32 %s, %s, %s" % (v(acc + 8 + r, 2), v(acc + 8 + r, 2), v(acc + r, 2)))
        for q in range(4):
            o.append("v_cvt_pk_bf16_f32 %s, %s, %s" % (v(acc + q), v(acc + 8 + 2 * q), v(acc + 9 + 2 * q)))
        (o if defer is None else defer).append(lambda: A.vmi("st", "buffer_store_dwordx4 %s, v6, %s, %s offen offset:%d%s" % (v(acc, 4), s(rAS, 4), "s87" if off >= 2048 else "s82", off, stmod())))
        return o
    for r in range(8):
        o.append("v_mul_f32 %s, %s, %s" % (v(acc + 8 + r), v(acc + r), v(acc + 8 + r)))
    for r in range(8):
        o.append("v_mul_f32 %s, s80, %s" % (v(acc + r), v(acc + r)))
    for r in range(8):
        o.append("v_exp_f32 %s, %s" % (v(acc + r), v(acc + r)))
    for r in range(8):
        o.append("v_add_f32 %s, 1.0, %s" % (v(acc + r), v(acc + r)))
    for r in range(8):
        o.append("v_rcp_f32 %s, %s" % (v(acc + r), v(acc + r)))
    for r in range(8):
        o.append("v_mul_f32 %s, %s, %s" % (v(acc + 8 + r), v(acc + 8 + r), v(acc + r)))
    for q in range(4):
        o.append("v_cvt_pk_bf16_f32 %s, %s, %s" % (v(acc + q), v(acc + 8 + 2 * q), v(acc + 9 + 2 * q)))
    (o if defer is None else defer).append(lambda: A.vmi("st", "buffer_store_dwordx4 %s, v6, %s, %s offen offset:%d%s" % (v(acc, 4), s(rAS, 4), "s87" if off >= 2048 else "s82", off, stmod())))
    return o


class Stream:
    def __init__(self, A, items, NB, D, K):
        self.A, self.items, self.NB, self.D, self.K = A, items, NB, D, K
        self.nb = 0
        self.rp = 0
        self.fill = []
        self.fence = -1
        self.dyn = False
        self.hold = 0

    def ninstr(self):
        return self.A.ni

    def pop(self, k):
        while k > 0 and self.fill:
            f = self.fill[0]
            if isinstance(f, tuple):
                if f[0] == "gap":
                    self.fill.pop(0)
                    return
                if f[0] == "bar" and self.nb <= f[1]:
                    return
                if f[0] == "dist" and self.ninstr() - f[1] < 12:
                    return
                self.fill.pop(0)
                continue
            self.fill.pop(0)
            if isinstance(f, str):
                self.A.e(f)
            else:
                f()
            k -= 1

    def flush(self):
        while self.fill:
            f = self.fill[0]
            if isinstance(f, tuple):
                if f[0] in ("bar", "gap"):
                    assert f[0] == "gap" or self.nb > f[1]
                    self.fill.pop(0)
                    continue
                d = 12 - (self.ninstr() - f[1])
                if d > 0:
                    self.A.e("s_nop %d" % (d - 1))
                self.fill.pop(0)
                continue
            self.pop(1)

    def barrier(self, n):
        while self.nb <= n:
            b = self.nb
            self.pre(b)
            lim = b - 1 if b == PAR["lastbar"] else b - 2
            old = [t for t in self.A.lg if t[0] == "c" and int(t[1:].split("_")[0]) <= lim]
            if b <= PAR["lastbar"]:
                if old:
                    self.A.lgw(old[-1])
                self.A.e("s_barrier")
            self.nb += 1
            self.post(b)

    def reads(self, upto, force):
        while self.rp < min(upto, len(self.items)):
            it = self.items[self.rp]
            if not force and (it[0] > self.nb or (it[0] == self.fence and self.nb <= it[0])):
                return
            self.barrier(it[0])
            self.read(it, self.rp % self.NB, "c%d_%d" % (it[0], self.rp))
            self.rp += 1

    def run(self):
        for mp, it in enumerate(self.items):
            if self.rp <= mp:
                self.reads(mp + 1, True)
                self.reads(mp + 1 + self.D, False)
            self.A.lgw("c%d_%d" % (it[0], mp))
            self.mfma(it, mp % self.NB)
            self.after(it, mp)
            self.reads(min(mp + 1 + self.D, self.rp + 2), False)
            if self.dyn and self.fill:
                n0 = len(self.A.L)
                self.A.e("s_setprio 0")
                self.pop(self.K)
                if len(self.A.L) == n0 + 1:
                    self.A.L.pop(); self.A.ni -= 1
                else:
                    self.A.e("s_setprio 2")
            else:
                self.pop(self.K)
        self.barrier(15)


def mk_items(ORD, ntile, withP):
    NT = PAR["nt"]
    items = []
    for n in range(16 - NT):
        if ORD[n][0] == "P" and not withP:
            continue
        for ss in range(4):
            for ti in range(ntile):
                items.append((n, ss, ti))
    for t0 in range(0, ntile, 2):
        for n in range(16 - NT, 16):
            assert ORD[n][0] == "F"
            for ss in range(4):
                for ti in (t0, t0 + 1):
                    items.append((n, ss, ti))
    return items


def emit(A, ops):
    for x in ops:
        if isinstance(x, str):
            A.e(x)
        else:
            x()


def code_srd(A, r, L):
    A.e("s_lshr_b32 s6, s2, 3")
    A.e("s_lshl_b32 s6, s6, 2")
    A.e("s_add_u32 s6, s6, s7")
    A.e("s_lshl_b32 s6, s6, 9")
    A.e("s_getpc_b64 s[%d:%d]" % (r, r + 1))
    A.lab(L)
    A.e("s_sub_u32 s%d, s%d, %s - %s_kernel" % (r, r, L, NAME))
    A.e("s_subb_u32 s%d, s%d, 0" % (r + 1, r + 1))
    A.e("s_add_u32 s%d, s%d, s6" % (r, r))
    A.e("s_addc_u32 s%d, s%d, 0" % (r + 1, r + 1))
    A.e("s_sub_i32 s%d, L_code_end - %s_kernel, s6" % (r + 2, NAME))
    A.e("s_max_i32 s%d, s%d, 0" % (r + 2, r + 2))
    A.e("s_mov_b32 s%d, 0x20000" % (r + 3))


def code_touch(A, r, va, vd, tag):
    A.e("s_mov_b64 exec, 15")
    A.vmi(tag, "buffer_load_dword %s, %s, %s, 0 offen sc1" % (vd, va, s(r, 4)))
    A.e("s_mov_b64 exec, -1")


def prologue(A):
    A.e("s_cmp_ge_u32 s2, 256")
    A.e("s_cbranch_scc1 L_end")
    A.stamp_begin()
    A.e("s_load_dwordx16 s[16:31], s[0:1], 0")
    A.e("s_load_dwordx8 s[32:39], s[0:1], 80")
    A.e("s_load_dwordx2 s[42:43], s[0:1], 128")
    A.e("s_load_dwordx2 s[40:41], s[0:1], 64")
    A.e("s_load_dwordx2 s[84:85], s[0:1], 112")
    A.e("v_lshrrev_b32 v2, 6, v0")
    A.e("v_and_b32 v1, 63, v0")
    A.e("v_readfirstlane_b32 s3, v2")
    if PAR["map"] == 0:
        A.e("s_bfe_u32 s4, s2, 0x20001")
        A.e("s_lshl_b32 s4, s4, 2")
        A.e("s_bfe_u32 s6, s2, 0x20003")
        A.e("s_add_u32 s4, s4, s6")
        A.e("s_and_b32 s5, s2, 1")
        A.e("s_lshl_b32 s5, s5, 3")
        A.e("s_lshr_b32 s6, s2, 5")
        A.e("s_add_u32 s5, s5, s6")
    else:
        A.e("s_bfe_u32 s4, s2, 0x10002")
        A.e("s_lshl_b32 s4, s4, 3")
        A.e("s_bfe_u32 s6, s2, 0x30003")
        A.e("s_add_u32 s4, s4, s6")
        A.e("s_and_b32 s5, s2, 3")
        A.e("s_lshl_b32 s5, s5, 2")
        A.e("s_lshr_b32 s6, s2, 6")
        A.e("s_add_u32 s5, s5, s6")
    A.e("s_and_b32 s7, s3, 3")
    A.e("v_and_b32 v8, 31, v1")
    A.e("v_lshrrev_b32 v9, 5, v1")
    A.e("s_lshl_b32 s8, s7, 12")
    if PAR["rot"]:
        A.e("s_add_u32 s15, s4, s5")
        A.e("s_and_b32 s15, s15, 1")
        if PAR["map"]:
            A.e("s_add_u32 s83, s4, s5")
            if PAR["dph"]:
                A.e("s_and_b32 s6, s2, 1")
                A.e("s_add_u32 s83, s83, s6")
        elif PAR["gam"]:
            A.e("s_sub_u32 s83, s4, s15")
            A.e("s_lshl_b32 s83, s83, 1")
        else:
            A.e("s_lshl_b32 s83, s4, 1")
        A.e("s_add_u32 s83, s83, s5")
    else:
        A.e("s_mov_b32 s83, 0")
    A.e("s_cmp_lt_u32 s3, 4")
    A.e("s_cbranch_scc1 L_S")


def tile_of(A, half, ct, r2):
    if PAR["p2map"]:
        A.e("s_and_b32 %s, s4, 11" % r2)
        A.e("s_lshr_b32 %s, s5, 3" % half)
        A.e("s_lshl_b32 %s, %s, 2" % (half, half))
        A.e("s_add_u32 %s, %s, %s" % (r2, r2, half))
        A.e("s_and_b32 %s, s4, 4" % ct)
    else:
        A.e("s_mov_b32 %s, s4" % r2)
        A.e("s_lshr_b32 %s, s5, 3" % ct)
        A.e("s_lshl_b32 %s, %s, 2" % (ct, ct))
    A.e("s_and_b32 %s, s5, 3" % half)
    A.e("s_add_u32 %s, %s, %s" % (ct, ct, half))
    A.e("s_bfe_u32 %s, s5, 0x10002" % half)


def piece_base(d, tmp):
    return ["s_lshr_b32 %s, s5, 2" % tmp, "s_mul_i32 %s, s5, 3" % d, "s_sub_u32 %s, %s, %s" % (d, d, tmp)]


def common_late(A):
    A.e("s_mov_b32 s80, 0x%x" % f2u(-LOG2E))
    A.e("v_bfe_u32 v10, v1, 1, 3")
    A.e("v_xor_b32 v10, v10, v9")
    A.e("v_lshlrev_b32 v10, 4, v10")
    A.e("v_lshl_add_u32 v7, v8, 7, v10")
    A.e("v_bfe_u32 v10, v1, 4, 1")
    A.e("v_mul_u32_u24 v12, 3104, v10")
    A.e("v_lshlrev_b32 v11, 9, v9")
    A.e("v_add_u32 v12, v12, v11")
    A.e("v_bfe_u32 v11, v1, 2, 2")
    A.e("v_lshl_add_u32 v12, v11, 6, v12")
    A.e("v_and_b32 v11, 3, v1")
    A.e("v_lshl_add_u32 v12, v11, 3, v12")
    A.e("v_xor_b32 v13, 32, v12")
    A.e("v_lshlrev_b32 v6, 4, v1")
    A.e("s_lshl_b32 s6, s4, 2")
    A.e("s_add_u32 s6, s6, s7")
    A.e("s_mul_i32 s81, s6, %d" % (NKS * 1024))
    emit(A, piece_base("s6", "s82"))
    A.e("s_lshl_b32 s6, s6, 11")
    A.e("s_add_u32 s82, s81, s6")
    srd(A, rAS, sWS, A_BYTES)


def w_scalars(A):
    A.e("s_mul_i32 s10, s7, 6144")
    A.e("s_cmp_ge_u32 s5, 15")
    A.e("s_cselect_b32 s92, 0x%x, 0" % OOB)
    A.e("s_and_b32 s93, s5, 3")
    A.e("s_cmp_eq_u32 s93, 3")
    A.e("s_cselect_b32 s93, 0x%x, 0" % OOB)


def wdma_addr_ops(d1, d3, tmp):
    return ["v_lshrrev_b32 %s, 2, v1" % tmp, "s_lshl_b32 s6, s7, 4", "v_add_u32 %s, s6, %s" % (tmp, tmp),
            "v_mul_u32_u24 %s, 2752, %s" % (d1, tmp)] + piece_base("s6", "s11") + ["s_lshl_b32 s6, s6, 6", "v_add_u32 %s, s6, %s" % (d1, d1),
            "v_and_b32 %s, 3, v1" % tmp, "v_lshl_add_u32 %s, %s, 4, %s" % (d1, tmp, d1), "v_xor_b32 %s, 32, %s" % (d3, d1)]


def dma_ops(A, n, w1, w3, mats=(0, 1)):
    kind, c = ORD[n]
    slot = slot_of(n)
    tag = "ch%d" % n
    ops = []
    def mk(pre, m0, ins, gap="s_nop 0"):
        def f():
            for x in pre:
                A.e(x)
            A.e(m0)
            A.e(gap)
            A.vmi(tag, ins.replace(" lds", " nt lds") if ("nt%d" % n) in OPT else ins)
        return f
    if kind == "P":
        pre = ["s_add_u32 s11, s83, %d" % c, "s_and_b32 s11, s11, 7", "s_lshl_b32 s11, s11, 7", "s_add_u32 s12, s11, 8192"]
        for q in range(4):
            ops.append(mk(pre if q == 0 else [], "s_add_u32 m0, s8, %d" % (slot + 1024 * q),
                          "buffer_load_dwordx4 %s, %s, s%d offen lds" % ("v3" if q & 1 else "v2", s(rX, 4), 12 if q >= 2 else 11)))
        ops.append(mk([], "s_add_u32 m0, s9, %d" % (slot + 16384), "buffer_load_dwordx4 v4, %s, s11 offen lds" % s(rBRE, 4)))
        ops.append(mk([], "s_add_u32 m0, s9, %d" % (slot + 20480), "buffer_load_dwordx4 v4, %s, s11 offen lds" % s(rBIM, 4)))
    else:
        pre = ["s_add_u32 s11, s83, %d" % c, "s_and_b32 s11, s11, 7", "s_mul_i32 s11, s11, 176128"]
        for m in mats:
            for q in range(3):
                ops.append(mk(pre if m == mats[0] and q == 0 else [], "s_add_u32 m0, s10, %d" % (slot + m * 3072 + 1024 * q - 64 * q),
                              "buffer_load_dwordx4 %s, %s, s%d offen offset:%d lds" % (w3 if m else w1, s(rW3 if m else rW1, 4), 12 if q else 11, 64 * q),
                              "s_add_u32 s12, s11, s%d" % (91 + q) if q else "s_nop 0"))
    return ops


P2_SEQ = [("X", 0, "o", None), ("C", 0, "s", 0), ("C", 1, "s", 1)]
for m_ in range(2, 8):
    P2_SEQ += [("C", m_, "s", m_), ("C", m_, "o", m_)]
NSSM = len(P2_SEQ)
FU = [8, 9, 10, 11, 0, 1, 2, 3, 4, 5, 6]
P2_SEQ += [("W", m_, "s", FU[m_]) for m_ in range(11)]
NSEND = len(P2_SEQ) - 1
P2_SEQ += [("C", 0, "o", -1), ("C", 1, "o", -2)] + [("W", m_, "o", FU[m_]) for m_ in range(11)]
P2_W = []
for n_, (k_, m_, h_, u_) in enumerate(P2_SEQ):
    if h_ == "s":
        prev = [q for q in range(n_) if P2_SEQ[q][3] == u_]
        P2_W.append((k_, m_, u_, n_, prev[0] + 2 if prev else 0))
NA = 7
GU = 19 * 8192
def p2_real(n):
    return n < PAR["b2"] or (n - PAR["b2"]) % 2 == 0
def AU(n): return (12 + n % NA) * 8192


def role_F(A):
    A.vm, A.lg = [], []
    A.thr = PAR["thrp"]
    ACC, FB = 64, 32
    LA = PAR["la"]
    if PAR["prio"] or PAR["dyn"]:
        A.e("s_setprio 1")
    A.e("v_lshrrev_b32 v10, 4, v1")
    A.e("v_and_b32 v11, 7, v1")
    A.e("v_xor_b32 v10, v10, v11")
    A.e("v_lshlrev_b32 v10, 4, v10")
    A.e("v_bfe_u32 v11, v1, 3, 2")
    A.e("v_lshl_add_u32 v2, v11, 10, v10")
    A.e("v_lshl_add_u32 v2, v9, 14, v2")
    A.e("s_lshl_b32 s6, s7, 15")
    A.e("v_add_u32 v2, s6, v2")
    A.e("v_xor_b32 v3, 64, v2")
    A.e("v_add_u32 v3, 4096, v3")
    A.e("s_lshl_b32 s9, s7, 10")
    A.e("s_and_b32 s6, s7, 1")
    A.e("s_lshl_b32 s6, s6, 6")
    A.e("v_xor_b32 v4, s6, v10")
    A.e("v_lshrrev_b32 v11, 3, v1")
    A.e("v_lshl_add_u32 v4, v11, 10, v4")
    A.e("s_lshl_b32 s6, s7, 13")
    A.e("v_add_u32 v4, s6, v4")
    emit(A, wdma_addr_ops("v5", "v16", "v10"))
    w_scalars(A)
    A.e("s_lshl_b32 s6, s4, 17")
    A.e("s_lshl_b32 s13, s5, 15")
    A.e("s_waitcnt lgkmcnt(0)")
    A.fs(52)
    if PAR["gam"]:
        srd(A, rW1, sW1, 512 * 2752)
        srd(A, rW3, sW3, 512 * 2752)
    if PAR["gam"]:
        assert LA == 2
        A.e("s_cmp_lg_u32 s15, 0")
        A.e("s_cbranch_scc1 L_F_now")
        emit(A, dma_ops(A, 8, "v5", "v16") + dma_ops(A, 9, "v5", "v16"))
        A.vm = []
        A.lab("L_F_now")
    srd(A, rX, sX, 131072, "s6")
    d0 = dma_ops(A, 0, "v5", "v16")
    emit(A, d0[:4])
    srd(A, rBRE, sBRE, 32768, "s13")
    srd(A, rBIM, sBIM, 32768, "s13")
    emit(A, d0[4:])
    A.fs(53)
    A.e("s_lshl_b32 s6, s5, 3")
    A.e("s_lshl_b32 s13, s7, 1")
    A.e("s_add_u32 s13, s13, s6")
    A.e("s_lshl_b32 s6, s13, 10")
    A.e("v_lshlrev_b32 v17, 4, v8")
    A.e("v_lshl_add_u32 v18, v9, 10, v17")
    A.e("v_add_u32 v18, s6, v18")
    A.vmi("g", "buffer_load_dwordx4 v[64:67], v18, %s, 0 offen" % s(rX, 4))
    A.vmi("g", "buffer_load_dwordx4 v[68:71], v18, %s, 0 offen offset:512" % s(rX, 4))
    A.vmi("g", "global_load_dwordx4 v[72:75], v17, %s" % s(sGW, 2))
    A.vmi("g", "global_load_dwordx4 v[76:79], v17, %s offset:512" % s(sGW, 2))
    A.e("s_and_b32 s6, s4, 8")
    A.e("s_lshl_b32 s6, s6, 4")
    A.e("s_add_u32 s6, s6, 0x%x" % EPR_OFF)
    srd(A, rFL, sWS, 4, "s6")
    A.e("v_mov_b32 v88, 0")
    A.vmi("g", "buffer_load_dword v87, v88, %s, 0 offen sc1" % s(rFL, 4))
    emit(A, dma_ops(A, 1, "v5", "v16"))
    A.fs(54)
    srd(A, rW1, sW1, 512 * 2752)
    srd(A, rW3, sW3, 512 * 2752)
    common_late(A)
    srd(A, rG, sWS, 16384, "0x%x" % G_OFF)
    A.e("v_add_u32 v7, s8, v7")
    A.e("s_add_u32 s82, s82, %d" % (65536 + 2048))
    A.e("s_add_u32 s87, s82, s93")
    A.e("s_add_u32 s82, s82, s92")
    A.e("s_branch L_Fmain")
    A.fmain = len(A.L)
    A.lab("L_Fmain")

    def g_ops():
        o = [lambda: A.vmw("g"), "v_readfirstlane_b32 s86, v87", "v_mov_b32 v84, 0", "s_add_u32 s86, s86, 1", "s_bitset1_b32 s86, 31"]
        for d in range(8):
            xx, ww = 64 + d, 72 + d
            o += ["v_lshlrev_b32 v80, 16, %s" % v(xx), "v_and_b32 v81, 0xffff0000, %s" % v(xx),
                  "v_lshlrev_b32 v82, 16, %s" % v(ww), "v_and_b32 v83, 0xffff0000, %s" % v(ww),
                  "v_mul_f32 v80, v80, v82", "v_mul_f32 v81, v81, v83", "v_cvt_pk_bf16_f32 v80, v80, v81",
                  "v_lshlrev_b32 v81, 16, v80", "v_and_b32 v80, 0xffff0000, v80",
                  "v_add_f32 v84, v84, v81", "v_add_f32 v84, v84, v80"]
        for sh in (1, 2, 4, 8):
            o += ["s_nop 1", "v_add_f32_dpp v84, v84, v84 row_shr:%d row_mask:0xf bank_mask:0xf bound_ctrl:0" % sh]
        o += ["s_nop 1", "v_add_f32_dpp v84, v84, v84 row_bcast:15 row_mask:0xa bank_mask:0xf",
              "v_cvt_pk_bf16_f32 v84, v84, v84", "v_and_b32 v84, 0xffff0000, v84", "v_mul_f32 v84, s80, v84",
              "v_exp_f32 v84, v84", "s_nop 0", "v_add_f32 v84, 1.0, v84", "v_rcp_f32 v84, v84", "s_nop 0",
              "v_cvt_pk_bf16_f32 v84, v84, v84", "v_and_b32 v84, 0xffff0000, v84",
              "v_sub_f32 v85, 1.0, v84", "v_cvt_pk_bf16_f32 v85, v85, v85", "v_and_b32 v85, 0xffff0000, v85"]
        return o

    def g_store():
        A.e("s_lshl_b32 s6, s4, 7")
        A.e("s_add_u32 s6, s6, s13")
        A.e("s_lshl_b32 s6, s6, 3")
        A.e("v_lshlrev_b32 v86, 3, v9")
        A.e("s_mov_b32 exec_lo, 0x80000000")
        A.e("s_mov_b32 exec_hi, 0x80000000")
        A.vmi("gst", "buffer_store_dwordx2 v[84:85], v86, %s, s6 offen%s" % (s(rG, 4), stmod()))
        A.e("s_mov_b64 exec, -1")

    gq = g_ops()
    if PAR["slead"]:
        assert PAR["sl0"] + PAR["sln"] <= 7
        A.e("s_lshr_b32 s6, s2, 3")
        A.e("s_mul_i32 s14, s6, %d" % ((255 + PAR["sln"]) // PAR["sln"]))
        A.e("s_lshr_b32 s14, s14, 8")
        A.e("s_mul_i32 s14, s14, %d" % PAR["sln"])
        A.e("s_sub_u32 s14, s6, s14")
    rO = 68
    A.e("s_and_b32 s72, s7, 1")
    A.e("s_lshr_b32 s73, s7, 1")
    tile_of(A, "s6", "s74", "s75")
    A.e("s_lshl_b32 s75, s75, 1")
    A.e("s_add_u32 s75, s75, s6")
    A.e("s_lshl_b32 s75, s75, 1")
    A.e("s_add_u32 s75, s75, s72")
    A.e("s_lshl_b32 s75, s75, 16")
    A.e("s_lshl_b32 s74, s74, 1")
    A.e("s_add_u32 s74, s74, s73")
    A.e("s_lshl_b32 s74, s74, 7")
    A.e("s_add_u32 s75, s75, s74")
    A.e("v_lshlrev_b32 v20, 15, v9")
    A.e("v_lshl_add_u32 v20, v8, 2, v20")
    A.e("v_add_u32 v20, s75, v20")
    srd(A, rO, sOUT, 2048 * 2048)
    A.e("s_lshl_b32 s6, s72, 12")
    A.e("s_add_u32 s6, s6, %d" % AU(0))
    A.e("v_add_u32 v17, s6, v6")
    A.e("v_subrev_u32 v18, s8, v7")
    A.e("s_lshl_b32 s6, s73, 12")
    A.e("v_add_u32 v18, s6, v18")
    A.e("v_bfe_u32 v10, v1, 2, 2")
    A.e("v_lshlrev_b32 v19, 7, v10")
    A.e("v_lshl_add_u32 v19, v9, 9, v19")
    A.e("v_bfe_u32 v10, v1, 4, 1")
    A.e("v_lshl_add_u32 v19, v10, 5, v19")
    A.e("v_and_b32 v10, 3, v1")
    A.e("v_lshl_add_u32 v19, v10, 3, v19")
    A.e("v_bfe_u32 v10, v1, 3, 1")
    A.e("v_xor_b32 v10, s73, v10")
    A.e("v_lshl_add_u32 v19, v10, 6, v19")
    A.e("s_lshl_b32 s6, s73, 6")
    A.e("v_lshl_add_u32 v23, v8, 1, s6")
    A.e("s_lshl_b32 s6, s72, 1")
    A.e("v_add_u32 v10, s6, v9")
    A.e("v_lshl_add_u32 v21, v10, 11, v23")
    A.e("v_add_u32 v21, %d, v21" % AU(0))
    A.e("s_bfe_u32 s6, s5, 0x10002")
    A.e("s_lshl_b32 s6, s6, 9")
    A.e("s_add_u32 s6, s6, %d" % GU)
    A.e("v_lshl_add_u32 v22, v10, 7, s6")
    A.e("v_add_u32 v23, %d, v23" % (GU + 1024))
    A.e("s_lshl_b32 s100, s5, 2")
    A.e("s_add_u32 s100, s100, s7")
    A.e("s_lshl_b32 s100, s100, 12")
    A.e("s_xor_b32 s101, s100, 0x10000")
    A.e("v_bfe_u32 v10, v1, 4, 1")
    A.e("v_mul_u32_u24 v11, 1152, v10")
    A.e("v_lshl_add_u32 v11, v9, 8, v11")
    A.e("v_bfe_u32 v10, v1, 2, 2")
    A.e("v_lshl_add_u32 v11, v10, 5, v11")
    A.e("v_and_b32 v10, 1, v1")
    A.e("v_lshl_add_u32 v11, v10, 4, v11")
    A.e("v_bfe_u32 v10, v1, 1, 1")
    A.e("v_lshl_add_u32 v11, v10, 3, v11")
    A.e("s_lshl_b32 s6, s72, 12")
    A.e("s_add_u32 s6, s6, %d" % AU(0))
    A.e("v_add_u32 v11, s6, v11")
    A.e("v_xor_b32 v10, 0x80, v11")

    tiles = [2, 3, 4, 5]
    S = Stream(A, mk_items(ORD, 4, False), 8, PAR["fd"], PAR["ffill"])
    late = []
    dq = []
    if PAR["split"]:
        for n in range(LASTP + LA + 1, 16):
            dq += [(n, f) for f in dma_ops(A, n, "v5", "v16", (0, 1) if (PAR["slead"] and n < PAR["sfrom"]) or n > PAR["slast"] else (1,))]

    def pf_setup():
        srd(A, 44, sW2, 1376 * 1024)
        A.e("s_bitcmp1_b32 s5, 2")
        A.e("s_cselect_b64 s[48:49], %s, %s" % (s(sCIM, 2), s(sCRE, 2)))
        A.e("s_cselect_b32 s15, 704, 0")
        A.e("s_mov_b32 s50, 0x80000")
        A.e("s_mov_b32 s51, 0x20000")
        A.e("s_lshr_b32 s6, s2, 3")
        A.e("s_mul_i32 s14, s6, 22")
        A.e("s_add_u32 s15, s15, s14")
        A.e("s_mul_i32 s14, s7, 11")
        A.e("s_lshr_b32 s14, s14, 1")
        A.e("s_add_u32 s15, s15, s14")
        if PAR["p2map"]:
            A.e("s_lshl_b32 s15, s15, 10")
            A.e("s_lshl_b32 s9, s6, 2")
            A.e("s_add_u32 s9, s9, s7")
            A.e("s_lshl_b32 s9, s9, 12")
            A.e("v_lshlrev_b32 v2, 7, v1")
            A.e("v_mov_b32 v3, v2")
            return
        A.e("s_lshl_b32 s15, s15, 1")
        A.e("s_lshr_b32 s14, s5, 3")
        A.e("s_add_u32 s15, s15, s14")
        A.e("s_lshl_b32 s15, s15, 9")
        A.e("s_lshl_b32 s9, s14, 18")
        A.e("s_lshl_b32 s6, s6, 13")
        A.e("s_add_u32 s9, s9, s6")
        A.e("s_lshl_b32 s6, s7, 11")
        A.e("s_add_u32 s9, s9, s6")
        A.e("v_lshlrev_b32 v2, 7, v1")
        A.e("v_lshrrev_b32 v3, 2, v1")
        A.e("v_lshlrev_b32 v3, 3, v3")
        A.e("v_and_or_b32 v3, v1, 3, v3")
        A.e("v_lshlrev_b32 v3, 7, v3")

    def pf_c():
        A.e("s_mov_b32 exec_hi, 0" if PAR["p2map"] else "s_mov_b64 exec, 0xffff")
        A.vmi("pf", "buffer_load_dword v4, v2, s[48:51], s9 offen")
        A.e("s_mov_b64 exec, -1")

    def pf_w():
        A.e("s_mov_b32 exec_hi, 0xffff" if PAR["p2map"] else "s_mov_b64 exec, 0xffffff")
        A.vmi("pf", "buffer_load_dword v4, v3, s[44:47], s15 offen")
        A.e("s_mov_b64 exec, -1")

    if PAR["pf"] and PAR["fpf"]:
        dq += sorted([(PAR["pfc"] + PAR["laf"], pf_c), (PAR["pfw"] + PAR["laf"], pf_w)], key=lambda x: x[0])

    def dma_upto(m, maxops=999):
        while dq and dq[0][0] <= m and maxops > 0:
            dq.pop(0)[1]()
            maxops -= 1

    def waddr(n):
        return ((14, 15), (28, 29), (30, 31))[n % 3]

    def pre(b):
        kind, c = ORD[b]
        slot = slot_of(b)
        if PAR["slead"] and b == 2:
            emit(A, gq)
            del gq[:]
        if b == LASTP + 1:
            emit(A, gq)
            g_store()
            if PAR["pf"] and PAR["fpf"]:
                pf_setup()
            A.e("s_lshl_b32 s6, s4, 18")
            A.e("s_add_u32 s6, s6, 0x%x" % XB_OFF)
            srd(A, rFL, sWS, 262144, "s6")
        dma_upto(min(b - 1 + LA, 15) if b != PAR["lastbar"] else 15)
        if b == 10:
            A.vmw("gst")
        if b == PAR["lastbar"]:
            A.vmw("ch15")
        if kind == "P":
            A.e("v_add_u32 v24, %d, v7" % slot)
            A.e("v_xor_b32 v25, 32, v24")
            A.e("v_xor_b32 v26, 64, v24")
            A.e("v_xor_b32 v27, 0x60, v24")
        else:
            A.e("v_add_u32 v%d, %d, v12" % (waddr(b)[0], slot))
            A.e("v_add_u32 v%d, %d, v13" % (waddr(b)[1], slot))
        A.fs2(20 + b)
        A.vmw("ch%d" % b)
        if PAR["slead"] and b == 8:
            k = A.vm.index("ch9")
            A.e("s_waitcnt vmcnt(%d)" % (len(A.vm) - k))
            A.vm = A.vm[k:]
        if PAR["gam"] and b == 7:
            A.e("s_cmp_lg_u32 s15, 0")
            A.e("s_cbranch_scc1 L_F_w7")
            A.e("s_waitcnt vmcnt(0)")
            A.lab("L_F_w7")
        A.fs2(36 + b)

    def post(b):
        kind, c = ORD[b]
        A.fs(b)
        if kind == "P" and PAR["prd"]:
            ops = dma_ops(A, b + LA, "v5", "v16")
            m1 = len(A.L)
            ops[0]()
            lead = A.L[m1:-2]
            k = max(i for i in range(m1) if A.L[i].strip() == "s_barrier")
            while A.L[k - 1].strip().startswith("s_waitcnt"):
                k -= 1
            A.L[m1:-1] = []
            A.L[k:k] = lead
            for ss in range(4):
                ops[1 + ss]()
                A.lgi("c%d_x" % b, "ds_read_b128 %s, %s" % (a(16 * c + 4 * ss, 4), v(24 + ss)))
            ops[5]()
            if b == 0:
                emit(A, gq[:PAR["g0"]])
                del gq[:PAR["g0"]]
        elif kind == "P":
            for ss in range(4):
                A.lgi("c%d_x" % b, "ds_read_b128 %s, %s" % (a(16 * c + 4 * ss, 4), v(24 + ss)))
            for n in range(2, 16):
                if PAR["slead"] and n == 8:
                    continue
                if (n == b + LA) or (b == 0 and n < LA):
                    if PAR["gam"] and n >= 8:
                        A.e("s_cmp_eq_u32 s15, 0")
                        A.e("s_cbranch_scc1 L_F_skip%d" % n)
                    emit(A, dma_ops(A, n, "v5", "v16"))
                    if PAR["gam"] and n >= 8:
                        A.lab("L_F_skip%d" % n)
            if PAR["slead"] and 0 <= b - PAR["sl0"] < PAR["sln"]:
                A.e("s_cmp_lg_u32 s14, %d" % (b - PAR["sl0"]))
                A.e("s_cbranch_scc1 L_F_sl%d" % b)
                keep = list(A.vm)
                emit(A, dma_ops(A, 8, "v5", "v16"))
                A.vm = keep
                A.lab("L_F_sl%d" % b)
            if b == 0:
                emit(A, gq[:PAR["g0"]])
                del gq[:PAR["g0"]]

    def read(it, sl, tag):
        n, ss, ti = it
        T = tiles[ti]
        for nn in range(2):
            A.lgi(tag, "ds_read_b64_tr_b16 %s, v%d offset:%d" % (v(FB + 4 * sl + 2 * nn, 2), waddr(n)[T & 1],
                                                                ss * 6144 + (T >> 1) * 1024 + nn * 256))

    def mfma(it, sl):
        n, ss, ti = it
        c = ORD[n][1]
        first = (c == 0 and ss == 0)
        A.e("v_mfma_f32_32x32x16_bf16 %s, %s, %s, %s" % (v(ACC + 16 * ti, 16), v(FB + 4 * sl, 4), a(16 * c + 4 * ss, 4),
                                                        "0" if first else v(ACC + 16 * ti, 16)))

    def after(it, mp):
        n, ss, ti = it
        if n == 15 and ss == 3:
            S.fill.append(("dist", S.ninstr()))
            S.fill += swiglu_ops(A, ACC + 16 * ti, 1024 * ti, PAR["pk"] and ti >= 2, late if ti >= 4 - PAR["defF"] else None)
        if mp % (2 if PAR["slead"] and dq and dq[0][0] < PAR["sfrom"] else PAR["fgap"]) == 0:
            dma_upto(S.nb - 1 + PAR["laf"], 1)

    S.pre, S.post, S.read, S.mfma, S.after = pre, post, read, mfma, after
    S.run()
    assert not dq
    A.fs(16)
    S.flush()
    A.fs(19)

    N = len(P2_SEQ)
    AS, AO, BS, BO, GV = 32, 48, 64, 80, 96
    XV, RV = AO, AS
    A.lg = []
    seen = {"Co"}

    def addr(n):
        k_, m_, h_, u_ = P2_SEQ[n]
        if n and (P2_SEQ[n - 1][3] == u_ or u_ < 0):
            return
        if k_ == "W":
            A.e("v_add_u32 v24, %d, v19" % (u_ * 8192))
        elif k_ == "C":
            A.e("v_add_u32 v24, %d, v18" % (u_ * 8192))
            A.e("v_xor_b32 v25, 32, v24")
            A.e("v_xor_b32 v26, 64, v24")
            A.e("v_xor_b32 v27, 0x60, v24")

    def wfb(n):
        if P2_SEQ[n][0] == "C" and P2_SEQ[n][1] < 2:
            return 80 + 16 * P2_SEQ[n][1]
        while n and P2_SEQ[n - 1][3] == P2_SEQ[n][3]:
            n -= 1
        return 32 + 16 * (n % 3)

    def g_reads(tg, other, qs):
        for q in qs:
            A.lgi(tg, "ds_read_b128 %s, %s offset:%d" % (v(GV + 4 * q, 4), "v28" if other else "v22", 16 * q))

    def reads2(n, ss):
        k_, m_, h_, u_ = P2_SEQ[n]
        fa = 16 * (n & 1)
        tg = "r%d_%d" % (n, ss)
        if k_ == "X":
            for r in range(4 * ss, 4 * ss + 4):
                A.lgi(tg, "ds_read_u16 %s, v21 offset:%d" % (v(XV + r), AU(n) - AU(0) + 128 * r))
            if ss == 3:
                A.lgi(tg, "ds_read_u16 v16, v23")
            return
        if k_ == "W":
            A.lgi(tg, "ds_read_b128 %s, v17 offset:%d" % (a(fa + 4 * ss, 4), AU(n) - AU(0) + 1024 * ss))
        else:
            for nn in range(2):
                A.lgi(tg, "ds_read_b64_tr_b16 %s, %s offset:%d" % (a(fa + 4 * ss + 2 * nn, 2), "v10" if nn else "v11",
                                                                  AU(n) - AU(0) + 2048 * (ss >> 1) + 512 * (ss & 1)))
        if n and (P2_SEQ[n - 1][3] == u_ or u_ < 0):
            return
        if k_ == "W":
            for nn in range(2):
                A.lgi(tg, "ds_read_b64_tr_b16 %s, v24 offset:%d" % (a(wfb(n) + 4 * ss + 2 * nn, 2), 2048 * ss + 1024 * nn))
        else:
            A.lgi(tg, "ds_read_b128 %s, %s" % (a(wfb(n) + 4 * ss, 4), v(24 + ss)))

    def mfma2(n, ss):
        k_, m_, h_, u_ = P2_SEQ[n]
        A.lgw("r%d_%d" % (n, ss))
        if k_ == "X":
            return
        acc = v({"Cs": AS, "Co": AO, "Ws": BS, "Wo": BO}[k_ + h_], 16)
        first = (k_ + h_) not in seen
        seen.add(k_ + h_)
        A.e("v_mfma_f32_32x32x16_bf16 %s, %s, %s, %s" % (acc, a(16 * (n & 1) + 4 * ss, 4), a(wfb(n) + 4 * ss, 4), "0" if first else acc))

    def xd(q):
        if q == 0:
            A.e("v_lshlrev_b32 v16, 16, v16")
        r0, r1 = 2 * q, 2 * q + 1
        A.e("v_lshlrev_b32 %s, 16, %s" % (v(XV + r0), v(XV + r0)))
        A.e("v_lshlrev_b32 %s, 16, %s" % (v(XV + r1), v(XV + r1)))
        A.e("v_mul_f32 %s, %s, v16" % (v(XV + r0), v(XV + r0)))
        A.e("v_mul_f32 %s, %s, v16" % (v(XV + r1), v(XV + r1)))
        A.e("v_cvt_pk_bf16_f32 %s, %s, %s" % (v(XV + r0), v(XV + r0), v(XV + r1)))
        A.e("v_and_b32 %s, 0xffff0000, %s" % (v(XV + r1), v(XV + r0)))
        A.e("v_lshlrev_b32 %s, 16, %s" % (v(XV + r0), v(XV + r0)))

    def send(qs):
        if 0 in qs:
            A.e("s_nop 10")
        for q in qs:
            for r in range(4 * q, 4 * q + 4):
                A.e("v_fmac_f32 %s, %s, %s" % (v(AS + r), v(GV + 2 * r + 1), v(BS + r)))
            for r in (4 * q, 4 * q + 2):
                A.e("v_cvt_pk_bf16_f32 %s, %s, %s" % (v(BO + r), v(AS + r), v(AS + r + 1)))
            A.e("buffer_store_dwordx4 %s, v6, %s, s101 offen offset:%d%s" % (v(BO + 4 * q, 4), s(rFL, 4), 1024 * q, stmod("x")))

    def recv_issue():
        for q in range(4):
            A.e("buffer_load_dwordx4 %s, v6, %s, s100 offen offset:%d sc1" % (v(RV + 4 * q, 4), s(rFL, 4), 1024 * q))

    def recv():
        A.e("s_mov_b32 s13, 0")
        A.lab("L_F_rpoll")
        A.e("s_waitcnt vmcnt(0)")
        T = [v(RV + 2 * q + 1) for q in range(8)]
        for op, d in (("v_min3_u32", "v28"), ("v_max3_u32", "v29")):
            A.e("%s %s, %s, %s, s86" % (op, d, T[0], T[1]))
            for q in range(2, 8, 2):
                A.e("%s %s, %s, %s, %s" % (op, d, T[q], T[q + 1], d))
        A.e("v_cmp_ne_u32 vcc, v28, v29")
        A.e("s_cbranch_vccz L_F_rok")
        A.e("s_sleep 2")
        recv_issue()
        A.e("s_add_u32 s13, s13, 1")
        A.e("s_cmp_lt_u32 s13, 0x20000")
        A.e("s_cbranch_scc1 L_F_rpoll")
        A.e("s_waitcnt vmcnt(0)")
        A.lab("L_F_rok")
        A.cnt(58, "s13")

    A.e("v_xor_b32 v28, 0x200, v22")
    assert PAR["fl2"] <= 8 and not PAR["stag"] and PAR["ssp"] in (1, 2) and N - PAR["rc"] >= NSEND + 10
    for n in range(N):
        addr(n)
        if n == PAR["fl2"]:
            assert not late
            A.e("s_waitcnt vmcnt(0)")
        if p2_real(n):
            A.e("s_barrier")
        if "hold" in OPT:
            A.fs(100 + n)
        for ss in range(4):
            if n >= 1:
                mfma2(n - 1, ss)
            reads2(n, ss)
        if late:
            late.pop(0)()
        if 1 <= n <= 4:
            xd(2 * n - 2)
            xd(2 * n - 1)
        if n == 8:
            g_reads("g1", True, range(8))
        if n == 9:
            for q in range(8):
                A.e("v_mov_b32 %s, s86" % v(BO + 2 * q + 1))
        if NSSM + 1 <= n < NSSM + 9:
            A.lgw("g1")
            for r in (2 * (n - NSSM - 1), 2 * (n - NSSM - 1) + 1):
                A.e("v_mul_f32 %s, %s, %s" % (v(AS + r), v(GV + 2 * r), v(AS + r)))
        sp = PAR["ssp"]
        if 0 <= n - NSEND - 1 < sp:
            if n == NSEND + 1:
                A.fs(17)
            q0 = (n - NSEND - 1) * (4 // sp)
            send(range(q0, q0 + 4 // sp))
        if n == NSEND + 1 + sp:
            g_reads("g2", False, range(8))
        if NSEND + 6 <= n < NSEND + 10:
            A.lgw("g2")
            for r in range(4 * (n - NSEND - 6), 4 * (n - NSEND - 6) + 4):
                A.e("v_mul_f32 %s, %s, %s" % (v(AO + r), v(GV + 2 * r), v(AO + r)))
        if n == N - PAR["rl"]:
            recv_issue()
        if n == N - PAR["rc"]:
            A.fs(18)
            recv()
            A.fs(57)
    for ss in range(4):
        mfma2(N - 1, ss)
    A.fs(59)
    def unpack(q):
        A.e("v_and_b32 %s, 0xffff0000, %s" % (v(RV + 2 * q + 1), v(RV + 2 * q)))
        A.e("v_lshlrev_b32 %s, 16, %s" % (v(RV + 2 * q), v(RV + 2 * q)))
        A.e("v_add_f32 %s, %s, %s" % (v(AO + 2 * q + 1), v(AO + 2 * q + 1), v(RV + 2 * q + 1)))
        A.e("v_add_f32 %s, %s, %s" % (v(AO + 2 * q), v(AO + 2 * q), v(RV + 2 * q)))
    for q in range(3):
        unpack(q)
    for r in range(16):
        if r % 2 == 1 and r // 2 + 3 < 8:
            unpack(r // 2 + 3)
        A.e("v_fmac_f32 %s, %s, %s" % (v(AO + r), v(GV + 2 * r + 1), v(BO + r)))
        if r % 2 == 0:
            A.e("s_movk_i32 s6, %d" % (2048 * r))
        A.e("buffer_store_dword %s, v20, %s, s6 offen offset:%d%s" % (v(AO + r), s(rO, 4), 2048 * (r & 1), stmod("o")))
    A.fs(60)
    A.fs_end()
    A.dbg_end()
    A.e("s_endpgm")


def cpow(A, n_scale, dre, dim, t0, t1, va, vb):
    if n_scale == 1.0:
        A.e("v_exp_f32 %s, %s" % (t0, va))
        A.e("v_fract_f32 %s, %s" % (t1, vb))
    else:
        ns = n_scale if isinstance(n_scale, str) else "0x%x" % f2u(n_scale)
        A.e("v_mul_f32 %s, %s, %s" % (t0, ns, va))
        A.e("v_mul_f32 %s, %s, %s" % (t1, ns, vb))
        A.e("v_exp_f32 %s, %s" % (t0, t0))
        A.e("v_fract_f32 %s, %s" % (t1, t1))
    A.e("v_cos_f32 %s, %s" % (dre, t1))
    A.e("v_sin_f32 %s, %s" % (dim, t1))
    A.e("s_nop 0")
    A.e("v_mul_f32 %s, %s, %s" % (dre, dre, t0))
    A.e("v_mul_f32 %s, %s, %s" % (dim, dim, t0))


def cfma_ops(dr, di, mr, mi, xr, xi, ar, ai):
    return ["v_fma_f32 %s, %s, %s, %s" % (dr, mr, xr, ar),
            "v_fma_f32 %s, %s, %s, %s" % (di, mr, xi, ai),
            "v_fma_f32 %s, -%s, %s, %s" % (dr, mi, xi, dr),
            "v_fma_f32 %s, %s, %s, %s" % (di, mi, xr, di)]


def lane0_store(A, cond, val, srd_, soff, off, vt, vz, L):
    for x in cond:
        A.e(x)
    A.e("s_cbranch_scc1 " + L)
    A.cond = True
    A.e("v_mov_b32 %s, %s" % (vt, val))
    A.e("v_mov_b32 %s, 0" % vz)
    A.e("s_mov_b64 exec, 1")
    A.e("buffer_store_dword %s, %s, %s, %s offen offset:%d sc1" % (vt, vz, s(srd_, 4), soff, off))
    A.e("s_mov_b64 exec, -1")
    A.cond = False
    A.lab(L)


def role_S(A):
    A.vm, A.lg = [], []
    A.thr = 99
    A.lab("L_S")
    LR, LI, NLI = "v16", "v17", "v5"
    L16R, L16I, QR, QI, L256R, L256I = "v18", "v19", "v20", "v21", "v22", "v23"
    CR, CI, PR, PI = "v2", "v3", "v10", "v11"
    ER, EI, SR, SI = "v56", "v57", "v58", "v59"
    RE, IM, ACC, FB = 64, 80, 96, 32
    A.e("s_lshl_b32 s6, s5, 6")
    A.e("v_lshlrev_b32 v4, 1, v8")
    A.e("v_add_u32 v4, s6, v4")
    A.e("v_mov_b32 v55, 0")
    if PAR["cpf"]:
        A.e("s_lshr_b32 s6, s2, 3")
        A.e("s_lshl_b32 s6, s6, 2")
        A.e("s_add_u32 s6, s6, s7")
        A.e("s_lshl_b32 s6, s6, 9")
        A.e("v_and_b32 v53, 3, v1")
        A.e("v_lshl_add_u32 v53, v53, 7, s6")
        A.e("v_min_u32 v53, L_code_end - %s_kernel - 4, v53" % NAME)
        A.e("s_getpc_b64 s[44:45]")
        A.lab("L_pc")
        A.e("s_sub_u32 s44, s44, L_pc - %s_kernel" % NAME)
        A.e("s_subb_u32 s45, s45, 0")
        A.e("v_mov_b32 v51, s45")
        A.e("v_add_co_u32 v50, vcc, s44, v53")
        A.e("s_nop 1")
        A.e("v_addc_co_u32 v51, vcc, 0, v51, vcc")
        A.e("s_mov_b64 exec, 15")
        A.vmi("par", "global_load_dword v52, v[50:51], off")
        A.e("s_mov_b64 exec, -1")
    A.e("s_lshl_b32 s6, s5, 7")
    A.e("s_add_u32 s6, s6, 0x%x" % EP_OFF)
    A.e("s_waitcnt lgkmcnt(0)")
    A.vmi("par", "global_load_ushort v60, v4, %s" % s(sLRE, 2))
    A.vmi("par", "global_load_ushort v61, v4, %s" % s(sLIM, 2))
    A.vmi("par", "global_load_ushort v62, v4, %s" % s(sLDT, 2))
    srd(A, rEP, sWS, 4, "s6")
    A.vmi("par", "buffer_load_dword v54, v55, %s, 0 offen sc1" % s(rEP, 4))
    A.e("s_and_b32 s6, s4, 8")
    A.e("s_lshl_b32 s6, s6, 4")
    A.e("s_add_u32 s6, s6, 0x%x" % EPR_OFF)
    srd(A, rG, sWS, 4, "s6")
    A.vmi("par", "buffer_load_dword v56, v55, %s, 0 offen sc1" % s(rG, 4))
    if PAR["tlb"]:
        A.e("s_cmp_lg_u32 s7, 0")
        A.e("s_cbranch_scc1 L_S_notlb")
        A.e("v_lshlrev_b32 v53, 21, v1")
        A.e("s_mov_b64 exec, 1")
        for ptr in (sW1, sW3, sW2, sCRE, sCIM, sDS):
            A.e("global_load_dword v52, v55, %s" % s(ptr, 2))
        A.e("s_mov_b64 exec, 3")
        A.e("global_load_dword v52, v53, %s" % s(sOUT, 2))
        A.e("s_mov_b64 exec, 31")
        A.e("global_load_dword v52, v53, %s" % s(sWS, 2))
        A.e("s_mov_b64 exec, -1")
        A.lab("L_S_notlb")
    common_late(A)
    w_scalars(A)
    srd(A, rW1, sW1, 512 * 2752)
    srd(A, rW3, sW3, 512 * 2752)
    A.e("s_lshl_b32 s6, s5, 13")
    A.e("s_add_u32 s6, s6, 0x%x" % E_OFF)
    srd(A, rE, sWS, 8192, "s6")
    A.e("s_and_b32 s6, s4, 8")
    A.e("s_lshl_b32 s6, s6, 9")
    A.e("s_add_u32 s6, s6, 0x%x" % FL_OFF)
    srd(A, rFL, sWS, 4096, "s6")
    A.e("s_and_b32 s87, s4, 7")
    A.e("s_lshl_b32 s87, s87, 7")
    A.e("s_add_u32 s87, s87, s5")
    A.e("s_lshl_b32 s87, s87, 2")
    rCRE, rCIM, rW2 = 48, 52, 44
    srd(A, rCRE, sCRE, 524288)
    srd(A, rCIM, sCIM, 524288)
    srd(A, rW2, sW2, 1376 * 1024)
    A.e("s_add_u32 s82, s82, 65536")
    A.e("s_lshl_b32 s100, s5, 11")
    A.e("s_add_u32 s100, s100, s81")
    A.e("s_add_u32 s101, s100, 32768")
    A.e("v_lshlrev_b32 v4, 3, v0")
    A.e("v_add_u32 v4, %d, v4" % (MISC + 2048))
    A.e("v_mov_b32 v48, 0")
    A.e("v_mov_b32 v49, 0")
    A.e("ds_write_b64 v4, v[48:49]")
    A.e("ds_write_b32 v4, v48 offset:2048")
    A.e("s_lshl_b32 s6, s7, 1")
    A.e("v_add_u32 v63, s6, v9")
    A.e("v_sub_u32 v4, 7, v63")
    A.e("v_lshlrev_b32 v4, 8, v4")
    A.e("v_lshl_add_u32 v4, v8, 3, v4")
    A.e("v_add_u32 v4, %d, v4" % MISC)
    A.e("v_lshlrev_b32 v63, 4, v63")
    A.e("v_cvt_f32_u32 v63, v63")
    A.e("s_lshl_b32 s6, s7, 9")
    A.e("v_lshlrev_b32 v57, 7, v9")
    A.e("v_add_u32 v57, s6, v57")
    A.e("v_cvt_f32_u32 v57, v57")
    A.e("s_waitcnt lgkmcnt(0)")
    real, A.L = A.L, []
    ni0 = A.ni
    A.e("v_readfirstlane_b32 s14, v54")
    A.e("v_readfirstlane_b32 s86, v56")
    A.e("s_add_u32 s14, s14, 1")
    A.e("s_bitset1_b32 s14, 31")
    A.e("s_add_u32 s86, s86, 1")
    A.e("s_bitset1_b32 s86, 31")
    A.e("v_lshlrev_b32 v60, 16, v60")
    A.e("v_lshlrev_b32 v61, 16, v61")
    A.e("v_lshlrev_b32 v62, 16, v62")
    A.e("v_mul_f32 v62, 0x%x, v62" % f2u(LOG2E))
    A.e("v_exp_f32 v62, v62")
    A.e("s_nop 0")
    A.e("v_cvt_pk_bf16_f32 v62, v62, v62")
    A.e("v_and_b32 v62, 0xffff0000, v62")
    A.e("v_mul_f32 v50, v62, v60")
    A.e("v_mul_f32 v51, v62, v61")
    A.e("v_mul_f32 v50, 0x%x, v50" % f2u(LOG2E))
    A.e("v_mul_f32 v51, 0x%x, v51" % f2u(INV2PI))
    cpow(A, 1.0, LR, LI, "v52", "v53", "v50", "v51")
    cpow(A, 16.0, L16R, L16I, "v52", "v53", "v50", "v51")
    cpow(A, "v57", QR, QI, "v52", "v53", "v50", "v51")
    cpow(A, 256.0, L256R, L256I, "v52", "v53", "v50", "v51")
    cpow(A, "v63", PR, PI, "v52", "v53", "v50", "v51")
    A.e("v_sub_f32 %s, 0, %s" % (NLI, LI))
    A.e("v_mul_f32 v52, v60, v60")
    A.e("v_fmac_f32 v52, v61, v61")
    A.e("v_rcp_f32 v52, v52")
    A.e("v_add_f32 v53, -1.0, %s" % LR)
    A.e("v_mul_f32 %s, v53, v60" % CR)
    A.e("v_fmac_f32 %s, %s, v61" % (CR, LI))
    A.e("v_mul_f32 %s, %s, v60" % (CI, LI))
    A.e("v_fma_f32 %s, -v53, v61, %s" % (CI, CI))
    A.e("v_add_f32 v52, v52, v52")
    A.e("v_mul_f32 %s, %s, v52" % (CR, CR))
    A.e("v_mul_f32 %s, %s, v52" % (CI, CI))
    emit(A, ["v_lshlrev_b32 v54, 5, v8", "v_lshl_add_u32 v54, v9, 4, v54", "v_xor_b32 v55, 0x80, v54"])
    emit(A, ["s_lshl_b32 s6, s7, 2", "s_sub_u32 s6, s6, s4", "s_add_u32 s6, s6, 16",
             "v_add_u32 v62, s6, v9", "v_lshlrev_b32 v60, 9, v62", "v_lshl_add_u32 v60, v8, 4, v60",
             "v_sub_u32 v62, 17, v62", "v_and_b32 v62, -2, v62", "v_max_i32 v62, 0, v62", "v_min_i32 v62, 4, v62",
             "v_lshlrev_b32 v63, 3, v8", "v_add_u32 v63, %d, v63" % (MISC + 8192),
             "s_lshl_b32 s6, s7, 9", "v_lshl_add_u32 v61, v9, 8, v63", "v_add_u32 v61, s6, v61"])

    par_ops = [x.strip() for x in A.L]
    A.L, A.ni = real, ni0

    tiles = [0, 1]
    LA, LAF = PAR["la"], PAR["laf"]
    assert LA <= LAF <= 4
    assert LASTP + 1 <= PAR["estep"] <= PAR["cstep"] and PAR["cstep"] + 1 <= PAR["lastbar"] and PAR["cstep"] + 1 < PAR["hstep"] <= 15 and PAR["lastbar"] >= 12
    S = Stream(A, mk_items(ORD, 2, True), 4, PAR["sd"], PAR["sfill"])
    S.fence = LASTP + 1
    sw = []
    if PAR["dyn"]:
        S.dyn = True
        A.e("s_setprio 2")
    late = []
    dq = []
    for n in range(PAR["sfrom"] if PAR["slead"] else LASTP + LA + 1, PAR["slast"] + 1):
        dq += [(n, f) for f in dma_ops(A, n, "v4", "v7", (0,) if PAR["split"] else (0, 1))]

    def dma_upto(m, maxops=999):
        while dq and dq[0][0] <= m and maxops > 0:
            dq.pop(0)[1]()
            maxops -= 1

    def ssm_publish():
        A.e("s_waitcnt vmcnt(0)")
        A.vm = []
        A.e("s_nop 7")
        A.e("s_nop 3")
        cur = (v(RE), v(IM))
        tmp = [("v48", "v49"), ("v50", "v51")]
        for r in range(1, 16):
            d = (ER, EI) if r == 15 else tmp[r & 1]
            emit(A, cfma_ops(d[0], d[1], LR, LI, cur[0], cur[1], v(RE + r), v(IM + r)))
            cur = d
        A.e("ds_write_b64 v4, v[56:57]")
        A.e("v_mov_b32 v48, %d" % (MISC + 4096))
        A.e("v_mov_b32 v49, 1")
        A.e("s_mov_b64 exec, 1")
        A.e("ds_add_u32 v48, v49")
        A.e("s_mov_b64 exec, -1")
        A.e("s_mov_b32 s13, 0")
        A.lab("L_S_sync")
        A.e("ds_read_b32 v49, v48")
        A.e("s_add_u32 s13, s13, 1")
        A.e("s_waitcnt lgkmcnt(0)")
        A.e("v_readfirstlane_b32 s6, v49")
        A.e("s_cmp_lt_u32 s13, 0x100000")
        A.e("s_cselect_b32 s6, s6, 4")
        A.e("s_cmp_lt_u32 s6, 4")
        A.e("s_cbranch_scc1 L_S_sync")
        A.lg = []
        if PAR["slead"]:
            S.barrier(9)
        er = lambda m: (24 + 2 * m if m < 4 else 32 + 2 * (m - 4))
        for m in range(6, -1, -1):
            A.lgi("er%d" % m, "ds_read_b64 %s, v4 offset:%d" % (v(er(m), 2), 256 * (m + 1)))
        cur = (v(er(6)), v(er(6) + 1))
        for m in range(5, -1, -1):
            d = (SR, SI) if m == 0 else tmp[m & 1]
            A.lgw("er%d" % m)
            emit(A, cfma_ops(d[0], d[1], L16R, L16I, cur[0], cur[1], v(er(m)), v(er(m) + 1)))
            cur = d
        A.e("s_cmp_lg_u32 s7, 3")
        A.e("s_cbranch_scc1 L_S_nopub")
        A.cond = True
        emit(A, cfma_ops("v24", "v26", L16R, L16I, SR, SI, ER, EI))
        A.e("v_mov_b32 v25, s14")
        A.e("v_mov_b32 v27, s14")
        A.e("s_sub_u32 s6, 15, s4")
        A.e("s_lshl_b32 s6, s6, 9")
        A.e("v_lshlrev_b32 v28, 4, v8")
        A.e("s_mov_b32 exec_lo, 0")
        A.e("buffer_store_dwordx4 v[24:27], v28, %s, s6 offen sc1" % s(rE, 4))
        A.e("s_mov_b64 exec, -1")
        A.cond = False
        A.lab("L_S_nopub")
        A.fs(56)
        emit(A, wdma_addr_ops("v4", "v7", "v48"))
        for r in range(16):
            t = "v%d" % (48 + (r & 3))
            S.fill += ["v_mul_f32 %s, %s, %s" % (t, CI, v(RE + r)), "v_mul_f32 %s, %s, %s" % (v(RE + r), CR, v(RE + r)),
                       "v_fma_f32 %s, -%s, %s, %s" % (v(RE + r), CI, v(IM + r), v(RE + r)), "v_fma_f32 %s, %s, %s, %s" % (v(IM + r), CR, v(IM + r), t)]
        if not PAR["coeff"]:
            S.flush()

    def e_issue(tag=None):
        for m in range(2):
            x = "buffer_load_dwordx4 %s, v60, %s, 0 offen offset:%d sc1" % (v(24 + 4 * m, 4), s(rE, 4), 1024 * m)
            if tag:
                A.vmi(tag, x)
            else:
                A.e(x)

    def e_check():
        A.fs(17)
        A.e("s_mov_b32 s13, 0")
        A.vmw("e")
        A.lab("L_S_poll")
        A.e("v_mov_b32 v48, 0")
        for q in range(4):
            A.e("v_cmp_eq_u32 s[%d:%d], s14, %s" % (18 + 2 * q, 19 + 2 * q, v(25 + 2 * q)))
        for q in range(4):
            A.e("v_addc_co_u32 v48, vcc, 0, v48, s[%d:%d]" % (18 + 2 * q, 19 + 2 * q))
        A.e("v_cmp_ne_u32 vcc, v62, v48")
        A.e("s_cbranch_vccz L_S_ready")
        A.cond = True
        A.e("s_sleep 2")
        e_issue()
        A.e("s_add_u32 s13, s13, 1")
        A.e("s_cmp_lt_u32 s13, 0x20000")
        A.e("s_waitcnt vmcnt(0)")
        A.e("s_cbranch_scc1 L_S_poll")
        A.cond = False
        A.lab("L_S_ready")
        A.cnt(15, "s13") if "so" in OPT else None
        emit(A, cfma_ops("v48", "v49", L256R, L256I, "v28", "v30", "v24", "v26"))
        A.e("v_mul_f32 v50, %s, v48" % QR)
        A.e("v_mul_f32 v51, %s, v49" % QR)
        A.e("v_fma_f32 v50, -%s, v49, v50" % QI)
        A.e("v_fmac_f32 v51, %s, v48" % QI)
        A.lgi("pw", "ds_write_b64 v61, v[50:51]")
        A.fs(18)

    def scan_ops():
        o = []
        pr = [24, 26, 28, 30, 48, 50, 52, 56]
        def prd():
            for q in range(8):
                A.lgi("pr", "ds_read_b64 %s, v63 offset:%d" % (v(pr[q], 2), 256 * q))
        bump = lambda: lane0_store(A, ["s_lshl_b32 s6, s7, 4", "s_add_u32 s6, s6, s4", "s_cmp_lg_u32 s6, 15"], "s14", rEP, "0", 0, "v60", "v61", "L_S_noep")
        o += [prd, bump, lambda: A.lgw("pr")]
        for (x, y) in ((0, 1), (2, 3), (4, 5), (6, 7), (0, 2), (4, 6), (4, 0)):
            o.append("v_add_f32 %s, %s, %s" % (v(pr[x]), v(pr[x]), v(pr[y])))
            o.append("v_add_f32 %s, %s, %s" % (v(pr[x] + 1), v(pr[x] + 1), v(pr[y] + 1)))
        o += cfma_ops("v50", "v51", PR, PI, "v48", "v49", SR, SI)
        o += ["v_mul_f32 v48, %s, v50" % CR, "v_mul_f32 v49, %s, v51" % CR, "v_fma_f32 v48, -%s, v51, v48" % CI, "v_fmac_f32 v49, %s, v50" % CI]
        cur = ("v48", "v49")
        for r in range(16):
            o.append("v_fmac_f32 %s, %s, %s" % (v(RE + r), LR, cur[0]))
            o.append("v_fmac_f32 %s, %s, %s" % (v(IM + r), LR, cur[1]))
            o.append("v_fmac_f32 %s, %s, %s" % (v(RE + r), NLI, cur[1]))
            o.append("v_fmac_f32 %s, %s, %s" % (v(IM + r), LI, cur[0]))
            cur = (v(RE + r), v(IM + r))
        for q in range(8):
            o.append("v_cvt_pk_bf16_f32 %s, %s, %s" % (v(RE + q), v(RE + 2 * q), v(RE + 2 * q + 1)))
        for q in range(8):
            o.append("v_cvt_pk_bf16_f32 %s, -%s, -%s" % (v(IM + q), v(IM + 2 * q), v(IM + 2 * q + 1)))
        def st(ks):
            A.vmi("hst", "buffer_store_dwordx4 %s, %s, %s, s%d offen offset:%d%s" % (v((RE, RE + 4, IM, IM + 4)[ks], 4), "v55" if ks & 1 else "v54", s(rAS, 4),
                                                                                   101 if ks >= 2 else 100, 1024 * (ks & 1), stmod()))
            if ks == 3:
                A.fs(19)
        for ks in range(4):
            o.append(lambda ks=ks: st(ks))
            o += [("gap",)] * PAR["stgap"]
        return o

    def prefetch_c():
        A.e("s_lshr_b32 s15, s5, 3")
        A.e("s_lshl_b32 s15, s15, 18")
        A.e("s_lshr_b32 s6, s2, 3")
        A.e("s_lshl_b32 s6, s6, 13")
        A.e("s_add_u32 s15, s15, s6")
        A.e("s_lshl_b32 s6, s7, 11")
        A.e("s_add_u32 s15, s15, s6")
        A.e("v_lshlrev_b32 v18, 7, v1")
        A.e("s_mov_b64 exec, 0xffff")
        A.vmi("pf", "buffer_load_dword v19, v18, %s, s15 offen" % s(rCRE, 4))
        A.vmi("pf", "buffer_load_dword v19, v18, %s, s15 offen" % s(rCIM, 4))
        A.e("s_mov_b64 exec, -1")

    def prefetch_w2():
        A.e("s_lshr_b32 s6, s2, 3")
        A.e("s_mul_i32 s15, s6, 43")
        A.e("s_mul_i32 s6, s7, 11")
        A.e("s_add_u32 s15, s15, s6")
        A.e("s_lshl_b32 s15, s15, 1")
        A.e("s_lshr_b32 s6, s5, 3")
        A.e("s_add_u32 s15, s15, s6")
        A.e("s_lshl_b32 s15, s15, 9")
        A.e("v_lshrrev_b32 v18, 2, v1")
        A.e("v_lshlrev_b32 v18, 3, v18")
        A.e("v_and_or_b32 v18, v1, 3, v18")
        A.e("v_lshlrev_b32 v18, 7, v18")
        A.e("s_mov_b32 exec_hi, 0xfff")
        A.vmi("pf", "buffer_load_dword v19, v18, %s, s15 offen" % s(rW2, 4))
        A.e("s_mov_b64 exec, -1")

    def spf_setup():
        n_ = PAR["spfn"]
        A.e("s_lshr_b32 s6, s2, 3")
        A.e("s_mul_i32 s30, s6, %d" % ((255 + n_) // n_))
        A.e("s_lshr_b32 s30, s30, 8")
        A.e("s_mul_i32 s30, s30, %d" % n_)
        A.e("s_sub_u32 s30, s6, s30")
        A.e("s_lshr_b32 s9, s5, 3")
        A.e("s_lshl_b32 s9, s9, 18")
        A.e("s_lshl_b32 s15, s6, 13")
        A.e("s_add_u32 s9, s9, s15")
        A.e("s_lshl_b32 s15, s7, 11")
        A.e("s_add_u32 s9, s9, s15")
        A.e("s_mul_i32 s15, s6, 43")
        A.e("s_mul_i32 s6, s7, 11")
        A.e("s_add_u32 s15, s15, s6")
        A.e("s_lshl_b32 s15, s15, 1")
        A.e("s_lshr_b32 s6, s5, 3")
        A.e("s_add_u32 s15, s15, s6")
        A.e("s_lshl_b32 s15, s15, 9")

    def spf_site(q, va='v18', vd='v19'):
        def f():
            A.e("s_cmp_lg_u32 s30, %d" % q)
            A.e("s_cbranch_scc1 L_spf%d" % q)
            A.cond = True
            A.e(("v_lshlrev_b32 v18, 7, v1").replace("v18", va).replace("v19", vd))
            A.e("s_mov_b64 exec, 0xffff")
            A.e(("buffer_load_dword v19, v18, %s, s9 offen" % s(rCRE, 4)).replace("v18", va).replace("v19", vd))
            A.e(("buffer_load_dword v19, v18, %s, s9 offen" % s(rCIM, 4)).replace("v18", va).replace("v19", vd))
            A.e("s_mov_b64 exec, -1")
            A.e(("v_lshrrev_b32 v18, 2, v1").replace("v18", va).replace("v19", vd))
            A.e(("v_lshlrev_b32 v18, 3, v18").replace("v18", va).replace("v19", vd))
            A.e(("v_and_or_b32 v18, v1, 3, v18").replace("v18", va).replace("v19", vd))
            A.e(("v_lshlrev_b32 v18, 7, v18").replace("v18", va).replace("v19", vd))
            A.e("s_mov_b32 exec_hi, 0xfff")
            A.e(("buffer_load_dword v19, v18, %s, s15 offen" % s(rW2, 4)).replace("v18", va).replace("v19", vd))
            A.e("s_mov_b64 exec, -1")
            A.cond = False
            A.lab("L_spf%d" % q)
        return f

    def warm_w():
        A.e("s_and_b32 s6, s83, 7")
        A.e("s_lshl_b32 s6, s6, 2")
        A.e("s_add_u32 s6, s6, s7")
        A.e("s_mul_i32 s6, s6, %d" % (16 * 2752))
        A.e("s_mul_i32 s13, s5, 192")
        A.e("s_add_u32 s6, s6, s13")
        A.e("s_add_u32 s6, s6, s92")
        A.e("v_lshrrev_b32 v52, 1, v8")
        A.e("v_mul_u32_u24 v52, 2752, v52")
        A.e("v_and_b32 v53, 1, v1")
        A.e("v_lshl_add_u32 v52, v53, 7, v52")
        A.e("s_mov_b32 exec_hi, 0")
        A.e("s_bitcmp1_b32 s4, 3")
        A.e("s_cbranch_scc1 L_ww3")
        A.e("buffer_load_dword v53, v52, %s, s6 offen" % s(rW1, 4))
        A.e("s_branch L_ww")
        A.lab("L_ww3")
        A.e("buffer_load_dword v53, v52, %s, s6 offen" % s(rW3, 4))
        A.lab("L_ww")
        A.e("s_mov_b64 exec, -1")

    def warm2():
        A.e("s_bfe_u32 s6, s2, 0x20001")
        A.e("s_lshr_b32 s9, s2, 3")
        A.e("s_lshl_b32 s9, s9, 2")
        A.e("s_add_u32 s9, s9, s6")
        A.e("s_lshl_b32 s9, s9, 2")
        A.e("s_add_u32 s9, s9, s7")
        A.e("s_mul_i32 s15, s9, 1408")
        A.e("s_lshl_b32 s9, s9, 10")
        A.e("s_bitcmp1_b32 s5, 2")
        A.e("s_cselect_b64 %s, %s, %s" % (s(rCRE, 2), s(sCIM, 2), s(sCRE, 2)))
        A.e("s_cselect_b32 s6, %d, 0" % (704 * 1024))
        A.e("s_add_u32 s15, s15, s6")
        A.e("v_lshlrev_b32 v58, 7, v1")
        A.e("s_mov_b64 exec, 0xff")
        A.vmi("wm", "buffer_load_dword v59, v58, %s, s9 offen" % s(rCRE, 4))
        A.e("s_mov_b64 exec, 0x7ff")
        A.vmi("wm", "buffer_load_dword v59, v58, %s, s15 offen" % s(rW2, 4))
        if PAR["ft"]:
            A.e("s_mov_b64 exec, 5")
            A.vmi("wm", "buffer_load_dword v59, v58, %s, s87 offen" % s(rFL, 4))
            A.e("s_mov_b64 exec, 0xff")
            A.vmi("wm", "global_load_dword v59, v58, %s" % s(sDS, 2))
        A.e("s_mov_b64 exec, -1")

    if PAR["spf"] or (PAR["mpf"] >= 0 and not PAR["mv"]):
        spf_setup()
    if PAR["mpf"] >= 0 and not PAR["mv"]:
        A.e("s_bfe_u32 s6, s2, 0x10002")
        A.e("s_lshl_b32 s6, s6, 1")
        A.e("s_and_b32 s30, s2, 1")
        A.e("s_add_u32 s30, s30, s6")
        A.e("s_sub_u32 s30, s30, s7")
    if PAR["pf"] and not PAR["spf"] and not PAR["fpf"]:
        dq.append((PAR["pfc"] + LAF, prefetch_c))
        if PAR["pfw"] <= 15:
            dq.append((PAR["pfw"] + LAF, prefetch_w2))

    N = len(P2_SEQ)
    LA2 = PAR["ala"]
    assert LA2 <= NA - 2

    rAs_, rAo_ = 56, 60

    def p2_setup1():
        tile_of(A, "s11", "s10", "s31")
        if PAR["p2map"]:
            A.e("s_and_b32 s6, s4, 3")
            A.e("s_lshl_b32 s13, s6, 1")
            A.e("s_add_u32 s13, s13, s10")
            A.e("s_mul_i32 s14, s6, 3")
            A.e("s_mul_i32 s6, s10, 11")
        else:
            A.e("s_and_b32 s6, s10, 3")
            A.e("s_lshl_b32 s13, s6, 1")
            A.e("s_add_u32 s13, s13, s4")
            A.e("s_mul_i32 s14, s6, 3")
            A.e("s_and_b32 s6, s4, 7")
            A.e("s_mul_i32 s6, s6, 11")
        A.e("s_lshr_b32 s6, s6, 3")
        A.e("s_add_u32 s14, s14, s6")
        A.e("s_sub_u32 s6, s14, 11")
        A.e("s_cmp_ge_u32 s14, 11")
        A.e("s_cselect_b32 s14, s6, s14")
        A.e("s_lshl_b32 s9, s7, 11")
        A.e("s_cmp_lg_u32 s11, 0")
        A.e("s_cselect_b64 %s, %s, %s" % (s(rCRE, 2), s(sCIM, 2), s(sCRE, 2)))
        A.e("v_and_b32 v11, 7, v1")
        A.e("v_lshrrev_b32 v22, 3, v1")
        A.e("v_lshrrev_b32 v10, 4, v1")
        A.e("v_xor_b32 v10, v10, v11")
        A.e("v_lshlrev_b32 v10, 4, v10")
        A.e("v_lshl_add_u32 v4, v22, 10, v10")
        A.e("s_lshl_b32 s6, s7, 14")
        A.e("s_lshl_b32 s12, s10, 16")
        A.e("s_add_u32 s12, s12, s6")
        A.e("v_add_u32 v4, s12, v4")
        A.e("v_xor_b32 v5, 64, v4")
        A.e("v_add_u32 v5, 8192, v5")

    def p2_setup2():
        A.e("s_and_b32 s12, s7, 1")
        A.e("s_lshr_b32 s15, s7, 1")
        A.e("s_lshl_b32 s15, s15, 11")
        A.e("s_lshl_b32 s8, s12, 12")
        A.e("s_add_u32 s8, s8, s15")
        A.e("s_lshl_b32 s6, s11, 15")
        A.e("s_add_u32 s6, s6, s15")
        A.e("v_add_u32 v2, s6, v6")
        A.e("s_mul_i32 s6, s11, 45056")
        A.e("s_add_u32 s6, s6, s15")
        A.e("s_add_u32 s6, s6, 65536")
        A.e("v_add_u32 v23, s6, v6")
        A.e("s_lshl_b32 s6, s31, 1")
        A.e("s_add_u32 s6, s6, s11")
        A.e("s_lshl_b32 s6, s6, 1")
        A.e("s_add_u32 s6, s6, s12")
        A.e("s_xor_b32 s15, s6, 2")
        A.e("s_mul_i32 s6, s6, %d" % (NKS * 1024))
        A.e("s_mul_i32 s15, s15, %d" % (NKS * 1024))
        srd(A, rAo_, sWS, NKS * 1024, "s6")
        srd(A, rAs_, sWS, NKS * 1024, "s15")
        A.e("v_bfe_u32 v10, v1, 4, 1")
        A.e("v_lshlrev_b32 v10, 2, v10")
        A.e("v_xor_b32 v10, v10, v11")
        A.e("v_lshlrev_b32 v10, 4, v10")
        A.e("v_lshl_add_u32 v3, v22, 10, v10")
        A.e("s_lshl_b32 s6, s7, 14")
        A.e("s_lshl_b32 s12, s10, 7")
        A.e("s_add_u32 s12, s12, s6")
        A.e("s_mul_i32 s6, s11, %d" % (704 * 1024))
        A.e("s_add_u32 s12, s12, s6")
        A.e("v_add_u32 v3, s12, v3")
        A.e("v_add_u32 v7, 8192, v3")
        A.e("v_and_b32 v17, 15, v1")
        A.e("s_and_b32 s6, s31, 7")
        A.e("s_lshl_b32 s6, s6, 9")
        A.e("v_lshl_add_u32 v17, v17, 2, s6")

    def idx(kind, m):
        if kind == "C":
            A.e("s_add_u32 s12, s13, %d" % m)
            A.e("s_and_b32 s12, s12, 7")
        else:
            A.e("s_add_u32 s12, s14, %d" % m)
            A.e("s_sub_u32 s6, s12, 11")
            A.e("s_cmp_ge_u32 s12, 11")
            A.e("s_cselect_b32 s12, s6, s12")

    def dma_w(q):
        kind, m, u, first, free = P2_W[q]
        idx(kind, m)
        A.e("s_lshl_b32 s12, s12, %d" % (16 if kind == "W" else 7))
        r_, va, vb = (rW2, "v3", "v7") if kind == "W" else (rCRE, "v4", "v5")
        A.e("s_add_u32 m0, s9, %d" % (u * 8192))
        A.e("s_nop 0")
        A.vmi("w%d" % first, "buffer_load_dwordx4 %s, %s, s12 offen lds" % (va, s(r_, 4)))
        A.e("s_add_u32 m0, s9, %d" % (u * 8192 + 1024))
        A.e("s_nop 0")
        A.vmi("w%d" % first, "buffer_load_dwordx4 %s, %s, s12 offen lds" % (vb, s(r_, 4)))

    def dma_g(tag):
        srd(A, rEP, sWS, 16384, "0x%x" % G_OFF)
        A.e("s_lshl_b32 s12, s31, 2")
        A.e("s_add_u32 s12, s12, s7")
        A.e("s_lshl_b32 s12, s12, 8")
        A.e("s_lshl_b32 s6, s7, 8")
        A.e("s_add_u32 m0, s6, %d" % GU)
        A.e("s_mov_b64 exec, 0xffff")
        A.vmi(tag, "buffer_load_dwordx4 v6, %s, s12 offen sc1 lds" % s(rEP, 4))
        A.e("s_mov_b64 exec, -1")

    def dma_a(n):
        kind, m, hf, u = P2_SEQ[n]
        if kind == "X":
            srd(A, rE, sX, 2048 * 1024)
            A.e("s_lshl_b32 s6, s31, 1")
            A.e("s_add_u32 s6, s6, s11")
            A.e("s_lshl_b32 s6, s6, 2")
            A.e("s_add_u32 s6, s6, s7")
            A.e("s_lshl_b32 s6, s6, 14")
            A.e("s_lshl_b32 s12, s10, 7")
            A.e("s_add_u32 s12, s12, s6")
            A.e("v_and_b32 v10, 7, v1")
            A.e("v_lshlrev_b32 v10, 4, v10")
            A.e("v_lshl_add_u32 v10, v22, 10, v10")
            A.e("s_add_u32 m0, s9, %d" % AU(n))
            A.e("s_add_u32 s6, s12, 8192")
            A.vmi("a%d" % n, "buffer_load_dwordx4 v10, %s, s12 offen lds" % s(rE, 4))
            A.e("s_add_u32 m0, s9, %d" % (AU(n) + 1024))
            A.e("s_nop 0")
            A.vmi("a%d" % n, "buffer_load_dwordx4 v10, %s, s6 offen lds" % s(rE, 4))
            srd(A, rEP, sDS, 1024)
            A.e("s_lshl_b32 s12, s10, 7")
            A.e("s_mov_b32 m0, %d" % (GU + 1024))
            A.e("s_mov_b64 exec, 0xff")
            A.vmi("a%d" % n, "buffer_load_dwordx4 v6, %s, s12 offen lds" % s(rEP, 4))
            A.e("s_mov_b64 exec, -1")
            return
        idx(kind, m)
        A.e("s_lshl_b32 s12, s12, 12")
        A.e("s_add_u32 m0, s8, %d" % AU(n))
        A.e("s_nop 0")
        va, r_ = ("v23" if kind == "W" else "v2"), (rAs_ if hf == "s" else rAo_)
        A.vmi("a%d" % n, "buffer_load_dwordx4 %s, %s, s12 offen sc1 lds" % (va, s(r_, 4)))
        A.vmi("a%d" % n, "buffer_load_dwordx4 %s, %s, s12 offen offset:1024 sc1 lds" % (va, s(r_, 4)))

    def check(tag, off, L):
        A.e("s_mov_b32 s15, 0")
        A.vmw(tag)
        A.lab(L + "_poll")
        A.e("v_cmp_ne_u32 vcc, s86, v16")
        A.e("s_cbranch_vccz %s_go" % L)
        A.e("s_sleep %d" % PAR["slp"])
        A.e("buffer_load_dword v16, v17, %s, 0 offen offset:%d sc1" % (s(rFL, 4), off))
        A.e("s_add_u32 s15, s15, 1")
        A.e("s_cmp_lt_u32 s15, 0x20000")
        A.e("s_waitcnt vmcnt(0)")
        A.e("s_cbranch_scc1 %s_poll" % L)
        A.lab(L + "_go")
        if L in ("L_p2a", "L_p2b"):
            A.cnt(59 if L == "L_p2a" else 60, "s15")

    def pre(b):
        kind, c = ORD[b]
        slot = slot_of(b)
        if b == 0 and PAR["wpf"] == 99:
            warm_w()
        if b == 0 and PAR["mpf"] == 99:
            spf_site(0, "v58", "v59")()
        if b == LASTP + 1 and not PAR["slead"]:
            S.flush()
            S.K = PAR["sfill"]
            ssm_publish()
            A.thr = PAR["thr"]
        if b == PAR["cstep"] + 1:
            S.flush()
            A.lgw("pw")
        if b == PAR["cstep"] + 2:
            assert "pr" not in A.lg
        dma_upto(min(b - 1 + LA, 15) if b != PAR["lastbar"] else 15)
        if kind == "P":
            A.e("v_add_u32 v28, %d, v7" % slot)
            A.e("v_xor_b32 v29, 32, v28")
            A.e("v_xor_b32 v30, 64, v28")
            A.e("v_xor_b32 v31, 0x60, v28")
            for q in range(4):
                A.e("v_add_u32 %s, s8, %s" % (v(24 + q), v(28 + q)))
        A.fs2(20 + b)
        A.vmw("ch%d" % (b if b != PAR["lastbar"] else min(15, max(b, PAR["slast"]))))
        A.fs2(36 + b)

    def hflag():
        assert "hst" in A.vm or True
        A.vmw("hst")
        A.e("v_mov_b32 v24, %d" % (LDS_CNT))
        A.e("v_mov_b32 v25, 1")
        A.e("s_mov_b64 exec, 1")
        A.lgi("hc", "ds_add_rtn_u32 v26, v24, v25")
        A.e("s_mov_b64 exec, -1")

    def hflag2():
        A.lgw("hc")
        A.e("v_readfirstlane_b32 s6, v26")
        lane0_store(A, ["s_cmp_lg_u32 s6, 3"], "s86", rFL, "s87", 0, "v24", "v25", "L_S_nofl")
        A.fs(57)

    def post(b):
        A.fs(b)
        if b == PAR["pstep"]:
            S.fill += [lambda: A.vmw("par")] + par_ops
            S.K = PAR["pfill"]
        if b == PAR["wpf"]:
            warm_w()
        if b == PAR["mpf"] and PAR["mv"]:
            S.fill.append(warm2)
        elif b == PAR["mpf"]:
            spf_site(0, "v58", "v59")()
        if PAR["spf"] and 0 <= b - PAR["spf0"] < PAR["spfn"]:
            spf_site(b - PAR["spf0"])()
        if b == PAR["estep"]:
            e_issue("e")
        if b == PAR["cstep"]:
            S.fill += [("gap",)] * PAR["cdelay"] + [e_check]
        if b == PAR["cstep"] + 1:
            S.fill += scan_ops()
            S.K = PAR["sfill2"]
        if b == PAR["hstep"]:
            S.fill += [hflag, ("gap",), hflag2]
        if b == PAR["estart"]:
            assert PAR["lastbar"] <= b and PAR["nt"] <= 2 and 2 <= PAR["ew"] <= (6 if PAR["lastbar"] >= 14 else 3) and PAR["ea"] <= (6 if PAR["lastbar"] >= 13 else 3)
            S.fill += [p2_setup1, ("gap",)]
            if PAR["xe"]:
                S.fill += [lambda: dma_a(0), ("gap",)]
            for n in range(PAR["ew"]):
                S.fill += [lambda n=n: dma_w(n), ("gap",)]
            S.fill += [p2_setup2]

    def read(it, sl, tag):
        n, ss, ti = it
        kind, c = ORD[n]
        if kind == "P":
            if ti == 0:
                A.lgi(tag, "ds_read_b128 %s, %s" % (a(16 * c + 4 * ss, 4), v(24 + ss)))
            A.lgi(tag, "ds_read_b128 %s, %s offset:%d" % (v(FB + 4 * sl, 4), v(28 + ss), 16384 + 4096 * ti))
        else:
            T = tiles[ti]
            if ss == 0 and ti == 0:
                A.e("v_add_u32 v14, %d, v12" % slot_of(n))
                A.e("v_add_u32 v15, %d, v13" % slot_of(n))
            for nn in range(2):
                A.lgi(tag, "ds_read_b64_tr_b16 %s, v%d offset:%d" % (v(FB + 4 * sl + 2 * nn, 2), 14 + (T & 1),
                                                                    ss * 6144 + (T >> 1) * 1024 + nn * 256))

    def mfma(it, sl):
        n, ss, ti = it
        kind, c = ORD[n]
        first = (c == 0 and ss == 0)
        if kind == "P":
            d = (RE, IM)[ti]
            A.e("v_mfma_f32_32x32x16_bf16 %s, %s, %s, %s" % (v(d, 16), a(16 * c + 4 * ss, 4), v(FB + 4 * sl, 4), "0" if first else v(d, 16)))
        else:
            d = ACC + 16 * ti
            A.e("v_mfma_f32_32x32x16_bf16 %s, %s, %s, %s" % (v(d, 16), v(FB + 4 * sl, 4), a(16 * c + 4 * ss, 4), "0" if first else v(d, 16)))

    def after(it, mp):
        n, ss, ti = it
        if n == 15 and ss == 3:
            S.fill.append(("dist", S.ninstr()))
            sw.append(swiglu_ops(A, ACC + 16 * ti, 1024 * ti, False, late if ti >= 2 - PAR["defS"] else None))
        if PAR["slead"] and n == LASTP and ss == 3 and ti == 1:
            S.flush()
            S.K = PAR["sfill"]
            S.barrier(8)
            ssm_publish()
        if n > LASTP and (not PAR["split"] or mp % PAR["sgap"] == 0):
            dma_upto(S.nb - 1 + LAF, 1)

    S.pre, S.post, S.read, S.mfma, S.after = pre, post, read, mfma, after
    S.run()
    assert not dq
    A.fs(16)
    A.vmi("poll", "buffer_load_dword v16, v17, %s, 0 offen sc1" % s(rFL, 4))
    S.flush()
    emit(A, sw[0])
    A.fs(58)
    A.thr = PAR["thr2"]
    check("poll", 0, "L_p2a")
    A.fs(55)
    for n in range(PAR["xe"], PAR["ea"]):
        dma_a(n)
    dma_g("g")
    emit(A, sw[1])
    wn, an = PAR["ew"], PAR["ea"]
    for n in range(N):
        if not p2_real(n):
            assert wn == len(P2_W)
            continue
        mark0 = len(A.L)
        A.vmw("w%d" % n)
        A.vmw("a%d" % n)
        if not p2_real(n + 1):
            A.vmw("w%d" % (n + 1))
            A.vmw("a%d" % (n + 1))
        if n == 8:
            A.vmw("g")
        if n == PAR["fl2"]:
            assert not late
            A.vmw("st")
        A.e("s_barrier")
        mark1 = len(A.L)
        A.fs(20 + n) if n < 35 else None
        if n == PAR["fl2"]:
            lane0_store(A, ["s_cmp_lg_u32 s3, 0"], "s86", rFL, "s87", 256, "v10", "v11", "L_p2_nofl")
        if n == PAR["chk2"]:
            check("poll2", 256, "L_p2b")
        if n == PAR["p2poll"]:
            A.vmi("poll2", "buffer_load_dword v16, v17, %s, 0 offen offset:256 sc1" % s(rFL, 4))
        if "burn" in OPT:
            for q in range(PAR["burn"]):
                A.e("ds_read_b128 v[%d:%d], v6 offset:%d" % (24 + 4 * (q & 7), 27 + 4 * (q & 7), 1024 * q + 8192 * (n % 6)))
        if "burnv" in OPT:
            for q in range(PAR["burn"]):
                A.e("v_fma_f32 v%d, v%d, v%d, v%d" % (24 + (q & 15), 64 + (q & 31), 96 + (q & 31), 24 + (q & 15)))
        budget = 3 if n == PAR["chk2"] else 2
        while budget > 0:
            a_ok = an < N and an <= n + LA2 and (an < NSSM or n >= PAR["chk2"])
            w_ok = wn < len(P2_W) and P2_W[wn][4] <= n
            if a_ok and not (w_ok and P2_W[wn][3] < an):
                dma_a(an); an += 1
            elif w_ok:
                dma_w(wn); wn += 1
            else:
                break
            budget -= 1
        if late and n >= 1 and n % 2 == 1:
            late.pop(0)()
        if PAR["pf"] and not PAR["spf"] and not PAR["fpf"] and PAR["pfw"] > 15 and n == PAR["pfw2"]:
            prefetch_w2()
        assert (an > n + (1 if p2_real(n + 2) and p2_real(n + 1) else 3) or an == N) and (wn == len(P2_W) or P2_W[wn][3] > n + 1)
        if PAR["hoist"]:
            k = mark1
            while k < len(A.L) and A.L[k].split()[0] in ("s_add_u32", "s_and_b32", "s_lshl_b32", "s_sub_u32", "s_cmp_ge_u32", "s_cselect_b32", "s_nop"):
                k += 1
            if k < len(A.L) and A.L[k].split()[0] == "buffer_load_dwordx4":
                lead = [x for x in A.L[mark1:k] if "s_nop" not in x]
                A.L[mark0:k] = lead + A.L[mark0:mark1]
    assert an == N and wn == len(P2_W)
    A.e("s_or_b32 s6, s87, s7")
    A.e("s_cmp_lg_u32 s6, 0")
    A.e("s_cbranch_scc1 L_p2_noep")
    A.e("v_lshrrev_b32 v10, 4, v1")
    A.e("v_and_b32 v17, 15, v1")
    A.e("v_lshlrev_b32 v17, 2, v17")
    A.e("v_lshl_add_u32 v17, v10, 9, v17")
    for off, L in ((256, "L_p2c"), (2048 + 256, "L_p2d")):
        A.vmi("pe", "buffer_load_dword v16, v17, %s, 0 offen offset:%d sc1" % (s(rFL, 4), off))
        check("pe", off, L)
    lane0_store(A, ["s_cmp_lg_u32 s7, 0"], "s86", rG, "0", 0, "v10", "v11", "L_p2_noep")
    A.fs_end()
    A.e("s_endpgm")


def gen_all(A):
    K = NAME + "_kernel"
    A.L.append(".globl %s\n.p2align 8\n.type %s,@function\n%s:" % (K, K, K))
    prologue(A)
    role_F(A)
    fm = A.L[A.fmain:]
    del A.L[A.fmain:]
    role_S(A)
    A.L += fm
    A.lab("L_end")
    A.e("s_endpgm")
    A.lab("L_code_end")


def kd(name, nv, acc, ns=102):
    return """.amdhsa_kernel %s
  .amdhsa_next_free_vgpr %d
  .amdhsa_next_free_sgpr %d
  .amdhsa_accum_offset %d
  .amdhsa_group_segment_fixed_size 0
  .amdhsa_kernarg_size 136
  .amdhsa_user_sgpr_count 2
  .amdhsa_user_sgpr_kernarg_segment_ptr 1
  .amdhsa_system_sgpr_workgroup_id_x 1
.end_amdhsa_kernel
""" % (name, nv, ns, acc)


DOC = """
; One launch, 256 workgroups (one per CU) of 8 waves; generated by a script of the author (unrolled, statically scheduled).
; Phase 1, workgroup (r, j): 128 rows of x stay in AGPRs as MFMA fragments; weights stream through a 6-slot LDS ring (LDS-DMA).
;   waves 0-3: Bu for 32 states, exact chunked scan (block end states are exchanged through d_ws as tagged words), 2 FFN tiles
;   waves 4-7: 4 FFN tiles (gate/up + SwiGLU) and the gate g.   h, H (bf16) and g go to d_ws with write-through stores + flags.
; Phase 2: pairs of workgroups share a 128x64 output tile, each takes half of K of [h | H] @ [C | w2]; waves 0-3 load,
;   waves 4-7 multiply; the partial sum of the partner's rows is handed over as tagged words.
; Tags/flags are derived from epoch words in d_ws that each launch advances once every reader has seen them.
""".strip().splitlines()


def main(path):
    ref = open("cdna_kernels/%s.s.ref" % NAME).read().splitlines()
    head = [l for l in ref if l.startswith(";") and "@launch" not in l and "Override launch" not in l and "grid=ceil" not in l]
    head = head[:18]
    A = Asm()
    gen_all(A)
    out = head + [
        "; @launch grid=(256,1,1) block=(512,1,1) lds=%d" % K1_LDS,
        '.amdgcn_target "amdgcn-amd-amdhsa--gfx950"'] + DOC + [".text"] + A.L + [
        '.section .rodata,"a"', ".p2align 6", kd(NAME + "_kernel", 256, 128)]
    open(path, "w").write("\n".join(out))


if __name__ == "__main__":
    if "--stamp" in sys.argv:
        STAMP = True
        sys.argv.remove("--stamp")
    for x in list(sys.argv):
        if x.startswith("-O"):
            OPT.add(x[2:]); sys.argv.remove(x)
        elif x.startswith("-U"):
            OPT.discard(x[2:]); sys.argv.remove(x)
        elif x.startswith("-P"):
            kk, vv = x[2:].split("=")
            PAR[kk] = vv if kk.startswith("ord") else int(vv)
            sys.argv.remove(x)
    main(sys.argv[1] if len(sys.argv) > 1 else "cdna_kernels/%s.s" % NAME)
```
